```python
import torch

def _softmax(x, axis=-1):
    return torch.softmax(x, dim=axis)
def _gelu(x):
    return torch.nn.functional.gelu(x, approximate="tanh")
def _silu(x):
    return torch.nn.functional.silu(x)
def _sigmoid(x):
    return torch.sigmoid(x)
def _layernorm(x, axis=-1, eps=1e-5):
    m = x.mean(dim=axis, keepdim=True)
    v = x.var(dim=axis, keepdim=True, unbiased=False)
    return (x - m) / torch.sqrt(v + eps)
def _scatter_add(tgt, idx, src, axis=0):
    return tgt.clone().index_add_(axis, idx, src)
def _segment_sum(src, seg, n):
    out = torch.zeros((n,) + src.shape[1:], dtype=src.dtype)
    return out.index_add_(0, seg, src)
def _pad(x, pw):
    flat = tuple(v for pair in reversed(pw) for v in pair)
    return torch.nn.functional.pad(x, flat)

kernel_name = 'concat_heads__sliding_local_dilated__compressed_kv_cla__prompt'

def setup_inputs():

    _w = (lambda a: (lambda t: t.to(torch.bfloat16) if t.is_floating_point() else t)(torch.as_tensor(a)))
    def _A_setup():
        B, S, D = 1, 2048, 1024
        return {
            "x": _w((lambda *s: torch.randn(*s, dtype=torch.bfloat16) * 0.2)(B, S, D)),
            "wqkv": _w((lambda *s: torch.randn(*s, dtype=torch.bfloat16) * 0.2)(D, 3 * D)),
            "wo": _w((lambda *s: torch.randn(*s, dtype=torch.bfloat16) * 0.05)(D, D)),
        }
    _A_in = _A_setup()

    def _B_setup():
        B, H, Sq, Sk, D, M = 1, 32, 2048, 2048, 128, 1024
        Dc = 4 * D
        return {
            "x": _w((lambda *s: torch.randn(*s, dtype=torch.bfloat16) * 0.2)(B, Sq, M)),
            "c_kv": _w((lambda *s: torch.randn(*s, dtype=torch.bfloat16) * 1.6)(B, Sk, Dc)),
            "w_q": _w((lambda *s: torch.randn(*s, dtype=torch.bfloat16) * 3.2)(M, H, D) * (M ** -0.5)),
            "w_uk": _w((lambda *s: torch.randn(*s, dtype=torch.bfloat16) * 3.2)(Dc, H, D) * (Dc ** -0.5)),
            "w_uv": _w((lambda *s: torch.randn(*s, dtype=torch.bfloat16) * 1.6)(Dc, H, D) * (Dc ** -0.5)),
            "w_o": _w((lambda *s: torch.randn(*s, dtype=torch.bfloat16) * 1.6)(H, D, M) * ((H * D) ** -0.5)),
        }
    _B_in = _B_setup()

    return {
        "A_x": _A_in["x"],
        "A_wqkv": _A_in["wqkv"],
        "A_wo": _A_in["wo"],
        "B_x": _B_in["x"],
        "B_c_kv": _B_in["c_kv"],
        "B_w_q": _B_in["w_q"],
        "B_w_uk": _B_in["w_uk"],
        "B_w_uv": _B_in["w_uv"],
        "B_w_o": _B_in["w_o"],
    }

def reference(A_x, A_wqkv, A_wo, B_x, B_c_kv, B_w_q, B_w_uk, B_w_uv, B_w_o):
    def _A_ref(x, wqkv, wo):
        B, S, D = x.shape
        H = 32; Dh = D // H
        W, dil = 8, 2
        qkv = (lambda x, *d: x.permute(*d))((x @ wqkv).reshape(B, S, 3, H, Dh), 2, 0, 3, 1, 4)
        q, k, v = qkv[0], qkv[1], qkv[2]
        scale = Dh ** -0.5
        pos = torch.arange(S)
        off = torch.arange(W) * dil
        idx = pos[:, None] - off[None, :]
        mask = idx >= 0
        idx_c = torch.where(mask, idx, 0).reshape(-1)
        kg = k[:, :, idx_c, :].reshape(B, H, S, W, Dh)
        vg = v[:, :, idx_c, :].reshape(B, H, S, W, Dh)
        logits = torch.einsum("bhsd,bhswd->bhsw", q, kg) * scale
        logits = torch.where(mask[None, None, :, :], logits, -1e9)
        attn = _softmax(logits, axis=-1)
        o = torch.einsum("bhsw,bhswd->bhsd", attn, vg)
        return (lambda x, *d: x.permute(*d))(o, 0, 2, 1, 3).reshape(B, S, D) @ wo

    def _B_ref(x, c_kv, w_q, w_uk, w_uv, w_o):
        B, Sq, M = x.shape[0], x.shape[1], x.shape[2]
        Sk = c_kv.shape[1]
        H, D = w_q.shape[1], w_q.shape[2]
        q = torch.einsum("bqm,mhd->bhqd", x, w_q)
        k = torch.einsum("bkc,chd->bhkd", c_kv, w_uk)
        v = torch.einsum("bkc,chd->bhkd", c_kv, w_uv)
        scores = torch.einsum("bhqd,bhkd->bhqk", q, k) * (D ** -0.5)
        off = Sk - Sq
        qi = torch.arange(Sq)[:, None]
        kj = torch.arange(Sk)[None, :]
        cmask = kj <= (qi + off)
        scores = torch.where(cmask[None, None], scores, -1e9)
        p = _softmax(scores, axis=-1)
        ctx = torch.einsum("bhqk,bhkd->bhqd", p, v)
        return torch.einsum("bhqd,hdm->bqm", ctx, w_o)

    a = _A_ref(A_x, A_wqkv, A_wo)
    b = _B_ref(B_x, B_c_kv, B_w_q, B_w_uk, B_w_uv, B_w_o)
    return torch.concatenate([a, b], axis=-1)
```

```python
class Regs:
    def __init__(self, prefix, lo, hi):
        self.p, self.next, self.hi = prefix, lo, hi
        self.names = {}
        self.high = lo
    def alloc(self, name, n=1, align=1):
        i = (self.next + align - 1) // align * align
        assert i + n <= self.hi, f"out of {self.p} registers allocating {name}"
        self.next = i + n
        self.high = max(self.high, self.next)
        self.names[name] = (i, n)
        return i

def s(i, n=1): return f"s{i}" if n == 1 else f"s[{i}:{i+n-1}]"
def v(i, n=1): return f"v{i}" if n == 1 else f"v[{i}:{i+n-1}]"
def a(i, n=1): return f"a{i}" if n == 1 else f"a[{i}:{i+n-1}]"
def r(spec, off=0, n=1):
    return (v if spec[0] == 'v' else a)(spec[1] + off, n)

class K:
    def __init__(self, name):
        self.name = name
        self.lines = []
        self.nlab = 0
        self.collect = None
    def __call__(self, txt):
        if self.collect is not None:
            self.collect.append(txt); return
        for t in txt.split("\n"):
            t = t.strip()
            if t: self.lines.append("    " + t)
    def c(self, txt): self.lines.append("    ; " + txt)
    def label(self, l): self.lines.append(f"{l}:")
    def newlab(self, base="L"):
        self.nlab += 1
        return f"{self.name}_{base}{self.nlab}"
    def text(self): return "\n".join(self.lines) + "\n"

def interleave(k, mfmas, fillers):
    for t in fillers.get(-1, []): k(t)
    for i, m in enumerate(mfmas):
        k(m)
        for t in fillers.get(i, []): k(t)
    extra = [g for g in fillers if g >= len(mfmas)]
    assert not extra, extra

def kernel_wrap(name, body, vgpr, sgpr, accum):
    head = f""".text
.globl {name}
.p2align 8
.type {name},@function
{name}:
"""
    desc = f""".section .rodata,"a"
.p2align 6
.amdhsa_kernel {name}
  .amdhsa_next_free_vgpr {vgpr}
  .amdhsa_next_free_sgpr {sgpr}
  .amdhsa_accum_offset {accum}
  .amdhsa_group_segment_fixed_size 0
  .amdhsa_kernarg_size 96
  .amdhsa_user_sgpr_count 2
  .amdhsa_user_sgpr_kernarg_segment_ptr 1
  .amdhsa_system_sgpr_workgroup_id_x 1
.end_amdhsa_kernel
"""
    return head + body + f"{name}_end:\n", desc

WS_QB = 0x0000000
WS_KB = 0x1000000
WS_VB = 0x2000000
WS_QA = 0x3000000
WS_KA = 0x3400000
WS_VA = 0x3800000
WS_CTX = 0x4000000
WS_OA = 0x5000000
WS_PART = 0x6000000
WS_FLAG = 0x7000000
WS_FLAG3 = 0x7010000
WS_SIZE = 0x10000000
KARG = dict(A_x=0, A_wqkv=8, A_wo=16, B_x=24, B_c_kv=32, B_w_q=40, B_w_uk=48, B_w_uv=56, B_w_o=64, out=72, dbg=80, ws=88)
import struct
def f32bits(x): return struct.unpack("<I", struct.pack("<f", x))[0]

WS_STAMP = 0x8000000
class Stamper:
    def __init__(self, k, on, vreg, stmp):
        self.k, self.on, self.v, self.s, self.n = k, on, vreg, stmp, 0
    def stamp(self, idx=None, real=False):
        if not self.on: return
        i = self.n if idx is None else idx
        self.n = max(self.n, i + 1)
        ins = "s_memrealtime" if real else "s_memtime"
        self.k(f"{ins} {s(self.s,2)}\ns_waitcnt lgkmcnt(0)\nv_writelane_b32 {v(self.v)}, {s(self.s)}, {i}")
    def flush(self, srd, swave, vtmp, vlane, base=0):
        if not self.on: return
        k = self.k
        k(f"s_lshl_b32 {s(self.s)}, s2, 3\ns_add_u32 {s(self.s)}, {s(self.s)}, {s(swave)}\ns_lshl_b32 {s(self.s)}, {s(self.s)}, 8\ns_add_u32 {s(self.s)}, {s(self.s)}, {WS_STAMP + base}")
        k(f"v_lshlrev_b32 {v(vtmp)}, 2, {v(vlane)}\nbuffer_store_dword {v(self.v)}, {v(vtmp)}, {s(srd,4)}, {s(self.s)} offen")

class LgkmTracker:
    def __init__(self, initial=()):
        self.q = list(initial)
    def issue(self, tag): self.q.append(tag)
    def need(self, tags):
        idx = -1
        for i, t in enumerate(self.q):
            if t in tags: idx = i
        if idx < 0: return None
        n = min(len(self.q) - 1 - idx, 15)
        self.q = self.q[len(self.q) - n:] if n else []
        return f"s_waitcnt lgkmcnt({n})"


def code_prefetch(k, srd, start, end, sidx, vlane, vtmp, vdst, stmp):
    lab = k.newlab('pc')
    k(f"s_getpc_b64 {s(srd,2)}")
    k.label(lab)
    k(f"s_sub_u32 {s(srd)}, {s(srd)}, {lab}-{start}\ns_subb_u32 {s(srd+1)}, {s(srd+1)}, 0\ns_lshl_b32 {s(stmp)}, {s(sidx)}, 13")
    k(f"v_lshlrev_b32 {v(vtmp)}, 7, {v(vlane)}\nv_add_u32 {v(vtmp)}, {s(stmp)}, {v(vtmp)}\nv_min_u32 {v(vtmp)}, {end}-{start}-4, {v(vtmp)}\nv_mov_b32 {v(vtmp+1)}, {s(srd+1)}")
    k(f"v_add_co_u32 {v(vtmp)}, vcc, {s(srd)}, {v(vtmp)}\ns_nop 1\nv_addc_co_u32 {v(vtmp+1)}, vcc, 0, {v(vtmp+1)}, vcc\nglobal_load_dword {v(vdst)}, {v(vtmp,2)}, off")
```

```python
from asmlib import *

STG = 16384
SLOT = 32768
LDS_BYTES = 131072
THR = float(2 ** 20)
CAP = 8
RESV = 4

def build(name="attn_kernel", stamps=False, abl=(), local=True):
    k = K(name)
    S_ = Regs('s', 4, 102)
    sWS = S_.alloc('ws', 2, 2)
    srdK = S_.alloc('srdK', 4, 4); srdV = S_.alloc('srdV', 4, 4); srdO = S_.alloc('srdO', 4, 4)
    sw = S_.alloc('w'); sh = S_.alloc('h'); si = S_.alloc('i')
    sKo = S_.alloc('ko'); sVo = S_.alloc('vo')
    sC1 = S_.alloc('c1'); sMK = S_.alloc('mk'); sW4 = S_.alloc('w4')
    sVis = S_.alloc('vis', 2, 2); sAbs = S_.alloc('abs'); sThr = S_.alloc('thr'); sThC = S_.alloc('thc')
    sE = S_.alloc('e', 6)
    sRa = S_.alloc('ra', 2, 2); sRb = S_.alloc('rb', 2, 2); sM0 = S_.alloc('m0', 2, 2); sM1 = S_.alloc('m1', 2, 2)
    sT = S_.alloc('t', 6); sStamp = S_.alloc('stamp', 2, 2)
    sQ = S_.alloc('qoff', 2); sLo = S_.alloc('lo', 3); sExit = S_.alloc('exit')
    t0, t1, t2, t3 = sT, sT + 1, sT + 2, sT + 3

    V = Regs('v', 1, 64)
    vLane = V.alloc('lane'); vKV = V.alloc('kv'); vDma = V.alloc('dma'); vChk = V.alloc('chk')
    vNinf = V.alloc('ninf'); vStamp = V.alloc('stamp'); vL = V.alloc('l', 4, 4); vTB = V.alloc('tb', 4)
    vE = V.alloc('e', 8, 4); vTS = V.alloc('ts', 16, 4); vOne = V.alloc('one', 4, 4)
    def TS(qt): return vTS + 4 * qt
    vT = V.alloc('t', 16, 4)
    ST = Stamper(k, stamps, vStamp, sStamp)
    def Sreg(par, qt): return 64 + par * 32 + qt * 8
    def Preg(par, qt): return 128 + par * 16 + qt * 4
    def Nreg(qt): return 160 + qt * 8
    def Oreg(qt, db): return qt * 32 + db * 4
    def Qreg(qt, e): return 128 + qt * 16 + e * 4
    def KF(n): return 192 + n * 4
    def VF(n): return 224 + n * 4
    T = vT
    AB = (0, 1, 2, 3); A_ = (0, 1)
    sfx = ' sc1'
    MF = "v_mfma_f32_16x16x32_bf16"
    def xlane(regs, tmps, op):
        for sw_ in ("v_permlane32_swap_b32", "v_permlane16_swap_b32"):
            for x, y in zip(regs, tmps): k(f"v_mov_b32 {v(y)}, {v(x)}")
            k("s_nop 1")
            for x, y in zip(regs, tmps): k(f"{sw_} {v(x)}, {v(y)}")
            k("s_nop 1")
            for x, y in zip(regs, tmps): k(f"{op} {v(x)}, {v(x)}, {v(y)}")

    LQ, LK, LV = 192, 208, 228
    sLa = S_.alloc('la', 7); vL16 = V.alloc('l16')
    def local_setup():
        k.c("local attention addresses")
        k(f"s_and_b32 {s(t0)}, s2, 7\ns_lshl_b32 {s(t0)}, {s(t0)}, 4\ns_lshl_b32 {s(t1)}, {s(sw)}, 2\ns_add_u32 {s(sLo)}, {s(t0)}, {s(t1)}")
        k(f"s_lshr_b32 {s(t2)}, s2, 3\ns_lshl_b32 {s(t2)}, {s(t2)}, 17")
        k(f"s_lshl_b32 {s(t0)}, {s(sLo)}, 10\ns_add_u32 {s(t0)}, {s(t0)}, {s(t2)}\ns_add_u32 {s(sLa)}, {s(t0)}, {WS_QA}\ns_add_u32 {s(sLa+1)}, {s(t0)}, {WS_KA}")
        k(f"s_and_b32 {s(sLo+1)}, {s(sLo)}, 63\ns_cmp_eq_u32 {s(sLo+1)}, 0\ns_cselect_b32 {s(t3)}, 0, 1024\ns_sub_u32 {s(sLa+2)}, {s(sLa+1)}, {s(t3)}")
        k(f"s_lshl_b32 {s(t0)}, {s(sLo)}, 9\ns_add_u32 {s(t0)}, {s(t0)}, {s(t2)}\ns_add_u32 {s(sLa+3)}, {s(t0)}, {WS_VA}\ns_sub_u32 {s(sLa+4)}, {s(sLa+3)}, {s(t3)}")
        k(f"s_add_u32 {s(sLa+5)}, {s(sLa+3)}, 65536\ns_add_u32 {s(sLa+6)}, {s(sLa+4)}, 65536")
    def local_loads():
        def ld(dst, so, off): return (None, f"buffer_load_dwordx4 {v(dst,4)}, {v(vL16)}, {s(srdO,4)}, {s(so)} offen offset:{off}", None)
        o = [ld(LQ+4*j, sLa, j*1024) for j in range(4)] + [ld(LK+4+4*j, sLa+1, j*1024) for j in range(4)] + [ld(LK, sLa+2, 0)]
        for db in range(2):
            o += [ld(LV+12*db+4+4*j, sLa+3+2*db, j*1024) for j in range(2)] + [ld(LV+12*db, sLa+4+2*db, 0)]
        return o
    def local_compute(vmw):
        k.c("local attention compute")
        C0, C1, CZ = 64, 68, 72
        Sb = 80; Mx = 112; My = 116; Pb = 120; Ob = 128
        k(f"v_and_b32 {v(T)}, 15, {v(vLane)}\nv_lshrrev_b32 {v(T+1)}, 4, {v(vLane)}\nv_lshlrev_b32 {v(T+1)}, 2, {v(T+1)}\nv_sub_u32 {v(T)}, {v(T)}, {v(T+1)}")
        for r_ in range(4):
            k(f"v_cmp_ge_i32 vcc, {r_-9}, {v(T)}\nv_subrev_u32 {v(T+2)}, {r_}, {v(T)}\nv_cmp_ge_u32 {s(sM0,2)}, 7, {v(T+2)}\ns_nop 0")
            k(f"v_cndmask_b32 {v(C0+r_)}, {v(vNinf)}, 0, vcc\nv_cndmask_b32 {v(C1+r_)}, {v(vNinf)}, 0, {s(sM0,2)}")
        k(f"s_cmp_eq_u32 {s(sLo+1)}, 0\ns_cselect_b64 vcc, -1, 0\ns_nop 0")
        for r_ in range(4): k(f"v_cndmask_b32 {v(CZ+r_)}, {v(C0+r_)}, {v(vNinf)}, vcc")
        k(f"s_waitcnt vmcnt({vmw})\ns_nop 0")
        for u in range(4):
            k(f"v_mfma_f32_16x16x32_bf16 {v(Sb+8*u,4)}, {v(LK+4*u,4)}, {v(LQ+4*u,4)}, {v(CZ if u == 0 else C0,4)}")
            k(f"v_mfma_f32_16x16x32_bf16 {v(Sb+8*u+4,4)}, {v(LK+4*u+4,4)}, {v(LQ+4*u,4)}, {v(C1,4)}")
        k("s_nop 7")
        U = range(4)
        PB = LQ
        for u in U: k(f"v_max3_f32 {v(Mx+u)}, {v(Sb+8*u)}, {v(Sb+8*u+1)}, {v(Sb+8*u+2)}")
        for u in U: k(f"v_max3_f32 {v(Mx+u)}, {v(Mx+u)}, {v(Sb+8*u+3)}, {v(Sb+8*u+4)}")
        for u in U: k(f"v_max3_f32 {v(Mx+u)}, {v(Mx+u)}, {v(Sb+8*u+5)}, {v(Sb+8*u+6)}")
        for u in U: k(f"v_max_f32 {v(Mx+u)}, {v(Mx+u)}, {v(Sb+8*u+7)}")
        def xl(op):
            for sw_ in ("v_permlane32_swap_b32", "v_permlane16_swap_b32"):
                for u in U: k(f"v_mov_b32 {v(My+u)}, {v(Mx+u)}")
                k("s_nop 1")
                for u in U: k(f"{sw_} {v(Mx+u)}, {v(My+u)}")
                k("s_nop 1")
                for u in U: k(f"{op} {v(Mx+u)}, {v(Mx+u)}, {v(My+u)}")
        xl("v_max_f32")
        for u in U:
            for i in range(8): k(f"v_sub_f32 {v(Sb+8*u+i)}, {v(Sb+8*u+i)}, {v(Mx+u)}")
        for u in U:
            for i in range(8): k(f"v_exp_f32 {v(Sb+8*u+i)}, {v(Sb+8*u+i)}")
        for u in U:
            for i in range(4): k(f"v_cvt_pk_bf16_f32 {v(PB+4*u+i)}, {v(Sb+8*u+2*i)}, {v(Sb+8*u+2*i+1)}")
        for u in U: k(f"v_add_f32 {v(Mx+u)}, {v(Sb+8*u)}, {v(Sb+8*u+1)}")
        for u in range(4):
            for db in range(2):
                k(f"v_mfma_f32_16x16x32_bf16 {v(Ob+8*u+4*db,4)}, {v(LV+12*db+2+2*u,4)}, {v(PB+4*u,4)}, 0")
        for i in range(2, 8):
            for u in U: k(f"v_add_f32 {v(Mx+u)}, {v(Mx+u)}, {v(Sb+8*u+i)}")
        xl("v_add_f32")
        for u in U: k(f"v_rcp_f32 {v(Mx+u)}, {v(Mx+u)}")
        k(f"s_lshl_b32 {s(t0)}, {s(sLo)}, 10\ns_lshr_b32 {s(t1)}, s2, 3\ns_lshl_b32 {s(t1)}, {s(t1)}, 17\ns_add_u32 {s(t0)}, {s(t0)}, {s(t1)}\ns_add_u32 {s(t0)}, {s(t0)}, {WS_OA}")
        for u in U:
            for i in range(8): k(f"v_mul_f32 {v(Ob+8*u+i)}, {v(Ob+8*u+i)}, {v(Mx+u)}")
            for i in range(4): k(f"v_cvt_pk_bf16_f32 {v(Ob+8*u+i)}, {v(Ob+8*u+2*i)}, {v(Ob+8*u+2*i+1)}")
            k(f"buffer_store_dwordx4 {v(Ob+8*u,4)}, {v(vL16)}, {s(srdO,4)}, {s(t0)} offen offset:{u*1024}{sfx}")

    Lend = k.newlab('end')
    k(f"s_cmp_ge_u32 s2, 256\ns_cbranch_scc1 {Lend}")
    k(f"s_load_dwordx2 {s(sWS,2)}, s[0:1], {KARG['ws']}")
    if stamps: k("s_waitcnt lgkmcnt(0)")
    ST.stamp(0); ST.stamp(1, real=True)
    k(f"v_and_b32 {v(vLane)}, 63, v0\nv_lshrrev_b32 {v(T)}, 6, v0\ns_nop 0\nv_readfirstlane_b32 {s(sw)}, {v(T)}")
    k(f"s_and_b32 {s(t0)}, s2, 7\ns_lshl_b32 {s(t0)}, {s(t0)}, 2\ns_bfe_u32 {s(t1)}, s2, 0x20003\ns_add_u32 {s(sh)}, {s(t0)}, {s(t1)}\ns_lshr_b32 {s(si)}, s2, 5")
    k(f"v_lshlrev_b32 {v(vL16)}, 4, {v(vLane)}")
    if 'nocpf' not in abl:
        Lc = k.newlab('ncp')
        k(f"s_cmp_lt_u32 s2, 248\ns_cbranch_scc1 {Lc}")
        code_prefetch(k, srdO, name, name + "_end", sw, vLane, T + 8, T + 9, t0)
        k.label(Lc)
    k(f"s_lshl_b32 {s(sW4)}, {s(sw)}, 12")
    k(f"v_lshlrev_b32 {v(vDma)}, 4, {v(vLane)}\nv_add_u32 {v(vDma)}, {s(sW4)}, {v(vDma)}")
    k(f"v_mov_b32 {v(vNinf)}, 0xff800000\ns_mov_b32 {s(sThr)}, {f32bits(THR)}")
    k(f"s_sub_u32 {s(t0)}, 15, {s(si)}\ns_lshl_b32 {s(t0)}, {s(t0)}, 3\ns_lshl_b32 {s(t1)}, {s(sw)}, 1\ns_add_u32 {s(sQ)}, {s(t0)}, {s(t1)}")
    k(f"s_lshl_b32 {s(t0)}, {s(si)}, 3\ns_add_u32 {s(sQ+1)}, {s(t0)}, {s(t1)}")
    k(f"s_lshl_b32 {s(t0)}, {s(si)}, 2\ns_sub_u32 {s(t1)}, 64, {s(t0)}\ns_lshl_b32 {s(srdK+2)}, {s(t1)}, 13\ns_mov_b32 {s(srdV+2)}, {s(srdK+2)}")
    k(f"s_add_u32 {s(sE)}, {s(t0)}, {s(sw)}\ns_add_u32 {s(sE+1)}, {s(sE)}, 1\ns_add_u32 {s(sE+2)}, {s(t0)}, 4")
    k(f"s_sub_u32 {s(sE+3)}, {s(t1)}, 4\ns_add_u32 {s(sE+3)}, {s(sE+3)}, {s(sw)}\ns_add_u32 {s(sE+4)}, {s(sE+3)}, 1\ns_mov_b32 {s(sE+5)}, {s(t1)}")
    k(f"s_mov_b32 {s(srdK+3)}, 0x20000\ns_mov_b32 {s(srdV+3)}, 0x20000\ns_mov_b32 {s(srdO+3)}, 0x20000\ns_mov_b32 {s(srdO+2)}, {WS_SIZE}")
    k(f"s_lshl_b32 {s(sLo+2)}, {s(sh)}, 19")
    k("s_waitcnt lgkmcnt(0)")
    k(f"s_mov_b32 {s(srdO)}, {s(sWS)}\ns_mov_b32 {s(srdO+1)}, {s(sWS+1)}")
    k(f"s_add_u32 {s(t0)}, {s(sLo+2)}, {WS_KB}\ns_add_u32 {s(srdK)}, {s(sWS)}, {s(t0)}\ns_addc_u32 {s(srdK+1)}, {s(sWS+1)}, 0")
    k(f"s_add_u32 {s(t0)}, {s(sLo+2)}, {WS_VB}\ns_add_u32 {s(srdV)}, {s(sWS)}, {s(t0)}\ns_addc_u32 {s(srdV+1)}, {s(sWS+1)}, 0")
    def dmaK(j): return f"buffer_load_dwordx4 {v(vDma)}, {s(srdK,4)}, {s(sKo)} offen offset:{j*1024} lds"
    def dmaV(j): return f"buffer_load_dwordx4 {v(vDma)}, {s(srdV,4)}, {s(sVo)} offen offset:{j*1024} lds"
    k(f"s_mov_b32 {s(sKo)}, 0\ns_mov_b32 {s(sVo)}, 0\ns_mov_b32 m0, {s(sW4)}\ns_nop 0")
    for j in range(4): k(dmaK(j))
    for st in range(2):
        k(f"s_lshl_b32 {s(t0)}, {s(sQ+st)}, 12\ns_add_u32 {s(t0)}, {s(t0)}, {s(sLo+2)}\ns_add_u32 {s(t0)}, {s(t0)}, {WS_QB}")
        for hf in range(2):
            if hf: k(f"s_add_u32 {s(t0)}, {s(t0)}, 4096")
            for e in range(4):
                k(f"buffer_load_dwordx4 {a(Qreg(2*st+hf, e), 4)}, {v(vL16)}, {s(srdO,4)}, {s(t0)} offen offset:{e*1024}")
    k(f"s_mov_b32 {s(sKo)}, {STG}\ns_add_u32 {s(sMK)}, {s(sW4)}, {SLOT}")
    ST.stamp(11)
    def dma_group():
        g = [(f"s_mov_b32 m0, {s(sMK)}", dmaK(0), None), (None, dmaK(1), None), (None, dmaK(2), None), (None, dmaK(3), f"s_add_u32 {s(sKo)}, {s(sKo)}, {STG}"),
             (f"s_add_u32 m0, {s(sMK)}, {STG}", dmaV(0), None), (None, dmaV(1), None), (None, dmaV(2), None), (None, dmaV(3), f"s_add_u32 {s(sVo)}, {s(sVo)}, {STG}")]
        return g
    def emit_group(items):
        for pre, ins, post in items:
            if pre: k(pre + "\ns_nop 0")
            k(ins)
            if post: k(post)
    emit_group(dma_group())
    k(f"s_add_u32 {s(sMK)}, {s(sMK)}, {SLOT}")
    k(f"s_mov_b32 {s(sC1)}, 0\nv_mov_b32 {v(vKV)}, {v(vL16)}")
    for i in range(128): k(f"v_accvgpr_write_b32 {a(i)}, 0")
    for i in range(32): k(f"v_mov_b32 {v(Nreg(0)+i)}, 0")
    for i in range(4): k(f"v_mov_b32 {v(vL+i)}, 0\nv_mov_b32 {v(TS(i))}, 0\nv_mov_b32 {v(vOne+i)}, 0x3f803f80")
    def events(which):
        for e in which:
            ln = k.newlab('e')
            k(f"s_cmp_lg_u32 {s(sAbs)}, {s(sE+e)}\ns_cbranch_scc1 {ln}")
            lo = 2 if e < 2 else 0
            for r_ in range(4):
                if e in (0, 3):
                    k(f"v_add_f32 {v(Nreg(lo)+r_)}, {v(Nreg(lo)+r_)}, {v(vTB+r_)}\nv_mov_b32 {v(Nreg(lo)+4+r_)}, {v(vNinf)}\nv_add_f32 {v(Nreg(lo+1)+4+r_)}, {v(Nreg(lo+1)+4+r_)}, {v(vTB+r_)}")
                else:
                    k(f"v_mov_b32 {v(Nreg(lo)+r_)}, {v(vNinf)}\nv_mov_b32 {v(Nreg(lo+1)+r_)}, {v(vNinf)}\nv_mov_b32 {v(Nreg(lo+1)+4+r_)}, {v(vNinf)}")
            k("s_nop 0")
            k.label(ln)
    Lrs = {(p_, n_): k.newlab(f'rs{p_}{n_}') for p_ in range(2) for n_ in (2, 4)}
    local_setup()
    k(f"v_and_b32 {v(T)}, 15, {v(vLane)}\nv_lshrrev_b32 {v(T+1)}, 4, {v(vLane)}\nv_lshlrev_b32 {v(T+1)}, 2, {v(T+1)}\nv_sub_u32 {v(T)}, {v(T)}, {v(T+1)}")
    for r_ in range(4):
        k(f"v_cmp_le_i32 vcc, {r_}, {v(T)}\ns_nop 1\nv_cndmask_b32 {v(vTB+r_)}, {v(vNinf)}, 0, vcc")
    k(f"s_mov_b64 {s(sVis,2)}, 0")
    for e in range(6):
        k(f"s_sub_u32 {s(t0)}, {s(sE+e)}, 1\ns_bitset1_b64 {s(sVis,2)}, {s(t0)}")
    k(f"s_mov_b32 {s(sAbs)}, 0")
    events((0,))
    ST.stamp(2)
    k(f"s_waitcnt vmcnt(8)\ns_barrier")
    ST.stamp(3)
    def rdK(unit, a_): return f"ds_read_b128 {a(KF(a_),4)}, {v(vKV)} offset:{unit*8192 + a_*1024}"
    def rdV(unit, n): return f"ds_read_b128 {a(VF(n),4)}, {v(vKV)} offset:{STG + unit*8192 + n*1024}"
    for a_ in range(8): k(rdK(0, a_))

    stubs = []; calls = []
    def slow_path(par, sm, evs):
        l1 = k.newlab('sp')
        src = vChk
        k(f"v_cmp_lt_f32 vcc, {s(sThr)}, {v(src)}")
        events(evs)
        st_ = k.newlab('rc')
        k(f"s_cbranch_vccnz {st_}")
        k.label(l1)
        calls.append((st_, l1, Lrs[(par, len(sm))]))

    def qk_mfmas(par, qk):
        mf = []
        for kb in range(2):
            for qt in qk:
                for e in range(4):
                    d = v(Sreg(par, qt) + 4 * kb, 4)
                    c = v(Nreg(qt) + 4 * kb, 4) if e == 0 else d
                    mf.append(f"{MF} {d}, {a(KF(kb*4+e),4)}, {a(Qreg(qt,e),4)}, {c}")
        return mf
    def step(which, qk, sm, pv, dma=(), dgaps=(), last=False, loop=None, evs=(), exit_e=None):
        par = 1 - which
        mf = qk_mfmas(par ^ 1, qk)
        nqk = len(mf)
        for n in range(8):
            for qt in pv:
                d = a(Oreg(qt, n), 4)
                mf.append(f"{MF} {d}, {a(VF(n),4)}, {v(Preg(par ^ 1, qt), 4)}, {d}")
        N = len(mf); npv = N - nqk
        first = {}
        head = {g: [] for g in range(N)}
        tail = {g: [] for g in range(N)}
        before = []; after = []
        bar = which == 1 and not last
        vfix = {}
        dg = list(dgaps)[:len(dma)]
        assert len(dg) == len(dma)
        def place_reads(g, items, stride):
            for x in items:
                while g in dg or head[g]: g += 1
                head[g].append((4, x)); g += stride
            return g
        if pv:
            if nqk: place_reads(1, [rdV(which, n) for n in range(8)], 3 if nqk > 16 else 1)
            else: before += [rdV(which, n) for n in range(8)]
        midw = ("s_waitcnt vmcnt(16) lgkmcnt(0)" if bar else "s_waitcnt lgkmcnt(0)")
        rot = [f"s_add_u32 {s(sMK)}, {s(sC1)}, {s(sW4)}", f"s_add_u32 {s(sC1)}, {s(sC1)}, {SLOT}", f"s_and_b32 {s(sC1)}, {s(sC1)}, 0x1ffff"]
        rotv = [f"v_add_u32 {v(vKV)}, {s(sC1)}, {v(vL16)}"]
        nxt = [] if last else [rdK(which ^ 1, a_) for a_ in range(8)]
        for g in dg: first[g] = None
        posts = []
        for (pre, ins, post), g in zip(dma, dg):
            if pre:
                assert g - 1 not in first
                first[g - 1] = pre
            if post: posts.append((g + 1, post))
        def put_first(g, x, limit):
            while g in first and g < limit: g += 1
            assert g < limit, (x, g, limit)
            first[g] = x
            return g
        if npv:
            if nqk:
                assert nqk - 1 not in first
                first[nqk - 1] = midw
            else: before.append(midw)
            g0 = nqk
            if bar:
                head[nqk].append((8, "s_barrier")); first[nqk] = None
                g0 = nqk + 1
                assert not any(p_[0] for p_ in dma)
                g = 0
                for x in rot: g = put_first(g, x, nqk - 2) + 1
                vfix[nqk - 1] = [rotv[0]]
            if nxt:
                place_reads(g0, nxt[:4], 3 if npv > 16 else 2)
                for x, g in zip(nxt[4:], [g for g in range(N - 7, N - 1) if g not in dg][-4:]):
                    assert not head[g]
                    head[g].append((4, x))
                assert N - 1 not in first
                first[N - 1] = "s_waitcnt lgkmcnt(4)"
        else:
            after += [midw] + (["s_barrier"] + rot + rotv if bar else []) + nxt + ["s_waitcnt lgkmcnt(0)"]
        if nqk:
            g = nqk // 2 - 1
            while g in first: g -= 1
            nrd = sum(1 for gg in range(g) for c, t_ in head[gg] if t_ and t_.startswith('ds_read'))
            first[g] = f"s_waitcnt lgkmcnt({nrd})"
        for (pre, ins, post), g in zip(dma, dg): head[g].append((8, ins))
        for g, x in posts: put_first(g, x, N)
        if sm and not last:
            gg = put_first(0, f"s_bitcmp1_b64 {s(sVis,2)}, {s(sAbs)}\ns_cselect_b32 {s(sThC)}, -1.0, {s(sThr)}", N)
            head[gg].insert(0, (4, None))
            put_first(gg + 1, f"s_add_u32 {s(sAbs)}, {s(sAbs)}, 1", N)
        ops = []
        def op(name, pr, cost, ins, deps=(), trans=False): ops.append(dict(id=name, pr=pr, cost=cost, ins=ins, deps=set(deps), trans=trans))
        seq = [(qt, n) for qt in sm for n in range(8)]
        for idx, (qt, n) in enumerate(seq):
            Sq = Sreg(par, qt); Pq = Preg(par, qt)
            if n == 0: op(('l', qt), idx + 3, 4, f"v_add_f32 {v(vL+qt)}, {v(vL+qt)}, {v(TS(qt))}")
            deps = [('c', seq[idx - 8][0], n // 2)] if idx >= 8 else []
            op(('e', qt, n), idx, 8, f"v_exp_f32 {v(vE + n)}, {v(Sq+n)}", deps, True)
            if n & 1: op(('c', qt, n // 2), idx + 1.5, 4, f"v_cvt_pk_bf16_f32 {v(Pq + n//2)}, {v(vE + n-1)}, {v(vE + n)}", [('e', qt, n - 1), ('e', qt, n)])
        thr = sThr if last else sThC
        fin = []
        if len(sm) == 4:
            fin = [f"v_max3_f32 {v(vChk)}, {v(TS(0))}, {v(TS(1))}, {v(TS(2))}", f"v_max_f32 {v(vChk)}, {v(vChk)}, {v(TS(3))}"]
        elif sm:
            fin = [f"v_max_f32 {v(vChk)}, {v(TS(0))}, {v(TS(1))}"]
        if sm: fin.append(f"v_cmp_nge_f32 vcc, {s(thr)}, {v(vChk)}")
        ops.sort(key=lambda o: o['pr'])
        done = set(); lasttrans = None
        fixedc = [sum(x[0] for x in head[g]) + 4 * len(vfix.get(g, [])) for g in range(N)]
        NV = max(N - RESV, 1)
        NG = NV + max(len(sm) - 1, 0)
        tot = sum(o['cost'] for o in ops) + sum(fixedc[:NV])
        for t_ in before: k(t_)
        cum = 0; gi = 0
        pend = list(sm)
        cdone = {}
        lastsum = None
        def nstates(since):
            n = 0
            for ln in k.lines[since:]:
                ln = ln.strip()
                n += int(ln.split()[1]) + 1 if ln.startswith("s_nop") else 1
            return n
        def fill(used, force):
            nonlocal cum, gi, lasttrans
            gi += 1
            target = tot * gi / NG
            while True:
                ready = [o for o in ops if o['id'] not in done and o['deps'] <= done and (o['trans'] or lasttrans not in o['deps'])]
                if not ready:
                    if force and len(done) < len(ops): k("s_nop 0"); lasttrans = None; continue
                    break
                if not force:
                    room = max(CAP - used, 4 * int((target - cum + 2) // 4))
                    if used >= CAP and cum + 2 >= target: break
                    fit = [o for o in ready if o['cost'] <= room]
                    if not fit:
                        if used >= CAP or cum >= target: break
                        fit = ready
                    o = fit[0]
                else: o = ready[0]
                k(o['ins']); done.add(o['id']); used += o['cost']; cum += o['cost']
                lasttrans = o['id'] if o['trans'] else None
                if o['id'][0] == 'c': cdone[o['id'][1]] = len(k.lines)
        def try_sum(force=False):
            nonlocal lastsum, lasttrans
            while pend and all(('c', pend[0], j) in done for j in range(4)) and ('l', pend[0]) in done:
                gap_ = len(k.lines) - cdone[pend[0]]
                if gap_ < 2:
                    if not force: return
                    k(f"s_nop {1 - gap_}")
                qt = pend.pop(0)
                k(f"{MF} {v(TS(qt),4)}, {v(vOne,4)}, {v(Preg(par, qt),4)}, 0"); lasttrans = None
                lastsum = len(k.lines)
                if pend: fill(0, False)
        for g in range(N):
            k(mf[g]); lasttrans = None
            if first.get(g): k(first[g])
            for c, t_ in head[g]:
                if t_: k(t_)
            for t_ in vfix.get(g, []): k(t_)
            cum += fixedc[g]
            if g < NV: fill(fixedc[g], g == NV - 1)
            if g < N - 1: try_sum(force=(g >= NV - 1))
            if fin and not pend and g < N - 1:
                if g == N - 2:
                    gap_ = nstates(lastsum)
                    if gap_ < 8: k(f"s_nop {7 - gap_}")
                    for t_ in fin: k(t_)
                    fin = []
                elif nstates(lastsum) >= 8:
                    for _ in range(min(len(fin), (CAP - fixedc[g]) // 4)): k(fin.pop(0))
                elif k.lines[-1].strip().startswith("v_mfma") and nstates(lastsum) < 8: k("s_nop 2")
                elif fixedc[g] <= 4 and nstates(lastsum) < 8: k("s_nop 0")
        assert len(done) == len(ops) and not pend
        for t_ in after: k(t_)
        after = []
        assert not fin
        if sm:
            if loop:
                k(f"s_cbranch_vccz {loop}")
                slow_path(par, sm, evs)
                k(f"s_cmp_lg_u32 {s(sAbs)}, {s(sE+exit_e)}\ns_cbranch_scc1 {loop}")
            else:
                st_, rt = k.newlab('stub'), k.newlab('ret')
                k(f"s_cbranch_vccnz {st_}"); k.label(rt)
                stubs.append((st_, rt, par, sm, evs))

    def epilogue(st, extra=()):
        extra = list(extra)
        k.c(f"epilogue set {st}")
        R = vE
        for j in range(2): k(f"v_add_f32 {v(R+j)}, {v(vL+2*st+j)}, {v(TS(2*st+j))}")
        k("s_nop 3")
        k(f"v_rcp_f32 {v(R)}, {v(R)}\nv_rcp_f32 {v(R+1)}, {v(R+1)}")
        k(f"s_lshl_b32 {s(t0)}, {s(sQ+st)}, 10\ns_add_u32 {s(t0)}, {s(t0)}, {s(sLo+2)}\ns_add_u32 {s(t0)}, {s(t0)}, {WS_CTX}")
        for e in range(4):
            for j in range(2):
                b = T + 8 * j
                for i in range(8): k(f"v_accvgpr_read_b32 {v(b+i)}, {a(Oreg(2*st+j, 2*e) + i)}")
                for i in range(8): k(f"v_mul_f32 {v(b+i)}, {v(R+j)}, {v(b+i)}")
                for i in range(4): k(f"v_cvt_pk_bf16_f32 {v(b+i)}, {v(b+2*i)}, {v(b+2*i+1)}")
                k(f"buffer_store_dwordx4 {v(b,4)}, {v(vL16)}, {s(srdO,4)}, {s(t0)} offen offset:{j*1024}{sfx}")
                if extra: k(extra.pop(0)[1])
            k(f"s_add_u32 {s(t0)}, {s(t0)}, 131072")
        for x in extra: k(x[1])

    G = dma_group(); LL = local_loads()
    k.c("head")
    k("s_waitcnt lgkmcnt(0)")
    for i, m_ in enumerate(qk_mfmas(0, AB)):
        k(m_)
        if i % 4 == 1: emit_group(dma_group()[i//4:i//4+1])
        if 16 <= i < 20: k(rdK(1, i - 16))
    for a_ in range(4, 8): k(rdK(1, a_))
    k(f"s_add_u32 {s(sMK)}, {s(sMK)}, {SLOT}\ns_mov_b32 {s(sAbs)}, 1")
    k("s_nop 3")
    for j0, j1, j2 in ((0, 1, 2), (None, 3, 4), (None, 5, 6)):
        for qt in AB: k(f"v_max3_f32 {v(T+qt)}, {v(Sreg(0,qt)) if j0 == 0 else v(T+qt)}, {v(Sreg(0,qt)+j1)}, {v(Sreg(0,qt)+j2)}")
    for qt in AB: k(f"v_max_f32 {v(T+qt)}, {v(T+qt)}, {v(Sreg(0,qt)+7)}")
    xlane([T + q_ for q_ in AB], [T + 4 + q_ for q_ in AB], "v_max_f32")
    for qt in AB:
        for i in range(8): k(f"v_sub_f32 {v(Nreg(qt)+i)}, {v(Nreg(qt)+i)}, {v(T+qt)}")
    for qt in AB:
        for i in range(8): k(f"v_sub_f32 {v(Sreg(0,qt)+i)}, {v(Sreg(0,qt)+i)}, {v(T+qt)}")
    events((0, 1))
    k("s_waitcnt lgkmcnt(0)")
    step(1, AB, AB, (), dma=dma_group(), dgaps=(1, 5, 9, 13, 17, 21, 25, 28), evs=(0, 1))
    ST.stamp(4)
    Ld = k.newlab('dual'); k.label(Ld)
    step(0, AB, AB, AB, dma=G[:5], dgaps=(5, 18, 27, 43, 52), evs=(0, 1)); step(1, AB, AB, AB, dma=G[5:], dgaps=(6, 18, 27), loop=Ld, evs=(0, 1, 3), exit_e=2)
    step(0, A_, AB, AB, dma=G[:5], dgaps=(3, 11, 21, 31, 41), evs=(3, 4)); step(1, A_, A_, AB, dma=G[5:] + LL[:6], dgaps=(3, 8, 13, 20, 24, 28, 34, 38, 42), evs=(3, 4))
    ST.stamp(5)
    epilogue(1, LL[6:])
    ST.stamp(6)
    Ls = k.newlab('single'); k.label(Ls)
    step(0, A_, A_, A_, dma=G[:5], dgaps=(2, 10, 14, 19, 28), evs=(3, 4)); step(1, A_, A_, A_, dma=G[5:], dgaps=(4, 9, 13), loop=Ls, evs=(3, 4), exit_e=5)
    ST.stamp(7)
    step(0, (), A_, A_, last=True); k("s_nop 1"); step(1, (), (), A_, last=True)
    epilogue(0)
    ST.stamp(10)
    local_compute(8)
    if stamps:
        k('s_waitcnt vmcnt(0)')
        ST.stamp(8); ST.stamp(9, real=True)
        ST.flush(srdO, sw, vT, vLane, base=0x100000)
    k.label(Lend)
    k("s_endpgm")
    for st_, rt, par, sm, evs in stubs:
        k.label(st_)
        slow_path(par, sm, evs)
        k(f"s_branch {rt}")
    for st_, rt, target in calls:
        k.label(st_)
        k(f"s_call_b64 {s(sRa,2)}, {target}\ns_branch {rt}")

    for par, nset in Lrs:
        k.label(Lrs[(par, nset)])
        k("s_nop 15")
        for qt in AB[:nset]:
            Sq = Sreg(par, qt); So = Sreg(par ^ 1, qt); Pq = Preg(par, qt); N_ = Nreg(qt)
            k(f"v_max3_f32 {v(T)}, {v(Sq)}, {v(Sq+1)}, {v(Sq+2)}")
            for i in (3, 5): k(f"v_max3_f32 {v(T)}, {v(T)}, {v(Sq+i)}, {v(Sq+i+1)}")
            k(f"v_max3_f32 {v(T)}, {v(T)}, {v(Sq+7)}, 0")
            xlane([T], [T + 1], "v_max_f32")
            k(f"v_exp_f32 {v(T+1)}, -{v(T)}")
            for i in range(8): k(f"v_sub_f32 {v(Sq+i)}, {v(Sq+i)}, {v(T)}")
            for i in range(8): k(f"v_sub_f32 {v(So+i)}, {v(So+i)}, {v(T)}")
            for i in range(8): k(f"v_sub_f32 {v(N_+i)}, {v(N_+i)}, {v(T)}")
            k(f"v_mul_f32 {v(vL+qt)}, {v(vL+qt)}, {v(T+1)}")
            for i0 in range(0, 32, 8):
                for i in range(8): k(f"v_accvgpr_read_b32 {v(T+4+i)}, {a(Oreg(qt,0)+i0+i)}")
                for i in range(8): k(f"v_mul_f32 {v(T+4+i)}, {v(T+4+i)}, {v(T+1)}")
                for i in range(8): k(f"v_accvgpr_write_b32 {a(Oreg(qt,0)+i0+i)}, {v(T+4+i)}")
            for i in range(8): k(f"v_exp_f32 {v(T+4+i)}, {v(Sq+i)}")
            k("s_nop 0")
            for i in range(4): k(f"v_cvt_pk_bf16_f32 {v(Pq+i)}, {v(T+4+2*i)}, {v(T+5+2*i)}")
            k(f"s_nop 1\n{MF} {v(TS(qt),4)}, {v(vOne,4)}, {v(Pq,4)}, 0")
        k(f"s_nop 7\ns_setpc_b64 {s(sRa,2)}")
    code, desc = kernel_wrap(name, k.text(), 512, 102, 256)
    return code, desc, f"; @launch kernel={name} grid=(256,1,1) block=(256,1,1) lds={LDS_BYTES}"
SPLIT = 8
```

```python
from asmlib import *
import math

XS = 32768
XBASE = 3 * XS
LDS_BYTES = 5 * XS
C_B = (128 ** -0.5) * math.log2(math.e)
C_A = (32 ** -0.5) * math.log2(math.e)

def build(name="gemm1_kernel", stamps=False, abl=(), last_kernel="gemm3_kernel"):
    k = K(name)
    S = Regs('s', 4, 102)
    sK = S.alloc('karg', 16, 4); sWS = S.alloc('ws', 2, 2); sXSc = S.alloc('xsc'); sWx = S.alloc('wx')
    srdX = S.alloc('srdX', 4, 4); srdW = S.alloc('srdW', 4, 4); srdO = S.alloc('srdO', 4, 4)
    sXoff = S.alloc('sXoff', 4); sWoff = S.alloc('sWoff', 4); sWstep = S.alloc('sWstep')
    sw = S.alloc('w'); swm = S.alloc('wm'); swn = S.alloc('wn')
    sXw = S.alloc('xw'); sWw = S.alloc('ww'); sXd = S.alloc('xdelta'); sXs = S.alloc('xrslot')
    sCnt = S.alloc('cnt'); sFirst = S.alloc('first'); sT = S.alloc('t', 4, 2)
    sHasNext = S.alloc('hasnext')
    sMt = S.alloc('mt'); sG = S.alloc('g'); sNi = S.alloc('ni'); sIdx = S.alloc('idx')
    PF = ['xlo','xhi','xsize','wlo','whi','wsize','ldx','ldw','xoff0','woff0','par','nk','swp','scale','obase','Si','Sj']
    P = [{f: S.alloc(f'p{i}{f}') for f in PF} for i in range(2)]
    CP = {f: P[0][f] for f in ['nk','swp','scale','obase','Si','Sj']}
    sStamp = S.alloc('stamp', 2, 2)
    def ptr(nm): return sK + KARG[nm] // 4

    V = Regs('v', 1, 32)
    vLane = V.alloc('lane'); vx = V.alloc('vx', 2); vw = V.alloc('vw', 8); vX = V.alloc('vX', 2); vW = V.alloc('vW', 4)
    vSt = V.alloc('st'); vStamp = V.alloc('stamp'); vT = V.alloc('t', 8, 4)
    ST = Stamper(k, stamps, vStamp, sStamp)
    def acc(i, j):
        n = ((i >> 1) * 8 + j) * 2 + (i & 1)
        return ('v', 32 + 4 * n) if n < 56 else ('a', 128 + 4 * (n - 56))
    def fragX(kk, mb): return mb * 8 + kk * 4
    def fragW(kk, nb): return 64 + nb * 8 + kk * 4
    STASH = 160
    sPb = sK; sPi = sK + 1; sPj = sK + 2; sPa = sK + 3; srdS = sK + 4

    Lend = k.newlab('end')
    k(f"s_cmp_ge_u32 s2, 256\ns_cbranch_scc1 {Lend}")
    k(f"s_load_dwordx16 {s(sK,16)}, s[0:1], 0\ns_load_dwordx2 {s(sWS,2)}, s[0:1], {KARG['ws']}")
    if stamps: k("s_waitcnt lgkmcnt(0)")
    ST.stamp(0); ST.stamp(1, real=True)
    k(f"v_and_b32 {v(vLane)}, 63, v0\nv_lshrrev_b32 {v(vT)}, 6, v0\ns_nop 0\nv_readfirstlane_b32 {s(sw)}, {v(vT)}")
    k(f"s_and_b32 {s(sT)}, s2, 7\ns_lshr_b32 {s(sIdx)}, s2, 3")
    k(f"s_lshr_b32 {s(sG)}, {s(sT)}, 1\ns_and_b32 {s(sT)}, {s(sT)}, 1\ns_lshl_b32 {s(sT)}, {s(sT)}, 2\ns_and_b32 {s(sMt)}, {s(sIdx)}, 3\ns_add_u32 {s(sMt)}, {s(sMt)}, {s(sT)}\ns_lshr_b32 {s(sNi)}, {s(sIdx)}, 2")
    k(f"s_lshr_b32 {s(swm)}, {s(sw)}, 1\ns_and_b32 {s(swn)}, {s(sw)}, 1")
    k(f"s_mov_b32 {s(srdX+3)}, 0x20000\ns_mov_b32 {s(srdW+3)}, 0x20000")
    t0, t1, t2, t3 = sT, sT + 1, sT + 2, sT + 3
    T = vT
    if 'nocpf' not in abl:
        Lc = k.newlab('ncp')
        k(f"s_cmp_lt_u32 {s(sIdx)}, 28\ns_cbranch_scc1 {Lc}\ns_sub_u32 {s(t1)}, {s(sIdx)}, 28\ns_lshl_b32 {s(t1)}, {s(t1)}, 2\ns_add_u32 {s(t1)}, {s(t1)}, {s(sw)}")
        code_prefetch(k, srdO, name, last_kernel + "_end", t1, vLane, T, T + 7, t0)
        k.label(Lc)
    k.c("fragment read addresses")
    k(f"v_and_b32 {v(T)}, 15, {v(vLane)}\nv_lshrrev_b32 {v(T+1)}, 4, {v(vLane)}")
    k(f"v_bfe_u32 {v(T+2)}, {v(vLane)}, 1, 3\nv_xor_b32 {v(T+2)}, {v(T+2)}, {v(T+1)}")
    k(f"s_lshl_b32 {s(t0)}, {s(swm)}, 14\ns_add_u32 {s(t0)}, {s(t0)}, {XBASE}\nv_lshlrev_b32 {v(T+3)}, 7, {v(T)}\nv_add_u32 {v(T+3)}, {s(t0)}, {v(T+3)}")
    for kk in range(2):
        k(f"v_xor_b32 {v(T+4)}, {4*kk}, {v(T+2)}\nv_lshl_add_u32 {v(vx+kk)}, {v(T+4)}, 4, {v(T+3)}")
    k(f"v_bfe_u32 {v(T+2)}, {v(vLane)}, 2, 2")
    k(f"v_lshl_add_u32 {v(T+3)}, {v(T+1)}, 3, {v(T+2)}\nv_lshlrev_b32 {v(T+3)}, 9, {v(T+3)}")
    k(f"v_and_b32 {v(T+4)}, 3, {v(vLane)}\nv_lshlrev_b32 {v(T+4)}, 3, {v(T+4)}\nv_add_u32 {v(T+3)}, {v(T+3)}, {v(T+4)}")
    k(f"s_lshl_b32 {s(t0)}, {s(swn)}, 8\nv_add_u32 {v(T+3)}, {s(t0)}, {v(T+3)}")
    k(f"v_bfe_u32 {v(T+2)}, {v(vLane)}, 2, 3")
    for nb in range(8):
        k(f"v_xor_b32 {v(T+4)}, {nb}, {v(T+2)}\nv_lshl_add_u32 {v(vw+nb)}, {v(T+4)}, 5, {v(T+3)}")
    k(f"v_lshlrev_b32 {v(vSt)}, 4, {v(vLane)}")
    k(f"s_lshl_b32 {s(sWw)}, {s(sw)}, 13\ns_add_u32 {s(sXw)}, {s(sWw)}, {XBASE}\ns_mov_b32 {s(sXs)}, 0")
    k(f"s_mov_b32 {s(sXSc)}, {XS}\ns_mov_b32 {s(sWx)}, {XBASE ^ (XBASE + XS)}")

    def long_params(p, part):
        if part == 0:
            k(f"s_mul_i32 {s(t0)}, {s(sG)}, 7\ns_add_u32 {s(t0)}, {s(t0)}, {s(sNi)}")
            k(f"s_sub_u32 {s(t1)}, {s(t0)}, 12\ns_cmp_lt_u32 {s(t0)}, 12")
            k(f"s_mov_b32 {s(t2)}, 8388608\ns_cselect_b32 {s(p['wsize'])}, 6291456, {s(t2)}")
            k(f"s_mov_b32 {s(t2)}, 8192\ns_cselect_b32 {s(p['ldw'])}, 6144, {s(t2)}")
            k(f"s_cselect_b32 {s(p['par'])}, 1, 0\ns_cselect_b32 {s(t0)}, {s(t0)}, {s(t1)}")
            k(f"s_mov_b32 {s(p['xsize'])}, 4194304\ns_mov_b32 {s(p['ldx'])}, 2048\ns_mov_b32 {s(p['nk'])}, 16")
            k(f"s_lshl_b32 {s(p['woff0'])}, {s(t0)}, 9\ns_lshl_b32 {s(p['xoff0'])}, {s(sMt)}, 19")
            LB = k.newlab('lb'); LD = k.newlab('ld'); LV = k.newlab('lv')
            k(f"s_cmp_eq_u32 {s(p['par'])}, 0\ns_cbranch_scc1 {LB}")
            k(f"s_lshr_b32 {s(t1)}, {s(t0)}, 2")
            k(f"s_cmp_eq_u32 {s(t1)}, 0\ns_cselect_b32 {s(p['scale'])}, {f32bits(C_A)}, 0")
            k(f"s_lshl_b32 {s(t2)}, {s(t1)}, 22\ns_add_u32 {s(p['obase'])}, {s(t2)}, {WS_QA}")
            k(f"s_and_b32 {s(t2)}, {s(t0)}, 3\ns_lshl_b32 {s(t2)}, {s(t2)}, 1\ns_add_u32 {s(t2)}, {s(t2)}, {s(swn)}\ns_lshl_b32 {s(t2)}, {s(t2)}, 19")
            k(f"s_add_u32 {s(p['obase'])}, {s(p['obase'])}, {s(t2)}")
            k(f"s_lshl_b32 {s(t2)}, {s(swm)}, 3\ns_add_u32 {s(t2)}, {s(t2)}, {s(sMt)}")
            k(f"s_cmp_eq_u32 {s(t1)}, 2\ns_cbranch_scc1 {LV}")
            k(f"s_lshl_b32 {s(t2)}, {s(t2)}, 13\ns_add_u32 {s(p['obase'])}, {s(p['obase'])}, {s(t2)}")
            k(f"s_mov_b32 {s(p['swp'])}, 0\ns_mov_b32 {s(p['Si'])}, 131072\ns_mov_b32 {s(p['Sj'])}, 1024\ns_branch {LD}")
            k.label(LV)
            k(f"s_lshl_b32 {s(t2)}, {s(t2)}, 12\ns_add_u32 {s(p['obase'])}, {s(p['obase'])}, {s(t2)}")
            k(f"s_mov_b32 {s(p['swp'])}, 1\ns_mov_b32 {s(p['Si'])}, 1024\ns_mov_b32 {s(p['Sj'])}, 65536\ns_branch {LD}")
            k.label(LB)
            k(f"s_mov_b32 {s(p['swp'])}, 0\ns_mov_b32 {s(p['scale'])}, {f32bits(C_B)}")
            k(f"s_lshl_b32 {s(t1)}, {s(t0)}, 1\ns_add_u32 {s(t1)}, {s(t1)}, {s(swn)}\ns_lshl_b32 {s(t1)}, {s(t1)}, 19")
            k(f"s_lshl_b32 {s(t2)}, {s(sMt)}, 1\ns_add_u32 {s(t2)}, {s(t2)}, {s(swm)}\ns_lshl_b32 {s(t2)}, {s(t2)}, 15")
            k(f"s_add_u32 {s(p['obase'])}, {s(t1)}, {s(t2)}\ns_add_u32 {s(p['obase'])}, {s(p['obase'])}, {WS_QB}")
            k(f"s_mov_b32 {s(p['Si'])}, 1024\ns_mov_b32 {s(p['Sj'])}, 4096")
            k.label(LD)
        else:
            k(f"s_cmp_eq_u32 {s(p['par'])}, 1")
            k(f"s_cselect_b32 {s(p['xlo'])}, {s(ptr('A_x'))}, {s(ptr('B_x'))}\ns_cselect_b32 {s(p['xhi'])}, {s(ptr('A_x')+1)}, {s(ptr('B_x')+1)}")
            k(f"s_cselect_b32 {s(p['wlo'])}, {s(ptr('A_wqkv'))}, {s(ptr('B_w_q'))}\ns_cselect_b32 {s(p['whi'])}, {s(ptr('A_wqkv')+1)}, {s(ptr('B_w_q')+1)}")
    def short_params(p, part):
        if part == 0:
            k(f"s_lshl_b32 {s(t0)}, {s(sG)}, 3\ns_add_u32 {s(t0)}, {s(t0)}, {s(sNi)}\ns_cmp_lt_u32 {s(t0)}, 16")
            k(f"s_cselect_b32 {s(p['swp'])}, 0, 1")
            k(f"s_mov_b32 {s(t1)}, {WS_VB}\ns_cselect_b32 {s(p['obase'])}, {WS_KB}, {s(t1)}")
            k(f"s_mov_b32 {s(t1)}, 8192\ns_cselect_b32 {s(p['Si'])}, 1024, {s(t1)}")
            k(f"s_mov_b32 {s(t1)}, 1024\ns_cselect_b32 {s(p['Sj'])}, 4096, {s(t1)}")
            k(f"s_mov_b32 {s(p['xsize'])}, 2097152\ns_mov_b32 {s(p['ldx'])}, 1024\ns_mov_b32 {s(p['nk'])}, 8\ns_mov_b32 {s(p['par'])}, 0")
            k(f"s_mov_b32 {s(p['wsize'])}, 4194304\ns_mov_b32 {s(p['ldw'])}, 8192\ns_mov_b32 {s(p['scale'])}, 0")
            k(f"s_and_b32 {s(t0)}, {s(t0)}, 15\ns_lshl_b32 {s(p['woff0'])}, {s(t0)}, 9\ns_lshl_b32 {s(p['xoff0'])}, {s(sMt)}, 18")
            k(f"s_lshl_b32 {s(t1)}, {s(t0)}, 1\ns_add_u32 {s(t1)}, {s(t1)}, {s(swn)}\ns_lshl_b32 {s(t1)}, {s(t1)}, 19")
            k(f"s_lshl_b32 {s(t2)}, {s(sMt)}, 1\ns_add_u32 {s(t2)}, {s(t2)}, {s(swm)}\ns_lshl_b32 {s(t2)}, {s(t2)}, 15")
            k(f"s_add_u32 {s(p['obase'])}, {s(p['obase'])}, {s(t1)}\ns_add_u32 {s(p['obase'])}, {s(p['obase'])}, {s(t2)}")
        else:
            k(f"s_cmp_eq_u32 {s(p['swp'])}, 0")
            k(f"s_cselect_b32 {s(p['wlo'])}, {s(ptr('B_w_uk'))}, {s(ptr('B_w_uv'))}\ns_cselect_b32 {s(p['whi'])}, {s(ptr('B_w_uk')+1)}, {s(ptr('B_w_uv')+1)}")
            k(f"s_mov_b32 {s(p['xlo'])}, {s(ptr('B_c_kv'))}\ns_mov_b32 {s(p['xhi'])}, {s(ptr('B_c_kv')+1)}")

    def act_load(p, part=(0, 1), which="xw"):
        if 0 in part and 'x' in which:
            k(f"s_mov_b32 {s(srdX+2)}, {s(p['xsize'])}")
            k(f"s_lshl_b32 {s(t0)}, {s(p['ldx'])}, 4\ns_lshl_b32 {s(t0)}, {s(t0)}, {s(p['par'])}")
            k(f"s_mov_b32 {s(sXoff)}, {s(p['xoff0'])}")
            for a_ in (1, 2, 3):
                k(f"s_mul_i32 {s(t1)}, {s(t0)}, {a_}\ns_add_u32 {s(sXoff+a_)}, {s(t1)}, {s(p['xoff0'])}")
                if a_ & 1: k(f"s_sub_u32 {s(sXoff+a_)}, {s(sXoff+a_)}, 2048")
            k(f"s_lshl_b32 {s(t0)}, {s(swn)}, 7\ns_add_u32 {s(t0)}, {s(t0)}, {s(swm)}\ns_lshl_b32 {s(t1)}, {s(sw)}, 6\ns_cmp_eq_u32 {s(p['par'])}, 1\ns_cselect_b32 {s(t0)}, {s(t0)}, {s(t1)}")
            k(f"v_lshrrev_b32 {v(T)}, 3, {v(vLane)}\nv_lshlrev_b32 {v(T)}, {s(p['par'])}, {v(T)}")
            k(f"v_add_u32 {v(T)}, {s(t0)}, {v(T)}\nv_mul_lo_u32 {v(T)}, {v(T)}, {s(p['ldx'])}")
            k(f"v_lshrrev_b32 {v(T+1)}, 4, {v(vLane)}\nv_and_b32 {v(T+2)}, 7, {v(vLane)}\nv_xor_b32 {v(T+1)}, {v(T+1)}, {v(T+2)}")
            k(f"v_lshl_add_u32 {v(vX)}, {v(T+1)}, 4, {v(T)}")
            k(f"v_xor_b32 {v(T+1)}, 4, {v(T+1)}\nv_lshl_add_u32 {v(vX+1)}, {v(T+1)}, 4, {v(T)}")
            k(f"s_lshl_b32 {s(t0)}, {s(p['ldx'])}, 3\ns_lshl_b32 {s(t0)}, {s(t0)}, {s(p['par'])}\ns_sub_u32 {s(t0)}, {s(t0)}, 1024\nv_add_u32 {v(vX+1)}, {s(t0)}, {v(vX+1)}")
        if 0 in part and 'w' in which:
            k(f"s_mov_b32 {s(srdW+2)}, {s(p['wsize'])}")
            k(f"s_mov_b32 {s(sWoff)}, {s(p['woff0'])}\ns_lshl_b32 {s(t0)}, {s(p['ldw'])}, 2")
            for a_ in (1, 2, 3):
                k(f"s_mul_i32 {s(t1)}, {s(t0)}, {a_}\ns_add_u32 {s(sWoff+a_)}, {s(t1)}, {s(p['woff0'])}")
                if a_ & 1: k(f"s_sub_u32 {s(sWoff+a_)}, {s(sWoff+a_)}, 2048")
            k(f"s_lshl_b32 {s(sWstep)}, {s(p['ldw'])}, 6")
            k(f"v_lshrrev_b32 {v(T)}, 5, {v(vLane)}\ns_lshl_b32 {s(t0)}, {s(sw)}, 4\nv_add_u32 {v(T+1)}, {s(t0)}, {v(T)}\nv_mul_lo_u32 {v(T+1)}, {v(T+1)}, {s(p['ldw'])}")
            k(f"v_lshlrev_b32 {v(T)}, 1, {v(T)}\nv_and_b32 {v(T+2)}, 31, {v(vLane)}\nv_xor_b32 {v(T)}, {v(T)}, {v(T+2)}")
            k(f"s_lshl_b32 {s(t0)}, {s(p['ldw'])}, 1\ns_sub_u32 {s(t0)}, {s(t0)}, 1024\nv_add_u32 {v(T+3)}, {s(t0)}, {v(T+1)}")
            for u in range(2):
                for e in range(2):
                    k(f"v_xor_b32 {v(T+2)}, {4*e + 8*u}, {v(T)}\nv_lshl_add_u32 {v(vW+e+2*u)}, {v(T+2)}, 4, {v(T+3) if e else v(T+1)}")
        if 1 in part:
            if 'x' in which: k(f"s_mov_b32 {s(srdX)}, {s(p['xlo'])}\ns_mov_b32 {s(srdX+1)}, {s(p['xhi'])}")
            if 'w' in which: k(f"s_mov_b32 {s(srdW)}, {s(p['wlo'])}\ns_mov_b32 {s(srdW+1)}, {s(p['whi'])}")
    def act_comp(p):
        for f in CP: k(f"s_mov_b32 {s(CP[f])}, {s(p[f])}")

    def dmaX(j):
        return (f"s_add_u32 m0, {s(sXw)}, {4096 * (j // 4)}" if j % 4 == 0 else None,
                f"buffer_load_dwordx4 {v(vX + (j & 1))}, {s(srdX,4)}, {s(sXoff + (j >> 1))} offen offset:{(j & 3) * 1024} lds",
                f"s_add_u32 {s(sXoff + (j >> 1))}, {s(sXoff + (j >> 1))}, 128" if j & 1 else None)
    def dmaW(j):
        return (f"s_add_u32 m0, {s(sWw)}, {4096 * (j // 4)}" if j % 4 == 0 else None,
                f"buffer_load_dwordx4 {v(vW + (j & 1) + 2 * (j >> 2))}, {s(srdW,4)}, {s(sWoff + (j >> 1))} offen offset:{(j & 3) * 1024} lds",
                f"s_add_u32 {s(sWoff + (j >> 1))}, {s(sWoff + (j >> 1))}, {s(sWstep)}" if j & 1 else None)
    def emit_items(items):
        for pre, ins, post in items:
            if pre: k(pre + "\ns_nop 0")
            k(ins)
            if post: k(post)
    rotWw = [f"s_add_u32 {s(sWw)}, {s(sWw)}, {XS}", f"s_cmp_ge_u32 {s(sWw)}, {3*XS}\ns_cselect_b32 {s(t0)}, {3*XS}, 0", f"s_sub_u32 {s(sWw)}, {s(sWw)}, {s(t0)}"]
    rotXw = [f"s_xor_b32 {s(sXw)}, {s(sXw)}, {s(sWx)}"]
    def rdX(kk, mb): return (('x', mb), f"ds_read_b128 {a(fragX(kk, mb), 4)}, {v(vx + kk)} offset:{mb * 2048}")
    def rdW(kk, nb, t): return (('w', nb), f"ds_read_b64_tr_b16 {a(fragW(kk, nb) + 2 * t, 2)}, {v(vw + nb)} offset:{(32 * kk + 4 * t) * 512}")
    def rdWpair(p_): return [rdW(kk, nb, t) for nb in (2 * p_, 2 * p_ + 1) for kk in range(2) for t in range(2)]

    long_params(P[0], 0); short_params(P[1], 0)
    k(f"s_mov_b32 {s(sHasNext)}, 1")
    L1 = k.newlab('haslong'); L2 = k.newlab('hl2')
    k(f"s_cmp_lt_u32 {s(sIdx)}, 28\ns_cbranch_scc1 {L1}")
    for f in PF:
        if f not in ('xlo', 'xhi', 'wlo', 'whi'): k(f"s_mov_b32 {s(P[0][f])}, {s(P[1][f])}")
    k(f"s_mov_b32 {s(sHasNext)}, 0")
    k.label(L1)
    act_load(P[0], (0,))
    k("s_waitcnt lgkmcnt(0)")
    long_params(P[0], 1); short_params(P[1], 1)
    k(f"s_cmp_lt_u32 {s(sIdx)}, 28\ns_cbranch_scc1 {L2}")
    for f in ('xlo', 'xhi', 'wlo', 'whi'): k(f"s_mov_b32 {s(P[0][f])}, {s(P[1][f])}")
    k.label(L2)
    if 'nopf' not in abl:
        Lnp = k.newlab('nopf')
        k(f"s_cmp_lt_u32 {s(sIdx)}, 28\ns_cbranch_scc1 {Lnp}")
        sPo = S.alloc('wo', 2, 2)
        k(f"s_load_dwordx2 {s(sPo,2)}, s[0:1], {KARG['B_w_o']}")
        k(f"s_sub_u32 {s(t3)}, s2, 224\ns_lshl_b32 {s(t3)}, {s(t3)}, 2\ns_add_u32 {s(t3)}, {s(t3)}, {s(sw)}")
        k(f"v_lshlrev_b32 {v(T)}, 7, {v(vLane)}")
        k(f"v_lshrrev_b32 {v(T+1)}, 3, {v(vLane)}\nv_lshlrev_b32 {v(T+1)}, 11, {v(T+1)}\nv_and_b32 {v(T+2)}, 7, {v(vLane)}\nv_lshl_add_u32 {v(T+1)}, {v(T+2)}, 7, {v(T+1)}")
        k(f"s_lshl_b32 {s(t2)}, {s(t3)}, 13\ns_lshl_b32 {s(t3)}, {s(t3)}, 14\ns_add_u32 {s(t3)}, {s(t3)}, 1024")
        k(f"s_mov_b32 {s(srdO+3)}, 0x20000\ns_waitcnt lgkmcnt(0)")
        MB = 1 << 20
        def region(p_, size, off, nbytes, rows=False):
            k(f"s_mov_b32 {s(srdO)}, {s(p_)}\ns_mov_b32 {s(srdO+1)}, {s(p_+1)}\ns_mov_b32 {s(srdO+2)}, {size}")
            step = 2 * MB if rows else MB
            for o in range(off, off + nbytes, step):
                k(f"s_add_u32 {s(t0)}, {s(t3 if rows else t2)}, {o}\nbuffer_load_dword {v(T+3)}, {v(T+1 if rows else T)}, {s(srdO,4)}, {s(t0)} offen")
        region(ptr('B_w_q'), 8 * MB, 4 * MB, 2 * MB); region(ptr('A_wqkv'), 6 * MB, 3 * MB, 2 * MB)
        region(ptr('A_x'), 4 * MB, 0, 4 * MB, True); region(ptr('B_x'), 4 * MB, 0, 4 * MB, True)
        region(ptr('B_w_q'), 8 * MB, 6 * MB, 2 * MB); region(ptr('A_wqkv'), 6 * MB, 5 * MB, 1 * MB)
        region(ptr('B_c_kv'), 2 * MB, 0, 2 * MB); region(ptr('B_w_uk'), 4 * MB, 0, 4 * MB); region(ptr('B_w_uv'), 4 * MB, 0, 4 * MB)
        if 'pfwo' in abl: region(sPo, 8 * MB, 0, 8 * MB); region(ptr('A_wo'), 2 * MB, 0, 2 * MB)
        k.label(Lnp)
    act_load(P[0], (1,))
    k(f"s_mov_b32 {s(srdO)}, {s(sWS)}\ns_mov_b32 {s(srdO+1)}, {s(sWS+1)}\ns_mov_b32 {s(srdO+2)}, {WS_SIZE}\ns_mov_b32 {s(srdO+3)}, 0x20000")
    k(f"s_mov_b32 {s(srdS)}, {s(sWS)}\ns_mov_b32 {s(srdS+1)}, {s(sWS+1)}\ns_mov_b32 {s(srdS+2)}, 0\ns_mov_b32 {s(srdS+3)}, 0x20000")
    k(f"s_mov_b32 {s(sPb)}, 0\ns_mov_b32 {s(sPi)}, 0\ns_mov_b32 {s(sPj)}, 0\ns_mov_b32 {s(sPa)}, 0")
    def allX(): emit_items([dmaX(j) for j in range(8)]); k("\n".join(rotXw))
    def allW(): emit_items([dmaW(j) for j in range(8)]); k("\n".join(rotWw))
    allX(); allW(); allW()
    ST.stamp(2)
    k("s_waitcnt vmcnt(8)\ns_barrier")
    ST.stamp(3)
    init = rdWpair(0) + rdWpair(1)
    tailq = []
    w2 = rdWpair(2)
    for mb in range(8): tailq += [w2[mb], rdX(0, mb), rdX(1, mb)]
    for tag, ins in init + tailq: k(ins)
    allX(); allW()
    k(f"s_mov_b32 {s(sFirst)}, 1")
    sfx = ' nt' if 'nt' in abl else (' sc1' if 'sc1' in abl else '')
    XG = [34 + 4 * i for i in range(8)]
    WG = [66, 71, 76, 81, 86, 91, 100, 112]
    SG = [9, 13, 17, 21, 25, 29, 106, 122]
    GA, GB = 31, 95
    def vm_counts(kind):
        def ops(kd, t_):
            o = [(g, ('X', t_ + 2)) for g in XG] + [(g, ('W', t_ + 3)) for g in WG] + [(GA - 0.5, 'A'), (GB - 0.5, 'B')]
            if kd < 3: o += [(g, 'S') for g in SG]
            return [(x, kd, t_) for g, x in sorted(o, key=lambda z: z[0])]
        res = {}
        for pre in ([(('X', 0), 0, 0)] * 8 + [(('W', 0), 0, 0)] * 8 + [(('W', 1), 0, 0)] * 8 + [(('X', 1), 0, 0)] * 8 + [(('W', 2), 0, 0)] * 8,
                    ops(3, -3) + ops(3, -2) + ops(3, -1) + [('S', 9, 0)] * 8):
            seq = list(pre)
            for t_, kd in enumerate((0, 1, 2, 3, 3, 3)): seq += ops(kd, t_)
            q = []
            for x, kd, t_ in seq:
                if x in ('A', 'B'):
                    need = ('W', t_ + 1) if x == 'A' else ('X', t_ + 1)
                    if need in q:
                        n = len(q) - 1 - max(i for i, y in enumerate(q) if y == need)
                        res[(kd, x)] = min(res.get((kd, x), 63), n)
                else: q.append(x)
        return res[(kind, 'A')], res[(kind, 'B')]

    def body(swp, kind):
        tr = LgkmTracker([tag for tag, _ in tailq])
        vmA, vmB = vm_counts(kind)
        rd = {}; first = {}; head = {}; vfx = {}
        dgs = set(XG) | set(WG) | (set(SG) if kind < 3 else set())
        for g in dgs | {GA, GB}: first[g] = None
        def put_first(g, x):
            while g in first: g += 1
            assert g < 127
            first[g] = x; return g
        def put_reads(g, items, stride):
            for x in items:
                while g in dgs or g in rd: g += 1
                rd[g] = x; g += stride
        for items, gs in (([dmaX(j) for j in range(8)], XG), ([dmaW(j) for j in range(8)], WG)):
            for (pre, ins, post), g in zip(items, gs):
                head[g] = ins if 'nodma' not in abl else "s_nop 0"
                if pre: assert g - 1 not in first; first[g - 1] = pre
            for (pre, ins, post), g in zip(items, gs):
                if post: put_first(g + 1, post)
        if kind < 3:
            for i, g in enumerate(SG):
                n = kind * 8 + i
                head[g] = f"buffer_store_dwordx4 {a(STASH + 4*n, 4)}, {v(vSt)}, {s(srdS,4)}, {s(sPa)} offen{sfx}"
                put_first(g + 1, f"s_add_u32 {s(sPa)}, {s(sPa)}, {s(sPj)}" if i < 7 else f"s_add_u32 {s(sPb)}, {s(sPb)}, {s(sPi)}")
            assert 2 not in first
            first[2] = f"s_mov_b32 {s(sPa)}, {s(sPb)}"
        put_reads(0, rdWpair(3), 1)
        put_reads(GA + 1, rdWpair(0), 3)
        put_reads(64, rdWpair(1), 3)
        g = 96
        for mb in range(8):
            lastuse = 96 + 4 * mb + 3
            put_reads(max(g, 96 + 4 * mb + 1), [w2[mb]], 1)
            if mb < 7: put_reads(lastuse, [rdX(0, mb), rdX(1, mb)], 1)
        g = put_first(10, f"s_add_u32 {s(sXs)}, {s(sXs)}, {XS}")
        g = put_first(g + 1, f"s_cmp_ge_u32 {s(sXs)}, {3*XS}\ns_cselect_b32 {s(sXd)}, {-2*XS & 0xffffffff}, {s(sXSc)}\ns_cselect_b32 {s(sXs)}, 0, {s(sXs)}")
        gg = g + 1
        for nb in range(8):
            while gg in dgs: gg += 1
            lim = nb if nb < 6 else None
            vfx.setdefault(gg, []).append(f"v_add_u32 {v(vw+nb)}, {s(sXd)}, {v(vw+nb)}"); gg += 1
        assert gg < GA
        vfx.setdefault(40, []).append(f"v_xor_b32 {v(vx)}, {s(sWx)}, {v(vx)}"); vfx.setdefault(44, []).append(f"v_xor_b32 {v(vx+1)}, {s(sWx)}, {v(vx+1)}")
        put_first(XG[4] + 1, rotXw[0])
        g = WG[4] + 1
        for x in rotWw: g = put_first(g, x) + 1
        order = sorted(rd)
        assert [rd[g][1] for g in order if g >= 96] == [x[1] for x in tailq[:22]], "tail order"
        i = 0
        for rp in range(4):
            for mb in range(8):
                for nb in (2 * rp, 2 * rp + 1):
                    for kk in range(2):
                        w = tr.need({('x', mb), ('w', nb)})
                        if i == GA:
                            tr.q = []; k(f"s_waitcnt vmcnt({vmA}) lgkmcnt(0)")
                        elif i == GB:
                            k(f"s_waitcnt vmcnt({vmB})" + (" " + w.split()[1] if w else ""))
                        elif w: k(w)
                        A_, B_ = a(fragW(kk, nb), 4), a(fragX(kk, mb), 4)
                        d = r(acc(nb, mb), 0, 4)
                        if swp:
                            A_, B_ = B_, A_
                            d = r(acc(mb, nb), 0, 4)
                        c = "0" if (kind == 0 and kk == 0) else d
                        k(f"v_mfma_f32_16x16x32_bf16 {d}, {A_}, {B_}, {c}")
                        if i in (GA, GB): k("s_barrier")
                        if first.get(i): k(first[i])
                        if i in rd: k(rd[i][1]); tr.issue(rd[i][0])
                        if i in head: k(head[i])
                        for x in vfx.get(i, []): k(x)
                        if i == 127:
                            for tag, ins in tailq[22:]: k(ins)
                        i += 1

    outl = []
    Ltile = k.newlab('tile'); Lepi = k.newlab('epi')
    k.label(Ltile)
    Lsw = k.newlab('swp')
    k(f"s_sub_u32 {s(sCnt)}, {s(CP['nk'])}, 3")
    k(f"s_cmp_eq_u32 {s(CP['swp'])}, 1\ns_cbranch_scc1 {Lsw}")
    for swp in (0, 1):
        if swp: k.label(Lsw)
        for kind in range(3): body(swp, kind)
        Lloop = k.newlab('loop'); Lns = k.newlab('nosw'); Lsw2 = k.newlab('dosw')
        k.label(Lloop)
        k(f"s_cmp_le_u32 {s(sCnt)}, 3\ns_cbranch_scc1 {Lsw2}")
        k.label(Lns)
        outl.append((Lsw2, Lns))
        body(swp, 3)
        k(f"s_sub_u32 {s(sCnt)}, {s(sCnt)}, 1\ns_cmp_lg_u32 {s(sCnt)}, 0\ns_cbranch_scc1 {Lloop}")
        if not swp: k(f"s_branch {Lepi}")
    k.label(Lepi)
    def stamp2(i1, i2):
        if not stamps: return
        Lq = k.newlab('q'); Lq2 = k.newlab('q')
        k(f"s_cmp_eq_u32 {s(sFirst)}, 0\ns_cbranch_scc1 {Lq}")
        ST.stamp(i1); k(f"s_branch {Lq2}"); k.label(Lq); ST.stamp(i2); k.label(Lq2)
    stamp2(4, 6)
    Lnoscale = k.newlab('noscale'); Lstash = k.newlab('stash'); Lfin = k.newlab('fin')
    k("s_nop 7")
    k(f"s_cmp_eq_u32 {s(CP['scale'])}, 0\ns_cbranch_scc1 {Lnoscale}")
    k(f"s_mov_b32 {s(t2)}, {s(CP['scale'])}\ns_mov_b32 {s(t3)}, {s(CP['scale'])}")
    assert t2 % 2 == 0
    for i in range(32, 256, 2): k(f"v_pk_mul_f32 {v(i,2)}, {v(i,2)}, {s(t2,2)}")
    for i0 in range(0, 32, 8):
        for i in range(8): k(f"v_accvgpr_read_b32 {v(vT+i)}, {a(128+i0+i)}")
        for i in range(0, 8, 2): k(f"v_pk_mul_f32 {v(vT+i,2)}, {v(vT+i,2)}, {s(t2,2)}")
        for i in range(8): k(f"v_accvgpr_write_b32 {a(128+i0+i)}, {v(vT+i)}")
    k.label(Lnoscale)
    k(f"s_cmp_lg_u32 {s(sHasNext)}, 0\ns_cbranch_scc1 {Lstash}")
    for stash in (0, 1):
        if stash: k.label(Lstash)
        k(f"s_mov_b32 {s(t1)}, {s(CP['obase'])}")
        for e in range(4):
            k(f"s_mov_b32 {s(t2)}, {s(t1)}")
            for j in range(8):
                sp = acc(2 * e, j)
                if sp[0] == 'a':
                    for i in range(8): k(f"v_accvgpr_read_b32 {v(vT+i)}, {a(sp[1]+i)}")
                    b = vT
                else:
                    b = sp[1]
                for i in range(4):
                    k(f"v_cvt_pk_bf16_f32 {v(b+i)}, {v(b+2*i)}, {v(b+2*i+1)}")
                if stash and e > 0:
                    for i in range(4): k(f"v_accvgpr_write_b32 {a(STASH + 4*((e-1)*8+j) + i)}, {v(b+i)}")
                else:
                    k(f"buffer_store_dwordx4 {v(b,4)}, {v(vSt)}, {s(srdO,4)}, {s(t2)} offen{sfx}")
                    k(f"s_add_u32 {s(t2)}, {s(t2)}, {s(CP['Sj'])}")
                    if sp[0] == 'a': k("s_nop 1")
            k(f"s_add_u32 {s(t1)}, {s(t1)}, {s(CP['Si'])}")
        if not stash:
            stamp2(5, 7)
            k(f"s_branch {Lfin}")
    k(f"s_add_u32 {s(sPb)}, {s(CP['obase'])}, {s(CP['Si'])}\ns_mov_b32 {s(sPi)}, {s(CP['Si'])}\ns_mov_b32 {s(sPj)}, {s(CP['Sj'])}\ns_mov_b32 {s(srdS+2)}, {WS_SIZE}")
    ST.stamp(5)
    act_comp(P[1])
    k(f"s_mov_b32 {s(sHasNext)}, 0\ns_mov_b32 {s(sFirst)}, 0\ns_branch {Ltile}")
    k.label(Lfin)
    if stamps:
        k('s_waitcnt vmcnt(0)')
        ST.stamp(8); ST.stamp(9, real=True)
        ST.flush(srdO, sw, vT, vLane)
    k.label(Lend)
    k("s_endpgm")
    for Lsw2, Lns in outl:
        k.label(Lsw2)
        Lx = k.newlab('swx'); Lnw = k.newlab('nw'); Lnx = k.newlab('nx')
        k(f"s_cmp_eq_u32 {s(sCnt)}, 1\ns_cbranch_scc1 {Lns}\ns_cmp_eq_u32 {s(sCnt)}, 2\ns_cbranch_scc1 {Lx}")
        k(f"s_cmp_eq_u32 {s(sHasNext)}, 0\ns_cbranch_scc1 {Lnw}")
        act_load(P[1], which="w")
        k(f"s_branch {Lns}")
        k.label(Lnw)
        k(f"s_mov_b32 {s(srdW+2)}, 0\ns_branch {Lns}")
        k.label(Lx)
        k(f"s_cmp_eq_u32 {s(sHasNext)}, 0\ns_cbranch_scc1 {Lnx}")
        act_load(P[1], which="x")
        k(f"s_branch {Lns}")
        k.label(Lnx)
        k(f"s_mov_b32 {s(srdX+2)}, 0\ns_branch {Lns}")
    code, desc = kernel_wrap(name, k.text(), 512, 102, 256)
    return code, desc, f"; @launch kernel={name} grid=(256,1,1) block=(256,1,1) lds={LDS_BYTES}"
```

```python
from asmlib import *

SLOT = 32768
NS = 5
LDS_BYTES = NS * SLOT
NC = 41
NB = 64 - NC
NP = NB + 16
TR = 4

def build(name="gemm3_kernel", stamps=False, abl=(), wsflag=True):
    k = K(name)
    S = Regs('s', 4, 102)
    sP = S.alloc('ptrs', 8, 4)
    sPa = S.alloc('awo', 2, 2)
    srdX = S.alloc('srdX', 4, 4); srdW = S.alloc('srdW', 4, 4); srdO = S.alloc('srdO', 4, 4); srdP = S.alloc('srdP', 4, 4)
    sw = S.alloc('w'); swm = S.alloc('wm'); swn = S.alloc('wn'); sIsA = S.alloc('isa'); sLd = S.alloc('ld')
    sMt = S.alloc('mt'); sNt = S.alloc('nt'); sPair = S.alloc('pair'); sXb = S.alloc('xb')
    sXo = S.alloc('xo'); sWo = S.alloc('wo'); sRd = S.alloc('rd'); sWr = S.alloc('wr'); sW4 = S.alloc('w4'); sDl = S.alloc('dl')
    sCnt = S.alloc('cnt'); sT = S.alloc('t', 6); sStamp = S.alloc('stamp', 2, 2); sSl = S.alloc('sl')
    sEv = S.alloc('ev'); sEvS = S.alloc('evs')
    t0, t1, t2, t3 = sT, sT + 1, sT + 2, sT + 3
    V = Regs('v', 1, 32)
    vLane = V.alloc('lane'); vx = V.alloc('vx'); vw = V.alloc('vw', 4); vX = V.alloc('vX'); vW = V.alloc('vW', 4)
    vSt = V.alloc('st'); vStamp = V.alloc('stamp'); vFlag = V.alloc('flag'); vT = V.alloc('t', 8, 4)
    ST = Stamper(k, stamps, vStamp, sStamp)
    T = vT
    def acc(nb, mb): return 32 + (((nb >> 1) * 4 + mb) * 2 + (nb & 1)) * 4
    def fX(st, mb): return 96 + st * 32 + mb * 4
    def fW(st, nb): return 96 + st * 32 + 16 + nb * 4
    PART = 160

    Lend = k.newlab('end'); Lload = k.newlab('load')
    k(f"s_cmp_ge_u32 s2, 256\ns_cbranch_scc1 {Lend}")
    k(f"s_load_dwordx8 {s(sP,8)}, s[0:1], {KARG['B_w_o']}\ns_load_dwordx2 {s(sPa,2)}, s[0:1], {KARG['A_wo']}")
    if stamps: k("s_waitcnt lgkmcnt(0)")
    ST.stamp(0); ST.stamp(1, real=True)
    k(f"v_and_b32 {v(vLane)}, 63, v0\nv_lshrrev_b32 {v(T)}, 6, v0\ns_nop 0\nv_readfirstlane_b32 {s(sw)}, {v(T)}\ns_nop 3\ns_lshr_b32 {s(sLd)}, {s(sw)}, 2\ns_and_b32 {s(sw)}, {s(sw)}, 3")
    k(f"s_bfe_u32 {s(sIsA)}, s2, 0x10002\ns_xor_b32 {s(sIsA)}, {s(sIsA)}, 1")
    k(f"s_bfe_u32 {s(t0)}, s2, 0x10001\ns_lshl_b32 {s(t0)}, {s(t0)}, 3\ns_bfe_u32 {s(t1)}, s2, 0x30003\ns_add_u32 {s(sMt)}, {s(t0)}, {s(t1)}")
    k(f"s_and_b32 {s(t0)}, s2, 1\ns_lshl_b32 {s(t0)}, {s(t0)}, 2\ns_lshr_b32 {s(t1)}, s2, 6\ns_add_u32 {s(sNt)}, {s(t0)}, {s(t1)}")
    if 'mix3' in abl:
        k(f"s_lshr_b32 {s(sIsA)}, s2, 7\ns_xor_b32 {s(sIsA)}, {s(sIsA)}, 1")
        k(f"s_bfe_u32 {s(t0)}, s2, 0x20001\ns_lshl_b32 {s(t0)}, {s(t0)}, 2\ns_bfe_u32 {s(t1)}, s2, 0x20003\ns_add_u32 {s(sMt)}, {s(t0)}, {s(t1)}")
        k(f"s_and_b32 {s(t0)}, s2, 1\ns_lshl_b32 {s(t0)}, {s(t0)}, 2\ns_bfe_u32 {s(t1)}, s2, 0x20005\ns_add_u32 {s(sNt)}, {s(t0)}, {s(t1)}")
    k(f"s_lshr_b32 {s(swm)}, {s(sw)}, 1\ns_and_b32 {s(swn)}, {s(sw)}, 1\nv_lshlrev_b32 {v(vX)}, 4, {v(vLane)}")
    k(f"s_cmp_eq_u32 {s(sLd)}, 1\ns_cbranch_scc1 {Lload}")
    k(f"s_lshl_b32 {s(sPair)}, {s(sMt)}, 3\ns_add_u32 {s(sPair)}, {s(sPair)}, {s(sNt)}")
    k(f"s_lshl_b32 {s(t0)}, {s(swm)}, 12\nv_add_u32 {v(vx)}, {s(t0)}, {v(vX)}")
    k(f"v_lshrrev_b32 {v(T)}, 2, {v(vLane)}\nv_lshlrev_b32 {v(T)}, 8, {v(T)}\nv_and_b32 {v(T+1)}, 3, {v(vLane)}\nv_lshl_add_u32 {v(T)}, {v(T+1)}, 3, {v(T)}\nv_add_u32 {v(T)}, 16384, {v(T)}")
    k(f"v_bfe_u32 {v(T+1)}, {v(vLane)}, 2, 3\ns_lshl_b32 {s(t0)}, {s(swn)}, 2\nv_xor_b32 {v(T+1)}, {s(t0)}, {v(T+1)}")
    for nb in range(4):
        k(f"v_xor_b32 {v(T+2)}, {nb}, {v(T+1)}\nv_lshl_add_u32 {v(vw+nb)}, {v(T+2)}, 5, {v(T)}")
    k(f"s_mov_b32 {s(sRd)}, 0\ns_mov_b32 {s(sSl)}, {SLOT}\ns_cmp_eq_u32 {s(sIsA)}, 1\ns_cselect_b32 {s(sCnt)}, {NP-1}, {NC-1}")
    for i in range(64): k(f"v_mov_b32 {v(32+i)}, 0")
    k(f"v_and_b32 {v(T)}, 15, {v(vLane)}\nv_lshlrev_b32 {v(T)}, 12, {v(T)}\nv_lshlrev_b32 {v(T)}, {s(sIsA)}, {v(T)}")
    k(f"v_bfe_u32 {v(T+1)}, {v(vLane)}, 4, 1\nv_lshl_add_u32 {v(T)}, {v(T+1)}, 5, {v(T)}\nv_lshrrev_b32 {v(T+1)}, 5, {v(vLane)}\nv_lshl_add_u32 {v(vSt)}, {v(T+1)}, 4, {v(T)}")
    k(f"s_lshl_b32 {s(t0)}, {s(sMt)}, 3\ns_lshl_b32 {s(t1)}, {s(swm)}, 2\ns_add_u32 {s(t0)}, {s(t0)}, {s(t1)}")
    k(f"s_lshl_b32 {s(t1)}, {s(t0)}, 16\ns_add_u32 {s(t1)}, {s(t1)}, 2048")
    k(f"s_and_b32 {s(t2)}, {s(t0)}, 63\ns_lshl_b32 {s(t2)}, {s(t2)}, 17\ns_lshr_b32 {s(t3)}, {s(t0)}, 6\ns_lshl_b32 {s(t3)}, {s(t3)}, 12\ns_add_u32 {s(t2)}, {s(t2)}, {s(t3)}")
    k(f"s_cmp_eq_u32 {s(sIsA)}, 1\ns_cselect_b32 {s(sXo)}, {s(t2)}, {s(t1)}\ns_lshl_b32 {s(sWo)}, 0x10000, {s(sIsA)}")
    k(f"s_lshl_b32 {s(t2)}, {s(sNt)}, 8\ns_lshl_b32 {s(t3)}, {s(swn)}, 7\ns_add_u32 {s(sXo)}, {s(sXo)}, {s(t2)}\ns_add_u32 {s(sXo)}, {s(sXo)}, {s(t3)}")
    EVP = [NB, NB + TR + 1, NB + TR + 2]
    EVC = [NC - 6, NC - 4]
    k(f"s_cmp_eq_u32 {s(sIsA)}, 1\ns_cselect_b32 {s(sEv)}, {EVP[0]}, {EVC[0]}\ns_cselect_b32 {s(sEvS)}, 0, 16")
    k("s_waitcnt lgkmcnt(0)")
    k(f"s_mov_b32 {s(srdO)}, {s(sP+2)}\ns_mov_b32 {s(srdO+1)}, {s(sP+3)}\ns_mov_b32 {s(srdO+3)}, 0x20000\ns_mov_b32 {s(srdO+2)}, {2048*2048*2}")
    k(f"s_mov_b32 {s(srdP)}, {s(sP+6)}\ns_mov_b32 {s(srdP+1)}, {s(sP+7)}\ns_mov_b32 {s(srdP+3)}, 0x20000\ns_mov_b32 {s(srdP+2)}, {WS_SIZE}")
    k("s_setprio 1")
    ST.stamp(2)
    k("s_barrier")
    ST.stamp(3)
    def reads(st, kk):
        o = []
        def rx(mb): o.append((('x', st, mb), f"ds_read_b128 {v(fX(st, mb), 4)}, {v(vx)} offset:{mb * 1024 + kk * 8192}"))
        def rw(nb):
            for t in range(2):
                o.append((('w', st, nb), f"ds_read_b64_tr_b16 {v(fW(st, nb) + 2 * t, 2)}, {v(vw + nb)} offset:{(32 * kk + 16 * t) * 256}"))
        rx(0); rw(0); rx(1); rx(2); rx(3); rw(1); rw(2); rw(3)
        return o
    for tag, ins in reads(0, 0): k(ins)
    Lloop = k.newlab('loop'); Lev = k.newlab('ev'); Lback = k.newlab('back'); Ltr = k.newlab('trk')
    sPo = S.alloc('po')
    NPS = 8 if 'pf32' not in abl else 16
    def pstore(b): return f"buffer_store_dwordx4 {v(PART+4*b,4)}, {v(vX)}, {s(srdP,4)}, {s(sPo)} offen offset:{(b&3)*1024} sc1" + (f"\ns_add_u32 {s(sPo)}, {s(sPo)}, 4096" if b & 3 == 3 else "")
    def body(stores=()):
        tr = LgkmTracker([tag for tag, _ in reads(0, 0)])
        stores = list(stores)
        for ss in range(2):
            st = ss
            nxt = reads(st ^ 1, ss ^ 1)
            g0 = 1 if ss == 1 else 0
            rd_at = {g0 + i: x for i, x in enumerate(nxt)}
            first = {}; fill = {g: [] for g in range(16)}
            if ss == 0:
                first[8] = f"s_add_u32 {s(sRd)}, {s(sRd)}, {SLOT}"
                first[9] = f"s_cmp_ge_u32 {s(sRd)}, {NS*SLOT}"
                first[10] = f"s_cselect_b32 {s(sDl)}, {-(NS-1)*SLOT & 0xffffffff}, {s(sSl)}"
                first[11] = f"s_cselect_b32 {s(sRd)}, 0, {s(sRd)}"
                fill[12].append(f"v_add_u32 {v(vx)}, {s(sDl)}, {v(vx)}\nv_add_u32 {v(vw)}, {s(sDl)}, {v(vw)}")
                fill[13].append(f"v_add_u32 {v(vw+1)}, {s(sDl)}, {v(vw+1)}\nv_add_u32 {v(vw+2)}, {s(sDl)}, {v(vw+2)}")
                fill[14].append(f"v_add_u32 {v(vw+3)}, {s(sDl)}, {v(vw+3)}")
                if len(stores) > 1: fill[15].append(stores.pop(0))
            else:
                if stores: fill[13].append(stores.pop(0))
                first[14] = f"s_sub_u32 {s(sCnt)}, {s(sCnt)}, 1"
            for i in range(16):
                nb, mb = i // 4, i % 4
                if ss == 1 and i == 0:
                    tr.q = []
                    k(f"s_waitcnt lgkmcnt(0)")
                w = tr.need({('x', st, mb), ('w', st, nb)})
                if w: k(w)
                d = v(acc(nb, mb), 4)
                k(f"v_mfma_f32_16x16x32_bf16 {d}, {v(fW(st, nb), 4)}, {v(fX(st, mb), 4)}, {d}")
                if ss == 1 and i == 0: k("s_barrier")
                if i in first: k(first[i])
                if i in rd_at:
                    tag, ins = rd_at[i]; k(ins); tr.issue(tag)
                for t in fill[i]: k(t)
    k.label(Lloop)
    k(f"s_sub_u32 {s(sEv)}, {s(sEv)}, 1\ns_cbranch_scc1 {Lev}")
    k.label(Lback)
    body()
    k(f"s_cbranch_scc0 {Lloop}")
    ST.stamp(4)
    Lna = k.newlab('noadd')
    k(f"s_nop 5\ns_cmp_eq_u32 {s(sIsA)}, 1\ns_cbranch_scc1 {Lna}\ns_waitcnt vmcnt(0) lgkmcnt(0)")
    if NPS == 8:
        for i in range(32):
            k(f"v_lshlrev_b32 {v(96+2*i)}, 16, {v(PART+i)}\nv_and_b32 {v(97+2*i)}, 0xffff0000, {v(PART+i)}")
        for i in range(0, 64, 2): k(f"v_pk_add_f32 {v(32+i,2)}, {v(32+i,2)}, {v(96+i,2)}")
    else:
        for i in range(0, 64, 2): k(f"v_pk_add_f32 {v(32+i,2)}, {v(32+i,2)}, {v(PART+i,2)}")
    k.label(Lna)
    for mb in range(4):
        for e in range(2):
            b = acc(2 * e, mb)
            for i in range(4): k(f"v_cvt_pk_bf16_f32 {v(b+i)}, {v(b+2*i)}, {v(b+2*i+1)}")
        k("s_nop 1")
        for e in range(2):
            b = acc(2 * e, mb)
            k(f"v_permlane16_swap_b32 {v(b)}, {v(b+2)}\nv_permlane16_swap_b32 {v(b+1)}, {v(b+3)}")
        for e in range(2):
            b = acc(2 * e, mb)
            k(f"buffer_store_dwordx4 {v(b,4)}, {v(vSt)}, {s(srdO,4)}, {s(sXo)} offen offset:{64*e}{' sc1' if 'oplain' not in abl else ''}")
        k(f"s_add_u32 {s(sXo)}, {s(sXo)}, {s(sWo)}")
    if stamps:
        k('s_waitcnt vmcnt(0)')
        ST.stamp(8); ST.stamp(9, real=True)
        ST.flush(srdP, sw, vT, vLane, base=0x200000)
        if 'dbgout' in abl:
            Ld = k.newlab('dbg')
            k(f"s_lshl_b32 {s(t0)}, s2, 2\ns_add_u32 {s(t0)}, {s(t0)}, {s(sw)}\ns_cmp_lg_u32 {s(t0)}, 0\ns_cbranch_scc1 {Ld}")
            k(f"v_lshlrev_b32 {v(T)}, 2, {v(vLane)}\ns_mov_b32 {s(t0)}, {WS_STAMP + 0x100000}\nbuffer_load_dword {v(T+1)}, {v(T)}, {s(srdP,4)}, {s(t0)} offen sc1\ns_waitcnt vmcnt(0)")
            for i, (src, ln) in enumerate(((vStamp, 0), (vStamp, 1), (vStamp, 8), (vStamp, 9))):
                k(f"v_readlane_b32 {s(t1)}, {v(src)}, {ln}\ns_nop 3\nv_writelane_b32 {v(T+1)}, {s(t1)}, {(2, 3, 5, 7)[i]}")
            k(f"s_mov_b32 {s(srdX)}, {s(sP+4)}\ns_mov_b32 {s(srdX+1)}, {s(sP+5)}\ns_mov_b32 {s(srdX+2)}, 256\ns_mov_b32 {s(srdX+3)}, 0x20000\nbuffer_store_dword {v(T+1)}, {v(T)}, {s(srdX,4)}, 0 offen")
            k.label(Ld)
    k.label(Lend)
    k("s_endpgm")

    k.label(Lev)
    def part_addr():
        k(f"s_lshl_b32 {s(t0)}, {s(sPair)}, 16\ns_lshl_b32 {s(t1)}, {s(sw)}, 14\ns_add_u32 {s(t0)}, {s(t0)}, {s(t1)}\ns_add_u32 {s(t0)}, {s(t0)}, {WS_PART}")
    def ev_store():
        ST.stamp(5)
        part_addr()
        k(f"s_mov_b32 {s(sPo)}, {s(t0)}\ns_nop 3")
        if NPS == 8:
            for i in range(32): k(f"v_cvt_pk_bf16_f32 {v(PART+i)}, {v(32+2*i)}, {v(33+2*i)}")
        else:
            for i in range(0, 64, 2): k(f"v_mov_b64 {v(PART+i,2)}, {v(32+i,2)}")
        for i in range(0, 64, 2): k(f"v_mov_b64 {v(32+i,2)}, 0")
        k("s_nop 1")
        ST.stamp(6)
        per = NPS // TR
        for n in range(TR): body([pstore(b) for b in range(n * per, (n + 1) * per)])
    def ev_wait(): ST.stamp(7); k("s_waitcnt vmcnt(0)"); ST.stamp(10)
    def ev_publish():
        L = k.newlab('np')
        k(f"s_cmp_lg_u32 {s(sw)}, 0\ns_cbranch_scc1 {L}")
        k(f"s_lshl_b32 {s(t0)}, {s(sPair)}, 7\ns_add_u32 {s(t0)}, {s(t0)}, {WS_FLAG3}\nv_mov_b32 {v(T)}, 1\ns_mov_b64 exec, 1")
        k(f"buffer_store_dword {v(T)}, off, {s(srdP,4)}, {s(t0)} sc1\ns_mov_b64 exec, -1")
        k.label(L)
    def flag_load(): k(f"s_lshl_b32 {s(t0)}, {s(sPair)}, 7\ns_add_u32 {s(t0)}, {s(t0)}, {WS_FLAG3}\nbuffer_load_dword {v(vFlag)}, off, {s(srdP,4)}, {s(t0)} sc1")
    def ev_consume():
        Ls = k.newlab('spin'); Lok = k.newlab('ok')
        ST.stamp(5)
        k(f"s_waitcnt vmcnt(0)\ns_mov_b32 s3, {1 << 20}")
        k.label(Ls)
        k(f"v_readfirstlane_b32 {s(t1)}, {v(vFlag)}\ns_nop 3\ns_cmp_lg_u32 {s(t1)}, 0\ns_cbranch_scc1 {Lok}\ns_sub_u32 s3, s3, 1\ns_cbranch_scc1 {Lok}\ns_sleep 8")
        flag_load()
        k(f"s_waitcnt vmcnt(0)\ns_branch {Ls}")
        k.label(Lok)
        ST.stamp(6)
        part_addr()
        for b in range(NPS):
            k(f"buffer_load_dwordx4 {v(PART+4*b,4)}, {v(vX)}, {s(srdP,4)}, {s(t0)} offen offset:{(b&3)*1024} sc1")
            if b & 3 == 3: k(f"s_add_u32 {s(t0)}, {s(t0)}, 4096")
    table = [(16 + i, EVC, f) for i, f in enumerate((flag_load, ev_consume))] + \
            [(i, EVP, f) for i, f in enumerate([ev_store, ev_wait, ev_publish])]
    for sid, EV, f in table:
        Ln = k.newlab('n')
        k(f"s_cmp_lg_u32 {s(sEvS)}, {sid}\ns_cbranch_scc1 {Ln}")
        f()
        i = sid & 15
        nxt = EV[i + 1] - EV[i] - 1 if i + 1 < len(EV) else 1000
        if f is ev_store: nxt -= TR
        k(f"s_mov_b32 {s(sEv)}, {nxt}\ns_mov_b32 {s(sEvS)}, {sid+1}\ns_branch {Lback}")
        k.label(Ln)
    k(f"s_mov_b32 {s(sEv)}, 1000\ns_branch {Lback}")

    k.label(Lload)
    k(f"s_lshl_b32 {s(sW4)}, {s(sw)}, 12")
    k(f"s_lshl_b32 {s(t0)}, {s(sMt)}, 13\ns_lshl_b32 {s(t1)}, {s(swn)}, 12\ns_add_u32 {s(t0)}, {s(t0)}, {s(t1)}\ns_lshl_b32 {s(t1)}, {s(swm)}, 17\ns_add_u32 {s(sXb)}, {s(t0)}, {s(t1)}")
    k(f"s_mul_i32 {s(t0)}, {s(sIsA)}, {NC*262144}\ns_add_u32 {s(sXo)}, {s(sXb)}, {s(t0)}\ns_add_u32 {s(sXo)}, {s(sXo)}, {WS_CTX}\ns_add_u32 {s(sXb)}, {s(sXb)}, {WS_OA}")
    k(f"s_mul_i32 {s(t0)}, {s(sIsA)}, {NC*64*2048}\ns_lshl_b32 {s(sDl)}, {s(sNt)}, 8\ns_add_u32 {s(sWo)}, {s(sDl)}, {s(t0)}")
    k(f"v_lshrrev_b32 {v(T)}, 4, {v(vLane)}\ns_lshl_b32 {s(t0)}, {s(sw)}, 4\nv_add_u32 {v(T+1)}, {s(t0)}, {v(T)}\nv_lshlrev_b32 {v(T+1)}, 11, {v(T+1)}")
    k(f"v_lshlrev_b32 {v(T)}, 1, {v(T)}\nv_and_b32 {v(T+2)}, 15, {v(vLane)}\nv_xor_b32 {v(T)}, {v(T)}, {v(T+2)}")
    for j in range(4):
        k(f"v_xor_b32 {v(T+2)}, {8*(j&1)}, {v(T)}\nv_lshl_add_u32 {v(vW+j)}, {v(T+2)}, 4, {v(T+1)}")
        if j: k(f"v_add_u32 {v(vW+j)}, {j*(8192-1024)}, {v(vW+j)}")
    k(f"s_mov_b32 {s(srdX+2)}, {WS_SIZE}\ns_mov_b32 {s(srdX+3)}, 0x20000\ns_mov_b32 {s(srdW+3)}, 0x20000\ns_mov_b32 {s(srdW+2)}, 8388608")
    k(f"s_mov_b32 {s(sWr)}, {s(sW4)}\ns_cmp_eq_u32 {s(sIsA)}, 1\ns_cselect_b32 {s(sEv)}, {NB}, 1000\ns_cselect_b32 {s(sEvS)}, {NP}, {NC}\ns_add_u32 {s(sSl)}, {s(sW4)}, {NS*SLOT}")
    k("s_waitcnt lgkmcnt(0)")
    k(f"s_mov_b32 {s(srdW)}, {s(sP)}\ns_mov_b32 {s(srdW+1)}, {s(sP+1)}\ns_mov_b32 {s(srdX)}, {s(sP+6)}\ns_mov_b32 {s(srdX+1)}, {s(sP+7)}")
    def stage():
        k(f"s_mov_b32 m0, {s(sWr)}\ns_nop 0")
        for j in range(4): k(f"buffer_load_dwordx4 {v(vX)}, {s(srdX,4)}, {s(sXo)} offen offset:{j*1024} lds")
        k(f"s_add_u32 m0, {s(sWr)}, 16384\ns_add_u32 {s(sXo)}, {s(sXo)}, 262144")
        for j in range(4): k(f"buffer_load_dwordx4 {v(vW + j)}, {s(srdW,4)}, {s(sWo)} offen offset:{j*1024} lds")
        k(f"s_add_u32 {s(sWo)}, {s(sWo)}, {64*2048}\ns_add_u32 {s(sWr)}, {s(sWr)}, {SLOT}\ns_cmp_ge_u32 {s(sWr)}, {s(sSl)}\ns_cselect_b32 {s(sWr)}, {s(sW4)}, {s(sWr)}")
    stage(); stage()
    k("s_waitcnt vmcnt(8)\ns_barrier")
    for _ in range(NS - 2): stage()
    k(f"s_mov_b32 {s(sCnt)}, {NS}")
    Ll = k.newlab('ll'); Lt = k.newlab('lt')
    k.label(Ll)
    k(f"s_waitcnt vmcnt({8*(NS-2)})\ns_barrier")
    k(f"s_cmp_eq_u32 {s(sCnt)}, {s(sEv)}\ns_cselect_b32 {s(sXo)}, {s(sXb)}, {s(sXo)}\ns_cselect_b32 {s(sWo)}, {s(sDl)}, {s(sWo)}")
    k(f"s_cselect_b32 {s(srdW)}, {s(sPa)}, {s(srdW)}\ns_cselect_b32 {s(srdW+1)}, {s(sPa+1)}, {s(srdW+1)}\ns_cselect_b32 {s(srdW+2)}, 2097152, {s(srdW+2)}")
    stage()
    k(f"s_add_u32 {s(sCnt)}, {s(sCnt)}, 1\ns_cmp_lt_u32 {s(sCnt)}, {s(sEvS)}\ns_cbranch_scc1 {Ll}")
    for i in range(NS - 1):
        k(f"s_waitcnt vmcnt({8*(NS-2-i)})\ns_barrier")
    k("s_endpgm")
    code, desc = kernel_wrap(name, k.text(), 224, 102, 224)
    return code, desc, f"; @launch kernel={name} grid=(256,1,1) block=(512,1,1) lds={LDS_BYTES}"
```

```python
from asmlib import *

SLOT = 32768
NS = 5
LDS_BYTES = NS * SLOT
NC = 40
NB = 64 - NC

def build(name="gemm3_kernel", stamps=False, abl=(), wsflag=False):
    k = K(name)
    S = Regs('s', 4, 102)
    sP = S.alloc('ptrs', 8, 4)
    sPa = S.alloc('awo', 2, 2)
    srdX = S.alloc('srdX', 4, 4); srdW = S.alloc('srdW', 4, 4); srdO = S.alloc('srdO', 4, 4); srdP = S.alloc('srdP', 4, 4); srdD = S.alloc('srdD', 4, 4)
    sw = S.alloc('w'); swm = S.alloc('wm'); swn = S.alloc('wn'); sIsA = S.alloc('isa')
    sMt = S.alloc('mt'); sNt = S.alloc('nt'); sPair = S.alloc('pair'); sXb = S.alloc('xb')
    sXo = S.alloc('xo'); sWo = S.alloc('wo'); sRd = S.alloc('rd'); sWr = S.alloc('wr'); sW4 = S.alloc('w4'); sDl = S.alloc('dl')
    sCnt = S.alloc('cnt'); sT = S.alloc('t', 6); sStamp = S.alloc('stamp', 2, 2); sSl = S.alloc('sl')
    sEv = S.alloc('ev'); sEvS = S.alloc('evs'); sEx = S.alloc('ex', 2, 2)
    t0, t1, t2, t3 = sT, sT + 1, sT + 2, sT + 3
    V = Regs('v', 1, 32)
    vLane = V.alloc('lane'); vx = V.alloc('vx'); vw = V.alloc('vw', 4); vX = V.alloc('vX'); vW = V.alloc('vW', 4)
    vSt = V.alloc('st'); vStamp = V.alloc('stamp'); vFlag = V.alloc('flag'); vZero = V.alloc('zero'); vT = V.alloc('t', 8, 4)
    ST = Stamper(k, stamps, vStamp, sStamp)
    T = vT
    def acc(nb, mb): return 32 + (((nb >> 1) * 4 + mb) * 2 + (nb & 1)) * 4
    def fX(st, mb): return 96 + st * 32 + mb * 4
    def fW(st, nb): return 96 + st * 32 + 16 + nb * 4
    PART = 160

    Lend = k.newlab('end')
    k(f"s_cmp_ge_u32 s2, 256\ns_cbranch_scc1 {Lend}")
    k(f"s_load_dwordx8 {s(sP,8)}, s[0:1], {KARG['B_w_o']}\ns_load_dwordx2 {s(sPa,2)}, s[0:1], {KARG['A_wo']}")
    if stamps: k("s_waitcnt lgkmcnt(0)")
    ST.stamp(0); ST.stamp(1, real=True)
    k(f"v_and_b32 {v(vLane)}, 63, v0\nv_lshrrev_b32 {v(T)}, 6, v0\ns_nop 0\nv_readfirstlane_b32 {s(sw)}, {v(T)}")
    if 'nocpf' not in abl:
        Lc = k.newlab('ncp')
        k(f"s_cmp_lt_u32 s2, 248\ns_cbranch_scc1 {Lc}")
        code_prefetch(k, srdO, name, name + "_end", sw, vLane, T + 6, T + 7, t0)
        k.label(Lc)
    k(f"s_bfe_u32 {s(sIsA)}, s2, 0x10002\ns_xor_b32 {s(sIsA)}, {s(sIsA)}, 1")
    k(f"s_bfe_u32 {s(t0)}, s2, 0x10001\ns_lshl_b32 {s(t0)}, {s(t0)}, 3\ns_bfe_u32 {s(t1)}, s2, 0x30003\ns_add_u32 {s(sMt)}, {s(t0)}, {s(t1)}")
    k(f"s_and_b32 {s(t0)}, s2, 1\ns_lshl_b32 {s(t0)}, {s(t0)}, 2\ns_lshr_b32 {s(t1)}, s2, 6\ns_add_u32 {s(sNt)}, {s(t0)}, {s(t1)}")
    if 'm4n8' in abl:
        k(f"s_and_b32 {s(t0)}, s2, 3\ns_lshl_b32 {s(t0)}, {s(t0)}, 2\ns_bfe_u32 {s(t1)}, s2, 0x20003\ns_add_u32 {s(sMt)}, {s(t0)}, {s(t1)}\ns_lshr_b32 {s(sNt)}, s2, 5")
    k(f"s_lshl_b32 {s(sPair)}, {s(sMt)}, 3\ns_add_u32 {s(sPair)}, {s(sPair)}, {s(sNt)}")
    k(f"s_lshr_b32 {s(swm)}, {s(sw)}, 1\ns_and_b32 {s(swn)}, {s(sw)}, 1\ns_lshl_b32 {s(sW4)}, {s(sw)}, 12")
    k(f"v_lshlrev_b32 {v(vX)}, 4, {v(vLane)}")
    k(f"s_lshl_b32 {s(t0)}, {s(sMt)}, 13\ns_lshl_b32 {s(t1)}, {s(swn)}, 12\ns_add_u32 {s(t0)}, {s(t0)}, {s(t1)}\ns_lshl_b32 {s(t1)}, {s(swm)}, 17\ns_add_u32 {s(sXb)}, {s(t0)}, {s(t1)}")
    k(f"s_mul_i32 {s(t0)}, {s(sIsA)}, {NC*262144}\ns_add_u32 {s(sXo)}, {s(sXb)}, {s(t0)}\ns_add_u32 {s(sXo)}, {s(sXo)}, {WS_CTX}")
    k(f"s_mul_i32 {s(t0)}, {s(sIsA)}, {NC*64*2048}\ns_lshl_b32 {s(sWo)}, {s(sNt)}, 8\ns_add_u32 {s(sWo)}, {s(sWo)}, {s(t0)}")
    k(f"v_lshrrev_b32 {v(T)}, 4, {v(vLane)}\ns_lshl_b32 {s(t0)}, {s(sw)}, 4\nv_add_u32 {v(T+1)}, {s(t0)}, {v(T)}\nv_lshlrev_b32 {v(T+1)}, 11, {v(T+1)}")
    k(f"v_lshlrev_b32 {v(T)}, 1, {v(T)}\nv_and_b32 {v(T+2)}, 15, {v(vLane)}\nv_xor_b32 {v(T)}, {v(T)}, {v(T+2)}")
    for j in range(4):
        k(f"v_xor_b32 {v(T+2)}, {8*(j&1)}, {v(T)}\nv_lshl_add_u32 {v(vW+j)}, {v(T+2)}, 4, {v(T+1)}")
        if j: k(f"v_add_u32 {v(vW+j)}, {j*(8192-1024)}, {v(vW+j)}")
    k(f"s_mov_b32 {s(srdX+2)}, {WS_SIZE}\ns_mov_b32 {s(srdX+3)}, 0x20000\ns_mov_b32 {s(srdW+3)}, 0x20000\ns_mov_b32 {s(srdW+2)}, 8388608")
    k(f"s_mov_b32 {s(sWr)}, {s(sW4)}")
    k("s_waitcnt lgkmcnt(0)")
    k(f"s_mov_b32 {s(srdW)}, {s(sP)}\ns_mov_b32 {s(srdW+1)}, {s(sP+1)}\ns_mov_b32 {s(srdX)}, {s(sP+6)}\ns_mov_b32 {s(srdX+1)}, {s(sP+7)}")
    PFD = int([x[3:] for x in abl if x.startswith('pfd')][0]) if any(x.startswith('pfd') for x in abl) else 0
    Lhelp = k.newlab('help')
    if PFD: k(f"s_cmp_eq_u32 {s(sw)}, 4\ns_cbranch_scc1 {Lhelp}")
    def dma(j):
        if j < 4:
            o = f"buffer_load_dwordx4 {v(vX)}, {s(srdX,4)}, {s(sXo)} offen offset:{j*1024}{' nt' if 'xnt' in abl else ''} lds"
            if j == 0: o = f"s_mov_b32 m0, {s(sWr)}\ns_nop 0\n" + o
            return o
        j -= 4
        o = f"buffer_load_dwordx4 {v(vW + j)}, {s(srdW,4)}, {s(sWo)} offen offset:{j*1024} lds"
        if j == 0: o = f"s_add_u32 m0, {s(sWr)}, 16384\ns_add_u32 {s(sXo)}, {s(sXo)}, {0 if 'xfix' in abl else 262144}\n" + o
        if j == 3: o += f"\ns_add_u32 {s(sWo)}, {s(sWo)}, {0 if 'wfix' in abl else 64*2048}"
        return o
    for st in range(NS - 1):
        for j in range(8): k(dma(j))
        k(f"s_add_u32 {s(sWr)}, {s(sWr)}, {SLOT}")
        if st == 0:
            k(f"s_lshl_b32 {s(t0)}, {s(swm)}, 12\nv_add_u32 {v(vx)}, {s(t0)}, {v(vX)}")
            k(f"v_lshrrev_b32 {v(T)}, 2, {v(vLane)}\nv_lshlrev_b32 {v(T)}, 8, {v(T)}\nv_and_b32 {v(T+1)}, 3, {v(vLane)}\nv_lshl_add_u32 {v(T)}, {v(T+1)}, 3, {v(T)}\nv_add_u32 {v(T)}, 16384, {v(T)}")
            k(f"v_bfe_u32 {v(T+1)}, {v(vLane)}, 2, 3\ns_lshl_b32 {s(t0)}, {s(swn)}, 2\nv_xor_b32 {v(T+1)}, {s(t0)}, {v(T+1)}")
            for nb in range(4):
                k(f"v_xor_b32 {v(T+2)}, {nb}, {v(T+1)}\nv_lshl_add_u32 {v(vw+nb)}, {v(T+2)}, 5, {v(T)}")
            k(f"s_mov_b32 {s(srdO)}, {s(sP+2)}\ns_mov_b32 {s(srdO+1)}, {s(sP+3)}\ns_mov_b32 {s(srdO+3)}, 0x20000\ns_mov_b32 {s(srdO+2)}, {2048*2048*2}")
            k(f"s_mov_b32 {s(srdP)}, {s(sP+6)}\ns_mov_b32 {s(srdP+1)}, {s(sP+7)}\ns_mov_b32 {s(srdP+3)}, 0x20000\ns_mov_b32 {s(srdP+2)}, {WS_SIZE}")
            k(f"s_mov_b32 {s(srdD)}, {s(sP+4)}\ns_mov_b32 {s(srdD+1)}, {s(sP+5)}\ns_mov_b32 {s(srdD+3)}, 0x20000\ns_mov_b32 {s(srdD+2)}, 256")
            k(f"s_mov_b32 {s(sRd)}, 0\ns_mov_b32 {s(sSl)}, {SLOT}\ns_mov_b32 {s(sCnt)}, {NC-1}\nv_mov_b32 {v(vZero)}, 0")
            for i in range(64): k(f"v_mov_b32 {v(32+i)}, 0")
    for j in range(4): k(dma(j))
    EVP = [NB - NS, NB - NS + 1, NB, NB + 5, NC - NS]
    EVC = [NC - 7, NC - NS, NC - NS + 1]
    k(f"s_cmp_eq_u32 {s(sIsA)}, 1\ns_cselect_b32 {s(sEv)}, {EVP[0]}, {EVC[0]}\ns_cselect_b32 {s(sEvS)}, 0, 8")
    ST.stamp(2)
    k(f"s_waitcnt vmcnt({8*(NS-2)+4})\ns_barrier")
    ST.stamp(3)
    def reads(st, kk):
        o = []
        def rx(mb): o.append((('x', st, mb), f"ds_read_b128 {v(fX(st, mb), 4)}, {v(vx)} offset:{mb * 1024 + kk * 8192}"))
        def rw(nb):
            for t in range(2):
                o.append((('w', st, nb), f"ds_read_b64_tr_b16 {v(fW(st, nb) + 2 * t, 2)}, {v(vw + nb)} offset:{(32 * kk + 16 * t) * 256}"))
        rx(0); rw(0); rx(1); rx(2); rx(3); rw(1); rw(2); rw(3)
        return o
    for tag, ins in reads(0, 0): k(ins)
    Lloop = k.newlab('loop'); Lev = k.newlab('ev'); Lback = k.newlab('back')
    k.label(Lloop)
    k(f"s_sub_u32 {s(sEv)}, {s(sEv)}, 1\ns_cbranch_scc1 {Lev}")
    k.label(Lback)
    tr = LgkmTracker([tag for tag, _ in reads(0, 0)])
    for ss in range(2):
        st = ss
        nxt = reads(st ^ 1, ss ^ 1)
        g0 = 1 if ss == 1 else 0
        rd_at = {g0 + i: x for i, x in enumerate(nxt)}
        fill = {g: [] for g in range(16)}
        if ss == 0:
            for j, g in zip((4, 5, 6, 7), (1, 4, 7, 10)): fill[g].append(dma(j))
            fill[12].append(f"s_add_u32 {s(sWr)}, {s(sRd)}, {s(sW4)}\ns_add_u32 {s(sRd)}, {s(sRd)}, {SLOT}")
            fill[13].append(f"s_cmp_ge_u32 {s(sRd)}, {NS*SLOT}\ns_cselect_b32 {s(sDl)}, {-(NS-1)*SLOT & 0xffffffff}, {s(sSl)}")
            fill[14].append(f"s_cselect_b32 {s(sRd)}, 0, {s(sRd)}\nv_add_u32 {v(vx)}, {s(sDl)}, {v(vx)}\nv_add_u32 {v(vw)}, {s(sDl)}, {v(vw)}")
            fill[15].append(f"v_add_u32 {v(vw+1)}, {s(sDl)}, {v(vw+1)}\nv_add_u32 {v(vw+2)}, {s(sDl)}, {v(vw+2)}")
        else:
            fill[0].append(f"v_add_u32 {v(vw+3)}, {s(sDl)}, {v(vw+3)}")
            for j, g in zip((0, 1, 2, 3), (3, 6, 9, 13)): fill[g].append(dma(j))
            fill[15].append(f"s_sub_u32 {s(sCnt)}, {s(sCnt)}, 1")
        for i in range(16):
            nb, mb = i // 4, i % 4
            if ss == 1 and i == 0:
                tr.q = []
                k(f"s_waitcnt vmcnt({8*(NS-2)}) lgkmcnt(0)")
            w = tr.need({('x', st, mb), ('w', st, nb)})
            if w: k(w)
            d = v(acc(nb, mb), 4)
            k(f"v_mfma_f32_16x16x32_bf16 {d}, {v(fW(st, nb), 4)}, {v(fX(st, mb), 4)}, {d}")
            if ss == 1 and i == 0: k("s_barrier")
            if i in rd_at:
                tag, ins = rd_at[i]; k(ins); tr.issue(tag)
            for t in fill[i]: k(t)
    k(f"s_cbranch_scc0 {Lloop}")
    ST.stamp(4)
    k(f"v_and_b32 {v(T)}, 15, {v(vLane)}\nv_lshlrev_b32 {v(T)}, 12, {v(T)}\nv_lshlrev_b32 {v(T)}, {s(sIsA)}, {v(T)}")
    k(f"v_bfe_u32 {v(T+1)}, {v(vLane)}, 4, 1\nv_lshl_add_u32 {v(T)}, {v(T+1)}, 5, {v(T)}\nv_lshrrev_b32 {v(T+1)}, 5, {v(vLane)}\nv_lshl_add_u32 {v(vSt)}, {v(T+1)}, 4, {v(T)}")
    k(f"s_lshl_b32 {s(t0)}, {s(sMt)}, 3\ns_lshl_b32 {s(t1)}, {s(swm)}, 2\ns_add_u32 {s(t0)}, {s(t0)}, {s(t1)}")
    k(f"s_lshl_b32 {s(t1)}, {s(t0)}, 16\ns_add_u32 {s(t1)}, {s(t1)}, 2048")
    k(f"s_and_b32 {s(t2)}, {s(t0)}, 63\ns_lshl_b32 {s(t2)}, {s(t2)}, 17\ns_lshr_b32 {s(t3)}, {s(t0)}, 6\ns_lshl_b32 {s(t3)}, {s(t3)}, 12\ns_add_u32 {s(t2)}, {s(t2)}, {s(t3)}")
    k(f"s_cmp_eq_u32 {s(sIsA)}, 1\ns_cselect_b32 {s(t0)}, {s(t2)}, {s(t1)}\ns_lshl_b32 {s(t1)}, 0x10000, {s(sIsA)}")
    k(f"s_lshl_b32 {s(t2)}, {s(sNt)}, 8\ns_lshl_b32 {s(t3)}, {s(swn)}, 7\ns_add_u32 {s(t0)}, {s(t0)}, {s(t2)}\ns_add_u32 {s(t0)}, {s(t0)}, {s(t3)}")
    Lna = k.newlab('noadd')
    k(f"s_cmp_eq_u32 {s(sIsA)}, 1\ns_cbranch_scc1 {Lna}\ns_waitcnt vmcnt(0)")
    for i in range(64): k(f"v_add_f32 {v(32+i)}, {v(32+i)}, {v(PART+i)}")
    k.label(Lna)
    for mb in range(4):
        for e in range(2):
            b = acc(2 * e, mb)
            for i in range(4): k(f"v_cvt_pk_bf16_f32 {v(b+i)}, {v(b+2*i)}, {v(b+2*i+1)}")
        k("s_nop 1")
        for e in range(2):
            b = acc(2 * e, mb)
            k(f"v_permlane16_swap_b32 {v(b)}, {v(b+2)}\nv_permlane16_swap_b32 {v(b+1)}, {v(b+3)}")
        for e in range(2):
            b = acc(2 * e, mb)
            k(f"buffer_store_dwordx4 {v(b,4)}, {v(vSt)}, {s(srdO,4)}, {s(t0)} offen offset:{64*e}{' sc1' if 'osc1' in abl else ''}")
        k(f"s_add_u32 {s(t0)}, {s(t0)}, {s(t1)}")
    if stamps:
        k('s_waitcnt vmcnt(0)')
        ST.stamp(8); ST.stamp(9, real=True)
        ST.flush(srdP, sw, vT, vLane, base=0x200000)
    k.label(Lend)
    k("s_endpgm")

    if PFD:
        k.label(Lhelp)
        k(f"v_lshlrev_b32 {v(T)}, 7, {v(vLane)}\ns_lshr_b32 {s(t0)}, s2, 6\ns_lshl_b32 {s(t0)}, {s(t0)}, 17\ns_lshl_b32 {s(t1)}, {s(sMt)}, 13\ns_add_u32 {s(t0)}, {s(t0)}, {s(t1)}")
        k(f"s_mul_i32 {s(t1)}, {s(sIsA)}, {NC*262144}\ns_add_u32 {s(sXo)}, {s(t0)}, {s(t1)}\ns_add_u32 {s(sXo)}, {s(sXo)}, {WS_CTX}\ns_add_u32 {s(sXb)}, {s(t0)}, {WS_OA}")
        k(f"s_cmp_eq_u32 {s(sIsA)}, 1\ns_cselect_b32 {s(t3)}, {NB//2}, 1000")
        first = 2
        k(f"s_add_u32 {s(sXo)}, {s(sXo)}, {first*524288}")
        for p_ in range(first, PFD // 2):
            k(f"buffer_load_dword {v(T+1)}, {v(T)}, {s(srdX,4)}, {s(sXo)} offen\ns_add_u32 {s(sXo)}, {s(sXo)}, 524288")
        k(f"s_mov_b32 {s(sCnt)}, {PFD//2}\ns_barrier")
        Lh = k.newlab('hl')
        k.label(Lh)
        k(f"s_cmp_eq_u32 {s(sCnt)}, {s(t3)}\ns_cselect_b32 {s(sXo)}, {s(sXb)}, {s(sXo)}")
        k(f"buffer_load_dword {v(T+1)}, {v(T)}, {s(srdX,4)}, {s(sXo)} offen\ns_add_u32 {s(sXo)}, {s(sXo)}, 524288\ns_barrier\ns_barrier")
        k(f"s_add_u32 {s(sCnt)}, {s(sCnt)}, 1\ns_cmp_lt_u32 {s(sCnt)}, {NC//2}\ns_cbranch_scc1 {Lh}\ns_endpgm")
    k.label(Lev)
    def part_addr():
        k(f"s_lshl_b32 {s(t0)}, {s(sPair)}, 16\ns_lshl_b32 {s(t1)}, {s(sw)}, 14\ns_add_u32 {s(t0)}, {s(t0)}, {s(t1)}\ns_add_u32 {s(t0)}, {s(t0)}, {WS_PART}")
    def ev_xswitch(): k(f"s_add_u32 {s(sXo)}, {s(sXb)}, {WS_OA - 262144}")
    def ev_wswitch(): k(f"s_mov_b32 {s(srdW)}, {s(sPa)}\ns_mov_b32 {s(srdW+1)}, {s(sPa+1)}\ns_mov_b32 {s(srdW+2)}, 2097152\ns_lshl_b32 {s(sWo)}, {s(sNt)}, 8")
    def ev_store():
        part_addr()
        k("s_nop 7")
        for b in range(16):
            k(f"buffer_store_dwordx4 {v(32+4*b,4)}, {v(vX)}, {s(srdP,4)}, {s(t0)} offen offset:{(b&3)*1024} sc1")
            if b & 3 == 3: k(f"s_add_u32 {s(t0)}, {s(t0)}, 4096")
        k("s_nop 1")
        for i in range(64): k(f"v_mov_b32 {v(32+i)}, 0")
        k("s_nop 1")
    def ev_publish():
        L = k.newlab('np')
        k(f"s_cmp_lg_u32 {s(sw)}, 0\ns_cbranch_scc1 {L}")
        if wsflag:
            k(f"s_lshl_b32 {s(t0)}, {s(sPair)}, 7\ns_add_u32 {s(t0)}, {s(t0)}, {WS_FLAG3}\nv_mov_b32 {v(T)}, 1\ns_mov_b64 exec, 1")
            k(f"buffer_store_dword {v(T)}, off, {s(srdP,4)}, {s(t0)} sc1\ns_mov_b64 exec, -1")
        else:
            k(f"s_lshl_b32 {s(t0)}, {s(sPair)}, 1\nv_mov_b32 {v(T)}, 1\ns_mov_b64 {s(sEx,2)}, exec\ns_mov_b64 exec, 1")
            k(f"buffer_store_short {v(T)}, {v(vZero)}, {s(srdD,4)}, {s(t0)} offen sc1\ns_mov_b64 exec, {s(sEx,2)}")
        k.label(L)
    def ev_xstop(): k(f"s_mov_b32 {s(srdX+2)}, 0")
    def flag_load():
        if wsflag: k(f"s_lshl_b32 {s(t0)}, {s(sPair)}, 7\ns_add_u32 {s(t0)}, {s(t0)}, {WS_FLAG3}\nbuffer_load_dword {v(vFlag)}, off, {s(srdP,4)}, {s(t0)} sc1")
        else: k(f"s_lshl_b32 {s(t0)}, {s(sPair)}, 1\nbuffer_load_ushort {v(vFlag)}, {v(vZero)}, {s(srdD,4)}, {s(t0)} offen sc1")
    def ev_consume():
        k(f"s_mov_b32 {s(srdW+2)}, 0")
        Ls = k.newlab('spin'); Lok = k.newlab('ok')
        k(f"s_waitcnt vmcnt(16)\ns_mov_b32 s3, {1 << 20}")
        k.label(Ls)
        k(f"v_readfirstlane_b32 {s(t1)}, {v(vFlag)}\ns_nop 3\ns_cmp_lg_u32 {s(t1)}, 0\ns_cbranch_scc1 {Lok}\ns_sub_u32 s3, s3, 1\ns_cbranch_scc1 {Lok}\ns_sleep 8")
        flag_load()
        k(f"s_waitcnt vmcnt(0)\ns_branch {Ls}")
        k.label(Lok)
        part_addr()
        for b in range(16):
            k(f"buffer_load_dwordx4 {v(PART+4*b,4)}, {v(vX)}, {s(srdP,4)}, {s(t0)} offen offset:{(b&3)*1024} sc1")
            if b & 3 == 3: k(f"s_add_u32 {s(t0)}, {s(t0)}, 4096")
    table = [(i, EVP, f) for i, f in enumerate((ev_xswitch, ev_wswitch, ev_store, ev_publish, ev_xstop))] + \
            [(8 + i, EVC, f) for i, f in enumerate((flag_load, ev_xstop, ev_consume))]
    for sid, EV, f in table:
        Ln = k.newlab('n')
        k(f"s_cmp_lg_u32 {s(sEvS)}, {sid}\ns_cbranch_scc1 {Ln}")
        f()
        i = sid & 7
        nxt = EV[i + 1] - EV[i] - 1 if i + 1 < len(EV) else 1000
        k(f"s_mov_b32 {s(sEv)}, {nxt}\ns_mov_b32 {s(sEvS)}, {sid+1}\ns_branch {Lback}")
        k.label(Ln)
    k(f"s_mov_b32 {s(sEv)}, 1000\ns_branch {Lback}")
    code, desc = kernel_wrap(name, k.text(), 224, 102, 224)
    return code, desc, f"; @launch kernel={name} grid=(256,1,1) block=({320 if PFD else 256},1,1) lds={LDS_BYTES}"
```

```python
from asmlib import *
import math

XS = 32768
WBASE = 3 * XS
LDS_BYTES = 5 * XS
C_B = (128 ** -0.5) * math.log2(math.e)
C_A = (32 ** -0.5) * math.log2(math.e)
STG = 16384
SLOT = 32768
THR = float(2 ** 20)
CAP = 8
RESV = 4
U_PUB, U_POLL, U_CHK, U_MID, U_CP = 8, 20, 24, 16, 28
import os
ITEMS = {'7': [(12, 4), (9, 8), (11, 5), (10, 6), (15, 1), (14, 2), (13, 3), (16, 7)], '5': [(12, 4), (9, 8), (11, 6), (10, 7), (15, 1), (14, 2), (13, 3), (16, 5)],
         '6': [(12, 4), (9, 8), (11, 5), (10, 7), (15, 1), (14, 2), (13, 3), (16, 6)],
         '5b': [(9, 8), (11, 6), (12, 4), (10, 7), (15, 1), (14, 2), (13, 3), (16, 5)],
         '3': [(9, 8), (11, 6), (10, 7), (14, 2), (15, 1), (13, 4), (12, 5), (16, 3)],
         'x1': [(10, 6), (9, 8), (12, 3), (15, 1), (14, 2), (11, 7), (13, 4), (16, 5)],
         'x3': [(9, 8), (12, 4), (10, 6), (14, 2), (13, 3), (11, 7), (15, 1), (16, 5)],
         'x4': [(10, 6), (9, 8), (11, 5), (12, 4), (15, 1), (14, 2), (13, 3), (16, 7)],
         'x5': [(11, 5), (9, 8), (12, 3), (10, 7), (15, 1), (14, 2), (13, 4), (16, 6)],
         '1': [(9, 8), (11, 6), (10, 7), (12, 5), (15, 2), (14, 3), (13, 4), (16, 1)],
         '2': [(9, 8), (11, 6), (10, 7), (12, 5), (15, 1), (14, 3), (13, 4), (16, 2)],
         'p9': [(10, 7), (12, 5), (11, 6), (13, 4), (16, 1), (15, 2), (14, 3), (9, 8)],
         'y2': [(12, 5), (13, 4), (15, 1), (14, 3), (11, 6), (10, 7), (9, 8), (16, 2)],
         'y3': [(14, 2), (12, 5), (15, 1), (13, 4), (11, 6), (10, 7), (9, 8), (16, 3)],
         'y4': [(13, 3), (12, 5), (14, 2), (15, 1), (11, 6), (10, 7), (9, 8), (16, 4)],
         'z6': [(11, 5), (12, 4), (9, 8), (10, 7), (15, 1), (14, 2), (13, 3), (16, 6)],
         'z5': [(9, 8), (10, 7), (12, 4), (13, 3), (15, 1), (14, 2), (11, 6), (16, 5)],
         'z7': [(10, 7), (9, 8), (13, 3), (11, 6), (15, 1), (14, 2), (12, 5), (16, 4)],
         'z8': [(9, 7), (11, 6), (13, 3), (14, 2), (15, 1), (10, 8), (12, 5), (16, 4)],
         '4': [(9, 8), (11, 6), (10, 7), (13, 3), (15, 1), (14, 2), (12, 5), (16, 4)]}[os.environ.get('PITEM', 'z7')]
TABA = sum((x[0] - 1) << (4 * i) for i, x in enumerate(ITEMS)); TABB = sum((x[1] - 1) << (4 * i) for i, x in enumerate(ITEMS))
SPIN = 1 << 18

NS3 = 5; NC = int(os.environ.get('NC', '40')); NB = 64 - NC; NP = NB + 16; TR = 4
F_CTX, F_OA, F_PAIR = 0x2000, 0x3000, 0x4000

def build(name="mega_kernel", stamps=False, abl=(), last_kernel=None):
    last_kernel = name
    k = K('m')
    AL = int(os.environ.get('ALIGN', '3'))
    def align():
        if AL: k.lines.append(f'.p2align {AL}')
    sDb = 4; sWS = 6; srdO = 8; srdD = 12; sw = 16; sPend = 17; sStamp = 18; sRe = 20; sEx = 22
    vLane = 1; vSt = 2; vL16 = 2; vStamp = 3; vFlag = 4; vFa = 0; sTok = sDb
    ST = Stamper(k, stamps, vStamp, sStamp)
    TOUCH = 'notouch' not in abl
    L2D = int(os.environ.get('L2D', '0'))
    wsc = ' sc0 sc1' if 'sc01' in abl else ' sc1'
    sfx = ' sc1'; ksc = wsc; tsc = ' sc1' if 'tsc' in abl else ''
    S = Regs('s', 24, 90)
    sK = S.alloc('karg', 16, 4)
    srdX = S.alloc('srdX', 4, 4); srdW = S.alloc('srdW', 4, 4)
    sXoff = S.alloc('sXoff', 4); sWoff = S.alloc('sWoff', 4); sWstep = S.alloc('sWstep')
    swm = S.alloc('wm'); swn = S.alloc('wn'); sXSc = S.alloc('xsc'); sWx = S.alloc('wx')
    sXw = S.alloc('xw'); sWw = S.alloc('ww'); sXd = S.alloc('xdelta'); sXs = S.alloc('xrslot')
    sCnt = S.alloc('cnt'); sFirst = S.alloc('first'); sEvT = S.alloc('evt'); sIdx = S.alloc('idx'); sMt = S.alloc('mt'); sIsP = S.alloc('isp')
    LF = ['xlo','xhi','xsize','wlo','whi','wsize','ldx','ldw','xoff0','woff0','par']
    CF = ['nk','swp','scale','obase','Si','Sj','flag']
    P1 = {f: S.alloc('p1' + f) for f in LF + CF}
    top = Regs('s', 90, 102)
    sT = top.alloc('t', 4, 2); sHasNext = top.alloc('hasnext')
    CP = {f: top.alloc('c' + f) for f in CF}
    t0, t1, t2, t3 = sT, sT + 1, sT + 2, sT + 3
    def ptr(nm): return sK + KARG[nm] // 4
    V = Regs('v', 6, 32)
    vx = V.alloc('vx', 2); vw = V.alloc('vw', 8); vX = V.alloc('vX', 2); vW = V.alloc('vW', 4); vDum = V.alloc('dum')
    vT = V.alloc('t', 8, 4)
    assert vT == 24
    T = vT
    def acc(i, j):
        n = ((i >> 1) * 8 + j) * 2 + (i & 1)
        return ('v', 32 + 4 * n) if n < 56 else ('a', 224 + 4 * (n - 56))
    def fragX(kk, mb): return mb * 8 + kk * 4
    def fragW(kk, nb): return 64 + nb * 8 + kk * 4
    STASH = 128
    def Qreg(qt, e): return 128 + qt * 16 + e * 4

    Lend = k.newlab('end')
    k(f"s_cmp_ge_u32 s2, 256\ns_cbranch_scc1 {Lend}")
    k(f"s_load_dwordx16 {s(sK,16)}, s[0:1], 0\ns_load_dwordx4 {s(sDb,4)}, s[0:1], {KARG['dbg']}")
    if stamps: k("s_waitcnt lgkmcnt(0)")
    ST.stamp(0); ST.stamp(1, real=True)
    k(f"v_and_b32 {v(vLane)}, 63, v0\nv_lshrrev_b32 {v(vT)}, 6, v0\ns_nop 0\nv_readfirstlane_b32 {s(sw)}, {v(vT)}")
    k(f"s_lshr_b32 {s(sIdx)}, s2, 3")
    k(f"s_lshr_b32 {s(swm)}, {s(sw)}, 1\ns_and_b32 {s(swn)}, {s(sw)}, 1")
    k(f"s_mov_b32 {s(srdX+3)}, 0x20000\ns_mov_b32 {s(srdW+3)}, 0x20000")
    if 'nocpf' not in abl:
        Lc = k.newlab('ncp')
        k(f"s_cmp_lt_u32 {s(sIdx)}, 28\ns_cbranch_scc1 {Lc}\ns_sub_u32 {s(t1)}, {s(sIdx)}, 28\ns_lshl_b32 {s(t1)}, {s(t1)}, 2\ns_add_u32 {s(t1)}, {s(t1)}, {s(sw)}")
        code_prefetch(k, srdO, name, last_kernel + "_end", t1, vLane, T, vDum, t0)
        k.label(Lc)
    k(f"s_lshl_b32 {s(sXw)}, {s(sw)}, 13\ns_add_u32 {s(sWw)}, {s(sXw)}, {WBASE}")
    def late_setup():
        k.c("fragment read addresses")
        k(f"v_and_b32 {v(T)}, 15, {v(vLane)}\nv_lshrrev_b32 {v(T+1)}, 4, {v(vLane)}")
        k(f"v_bfe_u32 {v(T+2)}, {v(vLane)}, 1, 3\nv_xor_b32 {v(T+2)}, {v(T+2)}, {v(T+1)}")
        k(f"s_lshl_b32 {s(t0)}, {s(swm)}, 14\nv_lshlrev_b32 {v(T+3)}, 7, {v(T)}\nv_add_u32 {v(T+3)}, {s(t0)}, {v(T+3)}")
        for kk in range(2):
            k(f"v_xor_b32 {v(T+4)}, {4*kk}, {v(T+2)}\nv_lshl_add_u32 {v(vx+kk)}, {v(T+4)}, 4, {v(T+3)}")
        k(f"v_bfe_u32 {v(T+2)}, {v(vLane)}, 2, 2")
        k(f"v_lshl_add_u32 {v(T+3)}, {v(T+1)}, 3, {v(T+2)}\nv_lshlrev_b32 {v(T+3)}, 9, {v(T+3)}")
        k(f"v_and_b32 {v(T+4)}, 3, {v(vLane)}\nv_lshlrev_b32 {v(T+4)}, 3, {v(T+4)}\nv_add_u32 {v(T+3)}, {v(T+3)}, {v(T+4)}")
        k(f"s_lshl_b32 {s(t0)}, {s(swn)}, 8\ns_add_u32 {s(t0)}, {s(t0)}, {WBASE}\nv_add_u32 {v(T+3)}, {s(t0)}, {v(T+3)}")
        k(f"v_bfe_u32 {v(T+2)}, {v(vLane)}, 2, 3")
        for nb in range(8):
            k(f"v_xor_b32 {v(T+4)}, {nb}, {v(T+2)}\nv_lshl_add_u32 {v(vw+nb)}, {v(T+4)}, 5, {v(T+3)}")
        k(f"v_lshlrev_b32 {v(vSt)}, 4, {v(vLane)}")
        k(f"s_mov_b32 {s(sXs)}, 0")
        k(f"s_mov_b32 {s(sXSc)}, {XS}\ns_mov_b32 {s(sWx)}, {WBASE ^ (WBASE + XS)}")
    def q_params(p, ptrs=True):
        k(f"s_mov_b32 {s(p['wsize'])}, 8388608\ns_mov_b32 {s(p['ldw'])}, 8192\ns_mov_b32 {s(p['par'])}, 0")
        k(f"s_mov_b32 {s(p['xsize'])}, 4194304\ns_mov_b32 {s(p['ldx'])}, 2048\ns_mov_b32 {s(p['nk'])}, 16")
        k(f"s_lshl_b32 {s(p['woff0'])}, {s(t0)}, 9\ns_lshl_b32 {s(p['xoff0'])}, {s(sMt)}, 19\ns_lshl_b32 {s(p['flag'])}, {s(t0)}, 4\ns_add_u32 {s(p['flag'])}, {s(p['flag'])}, {s(sMt)}\ns_lshl_b32 {s(p['flag'])}, {s(p['flag'])}, 3")
        k(f"s_mov_b32 {s(p['swp'])}, 0\ns_mov_b32 {s(p['scale'])}, {f32bits(C_B)}")
        k(f"s_lshl_b32 {s(t1)}, {s(t0)}, 1\ns_add_u32 {s(t1)}, {s(t1)}, {s(swn)}\ns_lshl_b32 {s(t1)}, {s(t1)}, 19")
        k(f"s_lshl_b32 {s(t2)}, {s(sMt)}, 1\ns_add_u32 {s(t2)}, {s(t2)}, {s(swm)}\ns_lshl_b32 {s(t2)}, {s(t2)}, 15")
        k(f"s_add_u32 {s(p['obase'])}, {s(t1)}, {s(t2)}\ns_add_u32 {s(p['obase'])}, {s(p['obase'])}, {WS_QB}")
        k(f"s_mov_b32 {s(p['Si'])}, 1024\ns_mov_b32 {s(p['Sj'])}, 4096")
        if ptrs: k(f"s_mov_b32 {s(p['xlo'])}, {s(ptr('B_x'))}\ns_mov_b32 {s(p['xhi'])}, {s(ptr('B_x')+1)}\ns_mov_b32 {s(p['wlo'])}, {s(ptr('B_w_q'))}\ns_mov_b32 {s(p['whi'])}, {s(ptr('B_w_q')+1)}")
    def a_params(p):
        k(f"s_mov_b32 {s(p['wsize'])}, 6291456\ns_mov_b32 {s(p['ldw'])}, 6144\ns_mov_b32 {s(p['par'])}, 1")
        k(f"s_mov_b32 {s(p['xsize'])}, 4194304\ns_mov_b32 {s(p['ldx'])}, 2048\ns_mov_b32 {s(p['nk'])}, 16")
        k(f"s_lshl_b32 {s(p['woff0'])}, {s(t0)}, 9\ns_lshl_b32 {s(p['xoff0'])}, {s(sMt)}, 19")
        k(f"s_and_b32 {s(t2)}, {s(t0)}, 3\ns_lshr_b32 {s(t1)}, {s(t0)}, 2")
        k(f"s_lshl_b32 {s(p['flag'])}, {s(t2)}, 2\ns_add_u32 {s(p['flag'])}, {s(p['flag'])}, {s(t1)}\ns_lshl_b32 {s(p['flag'])}, {s(p['flag'])}, 3\ns_add_u32 {s(p['flag'])}, {s(p['flag'])}, {s(sMt)}\ns_lshl_b32 {s(p['flag'])}, {s(p['flag'])}, 3\ns_add_u32 {s(p['flag'])}, {s(p['flag'])}, {48*128}")
        k(f"s_cmp_eq_u32 {s(t1)}, 0\ns_cselect_b32 {s(p['scale'])}, {f32bits(C_A)}, 0")
        k(f"s_lshl_b32 {s(t3)}, {s(t1)}, 22\ns_add_u32 {s(p['obase'])}, {s(t3)}, {WS_QA}")
        k(f"s_lshl_b32 {s(t2)}, {s(t2)}, 1\ns_add_u32 {s(t2)}, {s(t2)}, {s(swn)}\ns_lshl_b32 {s(t2)}, {s(t2)}, 19\ns_add_u32 {s(p['obase'])}, {s(p['obase'])}, {s(t2)}")
        k(f"s_lshl_b32 {s(t2)}, {s(swm)}, 3\ns_add_u32 {s(t2)}, {s(t2)}, {s(sMt)}")
        k(f"s_cmp_eq_u32 {s(t1)}, 2\ns_cselect_b32 {s(p['swp'])}, 1, 0\ns_cselect_b32 {s(t3)}, 12, 13")
        k(f"s_mov_b32 {s(t1)}, 131072\ns_cselect_b32 {s(p['Si'])}, 1024, {s(t1)}\ns_mov_b32 {s(t1)}, 1024\ns_cselect_b32 {s(p['Sj'])}, 65536, {s(t1)}")
        k(f"s_lshl_b32 {s(t2)}, {s(t2)}, {s(t3)}\ns_add_u32 {s(p['obase'])}, {s(p['obase'])}, {s(t2)}")
        k(f"s_mov_b32 {s(p['xlo'])}, {s(ptr('A_x'))}\ns_mov_b32 {s(p['xhi'])}, {s(ptr('A_x')+1)}\ns_mov_b32 {s(p['wlo'])}, {s(ptr('A_wqkv'))}\ns_mov_b32 {s(p['whi'])}, {s(ptr('A_wqkv')+1)}")
    def kv_params(p, ptrs=True):
        k(f"s_cmp_lt_u32 {s(t0)}, 16\ns_cselect_b32 {s(p['swp'])}, 0, 1")
        k(f"s_mov_b32 {s(t1)}, {WS_VB}\ns_cselect_b32 {s(p['obase'])}, {WS_KB}, {s(t1)}")
        k(f"s_mov_b32 {s(t1)}, 8192\ns_cselect_b32 {s(p['Si'])}, 1024, {s(t1)}")
        k(f"s_mov_b32 {s(t1)}, 1024\ns_cselect_b32 {s(p['Sj'])}, 4096, {s(t1)}")
        if ptrs: k(f"s_cselect_b32 {s(p['wlo'])}, {s(ptr('B_w_uk'))}, {s(ptr('B_w_uv'))}\ns_cselect_b32 {s(p['whi'])}, {s(ptr('B_w_uk')+1)}, {s(ptr('B_w_uv')+1)}")
        if ptrs: k(f"s_mov_b32 {s(p['xlo'])}, {s(ptr('B_c_kv'))}\ns_mov_b32 {s(p['xhi'])}, {s(ptr('B_c_kv')+1)}")
        k(f"s_mov_b32 {s(p['xsize'])}, 2097152\ns_mov_b32 {s(p['ldx'])}, 1024\ns_mov_b32 {s(p['nk'])}, 8\ns_mov_b32 {s(p['par'])}, 0")
        k(f"s_mov_b32 {s(p['wsize'])}, 4194304\ns_mov_b32 {s(p['ldw'])}, 8192\ns_mov_b32 {s(p['scale'])}, 0")
        k(f"s_and_b32 {s(t0)}, {s(t0)}, 15\ns_lshl_b32 {s(p['woff0'])}, {s(t0)}, 9\ns_lshl_b32 {s(p['xoff0'])}, {s(sMt)}, 18")
        k(f"s_lshl_b32 {s(t1)}, {s(p['swp'])}, 2\ns_add_u32 {s(t1)}, {s(t1)}, {s(sMt)}\ns_cmp_ge_u32 {s(sMt)}, 4\ns_cselect_b32 {s(t2)}, {512 - 4}, 8\ns_add_u32 {s(t1)}, {s(t1)}, {s(t2)}")
        k(f"s_lshl_b32 {s(p['flag'])}, {s(t0)}, 4\ns_add_u32 {s(p['flag'])}, {s(p['flag'])}, {s(t1)}\ns_lshl_b32 {s(p['flag'])}, {s(p['flag'])}, 3")
        k(f"s_lshl_b32 {s(t1)}, {s(t0)}, 1\ns_add_u32 {s(t1)}, {s(t1)}, {s(swn)}\ns_lshl_b32 {s(t1)}, {s(t1)}, 19")
        k(f"s_lshl_b32 {s(t2)}, {s(sMt)}, 1\ns_add_u32 {s(t2)}, {s(t2)}, {s(swm)}\ns_lshl_b32 {s(t2)}, {s(t2)}, 15")
        k(f"s_add_u32 {s(p['obase'])}, {s(p['obase'])}, {s(t1)}\ns_add_u32 {s(p['obase'])}, {s(p['obase'])}, {s(t2)}")
    def tile_long(mul):
        k(f"s_and_b32 {s(sMt)}, {s(sIdx)}, 3\ns_and_b32 {s(t0)}, s2, 1\ns_lshl_b32 {s(t0)}, {s(t0)}, 2\ns_add_u32 {s(sMt)}, {s(sMt)}, {s(t0)}")
        k(f"s_bfe_u32 {s(t0)}, s2, 0x20001\ns_mul_i32 {s(t0)}, {s(t0)}, {mul}\ns_bfe_u32 {s(t1)}, {s(sIdx)}, 0x20002\ns_add_u32 {s(t0)}, {s(t0)}, {s(t1)}")
    def tile_kv(late):
        k(f"s_bfe_u32 {s(sMt)}, {s(sIdx)}, 0x20002\ns_add_u32 {s(sMt)}, {s(sMt)}, {4*late}\ns_and_b32 {s(t0)}, s2, 7\ns_lshl_b32 {s(t0)}, {s(t0)}, 2\ns_and_b32 {s(t1)}, {s(sIdx)}, 3\ns_add_u32 {s(t0)}, {s(t0)}, {s(t1)}")

    def act_load(p, part=(0, 1), which="xw"):
        if 0 in part and 'x' in which:
            k(f"s_mov_b32 {s(srdX+2)}, {s(p['xsize'])}")
            k(f"s_lshl_b32 {s(t0)}, {s(p['ldx'])}, 4\ns_lshl_b32 {s(t0)}, {s(t0)}, {s(p['par'])}")
            k(f"s_mov_b32 {s(sXoff)}, {s(p['xoff0'])}")
            for a_ in (1, 2, 3):
                k(f"s_mul_i32 {s(t1)}, {s(t0)}, {a_}\ns_add_u32 {s(sXoff+a_)}, {s(t1)}, {s(p['xoff0'])}")
                if a_ & 1: k(f"s_sub_u32 {s(sXoff+a_)}, {s(sXoff+a_)}, 2048")
            k(f"s_lshl_b32 {s(t0)}, {s(swn)}, 7\ns_add_u32 {s(t0)}, {s(t0)}, {s(swm)}\ns_lshl_b32 {s(t1)}, {s(sw)}, 6\ns_cmp_eq_u32 {s(p['par'])}, 1\ns_cselect_b32 {s(t0)}, {s(t0)}, {s(t1)}")
            k(f"v_lshrrev_b32 {v(T)}, 3, {v(vLane)}\nv_lshlrev_b32 {v(T)}, {s(p['par'])}, {v(T)}")
            k(f"v_add_u32 {v(T)}, {s(t0)}, {v(T)}\nv_mul_lo_u32 {v(T)}, {v(T)}, {s(p['ldx'])}")
            k(f"v_lshrrev_b32 {v(T+1)}, 4, {v(vLane)}\nv_and_b32 {v(T+2)}, 7, {v(vLane)}\nv_xor_b32 {v(T+1)}, {v(T+1)}, {v(T+2)}")
            k(f"v_lshl_add_u32 {v(vX)}, {v(T+1)}, 4, {v(T)}")
            k(f"v_xor_b32 {v(T+1)}, 4, {v(T+1)}\nv_lshl_add_u32 {v(vX+1)}, {v(T+1)}, 4, {v(T)}")
            k(f"s_lshl_b32 {s(t0)}, {s(p['ldx'])}, 3\ns_lshl_b32 {s(t0)}, {s(t0)}, {s(p['par'])}\ns_sub_u32 {s(t0)}, {s(t0)}, 1024\nv_add_u32 {v(vX+1)}, {s(t0)}, {v(vX+1)}")
        if 0 in part and 'w' in which:
            k(f"s_mov_b32 {s(srdW+2)}, {s(p['wsize'])}")
            k(f"s_mov_b32 {s(sWoff)}, {s(p['woff0'])}\ns_lshl_b32 {s(t0)}, {s(p['ldw'])}, 2")
            for a_ in (1, 2, 3):
                k(f"s_mul_i32 {s(t1)}, {s(t0)}, {a_}\ns_add_u32 {s(sWoff+a_)}, {s(t1)}, {s(p['woff0'])}")
                if a_ & 1: k(f"s_sub_u32 {s(sWoff+a_)}, {s(sWoff+a_)}, 2048")
            k(f"s_lshl_b32 {s(sWstep)}, {s(p['ldw'])}, 6")
            k(f"v_lshrrev_b32 {v(T)}, 5, {v(vLane)}\ns_lshl_b32 {s(t0)}, {s(sw)}, 4\nv_add_u32 {v(T+1)}, {s(t0)}, {v(T)}\nv_mul_lo_u32 {v(T+1)}, {v(T+1)}, {s(p['ldw'])}")
            k(f"v_lshlrev_b32 {v(T)}, 1, {v(T)}\nv_and_b32 {v(T+2)}, 31, {v(vLane)}\nv_xor_b32 {v(T)}, {v(T)}, {v(T+2)}")
            k(f"s_lshl_b32 {s(t0)}, {s(p['ldw'])}, 1\ns_sub_u32 {s(t0)}, {s(t0)}, 1024\nv_add_u32 {v(T+3)}, {s(t0)}, {v(T+1)}")
            for u in range(2):
                for e in range(2):
                    k(f"v_xor_b32 {v(T+2)}, {4*e + 8*u}, {v(T)}\nv_lshl_add_u32 {v(vW+e+2*u)}, {v(T+2)}, 4, {v(T+3) if e else v(T+1)}")
        if 1 in part:
            if 'x' in which: k(f"s_mov_b32 {s(srdX)}, {s(p['xlo'])}\ns_mov_b32 {s(srdX+1)}, {s(p['xhi'])}")
            if 'w' in which: k(f"s_mov_b32 {s(srdW)}, {s(p['wlo'])}\ns_mov_b32 {s(srdW+1)}, {s(p['whi'])}")
    def act_comp(p):
        for f in CP: k(f"s_mov_b32 {s(CP[f])}, {s(p[f])}")

    def dmaX(j):
        out = []
        if j % 4 == 0: out.append(f"s_add_u32 m0, {s(sXw)}, {4096 * (j // 4)}\ns_nop 0")
        out.append(f"buffer_load_dwordx4 {v(vX + (j & 1))}, {s(srdX,4)}, {s(sXoff + (j >> 1))} offen offset:{(j & 3) * 1024}{wsc} lds")
        if j & 1: out.append(f"s_add_u32 {s(sXoff + (j >> 1))}, {s(sXoff + (j >> 1))}, 128")
        return out
    def dmaW(j):
        out = []
        if j % 4 == 0: out.append(f"s_add_u32 m0, {s(sWw)}, {4096 * (j // 4)}\ns_nop 0")
        out.append(f"buffer_load_dwordx4 {v(vW + (j & 1) + 2 * (j >> 2))}, {s(srdW,4)}, {s(sWoff + (j >> 1))} offen offset:{(j & 3) * 1024}{wsc} lds")
        if j & 1: out.append(f"s_add_u32 {s(sWoff + (j >> 1))}, {s(sWoff + (j >> 1))}, {s(sWstep)}")
        return out
    def rotXw():
        return [f"s_add_u32 {s(sXw)}, {s(sXw)}, {XS}\ns_cmp_ge_u32 {s(sXw)}, {3*XS}", f"s_cselect_b32 {s(t0)}, {3*XS}, 0\ns_sub_u32 {s(sXw)}, {s(sXw)}, {s(t0)}"]
    def rotWw():
        return [f"s_xor_b32 {s(sWw)}, {s(sWw)}, {WBASE ^ (WBASE + XS)}"]
    def rdX(kk, mb): return (('x', mb), f"ds_read_b128 {a(fragX(kk, mb), 4)}, {v(vx + kk)} offset:{mb * 2048}")
    def rdW(kk, nb, t): return (('w', nb), f"ds_read_b64_tr_b16 {a(fragW(kk, nb) + 2 * t, 2)}, {v(vw + nb)} offset:{(32 * kk + 4 * t) * 512}")
    def rdWpair(p_): return [rdW(kk, nb, t) for nb in (2 * p_, 2 * p_ + 1) for kk in range(2) for t in range(2)]

    MB = 1 << 20
    def pf_setup():
        k(f"s_sub_u32 {s(t3)}, s2, 224\ns_lshl_b32 {s(t3)}, {s(t3)}, 2\ns_add_u32 {s(t3)}, {s(t3)}, {s(sw)}")
        k(f"v_lshlrev_b32 {v(T)}, 7, {v(vLane)}")
        k(f"v_lshrrev_b32 {v(T+1)}, 3, {v(vLane)}\nv_lshlrev_b32 {v(T+1)}, 11, {v(T+1)}\nv_and_b32 {v(T+2)}, 7, {v(vLane)}\nv_lshl_add_u32 {v(T+1)}, {v(T+2)}, 7, {v(T+1)}")
        k(f"s_lshl_b32 {s(t2)}, {s(t3)}, 13\ns_lshl_b32 {s(t3)}, {s(t3)}, 14\ns_add_u32 {s(t3)}, {s(t3)}, 1024")
    def region(p_, size, off, nbytes, rows=False):
        k(f"s_mov_b32 {s(srdD)}, {s(p_)}\ns_mov_b32 {s(srdD+1)}, {s(p_+1)}\ns_mov_b32 {s(srdD+2)}, {size}")
        step = 2 * MB if rows else MB
        for o in range(off, off + nbytes, step):
            k(f"s_add_u32 {s(t0)}, {s(t3 if rows else t2)}, {o}\nbuffer_load_dword {v(vDum)}, {v(T+1 if rows else T)}, {s(srdD,4)}, {s(t0)} offen{tsc}")
    def publish(sflag, vp=vFlag):
        L = k.newlab('np')
        k(f"s_cmp_lg_u32 {s(sw)}, 0\ns_cbranch_scc1 {L}")
        k(f"v_mov_b32 {v(vp)}, {s(sTok)}\nv_mov_b32 {v(vp+1)}, {s(sTok+1)}\ns_add_u32 {s(t0)}, {s(sflag)}, {WS_FLAG}\ns_mov_b64 exec, 1")
        k(f"buffer_store_dwordx2 {v(vp,2)}, off, {s(srdO,4)}, {s(t0)} sc1\ns_mov_b64 exec, -1")
        k.label(L)
    def dbgmax(word, grp=False):
        if 'dbg' not in abl: return
        L = k.newlab('dm')
        k(f"s_cmp_lg_u32 {s(sw)}, 0\ns_cbranch_scc1 {L}\ns_memrealtime {s(sStamp,2)}\ns_waitcnt lgkmcnt(0)\ns_sub_u32 {s(sStamp)}, {s(sStamp)}, {s(sTok)}\nv_mov_b32 {v(vStamp)}, {s(sStamp)}")
        if grp: k(f"s_lshr_b32 {s(sStamp)}, s2, 5\ns_cmp_eq_u32 {s(sStamp)}, 7\ns_cselect_b32 {s(sStamp)}, 4, 0")
        else: k(f"s_mov_b32 {s(sStamp)}, 0")
        k(f"s_mov_b64 exec, 1\nbuffer_atomic_umax {v(vStamp)}, off, {s(srdD,4)}, {s(sStamp)} offset:{word*4}\ns_mov_b64 exec, -1")
        k.label(L)
    def head_ids():
        k(f"s_and_b32 {s(t2)}, s2, 7\ns_lshl_b32 {s(t2)}, {s(t2)}, 2\ns_bfe_u32 {s(t3)}, s2, 0x20003\ns_add_u32 {s(t2)}, {s(t2)}, {s(t3)}\ns_lshr_b32 {s(t3)}, s2, 5\ns_lshl_b32 {s(t3)}, {s(t3)}, 2\ns_or_b32 {s(t3)}, {s(t3)}, 0x40000")
    pKV = sK + 8; pQ = sK + 9; pFl = sK + 13
    def flag_lanes(what):
        if what == 'kv':
            k(f"v_and_b32 {v(vFa)}, 3, {v(vLane)}\nv_min_u32 {v(vFa)}, 2, {v(vFa)}\nv_and_b32 {v(T)}, 4, {v(vLane)}\nv_add3_u32 {v(vFa)}, {v(vFa)}, {v(T)}, 8")
        else:
            k(f"s_bfe_u32 {s(t1)}, {TABB}, {s(t3)}\ns_lshr_b32 {s(t1)}, {s(t1)}, 1\nv_mov_b32 {v(vFa)}, {s(t1)}")
            if what == 'all': k(f"v_and_b32 {v(T)}, 3, {v(vLane)}\nv_min_u32 {v(T)}, 2, {v(T)}\nv_and_b32 {v(T+1)}, 4, {v(vLane)}\nv_add3_u32 {v(T)}, {v(T)}, {v(T+1)}, 8\nv_cmp_gt_u32 vcc, 8, {v(vLane)}\ns_nop 1\nv_cndmask_b32 {v(vFa)}, {v(vFa)}, {v(T)}, vcc")
            k(f"s_bfe_u32 {s(t1)}, {TABA}, {s(t3)}\ns_lshr_b32 {s(t1)}, {s(t1)}, 1\nv_writelane_b32 {v(vFa)}, {s(t1)}, 8")
        k(f"v_lshlrev_b32 {v(vFa)}, 3, {v(vFa)}")
    def precompute():
        head_ids()
        k(f"s_lshr_b32 {s(pFl)}, {s(t2)}, 1\ns_lshl_b32 {s(pFl)}, {s(pFl)}, 7\ns_add_u32 {s(pFl)}, {s(pFl)}, {WS_FLAG}\ns_lshl_b32 {s(t2)}, {s(t2)}, 19")
        k(f"s_lshl_b32 {s(t1)}, {s(swn)}, 13\ns_add_u32 {s(t0)}, {s(t2)}, {s(t1)}\ns_cmp_eq_u32 {s(swm)}, 0\ns_mov_b32 {s(t1)}, {WS_VB - STG}\ns_cselect_b32 {s(t1)}, {WS_KB}, {s(t1)}\ns_add_u32 {s(pKV)}, {s(t0)}, {s(t1)}")
        for st in range(2):
            k(f"s_bfe_u32 {s(t0)}, {TABA if st == 0 else TABB}, {s(t3)}\ns_lshl_b32 {s(t0)}, {s(t0)}, 3\ns_lshl_b32 {s(t1)}, {s(sw)}, 1\ns_add_u32 {s(t0)}, {s(t0)}, {s(t1)}\ns_lshl_b32 {s(t0)}, {s(t0)}, 12\ns_add_u32 {s(t0)}, {s(t0)}, {s(t2)}")
            k(f"s_add_u32 {s(pQ+2*st)}, {s(t0)}, {WS_QB}\ns_add_u32 {s(pQ+2*st+1)}, {s(t0)}, {WS_QB + 4096}")
        flag_lanes('all')
    def early_load(what=None):
        if what: head_ids(); flag_lanes(what)
        k(f"buffer_load_dwordx2 {v(vFlag,2)}, {v(vFa)}, {s(srdO,4)}, {s(pFl)} offen sc1")
    def early_check(what):
        Ls = k.newlab('spin'); Lok = k.newlab('ok')
        k(f"s_mov_b32 s3, {SPIN}")
        k.label(Ls)
        k(f"v_cmp_ne_u64 {s(sEx,2)}, {s(sTok,2)}, {v(vFlag,2)}\ns_nop 3\ns_cmp_eq_u64 {s(sEx,2)}, 0\ns_cbranch_scc1 {Lok}\ns_sub_u32 s3, s3, 1\ns_cbranch_scc1 {Lok}\ns_sleep 16")
        early_load()
        k(f"s_waitcnt vmcnt(0)\ns_branch {Ls}")
        k.label(Lok)
    def kv_cursor(offs, srd, ks):
        k(f"s_add_u32 {s(offs)}, {s(pKV)}, {ks * STG}\ns_mov_b32 {s(offs+1)}, {s(offs)}\ns_add_u32 {s(offs+2)}, {s(offs)}, 4096\ns_mov_b32 {s(offs+3)}, {s(offs+2)}")
        if ks == 0: k(f"s_cmp_eq_u32 {s(swm)}, 0\ns_cselect_b32 {s(srd+2)}, {WS_SIZE}, 0")
        if ks in (1, 3): k(f"s_mov_b32 {s(srd+2)}, {WS_SIZE}")
        if ks in (0, 3): k(f"s_mov_b32 {s(srd)}, {s(sWS)}\ns_mov_b32 {s(srd+1)}, {s(sWS+1)}")
    tok_load = f"buffer_load_dwordx2 {v(vFlag,2)}, off, {s(srdD,4)}, 0 sc1"
    def tok_get():
        Ls = k.newlab('spin'); Lok = k.newlab('ok')
        k(f"s_mov_b32 s3, {SPIN}")
        k.label(Ls)
        k(f"v_readfirstlane_b32 {s(sTok)}, {v(vFlag)}\nv_readfirstlane_b32 {s(sTok+1)}, {v(vFlag+1)}\ns_nop 3\ns_cmp_lg_u32 {s(sTok)}, 0\ns_cbranch_scc1 {Lok}\ns_sub_u32 s3, s3, 1\ns_cbranch_scc1 {Lok}\ns_sleep 32")
        k(f"{tok_load}\ns_waitcnt vmcnt(0)\ns_branch {Ls}")
        k.label(Lok)
    def q_loads(qts, sel=None):
        for qt in qts:
            for e in range(4):
                if sel is None or qt * 4 + e in sel: k(f"buffer_load_dwordx4 {a(Qreg(qt, e), 4)}, {v(vL16)}, {s(srdO,4)}, {s(pQ+qt)} offen offset:{e*1024} sc1")

    La = k.newlab('typea'); Lb = k.newlab('go1'); Lnp = k.newlab('nopf'); Lpf = k.newlab('pf')
    k(f"s_cmp_ge_u32 {s(sIdx)}, 16\ns_cbranch_scc1 {La}")
    tile_long(4); q_params(P1, False)
    k(f"s_branch {Lb}")
    k.label(La)
    tile_kv(0); kv_params(P1, False)
    k.label(Lb)
    act_load(P1, (0,))
    k(f"s_cmp_eq_u32 {s(P1['swp'])}, 0\ns_waitcnt lgkmcnt(0)\ns_cselect_b32 {s(srdW)}, {s(ptr('B_w_uk'))}, {s(ptr('B_w_uv'))}\ns_cselect_b32 {s(srdW+1)}, {s(ptr('B_w_uk')+1)}, {s(ptr('B_w_uv')+1)}")
    k(f"s_cmp_lt_u32 {s(sIdx)}, 16\ns_cselect_b32 {s(srdW)}, {s(ptr('B_w_q'))}, {s(srdW)}\ns_cselect_b32 {s(srdW+1)}, {s(ptr('B_w_q')+1)}, {s(srdW+1)}")
    k(f"s_cselect_b32 {s(srdX)}, {s(ptr('B_x'))}, {s(ptr('B_c_kv'))}\ns_cselect_b32 {s(srdX+1)}, {s(ptr('B_x')+1)}, {s(ptr('B_c_kv')+1)}")
    k(f"s_cmp_ge_u32 {s(sIdx)}, 28\ns_cselect_b32 {s(sIsP)}, 1, 0\ns_cbranch_scc1 {Lpf}")
    k.label(Lnp)
    save0 = k.lines; k.lines = []
    k.label(Lpf)
    k(f"s_mov_b32 {s(srdD+3)}, 0x20000")
    if 'nopf' not in abl:
        pf_setup()
        PO = os.environ.get('PORD', '0')
        if PO == '0':
            region(ptr('A_wqkv'), 6 * MB, 0, 2 * MB); region(ptr('A_x'), 4 * MB, 0, 4 * MB)
            region(ptr('B_w_q'), 8 * MB, 4 * MB, 2 * MB); region(ptr('B_x'), 4 * MB, 0, 4 * MB, True)
            region(ptr('A_wqkv'), 6 * MB, 2 * MB, 1 * MB); region(ptr('B_w_q'), 8 * MB, 6 * MB, 2 * MB); region(ptr('A_wqkv'), 6 * MB, 3 * MB, 3 * MB)
            region(ptr('B_c_kv'), 2 * MB, 1 * MB, 1 * MB)
        else:
            k(f"v_lshrrev_b32 {v(T+1)}, 2, {v(vLane)}\nv_lshlrev_b32 {v(T+1)}, 11, {v(T+1)}\nv_and_b32 {v(T+2)}, 3, {v(vLane)}\nv_lshl_add_u32 {v(T+1)}, {v(T+2)}, 7, {v(T+1)}\ns_lshl_b32 {s(t3)}, {s(t2)}, 2")
            def xq(p_, q): region(p_, 4 * MB, q * 512, 1, True)
            wq, wa, bx, ax = ptr('B_w_q'), ptr('A_wqkv'), ptr('B_x'), ptr('A_x')
            if PO == '1':
                region(wq, 8 * MB, 1 * MB, 2 * MB); xq(bx, 1); region(wq, 8 * MB, 3 * MB, 2 * MB); xq(bx, 2); region(wq, 8 * MB, 5 * MB, 1 * MB)
                region(wa, 6 * MB, 0, 1 * MB); xq(ax, 0); region(wq, 8 * MB, 6 * MB, 1 * MB); xq(bx, 3); region(wa, 6 * MB, 1 * MB, 1 * MB); xq(ax, 1); region(wq, 8 * MB, 7 * MB, 1 * MB)
                region(wa, 6 * MB, 2 * MB, 2 * MB); xq(ax, 2); region(wa, 6 * MB, 4 * MB, 1 * MB); xq(ax, 3); region(wa, 6 * MB, 5 * MB, 1 * MB); region(ptr('B_c_kv'), 2 * MB, 1 * MB, 1 * MB)
            if PO == '2':
                uk, uv = ptr('B_w_uk'), ptr('B_w_uv')
                region(wq, 8 * MB, 1 * MB, 1 * MB); region(uk, 4 * MB, 2 * MB, 1 * MB); region(uv, 4 * MB, 2 * MB, 1 * MB); region(wq, 8 * MB, 2 * MB, 1 * MB); xq(bx, 1)
                region(uk, 4 * MB, 3 * MB, 1 * MB); region(uv, 4 * MB, 3 * MB, 1 * MB); region(wq, 8 * MB, 3 * MB, 2 * MB); xq(bx, 2)
                region(wa, 6 * MB, 0, 1 * MB); xq(ax, 0); region(wq, 8 * MB, 5 * MB, 2 * MB); xq(bx, 3); region(wa, 6 * MB, 1 * MB, 1 * MB); xq(ax, 1); region(wq, 8 * MB, 7 * MB, 1 * MB)
                region(wa, 6 * MB, 2 * MB, 2 * MB); xq(ax, 2); region(wa, 6 * MB, 4 * MB, 1 * MB); xq(ax, 3); region(wa, 6 * MB, 5 * MB, 1 * MB); region(ptr('B_c_kv'), 2 * MB, 1 * MB, 1 * MB)
            if PO == '6':
                region(wq, 8 * MB, 1 * MB, 2 * MB); xq(bx, 1); region(wq, 8 * MB, 3 * MB, 2 * MB); xq(bx, 2); region(wq, 8 * MB, 5 * MB, 1 * MB)
                region(wa, 6 * MB, 0, 1 * MB); xq(ax, 0); region(wq, 8 * MB, 6 * MB, 1 * MB); xq(bx, 3); region(wa, 6 * MB, 1 * MB, 1 * MB); xq(ax, 1); region(wq, 8 * MB, 7 * MB, 1 * MB)
                region(wa, 6 * MB, 2 * MB, 1 * MB); region(ptr('B_c_kv'), 2 * MB, 1 * MB, 1 * MB)
            if PO == '7':
                region(wq, 8 * MB, 1 * MB, 2 * MB); xq(bx, 1); region(wq, 8 * MB, 3 * MB, 2 * MB); xq(bx, 2); region(wq, 8 * MB, 5 * MB, 2 * MB); xq(bx, 3); region(wq, 8 * MB, 7 * MB, 1 * MB)
                region(wa, 6 * MB, 2 * MB, 2 * MB); xq(ax, 2); region(wa, 6 * MB, 4 * MB, 1 * MB); xq(ax, 3); region(wa, 6 * MB, 5 * MB, 1 * MB); region(ptr('B_c_kv'), 2 * MB, 1 * MB, 1 * MB)
            if PO == '3':
                region(wq, 8 * MB, 2 * MB, 1 * MB); xq(bx, 1); region(wq, 8 * MB, 3 * MB, 2 * MB); xq(bx, 2)
                region(wa, 6 * MB, 0, 1 * MB); xq(ax, 0); region(wq, 8 * MB, 5 * MB, 2 * MB); xq(bx, 3); region(wa, 6 * MB, 1 * MB, 1 * MB); xq(ax, 1); region(wq, 8 * MB, 7 * MB, 1 * MB)
                region(wa, 6 * MB, 2 * MB, 2 * MB); xq(ax, 2); region(wa, 6 * MB, 4 * MB, 1 * MB); xq(ax, 3); region(wa, 6 * MB, 5 * MB, 1 * MB); region(ptr('B_c_kv'), 2 * MB, 1 * MB, 1 * MB)
    if 'pwo1' in abl:
        k(f"s_load_dwordx2 {s(sEx,2)}, s[0:1], {KARG['B_w_o']}\ns_waitcnt lgkmcnt(0)")
        region(sEx, 8 * MB, 0, 8 * MB); region(ptr('A_wo'), 2 * MB, 0, 2 * MB)
    k(f"s_add_u32 {s(sXw)}, {s(sXw)}, {XS}\ns_branch {Lnp}")
    ool0 = k.lines; k.lines = save0
    for st in range(2):
        for j in range(8):
            for t in dmaX(j): k(t)
        for t in rotXw(): k(t)
        for j in range(8):
            for t in dmaW(j): k(t)
        for t in rotWw(): k(t)
        if st == 0:
            act_comp(P1)
            late_setup()
            k(f"s_mov_b32 {s(srdO)}, {s(sWS)}\ns_mov_b32 {s(srdO+1)}, {s(sWS+1)}\ns_mov_b32 {s(srdO+2)}, {WS_SIZE}\ns_mov_b32 {s(srdO+3)}, 0x20000")
            La2 = k.newlab('typea'); Lb2 = k.newlab('go2')
            k(f"s_cmp_ge_u32 {s(sIdx)}, 16\ns_cbranch_scc1 {La2}")
            tile_kv(1); kv_params(P1)
            k(f"s_branch {Lb2}")
            k.label(La2)
            tile_long(3); a_params(P1)
            k.label(Lb2)
            precompute()
            k(f"s_xor_b32 {s(sHasNext)}, {s(sIsP)}, 1\ns_add_u32 {s(sEvT)}, {s(sIsP)}, 3\ns_mov_b32 {s(sPend)}, -1")
            k(f"s_mul_i32 {s(sXs)}, {s(sIsP)}, {XS}\nv_add_u32 {v(vx)}, {s(sXs)}, {v(vx)}\nv_add_u32 {v(vx+1)}, {s(sXs)}, {v(vx+1)}")
            k(f"s_mov_b32 {s(srdD)}, {s(sDb)}\ns_mov_b32 {s(srdD+1)}, {s(sDb+1)}\ns_mov_b32 {s(srdD+2)}, 256\ns_mov_b32 {s(srdD+3)}, 0x20000")
            Lt = k.newlab('tok')
            k(f"s_lshl_b32 {s(t0)}, s2, 2\ns_add_u32 {s(t0)}, {s(t0)}, {s(sw)}\ns_cmp_lg_u32 {s(t0)}, 0\ns_cbranch_scc1 {Lt}")
            k(f"s_memrealtime {s(t2,2)}\ns_waitcnt lgkmcnt(0)\ns_or_b32 {s(t2)}, {s(t2)}, 1\nv_mov_b32 {v(vFlag)}, {s(t2)}\nv_mov_b32 {v(vFlag+1)}, {s(t3)}\ns_mov_b64 exec, 1")
            k(f"buffer_store_dwordx2 {v(vFlag,2)}, off, {s(srdD,4)}, 0 sc1\ns_mov_b64 exec, -1")
            k.label(Lt)
            Lt2 = k.newlab('tok')
            k(f"s_cmp_eq_u32 {s(sIsP)}, 0\ns_cbranch_scc1 {Lt2}\n{tok_load}\ns_waitcnt vmcnt(0)")
            tok_get()
            k.label(Lt2)
    ST.stamp(2)
    k("s_waitcnt vmcnt(16)\ns_barrier")
    ST.stamp(3)
    tailq = []
    w2 = rdWpair(2)
    for mb in range(8): tailq += [w2[mb], rdX(0, mb), rdX(1, mb)]
    for tag, ins in rdWpair(0) + rdWpair(1) + tailq: k(ins)
    for j in range(8):
        for x in dmaX(j): k(x)
    for x in rotXw(): k(x)
    k(f"s_mov_b32 {s(sFirst)}, 1")
    gS = sK; gSa = sK + 4; gSb = sK + 5; gSi = sK + 6; gSj = sK + 7
    k(f"s_mov_b32 {s(gS)}, {s(sWS)}\ns_mov_b32 {s(gS+1)}, {s(sWS+1)}\ns_mov_b32 {s(gS+2)}, 0\ns_mov_b32 {s(gS+3)}, 0x20000")
    k(f"s_mov_b32 {s(gSa)}, 0\ns_mov_b32 {s(gSb)}, 0\ns_mov_b32 {s(gSi)}, 0\ns_mov_b32 {s(gSj)}, 0")
    WB = 'wb' in abl
    GA = 31; SERP = 'noserp' not in abl
    WG = [34 + 4 * i for i in range(8)]
    XG = [68, 76, 84, 92, 100, 108, 116, 124]
    SG = [10, 16, 22, 28, 72, 80, 88, 94]
    NTR = 3
    def item(lst):
        pre = lst[0].split("\n")[0] if lst[0].startswith("s_add_u32 m0") else None
        ins = [x for x in lst if x.startswith("buffer_")][0]
        post = lst[-1] if not lst[-1].startswith("buffer_") else None
        return pre, ins, post
    def body(swp, kind):
        tr = LgkmTracker([tag for tag, _ in tailq])
        rd = {}; first = {}; head = {}; vfx = {}
        items = [(item(dmaX(j)), g) for j, g in enumerate(XG)] + [(item(dmaW(j)), g) for j, g in enumerate(WG)]
        if kind < NTR:
            for i, g in enumerate(SG):
                post = f"s_add_u32 {s(gSa)}, {s(gSa)}, {s(gSj)}" if i < 7 else f"s_add_u32 {s(gSb)}, {s(gSb)}, {s(gSi)}\ns_mov_b32 {s(gSa)}, {s(gSb)}"
                items.append(((None, f"buffer_store_dwordx4 {a(STASH + 4*(kind*8+i), 4)}, {v(vSt)}, {s(gS,4)}, {s(gSa)} offen{sfx}", post), g))
        for (pre, ins, post), g in items:
            assert g not in head, g
            head[g] = ins; first[g] = None
        first[GA] = None
        busy = set(XG) | set(WG) | set(SG)
        def put_first(g, x):
            while g in first: g += 1
            assert g < 126, x
            first[g] = x; return g
        def put_reads(g, its, stride):
            for x in its:
                while g in busy or g in rd: g += 1
                rd[g] = x; g += stride
        for (pre, ins, post), g in items:
            if pre: assert g - 1 not in first; first[g - 1] = pre
        for (pre, ins, post), g in items:
            if post: put_first(g + 1, post)
        put_reads(0, rdWpair(3), 1)
        put_reads(GA + 1, rdWpair(0), 3)
        put_reads(64, rdWpair(1), 3)
        for mb in range(8):
            put_reads(96 + 4 * mb + 1, [w2[mb]], 1)
            if mb < 7: put_reads(96 + 4 * mb + 3, [rdX(0, mb), rdX(1, mb)], 1)
        assert [rd[g][1] for g in sorted(rd) if g >= 96] == [x[1] for x in tailq[:22]], "tail order"
        gg = 12
        for nb in range(0, 8, 2):
            while gg in busy: gg += 1
            vfx[gg] = [f"v_xor_b32 {v(vw+nb)}, {s(sWx)}, {v(vw+nb)}", f"v_xor_b32 {v(vw+nb+1)}, {s(sWx)}, {v(vw+nb+1)}"]; gg += 1
        g = put_first(36, f"s_add_u32 {s(sXs)}, {s(sXs)}, {XS}")
        g = put_first(g + 1, f"s_cmp_ge_u32 {s(sXs)}, {3*XS}\ns_cselect_b32 {s(sXd)}, {-2*XS & 0xffffffff}, {s(sXSc)}\ns_cselect_b32 {s(sXs)}, 0, {s(sXs)}")
        assert g < 60 and 60 not in rd and 60 not in busy
        vfx[60] = [f"v_add_u32 {v(vx)}, {s(sXd)}, {v(vx)}", f"v_add_u32 {v(vx+1)}, {s(sXd)}, {v(vx+1)}"]
        put_first(WG[4] + 1, rotWw()[0])
        g = put_first(XG[4] + 1, f"s_add_u32 {s(sXw)}, {s(sXw)}, {XS}")
        g = put_first(g + 1, f"s_cmp_ge_u32 {s(sXw)}, {3*XS}\ns_cselect_b32 {s(t0)}, {3*XS}, 0")
        g = put_first(g + 1, f"s_sub_u32 {s(sXw)}, {s(sXw)}, {s(t0)}")
        put_first(112, f"s_sub_u32 {s(sCnt)}, {s(sCnt)}, 1")
        if kind == NTR: first[126] = f"s_cmp_gt_u32 {s(sCnt)}, {s(sEvT)}"
        vm = 8 + (4 if kind < NTR else 0) + (4 if 1 <= kind < NTR else 0)
        i = 0
        for rp in range(4):
            for mb in range(8):
                for n_, nb in enumerate((2 * rp, 2 * rp + 1) if (mb % 2 == 0 or not SERP) else (2 * rp + 1, 2 * rp)):
                    for k_, kk in enumerate((0, 1) if (n_ == 0 or not SERP) else (1, 0)):
                        w = tr.need({('x', mb), ('w', nb)})
                        if i == GA:
                            tr.q = []
                            if kind == 0 and 'nolen' not in abl:
                                lw = k.newlab('w')
                                k(f"s_waitcnt vmcnt({vm+32}) lgkmcnt(0)\ns_cmp_eq_u32 {s(sFirst)}, 2\ns_cbranch_scc1 {lw}\ns_waitcnt vmcnt({vm})"); k.label(lw)
                            else: k(f"s_waitcnt vmcnt({vm}) lgkmcnt(0)")
                            if WB and kind == 0:
                                lw = k.newlab('w')
                                k(f"s_cmp_lg_u32 {s(sFirst)}, 2\ns_cbranch_scc1 {lw}\ns_waitcnt vmcnt(4)"); k.label(lw)
                        elif w: k(w)
                        A_, B_ = a(fragW(kk, nb), 4), a(fragX(kk, mb), 4)
                        d = r(acc(nb, mb), 0, 4)
                        if swp:
                            A_, B_ = B_, A_
                            d = r(acc(mb, nb), 0, 4)
                        c = "0" if (kind == 0 and k_ == 0) else d
                        k(f"v_mfma_f32_16x16x32_bf16 {d}, {A_}, {B_}, {c}")
                        if i == GA: k("s_barrier")
                        if first.get(i): k(first[i])
                        if i in rd: k(rd[i][1]); tr.issue(rd[i][0])
                        if i in head: k(head[i])
                        for x in vfx.get(i, []): k(x)
                        if i == 127:
                            for tag, ins in tailq[22:]: k(ins)
                        i += 1

    outl = []; hooks = []
    INL = 'noinl' not in abl
    Ltile = k.newlab('tile'); Lepi = k.newlab('epi')
    k.label(Ltile)
    Lsw = k.newlab('swp')
    k(f"s_mov_b32 {s(sCnt)}, {s(CP['nk'])}")
    k(f"s_cmp_eq_u32 {s(CP['swp'])}, 1\ns_cbranch_scc1 {Lsw}")
    for swp in (0, 1):
        if swp: k.label(Lsw)
        for kind in range(NTR):
            body(swp, kind)
            if kind in ((0, 2) if WB else (1,)):
                Lh = k.newlab('hook'); Lhr = k.newlab('hookr')
                k(f"s_cmp_eq_u32 {s(sFirst)}, 2\ns_cbranch_scc1 {Lh}"); k.label(Lhr)
                hooks.append((Lh, Lhr, kind))
        Lloop = k.newlab('loop'); Lsw2 = k.newlab('dosw')
        align()
        k.label(Lloop)
        outl.append((Lsw2, Lloop))
        body(swp, NTR)
        if INL:
            k(f"s_cbranch_scc1 {Lloop}\ns_cmp_eq_u32 {s(sCnt)}, 0\ns_cbranch_scc1 {Lepi}")
            k.lines.append(f"@@{Lsw2}")
        else:
            k(f"s_cbranch_scc1 {Lloop}\ns_cmp_lg_u32 {s(sCnt)}, 0\ns_cbranch_scc1 {Lsw2}")
            if not swp: k(f"s_branch {Lepi}")
    k.label(Lepi)
    Lepf = k.newlab('epf'); Leps = k.newlab('eps'); Llast = k.newlab('last'); Lp = k.newlab('ptype'); Linit = k.newlab('init'); Lkv = k.newlab('kvl')
    k(f"s_cmp_eq_u32 {s(sHasNext)}, 0\ns_cbranch_scc1 {Llast}")
    ST.stamp(4)
    tok_get()
    Lq1 = k.newlab('q1')
    if 'qtr' not in abl:
        Lq0 = k.newlab('q0')
        k(f"s_cmp_ge_u32 {s(sIdx)}, 16\ns_cbranch_scc1 {Lq0}")
        k(f"s_call_b64 {s(sRe,2)}, {Lepf}\ns_mov_b32 {s(sPend)}, {s(CP['flag'])}\ns_mov_b32 {s(sFirst)}, 2")
        ST.stamp(5)
        k(f"s_branch {Lq1}")
        k.label(Lq0)
    k(f"s_call_b64 {s(sRe,2)}, {Leps}")
    ST.stamp(5)
    k(f"s_mov_b32 {s(sPend)}, {s(CP['flag'])}\ns_add_u32 {s(gSa)}, {s(CP['obase'])}, {s(CP['Si'])}\ns_mov_b32 {s(gSb)}, {s(gSa)}\ns_mov_b32 {s(gSi)}, {s(CP['Si'])}\ns_mov_b32 {s(gSj)}, {s(CP['Sj'])}\ns_mov_b32 {s(gS+2)}, {WS_SIZE}")
    k.label(Lq1)
    dbgmax(10)
    act_comp(P1)
    k(f"s_sub_u32 {s(sEvT)}, {s(CP['nk'])}, 5\ns_max_u32 {s(sEvT)}, {s(sEvT)}, 4\ns_mov_b32 {s(sHasNext)}, 0\ns_branch {Ltile}")
    k.label(Llast)
    ST.stamp(6)
    k.label(Lkv)
    dbgmax(12, True)
    k("s_waitcnt lgkmcnt(0)")
    QL = 'qlate' in abl; QS = 'noqs' not in abl
    if QL:
        k("s_waitcnt vmcnt(16)")
        early_check('q'); q_loads((0, 1, 2, 3))
    save = k.lines; k.lines = []
    for Lh, Lhr, kind in hooks:
        k.label(Lh)
        if kind == 0:
            k(f"s_cmp_lg_u32 {s(sw)}, 0\ns_cbranch_scc1 {Lhr}\nbuffer_wbl2 sc1\ns_branch {Lhr}")
            continue
        publish(sPend)
        k(f"s_mov_b32 {s(sPend)}, -1\ns_branch {Lhr}")
    def either(fn, fp):
        la = k.newlab('ea'); lb = k.newlab('eb')
        k(f"s_cmp_eq_u32 {s(sIsP)}, 1\ns_cbranch_scc1 {la}")
        fn()
        k.label(lb)
        alt.append((la, lb, fp))
    alt = []
    for Lsw2, Lns in outl:
        k.label(Lsw2)
        l_last = k.newlab('x'); l4 = k.newlab('x'); l3 = k.newlab('x'); l2 = k.newlab('x'); l1 = k.newlab('x'); l_p = k.newlab('x'); l_w = k.newlab('x')
        k(f"s_cmp_eq_u32 {s(sHasNext)}, 0\ns_cbranch_scc1 {l_last}")
        k(f"s_cmp_lg_u32 {s(sCnt)}, 3\ns_cbranch_scc1 {l_w}")
        act_load(P1, which="x")
        k(f"{tok_load}\ns_branch {Lns}")
        k.label(l_w)
        act_load(P1, which="w")
        k(f"s_mov_b32 {s(sEvT)}, 0\ns_branch {Lns}")
        k.label(l_last)
        k(f"s_cmp_le_u32 {s(sCnt)}, 4\ns_cbranch_scc1 {l4}")
        if 'lp' in abl: ST.stamp(10)
        publish(sPend)
        k(f"s_mov_b32 {s(sPend)}, -1\ns_mov_b32 {s(sEvT)}, 4\ns_branch {Lns}")
        k.label(l4)
        k(f"s_cmp_lg_u32 {s(sCnt)}, 4\ns_cbranch_scc1 {l3}")
        if 'lp' in abl: ST.stamp(11)
        either(lambda: early_load(), lambda: early_load('kv'))
        if 'cpf2' in abl:
            k(f"s_sub_u32 {s(t1)}, {s(sIdx)}, 16\ns_cmp_ge_u32 {s(t1)}, 3\ns_cbranch_scc1 {Lns}\ns_lshl_b32 {s(t1)}, {s(t1)}, 2\ns_add_u32 {s(t1)}, {s(t1)}, {s(sw)}")
            code_prefetch(k, sEx, name, name + "_end", t1, vLane, T, vDum, t0)
        k(f"s_branch {Lns}")
        k.label(l3)
        k(f"s_waitcnt vmcnt(16)\ns_cmp_lg_u32 {s(sCnt)}, 3\ns_cbranch_scc1 {l2}")
        either(lambda: (early_check('all'), q_loads((0, 1, 2, 3), range(0, 6))), lambda: early_check('kv'))
        kv_cursor(sXoff, srdX, 0)
        for i in range(2): k(f"v_mov_b32 {v(vX+i)}, {v(vSt)}")
        k(f"s_branch {Lns}")
        k.label(l2)
        k(f"s_cmp_lg_u32 {s(sCnt)}, 2\ns_cbranch_scc1 {l1}")
        either(lambda: q_loads((0, 1, 2, 3), range(6, 11)), lambda: early_load('q'))
        kv_cursor(sXoff, srdX, 1); kv_cursor(sWoff, srdW, 3)
        for i in range(4): k(f"v_mov_b32 {v(vW+i)}, {v(vSt)}")
        k(f"s_branch {Lns}")
        k.label(l1)
        either(lambda: q_loads((0, 1, 2, 3), range(11, 16)), lambda: (early_check('q'), q_loads((0, 1, 2, 3))))
        kv_cursor(sXoff, srdX, 2); kv_cursor(sWoff, srdW, 4)
        k(f"s_branch {Lns}")
        for la, lb, fp in alt:
            k.label(la); fp(); k(f"s_branch {lb}")
        alt.clear()
    k.label(Leps)
    Lns3 = k.newlab('ns3')
    k("s_nop 3")
    for scaled in (0,):
        k(f"s_mov_b32 {s(t0)}, {s(CP['obase'])}")
        for p_ in range(32):
            sp = acc(2 * (p_ >> 3), p_ & 7)
            if sp[0] == 'a':
                for i in range(8): k(f"v_accvgpr_read_b32 {v(vT+i)}, {a(sp[1]+i)}")
                b = vT
            else:
                b = sp[1]
            if scaled:
                for i in range(0, 8, 2): k(f"v_pk_mul_f32 {v(b+i,2)}, {v(b+i,2)}, {s(t2,2)}")
            for i in range(4): k(f"v_cvt_pk_bf16_f32 {v(b+i)}, {v(b+2*i)}, {v(b+2*i+1)}")
            if p_ < 8: k(f"buffer_store_dwordx4 {v(b,4)}, {v(vSt)}, {s(srdO,4)}, {s(t0)} offen{sfx}\ns_add_u32 {s(t0)}, {s(t0)}, {s(CP['Sj'])}")
            else:
                for i in range(4): k(f"v_accvgpr_write_b32 {a(STASH + 4*(p_-8) + i)}, {v(b+i)}")
        k(f"s_setpc_b64 {s(sRe,2)}")
    k.label(Lepf)
    Lnoscale = k.newlab('noscale')
    k("s_nop 7")
    for scaled in (1,):
        k(f"s_mov_b32 {s(t1)}, {s(CP['obase'])}\ns_mov_b32 {s(t2)}, {s(CP['scale'])}\ns_mov_b32 {s(t3)}, {s(CP['scale'])}")
        for e in range(4):
            k(f"s_mov_b32 {s(t0)}, {s(t1)}")
            for j in range(8):
                sp = acc(2 * e, j)
                if sp[0] == 'a':
                    for i in range(8): k(f"v_accvgpr_read_b32 {v(vT+i)}, {a(sp[1]+i)}")
                    b = vT
                else:
                    b = sp[1]
                if scaled:
                    for i in range(0, 8, 2): k(f"v_pk_mul_f32 {v(b+i,2)}, {v(b+i,2)}, {s(t2,2)}")
                for i in range(4):
                    k(f"v_cvt_pk_bf16_f32 {v(b+i)}, {v(b+2*i)}, {v(b+2*i+1)}")
                k(f"buffer_store_dwordx4 {v(b,4)}, {v(vSt)}, {s(srdO,4)}, {s(t0)} offen{'' if (scaled and WB) else sfx}")
                k(f"s_add_u32 {s(t0)}, {s(t0)}, {s(CP['Sj'])}")
                if sp[0] == 'a': k("s_nop 1")
            k(f"s_add_u32 {s(t1)}, {s(t1)}, {s(CP['Si'])}")
        k(f"s_setpc_b64 {s(sRe,2)}")
    Lepl = k.newlab('epl')
    k.label(Lepl)
    SORD = list(range(20, 32)) + list(range(16, 20))
    MIX = 'nomix' not in abl
    Lns2 = k.newlab('ns2')
    k(f"s_mov_b32 {s(t2)}, {s(CP['scale'])}\ns_mov_b32 {s(t3)}, {s(CP['scale'])}\ns_cmp_eq_u32 {s(CP['scale'])}, 0\ns_cbranch_scc1 {Lns2}")
    for scaled in (1, 0):
        if not scaled: k.label(Lns2)
        k(f"s_mov_b32 {s(t0)}, {s(CP['obase'])}")
        for p_ in ([x for pr in zip(range(16), SORD) for x in pr] if MIX else list(range(16)) + SORD):
            e, j = p_ >> 3, p_ & 7
            sp = acc(2 * e, j)
            if sp[0] == 'a':
                for i in range(8): k(f"v_accvgpr_read_b32 {v(vT+i)}, {a(sp[1]+i)}")
                b = vT
            else:
                b = sp[1]
            if scaled:
                for i in range(0, 8, 2): k(f"v_pk_mul_f32 {v(b+i,2)}, {v(b+i,2)}, {s(t2,2)}")
            d = b if p_ < 16 else 192 + 4 * SORD.index(p_)
            for i in range(4):
                k(f"v_cvt_pk_bf16_f32 {v(d+i)}, {v(b+2*i)}, {v(b+2*i+1)}")
            if p_ < 16:
                k(f"buffer_store_dwordx4 {v(b,4)}, {v(vSt)}, {s(srdO,4)}, {s(t0)} offen{sfx}")
                k(f"s_add_u32 {s(t0)}, {s(t0)}, {s(CP['Sj'])}" if p_ != 7 else f"s_add_u32 {s(t0)}, {s(CP['obase'])}, {s(CP['Si'])}")
                if MIX:
                    for i in range(8): k(f"v_accvgpr_write_b32 {a(8*p_+i)}, 0")
        k(f"s_setpc_b64 {s(sRe,2)}")
    ool = k.lines; k.lines = save

    S_ = Regs('s', 24, 90)
    srdK = S_.alloc('srdK', 4, 4); srdV = S_.alloc('srdV', 4, 4)
    sh = S_.alloc('h'); snA = S_.alloc('na'); snB = S_.alloc('nb'); srdS = S_.alloc('srdS', 4, 4); sSa = S_.alloc('sa'); srdF = S_.alloc('srdF', 4, 4); sPw = S_.alloc('pw', 4, 2); sL2 = S_.alloc('l2'); sPB = S_.alloc('pb'); sPf = CP['flag']; sOut = S_.alloc('out', 2, 2)
    sKo = S_.alloc('ko'); sVo = S_.alloc('vo')
    sC1 = S_.alloc('c1'); sMK = S_.alloc('mk'); sW4 = S_.alloc('w4')
    sVis = S_.alloc('vis', 2, 2); sAbs = S_.alloc('abs'); sThr = S_.alloc('thr'); sThC = S_.alloc('thc')
    sE = S_.alloc('e', 6)
    sRa = S_.alloc('ra', 2, 2); sM0 = S_.alloc('m0', 2, 2)
    sQ = S_.alloc('qoff', 2); sLo = S_.alloc('lo', 3)
    V = Regs('v', 6, 64)
    vKV = V.alloc('kv'); vDma = V.alloc('dma'); vChk = V.alloc('chk'); vNinf = V.alloc('ninf'); vFo = V.alloc('fo'); vFx = V.alloc('fx')
    vL = V.alloc('l', 4, 4); vTB = V.alloc('tb', 4)
    vE = V.alloc('e', 8, 4); vTS = V.alloc('ts', 16, 4); vOne = V.alloc('one', 4, 4)
    def TS(qt): return vTS + 4 * qt
    vT = V.alloc('t', 16, 4)
    def Sreg(par, qt): return 64 + par * 32 + qt * 8
    def Preg(par, qt): return 128 + par * 16 + qt * 4
    def Nreg(qt): return 160 + qt * 8
    def Oreg(qt, db): return qt * 32 + db * 4
    def KF(n): return 192 + n * 4
    def VF(n): return 224 + n * 4
    T = vT; vDm2 = 255
    AB = (0, 1, 2, 3); A_ = (0, 1)
    MF = "v_mfma_f32_16x16x32_bf16"
    def xlane(regs, tmps, op):
        for sw_ in ("v_permlane32_swap_b32", "v_permlane16_swap_b32"):
            for x, y in zip(regs, tmps): k(f"v_mov_b32 {v(y)}, {v(x)}")
            k("s_nop 1")
            for x, y in zip(regs, tmps): k(f"{sw_} {v(x)}, {v(y)}")
            k("s_nop 1")
            for x, y in zip(regs, tmps): k(f"{op} {v(x)}, {v(x)}, {v(y)}")

    LQ, LK, LV = 192, 208, 228
    sLa = S_.alloc('la', 7)
    def local_setup():
        k(f"s_and_b32 {s(t0)}, s2, 7\ns_lshl_b32 {s(t0)}, {s(t0)}, 4\ns_lshl_b32 {s(t1)}, {s(sw)}, 2\ns_add_u32 {s(sLo)}, {s(t0)}, {s(t1)}")
        k(f"s_lshr_b32 {s(t2)}, s2, 3\ns_lshl_b32 {s(t2)}, {s(t2)}, 17")
        k(f"s_lshl_b32 {s(t0)}, {s(sLo)}, 10\ns_add_u32 {s(t0)}, {s(t0)}, {s(t2)}\ns_add_u32 {s(sLa)}, {s(t0)}, {WS_QA}\ns_add_u32 {s(sLa+1)}, {s(t0)}, {WS_KA}")
        k(f"s_and_b32 {s(sLo+1)}, {s(sLo)}, 63\ns_cmp_eq_u32 {s(sLo+1)}, 0\ns_cselect_b32 {s(t3)}, 0, 1024\ns_sub_u32 {s(sLa+2)}, {s(sLa+1)}, {s(t3)}")
        k(f"s_lshl_b32 {s(t0)}, {s(sLo)}, 9\ns_add_u32 {s(t0)}, {s(t0)}, {s(t2)}\ns_add_u32 {s(sLa+3)}, {s(t0)}, {WS_VA}\ns_sub_u32 {s(sLa+4)}, {s(sLa+3)}, {s(t3)}")
        k(f"s_add_u32 {s(sLa+5)}, {s(sLa+3)}, 65536\ns_add_u32 {s(sLa+6)}, {s(sLa+4)}, 65536")
    def local_loads():
        def ld(dst, so, off): return (None, f"buffer_load_dwordx4 {v(dst,4)}, {v(vL16)}, {s(srdO,4)}, {s(so)} offen offset:{off} sc1", None)
        o = [ld(LQ+4*j, sLa, j*1024) for j in range(4)] + [ld(LK+4+4*j, sLa+1, j*1024) for j in range(4)] + [ld(LK, sLa+2, 0)]
        for db in range(2):
            o += [ld(LV+12*db+4+4*j, sLa+3+2*db, j*1024) for j in range(2)] + [ld(LV+12*db, sLa+4+2*db, 0)]
        return o
    C0, C1, CZ, Mx, My, Sb, Ts = 128, 132, 136, 140, 144, 148, 20
    def local_pre():
        k(f"v_and_b32 {v(T)}, 15, {v(vLane)}\nv_lshrrev_b32 {v(T+1)}, 4, {v(vLane)}\nv_lshlrev_b32 {v(T+1)}, 2, {v(T+1)}\nv_sub_u32 {v(T)}, {v(T)}, {v(T+1)}")
        for r_ in range(4):
            k(f"v_cmp_ge_i32 vcc, {r_-9}, {v(T)}\nv_subrev_u32 {v(T+2)}, {r_}, {v(T)}\nv_cmp_ge_u32 {s(sM0,2)}, 7, {v(T+2)}\ns_nop 0")
            k(f"v_cndmask_b32 {v(C0+r_)}, {v(vNinf)}, 0, vcc\nv_cndmask_b32 {v(C1+r_)}, {v(vNinf)}, 0, {s(sM0,2)}")
        k(f"s_cmp_eq_u32 {s(sLo+1)}, 0\ns_cselect_b64 vcc, -1, 0\ns_nop 0")
        for r_ in range(4): k(f"v_cndmask_b32 {v(CZ+r_)}, {v(C0+r_)}, {v(vNinf)}, vcc")
        k(f"s_lshl_b32 {s(t0)}, {s(sLo)}, 10\ns_lshr_b32 {s(t1)}, s2, 3\ns_lshl_b32 {s(t1)}, {s(t1)}, 17\ns_add_u32 {s(t0)}, {s(t0)}, {s(t1)}\ns_add_u32 {s(sLo)}, {s(t0)}, {WS_OA}")
    def local_stream():
        save_ = k.lines; k.lines = []
        U = range(4); PB = LQ
        for u in U:
            k(f"{MF} {v(Sb+8*u,4)}, {v(LK+4*u,4)}, {v(LQ+4*u,4)}, {v(CZ if u == 0 else C0,4)}")
            k(f"{MF} {v(Sb+8*u+4,4)}, {v(LK+4*u+4,4)}, {v(LQ+4*u,4)}, {v(C1,4)}")
        for _ in range(4): k("s_nop 1")
        for u in U: k(f"v_max3_f32 {v(Mx+u)}, {v(Sb+8*u)}, {v(Sb+8*u+1)}, {v(Sb+8*u+2)}")
        for u in U: k(f"v_max3_f32 {v(Mx+u)}, {v(Mx+u)}, {v(Sb+8*u+3)}, {v(Sb+8*u+4)}")
        for u in U: k(f"v_max3_f32 {v(Mx+u)}, {v(Mx+u)}, {v(Sb+8*u+5)}, {v(Sb+8*u+6)}")
        for u in U: k(f"v_max_f32 {v(Mx+u)}, {v(Mx+u)}, {v(Sb+8*u+7)}")
        xlane([Mx + u for u in U], [My + u for u in U], "v_max_f32")
        for u in U:
            for i in range(8): k(f"v_sub_f32 {v(Sb+8*u+i)}, {v(Sb+8*u+i)}, {v(Mx+u)}")
        for u in U:
            for i in range(8): k(f"v_exp_f32 {v(Sb+8*u+i)}, {v(Sb+8*u+i)}")
        for u in U:
            for i in range(4): k(f"v_cvt_pk_bf16_f32 {v(PB+4*u+i)}, {v(Sb+8*u+2*i)}, {v(Sb+8*u+2*i+1)}")
        k("s_nop 1")
        for u in U: k(f"{MF} {v(Ts+4*u,4)}, {v(vOne,4)}, {v(PB+4*u,4)}, 0")
        for u in U:
            for db in range(2): k(f"{MF} {v(Sb+8*u+4*db,4)}, {v(LV+12*db+2+2*u,4)}, {v(PB+4*u,4)}, 0")
        for u in U: k(f"v_rcp_f32 {v(Mx+u)}, {v(Ts+4*u)}")
        k("s_nop 1\ns_nop 1")
        for u in U:
            for i in range(8): k(f"v_mul_f32 {v(Sb+8*u+i)}, {v(Sb+8*u+i)}, {v(Mx+u)}")
            for i in range(4): k(f"v_cvt_pk_bf16_f32 {v(Sb+8*u+i)}, {v(Sb+8*u+2*i)}, {v(Sb+8*u+2*i+1)}")
            k(f"buffer_store_dwordx4 {v(Sb+8*u,4)}, {v(vL16)}, {s(srdO,4)}, {s(sLo)} offen offset:{u*1024}{sfx}")
        out = [x.strip() for x in k.lines]; k.lines = save_
        return out

    INI = []; k.collect = INI
    head_ids()
    k(f"s_mov_b32 {s(sh)}, {s(t2)}\ns_bfe_u32 {s(snA)}, {TABA}, {s(t3)}\ns_add_u32 {s(snA)}, {s(snA)}, 1\ns_bfe_u32 {s(snB)}, {TABB}, {s(t3)}\ns_add_u32 {s(snB)}, {s(snB)}, 1")
    k(f"s_lshl_b32 {s(sW4)}, {s(sw)}, 12\nv_add_u32 {v(vDma)}, {s(sW4)}, {v(vL16)}")
    k(f"s_lshl_b32 {s(t0)}, {s(snB)}, 2\ns_lshl_b32 {s(t1)}, {s(snA)}, 2\ns_lshl_b32 {s(srdK+2)}, {s(t1)}, 13\ns_mov_b32 {s(srdV+2)}, {s(srdK+2)}")
    k(f"s_sub_u32 {s(sE)}, {s(t0)}, 4\ns_add_u32 {s(sE)}, {s(sE)}, {s(sw)}\ns_add_u32 {s(sE+1)}, {s(sE)}, 1\ns_mov_b32 {s(sE+2)}, {s(t0)}")
    k(f"s_sub_u32 {s(sE+3)}, {s(t1)}, 4\ns_add_u32 {s(sE+3)}, {s(sE+3)}, {s(sw)}\ns_add_u32 {s(sE+4)}, {s(sE+3)}, 1\ns_mov_b32 {s(sE+5)}, {s(t1)}")
    EEX = 'noeex' not in abl
    if EEX: k(f"s_cmp_lt_u32 {s(sw)}, 2\ns_cselect_b32 {s(t0)}, 2, 0\ns_sub_u32 {s(sE+5)}, {s(sE+5)}, {s(t0)}")
    k(f"s_mov_b32 {s(srdK+3)}, 0x20000\ns_mov_b32 {s(srdV+3)}, 0x20000\ns_lshl_b32 {s(sLo+2)}, {s(sh)}, 19")
    k(f"s_add_u32 {s(t0)}, {s(sLo+2)}, {WS_KB}\ns_add_u32 {s(srdK)}, {s(sWS)}, {s(t0)}\ns_addc_u32 {s(srdK+1)}, {s(sWS+1)}, 0")
    k(f"s_add_u32 {s(t0)}, {s(sLo+2)}, {WS_VB}\ns_add_u32 {s(srdV)}, {s(sWS)}, {s(t0)}\ns_addc_u32 {s(srdV+1)}, {s(sWS+1)}, 0")
    def dmaK(j): return f"buffer_load_dwordx4 {v(vDma)}, {s(srdK,4)}, {s(sKo)} offen offset:{j*1024}{ksc} lds"
    def dmaV(j): return f"buffer_load_dwordx4 {v(vDma)}, {s(srdV,4)}, {s(sVo)} offen offset:{j*1024}{ksc} lds"
    def dma_group():
        g = [(f"s_mov_b32 m0, {s(sMK)}", dmaK(0), None), (None, dmaK(1), None), (None, dmaK(2), None), (None, dmaK(3), f"s_add_u32 {s(sKo)}, {s(sKo)}, {STG}"),
             (f"s_add_u32 m0, {s(sMK)}, {STG}", dmaV(0), None), (None, dmaV(1), None), (None, dmaV(2), None), (None, dmaV(3), f"s_add_u32 {s(sVo)}, {s(sVo)}, {STG}")]
        return g
    def emit_group(items):
        for pre, ins, post in items:
            if pre: k(pre + "\ns_nop 0")
            k(ins)
            if post: k(post)
    k.collect = None
    ST.stamp(7)
    k(f"v_mov_b32 {v(vKV)}, {v(vL16)}")
    for a_ in range(8): k(f"ds_read_b128 {a(KF(a_),4)}, {v(vKV)} offset:{a_*1024}")
    k(f"s_load_dwordx2 {s(sPw,2)}, s[0:1], {KARG['B_w_o']}\ns_load_dwordx2 {s(sPw+2,2)}, s[0:1], {KARG['A_wo']}\ns_load_dwordx2 {s(sOut,2)}, s[0:1], {KARG['out']}\ns_mov_b32 {s(srdF+3)}, 0x20000")
    k(f"s_call_b64 {s(sRe,2)}, {Lepl}\ns_mov_b32 {s(sPend)}, {s(CP['flag'])}\ns_mov_b32 {s(srdS+2)}, {WS_SIZE}")
    k.label(Linit)
    ST.stamp(10) if 'lp' not in abl else None
    k(f"s_mov_b32 {s(srdS)}, {s(sWS)}\ns_mov_b32 {s(srdS+1)}, {s(sWS+1)}\ns_mov_b32 {s(srdS+3)}, 0x20000")
    k(f"s_lshl_b32 {s(t0)}, {s(CP['Si'])}, 1\ns_add_u32 {s(CP['obase'])}, {s(CP['obase'])}, {s(t0)}\ns_lshl_b32 {s(t0)}, {s(CP['Sj'])}, 2\ns_add_u32 {s(sSa)}, {s(CP['obase'])}, {s(t0)}")
    k.collect = INI
    k(f"s_mov_b32 {s(sKo)}, {5*STG}\ns_mov_b32 {s(sVo)}, {4*STG}")
    k(f"v_mov_b32 {v(vNinf)}, 0xff800000\ns_mov_b32 {s(sThr)}, {f32bits(THR)}")
    k(f"s_lshl_b32 {s(t1)}, {s(sw)}, 1\ns_sub_u32 {s(t1)}, {s(t1)}, 8")
    k(f"s_lshl_b32 {s(sQ)}, {s(snA)}, 3\ns_add_u32 {s(sQ)}, {s(sQ)}, {s(t1)}\ns_lshl_b32 {s(sQ+1)}, {s(snB)}, 3\ns_add_u32 {s(sQ+1)}, {s(sQ+1)}, {s(t1)}")
    def stash_item(m):
        post = f"s_add_u32 {s(sSa)}, {s(sSa)}, {s(CP['Sj'])}"
        if m == 3: post = f"s_add_u32 {s(sSa)}, {s(CP['obase'])}, {s(CP['Si'])}"
        if m == 11: post = f"s_mov_b32 {s(sSa)}, {s(CP['obase'])}"
        return (None, f"buffer_store_dwordx4 {v(192+4*m,4)}, {v(vL16)}, {s(srdS,4)}, {s(sSa)} offen{sfx}", post)
    k(f"s_lshr_b32 {s(t0)}, {s(sh)}, 1\ns_lshl_b32 {s(t0)}, {s(t0)}, 7\ns_add_u32 {s(t0)}, {s(t0)}, {WS_FLAG + 32*128}\ns_lshr_b32 {s(t1)}, s2, 6\ns_lshl_b32 {s(t1)}, {s(t1)}, 8\ns_add_u32 {s(t1)}, {s(t1)}, {WS_FLAG + 48*128 - 64}")
    k(f"v_min_u32 {v(vFo)}, 31, {v(vLane)}\nv_lshlrev_b32 {v(vFo)}, 3, {v(vFo)}\nv_mov_b32 {v(vFx)}, {s(t0)}\nv_mov_b32 {v(vChk)}, {s(t1)}\nv_cmp_gt_u32 vcc, 8, {v(vLane)}\ns_nop 1\nv_cndmask_b32 {v(vFx)}, {v(vChk)}, {v(vFx)}, vcc\nv_add_u32 {v(vFo)}, {v(vFo)}, {v(vFx)}")
    if False:
        Lc3 = k.newlab('c3')
        k(f"s_lshl_b32 {s(t0)}, {s(sw)}, 8\ns_add_u32 {s(t0)}, {s(t0)}, s2\ns_cmp_ge_u32 {s(t0)}, 128\ns_cbranch_scc1 {Lc3}\ns_lshl_b32 {s(t0)}, {s(t0)}, 7\ns_add_u32 {s(t0)}, {s(t0)}, {WS_FLAG3}\nv_mov_b32 {v(vChk)}, 0\ns_mov_b64 exec, 1")
        k(f"buffer_store_dword {v(vChk)}, off, {s(srdO,4)}, {s(t0)} sc1\ns_mov_b64 exec, -1")
        k.label(Lc3)
    k(f"s_mov_b32 {s(sC1)}, 0")
    ZI = 80
    zrest = []
    if not MIX:
        for i in range(ZI): k(f"v_accvgpr_write_b32 {a(i)}, 0")
        zrest = [f"v_accvgpr_write_b32 {a(i)}, 0" for i in range(ZI, 128)]
    for i in range(4): k(f"v_mov_b32 {v(vL+i)}, 0\nv_mov_b32 {v(TS(i))}, 0\nv_mov_b32 {v(vOne+i)}, 0x3f803f80")
    def l2w():
        k(f"v_lshrrev_b32 {v(T+14)}, 3, {v(vLane)}\nv_lshlrev_b32 {v(T+14)}, 11, {v(T+14)}\nv_and_b32 {v(T+13)}, 7, {v(vLane)}\nv_lshl_add_u32 {v(T+14)}, {v(T+13)}, 7, {v(T+14)}")
        k(f"s_lshr_b32 {s(t0)}, s2, 3\ns_lshl_b32 {s(t0)}, {s(t0)}, 2\ns_add_u32 {s(t0)}, {s(t0)}, {s(sw)}\ns_lshl_b32 {s(t0)}, {s(t0)}, 14\ns_and_b32 {s(t1)}, s2, 1\ns_lshl_b32 {s(t1)}, {s(t1)}, 10\ns_add_u32 {s(t0)}, {s(t0)}, {s(t1)}")
        k(f"s_bitcmp1_b32 s2, 2\ns_cselect_b32 {s(t1)}, 0, {41*64*2048}\ns_mov_b32 {s(t2)}, {8*MB}\ns_cselect_b32 {s(srdF+2)}, {41*64*2048}, {s(t2)}\ns_cselect_b32 {s(t3)}, 0, {2*MB}\ns_add_u32 {s(t1)}, {s(t1)}, {s(t0)}")
        k(f"s_mov_b32 {s(srdF)}, {s(sPw)}\ns_mov_b32 {s(srdF+1)}, {s(sPw+1)}")
        L2W = []
        for r_ in ((2, 1, 0) if 'l2rev' in abl else (0, 1, 2)):
            L2W.append(f"s_add_u32 {s(t2)}, {s(t1)}, {r_*2*MB}\nbuffer_load_dword {v(vDm2)}, {v(T+14)}, {s(srdF,4)}, {s(t2)} offen")
        for x in L2W: k(x)
        k(f"s_mov_b32 {s(srdF)}, {s(sPw+2)}\ns_mov_b32 {s(srdF+1)}, {s(sPw+3)}\ns_mov_b32 {s(srdF+2)}, {s(t3)}\nbuffer_load_dword {v(vDm2)}, {v(T+14)}, {s(srdF,4)}, {s(t0)} offen")
    def events(which):
        for e in which:
            ln = k.newlab('e')
            if e >= 6:
                ln2 = k.newlab('e')
                fl = f"buffer_load_dwordx2 {v(vFlag,2)}, {v(vFo)}, {s(srdO,4)}, 0 offen sc1"
                fl2 = f"s_lshr_b32 {s(t0)}, {s(sh)}, 1\ns_lshl_b32 {s(t0)}, {s(t0)}, 7\ns_add_u32 {s(t0)}, {s(t0)}, {WS_FLAG + 11*8}\nv_min_u32 {v(vFa)}, 1, {v(vLane)}\nv_lshlrev_b32 {v(vFa)}, 5, {v(vFa)}\nbuffer_load_dwordx2 {v(vFlag,2)}, {v(vFa)}, {s(srdO,4)}, {s(t0)} offen sc1"
                def touch(p_, size):
                    if not TOUCH: return
                    k(f"s_mov_b32 {s(srdF)}, {s(p_)}\ns_mov_b32 {s(srdF+1)}, {s(p_+1)}\ns_mov_b32 {s(srdF+2)}, {size}\ns_lshl_b32 {s(t0)}, s2, 2\ns_add_u32 {s(t0)}, {s(t0)}, {s(sw)}\ns_lshl_b32 {s(t0)}, {s(t0)}, 13")
                    k(f"v_lshlrev_b32 {v(T+14)}, 7, {v(vLane)}\nbuffer_load_dword {v(vDm2)}, {v(T+14)}, {s(srdF,4)}, {s(t0)} offen")
                def dtouch(n):
                    lt = k.newlab('t')
                    k(f"s_cmp_ge_u32 s2, 96\ns_cbranch_scc1 {lt}\ns_lshl_b32 {s(t0)}, s2, 2\ns_add_u32 {s(t0)}, {s(t0)}, {s(sw)}\ns_add_u32 {s(t0)}, {s(t0)}, {n*384}\ns_cmp_lt_u32 {s(t0)}, 1024")
                    k(f"s_cselect_b32 {s(srdF)}, {s(sPw)}, {s(sPw+2)}\ns_cselect_b32 {s(srdF+1)}, {s(sPw+1)}, {s(sPw+3)}\ns_mov_b32 {s(t1)}, {2*MB}\ns_cselect_b32 {s(srdF+2)}, {8*MB}, {s(t1)}\ns_and_b32 {s(t0)}, {s(t0)}, 1023\ns_lshl_b32 {s(t0)}, {s(t0)}, 13")
                    k(f"v_lshlrev_b32 {v(T+14)}, 7, {v(vLane)}\nbuffer_load_dword {v(vDm2)}, {v(T+14)}, {s(srdF,4)}, {s(t0)} offen")
                    k.label(lt)
                def cpf3():
                    k(f"s_lshr_b32 {s(t1)}, s2, 3\ns_cmp_ge_u32 {s(t1)}, 3\ns_cbranch_scc1 {ln}\ns_lshl_b32 {s(t1)}, {s(t1)}, 2\ns_add_u32 {s(t1)}, {s(t1)}, {s(sw)}\ns_mov_b64 {s(sM0,2)}, vcc")
                    code_prefetch(k, sEx, name, name + "_end", t1, vLane, T + 14, vDm2, t0)
                    k(f"s_mov_b64 vcc, {s(sM0,2)}")
                def check(load, exp):
                    if 'nochk' in abl: return
                    lsp = k.newlab('spin')
                    k(f"s_waitcnt vmcnt({18 if TOUCH and 'dtouch' not in abl else 16})\ns_mov_b32 s3, {SPIN}")
                    k.label(lsp)
                    k(f"v_cmp_ne_u64 {s(sM0,2)}, {s(sTok,2)}, {v(vFlag,2)}\ns_nop 3\ns_cmp_eq_u64 {s(sM0,2)}, 0\ns_cbranch_scc1 {ln}\ns_sub_u32 s3, s3, 1\ns_cbranch_scc1 {ln}\ns_sleep 32\n{load}\ns_waitcnt vmcnt(0)\ns_branch {lsp}")
                if L2D:
                    k(f"s_cmp_lg_u32 {s(sAbs)}, {s(sL2)}\ns_cbranch_scc1 {ln2}")
                    l2w()
                    k.label(ln2)
                ln3 = k.newlab('e')
                k(f"s_cmp_lg_u32 {s(sAbs)}, {s(sPB)}\ns_cbranch_scc1 {ln3}")
                publish(sPf, T + 12)
                k(f"s_mov_b32 {s(sPf)}, -1")
                k.label(ln3)
                k(f"s_cmp_gt_u32 {s(sAbs)}, {U_CP if 'cpf2' in abl else U_CHK}\ns_cbranch_scc1 {ln}")
                acts = [(U_PUB, None), (U_MID, lambda: check(fl2, None)), (U_POLL, lambda: (k(fl), touch(sPw, 8 * MB))), (U_CHK, lambda: (touch(sPw + 2, 2 * MB), check(fl, v(vFx))))]
                if 'cpf2' in abl: acts.append((U_CP, cpf3))
                if 'dtouch' in abl:
                    acts = [(U_PUB, None), (10, lambda: dtouch(0)), (14, lambda: dtouch(1)), (18, lambda: (dtouch(2), check(fl2, None))), (U_POLL, lambda: (k(fl), dtouch(3))), (U_CHK, lambda: check(fl, None))]
                for u_, f_ in acts:
                    lx = k.newlab('e')
                    k(f"s_cmp_lg_u32 {s(sAbs)}, {u_}\ns_cbranch_scc1 {lx}")
                    if f_ is None:
                        k(fl2)
                        k(f"s_cmp_eq_u32 {s(sPend)}, -1\ns_cbranch_scc1 {ln}")
                        publish(sPend, T + 12)
                    else: f_()
                    k(f"s_branch {ln}")
                    k.label(lx)
                k.label(ln)
                continue
            k(f"s_cmp_lg_u32 {s(sAbs)}, {s(sE+e)}\ns_cbranch_scc1 {ln}")
            lo = 2 if e < 2 else 0
            for r_ in range(4):
                if e in (0, 3):
                    k(f"v_add_f32 {v(Nreg(lo)+r_)}, {v(Nreg(lo)+r_)}, {v(vTB+r_)}\nv_mov_b32 {v(Nreg(lo)+4+r_)}, {v(vNinf)}\nv_add_f32 {v(Nreg(lo+1)+4+r_)}, {v(Nreg(lo+1)+4+r_)}, {v(vTB+r_)}")
                else:
                    k(f"v_mov_b32 {v(Nreg(lo)+r_)}, {v(vNinf)}\nv_mov_b32 {v(Nreg(lo+1)+r_)}, {v(vNinf)}\nv_mov_b32 {v(Nreg(lo+1)+4+r_)}, {v(vNinf)}\nv_mov_b32 {v(Nreg(lo)+4+r_)}, {v(vNinf)}")
            k("s_nop 0")
            k.label(ln)
    Lrs = {(p_, n_): k.newlab(f'rs{p_}{n_}') for p_ in range(2) for n_ in (2, 4)}
    local_setup()
    k(f"v_and_b32 {v(T)}, 15, {v(vLane)}\nv_lshrrev_b32 {v(T+1)}, 4, {v(vLane)}\nv_lshlrev_b32 {v(T+1)}, 2, {v(T+1)}\nv_sub_u32 {v(T)}, {v(T)}, {v(T+1)}")
    for r_ in range(4):
        k(f"v_cmp_le_i32 vcc, {r_}, {v(T)}\ns_nop 1\nv_cndmask_b32 {v(vTB+r_)}, {v(vNinf)}, 0, vcc")
    k(f"s_mov_b32 {s(sVis)}, {sum(1 << (u_-1) for u_ in (U_PUB, U_MID, U_POLL, U_CHK))}\ns_mov_b32 {s(sVis+1)}, 0")
    for e in range(6):
        k(f"s_sub_u32 {s(t0)}, {s(sE+e)}, 1\ns_bitset1_b64 {s(sVis,2)}, {s(t0)}")
    if L2D: k(f"s_sub_u32 {s(sL2)}, {s(sE+5)}, {L2D}\ns_sub_u32 {s(t0)}, {s(sL2)}, 1\ns_bitset1_b64 {s(sVis,2)}, {s(t0)}")
    if 'dtouch' in abl: k(f"s_cmp_lt_u32 s2, 96\ns_cselect_b32 {s(t0)}, {(1 << 9) | (1 << 13)}, 0\ns_or_b32 {s(sVis)}, {s(sVis)}, {s(t0)}")
    if 'cpf2' in abl: k(f"s_cmp_lt_u32 s2, 24\ns_cselect_b32 {s(t0)}, {1 << (U_CP-1)}, 0\ns_or_b32 {s(sVis)}, {s(sVis)}, {s(t0)}")
    k(f"s_add_u32 {s(sPB)}, {s(sE+2)}, 8\ns_sub_u32 {s(t0)}, {s(sPB)}, 1\ns_bitset1_b64 {s(sVis,2)}, {s(t0)}")
    k.collect = None
    k(f"s_waitcnt vmcnt({16 if QL else 32})")
    ST.stamp(11) if 'lp' not in abl else None
    def rdK(unit, a_): return f"ds_read_b128 {a(KF(a_),4)}, {v(vKV)} offset:{unit*8192 + a_*1024}"
    def rdV(unit, n): return f"ds_read_b128 {a(VF(n),4)}, {v(vKV)} offset:{STG + unit*8192 + n*1024}"

    stubs = []; calls = []
    def slow_path(par, sm, evs):
        l1 = k.newlab('sp')
        src = vChk
        k(f"v_cmp_lt_f32 vcc, {s(sThr)}, {v(src)}")
        events(evs)
        st_ = k.newlab('rc')
        k(f"s_cbranch_vccnz {st_}")
        k.label(l1)
        calls.append((st_, l1, Lrs[(par, len(sm))]))

    SERP2 = 'noserp2' not in abl
    def qk_mfmas(par, qk):
        mf = []
        for kb in range(2):
            for qi, qt in enumerate(qk if (kb == 0 or not SERP2) else qk[::-1]):
                for ei, e in enumerate((0, 1, 2, 3) if (qi % 2 == 0 or not SERP2) else (3, 2, 1, 0)):
                    d = v(Sreg(par, qt) + 4 * kb, 4)
                    c = v(Nreg(qt) + 4 * kb, 4) if ei == 0 else d
                    mf.append(f"{MF} {d}, {a(KF(kb*4+e),4)}, {a(Qreg(qt,e),4)}, {c}")
        return mf
    def step(which, qk, sm, pv, dma=(), dgaps=(), last=False, loop=None, evs=(), exit_e=None, vmw=24):
        par = 1 - which
        mf = qk_mfmas(par ^ 1, qk)
        nqk = len(mf)
        for n in range(8):
            for qt in (pv if (n % 2 == 0 or not SERP2) else pv[::-1]):
                d = a(Oreg(qt, n), 4)
                mf.append(f"{MF} {d}, {a(VF(n),4)}, {v(Preg(par ^ 1, qt), 4)}, {d}")
        N = len(mf); npv = N - nqk
        first = {}
        head = {g: [] for g in range(N)}
        tail = {g: [] for g in range(N)}
        before = []; after = []
        bar = which == 1 and not last
        vfix = {}
        dg = list(dgaps)[:len(dma)]
        assert len(dg) == len(dma)
        def place_reads(g, items, stride):
            for x in items:
                while g in dg or head[g]: g += 1
                head[g].append((4, x)); g += stride
            return g
        if pv:
            if nqk: place_reads(1, [rdV(which, n) for n in range(8)], 3 if nqk > 16 else 1)
            else: before += [rdV(which, n) for n in range(8)]
        midw = (f"s_waitcnt vmcnt({vmw}) lgkmcnt(0)" if bar else "s_waitcnt lgkmcnt(0)")
        rot = [f"s_add_u32 {s(sMK)}, {s(sC1)}, {s(sW4)}", f"s_add_u32 {s(sC1)}, {s(sC1)}, {SLOT}", f"s_cmp_ge_u32 {s(sC1)}, {5*SLOT}\ns_cselect_b32 {s(sC1)}, 0, {s(sC1)}"]
        rotv = [f"v_add_u32 {v(vKV)}, {s(sC1)}, {v(vL16)}"]
        nxt = [] if last else [rdK(which ^ 1, a_) for a_ in range(8)]
        for g in dg: first[g] = None
        posts = []
        for (pre, ins, post), g in zip(dma, dg):
            if pre:
                assert g - 1 not in first
                first[g - 1] = pre
            if post: posts.append((g + 1, post))
        def put_first(g, x, limit):
            while g in first and g < limit: g += 1
            assert g < limit, (x, g, limit)
            first[g] = x
            return g
        if npv:
            if nqk:
                assert nqk - 1 not in first
                first[nqk - 1] = midw
            else: before.append(midw)
            g0 = nqk
            if bar:
                head[nqk].append((8, "s_barrier")); first[nqk] = None
                g0 = nqk + 1
                assert not any(p_[0] for p_ in dma)
                g = 0
                for x in rot: g = put_first(g, x, nqk - 2) + 1
                vfix[nqk - 1] = [rotv[0]]
            if nxt:
                place_reads(g0, nxt[:4], 3 if npv > 16 else 2)
                for x, g in zip(nxt[4:], [g for g in range(N - 7, N - 1) if g not in dg][-4:]):
                    assert not head[g]
                    head[g].append((4, x))
                assert N - 1 not in first
                first[N - 1] = "s_waitcnt lgkmcnt(4)"
        else:
            after += [midw] + (["s_barrier"] + rot + rotv if bar else []) + nxt + ["s_waitcnt lgkmcnt(0)"]
        if nqk:
            g = nqk // 2 - 1
            while g in first: g -= 1
            nrd = sum(1 for gg in range(g) for c, t_ in head[gg] if t_ and t_.startswith('ds_read'))
            first[g] = f"s_waitcnt lgkmcnt({nrd})"
        for (pre, ins, post), g in zip(dma, dg): head[g].append((8, ins))
        for g, x in posts: put_first(g, x, N)
        if sm and not last:
            gg = put_first(0, f"s_bitcmp1_b64 {s(sVis,2)}, {s(sAbs)}\ns_cselect_b32 {s(sThC)}, -1.0, {s(sThr)}", N)
            head[gg].insert(0, (4, None))
            put_first(gg + 1, f"s_add_u32 {s(sAbs)}, {s(sAbs)}, 1", N)
        ops = []
        def op(name, pr, cost, ins, deps=(), trans=False): ops.append(dict(id=name, pr=pr, cost=cost, ins=ins, deps=set(deps), trans=trans))
        seq = [(qt, n) for qt in sm for n in range(8)]
        for idx, (qt, n) in enumerate(seq):
            Sq = Sreg(par, qt); Pq = Preg(par, qt)
            if n == 0: op(('l', qt), idx + 3, 4, f"v_add_f32 {v(vL+qt)}, {v(vL+qt)}, {v(TS(qt))}")
            deps = [('c', seq[idx - 8][0], n // 2)] if idx >= 8 else []
            op(('e', qt, n), idx, 8, f"v_exp_f32 {v(vE + n)}, {v(Sq+n)}", deps, True)
            if n & 1: op(('c', qt, n // 2), idx + 1.5, 4, f"v_cvt_pk_bf16_f32 {v(Pq + n//2)}, {v(vE + n-1)}, {v(vE + n)}", [('e', qt, n - 1), ('e', qt, n)])
        thr = sThr if last else sThC
        fin = []
        if len(sm) == 4:
            fin = [f"v_max3_f32 {v(vChk)}, {v(TS(0))}, {v(TS(1))}, {v(TS(2))}", f"v_max_f32 {v(vChk)}, {v(vChk)}, {v(TS(3))}"]
        elif sm:
            fin = [f"v_max_f32 {v(vChk)}, {v(TS(0))}, {v(TS(1))}"]
        if sm: fin.append(f"v_cmp_nge_f32 vcc, {s(thr)}, {v(vChk)}")
        ops.sort(key=lambda o: o['pr'])
        done = set(); lasttrans = None
        fixedc = [sum(x[0] for x in head[g]) + 4 * len(vfix.get(g, [])) for g in range(N)]
        NV = max(N - RESV, 1)
        NG = NV + max(len(sm) - 1, 0)
        tot = sum(o['cost'] for o in ops) + sum(fixedc[:NV])
        for t_ in before: k(t_)
        cum = 0; gi = 0
        pend = list(sm)
        cdone = {}
        lastsum = None
        def nstates(since):
            n = 0
            for ln in k.lines[since:]:
                ln = ln.strip()
                n += int(ln.split()[1]) + 1 if ln.startswith("s_nop") else 1
            return n
        def fill(used, force):
            nonlocal cum, gi, lasttrans
            gi += 1
            target = tot * gi / NG
            while True:
                ready = [o for o in ops if o['id'] not in done and o['deps'] <= done and (o['trans'] or lasttrans not in o['deps'])]
                if not ready:
                    if force and len(done) < len(ops): k("s_nop 0"); lasttrans = None; continue
                    break
                if not force:
                    room = max(CAP - used, 4 * int((target - cum + 2) // 4))
                    if used >= CAP and cum + 2 >= target: break
                    fit = [o for o in ready if o['cost'] <= room]
                    if not fit:
                        if used >= CAP or cum >= target: break
                        fit = ready
                    o = fit[0]
                else: o = ready[0]
                k(o['ins']); done.add(o['id']); used += o['cost']; cum += o['cost']
                lasttrans = o['id'] if o['trans'] else None
                if o['id'][0] == 'c': cdone[o['id'][1]] = len(k.lines)
        def try_sum(force=False):
            nonlocal lastsum, lasttrans
            while pend and all(('c', pend[0], j) in done for j in range(4)) and ('l', pend[0]) in done:
                gap_ = len(k.lines) - cdone[pend[0]]
                if gap_ < 2:
                    if not force: return
                    k(f"s_nop {1 - gap_}")
                qt = pend.pop(0)
                k(f"{MF} {v(TS(qt),4)}, {v(vOne,4)}, {v(Preg(par, qt),4)}, 0"); lasttrans = None
                lastsum = len(k.lines)
                if pend: fill(0, False)
        for g in range(N):
            k(mf[g]); lasttrans = None
            if first.get(g): k(first[g])
            for c, t_ in head[g]:
                if t_: k(t_)
            for t_ in vfix.get(g, []): k(t_)
            cum += fixedc[g]
            if g < NV: fill(fixedc[g], g == NV - 1)
            if g < N - 1: try_sum(force=(g >= NV - 1))
            if fin and not pend and g < N - 1:
                if g == N - 2:
                    gap_ = nstates(lastsum)
                    if gap_ < 8: k(f"s_nop {7 - gap_}")
                    for t_ in fin: k(t_)
                    fin = []
                elif nstates(lastsum) >= 8:
                    for _ in range(min(len(fin), (CAP - fixedc[g]) // 4)): k(fin.pop(0))
                elif k.lines[-1].strip().startswith("v_mfma") and nstates(lastsum) < 8: k("s_nop 2")
                elif fixedc[g] <= 4 and nstates(lastsum) < 8: k("s_nop 0")
        assert len(done) == len(ops) and not pend
        for t_ in after: k(t_)
        after = []
        assert not fin
        if sm:
            if loop:
                k(f"s_cbranch_vccz {loop}")
                slow_path(par, sm, evs)
                k(f"s_cmp_lg_u32 {s(sAbs)}, {s(sE+exit_e)}\ns_cbranch_scc1 {loop}")
            else:
                st_, rt = k.newlab('stub'), k.newlab('ret')
                k(f"s_cbranch_vccnz {st_}"); k.label(rt)
                stubs.append((st_, rt, par, sm, evs))

    def epilogue(st, extra=()):
        extra = list(extra)
        k.c(f"epilogue set {st}")
        R = vE
        for j in range(2): k(f"v_add_f32 {v(R+j)}, {v(vL+2*st+j)}, {v(TS(2*st+j))}")
        k("s_nop 3")
        k(f"v_rcp_f32 {v(R+2)}, {v(R+1)}\nv_rcp_f32 {v(R)}, {v(R)}")
        k(f"s_lshl_b32 {s(t0)}, {s(sQ+st)}, 10\ns_add_u32 {s(t0)}, {s(t0)}, {s(sLo+2)}\ns_add_u32 {s(t0)}, {s(t0)}, {WS_CTX}")
        for e in range(4):
            for j in range(2):
                b = T + 8 * j
                for i in range(8): k(f"v_accvgpr_read_b32 {v(b+i)}, {a(Oreg(2*st+j, 2*e) + i)}")
                for i in range(0, 8, 2): k(f"v_pk_mul_f32 {v(b+i,2)}, {v(b+i,2)}, {v(R+2*j,2)} op_sel_hi:[1,0]")
                for i in range(4): k(f"v_cvt_pk_bf16_f32 {v(b+i)}, {v(b+2*i)}, {v(b+2*i+1)}")
                k(f"buffer_store_dwordx4 {v(b,4)}, {v(vL16)}, {s(srdO,4)}, {s(t0)} offen offset:{j*1024}{sfx}")
                if extra: k(extra.pop(0)[1])
            k(f"s_add_u32 {s(t0)}, {s(t0)}, 131072")
        for x in extra: k(x[1])

    G = dma_group(); LL = local_loads()
    k.c("head")
    k("s_waitcnt lgkmcnt(0)")
    import re as _re
    ini = []
    for txt in INI:
        cur = []
        for ln_ in txt.split("\n"):
            keep = cur and (ln_.startswith(("s_cselect", "s_addc", "v_cndmask", "s_nop")) or cur[-1].startswith(("s_cmp", "v_cmp", "s_nop")) or any(x.startswith("s_cmp") for x in cur) and "s_cselect" in txt[txt.index(ln_):])
            if cur and not keep: ini.append(cur); cur = []
            cur.append(ln_)
        ini.append(cur)
    for i, m_ in enumerate(qk_mfmas(0, AB)):
        k(_re.sub(r", v\[1[6-9]\d:1[6-9]\d\]$", ", 0", m_))
        n_ = 0
        if i % 4 == 1: emit_group([stash_item(i // 4)]); n_ = 3
        if 16 <= i < 20: k(rdK(1, i - 16)); n_ += 1
        while ini and n_ < 4:
            p_ = ini.pop(0); k("\n".join(p_)); n_ += len(p_)
    for a_ in range(4, 8): k(rdK(1, a_))
    for p_ in ini: k("\n".join(p_))
    k(f"s_mov_b32 {s(sAbs)}, 1\ns_nop 3")
    lz = k.newlab('z')
    k(f"s_cmp_lg_u32 {s(sE)}, 0\ns_cbranch_scc1 {lz}")
    for r_ in range(4):
        k(f"v_add_f32 {v(Sreg(0,2)+r_)}, {v(Sreg(0,2)+r_)}, {v(vTB+r_)}\nv_mov_b32 {v(Sreg(0,2)+4+r_)}, {v(vNinf)}\nv_add_f32 {v(Sreg(0,3)+4+r_)}, {v(Sreg(0,3)+4+r_)}, {v(vTB+r_)}")
    k.label(lz)
    for j0, j1, j2 in ((0, 1, 2), (None, 3, 4), (None, 5, 6)):
        for qt in AB: k(f"v_max3_f32 {v(T+qt)}, {v(Sreg(0,qt)) if j0 == 0 else v(T+qt)}, {v(Sreg(0,qt)+j1)}, {v(Sreg(0,qt)+j2)}")
    for qt in AB: k(f"v_max_f32 {v(T+qt)}, {v(T+qt)}, {v(Sreg(0,qt)+7)}")
    xlane([T + q_ for q_ in AB], [T + 4 + q_ for q_ in AB], "v_max_f32")
    for qt in AB:
        k(f"v_sub_f32 {v(Nreg(qt))}, 0, {v(T+qt)}\nv_sub_f32 {v(Nreg(qt)+1)}, 0, {v(T+qt)}")
    for qt in AB:
        for i in range(2, 8, 2): k(f"v_mov_b64 {v(Nreg(qt)+i,2)}, {v(Nreg(qt),2)}")
    for qt in AB:
        for i in range(0, 8, 2): k(f"v_pk_add_f32 {v(Sreg(0,qt)+i,2)}, {v(Sreg(0,qt)+i,2)}, {v(Nreg(qt),2)}")
    events((0, 1))
    k("s_waitcnt lgkmcnt(0)")
    step(1, AB, AB, (), dma=[stash_item(m) for m in range(8, 16)], dgaps=(2, 5, 9, 12, 17, 20, 23, 26), evs=(0, 1), vmw=48)
    ST.stamp(12); dbgmax(2, True)
    Ld = k.newlab('dual'); align(); k.label(Ld)
    step(0, AB, AB, AB, dma=G[:5], dgaps=(5, 18, 27, 43, 52), evs=(0, 1)); step(1, AB, AB, AB, dma=G[5:], dgaps=(6, 18, 27), loop=Ld, evs=(0, 1, 3, 6), exit_e=2)
    step(0, A_, AB, AB, dma=G[:5], dgaps=(3, 11, 21, 31, 41), evs=(3, 4)); step(1, A_, A_, AB, dma=G[5:], dgaps=(3, 8, 13), evs=(3, 4, 6))
    epilogue(1)
    def ctx_flag(dst, sn): k(f"s_lshl_b32 {s(dst)}, {s(sn)}, 5\ns_add_u32 {s(dst)}, {s(dst)}, {s(sh)}\ns_lshl_b32 {s(dst)}, {s(dst)}, 3\ns_add_u32 {s(dst)}, {s(dst)}, {F_CTX - 256}")
    ctx_flag(sPf, snB)
    ST.stamp(13)
    Ls = k.newlab('single'); Lsx = k.newlab('singlex')
    if EEX: k(f"s_cmp_eq_u32 {s(sAbs)}, {s(sE+5)}\ns_cbranch_scc1 {Lsx}")
    align()
    k.label(Ls)
    step(0, A_, A_, A_, dma=G[:5], dgaps=(2, 10, 14, 19, 28), evs=(3, 4)); step(1, A_, A_, A_, dma=G[5:], dgaps=(4, 9, 13), loop=Ls, evs=(3, 4, 6), exit_e=5)
    k.label(Lsx)
    ST.stamp(14); dbgmax(4, True)
    dW = srdK; dO = srdV; dX = srdS
    sIsA = CP['nk']; sMt3 = CP['swp']; sNt3 = CP['scale']; sXd3 = CP['Si']
    sXo = sKo; sWo = sVo; sRd = sC1; sWr = sMK; sDl = sThC; sCn = sAbs; sSl = CP['Sj']; sEv = sE; sLim = sE + 1; sXb = sE + 2; sPo = sE + 3; sOb = sE + 4; sOs = sE + 5
    sXs3 = sL2; swm3 = sPB; swn3 = sSa
    cW = 16
    if 'oldmap' in abl:
        k(f"s_bfe_u32 {s(sIsA)}, s2, 0x10002\ns_xor_b32 {s(sIsA)}, {s(sIsA)}, 1\ns_bitcmp1_b32 s2, 1\ns_cselect_b32 {s(sMt3)}, {s(snA)}, {s(snB)}\ns_sub_u32 {s(sMt3)}, {s(sMt3)}, 1")
    else:
        k(f"s_bfe_u32 {s(sIsA)}, s2, 0x10002\ns_and_b32 {s(t0)}, s2, 7\ns_bitcmp1_b32 0x63, {s(t0)}\ns_cselect_b32 {s(sMt3)}, {s(snA)}, {s(snB)}\ns_sub_u32 {s(sMt3)}, {s(sMt3)}, 1")
    k(f"s_and_b32 {s(t0)}, s2, 1\ns_lshl_b32 {s(t0)}, {s(t0)}, 2\ns_bfe_u32 {s(t1)}, s2, 0x20003\ns_add_u32 {s(sNt3)}, {s(t0)}, {s(t1)}")
    k(f"v_and_b32 {v(vFo)}, 31, {v(vLane)}\nv_lshlrev_b32 {v(vFo)}, 3, {v(vFo)}\ns_lshl_b32 {s(sXs3)}, {s(sMt3)}, 8\ns_add_u32 {s(sXs3)}, {s(sXs3)}, {WS_FLAG + F_CTX}")
    rdy_load = f"buffer_load_dwordx2 {v(vFlag,2)}, {v(vFo)}, {s(srdO,4)}, {s(sXs3)} offen sc1"
    k(rdy_load)
    LLATE = 'llate' in abl
    def xbar():
        k("s_nop 1")
        if EEX:
            lb = k.newlab('xb')
            k(f"s_cmp_ge_u32 {s(sw)}, 2\ns_cbranch_scc1 {lb}\ns_waitcnt vmcnt(24)\ns_barrier")
            k.label(lb)
    if LLATE:
        step(0, (), A_, A_, last=True); k("s_nop 1"); step(1, (), (), A_, last=True)
    else:
        step(0, (), A_, A_, last=True, dma=LL[:7], dgaps=(0, 2, 4, 6, 8, 10, 12)); xbar(); step(1, (), (), A_, last=True, dma=LL[7:], dgaps=(0, 2, 4, 6, 8, 10, 12, 14))
    epilogue(0)
    k(f"s_lshr_b32 {s(swm3)}, {s(sw)}, 1\ns_and_b32 {s(swn3)}, {s(sw)}, 1")
    k(f"s_mul_i32 {s(t0)}, {s(sIsA)}, {NC*64*2048}\ns_lshl_b32 {s(sWo)}, {s(sNt3)}, 8\ns_add_u32 {s(sWo)}, {s(sWo)}, {s(t0)}")
    E_ = vE
    k(f"v_lshrrev_b32 {v(E_)}, 4, {v(vLane)}\ns_lshl_b32 {s(t0)}, {s(sw)}, 4\nv_add_u32 {v(E_+1)}, {s(t0)}, {v(E_)}\nv_lshlrev_b32 {v(E_+1)}, 11, {v(E_+1)}")
    k(f"v_lshlrev_b32 {v(E_)}, 1, {v(E_)}\nv_and_b32 {v(E_+2)}, 15, {v(vLane)}\nv_xor_b32 {v(E_)}, {v(E_)}, {v(E_+2)}")
    for j in range(4):
        k(f"v_xor_b32 {v(E_+2)}, {8*(j&1)}, {v(E_)}\nv_lshl_add_u32 {v(cW+j)}, {v(E_+2)}, 4, {v(E_+1)}")
        if j: k(f"v_add_u32 {v(cW+j)}, {j*(8192-1024)}, {v(cW+j)}")
    k(f"s_mov_b32 {s(dW)}, {s(sPw)}\ns_mov_b32 {s(dW+1)}, {s(sPw+1)}\ns_mov_b32 {s(dW+2)}, {8*MB}\ns_mov_b32 {s(dX+2)}, {WS_SIZE}")
    k(f"s_mov_b32 {s(dO)}, {s(sOut)}\ns_mov_b32 {s(dO+1)}, {s(sOut+1)}\ns_mov_b32 {s(dO+2)}, {2048*2048*2}")
    k(f"s_lshl_b32 {s(t0)}, {s(sMt3)}, 13\ns_lshl_b32 {s(t1)}, {s(swn3)}, 12\ns_add_u32 {s(t0)}, {s(t0)}, {s(t1)}\ns_lshl_b32 {s(t1)}, {s(swm3)}, 17\ns_add_u32 {s(sXb)}, {s(t0)}, {s(t1)}")
    k(f"s_mul_i32 {s(t0)}, {s(sIsA)}, {NC*262144}\ns_add_u32 {s(sXo)}, {s(sXb)}, {s(t0)}\ns_add_u32 {s(sXo)}, {s(sXo)}, {WS_CTX}\ns_add_u32 {s(sXb)}, {s(sXb)}, {WS_OA}")
    def d3x(j): return f"buffer_load_dwordx4 {v(vL16)}, {s(dX,4)}, {s(sXo)} offen offset:{j*1024}{ksc} lds"
    def d3w(j): return f"buffer_load_dwordx4 {v(cW+j)}, {s(dW,4)}, {s(sWo)} offen offset:{j*1024}{wsc} lds"
    def lim_eval():
        k(f"v_cmp_ne_u64 {s(sM0,2)}, {s(sTok,2)}, {v(vFlag,2)}\ns_mul_i32 {s(t1)}, {s(sIsA)}, {NC >> 1}\ns_nop 2\ns_lshr_b32 {s(t0)}, {s(sM0)}, {s(t1)}\ns_ff1_i32_b32 {s(t0)}, {s(t0)}")
        k(f"s_lshl_b32 {s(sLim)}, {s(t0)}, 1\ns_mul_i32 {s(t1)}, {s(sIsA)}, {NC & 1}\ns_sub_i32 {s(sLim)}, {s(sLim)}, {s(t1)}\ns_cmp_lt_i32 {s(t0)}, 0\ns_cselect_b32 {s(sLim)}, 1000, {s(sLim)}")
    def lim_update(sneed):
        Lsp = k.newlab('spin'); Lok = k.newlab('ok')
        k(f"s_mov_b32 s3, {SPIN}")
        k.label(Lsp)
        k(f"{rdy_load}\ns_waitcnt vmcnt(0)")
        lim_eval()
        k(f"s_cmp_gt_i32 {s(sLim)}, {sneed}\ns_cbranch_scc1 {Lok}\ns_sub_u32 s3, s3, 1\ns_cbranch_scc1 {Lok}\ns_sleep 4\ns_branch {Lsp}")
        k.label(Lok)
    def x_pre():
        for st in range(NS3):
            k(f"s_add_u32 m0, {s(sW4)}, {st*SLOT}\ns_nop 0")
            for j in range(4): k(d3x(j))
            k(f"s_add_u32 {s(sXo)}, {s(sXo)}, 262144")
    cx = 6; cw = 12; cSt = 7
    def acc3(nb, mb): return 64 + (((nb >> 1) * 4 + mb) * 2 + (nb & 1)) * 4
    def fX(st, mb): return st * 32 + mb * 4
    def fW(st, nb): return st * 32 + 16 + nb * 4
    PART = 128
    k(f"s_lshl_b32 {s(t0)}, {s(swm3)}, 12\nv_add_u32 {v(cx)}, {s(t0)}, {v(vL16)}")
    k(f"v_lshrrev_b32 {v(T)}, 2, {v(vLane)}\nv_lshlrev_b32 {v(T)}, 8, {v(T)}\nv_and_b32 {v(T+1)}, 3, {v(vLane)}\nv_lshl_add_u32 {v(T)}, {v(T+1)}, 3, {v(T)}\nv_add_u32 {v(T)}, 16384, {v(T)}")
    k(f"v_bfe_u32 {v(T+1)}, {v(vLane)}, 2, 3\ns_lshl_b32 {s(t0)}, {s(swn3)}, 2\nv_xor_b32 {v(T+1)}, {s(t0)}, {v(T+1)}")
    for nb in range(4):
        k(f"v_xor_b32 {v(T+2)}, {nb}, {v(T+1)}\nv_lshl_add_u32 {v(cw+nb)}, {v(T+2)}, 5, {v(T)}")
    k(f"v_and_b32 {v(T)}, 15, {v(vLane)}\nv_lshlrev_b32 {v(T)}, 12, {v(T)}\nv_lshlrev_b32 {v(T)}, {s(sIsA)}, {v(T)}")
    k(f"v_bfe_u32 {v(T+1)}, {v(vLane)}, 4, 1\nv_lshl_add_u32 {v(T)}, {v(T+1)}, 5, {v(T)}\nv_lshrrev_b32 {v(T+1)}, 5, {v(vLane)}\nv_lshl_add_u32 {v(cSt)}, {v(T+1)}, 4, {v(T)}")
    k(f"s_lshl_b32 {s(t0)}, {s(sMt3)}, 3\ns_lshl_b32 {s(t1)}, {s(swm3)}, 2\ns_add_u32 {s(t0)}, {s(t0)}, {s(t1)}")
    k(f"s_lshl_b32 {s(t1)}, {s(t0)}, 16\ns_add_u32 {s(t1)}, {s(t1)}, 2048")
    k(f"s_and_b32 {s(t2)}, {s(t0)}, 63\ns_lshl_b32 {s(t2)}, {s(t2)}, 17\ns_lshr_b32 {s(t3)}, {s(t0)}, 6\ns_lshl_b32 {s(t3)}, {s(t3)}, 12\ns_add_u32 {s(t2)}, {s(t2)}, {s(t3)}")
    k(f"s_cmp_eq_u32 {s(sIsA)}, 1\ns_cselect_b32 {s(sOb)}, {s(t2)}, {s(t1)}\ns_lshl_b32 {s(sOs)}, 0x10000, {s(sIsA)}")
    k(f"s_lshl_b32 {s(t2)}, {s(sNt3)}, 8\ns_lshl_b32 {s(t3)}, {s(swn3)}, 7\ns_add_u32 {s(sOb)}, {s(sOb)}, {s(t2)}\ns_add_u32 {s(sOb)}, {s(sOb)}, {s(t3)}")
    for i in range(0, 64, 2): k(f"v_mov_b64 {v(64+i,2)}, 0")
    local_pre()
    k(f"s_add_u32 {s(sWr)}, {s(sW4)}, {(NS3-1)*SLOT}\ns_mov_b32 {s(sRd)}, 0\ns_mov_b32 {s(sSl)}, {SLOT}\ns_mov_b32 {s(sCn)}, 0\ns_mov_b32 {s(sEv)}, 0")
    k("s_waitcnt vmcnt(0)\ns_barrier")
    ctx_flag(t1, snA); publish(t1, T + 12)
    Lpb = k.newlab('pb'); Lx3 = k.newlab('x3')
    k(f"s_cmp_eq_u32 {s(sPf)}, -1\ns_cbranch_scc1 {Lpb}")
    publish(sPf, T + 12)
    k.label(Lpb)
    ST.stamp(15)
    lim_eval()
    for st in range(NS3 - 1):
        k(f"s_add_u32 m0, {s(sW4)}, {st*SLOT + 16384}\ns_nop 0")
        for j in range(4): k(d3w(j))
        k(f"s_add_u32 {s(sWo)}, {s(sWo)}, {64*2048}")
    k(f"s_cmp_gt_i32 {s(sLim)}, {NS3-1}\ns_cbranch_scc1 {Lx3}")
    lim_update(str(NS3 - 1))
    k.label(Lx3)
    x_pre()
    k("s_waitcnt vmcnt(16)\ns_barrier")
    ST.stamp(2); dbgmax(6, True)
    def reads3(st, kk):
        o = []
        def rx(mb): o.append((('x', st, mb), f"ds_read_b128 {a(fX(st, mb), 4)}, {v(cx)} offset:{mb * 1024 + kk * 8192}"))
        def rw(nb):
            for t_ in range(2):
                o.append((('w', st, nb), f"ds_read_b64_tr_b16 {a(fW(st, nb) + 2 * t_, 2)}, {v(cw + nb)} offset:{(32 * kk + 16 * t_) * 256}"))
        rx(0); rw(0); rx(1); rx(2); rx(3); rw(1); rw(2); rw(3)
        return o
    CH3 = 'ch3' in abl
    if not CH3:
        for tag, ins in reads3(0, 0): k(ins)
    def pstore(b): return f"buffer_store_dwordx4 {v(PART+4*b,4)}, {v(vL16)}, {s(srdO,4)}, {s(sPo)} offen offset:{(b&3)*1024} sc1" + (f"\ns_add_u32 {s(sPo)}, {s(sPo)}, 4096" if b & 3 == 3 else "")
    def body3(stores=(), loop=False, xs=None, per=2, vm3=24):
        tr = LgkmTracker([tag for tag, _ in reads3(0, 0)])
        stores = list(stores)
        for ss in range(2):
            st = ss
            nxt = reads3(st ^ 1, ss ^ 1)
            rd_at = {(1 if ss else 0) + i: x for i, x in enumerate(nxt)}
            first = {}; fill = {g: [] for g in range(16)}
            if ss == 0:
                first[0] = f"s_add_u32 m0, {s(sWr)}, 16384"
                for j, g in enumerate((1, 5, 9, 13)): fill[g].append(d3w(j))
                first[2] = f"s_add_u32 {s(sWr)}, {s(sRd)}, {s(sW4)}"
                first[3] = f"s_add_u32 {s(sRd)}, {s(sRd)}, {SLOT}"
                first[4] = f"s_cmp_ge_u32 {s(sRd)}, {NS3*SLOT}"
                first[6] = f"s_cselect_b32 {s(sDl)}, {-(NS3-1)*SLOT & 0xffffffff}, {s(sSl)}"
                first[7] = f"s_cselect_b32 {s(sRd)}, 0, {s(sRd)}"
                fill[12].append(f"v_add_u32 {v(cx)}, {s(sDl)}, {v(cx)}\nv_add_u32 {v(cw)}, {s(sDl)}, {v(cw)}")
                first[14] = f"s_add_u32 {s(sWo)}, {s(sWo)}, {64*2048}"
                fill[14].append(f"v_add_u32 {v(cw+1)}, {s(sDl)}, {v(cw+1)}\nv_add_u32 {v(cw+2)}, {s(sDl)}, {v(cw+2)}")
                first[15] = f"s_mov_b32 m0, {s(sWr)}"
                fill[15].append(f"v_add_u32 {v(cw+3)}, {s(sDl)}, {v(cw+3)}")
                if stores: fill[11].append(stores.pop(0))
            else:
                for j, g in enumerate((1, 5, 9, 13)): fill[g].append(d3x(j))
                if stores: fill[11].append(stores.pop(0))
                first[12] = f"s_add_u32 {s(sCn)}, {s(sCn)}, 1"
                first[14] = f"s_add_u32 {s(sXo)}, {s(sXo)}, 262144" + (f"\ns_cmp_lt_u32 {s(sCn)}, {s(sEv)}" if loop else "")
            for i in range(16):
                nb, mb = i // 4, i % 4
                if ss == 1 and i == 0:
                    tr.q = []
                    k(f"s_waitcnt vmcnt({vm3}) lgkmcnt(0)")
                w = tr.need({('x', st, mb), ('w', st, nb)})
                if w: k(w)
                d = v(acc3(nb, mb), 4)
                k(f"{MF} {d}, {a(fW(st, nb), 4)}, {a(fX(st, mb), 4)}, {d}")
                if ss == 1 and i == 0: k("s_barrier")
                if i in first: k(first[i])
                if i in rd_at:
                    tag, ins = rd_at[i]; k(ins); tr.issue(tag)
                for x in fill[i]: k(x)
                if xs:
                    for _ in range(per if not fill[i] else 1):
                        if xs: k(xs.pop(0))
    if CH3:
        def gX(mb, kk): return mb * 8 + kk * 4
        def gW(nb, kk): return 32 + nb * 8 + kk * 4
        def rX(mb): return [(('x', mb), f"ds_read_b128 {a(gX(mb, kk), 4)}, {v(cx)} offset:{mb * 1024 + kk * 8192}") for kk in range(2)]
        def rW(nb): return [(('w', nb), f"ds_read_b64_tr_b16 {a(gW(nb, kk) + 2 * t_, 2)}, {v(cw + nb)} offset:{(32 * kk + 16 * t_) * 256}") for kk in range(2) for t_ in range(2)]
        tail3 = rX(0) + rX(1) + rX(2) + rX(3)
        for tag, ins in rW(0) + rW(1) + tail3: k(ins)
        def body3(stores=(), loop=False, xs=None, per=2):
            tr = LgkmTracker([tag for tag, _ in tail3])
            stores = list(stores)
            rd = {}
            for i, x in enumerate(rW(2) + rW(3)): rd.setdefault(i, []).append(x)
            w01 = rW(0) + rW(1)
            for mb in range(4):
                base = 16 + 4 * mb
                rd.setdefault((17, 18, 21, 22)[mb], []).extend(w01[2 * mb:2 * mb + 2])
                x0, x1 = rX(mb)
                rd.setdefault(base + 3, []).append(x0); rd.setdefault(min(base + 4, 31), []).append(x1)
            first = {0: f"s_add_u32 m0, {s(sWr)}, 16384", 2: f"s_add_u32 {s(sWr)}, {s(sRd)}, {s(sW4)}", 3: f"s_add_u32 {s(sRd)}, {s(sRd)}, {SLOT}", 4: f"s_cmp_ge_u32 {s(sRd)}, {NS3*SLOT}",
                     6: f"s_cselect_b32 {s(sDl)}, {-(NS3-1)*SLOT & 0xffffffff}, {s(sSl)}", 7: f"s_cselect_b32 {s(sRd)}, 0, {s(sRd)}", 14: f"s_add_u32 {s(sWo)}, {s(sWo)}, {64*2048}", 15: f"s_mov_b32 m0, {s(sWr)}",
                     28: f"s_add_u32 {s(sCn)}, {s(sCn)}, 1", 30: f"s_add_u32 {s(sXo)}, {s(sXo)}, 262144" + (f"\ns_cmp_lt_u32 {s(sCn)}, {s(sEv)}" if loop else "")}
            fill = {g: [] for g in range(32)}
            for j, g in enumerate((1, 5, 9, 13)): fill[g].append(d3w(j)); fill[16 + g].append(d3x(j))
            fill[8].append(f"v_add_u32 {v(cx)}, {s(sDl)}, {v(cx)}\nv_add_u32 {v(cw)}, {s(sDl)}, {v(cw)}")
            fill[10].append(f"v_add_u32 {v(cw+1)}, {s(sDl)}, {v(cw+1)}\nv_add_u32 {v(cw+2)}, {s(sDl)}, {v(cw+2)}")
            fill[12].append(f"v_add_u32 {v(cw+3)}, {s(sDl)}, {v(cw+3)}")
            for g in (11, 14):
                if stores: fill[g].append(stores.pop(0))
            i = 0
            for rp in range(2):
                for mb in range(4):
                    for nb in (2 * rp, 2 * rp + 1):
                        for kk in range(2):
                            w = tr.need({('x', mb), ('w', nb)})
                            if i == 16:
                                tr.q = []
                                k(f"s_waitcnt vmcnt({8*(NS3-2)}) lgkmcnt(0)")
                            elif i == 0: k("s_waitcnt lgkmcnt(6)"); tr.q = tr.q[-6:]
                            elif w: k(w)
                            d = v(acc3(nb, mb), 4)
                            k(f"{MF} {d}, {a(gW(nb, kk), 4)}, {a(gX(mb, kk), 4)}, {d}")
                            if i == 16: k("s_barrier")
                            if i in first: k(first[i])
                            for tag, ins in rd.get(i, []): k(ins); tr.issue(tag)
                            for x in fill[i]: k(x)
                            if xs:
                                for _ in range(per if not fill[i] else 1):
                                    if xs: k(xs.pop(0))
                            i += 1
    L3 = k.newlab('l3'); L3e = k.newlab('l3e'); L3x = k.newlab('l3x'); L3c = k.newlab('l3c'); L3n = k.newlab('l3n')
    XS_ = local_stream(); nun = 0; polls = []
    while XS_:
        lp = k.newlab('lp'); lr = k.newlab('lr')
        k(f"s_cmp_gt_i32 {s(sLim)}, {nun + NS3}\ns_cbranch_scc0 {lp}"); k.label(lr)
        polls.append((lp, lr, nun + NS3))
        body3(xs=XS_, vm3=min(16 + 4 * nun, 24)); nun += 1
    OAP = nun + 4
    assert nun >= 3 and not CH3 and not LLATE
    k(f"s_branch {L3e}")
    for lp, lr, need in polls:
        k.label(lp); lim_update(str(need)); k(f"s_branch {lr}")
    align()
    k.label(L3)
    body3(loop=True)
    k(f"s_cbranch_scc1 {L3}")
    k.label(L3e)
    def pair_flag(dst): k(f"s_lshl_b32 {s(dst)}, {s(sMt3)}, 3\ns_add_u32 {s(dst)}, {s(dst)}, {s(sNt3)}\ns_lshl_b32 {s(dst)}, {s(dst)}, 7\ns_add_u32 {s(dst)}, {s(dst)}, {F_PAIR}")
    def part_addr(): k(f"s_lshl_b32 {s(t0)}, {s(sMt3)}, 3\ns_add_u32 {s(t0)}, {s(t0)}, {s(sNt3)}\ns_lshl_b32 {s(t0)}, {s(t0)}, 15\ns_lshl_b32 {s(t1)}, {s(sw)}, 13\ns_add_u32 {s(t0)}, {s(t0)}, {s(t1)}\ns_add_u32 {s(sPo)}, {s(t0)}, {WS_PART}")
    def all_ready(load):
        Lsp = k.newlab('spin'); Lok = k.newlab('ok')
        k(f"s_waitcnt vmcnt(16)\ns_mov_b32 s3, {SPIN}")
        k.label(Lsp)
        k(f"v_cmp_ne_u64 {s(sM0,2)}, {s(sTok,2)}, {v(vFlag,2)}\ns_nop 3\ns_cmp_eq_u64 {s(sM0,2)}, 0\ns_cbranch_scc1 {Lok}\ns_sub_u32 s3, s3, 1\ns_cbranch_scc1 {Lok}\ns_sleep 8\n{load}\ns_waitcnt vmcnt(0)\ns_branch {Lsp}")
        k.label(Lok)
    Lr = k.newlab('rdy')
    k(f"s_add_u32 {s(t2)}, {s(sCn)}, {NS3}\ns_cmp_gt_i32 {s(sLim)}, {s(t2)}\ns_cbranch_scc1 {Lr}")
    lim_update(s(t2))
    k.label(Lr)
    Lo1 = k.newlab('o1'); Lo2 = k.newlab('o2')
    k(f"s_mov_b32 {s(sEv)}, {OAP}\ns_cmp_lt_u32 {s(sCn)}, {OAP}\ns_cbranch_scc1 {L3n}\ns_cmp_eq_u32 {s(sCn)}, {OAP}\ns_cbranch_scc1 {Lo1}")
    k.label(Lo2)
    k(f"s_cmp_eq_u32 {s(sIsA)}, 0\ns_cbranch_scc1 {L3c}")
    oa_load = f"s_lshr_b32 {s(t0)}, {s(sMt3)}, 1\ns_lshl_b32 {s(t0)}, {s(t0)}, 8\ns_add_u32 {s(t0)}, {s(t0)}, {WS_FLAG + F_OA}\nbuffer_load_dwordx2 {v(vFlag,2)}, {v(vFo)}, {s(srdO,4)}, {s(t0)} offen sc1"
    def p_store():
        part_addr()
        k("s_nop 3")
        for i in range(32): k(f"v_cvt_pk_bf16_f32 {v(PART+i)}, {v(64+2*i)}, {v(65+2*i)}")
        for i in range(0, 64, 2): k(f"v_mov_b64 {v(64+i,2)}, 0")
        k("s_nop 1")
        for n in range(TR): body3([pstore(2 * n), pstore(2 * n + 1)])
    def p_pub(): pair_flag(t1); publish(t1, T + 12)
    def oa_pub():
        k(f"s_and_b32 {s(t1)}, s2, 7\ns_lshl_b32 {s(t1)}, {s(t1)}, 5\ns_lshr_b32 {s(t2)}, s2, 3\ns_add_u32 {s(t1)}, {s(t1)}, {s(t2)}\ns_lshl_b32 {s(t1)}, {s(t1)}, 3\ns_add_u32 {s(t1)}, {s(t1)}, {F_OA}")
        publish(t1, T + 12)
    EVP = [(NB - NS3 - 1, lambda: k(f"s_mov_b32 {s(sLim)}, 1000\n{oa_load}")),
           (NB - NS3, lambda: (k("s_waitcnt vmcnt(8)"), all_ready(oa_load), k(f"s_mov_b32 {s(sXo)}, {s(sXb)}"))),
           (NB - NS3 + 1, lambda: k(f"s_mov_b32 {s(dW)}, {s(sPw+2)}\ns_mov_b32 {s(dW+1)}, {s(sPw+3)}\ns_mov_b32 {s(dW+2)}, {2*MB}\ns_lshl_b32 {s(sWo)}, {s(sNt3)}, 8")),
           (NB, p_store), (NB + TR + 4, p_pub), (NP - NS3, lambda: k(f"s_mov_b32 {s(dX+2)}, 0")), (NP, None)]
    pf_load = lambda: (pair_flag(t1), k(f"s_add_u32 {s(sXs3)}, {s(t1)}, {WS_FLAG}"))
    pl = f"buffer_load_dwordx2 {v(vFlag,2)}, off, {s(srdO,4)}, {s(sXs3)} sc1"
    def c_take():
        all_ready(pl)
        part_addr()
        for b in range(8):
            k(f"buffer_load_dwordx4 {v(PART+4*b,4)}, {v(vL16)}, {s(srdO,4)}, {s(sPo)} offen offset:{(b&3)*1024} sc1")
            if b == 3: k(f"s_add_u32 {s(sPo)}, {s(sPo)}, 4096")
    EVC = [(NC - NS3 - 1, lambda: k(f"s_mov_b32 {s(sLim)}, 1000")),
           (NC - NS3, lambda: (k(f"s_mov_b32 {s(dX+2)}, 0"), pf_load(), k(pl))),
           (NC - NS3 + 1, lambda: k(f"s_mov_b32 {s(dW+2)}, 0")),
           (NC - 3, c_take), (NC, None)]
    for EV, lab in ((EVP, None), (EVC, L3c)):
        if lab: k.label(lab)
        k(f"s_mov_b32 {s(sEv)}, {EV[0][0]}\ns_cmp_lt_u32 {s(sCn)}, {EV[0][0]}\ns_cbranch_scc1 {L3n}")
        for i, (at, f_) in enumerate(EV):
            ln = k.newlab('n')
            if f_ is None:
                k(f"s_branch {L3x}")
                break
            k(f"s_cmp_lg_u32 {s(sCn)}, {at}\ns_cbranch_scc1 {ln}")
            f_()
            k(f"s_mov_b32 {s(sEv)}, {EV[i+1][0]}\ns_branch {L3}")
            k.label(ln)
    k.label(Lo1)
    oa_pub()
    k(f"s_branch {Lo2}")
    assert OAP < NB - NS3 - 1
    k.label(L3n)
    k(f"s_sub_u32 {s(t0)}, {s(sLim)}, {NS3}\ns_min_u32 {s(sEv)}, {s(sEv)}, {s(t0)}\ns_branch {L3}")
    k.label(L3x)
    ST.stamp(3); dbgmax(8, True)
    Lna = k.newlab('noadd')
    k(f"s_cmp_eq_u32 {s(sIsA)}, 1\ns_cbranch_scc1 {Lna}\ns_waitcnt vmcnt(0)")
    for i in range(32):
        k(f"v_lshlrev_b32 {v(160+2*i)}, 16, {v(PART+i)}\nv_and_b32 {v(161+2*i)}, 0xffff0000, {v(PART+i)}")
    for i in range(0, 64, 2): k(f"v_pk_add_f32 {v(64+i,2)}, {v(64+i,2)}, {v(160+i,2)}")
    k.label(Lna)
    for mb in range(4):
        for e in range(2):
            b = acc3(2 * e, mb)
            for i in range(4): k(f"v_cvt_pk_bf16_f32 {v(b+i)}, {v(b+2*i)}, {v(b+2*i+1)}")
        k("s_nop 1")
        for e in range(2):
            b = acc3(2 * e, mb)
            k(f"v_permlane16_swap_b32 {v(b)}, {v(b+2)}\nv_permlane16_swap_b32 {v(b+1)}, {v(b+3)}")
        for e in range(2):
            b = acc3(2 * e, mb)
            k(f"buffer_store_dwordx4 {v(b,4)}, {v(cSt)}, {s(dO,4)}, {s(sOb)} offen offset:{64*e} sc1")
        k(f"s_add_u32 {s(sOb)}, {s(sOb)}, {s(sOs)}")
    if stamps:
        k('s_waitcnt vmcnt(0)')
        ST.stamp(8); ST.stamp(9, real=True)
        ST.flush(srdO, sw, vT, vLane, base=0x100000)
    k.label(Lend)
    k("s_endpgm")
    for st_, rt, par, sm, evs in stubs:
        k.label(st_)
        slow_path(par, sm, evs)
        k(f"s_branch {rt}")
    for st_, rt, target in calls:
        k.label(st_)
        k(f"s_call_b64 {s(sRa,2)}, {target}\ns_branch {rt}")

    for par, nset in Lrs:
        k.label(Lrs[(par, nset)])
        k("s_nop 15")
        for qt in AB[:nset]:
            Sq = Sreg(par, qt); So = Sreg(par ^ 1, qt); Pq = Preg(par, qt); N_ = Nreg(qt)
            k(f"v_max3_f32 {v(T)}, {v(Sq)}, {v(Sq+1)}, {v(Sq+2)}")
            for i in (3, 5): k(f"v_max3_f32 {v(T)}, {v(T)}, {v(Sq+i)}, {v(Sq+i+1)}")
            k(f"v_max3_f32 {v(T)}, {v(T)}, {v(Sq+7)}, 0")
            xlane([T], [T + 1], "v_max_f32")
            k(f"v_exp_f32 {v(T+1)}, -{v(T)}")
            for i in range(8): k(f"v_sub_f32 {v(Sq+i)}, {v(Sq+i)}, {v(T)}")
            for i in range(8): k(f"v_sub_f32 {v(So+i)}, {v(So+i)}, {v(T)}")
            for i in range(8): k(f"v_sub_f32 {v(N_+i)}, {v(N_+i)}, {v(T)}")
            k(f"v_mul_f32 {v(vL+qt)}, {v(vL+qt)}, {v(T+1)}")
            for i0 in range(0, 32, 8):
                for i in range(8): k(f"v_accvgpr_read_b32 {v(T+4+i)}, {a(Oreg(qt,0)+i0+i)}")
                for i in range(8): k(f"v_mul_f32 {v(T+4+i)}, {v(T+4+i)}, {v(T+1)}")
                for i in range(8): k(f"v_accvgpr_write_b32 {a(Oreg(qt,0)+i0+i)}, {v(T+4+i)}")
            for i in range(8): k(f"v_exp_f32 {v(T+4+i)}, {v(Sq+i)}")
            k("s_nop 0")
            for i in range(4): k(f"v_cvt_pk_bf16_f32 {v(Pq+i)}, {v(T+4+2*i)}, {v(T+5+2*i)}")
            k(f"s_nop 1\n{MF} {v(TS(qt),4)}, {v(vOne,4)}, {v(Pq,4)}, 0")
        k(f"s_nop 7\ns_setpc_b64 {s(sRa,2)}")
    if INL:
        starts = [x[0] for x in outl] + [Leps, Lepf, Lepl]
        pieces = {}; rest = []; cur = None
        for ln_ in ool:
            if ln_.endswith(":") and ln_[:-1] in starts: cur = ln_[:-1]; pieces[cur] = []
            (pieces[cur] if cur else rest).append(ln_)
        out_ = []
        for ln_ in k.lines:
            if ln_.startswith("@@"): out_ += pieces.pop(ln_[2:])
            elif ln_.strip().startswith(f"s_call_b64 {s(sRe,2)}, "):
                tg = ln_.split()[-1]; pc = pieces.pop(tg); le = tg + "_r"
                assert "s_setpc" in pc[-1]
                out_ += [x if "s_setpc" not in x else f"    s_branch {le}" for x in pc[:-1]] + [le + ":"]
            else: out_.append(ln_)
        assert not pieces
        k.lines = out_; ool = rest
    k.lines += ool + ool0
    code, desc = kernel_wrap(name, k.text(), 512, 102, 256)
    return code, desc, f"; @launch kernel={name} grid=(256,1,1) block=(256,1,1) lds={LDS_BYTES}"
```

```python
from asmlib import *
import math

XS = 32768
WBASE = 3 * XS
LDS_BYTES = 5 * XS
C_B = (128 ** -0.5) * math.log2(math.e)
C_A = (32 ** -0.5) * math.log2(math.e)
STG = 16384
SLOT = 32768
THR = float(2 ** 20)
CAP = 8
RESV = 4
U_PUB, U_POLL, U_CHK = 6, 22, 26
import os
ITEMS = {'7': [(12, 4), (9, 8), (11, 5), (10, 6), (15, 1), (14, 2), (13, 3), (16, 7)], '5': [(12, 4), (9, 8), (11, 6), (10, 7), (15, 1), (14, 2), (13, 3), (16, 5)],
         '6': [(12, 4), (9, 8), (11, 5), (10, 7), (15, 1), (14, 2), (13, 3), (16, 6)],
         '5b': [(9, 8), (11, 6), (12, 4), (10, 7), (15, 1), (14, 2), (13, 3), (16, 5)],
         '3': [(9, 8), (11, 6), (10, 7), (14, 2), (15, 1), (13, 4), (12, 5), (16, 3)],
         'x1': [(10, 6), (9, 8), (12, 3), (15, 1), (14, 2), (11, 7), (13, 4), (16, 5)],
         'x3': [(9, 8), (12, 4), (10, 6), (14, 2), (13, 3), (11, 7), (15, 1), (16, 5)],
         'x4': [(10, 6), (9, 8), (11, 5), (12, 4), (15, 1), (14, 2), (13, 3), (16, 7)],
         'x5': [(11, 5), (9, 8), (12, 3), (10, 7), (15, 1), (14, 2), (13, 4), (16, 6)],
         '4': [(9, 8), (11, 6), (10, 7), (13, 3), (15, 1), (14, 2), (12, 5), (16, 4)]}[os.environ.get('PITEM', '6')]
TABA = sum((x[0] - 1) << (4 * i) for i, x in enumerate(ITEMS)); TABB = sum((x[1] - 1) << (4 * i) for i, x in enumerate(ITEMS))
SPIN = 1 << 20

def build(name="mega_kernel", stamps=False, abl=(), last_kernel="gemm3_kernel"):
    k = K(name)
    sDb = 4; sWS = 6; srdO = 8; srdD = 12; sw = 16; sPend = 17; sStamp = 18; sRe = 20; sEx = 22
    vLane = 1; vSt = 2; vL16 = 2; vStamp = 3; vFlag = 4; vFa = 0; sTok = sDb
    ST = Stamper(k, stamps, vStamp, sStamp)
    TOUCH = 'notouch' not in abl
    L2D = int(os.environ.get('L2D', '6'))
    sfx = ' sc1'; ksc = '' if 'nokvsc' in abl else ' sc1'
    S = Regs('s', 24, 90)
    sK = S.alloc('karg', 16, 4)
    srdX = S.alloc('srdX', 4, 4); srdW = S.alloc('srdW', 4, 4)
    sXoff = S.alloc('sXoff', 4); sWoff = S.alloc('sWoff', 4); sWstep = S.alloc('sWstep')
    swm = S.alloc('wm'); swn = S.alloc('wn'); sXSc = S.alloc('xsc'); sWx = S.alloc('wx')
    sXw = S.alloc('xw'); sWw = S.alloc('ww'); sXd = S.alloc('xdelta'); sXs = S.alloc('xrslot')
    sCnt = S.alloc('cnt'); sFirst = S.alloc('first'); sEvT = S.alloc('evt'); sIdx = S.alloc('idx'); sMt = S.alloc('mt'); sIsP = S.alloc('isp')
    LF = ['xlo','xhi','xsize','wlo','whi','wsize','ldx','ldw','xoff0','woff0','par']
    CF = ['nk','swp','scale','obase','Si','Sj','flag']
    P1 = {f: S.alloc('p1' + f) for f in LF + CF}
    top = Regs('s', 90, 102)
    sT = top.alloc('t', 4, 2); sHasNext = top.alloc('hasnext')
    CP = {f: top.alloc('c' + f) for f in CF}
    t0, t1, t2, t3 = sT, sT + 1, sT + 2, sT + 3
    def ptr(nm): return sK + KARG[nm] // 4
    V = Regs('v', 6, 32)
    vx = V.alloc('vx', 2); vw = V.alloc('vw', 8); vX = V.alloc('vX', 2); vW = V.alloc('vW', 4); vDum = V.alloc('dum')
    vT = V.alloc('t', 8, 4)
    assert vT == 24
    T = vT
    def acc(i, j):
        n = ((i >> 1) * 8 + j) * 2 + (i & 1)
        return ('v', 32 + 4 * n) if n < 56 else ('a', 96 + 4 * (n - 56))
    def fragX(st, mb): return st * 32 + mb * 4
    def fragW(nb): return 64 + nb * 4
    def Qreg(qt, e): return 128 + qt * 16 + e * 4

    Lend = k.newlab('end')
    k(f"s_cmp_ge_u32 s2, 256\ns_cbranch_scc1 {Lend}")
    k(f"s_load_dwordx16 {s(sK,16)}, s[0:1], 0\ns_load_dwordx4 {s(sDb,4)}, s[0:1], {KARG['dbg']}")
    if stamps: k("s_waitcnt lgkmcnt(0)")
    ST.stamp(0); ST.stamp(1, real=True)
    k(f"v_and_b32 {v(vLane)}, 63, v0\nv_lshrrev_b32 {v(vT)}, 6, v0\ns_nop 0\nv_readfirstlane_b32 {s(sw)}, {v(vT)}")
    k(f"s_lshr_b32 {s(sIdx)}, s2, 3")
    k(f"s_lshr_b32 {s(swm)}, {s(sw)}, 1\ns_and_b32 {s(swn)}, {s(sw)}, 1")
    k(f"s_mov_b32 {s(srdX+3)}, 0x20000\ns_mov_b32 {s(srdW+3)}, 0x20000")
    if 'nocpf' not in abl:
        Lc = k.newlab('ncp')
        k(f"s_cmp_lt_u32 {s(sIdx)}, 29\ns_cbranch_scc1 {Lc}\ns_sub_u32 {s(t1)}, {s(sIdx)}, 29\ns_lshl_b32 {s(t1)}, {s(t1)}, 2\ns_add_u32 {s(t1)}, {s(t1)}, {s(sw)}")
        code_prefetch(k, srdO, name, last_kernel + "_end", t1, vLane, T, vDum, t0)
        k.label(Lc)
    k.c("fragment read addresses")
    k(f"v_and_b32 {v(T)}, 15, {v(vLane)}\nv_lshrrev_b32 {v(T+1)}, 4, {v(vLane)}")
    k(f"v_bfe_u32 {v(T+2)}, {v(vLane)}, 1, 3\nv_xor_b32 {v(T+2)}, {v(T+2)}, {v(T+1)}")
    k(f"s_lshl_b32 {s(t0)}, {s(swm)}, 14\nv_lshlrev_b32 {v(T+3)}, 7, {v(T)}\nv_add_u32 {v(T+3)}, {s(t0)}, {v(T+3)}")
    for kk in range(2):
        k(f"v_xor_b32 {v(T+4)}, {4*kk}, {v(T+2)}\nv_lshl_add_u32 {v(vx+kk)}, {v(T+4)}, 4, {v(T+3)}")
    k(f"v_bfe_u32 {v(T+2)}, {v(vLane)}, 2, 2")
    k(f"v_lshl_add_u32 {v(T+3)}, {v(T+1)}, 3, {v(T+2)}\nv_lshlrev_b32 {v(T+3)}, 9, {v(T+3)}")
    k(f"v_and_b32 {v(T+4)}, 3, {v(vLane)}\nv_lshlrev_b32 {v(T+4)}, 3, {v(T+4)}\nv_add_u32 {v(T+3)}, {v(T+3)}, {v(T+4)}")
    k(f"s_lshl_b32 {s(t0)}, {s(swn)}, 8\ns_add_u32 {s(t0)}, {s(t0)}, {WBASE}\nv_add_u32 {v(T+3)}, {s(t0)}, {v(T+3)}")
    k(f"v_bfe_u32 {v(T+2)}, {v(vLane)}, 2, 3")
    for nb in range(8):
        k(f"v_xor_b32 {v(T+4)}, {nb}, {v(T+2)}\nv_lshl_add_u32 {v(vw+nb)}, {v(T+4)}, 5, {v(T+3)}")
    k(f"v_lshlrev_b32 {v(vSt)}, 4, {v(vLane)}")
    k(f"s_lshl_b32 {s(sXw)}, {s(sw)}, 13\ns_add_u32 {s(sWw)}, {s(sXw)}, {WBASE}\ns_mov_b32 {s(sXs)}, 0")
    k(f"s_mov_b32 {s(sXSc)}, {XS}\ns_mov_b32 {s(sWx)}, {WBASE ^ (WBASE + XS)}")

    def q_params(p):
        k(f"s_mov_b32 {s(p['wsize'])}, 8388608\ns_mov_b32 {s(p['ldw'])}, 8192\ns_mov_b32 {s(p['par'])}, 0")
        k(f"s_mov_b32 {s(p['xsize'])}, 4194304\ns_mov_b32 {s(p['ldx'])}, 2048\ns_mov_b32 {s(p['nk'])}, 16")
        k(f"s_lshl_b32 {s(p['woff0'])}, {s(t0)}, 9\ns_lshl_b32 {s(p['xoff0'])}, {s(sMt)}, 19\ns_lshl_b32 {s(p['flag'])}, {s(t0)}, 4\ns_add_u32 {s(p['flag'])}, {s(p['flag'])}, {s(sMt)}\ns_lshl_b32 {s(p['flag'])}, {s(p['flag'])}, 3")
        k(f"s_mov_b32 {s(p['swp'])}, 0\ns_mov_b32 {s(p['scale'])}, {f32bits(C_B)}")
        k(f"s_lshl_b32 {s(t1)}, {s(t0)}, 1\ns_add_u32 {s(t1)}, {s(t1)}, {s(swn)}\ns_lshl_b32 {s(t1)}, {s(t1)}, 19")
        k(f"s_lshl_b32 {s(t2)}, {s(sMt)}, 1\ns_add_u32 {s(t2)}, {s(t2)}, {s(swm)}\ns_lshl_b32 {s(t2)}, {s(t2)}, 15")
        k(f"s_add_u32 {s(p['obase'])}, {s(t1)}, {s(t2)}\ns_add_u32 {s(p['obase'])}, {s(p['obase'])}, {WS_QB}")
        k(f"s_mov_b32 {s(p['Si'])}, 1024\ns_mov_b32 {s(p['Sj'])}, 4096")
        k(f"s_mov_b32 {s(p['xlo'])}, {s(ptr('B_x'))}\ns_mov_b32 {s(p['xhi'])}, {s(ptr('B_x')+1)}\ns_mov_b32 {s(p['wlo'])}, {s(ptr('B_w_q'))}\ns_mov_b32 {s(p['whi'])}, {s(ptr('B_w_q')+1)}")
    def a_params(p):
        k(f"s_mov_b32 {s(p['wsize'])}, 6291456\ns_mov_b32 {s(p['ldw'])}, 6144\ns_mov_b32 {s(p['par'])}, 1")
        k(f"s_mov_b32 {s(p['xsize'])}, 4194304\ns_mov_b32 {s(p['ldx'])}, 2048\ns_mov_b32 {s(p['nk'])}, 16")
        k(f"s_lshl_b32 {s(p['woff0'])}, {s(t0)}, 9\ns_lshl_b32 {s(p['xoff0'])}, {s(sMt)}, 19")
        k(f"s_and_b32 {s(t2)}, {s(t0)}, 3\ns_lshr_b32 {s(t1)}, {s(t0)}, 2")
        k(f"s_lshl_b32 {s(p['flag'])}, {s(t2)}, 2\ns_add_u32 {s(p['flag'])}, {s(p['flag'])}, {s(t1)}\ns_lshl_b32 {s(p['flag'])}, {s(p['flag'])}, 3\ns_add_u32 {s(p['flag'])}, {s(p['flag'])}, {s(sMt)}\ns_lshl_b32 {s(p['flag'])}, {s(p['flag'])}, 3\ns_add_u32 {s(p['flag'])}, {s(p['flag'])}, {48*128}")
        k(f"s_cmp_eq_u32 {s(t1)}, 0\ns_cselect_b32 {s(p['scale'])}, {f32bits(C_A)}, 0")
        k(f"s_lshl_b32 {s(t3)}, {s(t1)}, 22\ns_add_u32 {s(p['obase'])}, {s(t3)}, {WS_QA}")
        k(f"s_lshl_b32 {s(t2)}, {s(t2)}, 1\ns_add_u32 {s(t2)}, {s(t2)}, {s(swn)}\ns_lshl_b32 {s(t2)}, {s(t2)}, 19\ns_add_u32 {s(p['obase'])}, {s(p['obase'])}, {s(t2)}")
        k(f"s_lshl_b32 {s(t2)}, {s(swm)}, 3\ns_add_u32 {s(t2)}, {s(t2)}, {s(sMt)}")
        k(f"s_cmp_eq_u32 {s(t1)}, 2\ns_cselect_b32 {s(p['swp'])}, 1, 0\ns_cselect_b32 {s(t3)}, 12, 13")
        k(f"s_mov_b32 {s(t1)}, 131072\ns_cselect_b32 {s(p['Si'])}, 1024, {s(t1)}\ns_mov_b32 {s(t1)}, 1024\ns_cselect_b32 {s(p['Sj'])}, 65536, {s(t1)}")
        k(f"s_lshl_b32 {s(t2)}, {s(t2)}, {s(t3)}\ns_add_u32 {s(p['obase'])}, {s(p['obase'])}, {s(t2)}")
        k(f"s_mov_b32 {s(p['xlo'])}, {s(ptr('A_x'))}\ns_mov_b32 {s(p['xhi'])}, {s(ptr('A_x')+1)}\ns_mov_b32 {s(p['wlo'])}, {s(ptr('A_wqkv'))}\ns_mov_b32 {s(p['whi'])}, {s(ptr('A_wqkv')+1)}")
    def kv_params(p):
        k(f"s_cmp_lt_u32 {s(t0)}, 16\ns_cselect_b32 {s(p['swp'])}, 0, 1")
        k(f"s_mov_b32 {s(t1)}, {WS_VB}\ns_cselect_b32 {s(p['obase'])}, {WS_KB}, {s(t1)}")
        k(f"s_mov_b32 {s(t1)}, 8192\ns_cselect_b32 {s(p['Si'])}, 1024, {s(t1)}")
        k(f"s_mov_b32 {s(t1)}, 1024\ns_cselect_b32 {s(p['Sj'])}, 4096, {s(t1)}")
        k(f"s_cselect_b32 {s(p['wlo'])}, {s(ptr('B_w_uk'))}, {s(ptr('B_w_uv'))}\ns_cselect_b32 {s(p['whi'])}, {s(ptr('B_w_uk')+1)}, {s(ptr('B_w_uv')+1)}")
        k(f"s_mov_b32 {s(p['xlo'])}, {s(ptr('B_c_kv'))}\ns_mov_b32 {s(p['xhi'])}, {s(ptr('B_c_kv')+1)}")
        k(f"s_mov_b32 {s(p['xsize'])}, 2097152\ns_mov_b32 {s(p['ldx'])}, 1024\ns_mov_b32 {s(p['nk'])}, 8\ns_mov_b32 {s(p['par'])}, 0")
        k(f"s_mov_b32 {s(p['wsize'])}, 4194304\ns_mov_b32 {s(p['ldw'])}, 8192\ns_mov_b32 {s(p['scale'])}, 0")
        k(f"s_and_b32 {s(t0)}, {s(t0)}, 15\ns_lshl_b32 {s(p['woff0'])}, {s(t0)}, 9\ns_lshl_b32 {s(p['xoff0'])}, {s(sMt)}, 18")
        k(f"s_lshl_b32 {s(t1)}, {s(p['swp'])}, 2\ns_add_u32 {s(t1)}, {s(t1)}, {s(sMt)}\ns_cmp_ge_u32 {s(sMt)}, 4\ns_cselect_b32 {s(t2)}, {512 - 4}, 8\ns_add_u32 {s(t1)}, {s(t1)}, {s(t2)}")
        k(f"s_lshl_b32 {s(p['flag'])}, {s(t0)}, 4\ns_add_u32 {s(p['flag'])}, {s(p['flag'])}, {s(t1)}\ns_lshl_b32 {s(p['flag'])}, {s(p['flag'])}, 3")
        k(f"s_lshl_b32 {s(t1)}, {s(t0)}, 1\ns_add_u32 {s(t1)}, {s(t1)}, {s(swn)}\ns_lshl_b32 {s(t1)}, {s(t1)}, 19")
        k(f"s_lshl_b32 {s(t2)}, {s(sMt)}, 1\ns_add_u32 {s(t2)}, {s(t2)}, {s(swm)}\ns_lshl_b32 {s(t2)}, {s(t2)}, 15")
        k(f"s_add_u32 {s(p['obase'])}, {s(p['obase'])}, {s(t1)}\ns_add_u32 {s(p['obase'])}, {s(p['obase'])}, {s(t2)}")
    def tile_long(mul):
        k(f"s_and_b32 {s(sMt)}, {s(sIdx)}, 3\ns_and_b32 {s(t0)}, s2, 1\ns_lshl_b32 {s(t0)}, {s(t0)}, 2\ns_add_u32 {s(sMt)}, {s(sMt)}, {s(t0)}")
        k(f"s_bfe_u32 {s(t0)}, s2, 0x20001\ns_mul_i32 {s(t0)}, {s(t0)}, {mul}\ns_bfe_u32 {s(t1)}, {s(sIdx)}, 0x20002\ns_add_u32 {s(t0)}, {s(t0)}, {s(t1)}")
    def tile_kv(late):
        k(f"s_bfe_u32 {s(sMt)}, {s(sIdx)}, 0x20002\ns_add_u32 {s(sMt)}, {s(sMt)}, {4*late}\ns_and_b32 {s(t0)}, s2, 7\ns_lshl_b32 {s(t0)}, {s(t0)}, 2\ns_and_b32 {s(t1)}, {s(sIdx)}, 3\ns_add_u32 {s(t0)}, {s(t0)}, {s(t1)}")

    def act_load(p, part=(0, 1)):
        if 0 in part:
            k.c("activate load params")
            k(f"s_mov_b32 {s(srdX+2)}, {s(p['xsize'])}\ns_mov_b32 {s(srdW+2)}, {s(p['wsize'])}")
            k(f"s_lshl_b32 {s(t0)}, {s(p['ldx'])}, 4\ns_lshl_b32 {s(t0)}, {s(t0)}, {s(p['par'])}")
            k(f"s_mov_b32 {s(sXoff)}, {s(p['xoff0'])}")
            for a_ in (1, 2, 3):
                k(f"s_mul_i32 {s(t1)}, {s(t0)}, {a_}\ns_add_u32 {s(sXoff+a_)}, {s(t1)}, {s(p['xoff0'])}")
                if a_ & 1: k(f"s_sub_u32 {s(sXoff+a_)}, {s(sXoff+a_)}, 2048")
            k(f"s_mov_b32 {s(sWoff)}, {s(p['woff0'])}\ns_lshl_b32 {s(t0)}, {s(p['ldw'])}, 2")
            for a_ in (1, 2, 3):
                k(f"s_mul_i32 {s(t1)}, {s(t0)}, {a_}\ns_add_u32 {s(sWoff+a_)}, {s(t1)}, {s(p['woff0'])}")
                if a_ & 1: k(f"s_sub_u32 {s(sWoff+a_)}, {s(sWoff+a_)}, 2048")
            k(f"s_lshl_b32 {s(sWstep)}, {s(p['ldw'])}, 6")
            k(f"s_lshl_b32 {s(t0)}, {s(swn)}, 7\ns_add_u32 {s(t0)}, {s(t0)}, {s(swm)}\ns_lshl_b32 {s(t1)}, {s(sw)}, 6\ns_cmp_eq_u32 {s(p['par'])}, 1\ns_cselect_b32 {s(t0)}, {s(t0)}, {s(t1)}")
            k(f"v_lshrrev_b32 {v(T)}, 3, {v(vLane)}\nv_lshlrev_b32 {v(T)}, {s(p['par'])}, {v(T)}")
            k(f"v_add_u32 {v(T)}, {s(t0)}, {v(T)}\nv_mul_lo_u32 {v(T)}, {v(T)}, {s(p['ldx'])}")
            k(f"v_lshrrev_b32 {v(T+1)}, 4, {v(vLane)}\nv_and_b32 {v(T+2)}, 7, {v(vLane)}\nv_xor_b32 {v(T+1)}, {v(T+1)}, {v(T+2)}")
            k(f"v_lshl_add_u32 {v(vX)}, {v(T+1)}, 4, {v(T)}")
            k(f"v_xor_b32 {v(T+1)}, 4, {v(T+1)}\nv_lshl_add_u32 {v(vX+1)}, {v(T+1)}, 4, {v(T)}")
            k(f"s_lshl_b32 {s(t0)}, {s(p['ldx'])}, 3\ns_lshl_b32 {s(t0)}, {s(t0)}, {s(p['par'])}\ns_sub_u32 {s(t0)}, {s(t0)}, 1024\nv_add_u32 {v(vX+1)}, {s(t0)}, {v(vX+1)}")
            k(f"v_lshrrev_b32 {v(T)}, 5, {v(vLane)}\ns_lshl_b32 {s(t0)}, {s(sw)}, 4\nv_add_u32 {v(T+1)}, {s(t0)}, {v(T)}\nv_mul_lo_u32 {v(T+1)}, {v(T+1)}, {s(p['ldw'])}")
            k(f"v_lshlrev_b32 {v(T)}, 1, {v(T)}\nv_and_b32 {v(T+2)}, 31, {v(vLane)}\nv_xor_b32 {v(T)}, {v(T)}, {v(T+2)}")
            k(f"s_lshl_b32 {s(t0)}, {s(p['ldw'])}, 1\ns_sub_u32 {s(t0)}, {s(t0)}, 1024\nv_add_u32 {v(T+3)}, {s(t0)}, {v(T+1)}")
            for u in range(2):
                for e in range(2):
                    k(f"v_xor_b32 {v(T+2)}, {4*e + 8*u}, {v(T)}\nv_lshl_add_u32 {v(vW+e+2*u)}, {v(T+2)}, 4, {v(T+3) if e else v(T+1)}")
        if 1 in part:
            k(f"s_mov_b32 {s(srdX)}, {s(p['xlo'])}\ns_mov_b32 {s(srdX+1)}, {s(p['xhi'])}")
            k(f"s_mov_b32 {s(srdW)}, {s(p['wlo'])}\ns_mov_b32 {s(srdW+1)}, {s(p['whi'])}")
    def act_comp(p):
        for f in CP: k(f"s_mov_b32 {s(CP[f])}, {s(p[f])}")

    def dmaX(j):
        out = []
        if j % 4 == 0: out.append(f"s_add_u32 m0, {s(sXw)}, {4096 * (j // 4)}\ns_nop 0")
        out.append(f"buffer_load_dwordx4 {v(vX + (j & 1))}, {s(srdX,4)}, {s(sXoff + (j >> 1))} offen offset:{(j & 3) * 1024} lds")
        if j & 1: out.append(f"s_add_u32 {s(sXoff + (j >> 1))}, {s(sXoff + (j >> 1))}, 128")
        return out
    def dmaW(j):
        out = []
        if j % 4 == 0: out.append(f"s_add_u32 m0, {s(sWw)}, {4096 * (j // 4)}\ns_nop 0")
        out.append(f"buffer_load_dwordx4 {v(vW + (j & 1) + 2 * (j >> 2))}, {s(srdW,4)}, {s(sWoff + (j >> 1))} offen offset:{(j & 3) * 1024} lds")
        if j & 1: out.append(f"s_add_u32 {s(sWoff + (j >> 1))}, {s(sWoff + (j >> 1))}, {s(sWstep)}")
        return out
    def rotXw():
        return [f"s_add_u32 {s(sXw)}, {s(sXw)}, {XS}\ns_cmp_ge_u32 {s(sXw)}, {3*XS}", f"s_cselect_b32 {s(t0)}, {3*XS}, 0\ns_sub_u32 {s(sXw)}, {s(sXw)}, {s(t0)}"]
    def rotWw():
        return [f"s_xor_b32 {s(sWw)}, {s(sWw)}, {WBASE ^ (WBASE + XS)}"]
    def rdX(st, kk, mb): return (('x', st, mb), f"ds_read_b128 {a(fragX(st, mb), 4)}, {v(vx + kk)} offset:{mb * 2048}")
    def rdW(kk, nb, t): return (('w', nb), f"ds_read_b64_tr_b16 {a(fragW(nb) + 2 * t, 2)}, {v(vw + nb)} offset:{(32 * kk + 4 * t) * 512}")

    MB = 1 << 20
    def pf_setup():
        k(f"s_sub_u32 {s(t3)}, s2, 224\ns_lshl_b32 {s(t3)}, {s(t3)}, 2\ns_add_u32 {s(t3)}, {s(t3)}, {s(sw)}")
        k(f"v_lshlrev_b32 {v(T)}, 7, {v(vLane)}")
        k(f"v_lshrrev_b32 {v(T+1)}, 3, {v(vLane)}\nv_lshlrev_b32 {v(T+1)}, 11, {v(T+1)}\nv_and_b32 {v(T+2)}, 7, {v(vLane)}\nv_lshl_add_u32 {v(T+1)}, {v(T+2)}, 7, {v(T+1)}")
        k(f"s_lshl_b32 {s(t2)}, {s(t3)}, 13\ns_lshl_b32 {s(t3)}, {s(t3)}, 14\ns_add_u32 {s(t3)}, {s(t3)}, 1024")
    def region(p_, size, off, nbytes, rows=False):
        k(f"s_mov_b32 {s(srdX)}, {s(p_)}\ns_mov_b32 {s(srdX+1)}, {s(p_+1)}\ns_mov_b32 {s(srdX+2)}, {size}")
        step = 2 * MB if rows else MB
        for o in range(off, off + nbytes, step):
            k(f"s_add_u32 {s(t0)}, {s(t3 if rows else t2)}, {o}\nbuffer_load_dword {v(vDum)}, {v(T+1 if rows else T)}, {s(srdX,4)}, {s(t0)} offen")
    def publish(sflag):
        L = k.newlab('np')
        k(f"s_cmp_lg_u32 {s(sw)}, 0\ns_cbranch_scc1 {L}")
        k(f"v_mov_b32 {v(vFlag)}, {s(sTok)}\nv_mov_b32 {v(vFlag+1)}, {s(sTok+1)}\ns_add_u32 {s(t0)}, {s(sflag)}, {WS_FLAG}\ns_mov_b64 exec, 1")
        k(f"buffer_store_dwordx2 {v(vFlag,2)}, off, {s(srdO,4)}, {s(t0)} sc1\ns_mov_b64 exec, -1")
        k.label(L)
    def head_ids():
        k(f"s_and_b32 {s(t2)}, s2, 7\ns_lshl_b32 {s(t2)}, {s(t2)}, 2\ns_bfe_u32 {s(t3)}, s2, 0x20003\ns_add_u32 {s(t2)}, {s(t2)}, {s(t3)}\ns_lshr_b32 {s(t3)}, s2, 5\ns_lshl_b32 {s(t3)}, {s(t3)}, 2\ns_or_b32 {s(t3)}, {s(t3)}, 0x40000")
    def early_load(what):
        head_ids()
        k(f"s_lshr_b32 {s(t0)}, {s(t2)}, 1\ns_lshl_b32 {s(t0)}, {s(t0)}, 7\ns_add_u32 {s(t0)}, {s(t0)}, {WS_FLAG}")
        if what == 'kv':
            k(f"v_min_u32 {v(vFa)}, 7, {v(vLane)}\nv_add_u32 {v(vFa)}, 8, {v(vFa)}")
        else:
            k(f"s_bfe_u32 {s(t1)}, {TABB}, {s(t3)}\ns_lshr_b32 {s(t1)}, {s(t1)}, 1\nv_mov_b32 {v(vFa)}, {s(t1)}")
            if what == 'all': k(f"v_add_u32 {v(vFlag)}, 8, {v(vLane)}\nv_cmp_gt_u32 vcc, 8, {v(vLane)}\ns_nop 1\nv_cndmask_b32 {v(vFa)}, {v(vFa)}, {v(vFlag)}, vcc")
            k(f"s_bfe_u32 {s(t1)}, {TABA}, {s(t3)}\ns_lshr_b32 {s(t1)}, {s(t1)}, 1\nv_writelane_b32 {v(vFa)}, {s(t1)}, 8")
        k(f"v_lshlrev_b32 {v(vFa)}, 3, {v(vFa)}\nbuffer_load_dwordx2 {v(vFlag,2)}, {v(vFa)}, {s(srdO,4)}, {s(t0)} offen sc1")
    def early_check(what):
        Ls = k.newlab('spin'); Lok = k.newlab('ok')
        k(f"s_mov_b32 s3, {SPIN}")
        k.label(Ls)
        k(f"v_cmp_ne_u64 {s(sEx,2)}, {s(sTok,2)}, {v(vFlag,2)}\ns_nop 3\ns_cmp_eq_u64 {s(sEx,2)}, 0\ns_cbranch_scc1 {Lok}\ns_sub_u32 s3, s3, 1\ns_cbranch_scc1 {Lok}\ns_sleep 16")
        early_load(what)
        k(f"s_waitcnt vmcnt(0)\ns_branch {Ls}")
        k.label(Lok)
    def kv_cursor(offs, srd, ks):
        k(f"s_lshl_b32 {s(t0)}, {s(t2)}, 19\ns_lshl_b32 {s(t1)}, {s(swn)}, 13\ns_add_u32 {s(t0)}, {s(t0)}, {s(t1)}\ns_cmp_eq_u32 {s(swm)}, 0")
        k(f"s_mov_b32 {s(t1)}, {WS_VB + max(ks - 1, 0) * STG}\ns_cselect_b32 {s(t1)}, {WS_KB + ks * STG}, {s(t1)}")
        k(f"s_mov_b32 {s(srd+2)}, {WS_SIZE if ks else 0}\ns_cselect_b32 {s(srd+2)}, {WS_SIZE}, {s(srd+2)}")
        k(f"s_add_u32 {s(offs)}, {s(t0)}, {s(t1)}\ns_mov_b32 {s(offs+1)}, {s(offs)}\ns_add_u32 {s(offs+2)}, {s(offs)}, 4096\ns_mov_b32 {s(offs+3)}, {s(offs+2)}")
        k(f"s_mov_b32 {s(srd)}, {s(sWS)}\ns_mov_b32 {s(srd+1)}, {s(sWS+1)}")
    tok_load = f"buffer_load_dwordx2 {v(vFlag,2)}, off, {s(srdD,4)}, 0 sc1"
    def tok_get():
        Ls = k.newlab('spin'); Lok = k.newlab('ok')
        k(f"s_mov_b32 s3, {SPIN}")
        k.label(Ls)
        k(f"v_readfirstlane_b32 {s(sTok)}, {v(vFlag)}\nv_readfirstlane_b32 {s(sTok+1)}, {v(vFlag+1)}\ns_nop 3\ns_cmp_lg_u32 {s(sTok)}, 0\ns_cbranch_scc1 {Lok}\ns_sub_u32 s3, s3, 1\ns_cbranch_scc1 {Lok}\ns_sleep 32")
        k(f"{tok_load}\ns_waitcnt vmcnt(0)\ns_branch {Ls}")
        k.label(Lok)
    def q_loads(qts):
        head_ids()
        for qt in qts:
            k(f"s_bfe_u32 {s(t0)}, {TABA if qt < 2 else TABB}, {s(t3)}\ns_lshl_b32 {s(t0)}, {s(t0)}, 3")
            k(f"s_lshl_b32 {s(t1)}, {s(sw)}, 1\ns_add_u32 {s(t0)}, {s(t0)}, {s(t1)}\ns_lshl_b32 {s(t0)}, {s(t0)}, 12\ns_lshl_b32 {s(t1)}, {s(t2)}, 19\ns_add_u32 {s(t0)}, {s(t0)}, {s(t1)}\ns_add_u32 {s(t0)}, {s(t0)}, {WS_QB + 4096 * (qt & 1)}")
            for e in range(4):
                k(f"buffer_load_dwordx4 {a(Qreg(qt, e), 4)}, {v(vL16)}, {s(srdO,4)}, {s(t0)} offen offset:{e*1024} sc1")

    k("s_waitcnt lgkmcnt(0)")
    k(f"s_mov_b32 {s(srdO)}, {s(sWS)}\ns_mov_b32 {s(srdO+1)}, {s(sWS+1)}\ns_mov_b32 {s(srdO+2)}, {WS_SIZE}\ns_mov_b32 {s(srdO+3)}, 0x20000")
    La = k.newlab('typea'); Lb = k.newlab('go1'); Lnp = k.newlab('nopf')
    k(f"s_mov_b32 {s(sIsP)}, 0\ns_cmp_ge_u32 {s(sIdx)}, 16\ns_cbranch_scc1 {La}")
    tile_long(4); q_params(P1)
    k(f"s_branch {Lb}")
    k.label(La)
    k(f"s_cmp_lt_u32 {s(sIdx)}, 28\ns_cbranch_scc1 {Lnp}\ns_mov_b32 {s(sIsP)}, 1")
    if 'nopf' not in abl:
        pf_setup()
        PO = os.environ.get('PORD', '1')
        if PO == '0':
            region(ptr('A_wqkv'), 6 * MB, 0, 2 * MB); region(ptr('A_x'), 4 * MB, 0, 4 * MB)
            region(ptr('B_w_q'), 8 * MB, 4 * MB, 2 * MB); region(ptr('B_x'), 4 * MB, 0, 4 * MB, True)
            region(ptr('A_wqkv'), 6 * MB, 2 * MB, 1 * MB); region(ptr('B_w_q'), 8 * MB, 6 * MB, 2 * MB); region(ptr('A_wqkv'), 6 * MB, 3 * MB, 3 * MB)
            region(ptr('B_c_kv'), 2 * MB, 1 * MB, 1 * MB)
        else:
            k(f"v_lshrrev_b32 {v(T+1)}, 2, {v(vLane)}\nv_lshlrev_b32 {v(T+1)}, 11, {v(T+1)}\nv_and_b32 {v(T+2)}, 3, {v(vLane)}\nv_lshl_add_u32 {v(T+1)}, {v(T+2)}, 7, {v(T+1)}\ns_lshl_b32 {s(t3)}, {s(t2)}, 2")
            def xq(p_, q): region(p_, 4 * MB, q * 512, 1, True)
            wq, wa, bx, ax = ptr('B_w_q'), ptr('A_wqkv'), ptr('B_x'), ptr('A_x')
            if PO == '1':
                region(wq, 8 * MB, 1 * MB, 2 * MB); xq(bx, 1); region(wq, 8 * MB, 3 * MB, 2 * MB); xq(bx, 2); region(wq, 8 * MB, 5 * MB, 1 * MB)
                region(wa, 6 * MB, 0, 1 * MB); xq(ax, 0); region(wq, 8 * MB, 6 * MB, 1 * MB); xq(bx, 3); region(wa, 6 * MB, 1 * MB, 1 * MB); xq(ax, 1); region(wq, 8 * MB, 7 * MB, 1 * MB)
                region(wa, 6 * MB, 2 * MB, 2 * MB); xq(ax, 2); region(wa, 6 * MB, 4 * MB, 1 * MB); xq(ax, 3); region(wa, 6 * MB, 5 * MB, 1 * MB); region(ptr('B_c_kv'), 2 * MB, 1 * MB, 1 * MB)
            if PO == '2':
                uk, uv = ptr('B_w_uk'), ptr('B_w_uv')
                region(wq, 8 * MB, 1 * MB, 1 * MB); region(uk, 4 * MB, 2 * MB, 1 * MB); region(uv, 4 * MB, 2 * MB, 1 * MB); region(wq, 8 * MB, 2 * MB, 1 * MB); xq(bx, 1)
                region(uk, 4 * MB, 3 * MB, 1 * MB); region(uv, 4 * MB, 3 * MB, 1 * MB); region(wq, 8 * MB, 3 * MB, 2 * MB); xq(bx, 2)
                region(wa, 6 * MB, 0, 1 * MB); xq(ax, 0); region(wq, 8 * MB, 5 * MB, 2 * MB); xq(bx, 3); region(wa, 6 * MB, 1 * MB, 1 * MB); xq(ax, 1); region(wq, 8 * MB, 7 * MB, 1 * MB)
                region(wa, 6 * MB, 2 * MB, 2 * MB); xq(ax, 2); region(wa, 6 * MB, 4 * MB, 1 * MB); xq(ax, 3); region(wa, 6 * MB, 5 * MB, 1 * MB); region(ptr('B_c_kv'), 2 * MB, 1 * MB, 1 * MB)
            if PO == '3':
                region(wq, 8 * MB, 2 * MB, 1 * MB); xq(bx, 1); region(wq, 8 * MB, 3 * MB, 2 * MB); xq(bx, 2)
                region(wa, 6 * MB, 0, 1 * MB); xq(ax, 0); region(wq, 8 * MB, 5 * MB, 2 * MB); xq(bx, 3); region(wa, 6 * MB, 1 * MB, 1 * MB); xq(ax, 1); region(wq, 8 * MB, 7 * MB, 1 * MB)
                region(wa, 6 * MB, 2 * MB, 2 * MB); xq(ax, 2); region(wa, 6 * MB, 4 * MB, 1 * MB); xq(ax, 3); region(wa, 6 * MB, 5 * MB, 1 * MB); region(ptr('B_c_kv'), 2 * MB, 1 * MB, 1 * MB)
    k.label(Lnp)
    tile_kv(0); kv_params(P1)
    k.label(Lb)
    act_load(P1); act_comp(P1)
    for st in range(2):
        for j in range(8):
            for t in dmaX(j): k(t)
        for t in rotXw(): k(t)
        for j in range(8):
            for t in dmaW(j): k(t)
        for t in rotWw(): k(t)
        if st == 0:
            La2 = k.newlab('typea'); Lb2 = k.newlab('go2')
            k(f"s_cmp_ge_u32 {s(sIdx)}, 16\ns_cbranch_scc1 {La2}")
            tile_kv(1); kv_params(P1)
            k(f"s_branch {Lb2}")
            k.label(La2)
            tile_long(3); a_params(P1)
            k.label(Lb2)
            k(f"s_xor_b32 {s(sHasNext)}, {s(sIsP)}, 1\ns_mov_b32 {s(sEvT)}, 2\ns_mov_b32 {s(sPend)}, -1")
            k(f"s_mov_b32 {s(srdD)}, {s(sDb)}\ns_mov_b32 {s(srdD+1)}, {s(sDb+1)}\ns_mov_b32 {s(srdD+2)}, 256\ns_mov_b32 {s(srdD+3)}, 0x20000")
            Lt = k.newlab('tok')
            k(f"s_lshl_b32 {s(t0)}, s2, 2\ns_add_u32 {s(t0)}, {s(t0)}, {s(sw)}\ns_cmp_lg_u32 {s(t0)}, 0\ns_cbranch_scc1 {Lt}")
            k(f"s_memrealtime {s(t2,2)}\ns_waitcnt lgkmcnt(0)\ns_or_b32 {s(t2)}, {s(t2)}, 1\nv_mov_b32 {v(vFlag)}, {s(t2)}\nv_mov_b32 {v(vFlag+1)}, {s(t3)}\ns_mov_b64 exec, 1")
            k(f"buffer_store_dwordx2 {v(vFlag,2)}, off, {s(srdD,4)}, 0 sc1\ns_mov_b64 exec, -1")
            k.label(Lt)
    ST.stamp(2)
    k("s_waitcnt vmcnt(16)\ns_barrier")
    ST.stamp(3)
    BAR = 7
    def sched_reads(ss):
        st = ss & 1; kk = (ss + 1) & 1
        rd = {}
        for nb in range(8):
            g = 8 * nb + 7
            rd.setdefault(g, []).append(rdW(kk, nb, 0))
            g2 = g + 1 if g + 1 < 64 else g
            rd.setdefault(g2, []).append(rdW(kk, nb, 1))
        for mb in range(8):
            rd.setdefault(10 + 4 * mb, []).append(rdX(st ^ 1, kk, mb))
        return rd
    init_q = []
    r1 = sched_reads(1)
    for g in sorted(r1):
        for tag, ins in r1[g]:
            k(ins); init_q.append(tag)
    k(f"s_mov_b32 {s(sFirst)}, 1")

    gS = sK; gSa = sK + 4; gSb = sK + 5; gSi = sK + 6; gSj = sK + 7
    k(f"s_mov_b32 {s(gS)}, {s(sWS)}\ns_mov_b32 {s(gS+1)}, {s(sWS+1)}\ns_mov_b32 {s(gS+2)}, 0\ns_mov_b32 {s(gS+3)}, 0x20000")
    k(f"s_mov_b32 {s(gSa)}, 0\ns_mov_b32 {s(gSb)}, 0\ns_mov_b32 {s(gSi)}, 0\ns_mov_b32 {s(gSj)}, 0")
    XG = [4 + 8 * i for i in range(8)]
    WG = [64 + 9 + 4 * i for i in range(8)]
    SG = [42, 50, 58, 64 + 42, 64 + 46, 64 + 50, 64 + 54, 64 + 58]
    NTR = 4
    def item(lst):
        pre = lst[0].split("\n")[0] if lst[0].startswith("s_add_u32 m0") else None
        ins = [x for x in lst if x.startswith("buffer_")][0]
        post = lst[-1] if not lst[-1].startswith("buffer_") else None
        return pre, ins, post
    def body(swp, kind):
        tr = LgkmTracker(init_q)
        rd = {}
        for ss in range(2):
            for g, x in sched_reads(ss).items(): rd[64 * ss + g] = x
        first = {}; head = {}; vfx = {}
        items = [(item(dmaX(j)), g) for j, g in enumerate(XG)] + [(item(dmaW(j)), g) for j, g in enumerate(WG)]
        if kind < NTR:
            for i, g in enumerate(SG):
                post = f"s_add_u32 {s(gSa)}, {s(gSa)}, {s(gSj)}" if i < 7 else f"s_add_u32 {s(gSb)}, {s(gSb)}, {s(gSi)}\ns_mov_b32 {s(gSa)}, {s(gSb)}"
                items.append(((None, f"buffer_store_dwordx4 {a(128 + 4*(kind*8+i), 4)}, {v(vSt)}, {s(gS,4)}, {s(gSa)} offen{sfx}", post), g))
        for (pre, ins, post), g in items:
            assert g not in rd and g not in head, g
            head[g] = ins; first[g] = None
        first[64 + BAR] = None
        def put_first(g, x):
            while g in first: g += 1
            assert g < 127
            first[g] = x; return g
        for (pre, ins, post), g in items:
            if pre: assert g - 1 not in first; first[g - 1] = pre
        for (pre, ins, post), g in items:
            if post: put_first(g + 1, post)
        g = put_first(38, f"s_add_u32 {s(sXw)}, {s(sXw)}, {XS}")
        g = put_first(g + 1, f"s_cmp_ge_u32 {s(sXw)}, {3*XS}\ns_cselect_b32 {s(t0)}, {3*XS}, 0")
        g = put_first(g + 1, f"s_sub_u32 {s(sXw)}, {s(sXw)}, {s(t0)}")
        g = put_first(g + 1, f"s_add_u32 {s(sXs)}, {s(sXs)}, {XS}")
        g = put_first(g + 1, f"s_cmp_ge_u32 {s(sXs)}, {3*XS}\ns_cselect_b32 {s(sXd)}, {-2*XS & 0xffffffff}, {s(sXSc)}\ns_cselect_b32 {s(sXs)}, 0, {s(sXs)}")
        assert g < 57
        vfx[57] = [f"v_add_u32 {v(vx)}, {s(sXd)}, {v(vx)}", f"v_add_u32 {v(vx+1)}, {s(sXd)}, {v(vx+1)}"]
        for nb in range(8): vfx.setdefault(64 + nb // 2, []).append(f"v_xor_b32 {v(vw+nb)}, {s(sWx)}, {v(vw+nb)}")
        put_first(64 + 27, rotWw()[0])
        put_first(124, f"s_sub_u32 {s(sCnt)}, {s(sCnt)}, 1")
        if kind == NTR:
            assert 126 not in first
            first[126] = f"s_cmp_gt_u32 {s(sCnt)}, {s(sEvT)}"
        vm = 8 + (3 if kind < NTR else 0) + (5 if 1 <= kind < NTR else 0)
        for i in range(128):
            ss = i >> 6; st = ss
            nb, mb = (i & 63) // 8, i % 8
            w = tr.need({('x', st, mb), ('w', nb)})
            if i == 64 + BAR:
                tr.q = []
                k(f"s_waitcnt vmcnt({vm}) lgkmcnt(0)")
            elif w: k(w)
            A_, B_ = a(fragW(nb), 4), a(fragX(st, mb), 4)
            d = r(acc(nb, mb), 0, 4)
            if swp:
                A_, B_ = B_, A_
                d = r(acc(mb, nb), 0, 4)
            c = "0" if (kind == 0 and ss == 0) else d
            k(f"v_mfma_f32_16x16x32_bf16 {d}, {A_}, {B_}, {c}")
            if i == 64 + BAR: k("s_barrier")
            if first.get(i): k(first[i])
            for tag, ins in rd.get(i, []):
                k(ins); tr.issue(tag)
            if i in head: k(head[i])
            for x in vfx.get(i, []): k(x)

    outl = []; hooks = []
    Ltile = k.newlab('tile'); Lepi = k.newlab('epi')
    k.label(Ltile)
    Lsw = k.newlab('swp')
    k(f"s_mov_b32 {s(sCnt)}, {s(CP['nk'])}")
    k(f"s_cmp_eq_u32 {s(CP['swp'])}, 1\ns_cbranch_scc1 {Lsw}")
    for swp in (0, 1):
        if swp: k.label(Lsw)
        for kind in range(NTR):
            body(swp, kind)
            if kind == 1 and 'qtr' not in abl:
                Lh = k.newlab('hook'); Lhr = k.newlab('hookr')
                k(f"s_cmp_eq_u32 {s(sFirst)}, 2\ns_cbranch_scc1 {Lh}"); k.label(Lhr)
                hooks.append((Lh, Lhr))
        Lloop = k.newlab('loop'); Lsw2 = k.newlab('dosw')
        k.label(Lloop)
        outl.append((Lsw2, Lloop))
        body(swp, NTR)
        k(f"s_cbranch_scc1 {Lloop}\ns_cmp_lg_u32 {s(sCnt)}, 0\ns_cbranch_scc1 {Lsw2}")
        if not swp: k(f"s_branch {Lepi}")
    k.label(Lepi)
    Lepf = k.newlab('epf'); Leps = k.newlab('eps'); Llast = k.newlab('last'); Lp = k.newlab('ptype'); Linit = k.newlab('init'); Lkv = k.newlab('kvl')
    k(f"s_cmp_eq_u32 {s(sHasNext)}, 0\ns_cbranch_scc1 {Llast}")
    ST.stamp(4)
    tok_get()
    Lq1 = k.newlab('q1')
    if 'qtr' not in abl:
        Lq0 = k.newlab('q0')
        k(f"s_cmp_ge_u32 {s(sIdx)}, 16\ns_cbranch_scc1 {Lq0}")
        k(f"s_call_b64 {s(sRe,2)}, {Lepf}\ns_mov_b32 {s(sPend)}, {s(CP['flag'])}\ns_mov_b32 {s(sFirst)}, 2")
        ST.stamp(5)
        k(f"s_branch {Lq1}")
        k.label(Lq0)
    k(f"s_call_b64 {s(sRe,2)}, {Leps}")
    ST.stamp(5)
    k(f"s_mov_b32 {s(sPend)}, {s(CP['flag'])}\ns_mov_b32 {s(gSa)}, {s(CP['obase'])}\ns_mov_b32 {s(gSb)}, {s(CP['obase'])}\ns_mov_b32 {s(gSi)}, {s(CP['Si'])}\ns_mov_b32 {s(gSj)}, {s(CP['Sj'])}\ns_mov_b32 {s(gS+2)}, {WS_SIZE}")
    k.label(Lq1)
    act_comp(P1)
    k(f"s_sub_u32 {s(sEvT)}, {s(CP['nk'])}, {NTR+1}\ns_mov_b32 {s(sHasNext)}, 0\ns_branch {Ltile}")
    k.label(Llast)
    ST.stamp(6)
    k(f"s_cmp_eq_u32 {s(sIsP)}, 0\ns_cbranch_scc1 {Lkv}")
    k(f"{tok_load}\ns_call_b64 {s(sRe,2)}, {Lepf}\ns_waitcnt vmcnt(0)\ns_barrier")
    tok_get()
    publish(CP['flag'])
    if 'pwo' in abl:
        k(f"s_load_dwordx2 {s(sK+8,2)}, s[0:1], {KARG['B_w_o']}\ns_load_dwordx2 {s(sK+10,2)}, s[0:1], {KARG['A_wo']}")
        pf_setup()
        k("s_waitcnt lgkmcnt(0)")
        region(sK + 8, 8 * MB, 0, 8 * MB); region(sK + 10, 2 * MB, 0, 2 * MB)
    Lpw = k.newlab('pw')
    k(f"s_cmp_lg_u32 {s(sw)}, 0\ns_cbranch_scc1 {Lpw}")
    early_load("all"); k("s_waitcnt vmcnt(0)"); early_check("all")
    k.label(Lpw)
    k("s_barrier")
    q_loads((0, 1, 2, 3))
    k(f"s_mov_b32 {s(sHasNext)}, 1")
    k.label(Lkv)
    k("s_waitcnt lgkmcnt(0)\ns_barrier")
    save = k.lines; k.lines = []
    for Lh, Lhr in hooks:
        k.label(Lh)
        publish(sPend)
        k(f"s_mov_b32 {s(sPend)}, -1\ns_branch {Lhr}")
    for Lsw2, Lns in outl:
        k.label(Lsw2)
        l_np = k.newlab('x'); l_last = k.newlab('x'); l2 = k.newlab('x'); l1 = k.newlab('x'); l_stop = k.newlab('x')
        k(f"s_cmp_eq_u32 {s(sPend)}, -1\ns_cbranch_scc1 {l_np}")
        publish(sPend)
        k(f"s_mov_b32 {s(sPend)}, -1\ns_mov_b32 {s(sEvT)}, 3\ns_cmp_gt_u32 {s(sCnt)}, 3\ns_cbranch_scc1 {Lns}")
        k.label(l_np)
        k(f"s_cmp_eq_u32 {s(sHasNext)}, 0\ns_cbranch_scc1 {l_last}")
        act_load(P1)
        k(f"{tok_load}\ns_mov_b32 {s(sEvT)}, 0\ns_branch {Lns}")
        k.label(l_last)
        k(f"s_cmp_eq_u32 {s(sIsP)}, 1\ns_cbranch_scc1 {l_stop}")
        k(f"s_cmp_lg_u32 {s(sCnt)}, 3\ns_cbranch_scc1 {l2}")
        early_load('kv')
        k(f"s_branch {Lns}")
        k.label(l2)
        k(f"s_waitcnt vmcnt(16)\ns_cmp_lg_u32 {s(sCnt)}, 2\ns_cbranch_scc1 {l1}")
        early_check('kv'); early_load('q')
        kv_cursor(sXoff, srdX, 0); kv_cursor(sWoff, srdW, 3)
        for i in range(2): k(f"v_mov_b32 {v(vX+i)}, {v(vSt)}")
        for i in range(4): k(f"v_mov_b32 {v(vW+i)}, {v(vSt)}")
        k(f"s_branch {Lns}")
        k.label(l1)
        early_check('q'); q_loads((0, 1, 2, 3))
        kv_cursor(sXoff, srdX, 1)
        k(f"s_mov_b32 {s(srdW+2)}, 0\ns_branch {Lns}")
        k.label(l_stop)
        k(f"s_mov_b32 {s(srdX+2)}, 0\ns_mov_b32 {s(srdW+2)}, 0\ns_branch {Lns}")
    k.label(Leps)
    Lns3 = k.newlab('ns3')
    k(f"s_mov_b32 {s(t2)}, {s(CP['scale'])}\ns_mov_b32 {s(t3)}, {s(CP['scale'])}\ns_cmp_eq_u32 {s(CP['scale'])}, 0\ns_cbranch_scc1 {Lns3}")
    for scaled in (1, 0):
        if not scaled: k.label(Lns3)
        for p_ in range(32):
            sp = acc(2 * (p_ >> 3), p_ & 7)
            if sp[0] == 'a':
                for i in range(8): k(f"v_accvgpr_read_b32 {v(vT+i)}, {a(sp[1]+i)}")
                b = vT
            else:
                b = sp[1]
            if scaled:
                for i in range(0, 8, 2): k(f"v_pk_mul_f32 {v(b+i,2)}, {v(b+i,2)}, {s(t2,2)}")
            for i in range(4): k(f"v_cvt_pk_bf16_f32 {v(b+i)}, {v(b+2*i)}, {v(b+2*i+1)}")
            for i in range(4): k(f"v_accvgpr_write_b32 {a(128 + 4*p_ + i)}, {v(b+i)}")
        k(f"s_setpc_b64 {s(sRe,2)}")
    k.label(Lepf)
    Lnoscale = k.newlab('noscale')
    k("s_nop 7")
    k(f"s_cmp_eq_u32 {s(CP['scale'])}, 0\ns_cbranch_scc1 {Lnoscale}")
    for scaled in (1, 0):
        if not scaled: k.label(Lnoscale)
        k(f"s_mov_b32 {s(t1)}, {s(CP['obase'])}\ns_mov_b32 {s(t2)}, {s(CP['scale'])}\ns_mov_b32 {s(t3)}, {s(CP['scale'])}")
        for e in range(4):
            k(f"s_mov_b32 {s(t0)}, {s(t1)}")
            for j in range(8):
                sp = acc(2 * e, j)
                if sp[0] == 'a':
                    for i in range(8): k(f"v_accvgpr_read_b32 {v(vT+i)}, {a(sp[1]+i)}")
                    b = vT
                else:
                    b = sp[1]
                if scaled:
                    for i in range(0, 8, 2): k(f"v_pk_mul_f32 {v(b+i,2)}, {v(b+i,2)}, {s(t2,2)}")
                for i in range(4):
                    k(f"v_cvt_pk_bf16_f32 {v(b+i)}, {v(b+2*i)}, {v(b+2*i+1)}")
                k(f"buffer_store_dwordx4 {v(b,4)}, {v(vSt)}, {s(srdO,4)}, {s(t0)} offen{sfx}")
                k(f"s_add_u32 {s(t0)}, {s(t0)}, {s(CP['Sj'])}")
                if sp[0] == 'a': k("s_nop 1")
            k(f"s_add_u32 {s(t1)}, {s(t1)}, {s(CP['Si'])}")
        k(f"s_setpc_b64 {s(sRe,2)}")
    Lepl = k.newlab('epl')
    k.label(Lepl)
    SORD = list(range(20, 32)) + list(range(16, 20))
    Lns2 = k.newlab('ns2')
    k(f"s_mov_b32 {s(t2)}, {s(CP['scale'])}\ns_mov_b32 {s(t3)}, {s(CP['scale'])}\ns_cmp_eq_u32 {s(CP['scale'])}, 0\ns_cbranch_scc1 {Lns2}")
    for scaled in (1, 0):
        if not scaled: k.label(Lns2)
        k(f"s_mov_b32 {s(t0)}, {s(CP['obase'])}")
        for p_ in list(range(16)) + SORD:
            e, j = p_ >> 3, p_ & 7
            sp = acc(2 * e, j)
            if sp[0] == 'a':
                for i in range(8): k(f"v_accvgpr_read_b32 {v(vT+i)}, {a(sp[1]+i)}")
                b = vT
            else:
                b = sp[1]
            if scaled:
                for i in range(0, 8, 2): k(f"v_pk_mul_f32 {v(b+i,2)}, {v(b+i,2)}, {s(t2,2)}")
            d = b if p_ < 16 else 192 + 4 * SORD.index(p_)
            for i in range(4):
                k(f"v_cvt_pk_bf16_f32 {v(d+i)}, {v(b+2*i)}, {v(b+2*i+1)}")
            if p_ < 16:
                k(f"buffer_store_dwordx4 {v(b,4)}, {v(vSt)}, {s(srdO,4)}, {s(t0)} offen{sfx}")
                k(f"s_add_u32 {s(t0)}, {s(t0)}, {s(CP['Sj'])}" if p_ != 7 else f"s_add_u32 {s(t0)}, {s(CP['obase'])}, {s(CP['Si'])}")
        k(f"s_setpc_b64 {s(sRe,2)}")
    ool = k.lines; k.lines = save

    S_ = Regs('s', 24, 90)
    srdK = S_.alloc('srdK', 4, 4); srdV = S_.alloc('srdV', 4, 4)
    sh = S_.alloc('h'); snA = S_.alloc('na'); snB = S_.alloc('nb'); srdS = S_.alloc('srdS', 4, 4); sSa = S_.alloc('sa'); srdF = S_.alloc('srdF', 4, 4); sPw = S_.alloc('pw', 4, 2); sL2 = S_.alloc('l2')
    sKo = S_.alloc('ko'); sVo = S_.alloc('vo')
    sC1 = S_.alloc('c1'); sMK = S_.alloc('mk'); sW4 = S_.alloc('w4')
    sVis = S_.alloc('vis', 2, 2); sAbs = S_.alloc('abs'); sThr = S_.alloc('thr'); sThC = S_.alloc('thc')
    sE = S_.alloc('e', 6)
    sRa = S_.alloc('ra', 2, 2); sM0 = S_.alloc('m0', 2, 2)
    sQ = S_.alloc('qoff', 2); sLo = S_.alloc('lo', 3)
    V = Regs('v', 6, 64)
    vKV = V.alloc('kv'); vDma = V.alloc('dma'); vChk = V.alloc('chk'); vNinf = V.alloc('ninf'); vFo = V.alloc('fo'); vFx = V.alloc('fx')
    vL = V.alloc('l', 4, 4); vTB = V.alloc('tb', 4)
    vE = V.alloc('e', 8, 4); vTS = V.alloc('ts', 16, 4); vOne = V.alloc('one', 4, 4)
    def TS(qt): return vTS + 4 * qt
    vT = V.alloc('t', 16, 4)
    def Sreg(par, qt): return 64 + par * 32 + qt * 8
    def Preg(par, qt): return 128 + par * 16 + qt * 4
    def Nreg(qt): return 160 + qt * 8
    def Oreg(qt, db): return qt * 32 + db * 4
    def KF(n): return 192 + n * 4
    def VF(n): return 224 + n * 4
    T = vT; vDm2 = 255
    AB = (0, 1, 2, 3); A_ = (0, 1)
    MF = "v_mfma_f32_16x16x32_bf16"
    def xlane(regs, tmps, op):
        for sw_ in ("v_permlane32_swap_b32", "v_permlane16_swap_b32"):
            for x, y in zip(regs, tmps): k(f"v_mov_b32 {v(y)}, {v(x)}")
            k("s_nop 1")
            for x, y in zip(regs, tmps): k(f"{sw_} {v(x)}, {v(y)}")
            k("s_nop 1")
            for x, y in zip(regs, tmps): k(f"{op} {v(x)}, {v(x)}, {v(y)}")

    LQ, LK, LV = 192, 208, 228
    sLa = S_.alloc('la', 7)
    def local_setup():
        k.c("local attention addresses")
        k(f"s_and_b32 {s(t0)}, s2, 7\ns_lshl_b32 {s(t0)}, {s(t0)}, 4\ns_lshl_b32 {s(t1)}, {s(sw)}, 2\ns_add_u32 {s(sLo)}, {s(t0)}, {s(t1)}")
        k(f"s_lshr_b32 {s(t2)}, s2, 3\ns_lshl_b32 {s(t2)}, {s(t2)}, 17")
        k(f"s_lshl_b32 {s(t0)}, {s(sLo)}, 10\ns_add_u32 {s(t0)}, {s(t0)}, {s(t2)}\ns_add_u32 {s(sLa)}, {s(t0)}, {WS_QA}\ns_add_u32 {s(sLa+1)}, {s(t0)}, {WS_KA}")
        k(f"s_and_b32 {s(sLo+1)}, {s(sLo)}, 63\ns_cmp_eq_u32 {s(sLo+1)}, 0\ns_cselect_b32 {s(t3)}, 0, 1024\ns_sub_u32 {s(sLa+2)}, {s(sLa+1)}, {s(t3)}")
        k(f"s_lshl_b32 {s(t0)}, {s(sLo)}, 9\ns_add_u32 {s(t0)}, {s(t0)}, {s(t2)}\ns_add_u32 {s(sLa+3)}, {s(t0)}, {WS_VA}\ns_sub_u32 {s(sLa+4)}, {s(sLa+3)}, {s(t3)}")
        k(f"s_add_u32 {s(sLa+5)}, {s(sLa+3)}, 65536\ns_add_u32 {s(sLa+6)}, {s(sLa+4)}, 65536")
    def local_loads():
        def ld(dst, so, off): return (None, f"buffer_load_dwordx4 {v(dst,4)}, {v(vL16)}, {s(srdO,4)}, {s(so)} offen offset:{off} sc1", None)
        o = [ld(LQ+4*j, sLa, j*1024) for j in range(4)] + [ld(LK+4+4*j, sLa+1, j*1024) for j in range(4)] + [ld(LK, sLa+2, 0)]
        for db in range(2):
            o += [ld(LV+12*db+4+4*j, sLa+3+2*db, j*1024) for j in range(2)] + [ld(LV+12*db, sLa+4+2*db, 0)]
        return o
    def local_compute(vmw):
        k.c("local attention compute")
        C0, C1, CZ = 64, 68, 72
        Sb = 80; Mx = 112; My = 116; Pb = 120; Ob = 128
        k(f"v_and_b32 {v(T)}, 15, {v(vLane)}\nv_lshrrev_b32 {v(T+1)}, 4, {v(vLane)}\nv_lshlrev_b32 {v(T+1)}, 2, {v(T+1)}\nv_sub_u32 {v(T)}, {v(T)}, {v(T+1)}")
        for r_ in range(4):
            k(f"v_cmp_ge_i32 vcc, {r_-9}, {v(T)}\nv_subrev_u32 {v(T+2)}, {r_}, {v(T)}\nv_cmp_ge_u32 {s(sM0,2)}, 7, {v(T+2)}\ns_nop 0")
            k(f"v_cndmask_b32 {v(C0+r_)}, {v(vNinf)}, 0, vcc\nv_cndmask_b32 {v(C1+r_)}, {v(vNinf)}, 0, {s(sM0,2)}")
        k(f"s_cmp_eq_u32 {s(sLo+1)}, 0\ns_cselect_b64 vcc, -1, 0\ns_nop 0")
        for r_ in range(4): k(f"v_cndmask_b32 {v(CZ+r_)}, {v(C0+r_)}, {v(vNinf)}, vcc")
        k(f"s_waitcnt vmcnt({vmw})\ns_nop 0")
        for u in range(4):
            k(f"v_mfma_f32_16x16x32_bf16 {v(Sb+8*u,4)}, {v(LK+4*u,4)}, {v(LQ+4*u,4)}, {v(CZ if u == 0 else C0,4)}")
            k(f"v_mfma_f32_16x16x32_bf16 {v(Sb+8*u+4,4)}, {v(LK+4*u+4,4)}, {v(LQ+4*u,4)}, {v(C1,4)}")
        k("s_nop 7")
        U = range(4)
        PB = LQ
        for u in U: k(f"v_max3_f32 {v(Mx+u)}, {v(Sb+8*u)}, {v(Sb+8*u+1)}, {v(Sb+8*u+2)}")
        for u in U: k(f"v_max3_f32 {v(Mx+u)}, {v(Mx+u)}, {v(Sb+8*u+3)}, {v(Sb+8*u+4)}")
        for u in U: k(f"v_max3_f32 {v(Mx+u)}, {v(Mx+u)}, {v(Sb+8*u+5)}, {v(Sb+8*u+6)}")
        for u in U: k(f"v_max_f32 {v(Mx+u)}, {v(Mx+u)}, {v(Sb+8*u+7)}")
        def xl(op):
            for sw_ in ("v_permlane32_swap_b32", "v_permlane16_swap_b32"):
                for u in U: k(f"v_mov_b32 {v(My+u)}, {v(Mx+u)}")
                k("s_nop 1")
                for u in U: k(f"{sw_} {v(Mx+u)}, {v(My+u)}")
                k("s_nop 1")
                for u in U: k(f"{op} {v(Mx+u)}, {v(Mx+u)}, {v(My+u)}")
        xl("v_max_f32")
        for u in U:
            for i in range(8): k(f"v_sub_f32 {v(Sb+8*u+i)}, {v(Sb+8*u+i)}, {v(Mx+u)}")
        for u in U:
            for i in range(8): k(f"v_exp_f32 {v(Sb+8*u+i)}, {v(Sb+8*u+i)}")
        for u in U:
            for i in range(4): k(f"v_cvt_pk_bf16_f32 {v(PB+4*u+i)}, {v(Sb+8*u+2*i)}, {v(Sb+8*u+2*i+1)}")
        for u in U: k(f"v_add_f32 {v(Mx+u)}, {v(Sb+8*u)}, {v(Sb+8*u+1)}")
        for u in range(4):
            for db in range(2):
                k(f"v_mfma_f32_16x16x32_bf16 {v(Ob+8*u+4*db,4)}, {v(LV+12*db+2+2*u,4)}, {v(PB+4*u,4)}, 0")
        for i in range(2, 8):
            for u in U: k(f"v_add_f32 {v(Mx+u)}, {v(Mx+u)}, {v(Sb+8*u+i)}")
        xl("v_add_f32")
        for u in U: k(f"v_rcp_f32 {v(Mx+u)}, {v(Mx+u)}")
        k(f"s_lshl_b32 {s(t0)}, {s(sLo)}, 10\ns_lshr_b32 {s(t1)}, s2, 3\ns_lshl_b32 {s(t1)}, {s(t1)}, 17\ns_add_u32 {s(t0)}, {s(t0)}, {s(t1)}\ns_add_u32 {s(t0)}, {s(t0)}, {WS_OA}")
        for u in U:
            for i in range(8): k(f"v_mul_f32 {v(Ob+8*u+i)}, {v(Ob+8*u+i)}, {v(Mx+u)}")
            for i in range(4): k(f"v_cvt_pk_bf16_f32 {v(Ob+8*u+i)}, {v(Ob+8*u+2*i)}, {v(Ob+8*u+2*i+1)}")
            k(f"buffer_store_dwordx4 {v(Ob+8*u,4)}, {v(vL16)}, {s(srdO,4)}, {s(t0)} offen offset:{u*1024}{sfx}")

    head_ids()
    k(f"s_mov_b32 {s(sh)}, {s(t2)}\ns_bfe_u32 {s(snA)}, {TABA}, {s(t3)}\ns_add_u32 {s(snA)}, {s(snA)}, 1\ns_bfe_u32 {s(snB)}, {TABB}, {s(t3)}\ns_add_u32 {s(snB)}, {s(snB)}, 1")
    k(f"s_lshl_b32 {s(sW4)}, {s(sw)}, 12\nv_add_u32 {v(vDma)}, {s(sW4)}, {v(vL16)}")
    k(f"s_lshl_b32 {s(t0)}, {s(snB)}, 2\ns_lshl_b32 {s(t1)}, {s(snA)}, 2\ns_lshl_b32 {s(srdK+2)}, {s(t1)}, 13\ns_mov_b32 {s(srdV+2)}, {s(srdK+2)}")
    k(f"s_sub_u32 {s(sE)}, {s(t0)}, 4\ns_add_u32 {s(sE)}, {s(sE)}, {s(sw)}\ns_add_u32 {s(sE+1)}, {s(sE)}, 1\ns_mov_b32 {s(sE+2)}, {s(t0)}")
    k(f"s_sub_u32 {s(sE+3)}, {s(t1)}, 4\ns_add_u32 {s(sE+3)}, {s(sE+3)}, {s(sw)}\ns_add_u32 {s(sE+4)}, {s(sE+3)}, 1\ns_mov_b32 {s(sE+5)}, {s(t1)}")
    k(f"s_mov_b32 {s(srdK+3)}, 0x20000\ns_mov_b32 {s(srdV+3)}, 0x20000\ns_lshl_b32 {s(sLo+2)}, {s(sh)}, 19")
    k(f"s_add_u32 {s(t0)}, {s(sLo+2)}, {WS_KB}\ns_add_u32 {s(srdK)}, {s(sWS)}, {s(t0)}\ns_addc_u32 {s(srdK+1)}, {s(sWS+1)}, 0")
    k(f"s_add_u32 {s(t0)}, {s(sLo+2)}, {WS_VB}\ns_add_u32 {s(srdV)}, {s(sWS)}, {s(t0)}\ns_addc_u32 {s(srdV+1)}, {s(sWS+1)}, 0")
    def dmaK(j): return f"buffer_load_dwordx4 {v(vDma)}, {s(srdK,4)}, {s(sKo)} offen offset:{j*1024}{ksc} lds"
    def dmaV(j): return f"buffer_load_dwordx4 {v(vDma)}, {s(srdV,4)}, {s(sVo)} offen offset:{j*1024}{ksc} lds"
    def dma_group():
        g = [(f"s_mov_b32 m0, {s(sMK)}", dmaK(0), None), (None, dmaK(1), None), (None, dmaK(2), None), (None, dmaK(3), f"s_add_u32 {s(sKo)}, {s(sKo)}, {STG}"),
             (f"s_add_u32 m0, {s(sMK)}, {STG}", dmaV(0), None), (None, dmaV(1), None), (None, dmaV(2), None), (None, dmaV(3), f"s_add_u32 {s(sVo)}, {s(sVo)}, {STG}")]
        return g
    def emit_group(items):
        for pre, ins, post in items:
            if pre: k(pre + "\ns_nop 0")
            k(ins)
            if post: k(post)
    Lw0 = k.newlab('w0')
    k(f"s_cmp_eq_u32 {s(sHasNext)}, 1\ns_cbranch_scc1 {Lw0}")
    k(f"s_mov_b32 {s(sKo)}, {2*STG}\ns_mov_b32 {s(sVo)}, {STG}\ns_add_u32 {s(sMK)}, {s(sW4)}, {2*SLOT}")
    emit_group(dma_group())
    ST.stamp(7)
    k(f"s_call_b64 {s(sRe,2)}, {Lepl}\ns_mov_b32 {s(sPend)}, {s(CP['flag'])}\ns_mov_b32 {s(srdS+2)}, {WS_SIZE}\ns_branch {Linit}")
    k.label(Lw0)
    k(f"s_mov_b32 {s(sKo)}, 0\ns_mov_b32 {s(sVo)}, 0\ns_mov_b32 m0, {s(sW4)}\ns_nop 0")
    for j in range(4): k(dmaK(j))
    k(f"s_mov_b32 {s(sKo)}, {STG}\ns_add_u32 {s(sMK)}, {s(sW4)}, {SLOT}")
    for _ in range(3):
        emit_group(dma_group())
        k(f"s_add_u32 {s(sMK)}, {s(sMK)}, {SLOT}")
    ST.stamp(7)
    k(f"s_waitcnt vmcnt(0)\ns_mov_b32 {s(srdS+2)}, 0")
    k.label(Linit)
    k(f"s_mov_b32 {s(sKo)}, {4*STG}\ns_mov_b32 {s(sVo)}, {3*STG}")
    ST.stamp(10)
    k(f"s_nop 1\nv_mov_b32 {v(vNinf)}, 0xff800000\ns_mov_b32 {s(sThr)}, {f32bits(THR)}")
    k(f"s_lshl_b32 {s(t1)}, {s(sw)}, 1\ns_sub_u32 {s(t1)}, {s(t1)}, 8")
    k(f"s_lshl_b32 {s(sQ)}, {s(snA)}, 3\ns_add_u32 {s(sQ)}, {s(sQ)}, {s(t1)}\ns_lshl_b32 {s(sQ+1)}, {s(snB)}, 3\ns_add_u32 {s(sQ+1)}, {s(sQ+1)}, {s(t1)}")
    k(f"s_mov_b32 {s(srdS)}, {s(sWS)}\ns_mov_b32 {s(srdS+1)}, {s(sWS+1)}\ns_mov_b32 {s(srdS+3)}, 0x20000")
    k(f"s_load_dwordx2 {s(sPw,2)}, s[0:1], {KARG['B_w_o']}\ns_load_dwordx2 {s(sPw+2,2)}, s[0:1], {KARG['A_wo']}\ns_mov_b32 {s(srdF+3)}, 0x20000")
    k(f"s_lshl_b32 {s(t0)}, {s(CP['Si'])}, 1\ns_add_u32 {s(CP['obase'])}, {s(CP['obase'])}, {s(t0)}\ns_lshl_b32 {s(t0)}, {s(CP['Sj'])}, 2\ns_add_u32 {s(sSa)}, {s(CP['obase'])}, {s(t0)}")
    def stash_item(m):
        post = f"s_add_u32 {s(sSa)}, {s(sSa)}, {s(CP['Sj'])}"
        if m == 3: post = f"s_add_u32 {s(sSa)}, {s(CP['obase'])}, {s(CP['Si'])}"
        if m == 11: post = f"s_mov_b32 {s(sSa)}, {s(CP['obase'])}"
        return (None, f"buffer_store_dwordx4 {v(192+4*m,4)}, {v(vL16)}, {s(srdS,4)}, {s(sSa)} offen{sfx}", post)
    k(f"s_lshr_b32 {s(t0)}, {s(sh)}, 1\ns_lshl_b32 {s(t0)}, {s(t0)}, 7\ns_add_u32 {s(t0)}, {s(t0)}, {WS_FLAG + 32*128}\ns_lshr_b32 {s(t1)}, s2, 6\ns_lshl_b32 {s(t1)}, {s(t1)}, 8\ns_add_u32 {s(t1)}, {s(t1)}, {WS_FLAG + 48*128 - 64}")
    k(f"v_min_u32 {v(vFo)}, 31, {v(vLane)}\nv_lshlrev_b32 {v(vFo)}, 3, {v(vFo)}\nv_mov_b32 {v(vFx)}, {s(t0)}\nv_mov_b32 {v(vChk)}, {s(t1)}\nv_cmp_gt_u32 vcc, 8, {v(vLane)}\ns_nop 1\nv_cndmask_b32 {v(vFx)}, {v(vChk)}, {v(vFx)}, vcc\nv_add_u32 {v(vFo)}, {v(vFo)}, {v(vFx)}")
    if 'noclr' not in abl:
        Lc3 = k.newlab('c3')
        k(f"s_lshl_b32 {s(t0)}, {s(sw)}, 8\ns_add_u32 {s(t0)}, {s(t0)}, s2\ns_cmp_ge_u32 {s(t0)}, 128\ns_cbranch_scc1 {Lc3}\ns_lshl_b32 {s(t0)}, {s(t0)}, 7\ns_add_u32 {s(t0)}, {s(t0)}, {WS_FLAG3}\nv_mov_b32 {v(vChk)}, 0\ns_mov_b64 exec, 1")
        k(f"buffer_store_dword {v(vChk)}, off, {s(srdO,4)}, {s(t0)} sc1\ns_mov_b64 exec, -1")
        k.label(Lc3)
    k(f"s_mov_b32 {s(sC1)}, 0\nv_mov_b32 {v(vKV)}, {v(vL16)}")
    for i in range(128): k(f"v_accvgpr_write_b32 {a(i)}, 0")
    for i in range(32): k(f"v_mov_b32 {v(Nreg(0)+i)}, 0")
    for i in range(4): k(f"v_mov_b32 {v(vL+i)}, 0\nv_mov_b32 {v(TS(i))}, 0\nv_mov_b32 {v(vOne+i)}, 0x3f803f80")
    def l2w():
        k(f"v_lshrrev_b32 {v(T+14)}, 3, {v(vLane)}\nv_lshlrev_b32 {v(T+14)}, 11, {v(T+14)}\nv_and_b32 {v(T+13)}, 7, {v(vLane)}\nv_lshl_add_u32 {v(T+14)}, {v(T+13)}, 7, {v(T+14)}")
        k(f"s_lshr_b32 {s(t0)}, s2, 3\ns_lshl_b32 {s(t0)}, {s(t0)}, 2\ns_add_u32 {s(t0)}, {s(t0)}, {s(sw)}\ns_lshl_b32 {s(t0)}, {s(t0)}, 14\ns_and_b32 {s(t1)}, s2, 1\ns_lshl_b32 {s(t1)}, {s(t1)}, 10\ns_add_u32 {s(t0)}, {s(t0)}, {s(t1)}")
        k(f"s_bitcmp1_b32 s2, 2\ns_cselect_b32 {s(t1)}, 0, {41*64*2048}\ns_mov_b32 {s(t2)}, {8*MB}\ns_cselect_b32 {s(srdF+2)}, {41*64*2048}, {s(t2)}\ns_cselect_b32 {s(t3)}, 0, {2*MB}\ns_add_u32 {s(t1)}, {s(t1)}, {s(t0)}")
        k(f"s_mov_b32 {s(srdF)}, {s(sPw)}\ns_mov_b32 {s(srdF+1)}, {s(sPw+1)}")
        L2W = []
        for r_ in ((2, 1, 0) if 'l2rev' in abl else (0, 1, 2)):
            L2W.append(f"s_add_u32 {s(t2)}, {s(t1)}, {r_*2*MB}\nbuffer_load_dword {v(vDm2)}, {v(T+14)}, {s(srdF,4)}, {s(t2)} offen")
        for x in L2W: k(x)
        k(f"s_mov_b32 {s(srdF)}, {s(sPw+2)}\ns_mov_b32 {s(srdF+1)}, {s(sPw+3)}\ns_mov_b32 {s(srdF+2)}, {s(t3)}\nbuffer_load_dword {v(vDm2)}, {v(T+14)}, {s(srdF,4)}, {s(t0)} offen")
    def events(which):
        for e in which:
            ln = k.newlab('e')
            if e >= 6:
                ln2 = k.newlab('e')
                fl = f"buffer_load_dwordx2 {v(vFlag,2)}, {v(vFo)}, {s(srdO,4)}, 0 offen sc1"
                fl2 = f"s_lshr_b32 {s(t0)}, {s(sh)}, 1\ns_lshl_b32 {s(t0)}, {s(t0)}, 7\ns_add_u32 {s(t0)}, {s(t0)}, {WS_FLAG + 16*128}\nv_min_u32 {v(vFa)}, 1, {v(vLane)}\nv_lshlrev_b32 {v(vFa)}, 3, {v(vFa)}\nbuffer_load_dwordx2 {v(vFlag,2)}, {v(vFa)}, {s(srdO,4)}, {s(t0)} offen sc1"
                def touch(p_, size):
                    if not TOUCH: return
                    k(f"s_mov_b32 {s(srdF)}, {s(p_)}\ns_mov_b32 {s(srdF+1)}, {s(p_+1)}\ns_mov_b32 {s(srdF+2)}, {size}\ns_lshl_b32 {s(t0)}, s2, 2\ns_add_u32 {s(t0)}, {s(t0)}, {s(sw)}\ns_lshl_b32 {s(t0)}, {s(t0)}, 13")
                    k(f"v_lshlrev_b32 {v(T+14)}, 7, {v(vLane)}\nbuffer_load_dword {v(vDm2)}, {v(T+14)}, {s(srdF,4)}, {s(t0)} offen")
                def check(load, exp):
                    if 'nochk' in abl: return
                    lsp = k.newlab('spin')
                    k(f"s_waitcnt vmcnt({18 if TOUCH else 16})\ns_mov_b32 s3, {SPIN}")
                    k.label(lsp)
                    k(f"v_cmp_ne_u64 {s(sM0,2)}, {s(sTok,2)}, {v(vFlag,2)}\ns_nop 3\ns_cmp_eq_u64 {s(sM0,2)}, 0\ns_cbranch_scc1 {ln}\ns_sub_u32 s3, s3, 1\ns_cbranch_scc1 {ln}\ns_sleep 32\n{load}\ns_waitcnt vmcnt(0)\ns_branch {lsp}")
                if L2D:
                    k(f"s_cmp_lg_u32 {s(sAbs)}, {s(sL2)}\ns_cbranch_scc1 {ln2}")
                    l2w()
                    k.label(ln2)
                k(f"s_cmp_gt_u32 {s(sAbs)}, {U_CHK}\ns_cbranch_scc1 {ln}")
                acts = [(U_PUB, None), (U_POLL, lambda: (k(fl), touch(sPw, 8 * MB))), (U_CHK, lambda: (touch(sPw + 2, 2 * MB), check(fl, v(vFx))))]
                for u_, f_ in acts:
                    lx = k.newlab('e')
                    k(f"s_cmp_lg_u32 {s(sAbs)}, {u_}\ns_cbranch_scc1 {lx}")
                    if f_ is None:
                        k(f"s_cmp_eq_u32 {s(sPend)}, -1\ns_cbranch_scc1 {ln}")
                        publish(sPend)
                    else: f_()
                    k(f"s_branch {ln}")
                    k.label(lx)
                k.label(ln)
                continue
            k(f"s_cmp_lg_u32 {s(sAbs)}, {s(sE+e)}\ns_cbranch_scc1 {ln}")
            lo = 2 if e < 2 else 0
            for r_ in range(4):
                if e in (0, 3):
                    k(f"v_add_f32 {v(Nreg(lo)+r_)}, {v(Nreg(lo)+r_)}, {v(vTB+r_)}\nv_mov_b32 {v(Nreg(lo)+4+r_)}, {v(vNinf)}\nv_add_f32 {v(Nreg(lo+1)+4+r_)}, {v(Nreg(lo+1)+4+r_)}, {v(vTB+r_)}")
                else:
                    k(f"v_mov_b32 {v(Nreg(lo)+r_)}, {v(vNinf)}\nv_mov_b32 {v(Nreg(lo+1)+r_)}, {v(vNinf)}\nv_mov_b32 {v(Nreg(lo+1)+4+r_)}, {v(vNinf)}")
            k("s_nop 0")
            k.label(ln)
    Lrs = {(p_, n_): k.newlab(f'rs{p_}{n_}') for p_ in range(2) for n_ in (2, 4)}
    local_setup()
    k(f"v_and_b32 {v(T)}, 15, {v(vLane)}\nv_lshrrev_b32 {v(T+1)}, 4, {v(vLane)}\nv_lshlrev_b32 {v(T+1)}, 2, {v(T+1)}\nv_sub_u32 {v(T)}, {v(T)}, {v(T+1)}")
    for r_ in range(4):
        k(f"v_cmp_le_i32 vcc, {r_}, {v(T)}\ns_nop 1\nv_cndmask_b32 {v(vTB+r_)}, {v(vNinf)}, 0, vcc")
    k(f"s_mov_b32 {s(sVis)}, {sum(1 << (u_-1) for u_ in (U_PUB, U_POLL, U_CHK))}\ns_mov_b32 {s(sVis+1)}, 0")
    for e in range(6):
        k(f"s_sub_u32 {s(t0)}, {s(sE+e)}, 1\ns_bitset1_b64 {s(sVis,2)}, {s(t0)}")
    if L2D: k(f"s_sub_u32 {s(sL2)}, {s(sE+5)}, {L2D}\ns_sub_u32 {s(t0)}, {s(sL2)}, 1\ns_bitset1_b64 {s(sVis,2)}, {s(t0)}")
    k(f"s_mov_b32 {s(sAbs)}, 0")
    events((0,))
    k(f"s_waitcnt vmcnt(24) lgkmcnt(0)\ns_barrier")
    ST.stamp(11)
    def rdK(unit, a_): return f"ds_read_b128 {a(KF(a_),4)}, {v(vKV)} offset:{unit*8192 + a_*1024}"
    def rdV(unit, n): return f"ds_read_b128 {a(VF(n),4)}, {v(vKV)} offset:{STG + unit*8192 + n*1024}"
    for a_ in range(8): k(rdK(0, a_))

    stubs = []; calls = []
    def slow_path(par, sm, evs):
        l1 = k.newlab('sp')
        src = vChk
        k(f"v_cmp_lt_f32 vcc, {s(sThr)}, {v(src)}")
        events(evs)
        st_ = k.newlab('rc')
        k(f"s_cbranch_vccnz {st_}")
        k.label(l1)
        calls.append((st_, l1, Lrs[(par, len(sm))]))

    def qk_mfmas(par, qk):
        mf = []
        for kb in range(2):
            for qt in qk:
                for e in range(4):
                    d = v(Sreg(par, qt) + 4 * kb, 4)
                    c = v(Nreg(qt) + 4 * kb, 4) if e == 0 else d
                    mf.append(f"{MF} {d}, {a(KF(kb*4+e),4)}, {a(Qreg(qt,e),4)}, {c}")
        return mf
    def step(which, qk, sm, pv, dma=(), dgaps=(), last=False, loop=None, evs=(), exit_e=None, vmw=16):
        par = 1 - which
        mf = qk_mfmas(par ^ 1, qk)
        nqk = len(mf)
        for n in range(8):
            for qt in pv:
                d = a(Oreg(qt, n), 4)
                mf.append(f"{MF} {d}, {a(VF(n),4)}, {v(Preg(par ^ 1, qt), 4)}, {d}")
        N = len(mf); npv = N - nqk
        first = {}
        head = {g: [] for g in range(N)}
        tail = {g: [] for g in range(N)}
        before = []; after = []
        bar = which == 1 and not last
        vfix = {}
        dg = list(dgaps)[:len(dma)]
        assert len(dg) == len(dma)
        def place_reads(g, items, stride):
            for x in items:
                while g in dg or head[g]: g += 1
                head[g].append((4, x)); g += stride
            return g
        if pv:
            if nqk: place_reads(1, [rdV(which, n) for n in range(8)], 3 if nqk > 16 else 1)
            else: before += [rdV(which, n) for n in range(8)]
        midw = (f"s_waitcnt vmcnt({vmw}) lgkmcnt(0)" if bar else "s_waitcnt lgkmcnt(0)")
        rot = [f"s_add_u32 {s(sMK)}, {s(sC1)}, {s(sW4)}", f"s_add_u32 {s(sC1)}, {s(sC1)}, {SLOT}", f"s_and_b32 {s(sC1)}, {s(sC1)}, 0x1ffff"]
        rotv = [f"v_add_u32 {v(vKV)}, {s(sC1)}, {v(vL16)}"]
        nxt = [] if last else [rdK(which ^ 1, a_) for a_ in range(8)]
        for g in dg: first[g] = None
        posts = []
        for (pre, ins, post), g in zip(dma, dg):
            if pre:
                assert g - 1 not in first
                first[g - 1] = pre
            if post: posts.append((g + 1, post))
        def put_first(g, x, limit):
            while g in first and g < limit: g += 1
            assert g < limit, (x, g, limit)
            first[g] = x
            return g
        if npv:
            if nqk:
                assert nqk - 1 not in first
                first[nqk - 1] = midw
            else: before.append(midw)
            g0 = nqk
            if bar:
                head[nqk].append((8, "s_barrier")); first[nqk] = None
                g0 = nqk + 1
                assert not any(p_[0] for p_ in dma)
                g = 0
                for x in rot: g = put_first(g, x, nqk - 2) + 1
                vfix[nqk - 1] = [rotv[0]]
            if nxt:
                place_reads(g0, nxt[:4], 3 if npv > 16 else 2)
                for x, g in zip(nxt[4:], [g for g in range(N - 7, N - 1) if g not in dg][-4:]):
                    assert not head[g]
                    head[g].append((4, x))
                assert N - 1 not in first
                first[N - 1] = "s_waitcnt lgkmcnt(4)"
        else:
            after += [midw] + (["s_barrier"] + rot + rotv if bar else []) + nxt + ["s_waitcnt lgkmcnt(0)"]
        if nqk:
            g = nqk // 2 - 1
            while g in first: g -= 1
            nrd = sum(1 for gg in range(g) for c, t_ in head[gg] if t_ and t_.startswith('ds_read'))
            first[g] = f"s_waitcnt lgkmcnt({nrd})"
        for (pre, ins, post), g in zip(dma, dg): head[g].append((8, ins))
        for g, x in posts: put_first(g, x, N)
        if sm and not last:
            gg = put_first(0, f"s_bitcmp1_b64 {s(sVis,2)}, {s(sAbs)}\ns_cselect_b32 {s(sThC)}, -1.0, {s(sThr)}", N)
            head[gg].insert(0, (4, None))
            put_first(gg + 1, f"s_add_u32 {s(sAbs)}, {s(sAbs)}, 1", N)
        ops = []
        def op(name, pr, cost, ins, deps=(), trans=False): ops.append(dict(id=name, pr=pr, cost=cost, ins=ins, deps=set(deps), trans=trans))
        seq = [(qt, n) for qt in sm for n in range(8)]
        for idx, (qt, n) in enumerate(seq):
            Sq = Sreg(par, qt); Pq = Preg(par, qt)
            if n == 0: op(('l', qt), idx + 3, 4, f"v_add_f32 {v(vL+qt)}, {v(vL+qt)}, {v(TS(qt))}")
            deps = [('c', seq[idx - 8][0], n // 2)] if idx >= 8 else []
            op(('e', qt, n), idx, 8, f"v_exp_f32 {v(vE + n)}, {v(Sq+n)}", deps, True)
            if n & 1: op(('c', qt, n // 2), idx + 1.5, 4, f"v_cvt_pk_bf16_f32 {v(Pq + n//2)}, {v(vE + n-1)}, {v(vE + n)}", [('e', qt, n - 1), ('e', qt, n)])
        thr = sThr if last else sThC
        fin = []
        if len(sm) == 4:
            fin = [f"v_max3_f32 {v(vChk)}, {v(TS(0))}, {v(TS(1))}, {v(TS(2))}", f"v_max_f32 {v(vChk)}, {v(vChk)}, {v(TS(3))}"]
        elif sm:
            fin = [f"v_max_f32 {v(vChk)}, {v(TS(0))}, {v(TS(1))}"]
        if sm: fin.append(f"v_cmp_nge_f32 vcc, {s(thr)}, {v(vChk)}")
        ops.sort(key=lambda o: o['pr'])
        done = set(); lasttrans = None
        fixedc = [sum(x[0] for x in head[g]) + 4 * len(vfix.get(g, [])) for g in range(N)]
        NV = max(N - RESV, 1)
        NG = NV + max(len(sm) - 1, 0)
        tot = sum(o['cost'] for o in ops) + sum(fixedc[:NV])
        for t_ in before: k(t_)
        cum = 0; gi = 0
        pend = list(sm)
        cdone = {}
        lastsum = None
        def nstates(since):
            n = 0
            for ln in k.lines[since:]:
                ln = ln.strip()
                n += int(ln.split()[1]) + 1 if ln.startswith("s_nop") else 1
            return n
        def fill(used, force):
            nonlocal cum, gi, lasttrans
            gi += 1
            target = tot * gi / NG
            while True:
                ready = [o for o in ops if o['id'] not in done and o['deps'] <= done and (o['trans'] or lasttrans not in o['deps'])]
                if not ready:
                    if force and len(done) < len(ops): k("s_nop 0"); lasttrans = None; continue
                    break
                if not force:
                    room = max(CAP - used, 4 * int((target - cum + 2) // 4))
                    if used >= CAP and cum + 2 >= target: break
                    fit = [o for o in ready if o['cost'] <= room]
                    if not fit:
                        if used >= CAP or cum >= target: break
                        fit = ready
                    o = fit[0]
                else: o = ready[0]
                k(o['ins']); done.add(o['id']); used += o['cost']; cum += o['cost']
                lasttrans = o['id'] if o['trans'] else None
                if o['id'][0] == 'c': cdone[o['id'][1]] = len(k.lines)
        def try_sum(force=False):
            nonlocal lastsum, lasttrans
            while pend and all(('c', pend[0], j) in done for j in range(4)) and ('l', pend[0]) in done:
                gap_ = len(k.lines) - cdone[pend[0]]
                if gap_ < 2:
                    if not force: return
                    k(f"s_nop {1 - gap_}")
                qt = pend.pop(0)
                k(f"{MF} {v(TS(qt),4)}, {v(vOne,4)}, {v(Preg(par, qt),4)}, 0"); lasttrans = None
                lastsum = len(k.lines)
                if pend: fill(0, False)
        for g in range(N):
            k(mf[g]); lasttrans = None
            if first.get(g): k(first[g])
            for c, t_ in head[g]:
                if t_: k(t_)
            for t_ in vfix.get(g, []): k(t_)
            cum += fixedc[g]
            if g < NV: fill(fixedc[g], g == NV - 1)
            if g < N - 1: try_sum(force=(g >= NV - 1))
            if fin and not pend and g < N - 1:
                if g == N - 2:
                    gap_ = nstates(lastsum)
                    if gap_ < 8: k(f"s_nop {7 - gap_}")
                    for t_ in fin: k(t_)
                    fin = []
                elif nstates(lastsum) >= 8:
                    for _ in range(min(len(fin), (CAP - fixedc[g]) // 4)): k(fin.pop(0))
                elif k.lines[-1].strip().startswith("v_mfma") and nstates(lastsum) < 8: k("s_nop 2")
                elif fixedc[g] <= 4 and nstates(lastsum) < 8: k("s_nop 0")
        assert len(done) == len(ops) and not pend
        for t_ in after: k(t_)
        after = []
        assert not fin
        if sm:
            if loop:
                k(f"s_cbranch_vccz {loop}")
                slow_path(par, sm, evs)
                k(f"s_cmp_lg_u32 {s(sAbs)}, {s(sE+exit_e)}\ns_cbranch_scc1 {loop}")
            else:
                st_, rt = k.newlab('stub'), k.newlab('ret')
                k(f"s_cbranch_vccnz {st_}"); k.label(rt)
                stubs.append((st_, rt, par, sm, evs))

    def epilogue(st, extra=()):
        extra = list(extra)
        k.c(f"epilogue set {st}")
        R = vE
        for j in range(2): k(f"v_add_f32 {v(R+j)}, {v(vL+2*st+j)}, {v(TS(2*st+j))}")
        k("s_nop 3")
        k(f"v_rcp_f32 {v(R)}, {v(R)}\nv_rcp_f32 {v(R+1)}, {v(R+1)}")
        k(f"s_lshl_b32 {s(t0)}, {s(sQ+st)}, 10\ns_add_u32 {s(t0)}, {s(t0)}, {s(sLo+2)}\ns_add_u32 {s(t0)}, {s(t0)}, {WS_CTX}")
        for e in range(4):
            for j in range(2):
                b = T + 8 * j
                for i in range(8): k(f"v_accvgpr_read_b32 {v(b+i)}, {a(Oreg(2*st+j, 2*e) + i)}")
                for i in range(8): k(f"v_mul_f32 {v(b+i)}, {v(R+j)}, {v(b+i)}")
                for i in range(4): k(f"v_cvt_pk_bf16_f32 {v(b+i)}, {v(b+2*i)}, {v(b+2*i+1)}")
                k(f"buffer_store_dwordx4 {v(b,4)}, {v(vL16)}, {s(srdO,4)}, {s(t0)} offen offset:{j*1024}{sfx}")
                if extra: k(extra.pop(0)[1])
            k(f"s_add_u32 {s(t0)}, {s(t0)}, 131072")
        for x in extra: k(x[1])

    G = dma_group(); LL = local_loads()
    k.c("head")
    k("s_waitcnt lgkmcnt(0)")
    for i, m_ in enumerate(qk_mfmas(0, AB)):
        k(m_)
        if i % 4 == 1: emit_group([stash_item(i // 4)])
        if 16 <= i < 20: k(rdK(1, i - 16))
    for a_ in range(4, 8): k(rdK(1, a_))
    k(f"s_mov_b32 {s(sAbs)}, 1\ns_nop 0")
    k("s_nop 3")
    for j0, j1, j2 in ((0, 1, 2), (None, 3, 4), (None, 5, 6)):
        for qt in AB: k(f"v_max3_f32 {v(T+qt)}, {v(Sreg(0,qt)) if j0 == 0 else v(T+qt)}, {v(Sreg(0,qt)+j1)}, {v(Sreg(0,qt)+j2)}")
    for qt in AB: k(f"v_max_f32 {v(T+qt)}, {v(T+qt)}, {v(Sreg(0,qt)+7)}")
    xlane([T + q_ for q_ in AB], [T + 4 + q_ for q_ in AB], "v_max_f32")
    for qt in AB:
        for i in range(8): k(f"v_sub_f32 {v(Nreg(qt)+i)}, {v(Nreg(qt)+i)}, {v(T+qt)}")
    for qt in AB:
        for i in range(8): k(f"v_sub_f32 {v(Sreg(0,qt)+i)}, {v(Sreg(0,qt)+i)}, {v(T+qt)}")
    events((0, 1))
    k("s_waitcnt lgkmcnt(0)")
    step(1, AB, AB, (), dma=[stash_item(m) for m in range(8, 16)], dgaps=(2, 5, 9, 12, 17, 20, 23, 26), evs=(0, 1), vmw=40)
    ST.stamp(12)
    Ld = k.newlab('dual'); k.label(Ld)
    step(0, AB, AB, AB, dma=G[:5], dgaps=(5, 18, 27, 43, 52), evs=(0, 1)); step(1, AB, AB, AB, dma=G[5:], dgaps=(6, 18, 27), loop=Ld, evs=(0, 1, 3, 6), exit_e=2)
    step(0, A_, AB, AB, dma=G[:5], dgaps=(3, 11, 21, 31, 41), evs=(3, 4)); step(1, A_, A_, AB, dma=G[5:], dgaps=(3, 8, 13), evs=(3, 4, 6))
    epilogue(1)
    ST.stamp(13)
    Ls = k.newlab('single'); k.label(Ls)
    step(0, A_, A_, A_, dma=G[:5], dgaps=(2, 10, 14, 19, 28), evs=(3, 4)); step(1, A_, A_, A_, dma=G[5:], dgaps=(4, 9, 13), loop=Ls, evs=(3, 4, 6), exit_e=5)
    ST.stamp(14)
    step(0, (), A_, A_, last=True, dma=LL[:7], dgaps=(0, 2, 4, 6, 8, 10, 12)); k("s_nop 1"); step(1, (), (), A_, last=True, dma=LL[7:], dgaps=(0, 2, 4, 6, 8, 10, 12, 14))
    epilogue(0)
    ST.stamp(15)
    local_compute(8)
    if stamps:
        k('s_waitcnt vmcnt(0)')
        ST.stamp(8); ST.stamp(9, real=True)
        ST.flush(srdO, sw, vT, vLane, base=0x100000)
    k.label(Lend)
    k("s_endpgm")
    for st_, rt, par, sm, evs in stubs:
        k.label(st_)
        slow_path(par, sm, evs)
        k(f"s_branch {rt}")
    for st_, rt, target in calls:
        k.label(st_)
        k(f"s_call_b64 {s(sRa,2)}, {target}\ns_branch {rt}")

    for par, nset in Lrs:
        k.label(Lrs[(par, nset)])
        k("s_nop 15")
        for qt in AB[:nset]:
            Sq = Sreg(par, qt); So = Sreg(par ^ 1, qt); Pq = Preg(par, qt); N_ = Nreg(qt)
            k(f"v_max3_f32 {v(T)}, {v(Sq)}, {v(Sq+1)}, {v(Sq+2)}")
            for i in (3, 5): k(f"v_max3_f32 {v(T)}, {v(T)}, {v(Sq+i)}, {v(Sq+i+1)}")
            k(f"v_max3_f32 {v(T)}, {v(T)}, {v(Sq+7)}, 0")
            xlane([T], [T + 1], "v_max_f32")
            k(f"v_exp_f32 {v(T+1)}, -{v(T)}")
            for i in range(8): k(f"v_sub_f32 {v(Sq+i)}, {v(Sq+i)}, {v(T)}")
            for i in range(8): k(f"v_sub_f32 {v(So+i)}, {v(So+i)}, {v(T)}")
            for i in range(8): k(f"v_sub_f32 {v(N_+i)}, {v(N_+i)}, {v(T)}")
            k(f"v_mul_f32 {v(vL+qt)}, {v(vL+qt)}, {v(T+1)}")
            for i0 in range(0, 32, 8):
                for i in range(8): k(f"v_accvgpr_read_b32 {v(T+4+i)}, {a(Oreg(qt,0)+i0+i)}")
                for i in range(8): k(f"v_mul_f32 {v(T+4+i)}, {v(T+4+i)}, {v(T+1)}")
                for i in range(8): k(f"v_accvgpr_write_b32 {a(Oreg(qt,0)+i0+i)}, {v(T+4+i)}")
            for i in range(8): k(f"v_exp_f32 {v(T+4+i)}, {v(Sq+i)}")
            k("s_nop 0")
            for i in range(4): k(f"v_cvt_pk_bf16_f32 {v(Pq+i)}, {v(T+4+2*i)}, {v(T+5+2*i)}")
            k(f"s_nop 1\n{MF} {v(TS(qt),4)}, {v(vOne,4)}, {v(Pq,4)}, 0")
        k(f"s_nop 7\ns_setpc_b64 {s(sRa,2)}")
    k.lines += ool
    code, desc = kernel_wrap(name, k.text(), 512, 102, 256)
    return code, desc, f"; @launch kernel={name} grid=(256,1,1) block=(256,1,1) lds={LDS_BYTES}"
```

```python
import sys
sys.path.insert(0, "gen")
HEADER = open("concat_heads__sliding_local_dilated__compressed_kv_cla__prompt.s.ref").read().split("; Override launch")[0]
def assemble(mods, path):
    codes, descs, launches = [], [], []
    for m in mods:
        c, d, l = m
        codes.append(c); descs.append(d); launches.append(l)
    txt = HEADER + "\n".join(launches) + "\n" + '.amdgcn_target "amdgcn-amd-amdhsa--gfx950"\n' + "".join(codes) + "".join(descs)
    open(path, "w").write(txt)
if __name__ == "__main__":
    abl = [x[2:] for x in sys.argv[2:] if x.startswith('-a')]
    st = '--stamps' in sys.argv
    if '--3k' in sys.argv:
        import gemm1, attn, gemm3_v2
        mods = [gemm1.build(stamps=st, abl=abl), attn.build(stamps=st, abl=abl), gemm3_v2.build(stamps=st, abl=abl)]
    elif '--2k' in sys.argv:
        import mega6, gemm3
        mods = [mega6.build(stamps=st, abl=abl), gemm3.build(stamps=st, abl=abl)]
    else:
        import mega15
        if '--list' in sys.argv or st: mods = [mega15.build(stamps=st, abl=abl)]
        else:
            c, d, l = mega15.build(name='concat_heads__sliding_local_dilated__compressed_kv_cla__prompt_kernel', abl=abl)
            mods = [(c, d, '; @launch grid=(256,1,1) block=(256,1,1) lds=163840')]
    out = sys.argv[1] if len(sys.argv) > 1 else "concat_heads__sliding_local_dilated__compressed_kv_cla__prompt.s"
    assemble(mods, out)
    print("wrote", out)
```

```python
from asmlib import *
import math

XS = 32768
WBASE = 3 * XS
LDS_BYTES = 5 * XS
C_B = (128 ** -0.5) * math.log2(math.e)
C_A = (32 ** -0.5) * math.log2(math.e)
STG = 16384
SLOT = 32768
THR = float(2 ** 20)
CAP = 8
RESV = 4
U_PUB, U_POLL, U_CHK, U_MID, U_CP = 8, 20, 24, 16, 28
import os
ITEMS = {'7': [(12, 4), (9, 8), (11, 5), (10, 6), (15, 1), (14, 2), (13, 3), (16, 7)], '5': [(12, 4), (9, 8), (11, 6), (10, 7), (15, 1), (14, 2), (13, 3), (16, 5)],
         '6': [(12, 4), (9, 8), (11, 5), (10, 7), (15, 1), (14, 2), (13, 3), (16, 6)],
         '5b': [(9, 8), (11, 6), (12, 4), (10, 7), (15, 1), (14, 2), (13, 3), (16, 5)],
         '3': [(9, 8), (11, 6), (10, 7), (14, 2), (15, 1), (13, 4), (12, 5), (16, 3)],
         'x1': [(10, 6), (9, 8), (12, 3), (15, 1), (14, 2), (11, 7), (13, 4), (16, 5)],
         'x3': [(9, 8), (12, 4), (10, 6), (14, 2), (13, 3), (11, 7), (15, 1), (16, 5)],
         'x4': [(10, 6), (9, 8), (11, 5), (12, 4), (15, 1), (14, 2), (13, 3), (16, 7)],
         'x5': [(11, 5), (9, 8), (12, 3), (10, 7), (15, 1), (14, 2), (13, 4), (16, 6)],
         '1': [(9, 8), (11, 6), (10, 7), (12, 5), (15, 2), (14, 3), (13, 4), (16, 1)],
         '2': [(9, 8), (11, 6), (10, 7), (12, 5), (15, 1), (14, 3), (13, 4), (16, 2)],
         'p9': [(10, 7), (12, 5), (11, 6), (13, 4), (16, 1), (15, 2), (14, 3), (9, 8)],
         'y2': [(12, 5), (13, 4), (15, 1), (14, 3), (11, 6), (10, 7), (9, 8), (16, 2)],
         'y3': [(14, 2), (12, 5), (15, 1), (13, 4), (11, 6), (10, 7), (9, 8), (16, 3)],
         'y4': [(13, 3), (12, 5), (14, 2), (15, 1), (11, 6), (10, 7), (9, 8), (16, 4)],
         'z6': [(11, 5), (12, 4), (9, 8), (10, 7), (15, 1), (14, 2), (13, 3), (16, 6)],
         'z5': [(9, 8), (10, 7), (12, 4), (13, 3), (15, 1), (14, 2), (11, 6), (16, 5)],
         'z7': [(10, 7), (9, 8), (13, 3), (11, 6), (15, 1), (14, 2), (12, 5), (16, 4)],
         'z8': [(9, 7), (11, 6), (13, 3), (14, 2), (15, 1), (10, 8), (12, 5), (16, 4)],
         '4': [(9, 8), (11, 6), (10, 7), (13, 3), (15, 1), (14, 2), (12, 5), (16, 4)]}[os.environ.get('PITEM', 'z7')]
TABA = sum((x[0] - 1) << (4 * i) for i, x in enumerate(ITEMS)); TABB = sum((x[1] - 1) << (4 * i) for i, x in enumerate(ITEMS))
SPIN = 1 << 18

NS3 = 5; NC = int(os.environ.get('NC', '40')); NB = 64 - NC; NP = NB + 16; TR = 4
F_CTX, F_OA, F_PAIR = 0x2000, 0x3000, 0x4000

def build(name="mega_kernel", stamps=False, abl=(), last_kernel=None):
    last_kernel = name
    k = K('m')
    AL = int(os.environ.get('ALIGN', '3'))
    def align():
        if AL: k.lines.append(f'.p2align {AL}')
    sDb = 4; sWS = 6; srdO = 8; srdD = 12; sw = 16; sPend = 17; sStamp = 18; sRe = 20; sEx = 22
    vLane = 1; vSt = 2; vL16 = 2; vStamp = 3; vFlag = 4; vFa = 0; sTok = sDb
    ST = Stamper(k, stamps, vStamp, sStamp)
    TOUCH = 'notouch' not in abl
    L2D = int(os.environ.get('L2D', '0'))
    wsc = ' sc0 sc1' if 'sc01' in abl else ' sc1'
    sfx = ' sc1'; ksc = wsc; tsc = ' sc1' if 'tsc' in abl else ''
    gxs = wsc + (' nt' if 'ntx' in abl else ''); gws = wsc + (' nt' if 'ntw' in abl else '')
    if 'ntp' in abl: tsc += ' nt'
    S = Regs('s', 24, 90)
    sK = S.alloc('karg', 16, 4)
    srdX = S.alloc('srdX', 4, 4); srdW = S.alloc('srdW', 4, 4)
    sXoff = S.alloc('sXoff', 4); sWoff = S.alloc('sWoff', 4); sWstep = S.alloc('sWstep')
    swm = S.alloc('wm'); swn = S.alloc('wn'); sXSc = S.alloc('xsc'); sWx = S.alloc('wx')
    sXw = S.alloc('xw'); sWw = S.alloc('ww'); sXd = S.alloc('xdelta'); sXs = S.alloc('xrslot')
    sCnt = S.alloc('cnt'); sFirst = S.alloc('first'); sEvT = S.alloc('evt'); sIdx = S.alloc('idx'); sMt = S.alloc('mt'); sIsP = S.alloc('isp')
    LF = ['xlo','xhi','xsize','wlo','whi','wsize','ldx','ldw','xoff0','woff0','par']
    CF = ['nk','swp','scale','obase','Si','Sj','flag']
    P1 = {f: S.alloc('p1' + f) for f in LF + CF}
    sStp = S.alloc('stp')
    STP = 'stp' in abl
    top = Regs('s', 90, 102)
    sT = top.alloc('t', 4, 2); sHasNext = top.alloc('hasnext')
    CP = {f: top.alloc('c' + f) for f in CF}
    t0, t1, t2, t3 = sT, sT + 1, sT + 2, sT + 3
    def ptr(nm): return sK + KARG[nm] // 4
    V = Regs('v', 6, 32)
    vx = V.alloc('vx', 2); vw = V.alloc('vw', 8); vX = V.alloc('vX', 2); vW = V.alloc('vW', 4); vDum = V.alloc('dum')
    vT = V.alloc('t', 8, 4)
    assert vT == 24
    T = vT
    def acc(i, j):
        n = ((i >> 1) * 8 + j) * 2 + (i & 1)
        return ('v', 32 + 4 * n) if n < 56 else ('a', 224 + 4 * (n - 56))
    def fragX(kk, mb): return mb * 8 + kk * 4
    def fragW(kk, nb): return 64 + nb * 8 + kk * 4
    STASH = 128
    def Qreg(qt, e): return 128 + qt * 16 + e * 4

    Lend = k.newlab('end')
    k(f"s_cmp_ge_u32 s2, 256\ns_cbranch_scc1 {Lend}")
    if STP: ST.stamp(0); ST.stamp(1, real=True)
    k(f"s_load_dwordx16 {s(sK,16)}, s[0:1], 0\ns_load_dwordx4 {s(sDb,4)}, s[0:1], {KARG['dbg']}")
    if stamps and not STP:
        k("s_waitcnt lgkmcnt(0)")
        ST.stamp(0); ST.stamp(1, real=True)
    if STP: k(f"s_mov_b32 {s(sStp)}, 18")
    k(f"v_and_b32 {v(vLane)}, 63, v0\nv_lshrrev_b32 {v(vT)}, 6, v0\ns_nop 0\nv_readfirstlane_b32 {s(sw)}, {v(vT)}")
    k(f"s_lshr_b32 {s(sIdx)}, s2, 3")
    k(f"s_lshr_b32 {s(swm)}, {s(sw)}, 1\ns_and_b32 {s(swn)}, {s(sw)}, 1")
    k(f"s_mov_b32 {s(srdX+3)}, 0x20000\ns_mov_b32 {s(srdW+3)}, 0x20000")
    def t_all():
        x7 = sMt; wx = sCnt; sa = sFirst; sb = sEvT
        k(f"s_and_b32 {s(x7)}, s2, 7\ns_lshl_b32 {s(wx)}, {s(sIdx)}, 2\ns_add_u32 {s(wx)}, {s(wx)}, {s(sw)}")
        k(f"s_and_b32 {s(t0)}, {s(x7)}, 3\ns_lshl_b32 {s(t0)}, {s(t0)}, 11\ns_lshl_b32 {s(t1)}, {s(wx)}, 15\ns_add_u32 {s(t0)}, {s(t0)}, {s(t1)}")
        k(f"s_lshl_b32 {s(t1)}, {s(wx)}, 1\ns_and_b32 {s(t2)}, {s(x7)}, 1\ns_add_u32 {s(t1)}, {s(t1)}, {s(t2)}\ns_sub_u32 {s(t1)}, {s(t1)}, 128\ns_lshl_b32 {s(t1)}, {s(t1)}, 15")
        k(f"s_lshr_b32 {s(t3)}, {s(x7)}, 1\ns_lshl_b32 {s(sa)}, {s(t3)}, 11\ns_add_u32 {s(t1)}, {s(t1)}, {s(sa)}")
        k(f"s_cmp_lt_u32 {s(sIdx)}, 16\ns_cselect_b32 {s(t0)}, {s(t0)}, {s(t1)}")
        k(f"s_lshl_b32 {s(t2)}, {s(t2)}, 2\ns_add_u32 {s(t2)}, {s(t2)}, {s(t3)}\ns_lshl_b32 {s(t2)}, {s(t2)}, 4\ns_add_u32 {s(t2)}, {s(t2)}, {s(wx)}\ns_sub_u32 {s(t2)}, {s(t2)}, 96\ns_lshl_b32 {s(t2)}, {s(t2)}, 15")
        k(f"s_cmp_lt_u32 {s(sIdx)}, 24\ns_cselect_b32 {s(t0)}, {s(t0)}, {s(t2)}\ns_cselect_b32 {s(sa)}, 4, 2\ns_cselect_b32 {s(sb)}, 13, 11")
        k(f"s_lshl_b32 {s(t2)}, {s(x7)}, 4\ns_add_u32 {s(t2)}, {s(t2)}, {s(wx)}\ns_sub_u32 {s(t2)}, {s(t2)}, 112\ns_lshl_b32 {s(t2)}, {s(t2)}, 13")
        k(f"s_cmp_lt_u32 {s(sIdx)}, 28\ns_cselect_b32 {s(t0)}, {s(t0)}, {s(t2)}\ns_cselect_b32 {s(sa)}, {s(sa)}, 3\ns_cselect_b32 {s(sb)}, {s(sb)}, 10")
        k(f"v_lshrrev_b32 {v(T)}, {s(sa)}, {v(vLane)}\nv_lshlrev_b32 {v(T+1)}, {s(sa)}, {v(T)}\nv_sub_u32 {v(T+1)}, {v(vLane)}, {v(T+1)}\nv_lshlrev_b32 {v(T)}, {s(sb)}, {v(T)}\nv_lshl_add_u32 {v(vFlag)}, {v(T+1)}, 7, {v(T)}\ns_mov_b32 {s(sXd)}, {s(t0)}")
        k(f"s_mov_b32 {s(srdD+2)}, {4*1048576}\ns_mov_b32 {s(srdD+3)}, 0x20000\ns_cselect_b32 {s(srdD+2)}, {s(srdD+2)}, {2*1048576}")
    def t_go():
        x7 = t3
        k(f"s_and_b32 {s(x7)}, s2, 7\ns_cmp_lt_u32 {s(sIdx)}, 28\ns_cselect_b32 {s(srdD)}, {s(ptr('B_x'))}, {s(ptr('B_c_kv'))}\ns_cselect_b32 {s(srdD+1)}, {s(ptr('B_x')+1)}, {s(ptr('B_c_kv')+1)}")
        k(f"s_cmp_lt_u32 {s(sIdx)}, 24\ns_cselect_b32 {s(srdD)}, {s(ptr('B_w_q'))}, {s(srdD)}\ns_cselect_b32 {s(srdD+1)}, {s(ptr('B_w_q')+1)}, {s(srdD+1)}")
        k(f"s_cmp_lt_u32 {s(x7)}, 4\ns_cselect_b32 {s(t1)}, {s(ptr('B_w_uk'))}, {s(ptr('B_w_uv'))}\ns_cselect_b32 {s(t2)}, {s(ptr('B_w_uk')+1)}, {s(ptr('B_w_uv')+1)}")
        k(f"s_cmp_lt_u32 {s(sIdx)}, 16\ns_cselect_b32 {s(srdD)}, {s(t1)}, {s(srdD)}\ns_cselect_b32 {s(srdD+1)}, {s(t2)}, {s(srdD+1)}")
        k(f"buffer_load_dword {v(vDum)}, {v(vFlag)}, {s(srdD,4)}, {s(sXd)} offen")
    if 'nocpf' not in abl:
        Lc = k.newlab('ncp')
        k(f"s_cmp_lt_u32 {s(sIdx)}, 28\ns_cbranch_scc1 {Lc}\ns_sub_u32 {s(t1)}, {s(sIdx)}, 28\ns_lshl_b32 {s(t1)}, {s(t1)}, 2\ns_add_u32 {s(t1)}, {s(t1)}, {s(sw)}")
        code_prefetch(k, srdO, name, last_kernel + "_end", t1, vLane, T, vDum, t0)
        k.label(Lc)
    if 'ta' in abl: t_all()
    k(f"s_lshl_b32 {s(sXw)}, {s(sw)}, 13\ns_add_u32 {s(sWw)}, {s(sXw)}, {WBASE}")
    def late_setup():
        k.c("fragment read addresses")
        k(f"v_and_b32 {v(T)}, 15, {v(vLane)}\nv_lshrrev_b32 {v(T+1)}, 4, {v(vLane)}")
        k(f"v_bfe_u32 {v(T+2)}, {v(vLane)}, 1, 3\nv_xor_b32 {v(T+2)}, {v(T+2)}, {v(T+1)}")
        k(f"s_lshl_b32 {s(t0)}, {s(swm)}, 14\nv_lshlrev_b32 {v(T+3)}, 7, {v(T)}\nv_add_u32 {v(T+3)}, {s(t0)}, {v(T+3)}")
        for kk in range(2):
            k(f"v_xor_b32 {v(T+4)}, {4*kk}, {v(T+2)}\nv_lshl_add_u32 {v(vx+kk)}, {v(T+4)}, 4, {v(T+3)}")
        k(f"v_bfe_u32 {v(T+2)}, {v(vLane)}, 2, 2")
        k(f"v_lshl_add_u32 {v(T+3)}, {v(T+1)}, 3, {v(T+2)}\nv_lshlrev_b32 {v(T+3)}, 9, {v(T+3)}")
        k(f"v_and_b32 {v(T+4)}, 3, {v(vLane)}\nv_lshlrev_b32 {v(T+4)}, 3, {v(T+4)}\nv_add_u32 {v(T+3)}, {v(T+3)}, {v(T+4)}")
        k(f"s_lshl_b32 {s(t0)}, {s(swn)}, 8\ns_add_u32 {s(t0)}, {s(t0)}, {WBASE}\nv_add_u32 {v(T+3)}, {s(t0)}, {v(T+3)}")
        k(f"v_bfe_u32 {v(T+2)}, {v(vLane)}, 2, 3")
        for nb in range(8):
            k(f"v_xor_b32 {v(T+4)}, {nb}, {v(T+2)}\nv_lshl_add_u32 {v(vw+nb)}, {v(T+4)}, 5, {v(T+3)}")
        k(f"v_lshlrev_b32 {v(vSt)}, 4, {v(vLane)}")
        k(f"s_mov_b32 {s(sXs)}, 0")
        k(f"s_mov_b32 {s(sXSc)}, {XS}\ns_mov_b32 {s(sWx)}, {WBASE ^ (WBASE + XS)}")
    def q_params(p, ptrs=True):
        k(f"s_mov_b32 {s(p['wsize'])}, 8388608\ns_mov_b32 {s(p['ldw'])}, 8192\ns_mov_b32 {s(p['par'])}, 0")
        k(f"s_mov_b32 {s(p['xsize'])}, 4194304\ns_mov_b32 {s(p['ldx'])}, 2048\ns_mov_b32 {s(p['nk'])}, 16")
        k(f"s_lshl_b32 {s(p['woff0'])}, {s(t0)}, 9\ns_lshl_b32 {s(p['xoff0'])}, {s(sMt)}, 19\ns_lshl_b32 {s(p['flag'])}, {s(t0)}, 4\ns_add_u32 {s(p['flag'])}, {s(p['flag'])}, {s(sMt)}\ns_lshl_b32 {s(p['flag'])}, {s(p['flag'])}, 3")
        k(f"s_mov_b32 {s(p['swp'])}, 0\ns_mov_b32 {s(p['scale'])}, {f32bits(C_B)}")
        k(f"s_lshl_b32 {s(t1)}, {s(t0)}, 1\ns_add_u32 {s(t1)}, {s(t1)}, {s(swn)}\ns_lshl_b32 {s(t1)}, {s(t1)}, 19")
        k(f"s_lshl_b32 {s(t2)}, {s(sMt)}, 1\ns_add_u32 {s(t2)}, {s(t2)}, {s(swm)}\ns_lshl_b32 {s(t2)}, {s(t2)}, 15")
        k(f"s_add_u32 {s(p['obase'])}, {s(t1)}, {s(t2)}\ns_add_u32 {s(p['obase'])}, {s(p['obase'])}, {WS_QB}")
        k(f"s_mov_b32 {s(p['Si'])}, 1024\ns_mov_b32 {s(p['Sj'])}, 4096")
        if ptrs: k(f"s_mov_b32 {s(p['xlo'])}, {s(ptr('B_x'))}\ns_mov_b32 {s(p['xhi'])}, {s(ptr('B_x')+1)}\ns_mov_b32 {s(p['wlo'])}, {s(ptr('B_w_q'))}\ns_mov_b32 {s(p['whi'])}, {s(ptr('B_w_q')+1)}")
    def a_params(p):
        k(f"s_mov_b32 {s(p['wsize'])}, 6291456\ns_mov_b32 {s(p['ldw'])}, 6144\ns_mov_b32 {s(p['par'])}, 1")
        k(f"s_mov_b32 {s(p['xsize'])}, 4194304\ns_mov_b32 {s(p['ldx'])}, 2048\ns_mov_b32 {s(p['nk'])}, 16")
        k(f"s_lshl_b32 {s(p['woff0'])}, {s(t0)}, 9\ns_lshl_b32 {s(p['xoff0'])}, {s(sMt)}, 19")
        k(f"s_and_b32 {s(t2)}, {s(t0)}, 3\ns_lshr_b32 {s(t1)}, {s(t0)}, 2")
        k(f"s_lshl_b32 {s(p['flag'])}, {s(t2)}, 2\ns_add_u32 {s(p['flag'])}, {s(p['flag'])}, {s(t1)}\ns_lshl_b32 {s(p['flag'])}, {s(p['flag'])}, 3\ns_add_u32 {s(p['flag'])}, {s(p['flag'])}, {s(sMt)}\ns_lshl_b32 {s(p['flag'])}, {s(p['flag'])}, 3\ns_add_u32 {s(p['flag'])}, {s(p['flag'])}, {48*128}")
        k(f"s_cmp_eq_u32 {s(t1)}, 0\ns_cselect_b32 {s(p['scale'])}, {f32bits(C_A)}, 0")
        k(f"s_lshl_b32 {s(t3)}, {s(t1)}, 22\ns_add_u32 {s(p['obase'])}, {s(t3)}, {WS_QA}")
        k(f"s_lshl_b32 {s(t2)}, {s(t2)}, 1\ns_add_u32 {s(t2)}, {s(t2)}, {s(swn)}\ns_lshl_b32 {s(t2)}, {s(t2)}, 19\ns_add_u32 {s(p['obase'])}, {s(p['obase'])}, {s(t2)}")
        k(f"s_lshl_b32 {s(t2)}, {s(swm)}, 3\ns_add_u32 {s(t2)}, {s(t2)}, {s(sMt)}")
        k(f"s_cmp_eq_u32 {s(t1)}, 2\ns_cselect_b32 {s(p['swp'])}, 1, 0\ns_cselect_b32 {s(t3)}, 12, 13")
        k(f"s_mov_b32 {s(t1)}, 131072\ns_cselect_b32 {s(p['Si'])}, 1024, {s(t1)}\ns_mov_b32 {s(t1)}, 1024\ns_cselect_b32 {s(p['Sj'])}, 65536, {s(t1)}")
        k(f"s_lshl_b32 {s(t2)}, {s(t2)}, {s(t3)}\ns_add_u32 {s(p['obase'])}, {s(p['obase'])}, {s(t2)}")
        k(f"s_mov_b32 {s(p['xlo'])}, {s(ptr('A_x'))}\ns_mov_b32 {s(p['xhi'])}, {s(ptr('A_x')+1)}\ns_mov_b32 {s(p['wlo'])}, {s(ptr('A_wqkv'))}\ns_mov_b32 {s(p['whi'])}, {s(ptr('A_wqkv')+1)}")
    def kv_params(p, ptrs=True):
        k(f"s_cmp_lt_u32 {s(t0)}, 16\ns_cselect_b32 {s(p['swp'])}, 0, 1")
        k(f"s_mov_b32 {s(t1)}, {WS_VB}\ns_cselect_b32 {s(p['obase'])}, {WS_KB}, {s(t1)}")
        k(f"s_mov_b32 {s(t1)}, 8192\ns_cselect_b32 {s(p['Si'])}, 1024, {s(t1)}")
        k(f"s_mov_b32 {s(t1)}, 1024\ns_cselect_b32 {s(p['Sj'])}, 4096, {s(t1)}")
        if ptrs: k(f"s_cselect_b32 {s(p['wlo'])}, {s(ptr('B_w_uk'))}, {s(ptr('B_w_uv'))}\ns_cselect_b32 {s(p['whi'])}, {s(ptr('B_w_uk')+1)}, {s(ptr('B_w_uv')+1)}")
        if ptrs: k(f"s_mov_b32 {s(p['xlo'])}, {s(ptr('B_c_kv'))}\ns_mov_b32 {s(p['xhi'])}, {s(ptr('B_c_kv')+1)}")
        k(f"s_mov_b32 {s(p['xsize'])}, 2097152\ns_mov_b32 {s(p['ldx'])}, 1024\ns_mov_b32 {s(p['nk'])}, 8\ns_mov_b32 {s(p['par'])}, 0")
        k(f"s_mov_b32 {s(p['wsize'])}, 4194304\ns_mov_b32 {s(p['ldw'])}, 8192\ns_mov_b32 {s(p['scale'])}, 0")
        k(f"s_and_b32 {s(t0)}, {s(t0)}, 15\ns_lshl_b32 {s(p['woff0'])}, {s(t0)}, 9\ns_lshl_b32 {s(p['xoff0'])}, {s(sMt)}, 18")
        k(f"s_lshl_b32 {s(t1)}, {s(p['swp'])}, 2\ns_add_u32 {s(t1)}, {s(t1)}, {s(sMt)}\ns_cmp_ge_u32 {s(sMt)}, 4\ns_cselect_b32 {s(t2)}, {512 - 4}, 8\ns_add_u32 {s(t1)}, {s(t1)}, {s(t2)}")
        k(f"s_lshl_b32 {s(p['flag'])}, {s(t0)}, 4\ns_add_u32 {s(p['flag'])}, {s(p['flag'])}, {s(t1)}\ns_lshl_b32 {s(p['flag'])}, {s(p['flag'])}, 3")
        k(f"s_lshl_b32 {s(t1)}, {s(t0)}, 1\ns_add_u32 {s(t1)}, {s(t1)}, {s(swn)}\ns_lshl_b32 {s(t1)}, {s(t1)}, 19")
        k(f"s_lshl_b32 {s(t2)}, {s(sMt)}, 1\ns_add_u32 {s(t2)}, {s(t2)}, {s(swm)}\ns_lshl_b32 {s(t2)}, {s(t2)}, 15")
        k(f"s_add_u32 {s(p['obase'])}, {s(p['obase'])}, {s(t1)}\ns_add_u32 {s(p['obase'])}, {s(p['obase'])}, {s(t2)}")
    def tile_long(mul):
        k(f"s_and_b32 {s(sMt)}, {s(sIdx)}, 3\ns_and_b32 {s(t0)}, s2, 1\ns_lshl_b32 {s(t0)}, {s(t0)}, 2\ns_add_u32 {s(sMt)}, {s(sMt)}, {s(t0)}")
        k(f"s_bfe_u32 {s(t0)}, s2, 0x20001\ns_mul_i32 {s(t0)}, {s(t0)}, {mul}\ns_bfe_u32 {s(t1)}, {s(sIdx)}, 0x20002\ns_add_u32 {s(t0)}, {s(t0)}, {s(t1)}")
    def tile_kv(late):
        k(f"s_bfe_u32 {s(sMt)}, {s(sIdx)}, 0x20002\ns_add_u32 {s(sMt)}, {s(sMt)}, {4*late}\ns_and_b32 {s(t0)}, s2, 7\ns_lshl_b32 {s(t0)}, {s(t0)}, 2\ns_and_b32 {s(t1)}, {s(sIdx)}, 3\ns_add_u32 {s(t0)}, {s(t0)}, {s(t1)}")

    def act_load(p, part=(0, 1), which="xw"):
        if 0 in part and 'x' in which:
            k(f"s_mov_b32 {s(srdX+2)}, {s(p['xsize'])}")
            k(f"s_lshl_b32 {s(t0)}, {s(p['ldx'])}, 4\ns_lshl_b32 {s(t0)}, {s(t0)}, {s(p['par'])}")
            k(f"s_mov_b32 {s(sXoff)}, {s(p['xoff0'])}")
            for a_ in (1, 2, 3):
                k(f"s_mul_i32 {s(t1)}, {s(t0)}, {a_}\ns_add_u32 {s(sXoff+a_)}, {s(t1)}, {s(p['xoff0'])}")
                if a_ & 1: k(f"s_sub_u32 {s(sXoff+a_)}, {s(sXoff+a_)}, 2048")
            k(f"s_lshl_b32 {s(t0)}, {s(swn)}, 7\ns_add_u32 {s(t0)}, {s(t0)}, {s(swm)}\ns_lshl_b32 {s(t1)}, {s(sw)}, 6\ns_cmp_eq_u32 {s(p['par'])}, 1\ns_cselect_b32 {s(t0)}, {s(t0)}, {s(t1)}")
            k(f"v_lshrrev_b32 {v(T)}, 3, {v(vLane)}\nv_lshlrev_b32 {v(T)}, {s(p['par'])}, {v(T)}")
            k(f"v_add_u32 {v(T)}, {s(t0)}, {v(T)}\nv_mul_lo_u32 {v(T)}, {v(T)}, {s(p['ldx'])}")
            k(f"v_lshrrev_b32 {v(T+1)}, 4, {v(vLane)}\nv_and_b32 {v(T+2)}, 7, {v(vLane)}\nv_xor_b32 {v(T+1)}, {v(T+1)}, {v(T+2)}")
            k(f"v_lshl_add_u32 {v(vX)}, {v(T+1)}, 4, {v(T)}")
            k(f"v_xor_b32 {v(T+1)}, 4, {v(T+1)}\nv_lshl_add_u32 {v(vX+1)}, {v(T+1)}, 4, {v(T)}")
            k(f"s_lshl_b32 {s(t0)}, {s(p['ldx'])}, 3\ns_lshl_b32 {s(t0)}, {s(t0)}, {s(p['par'])}\ns_sub_u32 {s(t0)}, {s(t0)}, 1024\nv_add_u32 {v(vX+1)}, {s(t0)}, {v(vX+1)}")
        if 0 in part and 'w' in which:
            k(f"s_mov_b32 {s(srdW+2)}, {s(p['wsize'])}")
            k(f"s_mov_b32 {s(sWoff)}, {s(p['woff0'])}\ns_lshl_b32 {s(t0)}, {s(p['ldw'])}, 2")
            for a_ in (1, 2, 3):
                k(f"s_mul_i32 {s(t1)}, {s(t0)}, {a_}\ns_add_u32 {s(sWoff+a_)}, {s(t1)}, {s(p['woff0'])}")
                if a_ & 1: k(f"s_sub_u32 {s(sWoff+a_)}, {s(sWoff+a_)}, 2048")
            k(f"s_lshl_b32 {s(sWstep)}, {s(p['ldw'])}, 6")
            k(f"v_lshrrev_b32 {v(T)}, 5, {v(vLane)}\ns_lshl_b32 {s(t0)}, {s(sw)}, 4\nv_add_u32 {v(T+1)}, {s(t0)}, {v(T)}\nv_mul_lo_u32 {v(T+1)}, {v(T+1)}, {s(p['ldw'])}")
            k(f"v_lshlrev_b32 {v(T)}, 1, {v(T)}\nv_and_b32 {v(T+2)}, 31, {v(vLane)}\nv_xor_b32 {v(T)}, {v(T)}, {v(T+2)}")
            k(f"s_lshl_b32 {s(t0)}, {s(p['ldw'])}, 1\ns_sub_u32 {s(t0)}, {s(t0)}, 1024\nv_add_u32 {v(T+3)}, {s(t0)}, {v(T+1)}")
            for u in range(2):
                for e in range(2):
                    k(f"v_xor_b32 {v(T+2)}, {4*e + 8*u}, {v(T)}\nv_lshl_add_u32 {v(vW+e+2*u)}, {v(T+2)}, 4, {v(T+3) if e else v(T+1)}")
        if 1 in part:
            if 'x' in which: k(f"s_mov_b32 {s(srdX)}, {s(p['xlo'])}\ns_mov_b32 {s(srdX+1)}, {s(p['xhi'])}")
            if 'w' in which: k(f"s_mov_b32 {s(srdW)}, {s(p['wlo'])}\ns_mov_b32 {s(srdW+1)}, {s(p['whi'])}")
    def act_comp(p):
        for f in CP: k(f"s_mov_b32 {s(CP[f])}, {s(p[f])}")

    def dmaX(j):
        out = []
        if j % 4 == 0: out.append(f"s_add_u32 m0, {s(sXw)}, {4096 * (j // 4)}\ns_nop 0")
        out.append(f"buffer_load_dwordx4 {v(vX + (j & 1))}, {s(srdX,4)}, {s(sXoff + (j >> 1))} offen offset:{(j & 3) * 1024}{gxs} lds")
        if j & 1: out.append(f"s_add_u32 {s(sXoff + (j >> 1))}, {s(sXoff + (j >> 1))}, 128")
        return out
    def dmaW(j):
        out = []
        if j % 4 == 0: out.append(f"s_add_u32 m0, {s(sWw)}, {4096 * (j // 4)}\ns_nop 0")
        out.append(f"buffer_load_dwordx4 {v(vW + (j & 1) + 2 * (j >> 2))}, {s(srdW,4)}, {s(sWoff + (j >> 1))} offen offset:{(j & 3) * 1024}{gws} lds")
        if j & 1: out.append(f"s_add_u32 {s(sWoff + (j >> 1))}, {s(sWoff + (j >> 1))}, {s(sWstep)}")
        return out
    def rotXw():
        return [f"s_add_u32 {s(sXw)}, {s(sXw)}, {XS}\ns_cmp_ge_u32 {s(sXw)}, {3*XS}", f"s_cselect_b32 {s(t0)}, {3*XS}, 0\ns_sub_u32 {s(sXw)}, {s(sXw)}, {s(t0)}"]
    def rotWw():
        return [f"s_xor_b32 {s(sWw)}, {s(sWw)}, {WBASE ^ (WBASE + XS)}"]
    def rdX(kk, mb): return (('x', mb), f"ds_read_b128 {a(fragX(kk, mb), 4)}, {v(vx + kk)} offset:{mb * 2048}")
    def rdW(kk, nb, t): return (('w', nb), f"ds_read_b64_tr_b16 {a(fragW(kk, nb) + 2 * t, 2)}, {v(vw + nb)} offset:{(32 * kk + 4 * t) * 512}")
    def rdWpair(p_): return [rdW(kk, nb, t) for nb in (2 * p_, 2 * p_ + 1) for kk in range(2) for t in range(2)]

    MB = 1 << 20
    def pf_setup():
        k(f"s_sub_u32 {s(t3)}, s2, 224\ns_lshl_b32 {s(t3)}, {s(t3)}, 2\ns_add_u32 {s(t3)}, {s(t3)}, {s(sw)}")
        k(f"v_lshlrev_b32 {v(T)}, 7, {v(vLane)}")
        k(f"v_lshrrev_b32 {v(T+1)}, 3, {v(vLane)}\nv_lshlrev_b32 {v(T+1)}, 11, {v(T+1)}\nv_and_b32 {v(T+2)}, 7, {v(vLane)}\nv_lshl_add_u32 {v(T+1)}, {v(T+2)}, 7, {v(T+1)}")
        k(f"s_lshl_b32 {s(t2)}, {s(t3)}, 13\ns_lshl_b32 {s(t3)}, {s(t3)}, 14\ns_add_u32 {s(t3)}, {s(t3)}, 1024")
    def region(p_, size, off, nbytes, rows=False):
        k(f"s_mov_b32 {s(srdD)}, {s(p_)}\ns_mov_b32 {s(srdD+1)}, {s(p_+1)}\ns_mov_b32 {s(srdD+2)}, {size}")
        step = 2 * MB if rows else MB
        for o in range(off, off + nbytes, step):
            k(f"s_add_u32 {s(t0)}, {s(t3 if rows else t2)}, {o}\nbuffer_load_dword {v(vDum)}, {v(T+1 if rows else T)}, {s(srdD,4)}, {s(t0)} offen{tsc}")
    def publish(sflag, vp=vFlag):
        L = k.newlab('np')
        k(f"s_cmp_lg_u32 {s(sw)}, 0\ns_cbranch_scc1 {L}")
        k(f"v_mov_b32 {v(vp)}, {s(sTok)}\nv_mov_b32 {v(vp+1)}, {s(sTok+1)}\ns_add_u32 {s(t0)}, {s(sflag)}, {WS_FLAG}\ns_mov_b64 exec, 1")
        k(f"buffer_store_dwordx2 {v(vp,2)}, off, {s(srdO,4)}, {s(t0)} sc1\ns_mov_b64 exec, -1")
        k.label(L)
    def dbgmax(word, grp=False):
        if 'dbg' not in abl: return
        L = k.newlab('dm')
        k(f"s_cmp_lg_u32 {s(sw)}, 0\ns_cbranch_scc1 {L}\ns_memrealtime {s(sStamp,2)}\ns_waitcnt lgkmcnt(0)\ns_sub_u32 {s(sStamp)}, {s(sStamp)}, {s(sTok)}\nv_mov_b32 {v(vStamp)}, {s(sStamp)}")
        if grp: k(f"s_lshr_b32 {s(sStamp)}, s2, 5\ns_cmp_eq_u32 {s(sStamp)}, 7\ns_cselect_b32 {s(sStamp)}, 4, 0")
        else: k(f"s_mov_b32 {s(sStamp)}, 0")
        k(f"s_mov_b64 exec, 1\nbuffer_atomic_umax {v(vStamp)}, off, {s(srdD,4)}, {s(sStamp)} offset:{word*4}\ns_mov_b64 exec, -1")
        k.label(L)
    def head_ids():
        k(f"s_and_b32 {s(t2)}, s2, 7\ns_lshl_b32 {s(t2)}, {s(t2)}, 2\ns_bfe_u32 {s(t3)}, s2, 0x20003\ns_add_u32 {s(t2)}, {s(t2)}, {s(t3)}\ns_lshr_b32 {s(t3)}, s2, 5\ns_lshl_b32 {s(t3)}, {s(t3)}, 2\ns_or_b32 {s(t3)}, {s(t3)}, 0x40000")
    pKV = sK + 8; pQ = sK + 9; pFl = sK + 13
    def flag_lanes(what):
        if what == 'kv':
            k(f"v_and_b32 {v(vFa)}, 3, {v(vLane)}\nv_min_u32 {v(vFa)}, 2, {v(vFa)}\nv_and_b32 {v(T)}, 4, {v(vLane)}\nv_add3_u32 {v(vFa)}, {v(vFa)}, {v(T)}, 8")
        else:
            k(f"s_bfe_u32 {s(t1)}, {TABB}, {s(t3)}\ns_lshr_b32 {s(t1)}, {s(t1)}, 1\nv_mov_b32 {v(vFa)}, {s(t1)}")
            if what == 'all': k(f"v_and_b32 {v(T)}, 3, {v(vLane)}\nv_min_u32 {v(T)}, 2, {v(T)}\nv_and_b32 {v(T+1)}, 4, {v(vLane)}\nv_add3_u32 {v(T)}, {v(T)}, {v(T+1)}, 8\nv_cmp_gt_u32 vcc, 8, {v(vLane)}\ns_nop 1\nv_cndmask_b32 {v(vFa)}, {v(vFa)}, {v(T)}, vcc")
            k(f"s_bfe_u32 {s(t1)}, {TABA}, {s(t3)}\ns_lshr_b32 {s(t1)}, {s(t1)}, 1\nv_writelane_b32 {v(vFa)}, {s(t1)}, 8")
        k(f"v_lshlrev_b32 {v(vFa)}, 3, {v(vFa)}")
    def precompute():
        head_ids()
        k(f"s_lshr_b32 {s(pFl)}, {s(t2)}, 1\ns_lshl_b32 {s(pFl)}, {s(pFl)}, 7\ns_add_u32 {s(pFl)}, {s(pFl)}, {WS_FLAG}\ns_lshl_b32 {s(t2)}, {s(t2)}, 19")
        k(f"s_lshl_b32 {s(t1)}, {s(swn)}, 13\ns_add_u32 {s(t0)}, {s(t2)}, {s(t1)}\ns_cmp_eq_u32 {s(swm)}, 0\ns_mov_b32 {s(t1)}, {WS_VB - STG}\ns_cselect_b32 {s(t1)}, {WS_KB}, {s(t1)}\ns_add_u32 {s(pKV)}, {s(t0)}, {s(t1)}")
        for st in range(2):
            k(f"s_bfe_u32 {s(t0)}, {TABA if st == 0 else TABB}, {s(t3)}\ns_lshl_b32 {s(t0)}, {s(t0)}, 3\ns_lshl_b32 {s(t1)}, {s(sw)}, 1\ns_add_u32 {s(t0)}, {s(t0)}, {s(t1)}\ns_lshl_b32 {s(t0)}, {s(t0)}, 12\ns_add_u32 {s(t0)}, {s(t0)}, {s(t2)}")
            k(f"s_add_u32 {s(pQ+2*st)}, {s(t0)}, {WS_QB}\ns_add_u32 {s(pQ+2*st+1)}, {s(t0)}, {WS_QB + 4096}")
        flag_lanes('all')
    def early_load(what=None):
        if what: head_ids(); flag_lanes(what)
        k(f"buffer_load_dwordx2 {v(vFlag,2)}, {v(vFa)}, {s(srdO,4)}, {s(pFl)} offen sc1")
    def early_check(what):
        Ls = k.newlab('spin'); Lok = k.newlab('ok')
        k(f"s_mov_b32 s3, {SPIN}")
        k.label(Ls)
        k(f"v_cmp_ne_u64 {s(sEx,2)}, {s(sTok,2)}, {v(vFlag,2)}\ns_nop 3\ns_cmp_eq_u64 {s(sEx,2)}, 0\ns_cbranch_scc1 {Lok}\ns_sub_u32 s3, s3, 1\ns_cbranch_scc1 {Lok}\ns_sleep 16")
        early_load()
        k(f"s_waitcnt vmcnt(0)\ns_branch {Ls}")
        k.label(Lok)
    def kv_cursor(offs, srd, ks):
        k(f"s_add_u32 {s(offs)}, {s(pKV)}, {ks * STG}\ns_mov_b32 {s(offs+1)}, {s(offs)}\ns_add_u32 {s(offs+2)}, {s(offs)}, 4096\ns_mov_b32 {s(offs+3)}, {s(offs+2)}")
        if ks == 0: k(f"s_cmp_eq_u32 {s(swm)}, 0\ns_cselect_b32 {s(srd+2)}, {WS_SIZE}, 0")
        if ks in (1, 3): k(f"s_mov_b32 {s(srd+2)}, {WS_SIZE}")
        if ks in (0, 3): k(f"s_mov_b32 {s(srd)}, {s(sWS)}\ns_mov_b32 {s(srd+1)}, {s(sWS+1)}")
    tok_load = f"buffer_load_dwordx2 {v(vFlag,2)}, off, {s(srdD,4)}, 0 sc1"
    def tok_get():
        Ls = k.newlab('spin'); Lok = k.newlab('ok')
        k(f"s_mov_b32 s3, {SPIN}")
        k.label(Ls)
        k(f"v_readfirstlane_b32 {s(sTok)}, {v(vFlag)}\nv_readfirstlane_b32 {s(sTok+1)}, {v(vFlag+1)}\ns_nop 3\ns_cmp_lg_u32 {s(sTok)}, 0\ns_cbranch_scc1 {Lok}\ns_sub_u32 s3, s3, 1\ns_cbranch_scc1 {Lok}\ns_sleep 32")
        k(f"{tok_load}\ns_waitcnt vmcnt(0)\ns_branch {Ls}")
        k.label(Lok)
    def q_loads(qts, sel=None):
        for qt in qts:
            for e in range(4):
                if sel is None or qt * 4 + e in sel: k(f"buffer_load_dwordx4 {a(Qreg(qt, e), 4)}, {v(vL16)}, {s(srdO,4)}, {s(pQ+qt)} offen offset:{e*1024} sc1")

    La = k.newlab('typea'); Lb = k.newlab('go1'); Lnp = k.newlab('nopf'); Lpf = k.newlab('pf')
    k(f"s_cmp_ge_u32 {s(sIdx)}, 16\ns_cbranch_scc1 {La}")
    tile_long(4); q_params(P1, False)
    k(f"s_branch {Lb}")
    k.label(La)
    tile_kv(0); kv_params(P1, False)
    k.label(Lb)
    act_load(P1, (0,))
    k(f"s_cmp_eq_u32 {s(P1['swp'])}, 0\ns_waitcnt lgkmcnt(0)\ns_cselect_b32 {s(srdW)}, {s(ptr('B_w_uk'))}, {s(ptr('B_w_uv'))}\ns_cselect_b32 {s(srdW+1)}, {s(ptr('B_w_uk')+1)}, {s(ptr('B_w_uv')+1)}")
    k(f"s_cmp_lt_u32 {s(sIdx)}, 16\ns_cselect_b32 {s(srdW)}, {s(ptr('B_w_q'))}, {s(srdW)}\ns_cselect_b32 {s(srdW+1)}, {s(ptr('B_w_q')+1)}, {s(srdW+1)}")
    k(f"s_cselect_b32 {s(srdX)}, {s(ptr('B_x'))}, {s(ptr('B_c_kv'))}\ns_cselect_b32 {s(srdX+1)}, {s(ptr('B_x')+1)}, {s(ptr('B_c_kv')+1)}")
    TAP = int(os.environ.get('TAP', '0'))
    if 'ta' in abl and TAP == 0: t_go()
    if 'ct' in abl:
        Lw_ = k.newlab('ctw'); Le_ = k.newlab('cte')
        k(f"s_bfe_u32 {s(t0)}, {s(sIdx)}, 0x20002\ns_and_b32 {s(t1)}, {s(sIdx)}, 3\ns_cmp_lt_u32 {s(sIdx)}, 16\ns_cselect_b32 {s(t2)}, {s(t0)}, {s(t1)}\ns_cselect_b32 {s(t3)}, {s(t1)}, {s(t0)}")
        k(f"s_cmp_eq_u32 {s(swn)}, 1\ns_cbranch_scc1 {Lw_}")
        k(f"s_lshl_b32 {s(t2)}, {s(t2)}, 6\nv_add_u32 {v(T)}, {s(t2)}, {v(vLane)}\nv_mul_lo_u32 {v(T)}, {v(T)}, {s(P1['ldx'])}\ns_lshl_b32 {s(t0)}, {s(swm)}, 7\ns_add_u32 {s(t0)}, {s(t0)}, {s(P1['xoff0'])}")
        k(f"buffer_load_dword {v(vDum)}, {v(T)}, {s(srdX,4)}, {s(t0)} offen\ns_branch {Le_}")
        k.label(Lw_)
        k(f"s_lshl_b32 {s(t0)}, {s(swm)}, 2\ns_add_u32 {s(t3)}, {s(t3)}, {s(t0)}\ns_lshl_b32 {s(t3)}, {s(t3)}, 17\ns_add_u32 {s(t3)}, {s(t3)}, {s(P1['woff0'])}")
        k(f"v_lshrrev_b32 {v(T)}, 2, {v(vLane)}\nv_lshlrev_b32 {v(T)}, 13, {v(T)}\nv_and_b32 {v(T+1)}, 3, {v(vLane)}\nv_lshl_add_u32 {v(T)}, {v(T+1)}, 7, {v(T)}")
        k(f"buffer_load_dword {v(vDum)}, {v(T)}, {s(srdW,4)}, {s(t3)} offen")
        k.label(Le_)
        if 'ctb' in abl: k("s_barrier")
    k(f"s_cmp_ge_u32 {s(sIdx)}, 28\ns_cselect_b32 {s(sIsP)}, 1, 0\ns_cbranch_scc1 {Lpf}")
    k.label(Lnp)
    save0 = k.lines; k.lines = []
    k.label(Lpf)
    if 'ta' in abl and TAP: t_go()
    k(f"s_mov_b32 {s(srdD+3)}, 0x20000")
    if 'tlb' in abl:
        G = int(os.environ.get('TLBG', '16'))
        k(f"s_sub_u32 {s(t3)}, {s(sIdx)}, 28\ns_lshl_b32 {s(t3)}, {s(t3)}, 2\ns_add_u32 {s(t3)}, {s(t3)}, {s(sw)}\ns_lshl_b32 {s(t3)}, {s(t3)}, {6 + G}\nv_lshlrev_b32 {v(T)}, {G}, {v(vLane)}")
        k(f"s_load_dwordx4 {s(srdO,4)}, s[0:1], {KARG['B_w_o']}\ns_waitcnt lgkmcnt(0)")
        for (lo, size) in ((sWS, 0x7100000), (srdO + 2, 8 * MB), (srdO, 8 * MB), (ptr('A_wo'), 2 * MB)):
            k(f"s_mov_b32 {s(srdD)}, {s(lo)}\ns_mov_b32 {s(srdD+1)}, {s(lo+1)}\ns_mov_b32 {s(srdD+2)}, {size}")
            for o in range(0, size, 1024 << G):
                k(f"s_add_u32 {s(t0)}, {s(t3)}, {o}\nv_add_u32 {v(T+1)}, {s(t0)}, {v(T)}\nbuffer_load_dword {v(vDum)}, {v(T+1)}, {s(srdD,4)}, 0 offen")
    if 'nopf' not in abl:
        pf_setup()
        PO = os.environ.get('PORD', '0')
        if PO == '0':
            region(ptr('A_wqkv'), 6 * MB, 0, 2 * MB); region(ptr('A_x'), 4 * MB, 0, 4 * MB)
            region(ptr('B_w_q'), 8 * MB, 4 * MB, 2 * MB); region(ptr('B_x'), 4 * MB, 0, 4 * MB, True)
            region(ptr('A_wqkv'), 6 * MB, 2 * MB, 1 * MB); region(ptr('B_w_q'), 8 * MB, 6 * MB, 2 * MB); region(ptr('A_wqkv'), 6 * MB, 3 * MB, 3 * MB)
            region(ptr('B_c_kv'), 2 * MB, 1 * MB, 1 * MB)
        else:
            k(f"v_lshrrev_b32 {v(T+1)}, 2, {v(vLane)}\nv_lshlrev_b32 {v(T+1)}, 11, {v(T+1)}\nv_and_b32 {v(T+2)}, 3, {v(vLane)}\nv_lshl_add_u32 {v(T+1)}, {v(T+2)}, 7, {v(T+1)}\ns_lshl_b32 {s(t3)}, {s(t2)}, 2")
            def xq(p_, q): region(p_, 4 * MB, q * 512, 1, True)
            wq, wa, bx, ax = ptr('B_w_q'), ptr('A_wqkv'), ptr('B_x'), ptr('A_x')
            if PO == '1':
                region(wq, 8 * MB, 1 * MB, 2 * MB); xq(bx, 1); region(wq, 8 * MB, 3 * MB, 2 * MB); xq(bx, 2); region(wq, 8 * MB, 5 * MB, 1 * MB)
                region(wa, 6 * MB, 0, 1 * MB); xq(ax, 0); region(wq, 8 * MB, 6 * MB, 1 * MB); xq(bx, 3); region(wa, 6 * MB, 1 * MB, 1 * MB); xq(ax, 1); region(wq, 8 * MB, 7 * MB, 1 * MB)
                region(wa, 6 * MB, 2 * MB, 2 * MB); xq(ax, 2); region(wa, 6 * MB, 4 * MB, 1 * MB); xq(ax, 3); region(wa, 6 * MB, 5 * MB, 1 * MB); region(ptr('B_c_kv'), 2 * MB, 1 * MB, 1 * MB)
            if PO == '2':
                uk, uv = ptr('B_w_uk'), ptr('B_w_uv')
                region(wq, 8 * MB, 1 * MB, 1 * MB); region(uk, 4 * MB, 2 * MB, 1 * MB); region(uv, 4 * MB, 2 * MB, 1 * MB); region(wq, 8 * MB, 2 * MB, 1 * MB); xq(bx, 1)
                region(uk, 4 * MB, 3 * MB, 1 * MB); region(uv, 4 * MB, 3 * MB, 1 * MB); region(wq, 8 * MB, 3 * MB, 2 * MB); xq(bx, 2)
                region(wa, 6 * MB, 0, 1 * MB); xq(ax, 0); region(wq, 8 * MB, 5 * MB, 2 * MB); xq(bx, 3); region(wa, 6 * MB, 1 * MB, 1 * MB); xq(ax, 1); region(wq, 8 * MB, 7 * MB, 1 * MB)
                region(wa, 6 * MB, 2 * MB, 2 * MB); xq(ax, 2); region(wa, 6 * MB, 4 * MB, 1 * MB); xq(ax, 3); region(wa, 6 * MB, 5 * MB, 1 * MB); region(ptr('B_c_kv'), 2 * MB, 1 * MB, 1 * MB)
            if PO == '6':
                region(wq, 8 * MB, 1 * MB, 2 * MB); xq(bx, 1); region(wq, 8 * MB, 3 * MB, 2 * MB); xq(bx, 2); region(wq, 8 * MB, 5 * MB, 1 * MB)
                region(wa, 6 * MB, 0, 1 * MB); xq(ax, 0); region(wq, 8 * MB, 6 * MB, 1 * MB); xq(bx, 3); region(wa, 6 * MB, 1 * MB, 1 * MB); xq(ax, 1); region(wq, 8 * MB, 7 * MB, 1 * MB)
                region(wa, 6 * MB, 2 * MB, 1 * MB); region(ptr('B_c_kv'), 2 * MB, 1 * MB, 1 * MB)
            if PO == '7':
                region(wq, 8 * MB, 1 * MB, 2 * MB); xq(bx, 1); region(wq, 8 * MB, 3 * MB, 2 * MB); xq(bx, 2); region(wq, 8 * MB, 5 * MB, 2 * MB); xq(bx, 3); region(wq, 8 * MB, 7 * MB, 1 * MB)
                region(wa, 6 * MB, 2 * MB, 2 * MB); xq(ax, 2); region(wa, 6 * MB, 4 * MB, 1 * MB); xq(ax, 3); region(wa, 6 * MB, 5 * MB, 1 * MB); region(ptr('B_c_kv'), 2 * MB, 1 * MB, 1 * MB)
            uk, uv, ck = ptr('B_w_uk'), ptr('B_w_uv'), ptr('B_c_kv')
            def half2(pa, sa, oa, pb, sb, ob):
                k(f"s_cmp_lt_u32 {s(t2)}, {MB//2}\ns_cselect_b32 {s(srdD)}, {s(pa)}, {s(pb)}\ns_cselect_b32 {s(srdD+1)}, {s(pa+1)}, {s(pb+1)}\ns_mov_b32 {s(t0)}, {sb}\ns_cselect_b32 {s(srdD+2)}, {sa}, {s(t0)}")
                k(f"s_mov_b32 {s(t0)}, {(ob - MB//2) & 0xffffffff}\ns_cselect_b32 {s(t0)}, {oa}, {s(t0)}\ns_add_u32 {s(t0)}, {s(t0)}, {s(t2)}\nbuffer_load_dword {v(vDum)}, {v(T)}, {s(srdD,4)}, {s(t0)} offen{tsc}")
            H = MB // 2
            def rest8():
                region(wq, 8 * MB, 4 * MB, 1 * MB); xq(bx, 2); region(wa, 6 * MB, 0, 1 * MB); xq(ax, 0); region(wq, 8 * MB, 5 * MB, 1 * MB); region(wa, 6 * MB, 1 * MB, 1 * MB); xq(ax, 1)
                region(wq, 8 * MB, 6 * MB, 1 * MB); xq(bx, 3); region(wa, 6 * MB, 2 * MB, 1 * MB); region(wq, 8 * MB, 7 * MB, 1 * MB); xq(ax, 2)
                region(wa, 6 * MB, 3 * MB, 1 * MB); region(ck, 2 * MB, 1 * MB, 1 * MB); region(wa, 6 * MB, 4 * MB, 1 * MB); xq(ax, 3); region(wa, 6 * MB, 5 * MB, 1 * MB)
            if PO == '8':
                half2(wq, 8*MB, 2*H, uk, 4*MB, 2*H); half2(uv, 4*MB, 2*H, wq, 8*MB, 3*H); xq(bx, 0); half2(uk, 4*MB, 3*H, uv, 4*MB, 3*H); region(ck, 2 * MB, 0, 1 * MB)
                half2(wq, 8*MB, 4*H, uk, 4*MB, 4*H); xq(bx, 1); half2(uv, 4*MB, 4*H, wq, 8*MB, 5*H); half2(uk, 4*MB, 5*H, uv, 4*MB, 5*H)
                half2(wq, 8*MB, 6*H, uk, 4*MB, 6*H); half2(uv, 4*MB, 6*H, wq, 8*MB, 7*H); half2(uk, 4*MB, 7*H, uv, 4*MB, 7*H)
                rest8()
            if PO == '9':
                half2(wq, 8*MB, 3*H, uk, 4*MB, 3*H); half2(uv, 4*MB, 3*H, wq, 8*MB, 4*H); xq(bx, 1); half2(uk, 4*MB, 4*H, uv, 4*MB, 4*H)
                half2(wq, 8*MB, 5*H, uk, 4*MB, 5*H); half2(uv, 4*MB, 5*H, wq, 8*MB, 6*H); half2(uk, 4*MB, 6*H, uv, 4*MB, 6*H)
                half2(wq, 8*MB, 7*H, uk, 4*MB, 7*H); half2(uv, 4*MB, 7*H, wa, 6*MB, 0)
                rest8()
            if PO == 'a':
                half2(wq, 8*MB, 4*H, uk, 4*MB, 4*H); xq(bx, 1); half2(uv, 4*MB, 4*H, wq, 8*MB, 5*H); half2(uk, 4*MB, 5*H, uv, 4*MB, 5*H)
                half2(wq, 8*MB, 6*H, uk, 4*MB, 6*H); half2(uv, 4*MB, 6*H, wq, 8*MB, 7*H); half2(uk, 4*MB, 7*H, uv, 4*MB, 7*H)
                rest8()
            if PO == 'b':
                xq(bx, 1); half2(uk, 4*MB, 5*H, uv, 4*MB, 5*H); half2(wq, 8*MB, 5*H, wq, 8*MB, 6*H)
                half2(uk, 4*MB, 6*H, uv, 4*MB, 6*H); half2(uk, 4*MB, 7*H, uv, 4*MB, 7*H); half2(wq, 8*MB, 7*H, wa, 6*MB, 0)
                rest8()
            if PO == '3':
                region(wq, 8 * MB, 2 * MB, 1 * MB); xq(bx, 1); region(wq, 8 * MB, 3 * MB, 2 * MB); xq(bx, 2)
                region(wa, 6 * MB, 0, 1 * MB); xq(ax, 0); region(wq, 8 * MB, 5 * MB, 2 * MB); xq(bx, 3); region(wa, 6 * MB, 1 * MB, 1 * MB); xq(ax, 1); region(wq, 8 * MB, 7 * MB, 1 * MB)
                region(wa, 6 * MB, 2 * MB, 2 * MB); xq(ax, 2); region(wa, 6 * MB, 4 * MB, 1 * MB); xq(ax, 3); region(wa, 6 * MB, 5 * MB, 1 * MB); region(ptr('B_c_kv'), 2 * MB, 1 * MB, 1 * MB)
    if 'pwo1' in abl:
        k(f"s_load_dwordx2 {s(sEx,2)}, s[0:1], {KARG['B_w_o']}\ns_waitcnt lgkmcnt(0)")
        region(sEx, 8 * MB, 0, 8 * MB); region(ptr('A_wo'), 2 * MB, 0, 2 * MB)
    k(f"s_add_u32 {s(sXw)}, {s(sXw)}, {XS}\ns_branch {Lnp}")
    ool0 = k.lines; k.lines = save0
    if STP: ST.stamp(44)
    for st in range(2):
        if STP and st == 1: ST.stamp(46)
        for j in range(8):
            for t in dmaX(j): k(t)
        for t in rotXw(): k(t)
        if 'ta' in abl and TAP == 1 and st == 0:
            lt_ = k.newlab('tg'); k(f"s_cmp_eq_u32 {s(sIsP)}, 1\ns_cbranch_scc1 {lt_}"); t_go(); k.label(lt_)
        for j in range(8):
            for t in dmaW(j): k(t)
        for t in rotWw(): k(t)
        if 'ta' in abl and TAP == 2 and st == 0:
            lt_ = k.newlab('tg'); k(f"s_cmp_eq_u32 {s(sIsP)}, 1\ns_cbranch_scc1 {lt_}"); t_go(); k.label(lt_)
        if st == 0:
            if STP: ST.stamp(45)
            act_comp(P1)
            late_setup()
            k(f"s_mov_b32 {s(srdO)}, {s(sWS)}\ns_mov_b32 {s(srdO+1)}, {s(sWS+1)}\ns_mov_b32 {s(srdO+2)}, {WS_SIZE}\ns_mov_b32 {s(srdO+3)}, 0x20000")
            La2 = k.newlab('typea'); Lb2 = k.newlab('go2')
            k(f"s_cmp_ge_u32 {s(sIdx)}, 16\ns_cbranch_scc1 {La2}")
            tile_kv(1); kv_params(P1)
            k(f"s_branch {Lb2}")
            k.label(La2)
            tile_long(3); a_params(P1)
            k.label(Lb2)
            precompute()
            k(f"s_xor_b32 {s(sHasNext)}, {s(sIsP)}, 1\ns_add_u32 {s(sEvT)}, {s(sIsP)}, 3\ns_mov_b32 {s(sPend)}, -1")
            k(f"s_mul_i32 {s(sXs)}, {s(sIsP)}, {XS}\nv_add_u32 {v(vx)}, {s(sXs)}, {v(vx)}\nv_add_u32 {v(vx+1)}, {s(sXs)}, {v(vx+1)}")
            k(f"s_mov_b32 {s(srdD)}, {s(sDb)}\ns_mov_b32 {s(srdD+1)}, {s(sDb+1)}\ns_mov_b32 {s(srdD+2)}, 256\ns_mov_b32 {s(srdD+3)}, 0x20000")
            Lt = k.newlab('tok')
            k(f"s_lshl_b32 {s(t0)}, s2, 2\ns_add_u32 {s(t0)}, {s(t0)}, {s(sw)}\ns_cmp_lg_u32 {s(t0)}, 0\ns_cbranch_scc1 {Lt}")
            k(f"s_memrealtime {s(t2,2)}\ns_waitcnt lgkmcnt(0)\ns_or_b32 {s(t2)}, {s(t2)}, 1\nv_mov_b32 {v(vFlag)}, {s(t2)}\nv_mov_b32 {v(vFlag+1)}, {s(t3)}\ns_mov_b64 exec, 1")
            k(f"buffer_store_dwordx2 {v(vFlag,2)}, off, {s(srdD,4)}, 0 sc1\ns_mov_b64 exec, -1")
            k.label(Lt)
            Lt2 = k.newlab('tok')
            k(f"s_cmp_eq_u32 {s(sIsP)}, 0\ns_cbranch_scc1 {Lt2}\n{tok_load}\ns_waitcnt vmcnt(0)")
            tok_get()
            k.label(Lt2)
    ST.stamp(16 if STP else 2)
    k("s_waitcnt vmcnt(16)\ns_barrier")
    ST.stamp(17 if STP else 3)
    tailq = []
    w2 = rdWpair(2)
    for mb in range(8): tailq += [w2[mb], rdX(0, mb), rdX(1, mb)]
    for tag, ins in rdWpair(0) + rdWpair(1) + tailq: k(ins)
    for j in range(8):
        for x in dmaX(j): k(x)
    for x in rotXw(): k(x)
    k(f"s_mov_b32 {s(sFirst)}, 1")
    gS = sK; gSa = sK + 4; gSb = sK + 5; gSi = sK + 6; gSj = sK + 7
    k(f"s_mov_b32 {s(gS)}, {s(sWS)}\ns_mov_b32 {s(gS+1)}, {s(sWS+1)}\ns_mov_b32 {s(gS+2)}, 0\ns_mov_b32 {s(gS+3)}, 0x20000")
    k(f"s_mov_b32 {s(gSa)}, 0\ns_mov_b32 {s(gSb)}, 0\ns_mov_b32 {s(gSi)}, 0\ns_mov_b32 {s(gSj)}, 0")
    WB = 'wb' in abl
    GA = 31; SERP = 'noserp' not in abl
    WG = [34 + 4 * i for i in range(8)]
    XG = [68, 76, 84, 92, 100, 108, 116, 124]
    SG = [10, 16, 22, 28, 72, 80, 88, 94]
    NTR = 3
    def item(lst):
        pre = lst[0].split("\n")[0] if lst[0].startswith("s_add_u32 m0") else None
        ins = [x for x in lst if x.startswith("buffer_")][0]
        post = lst[-1] if not lst[-1].startswith("buffer_") else None
        return pre, ins, post
    def body(swp, kind):
        tr = LgkmTracker([tag for tag, _ in tailq])
        rd = {}; first = {}; head = {}; vfx = {}
        items = [(item(dmaX(j)), g) for j, g in enumerate(XG)] + [(item(dmaW(j)), g) for j, g in enumerate(WG)]
        if kind < NTR:
            for i, g in enumerate(SG):
                post = f"s_add_u32 {s(gSa)}, {s(gSa)}, {s(gSj)}" if i < 7 else f"s_add_u32 {s(gSb)}, {s(gSb)}, {s(gSi)}\ns_mov_b32 {s(gSa)}, {s(gSb)}"
                items.append(((None, f"buffer_store_dwordx4 {a(STASH + 4*(kind*8+i), 4)}, {v(vSt)}, {s(gS,4)}, {s(gSa)} offen{sfx}", post), g))
        for (pre, ins, post), g in items:
            assert g not in head, g
            head[g] = ins; first[g] = None
        first[GA] = None
        busy = set(XG) | set(WG) | set(SG)
        def put_first(g, x):
            while g in first: g += 1
            assert g < 126, x
            first[g] = x; return g
        def put_reads(g, its, stride):
            for x in its:
                while g in busy or g in rd: g += 1
                rd[g] = x; g += stride
        for (pre, ins, post), g in items:
            if pre: assert g - 1 not in first; first[g - 1] = pre
        for (pre, ins, post), g in items:
            if post: put_first(g + 1, post)
        put_reads(0, rdWpair(3), 1)
        put_reads(GA + 1, rdWpair(0), 3)
        put_reads(64, rdWpair(1), 3)
        for mb in range(8):
            put_reads(96 + 4 * mb + 1, [w2[mb]], 1)
            if mb < 7: put_reads(96 + 4 * mb + 3, [rdX(0, mb), rdX(1, mb)], 1)
        assert [rd[g][1] for g in sorted(rd) if g >= 96] == [x[1] for x in tailq[:22]], "tail order"
        gg = 12
        for nb in range(0, 8, 2):
            while gg in busy: gg += 1
            vfx[gg] = [f"v_xor_b32 {v(vw+nb)}, {s(sWx)}, {v(vw+nb)}", f"v_xor_b32 {v(vw+nb+1)}, {s(sWx)}, {v(vw+nb+1)}"]; gg += 1
        g = put_first(36, f"s_add_u32 {s(sXs)}, {s(sXs)}, {XS}")
        g = put_first(g + 1, f"s_cmp_ge_u32 {s(sXs)}, {3*XS}\ns_cselect_b32 {s(sXd)}, {-2*XS & 0xffffffff}, {s(sXSc)}\ns_cselect_b32 {s(sXs)}, 0, {s(sXs)}")
        assert g < 60 and 60 not in rd and 60 not in busy
        vfx[60] = [f"v_add_u32 {v(vx)}, {s(sXd)}, {v(vx)}", f"v_add_u32 {v(vx+1)}, {s(sXd)}, {v(vx+1)}"]
        put_first(WG[4] + 1, rotWw()[0])
        g = put_first(XG[4] + 1, f"s_add_u32 {s(sXw)}, {s(sXw)}, {XS}")
        g = put_first(g + 1, f"s_cmp_ge_u32 {s(sXw)}, {3*XS}\ns_cselect_b32 {s(t0)}, {3*XS}, 0")
        g = put_first(g + 1, f"s_sub_u32 {s(sXw)}, {s(sXw)}, {s(t0)}")
        put_first(112, f"s_sub_u32 {s(sCnt)}, {s(sCnt)}, 1")
        if kind == NTR: first[126] = f"s_cmp_gt_u32 {s(sCnt)}, {s(sEvT)}"
        vm = 8 + (4 if kind < NTR else 0) + (4 if 1 <= kind < NTR else 0)
        i = 0
        for rp in range(4):
            for mb in range(8):
                for n_, nb in enumerate((2 * rp, 2 * rp + 1) if (mb % 2 == 0 or not SERP) else (2 * rp + 1, 2 * rp)):
                    for k_, kk in enumerate((0, 1) if (n_ == 0 or not SERP) else (1, 0)):
                        w = tr.need({('x', mb), ('w', nb)})
                        if i == GA:
                            tr.q = []
                            if STP: k(f"s_memtime {s(sStamp,2)}")
                            if kind == 0 and 'nolen' not in abl:
                                lw = k.newlab('w')
                                k(f"s_waitcnt vmcnt({vm+32}) lgkmcnt(0)\ns_cmp_eq_u32 {s(sFirst)}, 2\ns_cbranch_scc1 {lw}\ns_waitcnt vmcnt({vm})"); k.label(lw)
                            else: k(f"s_waitcnt vmcnt({vm}) lgkmcnt(0)")
                            if WB and kind == 0:
                                lw = k.newlab('w')
                                k(f"s_cmp_lg_u32 {s(sFirst)}, 2\ns_cbranch_scc1 {lw}\ns_waitcnt vmcnt(4)"); k.label(lw)
                        elif w: k(w)
                        A_, B_ = a(fragW(kk, nb), 4), a(fragX(kk, mb), 4)
                        d = r(acc(nb, mb), 0, 4)
                        if swp:
                            A_, B_ = B_, A_
                            d = r(acc(mb, nb), 0, 4)
                        c = "0" if (kind == 0 and k_ == 0) else d
                        k(f"v_mfma_f32_16x16x32_bf16 {d}, {A_}, {B_}, {c}")
                        if i == GA: k("s_barrier")
                        if i == GA and STP: k(f"v_cmp_eq_u32 vcc, {s(sStp)}, {v(vLane)}\nv_mov_b32 {v(vT+7)}, {s(sStamp)}\ns_add_u32 {s(sStp)}, {s(sStp)}, 1\nv_cndmask_b32 {v(vStamp)}, {v(vStamp)}, {v(vT+7)}, vcc")
                        if first.get(i): k(first[i])
                        if i in rd: k(rd[i][1]); tr.issue(rd[i][0])
                        if i in head: k(head[i])
                        for x in vfx.get(i, []): k(x)
                        if i == 127:
                            for tag, ins in tailq[22:]: k(ins)
                        i += 1

    outl = []; hooks = []
    INL = 'noinl' not in abl
    Ltile = k.newlab('tile'); Lepi = k.newlab('epi')
    k.label(Ltile)
    Lsw = k.newlab('swp')
    k(f"s_mov_b32 {s(sCnt)}, {s(CP['nk'])}")
    k(f"s_cmp_eq_u32 {s(CP['swp'])}, 1\ns_cbranch_scc1 {Lsw}")
    for swp in (0, 1):
        if swp: k.label(Lsw)
        for kind in range(NTR):
            body(swp, kind)
            if kind in ((0, 2) if WB else (1,)):
                Lh = k.newlab('hook'); Lhr = k.newlab('hookr')
                k(f"s_cmp_eq_u32 {s(sFirst)}, 2\ns_cbranch_scc1 {Lh}"); k.label(Lhr)
                hooks.append((Lh, Lhr, kind))
        Lloop = k.newlab('loop'); Lsw2 = k.newlab('dosw')
        align()
        k.label(Lloop)
        outl.append((Lsw2, Lloop))
        body(swp, NTR)
        if INL:
            k(f"s_cbranch_scc1 {Lloop}\ns_cmp_eq_u32 {s(sCnt)}, 0\ns_cbranch_scc1 {Lepi}")
            k.lines.append(f"@@{Lsw2}")
        else:
            k(f"s_cbranch_scc1 {Lloop}\ns_cmp_lg_u32 {s(sCnt)}, 0\ns_cbranch_scc1 {Lsw2}")
            if not swp: k(f"s_branch {Lepi}")
    k.label(Lepi)
    Lepf = k.newlab('epf'); Leps = k.newlab('eps'); Llast = k.newlab('last'); Lp = k.newlab('ptype'); Linit = k.newlab('init'); Lkv = k.newlab('kvl')
    k(f"s_cmp_eq_u32 {s(sHasNext)}, 0\ns_cbranch_scc1 {Llast}")
    ST.stamp(4)
    tok_get()
    Lq1 = k.newlab('q1')
    if 'qtr' not in abl:
        Lq0 = k.newlab('q0')
        k(f"s_cmp_ge_u32 {s(sIdx)}, 16\ns_cbranch_scc1 {Lq0}")
        k(f"s_call_b64 {s(sRe,2)}, {Lepf}\ns_mov_b32 {s(sPend)}, {s(CP['flag'])}\ns_mov_b32 {s(sFirst)}, 2")
        ST.stamp(5)
        k(f"s_branch {Lq1}")
        k.label(Lq0)
    k(f"s_call_b64 {s(sRe,2)}, {Leps}")
    ST.stamp(5)
    k(f"s_mov_b32 {s(sPend)}, {s(CP['flag'])}\ns_add_u32 {s(gSa)}, {s(CP['obase'])}, {s(CP['Si'])}\ns_mov_b32 {s(gSb)}, {s(gSa)}\ns_mov_b32 {s(gSi)}, {s(CP['Si'])}\ns_mov_b32 {s(gSj)}, {s(CP['Sj'])}\ns_mov_b32 {s(gS+2)}, {WS_SIZE}")
    k.label(Lq1)
    dbgmax(10)
    act_comp(P1)
    k(f"s_sub_u32 {s(sEvT)}, {s(CP['nk'])}, 5\ns_max_u32 {s(sEvT)}, {s(sEvT)}, 4\ns_mov_b32 {s(sHasNext)}, 0\ns_branch {Ltile}")
    k.label(Llast)
    ST.stamp(6)
    k.label(Lkv)
    dbgmax(12, True)
    k("s_waitcnt lgkmcnt(0)")
    QL = 'qlate' in abl; QS = 'noqs' not in abl
    if QL:
        k("s_waitcnt vmcnt(16)")
        early_check('q'); q_loads((0, 1, 2, 3))
    save = k.lines; k.lines = []
    for Lh, Lhr, kind in hooks:
        k.label(Lh)
        if kind == 0:
            k(f"s_cmp_lg_u32 {s(sw)}, 0\ns_cbranch_scc1 {Lhr}\nbuffer_wbl2 sc1\ns_branch {Lhr}")
            continue
        publish(sPend)
        k(f"s_mov_b32 {s(sPend)}, -1\ns_branch {Lhr}")
    def either(fn, fp):
        la = k.newlab('ea'); lb = k.newlab('eb')
        k(f"s_cmp_eq_u32 {s(sIsP)}, 1\ns_cbranch_scc1 {la}")
        fn()
        k.label(lb)
        alt.append((la, lb, fp))
    alt = []
    for Lsw2, Lns in outl:
        k.label(Lsw2)
        l_last = k.newlab('x'); l4 = k.newlab('x'); l3 = k.newlab('x'); l2 = k.newlab('x'); l1 = k.newlab('x'); l_p = k.newlab('x'); l_w = k.newlab('x')
        k(f"s_cmp_eq_u32 {s(sHasNext)}, 0\ns_cbranch_scc1 {l_last}")
        k(f"s_cmp_lg_u32 {s(sCnt)}, 3\ns_cbranch_scc1 {l_w}")
        act_load(P1, which="x")
        k(f"{tok_load}\ns_branch {Lns}")
        k.label(l_w)
        act_load(P1, which="w")
        k(f"s_mov_b32 {s(sEvT)}, 0\ns_branch {Lns}")
        k.label(l_last)
        k(f"s_cmp_le_u32 {s(sCnt)}, 4\ns_cbranch_scc1 {l4}")
        if 'lp' in abl: ST.stamp(10)
        publish(sPend)
        k(f"s_mov_b32 {s(sPend)}, -1\ns_mov_b32 {s(sEvT)}, 4\ns_branch {Lns}")
        k.label(l4)
        k(f"s_cmp_lg_u32 {s(sCnt)}, 4\ns_cbranch_scc1 {l3}")
        if 'lp' in abl: ST.stamp(11)
        either(lambda: early_load(), lambda: early_load('kv'))
        if 'cpf2' in abl:
            k(f"s_sub_u32 {s(t1)}, {s(sIdx)}, 16\ns_cmp_ge_u32 {s(t1)}, 3\ns_cbranch_scc1 {Lns}\ns_lshl_b32 {s(t1)}, {s(t1)}, 2\ns_add_u32 {s(t1)}, {s(t1)}, {s(sw)}")
            code_prefetch(k, sEx, name, name + "_end", t1, vLane, T, vDum, t0)
        k(f"s_branch {Lns}")
        k.label(l3)
        k(f"s_waitcnt vmcnt(16)\ns_cmp_lg_u32 {s(sCnt)}, 3\ns_cbranch_scc1 {l2}")
        either(lambda: (early_check('all'), q_loads((0, 1, 2, 3), range(0, 6))), lambda: early_check('kv'))
        kv_cursor(sXoff, srdX, 0)
        for i in range(2): k(f"v_mov_b32 {v(vX+i)}, {v(vSt)}")
        k(f"s_branch {Lns}")
        k.label(l2)
        k(f"s_cmp_lg_u32 {s(sCnt)}, 2\ns_cbranch_scc1 {l1}")
        either(lambda: q_loads((0, 1, 2, 3), range(6, 11)), lambda: early_load('q'))
        kv_cursor(sXoff, srdX, 1); kv_cursor(sWoff, srdW, 3)
        for i in range(4): k(f"v_mov_b32 {v(vW+i)}, {v(vSt)}")
        k(f"s_branch {Lns}")
        k.label(l1)
        either(lambda: q_loads((0, 1, 2, 3), range(11, 16)), lambda: (early_check('q'), q_loads((0, 1, 2, 3))))
        kv_cursor(sXoff, srdX, 2); kv_cursor(sWoff, srdW, 4)
        k(f"s_branch {Lns}")
        for la, lb, fp in alt:
            k.label(la); fp(); k(f"s_branch {lb}")
        alt.clear()
    k.label(Leps)
    Lns3 = k.newlab('ns3')
    k("s_nop 3")
    for scaled in (0,):
        k(f"s_mov_b32 {s(t0)}, {s(CP['obase'])}")
        for p_ in range(32):
            sp = acc(2 * (p_ >> 3), p_ & 7)
            if sp[0] == 'a':
                for i in range(8): k(f"v_accvgpr_read_b32 {v(vT+i)}, {a(sp[1]+i)}")
                b = vT
            else:
                b = sp[1]
            if scaled:
                for i in range(0, 8, 2): k(f"v_pk_mul_f32 {v(b+i,2)}, {v(b+i,2)}, {s(t2,2)}")
            for i in range(4): k(f"v_cvt_pk_bf16_f32 {v(b+i)}, {v(b+2*i)}, {v(b+2*i+1)}")
            if p_ < 8: k(f"buffer_store_dwordx4 {v(b,4)}, {v(vSt)}, {s(srdO,4)}, {s(t0)} offen{sfx}\ns_add_u32 {s(t0)}, {s(t0)}, {s(CP['Sj'])}")
            else:
                for i in range(4): k(f"v_accvgpr_write_b32 {a(STASH + 4*(p_-8) + i)}, {v(b+i)}")
        k(f"s_setpc_b64 {s(sRe,2)}")
    k.label(Lepf)
    Lnoscale = k.newlab('noscale')
    k("s_nop 7")
    for scaled in (1,):
        k(f"s_mov_b32 {s(t1)}, {s(CP['obase'])}\ns_mov_b32 {s(t2)}, {s(CP['scale'])}\ns_mov_b32 {s(t3)}, {s(CP['scale'])}")
        for e in range(4):
            k(f"s_mov_b32 {s(t0)}, {s(t1)}")
            for j in range(8):
                sp = acc(2 * e, j)
                if sp[0] == 'a':
                    for i in range(8): k(f"v_accvgpr_read_b32 {v(vT+i)}, {a(sp[1]+i)}")
                    b = vT
                else:
                    b = sp[1]
                if scaled:
                    for i in range(0, 8, 2): k(f"v_pk_mul_f32 {v(b+i,2)}, {v(b+i,2)}, {s(t2,2)}")
                for i in range(4):
                    k(f"v_cvt_pk_bf16_f32 {v(b+i)}, {v(b+2*i)}, {v(b+2*i+1)}")
                k(f"buffer_store_dwordx4 {v(b,4)}, {v(vSt)}, {s(srdO,4)}, {s(t0)} offen{'' if (scaled and WB) else sfx}")
                k(f"s_add_u32 {s(t0)}, {s(t0)}, {s(CP['Sj'])}")
                if sp[0] == 'a': k("s_nop 1")
            k(f"s_add_u32 {s(t1)}, {s(t1)}, {s(CP['Si'])}")
        k(f"s_setpc_b64 {s(sRe,2)}")
    Lepl = k.newlab('epl')
    k.label(Lepl)
    SORD = list(range(20, 32)) + list(range(16, 20))
    MIX = 'nomix' not in abl
    Lns2 = k.newlab('ns2')
    k(f"s_mov_b32 {s(t2)}, {s(CP['scale'])}\ns_mov_b32 {s(t3)}, {s(CP['scale'])}\ns_cmp_eq_u32 {s(CP['scale'])}, 0\ns_cbranch_scc1 {Lns2}")
    for scaled in (1, 0):
        if not scaled: k.label(Lns2)
        k(f"s_mov_b32 {s(t0)}, {s(CP['obase'])}")
        for p_ in ([x for pr in zip(range(16), SORD) for x in pr] if MIX else list(range(16)) + SORD):
            e, j = p_ >> 3, p_ & 7
            sp = acc(2 * e, j)
            if sp[0] == 'a':
                for i in range(8): k(f"v_accvgpr_read_b32 {v(vT+i)}, {a(sp[1]+i)}")
                b = vT
            else:
                b = sp[1]
            if scaled:
                for i in range(0, 8, 2): k(f"v_pk_mul_f32 {v(b+i,2)}, {v(b+i,2)}, {s(t2,2)}")
            d = b if p_ < 16 else 192 + 4 * SORD.index(p_)
            for i in range(4):
                k(f"v_cvt_pk_bf16_f32 {v(d+i)}, {v(b+2*i)}, {v(b+2*i+1)}")
            if p_ < 16:
                k(f"buffer_store_dwordx4 {v(b,4)}, {v(vSt)}, {s(srdO,4)}, {s(t0)} offen{sfx}")
                k(f"s_add_u32 {s(t0)}, {s(t0)}, {s(CP['Sj'])}" if p_ != 7 else f"s_add_u32 {s(t0)}, {s(CP['obase'])}, {s(CP['Si'])}")
                if MIX:
                    for i in range(8): k(f"v_accvgpr_write_b32 {a(8*p_+i)}, 0")
        k(f"s_setpc_b64 {s(sRe,2)}")
    ool = k.lines; k.lines = save

    S_ = Regs('s', 24, 90)
    srdK = S_.alloc('srdK', 4, 4); srdV = S_.alloc('srdV', 4, 4)
    sh = S_.alloc('h'); snA = S_.alloc('na'); snB = S_.alloc('nb'); srdS = S_.alloc('srdS', 4, 4); sSa = S_.alloc('sa'); srdF = S_.alloc('srdF', 4, 4); sPw = S_.alloc('pw', 4, 2); sL2 = S_.alloc('l2'); sPB = S_.alloc('pb'); sPf = CP['flag']; sOut = S_.alloc('out', 2, 2)
    sKo = S_.alloc('ko'); sVo = S_.alloc('vo')
    sC1 = S_.alloc('c1'); sMK = S_.alloc('mk'); sW4 = S_.alloc('w4')
    sVis = S_.alloc('vis', 2, 2); sAbs = S_.alloc('abs'); sThr = S_.alloc('thr'); sThC = S_.alloc('thc')
    sE = S_.alloc('e', 6)
    sRa = S_.alloc('ra', 2, 2); sM0 = S_.alloc('m0', 2, 2)
    sQ = S_.alloc('qoff', 2); sLo = S_.alloc('lo', 3)
    V = Regs('v', 6, 64)
    vKV = V.alloc('kv'); vDma = V.alloc('dma'); vChk = V.alloc('chk'); vNinf = V.alloc('ninf'); vFo = V.alloc('fo'); vFx = V.alloc('fx')
    vL = V.alloc('l', 4, 4); vTB = V.alloc('tb', 4)
    vE = V.alloc('e', 8, 4); vTS = V.alloc('ts', 16, 4); vOne = V.alloc('one', 4, 4)
    def TS(qt): return vTS + 4 * qt
    vT = V.alloc('t', 16, 4)
    def Sreg(par, qt): return 64 + par * 32 + qt * 8
    def Preg(par, qt): return 128 + par * 16 + qt * 4
    def Nreg(qt): return 160 + qt * 8
    def Oreg(qt, db): return qt * 32 + db * 4
    def KF(n): return 192 + n * 4
    def VF(n): return 224 + n * 4
    T = vT; vDm2 = 255
    AB = (0, 1, 2, 3); A_ = (0, 1)
    MF = "v_mfma_f32_16x16x32_bf16"
    def xlane(regs, tmps, op):
        for sw_ in ("v_permlane32_swap_b32", "v_permlane16_swap_b32"):
            for x, y in zip(regs, tmps): k(f"v_mov_b32 {v(y)}, {v(x)}")
            k("s_nop 1")
            for x, y in zip(regs, tmps): k(f"{sw_} {v(x)}, {v(y)}")
            k("s_nop 1")
            for x, y in zip(regs, tmps): k(f"{op} {v(x)}, {v(x)}, {v(y)}")

    LQ, LK, LV = 192, 208, 228
    sLa = S_.alloc('la', 7)
    def local_setup():
        k(f"s_and_b32 {s(t0)}, s2, 7\ns_lshl_b32 {s(t0)}, {s(t0)}, 4\ns_lshl_b32 {s(t1)}, {s(sw)}, 2\ns_add_u32 {s(sLo)}, {s(t0)}, {s(t1)}")
        k(f"s_lshr_b32 {s(t2)}, s2, 3\ns_lshl_b32 {s(t2)}, {s(t2)}, 17")
        k(f"s_lshl_b32 {s(t0)}, {s(sLo)}, 10\ns_add_u32 {s(t0)}, {s(t0)}, {s(t2)}\ns_add_u32 {s(sLa)}, {s(t0)}, {WS_QA}\ns_add_u32 {s(sLa+1)}, {s(t0)}, {WS_KA}")
        k(f"s_and_b32 {s(sLo+1)}, {s(sLo)}, 63\ns_cmp_eq_u32 {s(sLo+1)}, 0\ns_cselect_b32 {s(t3)}, 0, 1024\ns_sub_u32 {s(sLa+2)}, {s(sLa+1)}, {s(t3)}")
        k(f"s_lshl_b32 {s(t0)}, {s(sLo)}, 9\ns_add_u32 {s(t0)}, {s(t0)}, {s(t2)}\ns_add_u32 {s(sLa+3)}, {s(t0)}, {WS_VA}\ns_sub_u32 {s(sLa+4)}, {s(sLa+3)}, {s(t3)}")
        k(f"s_add_u32 {s(sLa+5)}, {s(sLa+3)}, 65536\ns_add_u32 {s(sLa+6)}, {s(sLa+4)}, 65536")
    def local_loads():
        def ld(dst, so, off): return (None, f"buffer_load_dwordx4 {v(dst,4)}, {v(vL16)}, {s(srdO,4)}, {s(so)} offen offset:{off} sc1", None)
        o = [ld(LQ+4*j, sLa, j*1024) for j in range(4)] + [ld(LK+4+4*j, sLa+1, j*1024) for j in range(4)] + [ld(LK, sLa+2, 0)]
        for db in range(2):
            o += [ld(LV+12*db+4+4*j, sLa+3+2*db, j*1024) for j in range(2)] + [ld(LV+12*db, sLa+4+2*db, 0)]
        return o
    C0, C1, CZ, Mx, My, Sb, Ts = 128, 132, 136, 140, 144, 148, 20
    def local_pre():
        k(f"v_and_b32 {v(T)}, 15, {v(vLane)}\nv_lshrrev_b32 {v(T+1)}, 4, {v(vLane)}\nv_lshlrev_b32 {v(T+1)}, 2, {v(T+1)}\nv_sub_u32 {v(T)}, {v(T)}, {v(T+1)}")
        for r_ in range(4):
            k(f"v_cmp_ge_i32 vcc, {r_-9}, {v(T)}\nv_subrev_u32 {v(T+2)}, {r_}, {v(T)}\nv_cmp_ge_u32 {s(sM0,2)}, 7, {v(T+2)}\ns_nop 0")
            k(f"v_cndmask_b32 {v(C0+r_)}, {v(vNinf)}, 0, vcc\nv_cndmask_b32 {v(C1+r_)}, {v(vNinf)}, 0, {s(sM0,2)}")
        k(f"s_cmp_eq_u32 {s(sLo+1)}, 0\ns_cselect_b64 vcc, -1, 0\ns_nop 0")
        for r_ in range(4): k(f"v_cndmask_b32 {v(CZ+r_)}, {v(C0+r_)}, {v(vNinf)}, vcc")
        k(f"s_lshl_b32 {s(t0)}, {s(sLo)}, 10\ns_lshr_b32 {s(t1)}, s2, 3\ns_lshl_b32 {s(t1)}, {s(t1)}, 17\ns_add_u32 {s(t0)}, {s(t0)}, {s(t1)}\ns_add_u32 {s(sLo)}, {s(t0)}, {WS_OA}")
    def local_stream():
        save_ = k.lines; k.lines = []
        U = range(4); PB = LQ
        for u in U:
            k(f"{MF} {v(Sb+8*u,4)}, {v(LK+4*u,4)}, {v(LQ+4*u,4)}, {v(CZ if u == 0 else C0,4)}")
            k(f"{MF} {v(Sb+8*u+4,4)}, {v(LK+4*u+4,4)}, {v(LQ+4*u,4)}, {v(C1,4)}")
        for _ in range(4): k("s_nop 1")
        for u in U: k(f"v_max3_f32 {v(Mx+u)}, {v(Sb+8*u)}, {v(Sb+8*u+1)}, {v(Sb+8*u+2)}")
        for u in U: k(f"v_max3_f32 {v(Mx+u)}, {v(Mx+u)}, {v(Sb+8*u+3)}, {v(Sb+8*u+4)}")
        for u in U: k(f"v_max3_f32 {v(Mx+u)}, {v(Mx+u)}, {v(Sb+8*u+5)}, {v(Sb+8*u+6)}")
        for u in U: k(f"v_max_f32 {v(Mx+u)}, {v(Mx+u)}, {v(Sb+8*u+7)}")
        xlane([Mx + u for u in U], [My + u for u in U], "v_max_f32")
        for u in U:
            for i in range(8): k(f"v_sub_f32 {v(Sb+8*u+i)}, {v(Sb+8*u+i)}, {v(Mx+u)}")
        for u in U:
            for i in range(8): k(f"v_exp_f32 {v(Sb+8*u+i)}, {v(Sb+8*u+i)}")
        for u in U:
            for i in range(4): k(f"v_cvt_pk_bf16_f32 {v(PB+4*u+i)}, {v(Sb+8*u+2*i)}, {v(Sb+8*u+2*i+1)}")
        k("s_nop 1")
        for u in U: k(f"{MF} {v(Ts+4*u,4)}, {v(vOne,4)}, {v(PB+4*u,4)}, 0")
        for u in U:
            for db in range(2): k(f"{MF} {v(Sb+8*u+4*db,4)}, {v(LV+12*db+2+2*u,4)}, {v(PB+4*u,4)}, 0")
        for u in U: k(f"v_rcp_f32 {v(Mx+u)}, {v(Ts+4*u)}")
        k("s_nop 1\ns_nop 1")
        for u in U:
            for i in range(8): k(f"v_mul_f32 {v(Sb+8*u+i)}, {v(Sb+8*u+i)}, {v(Mx+u)}")
            for i in range(4): k(f"v_cvt_pk_bf16_f32 {v(Sb+8*u+i)}, {v(Sb+8*u+2*i)}, {v(Sb+8*u+2*i+1)}")
            k(f"buffer_store_dwordx4 {v(Sb+8*u,4)}, {v(vL16)}, {s(srdO,4)}, {s(sLo)} offen offset:{u*1024}{sfx}")
        out = [x.strip() for x in k.lines]; k.lines = save_
        return out

    INI = []; k.collect = INI
    head_ids()
    k(f"s_mov_b32 {s(sh)}, {s(t2)}\ns_bfe_u32 {s(snA)}, {TABA}, {s(t3)}\ns_add_u32 {s(snA)}, {s(snA)}, 1\ns_bfe_u32 {s(snB)}, {TABB}, {s(t3)}\ns_add_u32 {s(snB)}, {s(snB)}, 1")
    k(f"s_lshl_b32 {s(sW4)}, {s(sw)}, 12\nv_add_u32 {v(vDma)}, {s(sW4)}, {v(vL16)}")
    k(f"s_lshl_b32 {s(t0)}, {s(snB)}, 2\ns_lshl_b32 {s(t1)}, {s(snA)}, 2\ns_lshl_b32 {s(srdK+2)}, {s(t1)}, 13\ns_mov_b32 {s(srdV+2)}, {s(srdK+2)}")
    k(f"s_sub_u32 {s(sE)}, {s(t0)}, 4\ns_add_u32 {s(sE)}, {s(sE)}, {s(sw)}\ns_add_u32 {s(sE+1)}, {s(sE)}, 1\ns_mov_b32 {s(sE+2)}, {s(t0)}")
    k(f"s_sub_u32 {s(sE+3)}, {s(t1)}, 4\ns_add_u32 {s(sE+3)}, {s(sE+3)}, {s(sw)}\ns_add_u32 {s(sE+4)}, {s(sE+3)}, 1\ns_mov_b32 {s(sE+5)}, {s(t1)}")
    EEX = 'noeex' not in abl
    if EEX: k(f"s_cmp_lt_u32 {s(sw)}, 2\ns_cselect_b32 {s(t0)}, 2, 0\ns_sub_u32 {s(sE+5)}, {s(sE+5)}, {s(t0)}")
    k(f"s_mov_b32 {s(srdK+3)}, 0x20000\ns_mov_b32 {s(srdV+3)}, 0x20000\ns_lshl_b32 {s(sLo+2)}, {s(sh)}, 19")
    k(f"s_add_u32 {s(t0)}, {s(sLo+2)}, {WS_KB}\ns_add_u32 {s(srdK)}, {s(sWS)}, {s(t0)}\ns_addc_u32 {s(srdK+1)}, {s(sWS+1)}, 0")
    k(f"s_add_u32 {s(t0)}, {s(sLo+2)}, {WS_VB}\ns_add_u32 {s(srdV)}, {s(sWS)}, {s(t0)}\ns_addc_u32 {s(srdV+1)}, {s(sWS+1)}, 0")
    def dmaK(j): return f"buffer_load_dwordx4 {v(vDma)}, {s(srdK,4)}, {s(sKo)} offen offset:{j*1024}{ksc} lds"
    def dmaV(j): return f"buffer_load_dwordx4 {v(vDma)}, {s(srdV,4)}, {s(sVo)} offen offset:{j*1024}{ksc} lds"
    def dma_group():
        g = [(f"s_mov_b32 m0, {s(sMK)}", dmaK(0), None), (None, dmaK(1), None), (None, dmaK(2), None), (None, dmaK(3), f"s_add_u32 {s(sKo)}, {s(sKo)}, {STG}"),
             (f"s_add_u32 m0, {s(sMK)}, {STG}", dmaV(0), None), (None, dmaV(1), None), (None, dmaV(2), None), (None, dmaV(3), f"s_add_u32 {s(sVo)}, {s(sVo)}, {STG}")]
        return g
    def emit_group(items):
        for pre, ins, post in items:
            if pre: k(pre + "\ns_nop 0")
            k(ins)
            if post: k(post)
    k.collect = None
    ST.stamp(7)
    k(f"v_mov_b32 {v(vKV)}, {v(vL16)}")
    for a_ in range(8): k(f"ds_read_b128 {a(KF(a_),4)}, {v(vKV)} offset:{a_*1024}")
    k(f"s_load_dwordx2 {s(sPw,2)}, s[0:1], {KARG['B_w_o']}\ns_load_dwordx2 {s(sPw+2,2)}, s[0:1], {KARG['A_wo']}\ns_load_dwordx2 {s(sOut,2)}, s[0:1], {KARG['out']}\ns_mov_b32 {s(srdF+3)}, 0x20000")
    k(f"s_call_b64 {s(sRe,2)}, {Lepl}\ns_mov_b32 {s(sPend)}, {s(CP['flag'])}\ns_mov_b32 {s(srdS+2)}, {WS_SIZE}")
    k.label(Linit)
    ST.stamp(10) if 'lp' not in abl else None
    k(f"s_mov_b32 {s(srdS)}, {s(sWS)}\ns_mov_b32 {s(srdS+1)}, {s(sWS+1)}\ns_mov_b32 {s(srdS+3)}, 0x20000")
    k(f"s_lshl_b32 {s(t0)}, {s(CP['Si'])}, 1\ns_add_u32 {s(CP['obase'])}, {s(CP['obase'])}, {s(t0)}\ns_lshl_b32 {s(t0)}, {s(CP['Sj'])}, 2\ns_add_u32 {s(sSa)}, {s(CP['obase'])}, {s(t0)}")
    k.collect = INI
    k(f"s_mov_b32 {s(sKo)}, {5*STG}\ns_mov_b32 {s(sVo)}, {4*STG}")
    k(f"v_mov_b32 {v(vNinf)}, 0xff800000\ns_mov_b32 {s(sThr)}, {f32bits(THR)}")
    k(f"s_lshl_b32 {s(t1)}, {s(sw)}, 1\ns_sub_u32 {s(t1)}, {s(t1)}, 8")
    k(f"s_lshl_b32 {s(sQ)}, {s(snA)}, 3\ns_add_u32 {s(sQ)}, {s(sQ)}, {s(t1)}\ns_lshl_b32 {s(sQ+1)}, {s(snB)}, 3\ns_add_u32 {s(sQ+1)}, {s(sQ+1)}, {s(t1)}")
    def stash_item(m):
        post = f"s_add_u32 {s(sSa)}, {s(sSa)}, {s(CP['Sj'])}"
        if m == 3: post = f"s_add_u32 {s(sSa)}, {s(CP['obase'])}, {s(CP['Si'])}"
        if m == 11: post = f"s_mov_b32 {s(sSa)}, {s(CP['obase'])}"
        return (None, f"buffer_store_dwordx4 {v(192+4*m,4)}, {v(vL16)}, {s(srdS,4)}, {s(sSa)} offen{sfx}", post)
    k(f"s_lshr_b32 {s(t0)}, {s(sh)}, 1\ns_lshl_b32 {s(t0)}, {s(t0)}, 7\ns_add_u32 {s(t0)}, {s(t0)}, {WS_FLAG + 32*128}\ns_lshr_b32 {s(t1)}, s2, 6\ns_lshl_b32 {s(t1)}, {s(t1)}, 8\ns_add_u32 {s(t1)}, {s(t1)}, {WS_FLAG + 48*128 - 64}")
    k(f"v_min_u32 {v(vFo)}, 31, {v(vLane)}\nv_lshlrev_b32 {v(vFo)}, 3, {v(vFo)}\nv_mov_b32 {v(vFx)}, {s(t0)}\nv_mov_b32 {v(vChk)}, {s(t1)}\nv_cmp_gt_u32 vcc, 8, {v(vLane)}\ns_nop 1\nv_cndmask_b32 {v(vFx)}, {v(vChk)}, {v(vFx)}, vcc\nv_add_u32 {v(vFo)}, {v(vFo)}, {v(vFx)}")
    if False:
        Lc3 = k.newlab('c3')
        k(f"s_lshl_b32 {s(t0)}, {s(sw)}, 8\ns_add_u32 {s(t0)}, {s(t0)}, s2\ns_cmp_ge_u32 {s(t0)}, 128\ns_cbranch_scc1 {Lc3}\ns_lshl_b32 {s(t0)}, {s(t0)}, 7\ns_add_u32 {s(t0)}, {s(t0)}, {WS_FLAG3}\nv_mov_b32 {v(vChk)}, 0\ns_mov_b64 exec, 1")
        k(f"buffer_store_dword {v(vChk)}, off, {s(srdO,4)}, {s(t0)} sc1\ns_mov_b64 exec, -1")
        k.label(Lc3)
    k(f"s_mov_b32 {s(sC1)}, 0")
    ZI = 80
    zrest = []
    if not MIX:
        for i in range(ZI): k(f"v_accvgpr_write_b32 {a(i)}, 0")
        zrest = [f"v_accvgpr_write_b32 {a(i)}, 0" for i in range(ZI, 128)]
    for i in range(4): k(f"v_mov_b32 {v(vL+i)}, 0\nv_mov_b32 {v(TS(i))}, 0\nv_mov_b32 {v(vOne+i)}, 0x3f803f80")
    def l2w():
        k(f"v_lshrrev_b32 {v(T+14)}, 3, {v(vLane)}\nv_lshlrev_b32 {v(T+14)}, 11, {v(T+14)}\nv_and_b32 {v(T+13)}, 7, {v(vLane)}\nv_lshl_add_u32 {v(T+14)}, {v(T+13)}, 7, {v(T+14)}")
        k(f"s_lshr_b32 {s(t0)}, s2, 3\ns_lshl_b32 {s(t0)}, {s(t0)}, 2\ns_add_u32 {s(t0)}, {s(t0)}, {s(sw)}\ns_lshl_b32 {s(t0)}, {s(t0)}, 14\ns_and_b32 {s(t1)}, s2, 1\ns_lshl_b32 {s(t1)}, {s(t1)}, 10\ns_add_u32 {s(t0)}, {s(t0)}, {s(t1)}")
        k(f"s_bitcmp1_b32 s2, 2\ns_cselect_b32 {s(t1)}, 0, {41*64*2048}\ns_mov_b32 {s(t2)}, {8*MB}\ns_cselect_b32 {s(srdF+2)}, {41*64*2048}, {s(t2)}\ns_cselect_b32 {s(t3)}, 0, {2*MB}\ns_add_u32 {s(t1)}, {s(t1)}, {s(t0)}")
        k(f"s_mov_b32 {s(srdF)}, {s(sPw)}\ns_mov_b32 {s(srdF+1)}, {s(sPw+1)}")
        L2W = []
        for r_ in ((2, 1, 0) if 'l2rev' in abl else (0, 1, 2)):
            L2W.append(f"s_add_u32 {s(t2)}, {s(t1)}, {r_*2*MB}\nbuffer_load_dword {v(vDm2)}, {v(T+14)}, {s(srdF,4)}, {s(t2)} offen")
        for x in L2W: k(x)
        k(f"s_mov_b32 {s(srdF)}, {s(sPw+2)}\ns_mov_b32 {s(srdF+1)}, {s(sPw+3)}\ns_mov_b32 {s(srdF+2)}, {s(t3)}\nbuffer_load_dword {v(vDm2)}, {v(T+14)}, {s(srdF,4)}, {s(t0)} offen")
    def events(which):
        for e in which:
            ln = k.newlab('e')
            if e >= 6:
                ln2 = k.newlab('e')
                fl = f"buffer_load_dwordx2 {v(vFlag,2)}, {v(vFo)}, {s(srdO,4)}, 0 offen sc1"
                fl2 = f"s_lshr_b32 {s(t0)}, {s(sh)}, 1\ns_lshl_b32 {s(t0)}, {s(t0)}, 7\ns_add_u32 {s(t0)}, {s(t0)}, {WS_FLAG + 11*8}\nv_min_u32 {v(vFa)}, 1, {v(vLane)}\nv_lshlrev_b32 {v(vFa)}, 5, {v(vFa)}\nbuffer_load_dwordx2 {v(vFlag,2)}, {v(vFa)}, {s(srdO,4)}, {s(t0)} offen sc1"
                def touch(p_, size):
                    if not TOUCH: return
                    k(f"s_mov_b32 {s(srdF)}, {s(p_)}\ns_mov_b32 {s(srdF+1)}, {s(p_+1)}\ns_mov_b32 {s(srdF+2)}, {size}\ns_lshl_b32 {s(t0)}, s2, 2\ns_add_u32 {s(t0)}, {s(t0)}, {s(sw)}\ns_lshl_b32 {s(t0)}, {s(t0)}, 13")
                    k(f"v_lshlrev_b32 {v(T+14)}, 7, {v(vLane)}\nbuffer_load_dword {v(vDm2)}, {v(T+14)}, {s(srdF,4)}, {s(t0)} offen")
                def dtouch(n):
                    lt = k.newlab('t')
                    k(f"s_cmp_ge_u32 s2, 96\ns_cbranch_scc1 {lt}\ns_lshl_b32 {s(t0)}, s2, 2\ns_add_u32 {s(t0)}, {s(t0)}, {s(sw)}\ns_add_u32 {s(t0)}, {s(t0)}, {n*384}\ns_cmp_lt_u32 {s(t0)}, 1024")
                    k(f"s_cselect_b32 {s(srdF)}, {s(sPw)}, {s(sPw+2)}\ns_cselect_b32 {s(srdF+1)}, {s(sPw+1)}, {s(sPw+3)}\ns_mov_b32 {s(t1)}, {2*MB}\ns_cselect_b32 {s(srdF+2)}, {8*MB}, {s(t1)}\ns_and_b32 {s(t0)}, {s(t0)}, 1023\ns_lshl_b32 {s(t0)}, {s(t0)}, 13")
                    k(f"v_lshlrev_b32 {v(T+14)}, 7, {v(vLane)}\nbuffer_load_dword {v(vDm2)}, {v(T+14)}, {s(srdF,4)}, {s(t0)} offen")
                    k.label(lt)
                def cpf3():
                    k(f"s_lshr_b32 {s(t1)}, s2, 3\ns_cmp_ge_u32 {s(t1)}, 3\ns_cbranch_scc1 {ln}\ns_lshl_b32 {s(t1)}, {s(t1)}, 2\ns_add_u32 {s(t1)}, {s(t1)}, {s(sw)}\ns_mov_b64 {s(sM0,2)}, vcc")
                    code_prefetch(k, sEx, name, name + "_end", t1, vLane, T + 14, vDm2, t0)
                    k(f"s_mov_b64 vcc, {s(sM0,2)}")
                def check(load, exp):
                    if 'nochk' in abl: return
                    lsp = k.newlab('spin')
                    k(f"s_waitcnt vmcnt({18 if TOUCH and 'dtouch' not in abl else 16})\ns_mov_b32 s3, {SPIN}")
                    k.label(lsp)
                    k(f"v_cmp_ne_u64 {s(sM0,2)}, {s(sTok,2)}, {v(vFlag,2)}\ns_nop 3\ns_cmp_eq_u64 {s(sM0,2)}, 0\ns_cbranch_scc1 {ln}\ns_sub_u32 s3, s3, 1\ns_cbranch_scc1 {ln}\ns_sleep 32\n{load}\ns_waitcnt vmcnt(0)\ns_branch {lsp}")
                if L2D:
                    k(f"s_cmp_lg_u32 {s(sAbs)}, {s(sL2)}\ns_cbranch_scc1 {ln2}")
                    l2w()
                    k.label(ln2)
                ln3 = k.newlab('e')
                k(f"s_cmp_lg_u32 {s(sAbs)}, {s(sPB)}\ns_cbranch_scc1 {ln3}")
                publish(sPf, T + 12)
                k(f"s_mov_b32 {s(sPf)}, -1")
                k.label(ln3)
                k(f"s_cmp_gt_u32 {s(sAbs)}, {U_CP if 'cpf2' in abl else U_CHK}\ns_cbranch_scc1 {ln}")
                acts = [(U_PUB, None), (U_MID, lambda: check(fl2, None)), (U_POLL, lambda: (k(fl), touch(sPw, 8 * MB))), (U_CHK, lambda: (touch(sPw + 2, 2 * MB), check(fl, v(vFx))))]
                if 'cpf2' in abl: acts.append((U_CP, cpf3))
                if 'dtouch' in abl:
                    acts = [(U_PUB, None), (10, lambda: dtouch(0)), (14, lambda: dtouch(1)), (18, lambda: (dtouch(2), check(fl2, None))), (U_POLL, lambda: (k(fl), dtouch(3))), (U_CHK, lambda: check(fl, None))]
                for u_, f_ in acts:
                    lx = k.newlab('e')
                    k(f"s_cmp_lg_u32 {s(sAbs)}, {u_}\ns_cbranch_scc1 {lx}")
                    if f_ is None:
                        k(fl2)
                        k(f"s_cmp_eq_u32 {s(sPend)}, -1\ns_cbranch_scc1 {ln}")
                        publish(sPend, T + 12)
                    else: f_()
                    k(f"s_branch {ln}")
                    k.label(lx)
                k.label(ln)
                continue
            k(f"s_cmp_lg_u32 {s(sAbs)}, {s(sE+e)}\ns_cbranch_scc1 {ln}")
            lo = 2 if e < 2 else 0
            for r_ in range(4):
                if e in (0, 3):
                    k(f"v_add_f32 {v(Nreg(lo)+r_)}, {v(Nreg(lo)+r_)}, {v(vTB+r_)}\nv_mov_b32 {v(Nreg(lo)+4+r_)}, {v(vNinf)}\nv_add_f32 {v(Nreg(lo+1)+4+r_)}, {v(Nreg(lo+1)+4+r_)}, {v(vTB+r_)}")
                else:
                    k(f"v_mov_b32 {v(Nreg(lo)+r_)}, {v(vNinf)}\nv_mov_b32 {v(Nreg(lo+1)+r_)}, {v(vNinf)}\nv_mov_b32 {v(Nreg(lo+1)+4+r_)}, {v(vNinf)}\nv_mov_b32 {v(Nreg(lo)+4+r_)}, {v(vNinf)}")
            k("s_nop 0")
            k.label(ln)
    Lrs = {(p_, n_): k.newlab(f'rs{p_}{n_}') for p_ in range(2) for n_ in (2, 4)}
    local_setup()
    k(f"v_and_b32 {v(T)}, 15, {v(vLane)}\nv_lshrrev_b32 {v(T+1)}, 4, {v(vLane)}\nv_lshlrev_b32 {v(T+1)}, 2, {v(T+1)}\nv_sub_u32 {v(T)}, {v(T)}, {v(T+1)}")
    for r_ in range(4):
        k(f"v_cmp_le_i32 vcc, {r_}, {v(T)}\ns_nop 1\nv_cndmask_b32 {v(vTB+r_)}, {v(vNinf)}, 0, vcc")
    k(f"s_mov_b32 {s(sVis)}, {sum(1 << (u_-1) for u_ in (U_PUB, U_MID, U_POLL, U_CHK))}\ns_mov_b32 {s(sVis+1)}, 0")
    for e in range(6):
        k(f"s_sub_u32 {s(t0)}, {s(sE+e)}, 1\ns_bitset1_b64 {s(sVis,2)}, {s(t0)}")
    if L2D: k(f"s_sub_u32 {s(sL2)}, {s(sE+5)}, {L2D}\ns_sub_u32 {s(t0)}, {s(sL2)}, 1\ns_bitset1_b64 {s(sVis,2)}, {s(t0)}")
    if 'dtouch' in abl: k(f"s_cmp_lt_u32 s2, 96\ns_cselect_b32 {s(t0)}, {(1 << 9) | (1 << 13)}, 0\ns_or_b32 {s(sVis)}, {s(sVis)}, {s(t0)}")
    if 'cpf2' in abl: k(f"s_cmp_lt_u32 s2, 24\ns_cselect_b32 {s(t0)}, {1 << (U_CP-1)}, 0\ns_or_b32 {s(sVis)}, {s(sVis)}, {s(t0)}")
    k(f"s_add_u32 {s(sPB)}, {s(sE+2)}, 8\ns_sub_u32 {s(t0)}, {s(sPB)}, 1\ns_bitset1_b64 {s(sVis,2)}, {s(t0)}")
    k.collect = None
    k(f"s_waitcnt vmcnt({16 if QL else 32})")
    ST.stamp(11) if 'lp' not in abl else None
    def rdK(unit, a_): return f"ds_read_b128 {a(KF(a_),4)}, {v(vKV)} offset:{unit*8192 + a_*1024}"
    def rdV(unit, n): return f"ds_read_b128 {a(VF(n),4)}, {v(vKV)} offset:{STG + unit*8192 + n*1024}"

    stubs = []; calls = []
    def slow_path(par, sm, evs):
        l1 = k.newlab('sp')
        src = vChk
        k(f"v_cmp_lt_f32 vcc, {s(sThr)}, {v(src)}")
        events(evs)
        st_ = k.newlab('rc')
        k(f"s_cbranch_vccnz {st_}")
        k.label(l1)
        calls.append((st_, l1, Lrs[(par, len(sm))]))

    SERP2 = 'noserp2' not in abl
    def qk_mfmas(par, qk):
        mf = []
        for kb in range(2):
            for qi, qt in enumerate(qk if (kb == 0 or not SERP2) else qk[::-1]):
                for ei, e in enumerate((0, 1, 2, 3) if (qi % 2 == 0 or not SERP2) else (3, 2, 1, 0)):
                    d = v(Sreg(par, qt) + 4 * kb, 4)
                    c = v(Nreg(qt) + 4 * kb, 4) if ei == 0 else d
                    mf.append(f"{MF} {d}, {a(KF(kb*4+e),4)}, {a(Qreg(qt,e),4)}, {c}")
        return mf
    def step(which, qk, sm, pv, dma=(), dgaps=(), last=False, loop=None, evs=(), exit_e=None, vmw=24):
        par = 1 - which
        mf = qk_mfmas(par ^ 1, qk)
        nqk = len(mf)
        for n in range(8):
            for qt in (pv if (n % 2 == 0 or not SERP2) else pv[::-1]):
                d = a(Oreg(qt, n), 4)
                mf.append(f"{MF} {d}, {a(VF(n),4)}, {v(Preg(par ^ 1, qt), 4)}, {d}")
        N = len(mf); npv = N - nqk
        first = {}
        head = {g: [] for g in range(N)}
        tail = {g: [] for g in range(N)}
        before = []; after = []
        bar = which == 1 and not last
        vfix = {}
        dg = list(dgaps)[:len(dma)]
        assert len(dg) == len(dma)
        def place_reads(g, items, stride):
            for x in items:
                while g in dg or head[g]: g += 1
                head[g].append((4, x)); g += stride
            return g
        if pv:
            if nqk: place_reads(1, [rdV(which, n) for n in range(8)], 3 if nqk > 16 else 1)
            else: before += [rdV(which, n) for n in range(8)]
        midw = (f"s_waitcnt vmcnt({vmw}) lgkmcnt(0)" if bar else "s_waitcnt lgkmcnt(0)")
        rot = [f"s_add_u32 {s(sMK)}, {s(sC1)}, {s(sW4)}", f"s_add_u32 {s(sC1)}, {s(sC1)}, {SLOT}", f"s_cmp_ge_u32 {s(sC1)}, {5*SLOT}\ns_cselect_b32 {s(sC1)}, 0, {s(sC1)}"]
        rotv = [f"v_add_u32 {v(vKV)}, {s(sC1)}, {v(vL16)}"]
        nxt = [] if last else [rdK(which ^ 1, a_) for a_ in range(8)]
        for g in dg: first[g] = None
        posts = []
        for (pre, ins, post), g in zip(dma, dg):
            if pre:
                assert g - 1 not in first
                first[g - 1] = pre
            if post: posts.append((g + 1, post))
        def put_first(g, x, limit):
            while g in first and g < limit: g += 1
            assert g < limit, (x, g, limit)
            first[g] = x
            return g
        if npv:
            if nqk:
                assert nqk - 1 not in first
                first[nqk - 1] = midw
            else: before.append(midw)
            g0 = nqk
            if bar:
                head[nqk].append((8, "s_barrier")); first[nqk] = None
                g0 = nqk + 1
                assert not any(p_[0] for p_ in dma)
                g = 0
                for x in rot: g = put_first(g, x, nqk - 2) + 1
                vfix[nqk - 1] = [rotv[0]]
            if nxt:
                place_reads(g0, nxt[:4], 3 if npv > 16 else 2)
                for x, g in zip(nxt[4:], [g for g in range(N - 7, N - 1) if g not in dg][-4:]):
                    assert not head[g]
                    head[g].append((4, x))
                assert N - 1 not in first
                first[N - 1] = "s_waitcnt lgkmcnt(4)"
        else:
            after += [midw] + (["s_barrier"] + rot + rotv if bar else []) + nxt + ["s_waitcnt lgkmcnt(0)"]
        if nqk:
            g = nqk // 2 - 1
            while g in first: g -= 1
            nrd = sum(1 for gg in range(g) for c, t_ in head[gg] if t_ and t_.startswith('ds_read'))
            first[g] = f"s_waitcnt lgkmcnt({nrd})"
        for (pre, ins, post), g in zip(dma, dg): head[g].append((8, ins))
        for g, x in posts: put_first(g, x, N)
        if sm and not last:
            gg = put_first(0, f"s_bitcmp1_b64 {s(sVis,2)}, {s(sAbs)}\ns_cselect_b32 {s(sThC)}, -1.0, {s(sThr)}", N)
            head[gg].insert(0, (4, None))
            put_first(gg + 1, f"s_add_u32 {s(sAbs)}, {s(sAbs)}, 1", N)
        ops = []
        def op(name, pr, cost, ins, deps=(), trans=False): ops.append(dict(id=name, pr=pr, cost=cost, ins=ins, deps=set(deps), trans=trans))
        seq = [(qt, n) for qt in sm for n in range(8)]
        for idx, (qt, n) in enumerate(seq):
            Sq = Sreg(par, qt); Pq = Preg(par, qt)
            if n == 0: op(('l', qt), idx + 3, 4, f"v_add_f32 {v(vL+qt)}, {v(vL+qt)}, {v(TS(qt))}")
            deps = [('c', seq[idx - 8][0], n // 2)] if idx >= 8 else []
            op(('e', qt, n), idx, 8, f"v_exp_f32 {v(vE + n)}, {v(Sq+n)}", deps, True)
            if n & 1: op(('c', qt, n // 2), idx + 1.5, 4, f"v_cvt_pk_bf16_f32 {v(Pq + n//2)}, {v(vE + n-1)}, {v(vE + n)}", [('e', qt, n - 1), ('e', qt, n)])
        thr = sThr if last else sThC
        fin = []
        if len(sm) == 4:
            fin = [f"v_max3_f32 {v(vChk)}, {v(TS(0))}, {v(TS(1))}, {v(TS(2))}", f"v_max_f32 {v(vChk)}, {v(vChk)}, {v(TS(3))}"]
        elif sm:
            fin = [f"v_max_f32 {v(vChk)}, {v(TS(0))}, {v(TS(1))}"]
        if sm: fin.append(f"v_cmp_nge_f32 vcc, {s(thr)}, {v(vChk)}")
        ops.sort(key=lambda o: o['pr'])
        done = set(); lasttrans = None
        fixedc = [sum(x[0] for x in head[g]) + 4 * len(vfix.get(g, [])) for g in range(N)]
        NV = max(N - RESV, 1)
        NG = NV + max(len(sm) - 1, 0)
        tot = sum(o['cost'] for o in ops) + sum(fixedc[:NV])
        for t_ in before: k(t_)
        cum = 0; gi = 0
        pend = list(sm)
        cdone = {}
        lastsum = None
        def nstates(since):
            n = 0
            for ln in k.lines[since:]:
                ln = ln.strip()
                n += int(ln.split()[1]) + 1 if ln.startswith("s_nop") else 1
            return n
        def fill(used, force):
            nonlocal cum, gi, lasttrans
            gi += 1
            target = tot * gi / NG
            while True:
                ready = [o for o in ops if o['id'] not in done and o['deps'] <= done and (o['trans'] or lasttrans not in o['deps'])]
                if not ready:
                    if force and len(done) < len(ops): k("s_nop 0"); lasttrans = None; continue
                    break
                if not force:
                    room = max(CAP - used, 4 * int((target - cum + 2) // 4))
                    if used >= CAP and cum + 2 >= target: break
                    fit = [o for o in ready if o['cost'] <= room]
                    if not fit:
                        if used >= CAP or cum >= target: break
                        fit = ready
                    o = fit[0]
                else: o = ready[0]
                k(o['ins']); done.add(o['id']); used += o['cost']; cum += o['cost']
                lasttrans = o['id'] if o['trans'] else None
                if o['id'][0] == 'c': cdone[o['id'][1]] = len(k.lines)
        def try_sum(force=False):
            nonlocal lastsum, lasttrans
            while pend and all(('c', pend[0], j) in done for j in range(4)) and ('l', pend[0]) in done:
                gap_ = len(k.lines) - cdone[pend[0]]
                if gap_ < 2:
                    if not force: return
                    k(f"s_nop {1 - gap_}")
                qt = pend.pop(0)
                k(f"{MF} {v(TS(qt),4)}, {v(vOne,4)}, {v(Preg(par, qt),4)}, 0"); lasttrans = None
                lastsum = len(k.lines)
                if pend: fill(0, False)
        for g in range(N):
            k(mf[g]); lasttrans = None
            if first.get(g): k(first[g])
            for c, t_ in head[g]:
                if t_: k(t_)
            for t_ in vfix.get(g, []): k(t_)
            cum += fixedc[g]
            if g < NV: fill(fixedc[g], g == NV - 1)
            if g < N - 1: try_sum(force=(g >= NV - 1))
            if fin and not pend and g < N - 1:
                if g == N - 2:
                    gap_ = nstates(lastsum)
                    if gap_ < 8: k(f"s_nop {7 - gap_}")
                    for t_ in fin: k(t_)
                    fin = []
                elif nstates(lastsum) >= 8:
                    for _ in range(min(len(fin), (CAP - fixedc[g]) // 4)): k(fin.pop(0))
                elif k.lines[-1].strip().startswith("v_mfma") and nstates(lastsum) < 8: k("s_nop 2")
                elif fixedc[g] <= 4 and nstates(lastsum) < 8: k("s_nop 0")
        assert len(done) == len(ops) and not pend
        for t_ in after: k(t_)
        after = []
        assert not fin
        if sm:
            if loop:
                k(f"s_cbranch_vccz {loop}")
                slow_path(par, sm, evs)
                k(f"s_cmp_lg_u32 {s(sAbs)}, {s(sE+exit_e)}\ns_cbranch_scc1 {loop}")
            else:
                st_, rt = k.newlab('stub'), k.newlab('ret')
                k(f"s_cbranch_vccnz {st_}"); k.label(rt)
                stubs.append((st_, rt, par, sm, evs))

    def epilogue(st, extra=()):
        extra = list(extra)
        k.c(f"epilogue set {st}")
        R = vE
        for j in range(2): k(f"v_add_f32 {v(R+j)}, {v(vL+2*st+j)}, {v(TS(2*st+j))}")
        k("s_nop 3")
        k(f"v_rcp_f32 {v(R+2)}, {v(R+1)}\nv_rcp_f32 {v(R)}, {v(R)}")
        k(f"s_lshl_b32 {s(t0)}, {s(sQ+st)}, 10\ns_add_u32 {s(t0)}, {s(t0)}, {s(sLo+2)}\ns_add_u32 {s(t0)}, {s(t0)}, {WS_CTX}")
        for e in range(4):
            for j in range(2):
                b = T + 8 * j
                for i in range(8): k(f"v_accvgpr_read_b32 {v(b+i)}, {a(Oreg(2*st+j, 2*e) + i)}")
                for i in range(0, 8, 2): k(f"v_pk_mul_f32 {v(b+i,2)}, {v(b+i,2)}, {v(R+2*j,2)} op_sel_hi:[1,0]")
                for i in range(4): k(f"v_cvt_pk_bf16_f32 {v(b+i)}, {v(b+2*i)}, {v(b+2*i+1)}")
                k(f"buffer_store_dwordx4 {v(b,4)}, {v(vL16)}, {s(srdO,4)}, {s(t0)} offen offset:{j*1024}{sfx}")
                if extra: k(extra.pop(0)[1])
            k(f"s_add_u32 {s(t0)}, {s(t0)}, 131072")
        for x in extra: k(x[1])

    G = dma_group(); LL = local_loads()
    k.c("head")
    k("s_waitcnt lgkmcnt(0)")
    import re as _re
    ini = []
    for txt in INI:
        cur = []
        for ln_ in txt.split("\n"):
            keep = cur and (ln_.startswith(("s_cselect", "s_addc", "v_cndmask", "s_nop")) or cur[-1].startswith(("s_cmp", "v_cmp", "s_nop")) or any(x.startswith("s_cmp") for x in cur) and "s_cselect" in txt[txt.index(ln_):])
            if cur and not keep: ini.append(cur); cur = []
            cur.append(ln_)
        ini.append(cur)
    for i, m_ in enumerate(qk_mfmas(0, AB)):
        k(_re.sub(r", v\[1[6-9]\d:1[6-9]\d\]$", ", 0", m_))
        n_ = 0
        if i % 4 == 1: emit_group([stash_item(i // 4)]); n_ = 3
        if 16 <= i < 20: k(rdK(1, i - 16)); n_ += 1
        while ini and n_ < 4:
            p_ = ini.pop(0); k("\n".join(p_)); n_ += len(p_)
    for a_ in range(4, 8): k(rdK(1, a_))
    for p_ in ini: k("\n".join(p_))
    k(f"s_mov_b32 {s(sAbs)}, 1\ns_nop 3")
    lz = k.newlab('z')
    k(f"s_cmp_lg_u32 {s(sE)}, 0\ns_cbranch_scc1 {lz}")
    for r_ in range(4):
        k(f"v_add_f32 {v(Sreg(0,2)+r_)}, {v(Sreg(0,2)+r_)}, {v(vTB+r_)}\nv_mov_b32 {v(Sreg(0,2)+4+r_)}, {v(vNinf)}\nv_add_f32 {v(Sreg(0,3)+4+r_)}, {v(Sreg(0,3)+4+r_)}, {v(vTB+r_)}")
    k.label(lz)
    for j0, j1, j2 in ((0, 1, 2), (None, 3, 4), (None, 5, 6)):
        for qt in AB: k(f"v_max3_f32 {v(T+qt)}, {v(Sreg(0,qt)) if j0 == 0 else v(T+qt)}, {v(Sreg(0,qt)+j1)}, {v(Sreg(0,qt)+j2)}")
    for qt in AB: k(f"v_max_f32 {v(T+qt)}, {v(T+qt)}, {v(Sreg(0,qt)+7)}")
    xlane([T + q_ for q_ in AB], [T + 4 + q_ for q_ in AB], "v_max_f32")
    for qt in AB:
        k(f"v_sub_f32 {v(Nreg(qt))}, 0, {v(T+qt)}\nv_sub_f32 {v(Nreg(qt)+1)}, 0, {v(T+qt)}")
    for qt in AB:
        for i in range(2, 8, 2): k(f"v_mov_b64 {v(Nreg(qt)+i,2)}, {v(Nreg(qt),2)}")
    for qt in AB:
        for i in range(0, 8, 2): k(f"v_pk_add_f32 {v(Sreg(0,qt)+i,2)}, {v(Sreg(0,qt)+i,2)}, {v(Nreg(qt),2)}")
    events((0, 1))
    k("s_waitcnt lgkmcnt(0)")
    step(1, AB, AB, (), dma=[stash_item(m) for m in range(8, 16)], dgaps=(2, 5, 9, 12, 17, 20, 23, 26), evs=(0, 1), vmw=48)
    ST.stamp(12); dbgmax(2, True)
    Ld = k.newlab('dual'); align(); k.label(Ld)
    step(0, AB, AB, AB, dma=G[:5], dgaps=(5, 18, 27, 43, 52), evs=(0, 1)); step(1, AB, AB, AB, dma=G[5:], dgaps=(6, 18, 27), loop=Ld, evs=(0, 1, 3, 6), exit_e=2)
    step(0, A_, AB, AB, dma=G[:5], dgaps=(3, 11, 21, 31, 41), evs=(3, 4)); step(1, A_, A_, AB, dma=G[5:], dgaps=(3, 8, 13), evs=(3, 4, 6))
    epilogue(1)
    def ctx_flag(dst, sn): k(f"s_lshl_b32 {s(dst)}, {s(sn)}, 5\ns_add_u32 {s(dst)}, {s(dst)}, {s(sh)}\ns_lshl_b32 {s(dst)}, {s(dst)}, 3\ns_add_u32 {s(dst)}, {s(dst)}, {F_CTX - 256}")
    ctx_flag(sPf, snB)
    ST.stamp(13)
    Ls = k.newlab('single'); Lsx = k.newlab('singlex')
    if EEX: k(f"s_cmp_eq_u32 {s(sAbs)}, {s(sE+5)}\ns_cbranch_scc1 {Lsx}")
    align()
    k.label(Ls)
    step(0, A_, A_, A_, dma=G[:5], dgaps=(2, 10, 14, 19, 28), evs=(3, 4)); step(1, A_, A_, A_, dma=G[5:], dgaps=(4, 9, 13), loop=Ls, evs=(3, 4, 6), exit_e=5)
    k.label(Lsx)
    ST.stamp(14); dbgmax(4, True)
    dW = srdK; dO = srdV; dX = srdS
    sIsA = CP['nk']; sMt3 = CP['swp']; sNt3 = CP['scale']; sXd3 = CP['Si']
    sXo = sKo; sWo = sVo; sRd = sC1; sWr = sMK; sDl = sThC; sCn = sAbs; sSl = CP['Sj']; sEv = sE; sLim = sE + 1; sXb = sE + 2; sPo = sE + 3; sOb = sE + 4; sOs = sE + 5
    sXs3 = sL2; swm3 = sPB; swn3 = sSa
    cW = 16
    if 'oldmap' in abl:
        k(f"s_bfe_u32 {s(sIsA)}, s2, 0x10002\ns_xor_b32 {s(sIsA)}, {s(sIsA)}, 1\ns_bitcmp1_b32 s2, 1\ns_cselect_b32 {s(sMt3)}, {s(snA)}, {s(snB)}\ns_sub_u32 {s(sMt3)}, {s(sMt3)}, 1")
    else:
        k(f"s_bfe_u32 {s(sIsA)}, s2, 0x10002\ns_and_b32 {s(t0)}, s2, 7\ns_bitcmp1_b32 0x63, {s(t0)}\ns_cselect_b32 {s(sMt3)}, {s(snA)}, {s(snB)}\ns_sub_u32 {s(sMt3)}, {s(sMt3)}, 1")
    k(f"s_and_b32 {s(t0)}, s2, 1\ns_lshl_b32 {s(t0)}, {s(t0)}, 2\ns_bfe_u32 {s(t1)}, s2, 0x20003\ns_add_u32 {s(sNt3)}, {s(t0)}, {s(t1)}")
    k(f"v_and_b32 {v(vFo)}, 31, {v(vLane)}\nv_lshlrev_b32 {v(vFo)}, 3, {v(vFo)}\ns_lshl_b32 {s(sXs3)}, {s(sMt3)}, 8\ns_add_u32 {s(sXs3)}, {s(sXs3)}, {WS_FLAG + F_CTX}")
    rdy_load = f"buffer_load_dwordx2 {v(vFlag,2)}, {v(vFo)}, {s(srdO,4)}, {s(sXs3)} offen sc1"
    k(rdy_load)
    LLATE = 'llate' in abl
    def xbar():
        k("s_nop 1")
        if EEX:
            lb = k.newlab('xb')
            k(f"s_cmp_ge_u32 {s(sw)}, 2\ns_cbranch_scc1 {lb}\ns_waitcnt vmcnt(24)\ns_barrier")
            k.label(lb)
    if LLATE:
        step(0, (), A_, A_, last=True); k("s_nop 1"); step(1, (), (), A_, last=True)
    else:
        step(0, (), A_, A_, last=True, dma=LL[:7], dgaps=(0, 2, 4, 6, 8, 10, 12)); xbar(); step(1, (), (), A_, last=True, dma=LL[7:], dgaps=(0, 2, 4, 6, 8, 10, 12, 14))
    epilogue(0)
    k(f"s_lshr_b32 {s(swm3)}, {s(sw)}, 1\ns_and_b32 {s(swn3)}, {s(sw)}, 1")
    k(f"s_mul_i32 {s(t0)}, {s(sIsA)}, {NC*64*2048}\ns_lshl_b32 {s(sWo)}, {s(sNt3)}, 8\ns_add_u32 {s(sWo)}, {s(sWo)}, {s(t0)}")
    E_ = vE
    k(f"v_lshrrev_b32 {v(E_)}, 4, {v(vLane)}\ns_lshl_b32 {s(t0)}, {s(sw)}, 4\nv_add_u32 {v(E_+1)}, {s(t0)}, {v(E_)}\nv_lshlrev_b32 {v(E_+1)}, 11, {v(E_+1)}")
    k(f"v_lshlrev_b32 {v(E_)}, 1, {v(E_)}\nv_and_b32 {v(E_+2)}, 15, {v(vLane)}\nv_xor_b32 {v(E_)}, {v(E_)}, {v(E_+2)}")
    for j in range(4):
        k(f"v_xor_b32 {v(E_+2)}, {8*(j&1)}, {v(E_)}\nv_lshl_add_u32 {v(cW+j)}, {v(E_+2)}, 4, {v(E_+1)}")
        if j: k(f"v_add_u32 {v(cW+j)}, {j*(8192-1024)}, {v(cW+j)}")
    k(f"s_mov_b32 {s(dW)}, {s(sPw)}\ns_mov_b32 {s(dW+1)}, {s(sPw+1)}\ns_mov_b32 {s(dW+2)}, {8*MB}\ns_mov_b32 {s(dX+2)}, {WS_SIZE}")
    k(f"s_mov_b32 {s(dO)}, {s(sOut)}\ns_mov_b32 {s(dO+1)}, {s(sOut+1)}\ns_mov_b32 {s(dO+2)}, {2048*2048*2}")
    k(f"s_lshl_b32 {s(t0)}, {s(sMt3)}, 13\ns_lshl_b32 {s(t1)}, {s(swn3)}, 12\ns_add_u32 {s(t0)}, {s(t0)}, {s(t1)}\ns_lshl_b32 {s(t1)}, {s(swm3)}, 17\ns_add_u32 {s(sXb)}, {s(t0)}, {s(t1)}")
    k(f"s_mul_i32 {s(t0)}, {s(sIsA)}, {NC*262144}\ns_add_u32 {s(sXo)}, {s(sXb)}, {s(t0)}\ns_add_u32 {s(sXo)}, {s(sXo)}, {WS_CTX}\ns_add_u32 {s(sXb)}, {s(sXb)}, {WS_OA}")
    def d3x(j): return f"buffer_load_dwordx4 {v(vL16)}, {s(dX,4)}, {s(sXo)} offen offset:{j*1024}{ksc} lds"
    def d3w(j): return f"buffer_load_dwordx4 {v(cW+j)}, {s(dW,4)}, {s(sWo)} offen offset:{j*1024}{wsc} lds"
    def lim_eval():
        k(f"v_cmp_ne_u64 {s(sM0,2)}, {s(sTok,2)}, {v(vFlag,2)}\ns_mul_i32 {s(t1)}, {s(sIsA)}, {NC >> 1}\ns_nop 2\ns_lshr_b32 {s(t0)}, {s(sM0)}, {s(t1)}\ns_ff1_i32_b32 {s(t0)}, {s(t0)}")
        k(f"s_lshl_b32 {s(sLim)}, {s(t0)}, 1\ns_mul_i32 {s(t1)}, {s(sIsA)}, {NC & 1}\ns_sub_i32 {s(sLim)}, {s(sLim)}, {s(t1)}\ns_cmp_lt_i32 {s(t0)}, 0\ns_cselect_b32 {s(sLim)}, 1000, {s(sLim)}")
    def lim_update(sneed):
        Lsp = k.newlab('spin'); Lok = k.newlab('ok')
        k(f"s_mov_b32 s3, {SPIN}")
        k.label(Lsp)
        k(f"{rdy_load}\ns_waitcnt vmcnt(0)")
        lim_eval()
        k(f"s_cmp_gt_i32 {s(sLim)}, {sneed}\ns_cbranch_scc1 {Lok}\ns_sub_u32 s3, s3, 1\ns_cbranch_scc1 {Lok}\ns_sleep 4\ns_branch {Lsp}")
        k.label(Lok)
    def x_pre():
        for st in range(NS3):
            k(f"s_add_u32 m0, {s(sW4)}, {st*SLOT}\ns_nop 0")
            for j in range(4): k(d3x(j))
            k(f"s_add_u32 {s(sXo)}, {s(sXo)}, 262144")
    cx = 6; cw = 12; cSt = 7
    def acc3(nb, mb): return 64 + (((nb >> 1) * 4 + mb) * 2 + (nb & 1)) * 4
    def fX(st, mb): return st * 32 + mb * 4
    def fW(st, nb): return st * 32 + 16 + nb * 4
    PART = 128
    k(f"s_lshl_b32 {s(t0)}, {s(swm3)}, 12\nv_add_u32 {v(cx)}, {s(t0)}, {v(vL16)}")
    k(f"v_lshrrev_b32 {v(T)}, 2, {v(vLane)}\nv_lshlrev_b32 {v(T)}, 8, {v(T)}\nv_and_b32 {v(T+1)}, 3, {v(vLane)}\nv_lshl_add_u32 {v(T)}, {v(T+1)}, 3, {v(T)}\nv_add_u32 {v(T)}, 16384, {v(T)}")
    k(f"v_bfe_u32 {v(T+1)}, {v(vLane)}, 2, 3\ns_lshl_b32 {s(t0)}, {s(swn3)}, 2\nv_xor_b32 {v(T+1)}, {s(t0)}, {v(T+1)}")
    for nb in range(4):
        k(f"v_xor_b32 {v(T+2)}, {nb}, {v(T+1)}\nv_lshl_add_u32 {v(cw+nb)}, {v(T+2)}, 5, {v(T)}")
    k(f"v_and_b32 {v(T)}, 15, {v(vLane)}\nv_lshlrev_b32 {v(T)}, 12, {v(T)}\nv_lshlrev_b32 {v(T)}, {s(sIsA)}, {v(T)}")
    k(f"v_bfe_u32 {v(T+1)}, {v(vLane)}, 4, 1\nv_lshl_add_u32 {v(T)}, {v(T+1)}, 5, {v(T)}\nv_lshrrev_b32 {v(T+1)}, 5, {v(vLane)}\nv_lshl_add_u32 {v(cSt)}, {v(T+1)}, 4, {v(T)}")
    k(f"s_lshl_b32 {s(t0)}, {s(sMt3)}, 3\ns_lshl_b32 {s(t1)}, {s(swm3)}, 2\ns_add_u32 {s(t0)}, {s(t0)}, {s(t1)}")
    k(f"s_lshl_b32 {s(t1)}, {s(t0)}, 16\ns_add_u32 {s(t1)}, {s(t1)}, 2048")
    k(f"s_and_b32 {s(t2)}, {s(t0)}, 63\ns_lshl_b32 {s(t2)}, {s(t2)}, 17\ns_lshr_b32 {s(t3)}, {s(t0)}, 6\ns_lshl_b32 {s(t3)}, {s(t3)}, 12\ns_add_u32 {s(t2)}, {s(t2)}, {s(t3)}")
    k(f"s_cmp_eq_u32 {s(sIsA)}, 1\ns_cselect_b32 {s(sOb)}, {s(t2)}, {s(t1)}\ns_lshl_b32 {s(sOs)}, 0x10000, {s(sIsA)}")
    k(f"s_lshl_b32 {s(t2)}, {s(sNt3)}, 8\ns_lshl_b32 {s(t3)}, {s(swn3)}, 7\ns_add_u32 {s(sOb)}, {s(sOb)}, {s(t2)}\ns_add_u32 {s(sOb)}, {s(sOb)}, {s(t3)}")
    for i in range(0, 64, 2): k(f"v_mov_b64 {v(64+i,2)}, 0")
    local_pre()
    k(f"s_add_u32 {s(sWr)}, {s(sW4)}, {(NS3-1)*SLOT}\ns_mov_b32 {s(sRd)}, 0\ns_mov_b32 {s(sSl)}, {SLOT}\ns_mov_b32 {s(sCn)}, 0\ns_mov_b32 {s(sEv)}, 0")
    k("s_waitcnt vmcnt(0)\ns_barrier")
    ctx_flag(t1, snA); publish(t1, T + 12)
    Lpb = k.newlab('pb'); Lx3 = k.newlab('x3')
    k(f"s_cmp_eq_u32 {s(sPf)}, -1\ns_cbranch_scc1 {Lpb}")
    publish(sPf, T + 12)
    k.label(Lpb)
    ST.stamp(15)
    lim_eval()
    for st in range(NS3 - 1):
        k(f"s_add_u32 m0, {s(sW4)}, {st*SLOT + 16384}\ns_nop 0")
        for j in range(4): k(d3w(j))
        k(f"s_add_u32 {s(sWo)}, {s(sWo)}, {64*2048}")
    k(f"s_cmp_gt_i32 {s(sLim)}, {NS3-1}\ns_cbranch_scc1 {Lx3}")
    lim_update(str(NS3 - 1))
    k.label(Lx3)
    x_pre()
    k("s_waitcnt vmcnt(16)\ns_barrier")
    ST.stamp(2); dbgmax(6, True)
    def reads3(st, kk):
        o = []
        def rx(mb): o.append((('x', st, mb), f"ds_read_b128 {a(fX(st, mb), 4)}, {v(cx)} offset:{mb * 1024 + kk * 8192}"))
        def rw(nb):
            for t_ in range(2):
                o.append((('w', st, nb), f"ds_read_b64_tr_b16 {a(fW(st, nb) + 2 * t_, 2)}, {v(cw + nb)} offset:{(32 * kk + 16 * t_) * 256}"))
        rx(0); rw(0); rx(1); rx(2); rx(3); rw(1); rw(2); rw(3)
        return o
    CH3 = 'ch3' in abl
    if not CH3:
        for tag, ins in reads3(0, 0): k(ins)
    def pstore(b): return f"buffer_store_dwordx4 {v(PART+4*b,4)}, {v(vL16)}, {s(srdO,4)}, {s(sPo)} offen offset:{(b&3)*1024} sc1" + (f"\ns_add_u32 {s(sPo)}, {s(sPo)}, 4096" if b & 3 == 3 else "")
    def body3(stores=(), loop=False, xs=None, per=2, vm3=24):
        tr = LgkmTracker([tag for tag, _ in reads3(0, 0)])
        stores = list(stores)
        for ss in range(2):
            st = ss
            nxt = reads3(st ^ 1, ss ^ 1)
            rd_at = {(1 if ss else 0) + i: x for i, x in enumerate(nxt)}
            first = {}; fill = {g: [] for g in range(16)}
            if ss == 0:
                first[0] = f"s_add_u32 m0, {s(sWr)}, 16384"
                for j, g in enumerate((1, 5, 9, 13)): fill[g].append(d3w(j))
                first[2] = f"s_add_u32 {s(sWr)}, {s(sRd)}, {s(sW4)}"
                first[3] = f"s_add_u32 {s(sRd)}, {s(sRd)}, {SLOT}"
                first[4] = f"s_cmp_ge_u32 {s(sRd)}, {NS3*SLOT}"
                first[6] = f"s_cselect_b32 {s(sDl)}, {-(NS3-1)*SLOT & 0xffffffff}, {s(sSl)}"
                first[7] = f"s_cselect_b32 {s(sRd)}, 0, {s(sRd)}"
                fill[12].append(f"v_add_u32 {v(cx)}, {s(sDl)}, {v(cx)}\nv_add_u32 {v(cw)}, {s(sDl)}, {v(cw)}")
                first[14] = f"s_add_u32 {s(sWo)}, {s(sWo)}, {64*2048}"
                fill[14].append(f"v_add_u32 {v(cw+1)}, {s(sDl)}, {v(cw+1)}\nv_add_u32 {v(cw+2)}, {s(sDl)}, {v(cw+2)}")
                first[15] = f"s_mov_b32 m0, {s(sWr)}"
                fill[15].append(f"v_add_u32 {v(cw+3)}, {s(sDl)}, {v(cw+3)}")
                if stores: fill[11].append(stores.pop(0))
            else:
                for j, g in enumerate((1, 5, 9, 13)): fill[g].append(d3x(j))
                if stores: fill[11].append(stores.pop(0))
                first[12] = f"s_add_u32 {s(sCn)}, {s(sCn)}, 1"
                first[14] = f"s_add_u32 {s(sXo)}, {s(sXo)}, 262144" + (f"\ns_cmp_lt_u32 {s(sCn)}, {s(sEv)}" if loop else "")
            for i in range(16):
                nb, mb = i // 4, i % 4
                if ss == 1 and i == 0:
                    tr.q = []
                    k(f"s_waitcnt vmcnt({vm3}) lgkmcnt(0)")
                w = tr.need({('x', st, mb), ('w', st, nb)})
                if w: k(w)
                d = v(acc3(nb, mb), 4)
                k(f"{MF} {d}, {a(fW(st, nb), 4)}, {a(fX(st, mb), 4)}, {d}")
                if ss == 1 and i == 0: k("s_barrier")
                if i in first: k(first[i])
                if i in rd_at:
                    tag, ins = rd_at[i]; k(ins); tr.issue(tag)
                for x in fill[i]: k(x)
                if xs:
                    for _ in range(per if not fill[i] else 1):
                        if xs: k(xs.pop(0))
    if CH3:
        def gX(mb, kk): return mb * 8 + kk * 4
        def gW(nb, kk): return 32 + nb * 8 + kk * 4
        def rX(mb): return [(('x', mb), f"ds_read_b128 {a(gX(mb, kk), 4)}, {v(cx)} offset:{mb * 1024 + kk * 8192}") for kk in range(2)]
        def rW(nb): return [(('w', nb), f"ds_read_b64_tr_b16 {a(gW(nb, kk) + 2 * t_, 2)}, {v(cw + nb)} offset:{(32 * kk + 16 * t_) * 256}") for kk in range(2) for t_ in range(2)]
        tail3 = rX(0) + rX(1) + rX(2) + rX(3)
        for tag, ins in rW(0) + rW(1) + tail3: k(ins)
        def body3(stores=(), loop=False, xs=None, per=2):
            tr = LgkmTracker([tag for tag, _ in tail3])
            stores = list(stores)
            rd = {}
            for i, x in enumerate(rW(2) + rW(3)): rd.setdefault(i, []).append(x)
            w01 = rW(0) + rW(1)
            for mb in range(4):
                base = 16 + 4 * mb
                rd.setdefault((17, 18, 21, 22)[mb], []).extend(w01[2 * mb:2 * mb + 2])
                x0, x1 = rX(mb)
                rd.setdefault(base + 3, []).append(x0); rd.setdefault(min(base + 4, 31), []).append(x1)
            first = {0: f"s_add_u32 m0, {s(sWr)}, 16384", 2: f"s_add_u32 {s(sWr)}, {s(sRd)}, {s(sW4)}", 3: f"s_add_u32 {s(sRd)}, {s(sRd)}, {SLOT}", 4: f"s_cmp_ge_u32 {s(sRd)}, {NS3*SLOT}",
                     6: f"s_cselect_b32 {s(sDl)}, {-(NS3-1)*SLOT & 0xffffffff}, {s(sSl)}", 7: f"s_cselect_b32 {s(sRd)}, 0, {s(sRd)}", 14: f"s_add_u32 {s(sWo)}, {s(sWo)}, {64*2048}", 15: f"s_mov_b32 m0, {s(sWr)}",
                     28: f"s_add_u32 {s(sCn)}, {s(sCn)}, 1", 30: f"s_add_u32 {s(sXo)}, {s(sXo)}, 262144" + (f"\ns_cmp_lt_u32 {s(sCn)}, {s(sEv)}" if loop else "")}
            fill = {g: [] for g in range(32)}
            for j, g in enumerate((1, 5, 9, 13)): fill[g].append(d3w(j)); fill[16 + g].append(d3x(j))
            fill[8].append(f"v_add_u32 {v(cx)}, {s(sDl)}, {v(cx)}\nv_add_u32 {v(cw)}, {s(sDl)}, {v(cw)}")
            fill[10].append(f"v_add_u32 {v(cw+1)}, {s(sDl)}, {v(cw+1)}\nv_add_u32 {v(cw+2)}, {s(sDl)}, {v(cw+2)}")
            fill[12].append(f"v_add_u32 {v(cw+3)}, {s(sDl)}, {v(cw+3)}")
            for g in (11, 14):
                if stores: fill[g].append(stores.pop(0))
            i = 0
            for rp in range(2):
                for mb in range(4):
                    for nb in (2 * rp, 2 * rp + 1):
                        for kk in range(2):
                            w = tr.need({('x', mb), ('w', nb)})
                            if i == 16:
                                tr.q = []
                                k(f"s_waitcnt vmcnt({8*(NS3-2)}) lgkmcnt(0)")
                            elif i == 0: k("s_waitcnt lgkmcnt(6)"); tr.q = tr.q[-6:]
                            elif w: k(w)
                            d = v(acc3(nb, mb), 4)
                            k(f"{MF} {d}, {a(gW(nb, kk), 4)}, {a(gX(mb, kk), 4)}, {d}")
                            if i == 16: k("s_barrier")
                            if i in first: k(first[i])
                            for tag, ins in rd.get(i, []): k(ins); tr.issue(tag)
                            for x in fill[i]: k(x)
                            if xs:
                                for _ in range(per if not fill[i] else 1):
                                    if xs: k(xs.pop(0))
                            i += 1
    L3 = k.newlab('l3'); L3e = k.newlab('l3e'); L3x = k.newlab('l3x'); L3c = k.newlab('l3c'); L3n = k.newlab('l3n')
    XS_ = local_stream(); nun = 0; polls = []
    while XS_:
        lp = k.newlab('lp'); lr = k.newlab('lr')
        k(f"s_cmp_gt_i32 {s(sLim)}, {nun + NS3}\ns_cbranch_scc0 {lp}"); k.label(lr)
        polls.append((lp, lr, nun + NS3))
        body3(xs=XS_, vm3=min(16 + 4 * nun, 24)); nun += 1
    OAP = nun + 4
    assert nun >= 3 and not CH3 and not LLATE
    k(f"s_branch {L3e}")
    for lp, lr, need in polls:
        k.label(lp); lim_update(str(need)); k(f"s_branch {lr}")
    align()
    k.label(L3)
    body3(loop=True)
    k(f"s_cbranch_scc1 {L3}")
    k.label(L3e)
    def pair_flag(dst): k(f"s_lshl_b32 {s(dst)}, {s(sMt3)}, 3\ns_add_u32 {s(dst)}, {s(dst)}, {s(sNt3)}\ns_lshl_b32 {s(dst)}, {s(dst)}, 7\ns_add_u32 {s(dst)}, {s(dst)}, {F_PAIR}")
    def part_addr(): k(f"s_lshl_b32 {s(t0)}, {s(sMt3)}, 3\ns_add_u32 {s(t0)}, {s(t0)}, {s(sNt3)}\ns_lshl_b32 {s(t0)}, {s(t0)}, 15\ns_lshl_b32 {s(t1)}, {s(sw)}, 13\ns_add_u32 {s(t0)}, {s(t0)}, {s(t1)}\ns_add_u32 {s(sPo)}, {s(t0)}, {WS_PART}")
    def all_ready(load):
        Lsp = k.newlab('spin'); Lok = k.newlab('ok')
        k(f"s_waitcnt vmcnt(16)\ns_mov_b32 s3, {SPIN}")
        k.label(Lsp)
        k(f"v_cmp_ne_u64 {s(sM0,2)}, {s(sTok,2)}, {v(vFlag,2)}\ns_nop 3\ns_cmp_eq_u64 {s(sM0,2)}, 0\ns_cbranch_scc1 {Lok}\ns_sub_u32 s3, s3, 1\ns_cbranch_scc1 {Lok}\ns_sleep 8\n{load}\ns_waitcnt vmcnt(0)\ns_branch {Lsp}")
        k.label(Lok)
    Lr = k.newlab('rdy')
    k(f"s_add_u32 {s(t2)}, {s(sCn)}, {NS3}\ns_cmp_gt_i32 {s(sLim)}, {s(t2)}\ns_cbranch_scc1 {Lr}")
    lim_update(s(t2))
    k.label(Lr)
    Lo1 = k.newlab('o1'); Lo2 = k.newlab('o2')
    k(f"s_mov_b32 {s(sEv)}, {OAP}\ns_cmp_lt_u32 {s(sCn)}, {OAP}\ns_cbranch_scc1 {L3n}\ns_cmp_eq_u32 {s(sCn)}, {OAP}\ns_cbranch_scc1 {Lo1}")
    k.label(Lo2)
    k(f"s_cmp_eq_u32 {s(sIsA)}, 0\ns_cbranch_scc1 {L3c}")
    oa_load = f"s_lshr_b32 {s(t0)}, {s(sMt3)}, 1\ns_lshl_b32 {s(t0)}, {s(t0)}, 8\ns_add_u32 {s(t0)}, {s(t0)}, {WS_FLAG + F_OA}\nbuffer_load_dwordx2 {v(vFlag,2)}, {v(vFo)}, {s(srdO,4)}, {s(t0)} offen sc1"
    def p_store():
        part_addr()
        k("s_nop 3")
        for i in range(32): k(f"v_cvt_pk_bf16_f32 {v(PART+i)}, {v(64+2*i)}, {v(65+2*i)}")
        for i in range(0, 64, 2): k(f"v_mov_b64 {v(64+i,2)}, 0")
        k("s_nop 1")
        for n in range(TR): body3([pstore(2 * n), pstore(2 * n + 1)])
    def p_pub(): pair_flag(t1); publish(t1, T + 12)
    def oa_pub():
        k(f"s_and_b32 {s(t1)}, s2, 7\ns_lshl_b32 {s(t1)}, {s(t1)}, 5\ns_lshr_b32 {s(t2)}, s2, 3\ns_add_u32 {s(t1)}, {s(t1)}, {s(t2)}\ns_lshl_b32 {s(t1)}, {s(t1)}, 3\ns_add_u32 {s(t1)}, {s(t1)}, {F_OA}")
        publish(t1, T + 12)
    EVP = [(NB - NS3 - 1, lambda: k(f"s_mov_b32 {s(sLim)}, 1000\n{oa_load}")),
           (NB - NS3, lambda: (k("s_waitcnt vmcnt(8)"), all_ready(oa_load), k(f"s_mov_b32 {s(sXo)}, {s(sXb)}"))),
           (NB - NS3 + 1, lambda: k(f"s_mov_b32 {s(dW)}, {s(sPw+2)}\ns_mov_b32 {s(dW+1)}, {s(sPw+3)}\ns_mov_b32 {s(dW+2)}, {2*MB}\ns_lshl_b32 {s(sWo)}, {s(sNt3)}, 8")),
           (NB, p_store), (NB + TR + 4, p_pub), (NP - NS3, lambda: k(f"s_mov_b32 {s(dX+2)}, 0")), (NP, None)]
    pf_load = lambda: (pair_flag(t1), k(f"s_add_u32 {s(sXs3)}, {s(t1)}, {WS_FLAG}"))
    pl = f"buffer_load_dwordx2 {v(vFlag,2)}, off, {s(srdO,4)}, {s(sXs3)} sc1"
    def c_take():
        all_ready(pl)
        part_addr()
        for b in range(8):
            k(f"buffer_load_dwordx4 {v(PART+4*b,4)}, {v(vL16)}, {s(srdO,4)}, {s(sPo)} offen offset:{(b&3)*1024} sc1")
            if b == 3: k(f"s_add_u32 {s(sPo)}, {s(sPo)}, 4096")
    EVC = [(NC - NS3 - 1, lambda: k(f"s_mov_b32 {s(sLim)}, 1000")),
           (NC - NS3, lambda: (k(f"s_mov_b32 {s(dX+2)}, 0"), pf_load(), k(pl))),
           (NC - NS3 + 1, lambda: k(f"s_mov_b32 {s(dW+2)}, 0")),
           (NC - 3, c_take), (NC, None)]
    for EV, lab in ((EVP, None), (EVC, L3c)):
        if lab: k.label(lab)
        k(f"s_mov_b32 {s(sEv)}, {EV[0][0]}\ns_cmp_lt_u32 {s(sCn)}, {EV[0][0]}\ns_cbranch_scc1 {L3n}")
        for i, (at, f_) in enumerate(EV):
            ln = k.newlab('n')
            if f_ is None:
                k(f"s_branch {L3x}")
                break
            k(f"s_cmp_lg_u32 {s(sCn)}, {at}\ns_cbranch_scc1 {ln}")
            f_()
            k(f"s_mov_b32 {s(sEv)}, {EV[i+1][0]}\ns_branch {L3}")
            k.label(ln)
    k.label(Lo1)
    oa_pub()
    k(f"s_branch {Lo2}")
    assert OAP < NB - NS3 - 1
    k.label(L3n)
    k(f"s_sub_u32 {s(t0)}, {s(sLim)}, {NS3}\ns_min_u32 {s(sEv)}, {s(sEv)}, {s(t0)}\ns_branch {L3}")
    k.label(L3x)
    ST.stamp(3); dbgmax(8, True)
    Lna = k.newlab('noadd')
    k(f"s_cmp_eq_u32 {s(sIsA)}, 1\ns_cbranch_scc1 {Lna}\ns_waitcnt vmcnt(0)")
    for i in range(32):
        k(f"v_lshlrev_b32 {v(160+2*i)}, 16, {v(PART+i)}\nv_and_b32 {v(161+2*i)}, 0xffff0000, {v(PART+i)}")
    for i in range(0, 64, 2): k(f"v_pk_add_f32 {v(64+i,2)}, {v(64+i,2)}, {v(160+i,2)}")
    k.label(Lna)
    for mb in range(4):
        for e in range(2):
            b = acc3(2 * e, mb)
            for i in range(4): k(f"v_cvt_pk_bf16_f32 {v(b+i)}, {v(b+2*i)}, {v(b+2*i+1)}")
        k("s_nop 1")
        for e in range(2):
            b = acc3(2 * e, mb)
            k(f"v_permlane16_swap_b32 {v(b)}, {v(b+2)}\nv_permlane16_swap_b32 {v(b+1)}, {v(b+3)}")
        for e in range(2):
            b = acc3(2 * e, mb)
            k(f"buffer_store_dwordx4 {v(b,4)}, {v(cSt)}, {s(dO,4)}, {s(sOb)} offen offset:{64*e} sc1")
        k(f"s_add_u32 {s(sOb)}, {s(sOb)}, {s(sOs)}")
    if stamps:
        k('s_waitcnt vmcnt(0)')
        ST.stamp(8); ST.stamp(9, real=True)
        ST.flush(srdO, sw, vT, vLane, base=0x100000)
    k.label(Lend)
    k("s_endpgm")
    for st_, rt, par, sm, evs in stubs:
        k.label(st_)
        slow_path(par, sm, evs)
        k(f"s_branch {rt}")
    for st_, rt, target in calls:
        k.label(st_)
        k(f"s_call_b64 {s(sRa,2)}, {target}\ns_branch {rt}")

    for par, nset in Lrs:
        k.label(Lrs[(par, nset)])
        k("s_nop 15")
        for qt in AB[:nset]:
            Sq = Sreg(par, qt); So = Sreg(par ^ 1, qt); Pq = Preg(par, qt); N_ = Nreg(qt)
            k(f"v_max3_f32 {v(T)}, {v(Sq)}, {v(Sq+1)}, {v(Sq+2)}")
            for i in (3, 5): k(f"v_max3_f32 {v(T)}, {v(T)}, {v(Sq+i)}, {v(Sq+i+1)}")
            k(f"v_max3_f32 {v(T)}, {v(T)}, {v(Sq+7)}, 0")
            xlane([T], [T + 1], "v_max_f32")
            k(f"v_exp_f32 {v(T+1)}, -{v(T)}")
            for i in range(8): k(f"v_sub_f32 {v(Sq+i)}, {v(Sq+i)}, {v(T)}")
            for i in range(8): k(f"v_sub_f32 {v(So+i)}, {v(So+i)}, {v(T)}")
            for i in range(8): k(f"v_sub_f32 {v(N_+i)}, {v(N_+i)}, {v(T)}")
            k(f"v_mul_f32 {v(vL+qt)}, {v(vL+qt)}, {v(T+1)}")
            for i0 in range(0, 32, 8):
                for i in range(8): k(f"v_accvgpr_read_b32 {v(T+4+i)}, {a(Oreg(qt,0)+i0+i)}")
                for i in range(8): k(f"v_mul_f32 {v(T+4+i)}, {v(T+4+i)}, {v(T+1)}")
                for i in range(8): k(f"v_accvgpr_write_b32 {a(Oreg(qt,0)+i0+i)}, {v(T+4+i)}")
            for i in range(8): k(f"v_exp_f32 {v(T+4+i)}, {v(Sq+i)}")
            k("s_nop 0")
            for i in range(4): k(f"v_cvt_pk_bf16_f32 {v(Pq+i)}, {v(T+4+2*i)}, {v(T+5+2*i)}")
            k(f"s_nop 1\n{MF} {v(TS(qt),4)}, {v(vOne,4)}, {v(Pq,4)}, 0")
        k(f"s_nop 7\ns_setpc_b64 {s(sRa,2)}")
    if INL:
        starts = [x[0] for x in outl] + [Leps, Lepf, Lepl]
        pieces = {}; rest = []; cur = None
        for ln_ in ool:
            if ln_.endswith(":") and ln_[:-1] in starts: cur = ln_[:-1]; pieces[cur] = []
            (pieces[cur] if cur else rest).append(ln_)
        out_ = []
        for ln_ in k.lines:
            if ln_.startswith("@@"): out_ += pieces.pop(ln_[2:])
            elif ln_.strip().startswith(f"s_call_b64 {s(sRe,2)}, "):
                tg = ln_.split()[-1]; pc = pieces.pop(tg); le = tg + "_r"
                assert "s_setpc" in pc[-1]
                out_ += [x if "s_setpc" not in x else f"    s_branch {le}" for x in pc[:-1]] + [le + ":"]
            else: out_.append(ln_)
        assert not pieces
        k.lines = out_; ool = rest
    k.lines += ool + ool0
    code, desc = kernel_wrap(name, k.text(), 512, 102, 256)
    return code, desc, f"; @launch kernel={name} grid=(256,1,1) block=(256,1,1) lds={LDS_BYTES}"
```

```python
import sys
sys.path.insert(0, "gen")
HEADER = open("concat_heads__sliding_local_dilated__compressed_kv_cla__prompt.s.ref").read().split("; Override launch")[0]
def assemble(mods, path):
    codes, descs, launches = [], [], []
    for m in mods:
        c, d, l = m
        codes.append(c); descs.append(d); launches.append(l)
    txt = HEADER + "\n".join(launches) + "\n" + '.amdgcn_target "amdgcn-amd-amdhsa--gfx950"\n' + "".join(codes) + "".join(descs)
    open(path, "w").write(txt)
if __name__ == "__main__":
    abl = [x[2:] for x in sys.argv[2:] if x.startswith('-a')]
    st = '--stamps' in sys.argv
    if '--3k' in sys.argv:
        import gemm1, attn, gemm3_v2
        mods = [gemm1.build(stamps=st, abl=abl), attn.build(stamps=st, abl=abl), gemm3_v2.build(stamps=st, abl=abl)]
    elif '--2k' in sys.argv:
        import mega6, gemm3
        mods = [mega6.build(stamps=st, abl=abl), gemm3.build(stamps=st, abl=abl)]
    else:
        import mega16
        if '--list' in sys.argv or st: mods = [mega16.build(stamps=st, abl=abl)]
        else:
            c, d, l = mega16.build(name='concat_heads__sliding_local_dilated__compressed_kv_cla__prompt_kernel', abl=abl)
            mods = [(c, d, '; @launch grid=(256,1,1) block=(256,1,1) lds=163840')]
    out = sys.argv[1] if len(sys.argv) > 1 else "concat_heads__sliding_local_dilated__compressed_kv_cla__prompt.s"
    assemble(mods, out)
    print("wrote", out)
```

```python
from asmlib import *
import math

XS = 32768
WBASE = 3 * XS
LDS_BYTES = 5 * XS
C_B = (128 ** -0.5) * math.log2(math.e)
C_A = (32 ** -0.5) * math.log2(math.e)
STG = 16384
SLOT = 32768
THR = float(2 ** 20)
CAP = 8
RESV = 4
U_PUB, U_POLL, U_CHK, U_MID, U_CP = 8, 20, 24, 16, 28
import os
ITEMS = {'7': [(12, 4), (9, 8), (11, 5), (10, 6), (15, 1), (14, 2), (13, 3), (16, 7)], '5': [(12, 4), (9, 8), (11, 6), (10, 7), (15, 1), (14, 2), (13, 3), (16, 5)],
         '6': [(12, 4), (9, 8), (11, 5), (10, 7), (15, 1), (14, 2), (13, 3), (16, 6)],
         '5b': [(9, 8), (11, 6), (12, 4), (10, 7), (15, 1), (14, 2), (13, 3), (16, 5)],
         '3': [(9, 8), (11, 6), (10, 7), (14, 2), (15, 1), (13, 4), (12, 5), (16, 3)],
         'x1': [(10, 6), (9, 8), (12, 3), (15, 1), (14, 2), (11, 7), (13, 4), (16, 5)],
         'x3': [(9, 8), (12, 4), (10, 6), (14, 2), (13, 3), (11, 7), (15, 1), (16, 5)],
         'x4': [(10, 6), (9, 8), (11, 5), (12, 4), (15, 1), (14, 2), (13, 3), (16, 7)],
         'x5': [(11, 5), (9, 8), (12, 3), (10, 7), (15, 1), (14, 2), (13, 4), (16, 6)],
         '1': [(9, 8), (11, 6), (10, 7), (12, 5), (15, 2), (14, 3), (13, 4), (16, 1)],
         '2': [(9, 8), (11, 6), (10, 7), (12, 5), (15, 1), (14, 3), (13, 4), (16, 2)],
         'p9': [(10, 7), (12, 5), (11, 6), (13, 4), (16, 1), (15, 2), (14, 3), (9, 8)],
         'y2': [(12, 5), (13, 4), (15, 1), (14, 3), (11, 6), (10, 7), (9, 8), (16, 2)],
         'y3': [(14, 2), (12, 5), (15, 1), (13, 4), (11, 6), (10, 7), (9, 8), (16, 3)],
         'y4': [(13, 3), (12, 5), (14, 2), (15, 1), (11, 6), (10, 7), (9, 8), (16, 4)],
         'z6': [(11, 5), (12, 4), (9, 8), (10, 7), (15, 1), (14, 2), (13, 3), (16, 6)],
         'z5': [(9, 8), (10, 7), (12, 4), (13, 3), (15, 1), (14, 2), (11, 6), (16, 5)],
         'z7': [(10, 7), (9, 8), (13, 3), (11, 6), (15, 1), (14, 2), (12, 5), (16, 4)],
         'z8': [(9, 7), (11, 6), (13, 3), (14, 2), (15, 1), (10, 8), (12, 5), (16, 4)],
         'k1': [(10, 6), (9, 7), (12, 4), (11, 5), (16, 1), (15, 2), (14, 3), (13, 8)],
         'k2': [(10, 6), (9, 7), (13, 4), (11, 5), (16, 1), (15, 2), (14, 3), (12, 8)],
         'k3': [(10, 6), (9, 7), (12, 4), (11, 5), (16, 1), (15, 2), (13, 3), (14, 8)],
         'k4': [(13, 3), (12, 4), (15, 1), (14, 2), (11, 7), (10, 8), (9, 6), (16, 5)],
         '4': [(9, 8), (11, 6), (10, 7), (13, 3), (15, 1), (14, 2), (12, 5), (16, 4)]}[os.environ.get('PITEM', 'k1')]
TABA = sum((x[0] - 1) << (4 * i) for i, x in enumerate(ITEMS)); TABB = sum((x[1] - 1) << (4 * i) for i, x in enumerate(ITEMS))
SPIN = 1 << 18

NS3 = 5; NC = int(os.environ.get('NC', '40')); NB = 64 - NC; NP = NB + 16; TR = 4
F_CTX, F_OA, F_PAIR = 0x2000, 0x3000, 0x4000

def build(name="mega_kernel", stamps=False, abl=(), last_kernel=None):
    last_kernel = name
    k = K('m')
    AL = int(os.environ.get('ALIGN', '3'))
    def align():
        if AL: k.lines.append(f'.p2align {AL}')
    sDb = 4; sWS = 6; srdO = 8; srdD = 12; sw = 16; sPend = 17; sStamp = 18; sRe = 20; sEx = 22
    vLane = 1; vSt = 2; vL16 = 2; vStamp = 3; vFlag = 4; vFa = 0; sTok = sDb
    ST = Stamper(k, stamps, vStamp, sStamp)
    TOUCH = 'notouch' not in abl
    L2D = int(os.environ.get('L2D', '0'))
    wsc = ' sc0 sc1' if 'sc01' in abl else ' sc1'
    sfx = ' sc1'; ksc = wsc; tsc = ' sc1' if 'tsc' in abl else ''
    gxs = wsc + (' nt' if 'ntx' in abl else ''); gws = wsc + (' nt' if 'ntw' in abl else '')
    if 'ntp' in abl: tsc += ' nt'
    S = Regs('s', 24, 90)
    sK = S.alloc('karg', 16, 4)
    srdX = S.alloc('srdX', 4, 4); srdW = S.alloc('srdW', 4, 4)
    sXoff = S.alloc('sXoff', 4); sWoff = S.alloc('sWoff', 4); sWstep = S.alloc('sWstep')
    swm = S.alloc('wm'); swn = S.alloc('wn'); sXSc = S.alloc('xsc'); sWx = S.alloc('wx')
    sXw = S.alloc('xw'); sWw = S.alloc('ww'); sXd = S.alloc('xdelta'); sXs = S.alloc('xrslot')
    sCnt = S.alloc('cnt'); sFirst = S.alloc('first'); sEvT = S.alloc('evt'); sIdx = S.alloc('idx'); sMt = S.alloc('mt'); sIsP = S.alloc('isp')
    LF = ['xlo','xhi','xsize','wlo','whi','wsize','ldx','ldw','xoff0','woff0','par']
    CF = ['nk','swp','scale','obase','Si','Sj','flag']
    P1 = {f: S.alloc('p1' + f) for f in LF + CF}
    sStp = S.alloc('stp')
    STP = 'stp' in abl
    top = Regs('s', 90, 102)
    sT = top.alloc('t', 4, 2); sHasNext = top.alloc('hasnext')
    CP = {f: top.alloc('c' + f) for f in CF}
    t0, t1, t2, t3 = sT, sT + 1, sT + 2, sT + 3
    def ptr(nm): return sK + KARG[nm] // 4
    V = Regs('v', 6, 32)
    vx = V.alloc('vx', 2); vw = V.alloc('vw', 8); vX = V.alloc('vX', 2); vW = V.alloc('vW', 4); vDum = V.alloc('dum')
    vT = V.alloc('t', 8, 4)
    assert vT == 24
    T = vT
    def acc(i, j):
        n = ((i >> 1) * 8 + j) * 2 + (i & 1)
        return ('v', 32 + 4 * n) if n < 56 else ('a', 224 + 4 * (n - 56))
    def fragX(kk, mb): return mb * 8 + kk * 4
    def fragW(kk, nb): return 64 + nb * 8 + kk * 4
    STASH = 128
    def Qreg(qt, e): return 128 + qt * 16 + e * 4

    Lend = k.newlab('end')
    k(f"s_cmp_ge_u32 s2, 256\ns_cbranch_scc1 {Lend}")
    if STP: ST.stamp(0); ST.stamp(1, real=True)
    k(f"s_load_dwordx16 {s(sK,16)}, s[0:1], 0\ns_load_dwordx4 {s(sDb,4)}, s[0:1], {KARG['dbg']}")
    if stamps and not STP:
        k("s_waitcnt lgkmcnt(0)")
        ST.stamp(0); ST.stamp(1, real=True)
    if STP: k(f"s_mov_b32 {s(sStp)}, 18")
    k(f"v_and_b32 {v(vLane)}, 63, v0\nv_lshrrev_b32 {v(vT)}, 6, v0\ns_nop 0\nv_readfirstlane_b32 {s(sw)}, {v(vT)}")
    k(f"s_lshr_b32 {s(sIdx)}, s2, 3")
    k(f"s_lshr_b32 {s(swm)}, {s(sw)}, 1\ns_and_b32 {s(swn)}, {s(sw)}, 1")
    k(f"s_mov_b32 {s(srdX+3)}, 0x20000\ns_mov_b32 {s(srdW+3)}, 0x20000")
    def t_all():
        x7 = sMt; wx = sCnt; sa = sFirst; sb = sEvT
        k(f"s_and_b32 {s(x7)}, s2, 7\ns_lshl_b32 {s(wx)}, {s(sIdx)}, 2\ns_add_u32 {s(wx)}, {s(wx)}, {s(sw)}")
        k(f"s_and_b32 {s(t0)}, {s(x7)}, 3\ns_lshl_b32 {s(t0)}, {s(t0)}, 11\ns_lshl_b32 {s(t1)}, {s(wx)}, 15\ns_add_u32 {s(t0)}, {s(t0)}, {s(t1)}")
        k(f"s_lshl_b32 {s(t1)}, {s(wx)}, 1\ns_and_b32 {s(t2)}, {s(x7)}, 1\ns_add_u32 {s(t1)}, {s(t1)}, {s(t2)}\ns_sub_u32 {s(t1)}, {s(t1)}, 128\ns_lshl_b32 {s(t1)}, {s(t1)}, 15")
        k(f"s_lshr_b32 {s(t3)}, {s(x7)}, 1\ns_lshl_b32 {s(sa)}, {s(t3)}, 11\ns_add_u32 {s(t1)}, {s(t1)}, {s(sa)}")
        k(f"s_cmp_lt_u32 {s(sIdx)}, 16\ns_cselect_b32 {s(t0)}, {s(t0)}, {s(t1)}")
        k(f"s_lshl_b32 {s(t2)}, {s(t2)}, 2\ns_add_u32 {s(t2)}, {s(t2)}, {s(t3)}\ns_lshl_b32 {s(t2)}, {s(t2)}, 4\ns_add_u32 {s(t2)}, {s(t2)}, {s(wx)}\ns_sub_u32 {s(t2)}, {s(t2)}, 96\ns_lshl_b32 {s(t2)}, {s(t2)}, 15")
        k(f"s_cmp_lt_u32 {s(sIdx)}, 24\ns_cselect_b32 {s(t0)}, {s(t0)}, {s(t2)}\ns_cselect_b32 {s(sa)}, 4, 2\ns_cselect_b32 {s(sb)}, 13, 11")
        k(f"s_lshl_b32 {s(t2)}, {s(x7)}, 4\ns_add_u32 {s(t2)}, {s(t2)}, {s(wx)}\ns_sub_u32 {s(t2)}, {s(t2)}, 112\ns_lshl_b32 {s(t2)}, {s(t2)}, 13")
        k(f"s_cmp_lt_u32 {s(sIdx)}, 28\ns_cselect_b32 {s(t0)}, {s(t0)}, {s(t2)}\ns_cselect_b32 {s(sa)}, {s(sa)}, 3\ns_cselect_b32 {s(sb)}, {s(sb)}, 10")
        k(f"v_lshrrev_b32 {v(T)}, {s(sa)}, {v(vLane)}\nv_lshlrev_b32 {v(T+1)}, {s(sa)}, {v(T)}\nv_sub_u32 {v(T+1)}, {v(vLane)}, {v(T+1)}\nv_lshlrev_b32 {v(T)}, {s(sb)}, {v(T)}\nv_lshl_add_u32 {v(vFlag)}, {v(T+1)}, 7, {v(T)}\ns_mov_b32 {s(sXd)}, {s(t0)}")
        k(f"s_mov_b32 {s(srdD+2)}, {4*1048576}\ns_mov_b32 {s(srdD+3)}, 0x20000\ns_cselect_b32 {s(srdD+2)}, {s(srdD+2)}, {2*1048576}")
    def t_go():
        x7 = t3
        k(f"s_and_b32 {s(x7)}, s2, 7\ns_cmp_lt_u32 {s(sIdx)}, 28\ns_cselect_b32 {s(srdD)}, {s(ptr('B_x'))}, {s(ptr('B_c_kv'))}\ns_cselect_b32 {s(srdD+1)}, {s(ptr('B_x')+1)}, {s(ptr('B_c_kv')+1)}")
        k(f"s_cmp_lt_u32 {s(sIdx)}, 24\ns_cselect_b32 {s(srdD)}, {s(ptr('B_w_q'))}, {s(srdD)}\ns_cselect_b32 {s(srdD+1)}, {s(ptr('B_w_q')+1)}, {s(srdD+1)}")
        k(f"s_cmp_lt_u32 {s(x7)}, 4\ns_cselect_b32 {s(t1)}, {s(ptr('B_w_uk'))}, {s(ptr('B_w_uv'))}\ns_cselect_b32 {s(t2)}, {s(ptr('B_w_uk')+1)}, {s(ptr('B_w_uv')+1)}")
        k(f"s_cmp_lt_u32 {s(sIdx)}, 16\ns_cselect_b32 {s(srdD)}, {s(t1)}, {s(srdD)}\ns_cselect_b32 {s(srdD+1)}, {s(t2)}, {s(srdD+1)}")
        k(f"buffer_load_dword {v(vDum)}, {v(vFlag)}, {s(srdD,4)}, {s(sXd)} offen")
    if 'nocpf' not in abl:
        Lc = k.newlab('ncp')
        k(f"s_cmp_lt_u32 {s(sIdx)}, 28\ns_cbranch_scc1 {Lc}\ns_sub_u32 {s(t1)}, {s(sIdx)}, 28\ns_lshl_b32 {s(t1)}, {s(t1)}, 2\ns_add_u32 {s(t1)}, {s(t1)}, {s(sw)}")
        code_prefetch(k, srdO, name, last_kernel + "_end", t1, vLane, T, vDum, t0)
        k.label(Lc)
    if 'ta' in abl: t_all()
    k(f"s_lshl_b32 {s(sXw)}, {s(sw)}, 13\ns_add_u32 {s(sWw)}, {s(sXw)}, {WBASE}")
    def late_setup():
        k.c("fragment read addresses")
        k(f"v_and_b32 {v(T)}, 15, {v(vLane)}\nv_lshrrev_b32 {v(T+1)}, 4, {v(vLane)}")
        k(f"v_bfe_u32 {v(T+2)}, {v(vLane)}, 1, 3\nv_xor_b32 {v(T+2)}, {v(T+2)}, {v(T+1)}")
        k(f"s_lshl_b32 {s(t0)}, {s(swm)}, 14\nv_lshlrev_b32 {v(T+3)}, 7, {v(T)}\nv_add_u32 {v(T+3)}, {s(t0)}, {v(T+3)}")
        for kk in range(2):
            k(f"v_xor_b32 {v(T+4)}, {4*kk}, {v(T+2)}\nv_lshl_add_u32 {v(vx+kk)}, {v(T+4)}, 4, {v(T+3)}")
        k(f"v_bfe_u32 {v(T+2)}, {v(vLane)}, 2, 2")
        k(f"v_lshl_add_u32 {v(T+3)}, {v(T+1)}, 3, {v(T+2)}\nv_lshlrev_b32 {v(T+3)}, 9, {v(T+3)}")
        k(f"v_and_b32 {v(T+4)}, 3, {v(vLane)}\nv_lshlrev_b32 {v(T+4)}, 3, {v(T+4)}\nv_add_u32 {v(T+3)}, {v(T+3)}, {v(T+4)}")
        k(f"s_lshl_b32 {s(t0)}, {s(swn)}, 8\ns_add_u32 {s(t0)}, {s(t0)}, {WBASE}\nv_add_u32 {v(T+3)}, {s(t0)}, {v(T+3)}")
        k(f"v_bfe_u32 {v(T+2)}, {v(vLane)}, 2, 3")
        for nb in range(8):
            k(f"v_xor_b32 {v(T+4)}, {nb}, {v(T+2)}\nv_lshl_add_u32 {v(vw+nb)}, {v(T+4)}, 5, {v(T+3)}")
        k(f"v_lshlrev_b32 {v(vSt)}, 4, {v(vLane)}")
        k(f"s_mov_b32 {s(sXs)}, 0")
        k(f"s_mov_b32 {s(sXSc)}, {XS}\ns_mov_b32 {s(sWx)}, {WBASE ^ (WBASE + XS)}")
    def q_params(p, ptrs=True):
        k(f"s_mov_b32 {s(p['wsize'])}, 8388608\ns_mov_b32 {s(p['ldw'])}, 8192\ns_mov_b32 {s(p['par'])}, 0")
        k(f"s_mov_b32 {s(p['xsize'])}, 4194304\ns_mov_b32 {s(p['ldx'])}, 2048\ns_mov_b32 {s(p['nk'])}, 16")
        k(f"s_lshl_b32 {s(p['woff0'])}, {s(t0)}, 9\ns_lshl_b32 {s(p['xoff0'])}, {s(sMt)}, 19\ns_lshl_b32 {s(p['flag'])}, {s(t0)}, 4\ns_add_u32 {s(p['flag'])}, {s(p['flag'])}, {s(sMt)}\ns_lshl_b32 {s(p['flag'])}, {s(p['flag'])}, 3")
        k(f"s_mov_b32 {s(p['swp'])}, 0\ns_mov_b32 {s(p['scale'])}, {f32bits(C_B)}")
        k(f"s_lshl_b32 {s(t1)}, {s(t0)}, 1\ns_add_u32 {s(t1)}, {s(t1)}, {s(swn)}\ns_lshl_b32 {s(t1)}, {s(t1)}, 19")
        k(f"s_lshl_b32 {s(t2)}, {s(sMt)}, 1\ns_add_u32 {s(t2)}, {s(t2)}, {s(swm)}\ns_lshl_b32 {s(t2)}, {s(t2)}, 15")
        k(f"s_add_u32 {s(p['obase'])}, {s(t1)}, {s(t2)}\ns_add_u32 {s(p['obase'])}, {s(p['obase'])}, {WS_QB}")
        k(f"s_mov_b32 {s(p['Si'])}, 1024\ns_mov_b32 {s(p['Sj'])}, 4096")
        if ptrs: k(f"s_mov_b32 {s(p['xlo'])}, {s(ptr('B_x'))}\ns_mov_b32 {s(p['xhi'])}, {s(ptr('B_x')+1)}\ns_mov_b32 {s(p['wlo'])}, {s(ptr('B_w_q'))}\ns_mov_b32 {s(p['whi'])}, {s(ptr('B_w_q')+1)}")
    def a_params(p):
        k(f"s_mov_b32 {s(p['wsize'])}, 6291456\ns_mov_b32 {s(p['ldw'])}, 6144\ns_mov_b32 {s(p['par'])}, 1")
        k(f"s_mov_b32 {s(p['xsize'])}, 4194304\ns_mov_b32 {s(p['ldx'])}, 2048\ns_mov_b32 {s(p['nk'])}, 16")
        k(f"s_lshl_b32 {s(p['woff0'])}, {s(t0)}, 9\ns_lshl_b32 {s(p['xoff0'])}, {s(sMt)}, 19")
        k(f"s_and_b32 {s(t2)}, {s(t0)}, 3\ns_lshr_b32 {s(t1)}, {s(t0)}, 2")
        k(f"s_lshl_b32 {s(p['flag'])}, {s(t2)}, 2\ns_add_u32 {s(p['flag'])}, {s(p['flag'])}, {s(t1)}\ns_lshl_b32 {s(p['flag'])}, {s(p['flag'])}, 3\ns_add_u32 {s(p['flag'])}, {s(p['flag'])}, {s(sMt)}\ns_lshl_b32 {s(p['flag'])}, {s(p['flag'])}, 3\ns_add_u32 {s(p['flag'])}, {s(p['flag'])}, {48*128}")
        k(f"s_cmp_eq_u32 {s(t1)}, 0\ns_cselect_b32 {s(p['scale'])}, {f32bits(C_A)}, 0")
        k(f"s_lshl_b32 {s(t3)}, {s(t1)}, 22\ns_add_u32 {s(p['obase'])}, {s(t3)}, {WS_QA}")
        k(f"s_lshl_b32 {s(t2)}, {s(t2)}, 1\ns_add_u32 {s(t2)}, {s(t2)}, {s(swn)}\ns_lshl_b32 {s(t2)}, {s(t2)}, 19\ns_add_u32 {s(p['obase'])}, {s(p['obase'])}, {s(t2)}")
        k(f"s_lshl_b32 {s(t2)}, {s(swm)}, 3\ns_add_u32 {s(t2)}, {s(t2)}, {s(sMt)}")
        k(f"s_cmp_eq_u32 {s(t1)}, 2\ns_cselect_b32 {s(p['swp'])}, 1, 0\ns_cselect_b32 {s(t3)}, 12, 13")
        k(f"s_mov_b32 {s(t1)}, 131072\ns_cselect_b32 {s(p['Si'])}, 1024, {s(t1)}\ns_mov_b32 {s(t1)}, 1024\ns_cselect_b32 {s(p['Sj'])}, 65536, {s(t1)}")
        k(f"s_lshl_b32 {s(t2)}, {s(t2)}, {s(t3)}\ns_add_u32 {s(p['obase'])}, {s(p['obase'])}, {s(t2)}")
        k(f"s_mov_b32 {s(p['xlo'])}, {s(ptr('A_x'))}\ns_mov_b32 {s(p['xhi'])}, {s(ptr('A_x')+1)}\ns_mov_b32 {s(p['wlo'])}, {s(ptr('A_wqkv'))}\ns_mov_b32 {s(p['whi'])}, {s(ptr('A_wqkv')+1)}")
    def kv_params(p, ptrs=True):
        k(f"s_cmp_lt_u32 {s(t0)}, 16\ns_cselect_b32 {s(p['swp'])}, 0, 1")
        k(f"s_mov_b32 {s(t1)}, {WS_VB}\ns_cselect_b32 {s(p['obase'])}, {WS_KB}, {s(t1)}")
        k(f"s_mov_b32 {s(t1)}, 8192\ns_cselect_b32 {s(p['Si'])}, 1024, {s(t1)}")
        k(f"s_mov_b32 {s(t1)}, 1024\ns_cselect_b32 {s(p['Sj'])}, 4096, {s(t1)}")
        if ptrs: k(f"s_cselect_b32 {s(p['wlo'])}, {s(ptr('B_w_uk'))}, {s(ptr('B_w_uv'))}\ns_cselect_b32 {s(p['whi'])}, {s(ptr('B_w_uk')+1)}, {s(ptr('B_w_uv')+1)}")
        if ptrs: k(f"s_mov_b32 {s(p['xlo'])}, {s(ptr('B_c_kv'))}\ns_mov_b32 {s(p['xhi'])}, {s(ptr('B_c_kv')+1)}")
        k(f"s_mov_b32 {s(p['xsize'])}, 2097152\ns_mov_b32 {s(p['ldx'])}, 1024\ns_mov_b32 {s(p['nk'])}, 8\ns_mov_b32 {s(p['par'])}, 0")
        k(f"s_mov_b32 {s(p['wsize'])}, 4194304\ns_mov_b32 {s(p['ldw'])}, 8192\ns_mov_b32 {s(p['scale'])}, 0")
        k(f"s_and_b32 {s(t0)}, {s(t0)}, 15\ns_lshl_b32 {s(p['woff0'])}, {s(t0)}, 9\ns_lshl_b32 {s(p['xoff0'])}, {s(sMt)}, 18")
        k(f"s_lshl_b32 {s(t1)}, {s(p['swp'])}, 2\ns_add_u32 {s(t1)}, {s(t1)}, {s(sMt)}\ns_cmp_ge_u32 {s(sMt)}, 4\ns_cselect_b32 {s(t2)}, {512 - 4}, 8\ns_add_u32 {s(t1)}, {s(t1)}, {s(t2)}")
        k(f"s_lshl_b32 {s(p['flag'])}, {s(t0)}, 4\ns_add_u32 {s(p['flag'])}, {s(p['flag'])}, {s(t1)}\ns_lshl_b32 {s(p['flag'])}, {s(p['flag'])}, 3")
        k(f"s_lshl_b32 {s(t1)}, {s(t0)}, 1\ns_add_u32 {s(t1)}, {s(t1)}, {s(swn)}\ns_lshl_b32 {s(t1)}, {s(t1)}, 19")
        k(f"s_lshl_b32 {s(t2)}, {s(sMt)}, 1\ns_add_u32 {s(t2)}, {s(t2)}, {s(swm)}\ns_lshl_b32 {s(t2)}, {s(t2)}, 15")
        k(f"s_add_u32 {s(p['obase'])}, {s(p['obase'])}, {s(t1)}\ns_add_u32 {s(p['obase'])}, {s(p['obase'])}, {s(t2)}")
    def tile_long(mul):
        k(f"s_and_b32 {s(sMt)}, {s(sIdx)}, 3\ns_and_b32 {s(t0)}, s2, 1\ns_lshl_b32 {s(t0)}, {s(t0)}, 2\ns_add_u32 {s(sMt)}, {s(sMt)}, {s(t0)}")
        k(f"s_bfe_u32 {s(t0)}, s2, 0x20001\ns_mul_i32 {s(t0)}, {s(t0)}, {mul}\ns_bfe_u32 {s(t1)}, {s(sIdx)}, 0x20002\ns_add_u32 {s(t0)}, {s(t0)}, {s(t1)}")
    def tile_kv(late):
        k(f"s_bfe_u32 {s(sMt)}, {s(sIdx)}, 0x20002\ns_add_u32 {s(sMt)}, {s(sMt)}, {4*late}\ns_and_b32 {s(t0)}, s2, 7\ns_lshl_b32 {s(t0)}, {s(t0)}, 2\ns_and_b32 {s(t1)}, {s(sIdx)}, 3\ns_add_u32 {s(t0)}, {s(t0)}, {s(t1)}")

    def act_load(p, part=(0, 1), which="xw"):
        if 0 in part and 'x' in which:
            k(f"s_mov_b32 {s(srdX+2)}, {s(p['xsize'])}")
            k(f"s_lshl_b32 {s(t0)}, {s(p['ldx'])}, 4\ns_lshl_b32 {s(t0)}, {s(t0)}, {s(p['par'])}")
            k(f"s_mov_b32 {s(sXoff)}, {s(p['xoff0'])}")
            for a_ in (1, 2, 3):
                k(f"s_mul_i32 {s(t1)}, {s(t0)}, {a_}\ns_add_u32 {s(sXoff+a_)}, {s(t1)}, {s(p['xoff0'])}")
                if a_ & 1: k(f"s_sub_u32 {s(sXoff+a_)}, {s(sXoff+a_)}, 2048")
            k(f"s_lshl_b32 {s(t0)}, {s(swn)}, 7\ns_add_u32 {s(t0)}, {s(t0)}, {s(swm)}\ns_lshl_b32 {s(t1)}, {s(sw)}, 6\ns_cmp_eq_u32 {s(p['par'])}, 1\ns_cselect_b32 {s(t0)}, {s(t0)}, {s(t1)}")
            k(f"v_lshrrev_b32 {v(T)}, 3, {v(vLane)}\nv_lshlrev_b32 {v(T)}, {s(p['par'])}, {v(T)}")
            k(f"v_add_u32 {v(T)}, {s(t0)}, {v(T)}\nv_mul_lo_u32 {v(T)}, {v(T)}, {s(p['ldx'])}")
            k(f"v_lshrrev_b32 {v(T+1)}, 4, {v(vLane)}\nv_and_b32 {v(T+2)}, 7, {v(vLane)}\nv_xor_b32 {v(T+1)}, {v(T+1)}, {v(T+2)}")
            k(f"v_lshl_add_u32 {v(vX)}, {v(T+1)}, 4, {v(T)}")
            k(f"v_xor_b32 {v(T+1)}, 4, {v(T+1)}\nv_lshl_add_u32 {v(vX+1)}, {v(T+1)}, 4, {v(T)}")
            k(f"s_lshl_b32 {s(t0)}, {s(p['ldx'])}, 3\ns_lshl_b32 {s(t0)}, {s(t0)}, {s(p['par'])}\ns_sub_u32 {s(t0)}, {s(t0)}, 1024\nv_add_u32 {v(vX+1)}, {s(t0)}, {v(vX+1)}")
        if 0 in part and 'w' in which:
            k(f"s_mov_b32 {s(srdW+2)}, {s(p['wsize'])}")
            k(f"s_mov_b32 {s(sWoff)}, {s(p['woff0'])}\ns_lshl_b32 {s(t0)}, {s(p['ldw'])}, 2")
            for a_ in (1, 2, 3):
                k(f"s_mul_i32 {s(t1)}, {s(t0)}, {a_}\ns_add_u32 {s(sWoff+a_)}, {s(t1)}, {s(p['woff0'])}")
                if a_ & 1: k(f"s_sub_u32 {s(sWoff+a_)}, {s(sWoff+a_)}, 2048")
            k(f"s_lshl_b32 {s(sWstep)}, {s(p['ldw'])}, 6")
            k(f"v_lshrrev_b32 {v(T)}, 5, {v(vLane)}\ns_lshl_b32 {s(t0)}, {s(sw)}, 4\nv_add_u32 {v(T+1)}, {s(t0)}, {v(T)}\nv_mul_lo_u32 {v(T+1)}, {v(T+1)}, {s(p['ldw'])}")
            k(f"v_lshlrev_b32 {v(T)}, 1, {v(T)}\nv_and_b32 {v(T+2)}, 31, {v(vLane)}\nv_xor_b32 {v(T)}, {v(T)}, {v(T+2)}")
            k(f"s_lshl_b32 {s(t0)}, {s(p['ldw'])}, 1\ns_sub_u32 {s(t0)}, {s(t0)}, 1024\nv_add_u32 {v(T+3)}, {s(t0)}, {v(T+1)}")
            for u in range(2):
                for e in range(2):
                    k(f"v_xor_b32 {v(T+2)}, {4*e + 8*u}, {v(T)}\nv_lshl_add_u32 {v(vW+e+2*u)}, {v(T+2)}, 4, {v(T+3) if e else v(T+1)}")
        if 1 in part:
            if 'x' in which: k(f"s_mov_b32 {s(srdX)}, {s(p['xlo'])}\ns_mov_b32 {s(srdX+1)}, {s(p['xhi'])}")
            if 'w' in which: k(f"s_mov_b32 {s(srdW)}, {s(p['wlo'])}\ns_mov_b32 {s(srdW+1)}, {s(p['whi'])}")
    def act_comp(p):
        for f in CP: k(f"s_mov_b32 {s(CP[f])}, {s(p[f])}")

    def dmaX(j):
        out = []
        if j % 4 == 0: out.append(f"s_add_u32 m0, {s(sXw)}, {4096 * (j // 4)}\ns_nop 0")
        out.append(f"buffer_load_dwordx4 {v(vX + (j & 1))}, {s(srdX,4)}, {s(sXoff + (j >> 1))} offen offset:{(j & 3) * 1024}{gxs} lds")
        if j & 1: out.append(f"s_add_u32 {s(sXoff + (j >> 1))}, {s(sXoff + (j >> 1))}, 128")
        return out
    def dmaW(j):
        out = []
        if j % 4 == 0: out.append(f"s_add_u32 m0, {s(sWw)}, {4096 * (j // 4)}\ns_nop 0")
        out.append(f"buffer_load_dwordx4 {v(vW + (j & 1) + 2 * (j >> 2))}, {s(srdW,4)}, {s(sWoff + (j >> 1))} offen offset:{(j & 3) * 1024}{gws} lds")
        if j & 1: out.append(f"s_add_u32 {s(sWoff + (j >> 1))}, {s(sWoff + (j >> 1))}, {s(sWstep)}")
        return out
    def rotXw():
        return [f"s_add_u32 {s(sXw)}, {s(sXw)}, {XS}\ns_cmp_ge_u32 {s(sXw)}, {3*XS}", f"s_cselect_b32 {s(t0)}, {3*XS}, 0\ns_sub_u32 {s(sXw)}, {s(sXw)}, {s(t0)}"]
    def rotWw():
        return [f"s_xor_b32 {s(sWw)}, {s(sWw)}, {WBASE ^ (WBASE + XS)}"]
    def rdX(kk, mb): return (('x', mb), f"ds_read_b128 {a(fragX(kk, mb), 4)}, {v(vx + kk)} offset:{mb * 2048}")
    def rdW(kk, nb, t): return (('w', nb), f"ds_read_b64_tr_b16 {a(fragW(kk, nb) + 2 * t, 2)}, {v(vw + nb)} offset:{(32 * kk + 4 * t) * 512}")
    def rdWpair(p_): return [rdW(kk, nb, t) for nb in (2 * p_, 2 * p_ + 1) for kk in range(2) for t in range(2)]

    MB = 1 << 20
    def pf_setup():
        k(f"s_sub_u32 {s(t3)}, s2, 224\ns_lshl_b32 {s(t3)}, {s(t3)}, 2\ns_add_u32 {s(t3)}, {s(t3)}, {s(sw)}")
        k(f"v_lshlrev_b32 {v(T)}, 7, {v(vLane)}")
        k(f"v_lshrrev_b32 {v(T+1)}, 3, {v(vLane)}\nv_lshlrev_b32 {v(T+1)}, 11, {v(T+1)}\nv_and_b32 {v(T+2)}, 7, {v(vLane)}\nv_lshl_add_u32 {v(T+1)}, {v(T+2)}, 7, {v(T+1)}")
        k(f"s_lshl_b32 {s(t2)}, {s(t3)}, 13\ns_lshl_b32 {s(t3)}, {s(t3)}, 14\ns_add_u32 {s(t3)}, {s(t3)}, 1024")
    def region(p_, size, off, nbytes, rows=False):
        k(f"s_mov_b32 {s(srdD)}, {s(p_)}\ns_mov_b32 {s(srdD+1)}, {s(p_+1)}\ns_mov_b32 {s(srdD+2)}, {size}")
        step = 2 * MB if rows else MB
        for o in range(off, off + nbytes, step):
            k(f"s_add_u32 {s(t0)}, {s(t3 if rows else t2)}, {o}\nbuffer_load_dword {v(vDum)}, {v(T+1 if rows else T)}, {s(srdD,4)}, {s(t0)} offen{tsc}")
    def publish(sflag, vp=vFlag):
        L = k.newlab('np')
        k(f"s_cmp_lg_u32 {s(sw)}, 0\ns_cbranch_scc1 {L}")
        k(f"v_mov_b32 {v(vp)}, {s(sTok)}\nv_mov_b32 {v(vp+1)}, {s(sTok+1)}\ns_add_u32 {s(t0)}, {s(sflag)}, {WS_FLAG}\ns_mov_b64 exec, 1")
        k(f"buffer_store_dwordx2 {v(vp,2)}, off, {s(srdO,4)}, {s(t0)} sc1\ns_mov_b64 exec, -1")
        k.label(L)
    def dbgmax(word, grp=False):
        if 'dbg' not in abl: return
        L = k.newlab('dm')
        k(f"s_cmp_lg_u32 {s(sw)}, 0\ns_cbranch_scc1 {L}\ns_memrealtime {s(sStamp,2)}\ns_waitcnt lgkmcnt(0)\ns_sub_u32 {s(sStamp)}, {s(sStamp)}, {s(sTok)}\nv_mov_b32 {v(vStamp)}, {s(sStamp)}")
        if grp: k(f"s_lshr_b32 {s(sStamp)}, s2, 5\ns_cmp_eq_u32 {s(sStamp)}, 7\ns_cselect_b32 {s(sStamp)}, 4, 0")
        else: k(f"s_mov_b32 {s(sStamp)}, 0")
        k(f"s_mov_b64 exec, 1\nbuffer_atomic_umax {v(vStamp)}, off, {s(srdD,4)}, {s(sStamp)} offset:{word*4}\ns_mov_b64 exec, -1")
        k.label(L)
    def head_ids():
        k(f"s_and_b32 {s(t2)}, s2, 7\ns_lshl_b32 {s(t2)}, {s(t2)}, 2\ns_bfe_u32 {s(t3)}, s2, 0x20003\ns_add_u32 {s(t2)}, {s(t2)}, {s(t3)}\ns_lshr_b32 {s(t3)}, s2, 5\ns_lshl_b32 {s(t3)}, {s(t3)}, 2\ns_or_b32 {s(t3)}, {s(t3)}, 0x40000")
    pKV = sK + 8; pQ = sK + 9; pFl = sK + 13
    def flag_lanes(what):
        if what == 'kv':
            k(f"v_and_b32 {v(vFa)}, 3, {v(vLane)}\nv_min_u32 {v(vFa)}, 2, {v(vFa)}\nv_and_b32 {v(T)}, 4, {v(vLane)}\nv_add3_u32 {v(vFa)}, {v(vFa)}, {v(T)}, 8")
        else:
            k(f"s_bfe_u32 {s(t1)}, {TABB}, {s(t3)}\ns_lshr_b32 {s(t1)}, {s(t1)}, 1\nv_mov_b32 {v(vFa)}, {s(t1)}")
            if what == 'all': k(f"v_and_b32 {v(T)}, 3, {v(vLane)}\nv_min_u32 {v(T)}, 2, {v(T)}\nv_and_b32 {v(T+1)}, 4, {v(vLane)}\nv_add3_u32 {v(T)}, {v(T)}, {v(T+1)}, 8\nv_cmp_gt_u32 vcc, 8, {v(vLane)}\ns_nop 1\nv_cndmask_b32 {v(vFa)}, {v(vFa)}, {v(T)}, vcc")
            k(f"s_bfe_u32 {s(t1)}, {TABA}, {s(t3)}\ns_lshr_b32 {s(t1)}, {s(t1)}, 1\nv_writelane_b32 {v(vFa)}, {s(t1)}, 8")
        k(f"v_lshlrev_b32 {v(vFa)}, 3, {v(vFa)}")
    def precompute():
        head_ids()
        k(f"s_lshr_b32 {s(pFl)}, {s(t2)}, 1\ns_lshl_b32 {s(pFl)}, {s(pFl)}, 7\ns_add_u32 {s(pFl)}, {s(pFl)}, {WS_FLAG}\ns_lshl_b32 {s(t2)}, {s(t2)}, 19")
        k(f"s_lshl_b32 {s(t1)}, {s(swn)}, 13\ns_add_u32 {s(t0)}, {s(t2)}, {s(t1)}\ns_cmp_eq_u32 {s(swm)}, 0\ns_mov_b32 {s(t1)}, {WS_VB - STG}\ns_cselect_b32 {s(t1)}, {WS_KB}, {s(t1)}\ns_add_u32 {s(pKV)}, {s(t0)}, {s(t1)}")
        for st in range(2):
            k(f"s_bfe_u32 {s(t0)}, {TABA if st == 0 else TABB}, {s(t3)}\ns_lshl_b32 {s(t0)}, {s(t0)}, 3\ns_lshl_b32 {s(t1)}, {s(sw)}, 1\ns_add_u32 {s(t0)}, {s(t0)}, {s(t1)}\ns_lshl_b32 {s(t0)}, {s(t0)}, 12\ns_add_u32 {s(t0)}, {s(t0)}, {s(t2)}")
            k(f"s_add_u32 {s(pQ+2*st)}, {s(t0)}, {WS_QB}\ns_add_u32 {s(pQ+2*st+1)}, {s(t0)}, {WS_QB + 4096}")
        flag_lanes('all')
    def early_load(what=None):
        if what: head_ids(); flag_lanes(what)
        k(f"buffer_load_dwordx2 {v(vFlag,2)}, {v(vFa)}, {s(srdO,4)}, {s(pFl)} offen sc1")
    def early_check(what):
        Ls = k.newlab('spin'); Lok = k.newlab('ok')
        k(f"s_mov_b32 s3, {SPIN}")
        k.label(Ls)
        k(f"v_cmp_ne_u64 {s(sEx,2)}, {s(sTok,2)}, {v(vFlag,2)}\ns_nop 3\ns_cmp_eq_u64 {s(sEx,2)}, 0\ns_cbranch_scc1 {Lok}\ns_sub_u32 s3, s3, 1\ns_cbranch_scc1 {Lok}\ns_sleep 16")
        early_load()
        k(f"s_waitcnt vmcnt(0)\ns_branch {Ls}")
        k.label(Lok)
    def kv_cursor(offs, srd, ks):
        k(f"s_add_u32 {s(offs)}, {s(pKV)}, {ks * STG}\ns_mov_b32 {s(offs+1)}, {s(offs)}\ns_add_u32 {s(offs+2)}, {s(offs)}, 4096\ns_mov_b32 {s(offs+3)}, {s(offs+2)}")
        if ks == 0: k(f"s_cmp_eq_u32 {s(swm)}, 0\ns_cselect_b32 {s(srd+2)}, {WS_SIZE}, 0")
        if ks in (1, 3): k(f"s_mov_b32 {s(srd+2)}, {WS_SIZE}")
        if ks in (0, 3): k(f"s_mov_b32 {s(srd)}, {s(sWS)}\ns_mov_b32 {s(srd+1)}, {s(sWS+1)}")
    tok_load = f"buffer_load_dwordx2 {v(vFlag,2)}, off, {s(srdD,4)}, 0 sc1"
    def tok_get():
        Ls = k.newlab('spin'); Lok = k.newlab('ok')
        k(f"s_mov_b32 s3, {SPIN}")
        k.label(Ls)
        k(f"v_readfirstlane_b32 {s(sTok)}, {v(vFlag)}\nv_readfirstlane_b32 {s(sTok+1)}, {v(vFlag+1)}\ns_nop 3\ns_cmp_lg_u32 {s(sTok)}, 0\ns_cbranch_scc1 {Lok}\ns_sub_u32 s3, s3, 1\ns_cbranch_scc1 {Lok}\ns_sleep 32")
        k(f"{tok_load}\ns_waitcnt vmcnt(0)\ns_branch {Ls}")
        k.label(Lok)
    def q_loads(qts, sel=None):
        for qt in qts:
            for e in range(4):
                if sel is None or qt * 4 + e in sel: k(f"buffer_load_dwordx4 {a(Qreg(qt, e), 4)}, {v(vL16)}, {s(srdO,4)}, {s(pQ+qt)} offen offset:{e*1024} sc1")

    La = k.newlab('typea'); Lb = k.newlab('go1'); Lnp = k.newlab('nopf'); Lpf = k.newlab('pf')
    k(f"s_cmp_ge_u32 {s(sIdx)}, 16\ns_cbranch_scc1 {La}")
    tile_long(4); q_params(P1, False)
    k(f"s_branch {Lb}")
    k.label(La)
    tile_kv(0); kv_params(P1, False)
    k.label(Lb)
    act_load(P1, (0,))
    k(f"s_cmp_eq_u32 {s(P1['swp'])}, 0\ns_waitcnt lgkmcnt(0)\ns_cselect_b32 {s(srdW)}, {s(ptr('B_w_uk'))}, {s(ptr('B_w_uv'))}\ns_cselect_b32 {s(srdW+1)}, {s(ptr('B_w_uk')+1)}, {s(ptr('B_w_uv')+1)}")
    k(f"s_cmp_lt_u32 {s(sIdx)}, 16\ns_cselect_b32 {s(srdW)}, {s(ptr('B_w_q'))}, {s(srdW)}\ns_cselect_b32 {s(srdW+1)}, {s(ptr('B_w_q')+1)}, {s(srdW+1)}")
    k(f"s_cselect_b32 {s(srdX)}, {s(ptr('B_x'))}, {s(ptr('B_c_kv'))}\ns_cselect_b32 {s(srdX+1)}, {s(ptr('B_x')+1)}, {s(ptr('B_c_kv')+1)}")
    TAP = int(os.environ.get('TAP', '0'))
    if 'ta' in abl and TAP == 0: t_go()
    if 'ct' in abl:
        Lw_ = k.newlab('ctw'); Le_ = k.newlab('cte')
        k(f"s_bfe_u32 {s(t0)}, {s(sIdx)}, 0x20002\ns_and_b32 {s(t1)}, {s(sIdx)}, 3\ns_cmp_lt_u32 {s(sIdx)}, 16\ns_cselect_b32 {s(t2)}, {s(t0)}, {s(t1)}\ns_cselect_b32 {s(t3)}, {s(t1)}, {s(t0)}")
        k(f"s_cmp_eq_u32 {s(swn)}, 1\ns_cbranch_scc1 {Lw_}")
        k(f"s_lshl_b32 {s(t2)}, {s(t2)}, 6\nv_add_u32 {v(T)}, {s(t2)}, {v(vLane)}\nv_mul_lo_u32 {v(T)}, {v(T)}, {s(P1['ldx'])}\ns_lshl_b32 {s(t0)}, {s(swm)}, 7\ns_add_u32 {s(t0)}, {s(t0)}, {s(P1['xoff0'])}")
        k(f"buffer_load_dword {v(vDum)}, {v(T)}, {s(srdX,4)}, {s(t0)} offen\ns_branch {Le_}")
        k.label(Lw_)
        k(f"s_lshl_b32 {s(t0)}, {s(swm)}, 2\ns_add_u32 {s(t3)}, {s(t3)}, {s(t0)}\ns_lshl_b32 {s(t3)}, {s(t3)}, 17\ns_add_u32 {s(t3)}, {s(t3)}, {s(P1['woff0'])}")
        k(f"v_lshrrev_b32 {v(T)}, 2, {v(vLane)}\nv_lshlrev_b32 {v(T)}, 13, {v(T)}\nv_and_b32 {v(T+1)}, 3, {v(vLane)}\nv_lshl_add_u32 {v(T)}, {v(T+1)}, 7, {v(T)}")
        k(f"buffer_load_dword {v(vDum)}, {v(T)}, {s(srdW,4)}, {s(t3)} offen")
        k.label(Le_)
        if 'ctb' in abl: k("s_barrier")
    k(f"s_cmp_ge_u32 {s(sIdx)}, 28\ns_cselect_b32 {s(sIsP)}, 1, 0\ns_cbranch_scc1 {Lpf}")
    k.label(Lnp)
    save0 = k.lines; k.lines = []
    k.label(Lpf)
    if 'ta' in abl and TAP: t_go()
    k(f"s_mov_b32 {s(srdD+3)}, 0x20000")
    if 'tlb' in abl:
        G = int(os.environ.get('TLBG', '16'))
        k(f"s_sub_u32 {s(t3)}, {s(sIdx)}, 28\ns_lshl_b32 {s(t3)}, {s(t3)}, 2\ns_add_u32 {s(t3)}, {s(t3)}, {s(sw)}\ns_lshl_b32 {s(t3)}, {s(t3)}, {6 + G}\nv_lshlrev_b32 {v(T)}, {G}, {v(vLane)}")
        k(f"s_load_dwordx4 {s(srdO,4)}, s[0:1], {KARG['B_w_o']}\ns_waitcnt lgkmcnt(0)")
        for (lo, size) in ((sWS, 0x7100000), (srdO + 2, 8 * MB), (srdO, 8 * MB), (ptr('A_wo'), 2 * MB)):
            k(f"s_mov_b32 {s(srdD)}, {s(lo)}\ns_mov_b32 {s(srdD+1)}, {s(lo+1)}\ns_mov_b32 {s(srdD+2)}, {size}")
            for o in range(0, size, 1024 << G):
                k(f"s_add_u32 {s(t0)}, {s(t3)}, {o}\nv_add_u32 {v(T+1)}, {s(t0)}, {v(T)}\nbuffer_load_dword {v(vDum)}, {v(T+1)}, {s(srdD,4)}, 0 offen")
    if 'nopf' not in abl:
        pf_setup()
        PO = os.environ.get('PORD', '0')
        if PO == '0':
            region(ptr('A_wqkv'), 6 * MB, 0, 2 * MB); region(ptr('A_x'), 4 * MB, 0, 4 * MB)
            region(ptr('B_w_q'), 8 * MB, 4 * MB, 2 * MB); region(ptr('B_x'), 4 * MB, 0, 4 * MB, True)
            region(ptr('A_wqkv'), 6 * MB, 2 * MB, 1 * MB); region(ptr('B_w_q'), 8 * MB, 6 * MB, 2 * MB); region(ptr('A_wqkv'), 6 * MB, 3 * MB, 3 * MB)
            region(ptr('B_c_kv'), 2 * MB, 1 * MB, 1 * MB)
        else:
            k(f"v_lshrrev_b32 {v(T+1)}, 2, {v(vLane)}\nv_lshlrev_b32 {v(T+1)}, 11, {v(T+1)}\nv_and_b32 {v(T+2)}, 3, {v(vLane)}\nv_lshl_add_u32 {v(T+1)}, {v(T+2)}, 7, {v(T+1)}\ns_lshl_b32 {s(t3)}, {s(t2)}, 2")
            def xq(p_, q): region(p_, 4 * MB, q * 512, 1, True)
            wq, wa, bx, ax = ptr('B_w_q'), ptr('A_wqkv'), ptr('B_x'), ptr('A_x')
            if PO == '1':
                region(wq, 8 * MB, 1 * MB, 2 * MB); xq(bx, 1); region(wq, 8 * MB, 3 * MB, 2 * MB); xq(bx, 2); region(wq, 8 * MB, 5 * MB, 1 * MB)
                region(wa, 6 * MB, 0, 1 * MB); xq(ax, 0); region(wq, 8 * MB, 6 * MB, 1 * MB); xq(bx, 3); region(wa, 6 * MB, 1 * MB, 1 * MB); xq(ax, 1); region(wq, 8 * MB, 7 * MB, 1 * MB)
                region(wa, 6 * MB, 2 * MB, 2 * MB); xq(ax, 2); region(wa, 6 * MB, 4 * MB, 1 * MB); xq(ax, 3); region(wa, 6 * MB, 5 * MB, 1 * MB); region(ptr('B_c_kv'), 2 * MB, 1 * MB, 1 * MB)
            if PO == '2':
                uk, uv = ptr('B_w_uk'), ptr('B_w_uv')
                region(wq, 8 * MB, 1 * MB, 1 * MB); region(uk, 4 * MB, 2 * MB, 1 * MB); region(uv, 4 * MB, 2 * MB, 1 * MB); region(wq, 8 * MB, 2 * MB, 1 * MB); xq(bx, 1)
                region(uk, 4 * MB, 3 * MB, 1 * MB); region(uv, 4 * MB, 3 * MB, 1 * MB); region(wq, 8 * MB, 3 * MB, 2 * MB); xq(bx, 2)
                region(wa, 6 * MB, 0, 1 * MB); xq(ax, 0); region(wq, 8 * MB, 5 * MB, 2 * MB); xq(bx, 3); region(wa, 6 * MB, 1 * MB, 1 * MB); xq(ax, 1); region(wq, 8 * MB, 7 * MB, 1 * MB)
                region(wa, 6 * MB, 2 * MB, 2 * MB); xq(ax, 2); region(wa, 6 * MB, 4 * MB, 1 * MB); xq(ax, 3); region(wa, 6 * MB, 5 * MB, 1 * MB); region(ptr('B_c_kv'), 2 * MB, 1 * MB, 1 * MB)
            if PO == '6':
                region(wq, 8 * MB, 1 * MB, 2 * MB); xq(bx, 1); region(wq, 8 * MB, 3 * MB, 2 * MB); xq(bx, 2); region(wq, 8 * MB, 5 * MB, 1 * MB)
                region(wa, 6 * MB, 0, 1 * MB); xq(ax, 0); region(wq, 8 * MB, 6 * MB, 1 * MB); xq(bx, 3); region(wa, 6 * MB, 1 * MB, 1 * MB); xq(ax, 1); region(wq, 8 * MB, 7 * MB, 1 * MB)
                region(wa, 6 * MB, 2 * MB, 1 * MB); region(ptr('B_c_kv'), 2 * MB, 1 * MB, 1 * MB)
            if PO == '7':
                region(wq, 8 * MB, 1 * MB, 2 * MB); xq(bx, 1); region(wq, 8 * MB, 3 * MB, 2 * MB); xq(bx, 2); region(wq, 8 * MB, 5 * MB, 2 * MB); xq(bx, 3); region(wq, 8 * MB, 7 * MB, 1 * MB)
                region(wa, 6 * MB, 2 * MB, 2 * MB); xq(ax, 2); region(wa, 6 * MB, 4 * MB, 1 * MB); xq(ax, 3); region(wa, 6 * MB, 5 * MB, 1 * MB); region(ptr('B_c_kv'), 2 * MB, 1 * MB, 1 * MB)
            uk, uv, ck = ptr('B_w_uk'), ptr('B_w_uv'), ptr('B_c_kv')
            def half2(pa, sa, oa, pb, sb, ob):
                k(f"s_cmp_lt_u32 {s(t2)}, {MB//2}\ns_cselect_b32 {s(srdD)}, {s(pa)}, {s(pb)}\ns_cselect_b32 {s(srdD+1)}, {s(pa+1)}, {s(pb+1)}\ns_mov_b32 {s(t0)}, {sb}\ns_cselect_b32 {s(srdD+2)}, {sa}, {s(t0)}")
                k(f"s_mov_b32 {s(t0)}, {(ob - MB//2) & 0xffffffff}\ns_cselect_b32 {s(t0)}, {oa}, {s(t0)}\ns_add_u32 {s(t0)}, {s(t0)}, {s(t2)}\nbuffer_load_dword {v(vDum)}, {v(T)}, {s(srdD,4)}, {s(t0)} offen{tsc}")
            H = MB // 2
            def rest8():
                region(wq, 8 * MB, 4 * MB, 1 * MB); xq(bx, 2); region(wa, 6 * MB, 0, 1 * MB); xq(ax, 0); region(wq, 8 * MB, 5 * MB, 1 * MB); region(wa, 6 * MB, 1 * MB, 1 * MB); xq(ax, 1)
                region(wq, 8 * MB, 6 * MB, 1 * MB); xq(bx, 3); region(wa, 6 * MB, 2 * MB, 1 * MB); region(wq, 8 * MB, 7 * MB, 1 * MB); xq(ax, 2)
                region(wa, 6 * MB, 3 * MB, 1 * MB); region(ck, 2 * MB, 1 * MB, 1 * MB); region(wa, 6 * MB, 4 * MB, 1 * MB); xq(ax, 3); region(wa, 6 * MB, 5 * MB, 1 * MB)
            if PO == '8':
                half2(wq, 8*MB, 2*H, uk, 4*MB, 2*H); half2(uv, 4*MB, 2*H, wq, 8*MB, 3*H); xq(bx, 0); half2(uk, 4*MB, 3*H, uv, 4*MB, 3*H); region(ck, 2 * MB, 0, 1 * MB)
                half2(wq, 8*MB, 4*H, uk, 4*MB, 4*H); xq(bx, 1); half2(uv, 4*MB, 4*H, wq, 8*MB, 5*H); half2(uk, 4*MB, 5*H, uv, 4*MB, 5*H)
                half2(wq, 8*MB, 6*H, uk, 4*MB, 6*H); half2(uv, 4*MB, 6*H, wq, 8*MB, 7*H); half2(uk, 4*MB, 7*H, uv, 4*MB, 7*H)
                rest8()
            if PO == '9':
                half2(wq, 8*MB, 3*H, uk, 4*MB, 3*H); half2(uv, 4*MB, 3*H, wq, 8*MB, 4*H); xq(bx, 1); half2(uk, 4*MB, 4*H, uv, 4*MB, 4*H)
                half2(wq, 8*MB, 5*H, uk, 4*MB, 5*H); half2(uv, 4*MB, 5*H, wq, 8*MB, 6*H); half2(uk, 4*MB, 6*H, uv, 4*MB, 6*H)
                half2(wq, 8*MB, 7*H, uk, 4*MB, 7*H); half2(uv, 4*MB, 7*H, wa, 6*MB, 0)
                rest8()
            if PO == 'a':
                half2(wq, 8*MB, 4*H, uk, 4*MB, 4*H); xq(bx, 1); half2(uv, 4*MB, 4*H, wq, 8*MB, 5*H); half2(uk, 4*MB, 5*H, uv, 4*MB, 5*H)
                half2(wq, 8*MB, 6*H, uk, 4*MB, 6*H); half2(uv, 4*MB, 6*H, wq, 8*MB, 7*H); half2(uk, 4*MB, 7*H, uv, 4*MB, 7*H)
                rest8()
            if PO == 'b':
                xq(bx, 1); half2(uk, 4*MB, 5*H, uv, 4*MB, 5*H); half2(wq, 8*MB, 5*H, wq, 8*MB, 6*H)
                half2(uk, 4*MB, 6*H, uv, 4*MB, 6*H); half2(uk, 4*MB, 7*H, uv, 4*MB, 7*H); half2(wq, 8*MB, 7*H, wa, 6*MB, 0)
                rest8()
            if PO == '3':
                region(wq, 8 * MB, 2 * MB, 1 * MB); xq(bx, 1); region(wq, 8 * MB, 3 * MB, 2 * MB); xq(bx, 2)
                region(wa, 6 * MB, 0, 1 * MB); xq(ax, 0); region(wq, 8 * MB, 5 * MB, 2 * MB); xq(bx, 3); region(wa, 6 * MB, 1 * MB, 1 * MB); xq(ax, 1); region(wq, 8 * MB, 7 * MB, 1 * MB)
                region(wa, 6 * MB, 2 * MB, 2 * MB); xq(ax, 2); region(wa, 6 * MB, 4 * MB, 1 * MB); xq(ax, 3); region(wa, 6 * MB, 5 * MB, 1 * MB); region(ptr('B_c_kv'), 2 * MB, 1 * MB, 1 * MB)
    if 'pwo1' in abl:
        k(f"s_load_dwordx2 {s(sEx,2)}, s[0:1], {KARG['B_w_o']}\ns_waitcnt lgkmcnt(0)")
        region(sEx, 8 * MB, 0, 8 * MB); region(ptr('A_wo'), 2 * MB, 0, 2 * MB)
    k(f"s_add_u32 {s(sXw)}, {s(sXw)}, {XS}\ns_branch {Lnp}")
    ool0 = k.lines; k.lines = save0
    if STP: ST.stamp(44)
    for st in range(2):
        if STP and st == 1: ST.stamp(46)
        for j in range(8):
            for t in dmaX(j): k(t)
        for t in rotXw(): k(t)
        if 'ta' in abl and TAP == 1 and st == 0:
            lt_ = k.newlab('tg'); k(f"s_cmp_eq_u32 {s(sIsP)}, 1\ns_cbranch_scc1 {lt_}"); t_go(); k.label(lt_)
        for j in range(8):
            for t in dmaW(j): k(t)
        for t in rotWw(): k(t)
        if 'ta' in abl and TAP == 2 and st == 0:
            lt_ = k.newlab('tg'); k(f"s_cmp_eq_u32 {s(sIsP)}, 1\ns_cbranch_scc1 {lt_}"); t_go(); k.label(lt_)
        if st == 0:
            if STP: ST.stamp(45)
            act_comp(P1)
            late_setup()
            k(f"s_mov_b32 {s(srdO)}, {s(sWS)}\ns_mov_b32 {s(srdO+1)}, {s(sWS+1)}\ns_mov_b32 {s(srdO+2)}, {WS_SIZE}\ns_mov_b32 {s(srdO+3)}, 0x20000")
            La2 = k.newlab('typea'); Lb2 = k.newlab('go2')
            k(f"s_cmp_ge_u32 {s(sIdx)}, 16\ns_cbranch_scc1 {La2}")
            tile_kv(1); kv_params(P1)
            k(f"s_branch {Lb2}")
            k.label(La2)
            tile_long(3); a_params(P1)
            k.label(Lb2)
            precompute()
            k(f"s_xor_b32 {s(sHasNext)}, {s(sIsP)}, 1\ns_add_u32 {s(sEvT)}, {s(sIsP)}, 3\ns_mov_b32 {s(sPend)}, -1")
            k(f"s_mul_i32 {s(sXs)}, {s(sIsP)}, {XS}\nv_add_u32 {v(vx)}, {s(sXs)}, {v(vx)}\nv_add_u32 {v(vx+1)}, {s(sXs)}, {v(vx+1)}")
            k(f"s_mov_b32 {s(srdD)}, {s(sDb)}\ns_mov_b32 {s(srdD+1)}, {s(sDb+1)}\ns_mov_b32 {s(srdD+2)}, 256\ns_mov_b32 {s(srdD+3)}, 0x20000")
            Lt = k.newlab('tok')
            k(f"s_lshl_b32 {s(t0)}, s2, 2\ns_add_u32 {s(t0)}, {s(t0)}, {s(sw)}\ns_cmp_lg_u32 {s(t0)}, 0\ns_cbranch_scc1 {Lt}")
            k(f"s_memrealtime {s(t2,2)}\ns_waitcnt lgkmcnt(0)\ns_or_b32 {s(t2)}, {s(t2)}, 1\nv_mov_b32 {v(vFlag)}, {s(t2)}\nv_mov_b32 {v(vFlag+1)}, {s(t3)}\ns_mov_b64 exec, 1")
            k(f"buffer_store_dwordx2 {v(vFlag,2)}, off, {s(srdD,4)}, 0 sc1\ns_mov_b64 exec, -1")
            k.label(Lt)
            Lt2 = k.newlab('tok')
            k(f"s_cmp_eq_u32 {s(sIsP)}, 0\ns_cbranch_scc1 {Lt2}\n{tok_load}\ns_waitcnt vmcnt(0)")
            tok_get()
            k.label(Lt2)
    ST.stamp(16 if STP else 2)
    k("s_waitcnt vmcnt(16)\ns_barrier")
    ST.stamp(17 if STP else 3)
    tailq = []
    w2 = rdWpair(2)
    for mb in range(8): tailq += [w2[mb], rdX(0, mb), rdX(1, mb)]
    for tag, ins in rdWpair(0) + rdWpair(1) + tailq: k(ins)
    for j in range(8):
        for x in dmaX(j): k(x)
    for x in rotXw(): k(x)
    k(f"s_mov_b32 {s(sFirst)}, 1")
    gS = sK; gSa = sK + 4; gSb = sK + 5; gSi = sK + 6; gSj = sK + 7
    k(f"s_mov_b32 {s(gS)}, {s(sWS)}\ns_mov_b32 {s(gS+1)}, {s(sWS+1)}\ns_mov_b32 {s(gS+2)}, 0\ns_mov_b32 {s(gS+3)}, 0x20000")
    k(f"s_mov_b32 {s(gSa)}, 0\ns_mov_b32 {s(gSb)}, 0\ns_mov_b32 {s(gSi)}, 0\ns_mov_b32 {s(gSj)}, 0")
    WB = 'wb' in abl
    GA = 31; SERP = 'noserp' not in abl
    WG = [34 + 4 * i for i in range(8)]
    XG = [68, 76, 84, 92, 100, 108, 116, 124]
    SG = [10, 16, 22, 28, 72, 80, 88, 94]
    NTR = 3
    def item(lst):
        pre = lst[0].split("\n")[0] if lst[0].startswith("s_add_u32 m0") else None
        ins = [x for x in lst if x.startswith("buffer_")][0]
        post = lst[-1] if not lst[-1].startswith("buffer_") else None
        return pre, ins, post
    def body(swp, kind):
        tr = LgkmTracker([tag for tag, _ in tailq])
        rd = {}; first = {}; head = {}; vfx = {}
        items = [(item(dmaX(j)), g) for j, g in enumerate(XG)] + [(item(dmaW(j)), g) for j, g in enumerate(WG)]
        if kind < NTR:
            for i, g in enumerate(SG):
                post = f"s_add_u32 {s(gSa)}, {s(gSa)}, {s(gSj)}" if i < 7 else f"s_add_u32 {s(gSb)}, {s(gSb)}, {s(gSi)}\ns_mov_b32 {s(gSa)}, {s(gSb)}"
                items.append(((None, f"buffer_store_dwordx4 {a(STASH + 4*(kind*8+i), 4)}, {v(vSt)}, {s(gS,4)}, {s(gSa)} offen{sfx}", post), g))
        for (pre, ins, post), g in items:
            assert g not in head, g
            head[g] = ins; first[g] = None
        first[GA] = None
        busy = set(XG) | set(WG) | set(SG)
        def put_first(g, x):
            while g in first: g += 1
            assert g < 126, x
            first[g] = x; return g
        def put_reads(g, its, stride):
            for x in its:
                while g in busy or g in rd: g += 1
                rd[g] = x; g += stride
        for (pre, ins, post), g in items:
            if pre: assert g - 1 not in first; first[g - 1] = pre
        for (pre, ins, post), g in items:
            if post: put_first(g + 1, post)
        put_reads(0, rdWpair(3), 1)
        put_reads(GA + 1, rdWpair(0), 3)
        put_reads(64, rdWpair(1), 3)
        for mb in range(8):
            put_reads(96 + 4 * mb + 1, [w2[mb]], 1)
            if mb < 7: put_reads(96 + 4 * mb + 3, [rdX(0, mb), rdX(1, mb)], 1)
        assert [rd[g][1] for g in sorted(rd) if g >= 96] == [x[1] for x in tailq[:22]], "tail order"
        gg = 12
        for nb in range(0, 8, 2):
            while gg in busy: gg += 1
            vfx[gg] = [f"v_xor_b32 {v(vw+nb)}, {s(sWx)}, {v(vw+nb)}", f"v_xor_b32 {v(vw+nb+1)}, {s(sWx)}, {v(vw+nb+1)}"]; gg += 1
        g = put_first(36, f"s_add_u32 {s(sXs)}, {s(sXs)}, {XS}")
        g = put_first(g + 1, f"s_cmp_ge_u32 {s(sXs)}, {3*XS}\ns_cselect_b32 {s(sXd)}, {-2*XS & 0xffffffff}, {s(sXSc)}\ns_cselect_b32 {s(sXs)}, 0, {s(sXs)}")
        assert g < 60 and 60 not in rd and 60 not in busy
        vfx[60] = [f"v_add_u32 {v(vx)}, {s(sXd)}, {v(vx)}", f"v_add_u32 {v(vx+1)}, {s(sXd)}, {v(vx+1)}"]
        put_first(WG[4] + 1, rotWw()[0])
        g = put_first(XG[4] + 1, f"s_add_u32 {s(sXw)}, {s(sXw)}, {XS}")
        g = put_first(g + 1, f"s_cmp_ge_u32 {s(sXw)}, {3*XS}\ns_cselect_b32 {s(t0)}, {3*XS}, 0")
        g = put_first(g + 1, f"s_sub_u32 {s(sXw)}, {s(sXw)}, {s(t0)}")
        put_first(112, f"s_sub_u32 {s(sCnt)}, {s(sCnt)}, 1")
        if kind == NTR: first[126] = f"s_cmp_gt_u32 {s(sCnt)}, {s(sEvT)}"
        vm = 8 + (4 if kind < NTR else 0) + (4 if 1 <= kind < NTR else 0)
        i = 0
        for rp in range(4):
            for mb in range(8):
                for n_, nb in enumerate((2 * rp, 2 * rp + 1) if (mb % 2 == 0 or not SERP) else (2 * rp + 1, 2 * rp)):
                    for k_, kk in enumerate((0, 1) if (n_ == 0 or not SERP) else (1, 0)):
                        w = tr.need({('x', mb), ('w', nb)})
                        if i == GA:
                            tr.q = []
                            if STP: k(f"s_memtime {s(sStamp,2)}")
                            if kind == 0 and 'nolen' not in abl:
                                lw = k.newlab('w')
                                k(f"s_waitcnt vmcnt({vm+32}) lgkmcnt(0)\ns_cmp_eq_u32 {s(sFirst)}, 2\ns_cbranch_scc1 {lw}\ns_waitcnt vmcnt({vm})"); k.label(lw)
                            else: k(f"s_waitcnt vmcnt({vm}) lgkmcnt(0)")
                            if WB and kind == 0:
                                lw = k.newlab('w')
                                k(f"s_cmp_lg_u32 {s(sFirst)}, 2\ns_cbranch_scc1 {lw}\ns_waitcnt vmcnt(4)"); k.label(lw)
                        elif w: k(w)
                        A_, B_ = a(fragW(kk, nb), 4), a(fragX(kk, mb), 4)
                        d = r(acc(nb, mb), 0, 4)
                        if swp:
                            A_, B_ = B_, A_
                            d = r(acc(mb, nb), 0, 4)
                        c = "0" if (kind == 0 and k_ == 0) else d
                        k(f"v_mfma_f32_16x16x32_bf16 {d}, {A_}, {B_}, {c}")
                        if i == GA: k("s_barrier")
                        if i == GA and STP: k(f"v_cmp_eq_u32 vcc, {s(sStp)}, {v(vLane)}\nv_mov_b32 {v(vT+7)}, {s(sStamp)}\ns_add_u32 {s(sStp)}, {s(sStp)}, 1\nv_cndmask_b32 {v(vStamp)}, {v(vStamp)}, {v(vT+7)}, vcc")
                        if first.get(i): k(first[i])
                        if i in rd: k(rd[i][1]); tr.issue(rd[i][0])
                        if i in head: k(head[i])
                        for x in vfx.get(i, []): k(x)
                        if i == 127:
                            for tag, ins in tailq[22:]: k(ins)
                        i += 1

    outl = []; hooks = []
    INL = 'noinl' not in abl
    Ltile = k.newlab('tile'); Lepi = k.newlab('epi')
    k.label(Ltile)
    Lsw = k.newlab('swp')
    k(f"s_mov_b32 {s(sCnt)}, {s(CP['nk'])}")
    k(f"s_cmp_eq_u32 {s(CP['swp'])}, 1\ns_cbranch_scc1 {Lsw}")
    for swp in (0, 1):
        if swp: k.label(Lsw)
        for kind in range(NTR):
            body(swp, kind)
            if kind in ((0, 2) if WB else (1,)):
                Lh = k.newlab('hook'); Lhr = k.newlab('hookr')
                k(f"s_cmp_eq_u32 {s(sFirst)}, 2\ns_cbranch_scc1 {Lh}"); k.label(Lhr)
                hooks.append((Lh, Lhr, kind))
        Lloop = k.newlab('loop'); Lsw2 = k.newlab('dosw')
        align()
        k.label(Lloop)
        outl.append((Lsw2, Lloop))
        body(swp, NTR)
        if INL:
            k(f"s_cbranch_scc1 {Lloop}\ns_cmp_eq_u32 {s(sCnt)}, 0\ns_cbranch_scc1 {Lepi}")
            k.lines.append(f"@@{Lsw2}")
        else:
            k(f"s_cbranch_scc1 {Lloop}\ns_cmp_lg_u32 {s(sCnt)}, 0\ns_cbranch_scc1 {Lsw2}")
            if not swp: k(f"s_branch {Lepi}")
    k.label(Lepi)
    Lepf = k.newlab('epf'); Leps = k.newlab('eps'); Llast = k.newlab('last'); Lp = k.newlab('ptype'); Linit = k.newlab('init'); Lkv = k.newlab('kvl')
    k(f"s_cmp_eq_u32 {s(sHasNext)}, 0\ns_cbranch_scc1 {Llast}")
    ST.stamp(4)
    tok_get()
    Lq1 = k.newlab('q1')
    if 'qtr' not in abl:
        Lq0 = k.newlab('q0')
        k(f"s_cmp_ge_u32 {s(sIdx)}, 16\ns_cbranch_scc1 {Lq0}")
        k(f"s_call_b64 {s(sRe,2)}, {Lepf}\ns_mov_b32 {s(sPend)}, {s(CP['flag'])}\ns_mov_b32 {s(sFirst)}, 2")
        ST.stamp(5)
        k(f"s_branch {Lq1}")
        k.label(Lq0)
    k(f"s_call_b64 {s(sRe,2)}, {Leps}")
    ST.stamp(5)
    k(f"s_mov_b32 {s(sPend)}, {s(CP['flag'])}\ns_add_u32 {s(gSa)}, {s(CP['obase'])}, {s(CP['Si'])}\ns_mov_b32 {s(gSb)}, {s(gSa)}\ns_mov_b32 {s(gSi)}, {s(CP['Si'])}\ns_mov_b32 {s(gSj)}, {s(CP['Sj'])}\ns_mov_b32 {s(gS+2)}, {WS_SIZE}")
    k.label(Lq1)
    dbgmax(10)
    act_comp(P1)
    k(f"s_sub_u32 {s(sEvT)}, {s(CP['nk'])}, 5\ns_max_u32 {s(sEvT)}, {s(sEvT)}, 4\ns_mov_b32 {s(sHasNext)}, 0\ns_branch {Ltile}")
    k.label(Llast)
    ST.stamp(6)
    k.label(Lkv)
    dbgmax(12, True)
    k("s_waitcnt lgkmcnt(0)")
    QL = 'qlate' in abl; QS = 'noqs' not in abl
    if QL:
        k("s_waitcnt vmcnt(16)")
        early_check('q'); q_loads((0, 1, 2, 3))
    save = k.lines; k.lines = []
    for Lh, Lhr, kind in hooks:
        k.label(Lh)
        if kind == 0:
            k(f"s_cmp_lg_u32 {s(sw)}, 0\ns_cbranch_scc1 {Lhr}\nbuffer_wbl2 sc1\ns_branch {Lhr}")
            continue
        publish(sPend)
        k(f"s_mov_b32 {s(sPend)}, -1\ns_branch {Lhr}")
    def either(fn, fp):
        la = k.newlab('ea'); lb = k.newlab('eb')
        k(f"s_cmp_eq_u32 {s(sIsP)}, 1\ns_cbranch_scc1 {la}")
        fn()
        k.label(lb)
        alt.append((la, lb, fp))
    alt = []
    for Lsw2, Lns in outl:
        k.label(Lsw2)
        l_last = k.newlab('x'); l4 = k.newlab('x'); l3 = k.newlab('x'); l2 = k.newlab('x'); l1 = k.newlab('x'); l_p = k.newlab('x'); l_w = k.newlab('x')
        k(f"s_cmp_eq_u32 {s(sHasNext)}, 0\ns_cbranch_scc1 {l_last}")
        k(f"s_cmp_lg_u32 {s(sCnt)}, 3\ns_cbranch_scc1 {l_w}")
        act_load(P1, which="x")
        k(f"{tok_load}\ns_branch {Lns}")
        k.label(l_w)
        act_load(P1, which="w")
        k(f"s_mov_b32 {s(sEvT)}, 0\ns_branch {Lns}")
        k.label(l_last)
        k(f"s_cmp_le_u32 {s(sCnt)}, 4\ns_cbranch_scc1 {l4}")
        if 'lp' in abl: ST.stamp(10)
        publish(sPend)
        k(f"s_mov_b32 {s(sPend)}, -1\ns_mov_b32 {s(sEvT)}, 4\ns_branch {Lns}")
        k.label(l4)
        k(f"s_cmp_lg_u32 {s(sCnt)}, 4\ns_cbranch_scc1 {l3}")
        if 'lp' in abl: ST.stamp(11)
        either(lambda: early_load(), lambda: early_load('kv'))
        if 'cpf2' in abl:
            k(f"s_sub_u32 {s(t1)}, {s(sIdx)}, 16\ns_cmp_ge_u32 {s(t1)}, 3\ns_cbranch_scc1 {Lns}\ns_lshl_b32 {s(t1)}, {s(t1)}, 2\ns_add_u32 {s(t1)}, {s(t1)}, {s(sw)}")
            code_prefetch(k, sEx, name, name + "_end", t1, vLane, T, vDum, t0)
        k(f"s_branch {Lns}")
        k.label(l3)
        k(f"s_waitcnt vmcnt(16)\ns_cmp_lg_u32 {s(sCnt)}, 3\ns_cbranch_scc1 {l2}")
        either(lambda: (early_check('all'), q_loads((0, 1, 2, 3), range(0, 6))), lambda: early_check('kv'))
        kv_cursor(sXoff, srdX, 0)
        for i in range(2): k(f"v_mov_b32 {v(vX+i)}, {v(vSt)}")
        k(f"s_branch {Lns}")
        k.label(l2)
        k(f"s_cmp_lg_u32 {s(sCnt)}, 2\ns_cbranch_scc1 {l1}")
        either(lambda: q_loads((0, 1, 2, 3), range(6, 11)), lambda: early_load('q'))
        kv_cursor(sXoff, srdX, 1); kv_cursor(sWoff, srdW, 3)
        for i in range(4): k(f"v_mov_b32 {v(vW+i)}, {v(vSt)}")
        k(f"s_branch {Lns}")
        k.label(l1)
        either(lambda: q_loads((0, 1, 2, 3), range(11, 16)), lambda: (early_check('q'), q_loads((0, 1, 2, 3))))
        kv_cursor(sXoff, srdX, 2); kv_cursor(sWoff, srdW, 4)
        k(f"s_branch {Lns}")
        for la, lb, fp in alt:
            k.label(la); fp(); k(f"s_branch {lb}")
        alt.clear()
    k.label(Leps)
    Lns3 = k.newlab('ns3')
    k("s_nop 3")
    for scaled in (0,):
        k(f"s_mov_b32 {s(t0)}, {s(CP['obase'])}")
        for p_ in range(32):
            sp = acc(2 * (p_ >> 3), p_ & 7)
            if sp[0] == 'a':
                for i in range(8): k(f"v_accvgpr_read_b32 {v(vT+i)}, {a(sp[1]+i)}")
                b = vT
            else:
                b = sp[1]
            if scaled:
                for i in range(0, 8, 2): k(f"v_pk_mul_f32 {v(b+i,2)}, {v(b+i,2)}, {s(t2,2)}")
            for i in range(4): k(f"v_cvt_pk_bf16_f32 {v(b+i)}, {v(b+2*i)}, {v(b+2*i+1)}")
            if p_ < 8: k(f"buffer_store_dwordx4 {v(b,4)}, {v(vSt)}, {s(srdO,4)}, {s(t0)} offen{sfx}\ns_add_u32 {s(t0)}, {s(t0)}, {s(CP['Sj'])}")
            else:
                for i in range(4): k(f"v_accvgpr_write_b32 {a(STASH + 4*(p_-8) + i)}, {v(b+i)}")
        k(f"s_setpc_b64 {s(sRe,2)}")
    k.label(Lepf)
    Lnoscale = k.newlab('noscale')
    k("s_nop 7")
    for scaled in (1,):
        k(f"s_mov_b32 {s(t1)}, {s(CP['obase'])}\ns_mov_b32 {s(t2)}, {s(CP['scale'])}\ns_mov_b32 {s(t3)}, {s(CP['scale'])}")
        for e in range(4):
            k(f"s_mov_b32 {s(t0)}, {s(t1)}")
            for j in range(8):
                sp = acc(2 * e, j)
                if sp[0] == 'a':
                    for i in range(8): k(f"v_accvgpr_read_b32 {v(vT+i)}, {a(sp[1]+i)}")
                    b = vT
                else:
                    b = sp[1]
                if scaled:
                    for i in range(0, 8, 2): k(f"v_pk_mul_f32 {v(b+i,2)}, {v(b+i,2)}, {s(t2,2)}")
                for i in range(4):
                    k(f"v_cvt_pk_bf16_f32 {v(b+i)}, {v(b+2*i)}, {v(b+2*i+1)}")
                k(f"buffer_store_dwordx4 {v(b,4)}, {v(vSt)}, {s(srdO,4)}, {s(t0)} offen{'' if (scaled and WB) else sfx}")
                k(f"s_add_u32 {s(t0)}, {s(t0)}, {s(CP['Sj'])}")
                if sp[0] == 'a': k("s_nop 1")
            k(f"s_add_u32 {s(t1)}, {s(t1)}, {s(CP['Si'])}")
        k(f"s_setpc_b64 {s(sRe,2)}")
    Lepl = k.newlab('epl')
    k.label(Lepl)
    SORD = list(range(20, 32)) + list(range(16, 20))
    MIX = 'nomix' not in abl
    Lns2 = k.newlab('ns2')
    k(f"s_mov_b32 {s(t2)}, {s(CP['scale'])}\ns_mov_b32 {s(t3)}, {s(CP['scale'])}\ns_cmp_eq_u32 {s(CP['scale'])}, 0\ns_cbranch_scc1 {Lns2}")
    for scaled in (1, 0):
        if not scaled: k.label(Lns2)
        k(f"s_mov_b32 {s(t0)}, {s(CP['obase'])}")
        for p_ in ([x for pr in zip(range(16), SORD) for x in pr] if MIX else list(range(16)) + SORD):
            e, j = p_ >> 3, p_ & 7
            sp = acc(2 * e, j)
            if sp[0] == 'a':
                for i in range(8): k(f"v_accvgpr_read_b32 {v(vT+i)}, {a(sp[1]+i)}")
                b = vT
            else:
                b = sp[1]
            if scaled:
                for i in range(0, 8, 2): k(f"v_pk_mul_f32 {v(b+i,2)}, {v(b+i,2)}, {s(t2,2)}")
            d = b if p_ < 16 else 192 + 4 * SORD.index(p_)
            for i in range(4):
                k(f"v_cvt_pk_bf16_f32 {v(d+i)}, {v(b+2*i)}, {v(b+2*i+1)}")
            if p_ < 16:
                k(f"buffer_store_dwordx4 {v(b,4)}, {v(vSt)}, {s(srdO,4)}, {s(t0)} offen{sfx}")
                k(f"s_add_u32 {s(t0)}, {s(t0)}, {s(CP['Sj'])}" if p_ != 7 else f"s_add_u32 {s(t0)}, {s(CP['obase'])}, {s(CP['Si'])}")
                if MIX:
                    for i in range(8): k(f"v_accvgpr_write_b32 {a(8*p_+i)}, 0")
        k(f"s_setpc_b64 {s(sRe,2)}")
    ool = k.lines; k.lines = save

    S_ = Regs('s', 24, 90)
    srdK = S_.alloc('srdK', 4, 4); srdV = S_.alloc('srdV', 4, 4)
    sh = S_.alloc('h'); snA = S_.alloc('na'); snB = S_.alloc('nb'); srdS = S_.alloc('srdS', 4, 4); sSa = S_.alloc('sa'); srdF = S_.alloc('srdF', 4, 4); sPw = S_.alloc('pw', 4, 2); sL2 = S_.alloc('l2'); sPB = S_.alloc('pb'); sPf = CP['flag']; sOut = S_.alloc('out', 2, 2)
    sKo = S_.alloc('ko'); sVo = S_.alloc('vo')
    sC1 = S_.alloc('c1'); sMK = S_.alloc('mk'); sW4 = S_.alloc('w4')
    sVis = S_.alloc('vis', 2, 2); sAbs = S_.alloc('abs'); sThr = S_.alloc('thr'); sThC = S_.alloc('thc')
    sE = S_.alloc('e', 6)
    sRa = S_.alloc('ra', 2, 2); sM0 = S_.alloc('m0', 2, 2)
    sQ = S_.alloc('qoff', 2); sLo = S_.alloc('lo', 3)
    V = Regs('v', 6, 64)
    vKV = V.alloc('kv'); vDma = V.alloc('dma'); vChk = V.alloc('chk'); vNinf = V.alloc('ninf'); vFo = V.alloc('fo'); vFx = V.alloc('fx')
    vL = V.alloc('l', 4, 4); vTB = V.alloc('tb', 4)
    vE = V.alloc('e', 8, 4); vTS = V.alloc('ts', 16, 4); vOne = V.alloc('one', 4, 4)
    def TS(qt): return vTS + 4 * qt
    vT = V.alloc('t', 16, 4)
    def Sreg(par, qt): return 64 + par * 32 + qt * 8
    def Preg(par, qt): return 128 + par * 16 + qt * 4
    def Nreg(qt): return 160 + qt * 8
    def Oreg(qt, db): return qt * 32 + db * 4
    def KF(n): return 192 + n * 4
    def VF(n): return 224 + n * 4
    T = vT; vDm2 = 255
    AB = (0, 1, 2, 3); A_ = (0, 1)
    MF = "v_mfma_f32_16x16x32_bf16"
    def xlane(regs, tmps, op):
        for sw_ in ("v_permlane32_swap_b32", "v_permlane16_swap_b32"):
            for x, y in zip(regs, tmps): k(f"v_mov_b32 {v(y)}, {v(x)}")
            k("s_nop 1")
            for x, y in zip(regs, tmps): k(f"{sw_} {v(x)}, {v(y)}")
            k("s_nop 1")
            for x, y in zip(regs, tmps): k(f"{op} {v(x)}, {v(x)}, {v(y)}")

    KS = 'noks' not in abl
    LQ, LK, LV = (196, 212, 232) if KS else (192, 208, 228)
    vD = 192; vV = vFx; sP8 = sL2
    if KS: assert all(x[0] - x[1] >= 2 for x in ITEMS)
    sLa = S_.alloc('la', 7)
    def local_setup():
        k(f"s_and_b32 {s(t0)}, s2, 7\ns_lshl_b32 {s(t0)}, {s(t0)}, 4\ns_lshl_b32 {s(t1)}, {s(sw)}, 2\ns_add_u32 {s(sLo)}, {s(t0)}, {s(t1)}")
        k(f"s_lshr_b32 {s(t2)}, s2, 3\ns_lshl_b32 {s(t2)}, {s(t2)}, 17")
        k(f"s_lshl_b32 {s(t0)}, {s(sLo)}, 10\ns_add_u32 {s(t0)}, {s(t0)}, {s(t2)}\ns_add_u32 {s(sLa)}, {s(t0)}, {WS_QA}\ns_add_u32 {s(sLa+1)}, {s(t0)}, {WS_KA}")
        k(f"s_and_b32 {s(sLo+1)}, {s(sLo)}, 63\ns_cmp_eq_u32 {s(sLo+1)}, 0\ns_cselect_b32 {s(t3)}, 0, 1024\ns_sub_u32 {s(sLa+2)}, {s(sLa+1)}, {s(t3)}")
        k(f"s_lshl_b32 {s(t0)}, {s(sLo)}, 9\ns_add_u32 {s(t0)}, {s(t0)}, {s(t2)}\ns_add_u32 {s(sLa+3)}, {s(t0)}, {WS_VA}\ns_sub_u32 {s(sLa+4)}, {s(sLa+3)}, {s(t3)}")
        k(f"s_add_u32 {s(sLa+5)}, {s(sLa+3)}, 65536\ns_add_u32 {s(sLa+6)}, {s(sLa+4)}, 65536")
    def local_loads():
        def ld(dst, so, off): return (None, f"buffer_load_dwordx4 {v(dst,4)}, {v(vL16)}, {s(srdO,4)}, {s(so)} offen offset:{off} sc1", None)
        o = [ld(LQ+4*j, sLa, j*1024) for j in range(4)] + [ld(LK+4+4*j, sLa+1, j*1024) for j in range(4)] + [ld(LK, sLa+2, 0)]
        for db in range(2):
            o += [ld(LV+12*db+4+4*j, sLa+3+2*db, j*1024) for j in range(2)] + [ld(LV+12*db, sLa+4+2*db, 0)]
        return o
    C0, C1, CZ, Mx, My, Sb, Ts = 128, 132, 136, 140, 144, 148, 20
    def local_pre():
        k(f"v_and_b32 {v(T)}, 15, {v(vLane)}\nv_lshrrev_b32 {v(T+1)}, 4, {v(vLane)}\nv_lshlrev_b32 {v(T+1)}, 2, {v(T+1)}\nv_sub_u32 {v(T)}, {v(T)}, {v(T+1)}")
        for r_ in range(4):
            k(f"v_cmp_ge_i32 vcc, {r_-9}, {v(T)}\nv_subrev_u32 {v(T+2)}, {r_}, {v(T)}\nv_cmp_ge_u32 {s(sM0,2)}, 7, {v(T+2)}\ns_nop 0")
            k(f"v_cndmask_b32 {v(C0+r_)}, {v(vNinf)}, 0, vcc\nv_cndmask_b32 {v(C1+r_)}, {v(vNinf)}, 0, {s(sM0,2)}")
        k(f"s_cmp_eq_u32 {s(sLo+1)}, 0\ns_cselect_b64 vcc, -1, 0\ns_nop 0")
        for r_ in range(4): k(f"v_cndmask_b32 {v(CZ+r_)}, {v(C0+r_)}, {v(vNinf)}, vcc")
        k(f"s_lshl_b32 {s(t0)}, {s(sLo)}, 10\ns_lshr_b32 {s(t1)}, s2, 3\ns_lshl_b32 {s(t1)}, {s(t1)}, 17\ns_add_u32 {s(t0)}, {s(t0)}, {s(t1)}\ns_add_u32 {s(sLo)}, {s(t0)}, {WS_OA}")
    def local_stream():
        save_ = k.lines; k.lines = []
        U = range(4); PB = LQ
        for u in U:
            k(f"{MF} {v(Sb+8*u,4)}, {v(LK+4*u,4)}, {v(LQ+4*u,4)}, {v(CZ if u == 0 else C0,4)}")
            k(f"{MF} {v(Sb+8*u+4,4)}, {v(LK+4*u+4,4)}, {v(LQ+4*u,4)}, {v(C1,4)}")
        for _ in range(4): k("s_nop 1")
        for u in U: k(f"v_max3_f32 {v(Mx+u)}, {v(Sb+8*u)}, {v(Sb+8*u+1)}, {v(Sb+8*u+2)}")
        for u in U: k(f"v_max3_f32 {v(Mx+u)}, {v(Mx+u)}, {v(Sb+8*u+3)}, {v(Sb+8*u+4)}")
        for u in U: k(f"v_max3_f32 {v(Mx+u)}, {v(Mx+u)}, {v(Sb+8*u+5)}, {v(Sb+8*u+6)}")
        for u in U: k(f"v_max_f32 {v(Mx+u)}, {v(Mx+u)}, {v(Sb+8*u+7)}")
        xlane([Mx + u for u in U], [My + u for u in U], "v_max_f32")
        for u in U:
            for i in range(8): k(f"v_sub_f32 {v(Sb+8*u+i)}, {v(Sb+8*u+i)}, {v(Mx+u)}")
        for u in U:
            for i in range(8): k(f"v_exp_f32 {v(Sb+8*u+i)}, {v(Sb+8*u+i)}")
        for u in U:
            for i in range(4): k(f"v_cvt_pk_bf16_f32 {v(PB+4*u+i)}, {v(Sb+8*u+2*i)}, {v(Sb+8*u+2*i+1)}")
        k("s_nop 1")
        for u in U: k(f"{MF} {v(Ts+4*u,4)}, {v(vOne,4)}, {v(PB+4*u,4)}, 0")
        for u in U:
            for db in range(2): k(f"{MF} {v(Sb+8*u+4*db,4)}, {v(LV+12*db+2+2*u,4)}, {v(PB+4*u,4)}, 0")
        for u in U: k(f"v_rcp_f32 {v(Mx+u)}, {v(Ts+4*u)}")
        k("s_nop 1\ns_nop 1")
        for u in U:
            for i in range(8): k(f"v_mul_f32 {v(Sb+8*u+i)}, {v(Sb+8*u+i)}, {v(Mx+u)}")
            for i in range(4): k(f"v_cvt_pk_bf16_f32 {v(Sb+8*u+i)}, {v(Sb+8*u+2*i)}, {v(Sb+8*u+2*i+1)}")
            k(f"buffer_store_dwordx4 {v(Sb+8*u,4)}, {v(vL16)}, {s(srdO,4)}, {s(sLo)} offen offset:{u*1024}{sfx}")
        out = [x.strip() for x in k.lines]; k.lines = save_
        return out

    INI = []; k.collect = INI
    head_ids()
    k(f"s_mov_b32 {s(sh)}, {s(t2)}\ns_bfe_u32 {s(snA)}, {TABA}, {s(t3)}\ns_add_u32 {s(snA)}, {s(snA)}, 1\ns_bfe_u32 {s(snB)}, {TABB}, {s(t3)}\ns_add_u32 {s(snB)}, {s(snB)}, 1")
    k(f"s_lshl_b32 {s(sW4)}, {s(sw)}, 12\nv_add_u32 {v(vDma)}, {s(sW4)}, {v(vL16)}")
    k(f"s_lshl_b32 {s(t0)}, {s(snB)}, 2\ns_lshl_b32 {s(t1)}, {s(snA)}, 2\ns_lshl_b32 {s(srdK+2)}, {s(t1)}, 13\ns_mov_b32 {s(srdV+2)}, {s(srdK+2)}")
    k(f"s_sub_u32 {s(sE)}, {s(t0)}, 4\ns_add_u32 {s(sE)}, {s(sE)}, {s(sw)}\ns_add_u32 {s(sE+1)}, {s(sE)}, 1\ns_mov_b32 {s(sE+2)}, {s(t0)}")
    k(f"s_sub_u32 {s(sE+3)}, {s(t1)}, 4\ns_add_u32 {s(sE+3)}, {s(sE+3)}, {s(sw)}\ns_add_u32 {s(sE+4)}, {s(sE+3)}, 1\ns_mov_b32 {s(sE+5)}, {s(t1)}")
    EEX = 'noeex' not in abl and not KS
    if KS: k(f"s_and_b32 {s(t0)}, {s(sw)}, 1\ns_sub_u32 {s(sE+3)}, {s(sE+3)}, {s(t0)}\ns_add_u32 {s(sE+4)}, {s(sE+3)}, 2\ns_lshl_b32 {s(sP8)}, {s(t0)}, 13")
    if EEX: k(f"s_cmp_lt_u32 {s(sw)}, 2\ns_cselect_b32 {s(t0)}, 2, 0\ns_sub_u32 {s(sE+5)}, {s(sE+5)}, {s(t0)}")
    k(f"s_mov_b32 {s(srdK+3)}, 0x20000\ns_mov_b32 {s(srdV+3)}, 0x20000\ns_lshl_b32 {s(sLo+2)}, {s(sh)}, 19")
    k(f"s_add_u32 {s(t0)}, {s(sLo+2)}, {WS_KB}\ns_add_u32 {s(srdK)}, {s(sWS)}, {s(t0)}\ns_addc_u32 {s(srdK+1)}, {s(sWS+1)}, 0")
    k(f"s_add_u32 {s(t0)}, {s(sLo+2)}, {WS_VB}\ns_add_u32 {s(srdV)}, {s(sWS)}, {s(t0)}\ns_addc_u32 {s(srdV+1)}, {s(sWS+1)}, 0")
    def dmaK(j): return f"buffer_load_dwordx4 {v(vDma)}, {s(srdK,4)}, {s(sKo)} offen offset:{j*1024}{ksc} lds"
    def dmaV(j): return f"buffer_load_dwordx4 {v(vDma)}, {s(srdV,4)}, {s(sVo)} offen offset:{j*1024}{ksc} lds"
    def dma_group():
        g = [(f"s_mov_b32 m0, {s(sMK)}", dmaK(0), None), (None, dmaK(1), None), (None, dmaK(2), None), (None, dmaK(3), f"s_add_u32 {s(sKo)}, {s(sKo)}, {STG}"),
             (f"s_add_u32 m0, {s(sMK)}, {STG}", dmaV(0), None), (None, dmaV(1), None), (None, dmaV(2), None), (None, dmaV(3), f"s_add_u32 {s(sVo)}, {s(sVo)}, {STG}")]
        return g
    def emit_group(items):
        for pre, ins, post in items:
            if pre: k(pre + "\ns_nop 0")
            k(ins)
            if post: k(post)
    k.collect = None
    ST.stamp(7)
    k(f"v_mov_b32 {v(vKV)}, {v(vL16)}")
    for a_ in range(8): k(f"ds_read_b128 {a(KF(a_),4)}, {v(vKV)} offset:{a_*1024}")
    k(f"s_load_dwordx2 {s(sPw,2)}, s[0:1], {KARG['B_w_o']}\ns_load_dwordx2 {s(sPw+2,2)}, s[0:1], {KARG['A_wo']}\ns_load_dwordx2 {s(sOut,2)}, s[0:1], {KARG['out']}\ns_mov_b32 {s(srdF+3)}, 0x20000")
    k(f"s_call_b64 {s(sRe,2)}, {Lepl}\ns_mov_b32 {s(sPend)}, {s(CP['flag'])}\ns_mov_b32 {s(srdS+2)}, {WS_SIZE}")
    k.label(Linit)
    ST.stamp(10) if 'lp' not in abl else None
    k(f"s_mov_b32 {s(srdS)}, {s(sWS)}\ns_mov_b32 {s(srdS+1)}, {s(sWS+1)}\ns_mov_b32 {s(srdS+3)}, 0x20000")
    k(f"s_lshl_b32 {s(t0)}, {s(CP['Si'])}, 1\ns_add_u32 {s(CP['obase'])}, {s(CP['obase'])}, {s(t0)}\ns_lshl_b32 {s(t0)}, {s(CP['Sj'])}, 2\ns_add_u32 {s(sSa)}, {s(CP['obase'])}, {s(t0)}")
    k.collect = INI
    k(f"s_mov_b32 {s(sKo)}, {5*STG}\ns_mov_b32 {s(sVo)}, {4*STG}")
    k(f"v_mov_b32 {v(vNinf)}, 0xff800000\ns_mov_b32 {s(sThr)}, {f32bits(THR)}")
    k(f"s_lshl_b32 {s(t1)}, {s(sw)}, 1\ns_sub_u32 {s(t1)}, {s(t1)}, 8")
    k(f"s_lshl_b32 {s(sQ)}, {s(snA)}, 3\ns_add_u32 {s(sQ)}, {s(sQ)}, {s(t1)}\ns_lshl_b32 {s(sQ+1)}, {s(snB)}, 3\ns_add_u32 {s(sQ+1)}, {s(sQ+1)}, {s(t1)}")
    def stash_item(m):
        post = f"s_add_u32 {s(sSa)}, {s(sSa)}, {s(CP['Sj'])}"
        if m == 3: post = f"s_add_u32 {s(sSa)}, {s(CP['obase'])}, {s(CP['Si'])}"
        if m == 11: post = f"s_mov_b32 {s(sSa)}, {s(CP['obase'])}"
        return (None, f"buffer_store_dwordx4 {v(192+4*m,4)}, {v(vL16)}, {s(srdS,4)}, {s(sSa)} offen{sfx}", post)
    k(f"s_lshr_b32 {s(t0)}, {s(sh)}, 1\ns_lshl_b32 {s(t0)}, {s(t0)}, 7\ns_add_u32 {s(t0)}, {s(t0)}, {WS_FLAG + 32*128}\ns_lshr_b32 {s(t1)}, s2, 6\ns_lshl_b32 {s(t1)}, {s(t1)}, 8\ns_add_u32 {s(t1)}, {s(t1)}, {WS_FLAG + 48*128 - 64}")
    k(f"v_min_u32 {v(vFo)}, 31, {v(vLane)}\nv_lshlrev_b32 {v(vFo)}, 3, {v(vFo)}\nv_mov_b32 {v(vFx)}, {s(t0)}\nv_mov_b32 {v(vChk)}, {s(t1)}\nv_cmp_gt_u32 vcc, 8, {v(vLane)}\ns_nop 1\nv_cndmask_b32 {v(vFx)}, {v(vChk)}, {v(vFx)}, vcc\nv_add_u32 {v(vFo)}, {v(vFo)}, {v(vFx)}")
    if False:
        Lc3 = k.newlab('c3')
        k(f"s_lshl_b32 {s(t0)}, {s(sw)}, 8\ns_add_u32 {s(t0)}, {s(t0)}, s2\ns_cmp_ge_u32 {s(t0)}, 128\ns_cbranch_scc1 {Lc3}\ns_lshl_b32 {s(t0)}, {s(t0)}, 7\ns_add_u32 {s(t0)}, {s(t0)}, {WS_FLAG3}\nv_mov_b32 {v(vChk)}, 0\ns_mov_b64 exec, 1")
        k(f"buffer_store_dword {v(vChk)}, off, {s(srdO,4)}, {s(t0)} sc1\ns_mov_b64 exec, -1")
        k.label(Lc3)
    k(f"s_mov_b32 {s(sC1)}, 0")
    ZI = 80
    zrest = []
    if not MIX:
        for i in range(ZI): k(f"v_accvgpr_write_b32 {a(i)}, 0")
        zrest = [f"v_accvgpr_write_b32 {a(i)}, 0" for i in range(ZI, 128)]
    for i in range(4): k(f"v_mov_b32 {v(vL+i)}, 0\nv_mov_b32 {v(TS(i))}, 0\nv_mov_b32 {v(vOne+i)}, 0x3f803f80")
    def l2w():
        k(f"v_lshrrev_b32 {v(T+14)}, 3, {v(vLane)}\nv_lshlrev_b32 {v(T+14)}, 11, {v(T+14)}\nv_and_b32 {v(T+13)}, 7, {v(vLane)}\nv_lshl_add_u32 {v(T+14)}, {v(T+13)}, 7, {v(T+14)}")
        k(f"s_lshr_b32 {s(t0)}, s2, 3\ns_lshl_b32 {s(t0)}, {s(t0)}, 2\ns_add_u32 {s(t0)}, {s(t0)}, {s(sw)}\ns_lshl_b32 {s(t0)}, {s(t0)}, 14\ns_and_b32 {s(t1)}, s2, 1\ns_lshl_b32 {s(t1)}, {s(t1)}, 10\ns_add_u32 {s(t0)}, {s(t0)}, {s(t1)}")
        k(f"s_bitcmp1_b32 s2, 2\ns_cselect_b32 {s(t1)}, 0, {41*64*2048}\ns_mov_b32 {s(t2)}, {8*MB}\ns_cselect_b32 {s(srdF+2)}, {41*64*2048}, {s(t2)}\ns_cselect_b32 {s(t3)}, 0, {2*MB}\ns_add_u32 {s(t1)}, {s(t1)}, {s(t0)}")
        k(f"s_mov_b32 {s(srdF)}, {s(sPw)}\ns_mov_b32 {s(srdF+1)}, {s(sPw+1)}")
        L2W = []
        for r_ in ((2, 1, 0) if 'l2rev' in abl else (0, 1, 2)):
            L2W.append(f"s_add_u32 {s(t2)}, {s(t1)}, {r_*2*MB}\nbuffer_load_dword {v(vDm2)}, {v(T+14)}, {s(srdF,4)}, {s(t2)} offen")
        for x in L2W: k(x)
        k(f"s_mov_b32 {s(srdF)}, {s(sPw+2)}\ns_mov_b32 {s(srdF+1)}, {s(sPw+3)}\ns_mov_b32 {s(srdF+2)}, {s(t3)}\nbuffer_load_dword {v(vDm2)}, {v(T+14)}, {s(srdF,4)}, {s(t0)} offen")
    def events(which):
        for e in which:
            ln = k.newlab('e')
            if e >= 6:
                ln2 = k.newlab('e')
                fl = f"buffer_load_dwordx2 {v(vFlag,2)}, {v(vFo)}, {s(srdO,4)}, 0 offen sc1"
                fl2 = f"s_lshr_b32 {s(t0)}, {s(sh)}, 1\ns_lshl_b32 {s(t0)}, {s(t0)}, 7\ns_add_u32 {s(t0)}, {s(t0)}, {WS_FLAG + 11*8}\nv_min_u32 {v(vFa)}, 1, {v(vLane)}\nv_lshlrev_b32 {v(vFa)}, 5, {v(vFa)}\nbuffer_load_dwordx2 {v(vFlag,2)}, {v(vFa)}, {s(srdO,4)}, {s(t0)} offen sc1"
                def touch(p_, size):
                    if not TOUCH: return
                    k(f"s_mov_b32 {s(srdF)}, {s(p_)}\ns_mov_b32 {s(srdF+1)}, {s(p_+1)}\ns_mov_b32 {s(srdF+2)}, {size}\ns_lshl_b32 {s(t0)}, s2, 2\ns_add_u32 {s(t0)}, {s(t0)}, {s(sw)}\ns_lshl_b32 {s(t0)}, {s(t0)}, 13")
                    k(f"v_lshlrev_b32 {v(T+14)}, 7, {v(vLane)}\nbuffer_load_dword {v(vDm2)}, {v(T+14)}, {s(srdF,4)}, {s(t0)} offen")
                def dtouch(n):
                    lt = k.newlab('t')
                    k(f"s_cmp_ge_u32 s2, 96\ns_cbranch_scc1 {lt}\ns_lshl_b32 {s(t0)}, s2, 2\ns_add_u32 {s(t0)}, {s(t0)}, {s(sw)}\ns_add_u32 {s(t0)}, {s(t0)}, {n*384}\ns_cmp_lt_u32 {s(t0)}, 1024")
                    k(f"s_cselect_b32 {s(srdF)}, {s(sPw)}, {s(sPw+2)}\ns_cselect_b32 {s(srdF+1)}, {s(sPw+1)}, {s(sPw+3)}\ns_mov_b32 {s(t1)}, {2*MB}\ns_cselect_b32 {s(srdF+2)}, {8*MB}, {s(t1)}\ns_and_b32 {s(t0)}, {s(t0)}, 1023\ns_lshl_b32 {s(t0)}, {s(t0)}, 13")
                    k(f"v_lshlrev_b32 {v(T+14)}, 7, {v(vLane)}\nbuffer_load_dword {v(vDm2)}, {v(T+14)}, {s(srdF,4)}, {s(t0)} offen")
                    k.label(lt)
                def cpf3():
                    k(f"s_lshr_b32 {s(t1)}, s2, 3\ns_cmp_ge_u32 {s(t1)}, 3\ns_cbranch_scc1 {ln}\ns_lshl_b32 {s(t1)}, {s(t1)}, 2\ns_add_u32 {s(t1)}, {s(t1)}, {s(sw)}\ns_mov_b64 {s(sM0,2)}, vcc")
                    code_prefetch(k, sEx, name, name + "_end", t1, vLane, T + 14, vDm2, t0)
                    k(f"s_mov_b64 vcc, {s(sM0,2)}")
                def check(load, exp):
                    if 'nochk' in abl: return
                    lsp = k.newlab('spin')
                    k(f"s_waitcnt vmcnt({18 if TOUCH and 'dtouch' not in abl else 16})\ns_mov_b32 s3, {SPIN}")
                    k.label(lsp)
                    k(f"v_cmp_ne_u64 {s(sM0,2)}, {s(sTok,2)}, {v(vFlag,2)}\ns_nop 3\ns_cmp_eq_u64 {s(sM0,2)}, 0\ns_cbranch_scc1 {ln}\ns_sub_u32 s3, s3, 1\ns_cbranch_scc1 {ln}\ns_sleep 32\n{load}\ns_waitcnt vmcnt(0)\ns_branch {lsp}")
                if L2D:
                    k(f"s_cmp_lg_u32 {s(sAbs)}, {s(sL2)}\ns_cbranch_scc1 {ln2}")
                    l2w()
                    k.label(ln2)
                ln3 = k.newlab('e')
                k(f"s_cmp_lg_u32 {s(sAbs)}, {s(sPB)}\ns_cbranch_scc1 {ln3}")
                publish(sPf, T + 12)
                k(f"s_mov_b32 {s(sPf)}, -1")
                k.label(ln3)
                k(f"s_cmp_gt_u32 {s(sAbs)}, {U_CP if 'cpf2' in abl else U_CHK}\ns_cbranch_scc1 {ln}")
                acts = [(U_PUB, None), (U_MID, lambda: check(fl2, None)), (U_POLL, lambda: (k(fl), touch(sPw, 8 * MB))), (U_CHK, lambda: (touch(sPw + 2, 2 * MB), check(fl, v(vFx))))]
                if 'cpf2' in abl: acts.append((U_CP, cpf3))
                if 'dtouch' in abl:
                    acts = [(U_PUB, None), (10, lambda: dtouch(0)), (14, lambda: dtouch(1)), (18, lambda: (dtouch(2), check(fl2, None))), (U_POLL, lambda: (k(fl), dtouch(3))), (U_CHK, lambda: check(fl, None))]
                for u_, f_ in acts:
                    lx = k.newlab('e')
                    k(f"s_cmp_lg_u32 {s(sAbs)}, {u_}\ns_cbranch_scc1 {lx}")
                    if f_ is None:
                        k(fl2)
                        k(f"s_cmp_eq_u32 {s(sPend)}, -1\ns_cbranch_scc1 {ln}")
                        publish(sPend, T + 12)
                    else: f_()
                    k(f"s_branch {ln}")
                    k.label(lx)
                k.label(ln)
                continue
            k(f"s_cmp_lg_u32 {s(sAbs)}, {s(sE+e)}\ns_cbranch_scc1 {ln}")
            lo = 2 if e < 2 else 0
            for r_ in range(4):
                if e in (0, 3):
                    k(f"v_add_f32 {v(Nreg(lo)+r_)}, {v(Nreg(lo)+r_)}, {v(vTB+r_)}\nv_mov_b32 {v(Nreg(lo)+4+r_)}, {v(vNinf)}\nv_add_f32 {v(Nreg(lo+1)+4+r_)}, {v(Nreg(lo+1)+4+r_)}, {v(vTB+r_)}")
                else:
                    k(f"v_mov_b32 {v(Nreg(lo)+r_)}, {v(vNinf)}\nv_mov_b32 {v(Nreg(lo+1)+r_)}, {v(vNinf)}\nv_mov_b32 {v(Nreg(lo+1)+4+r_)}, {v(vNinf)}\nv_mov_b32 {v(Nreg(lo)+4+r_)}, {v(vNinf)}")
            if KS and e >= 3:
                if e == 3: k(f"s_bitcmp0_b32 {s(sw)}, 0\ns_cbranch_scc1 {ln}")
                for r_ in range(16): k(f"v_mov_b32 {v(Nreg(2)+r_)}, {v(vNinf)}")
            k("s_nop 0")
            k.label(ln)
    Lrs = {(p_, n_): k.newlab(f'rs{p_}{n_}') for p_ in range(2) for n_ in (2, 4)}
    local_setup()
    k(f"v_and_b32 {v(T)}, 15, {v(vLane)}\nv_lshrrev_b32 {v(T+1)}, 4, {v(vLane)}\nv_lshlrev_b32 {v(T+1)}, 2, {v(T+1)}\nv_sub_u32 {v(T)}, {v(T)}, {v(T+1)}")
    for r_ in range(4):
        k(f"v_cmp_le_i32 vcc, {r_}, {v(T)}\ns_nop 1\nv_cndmask_b32 {v(vTB+r_)}, {v(vNinf)}, 0, vcc")
    k(f"s_mov_b32 {s(sVis)}, {sum(1 << (u_-1) for u_ in (U_PUB, U_MID, U_POLL, U_CHK))}\ns_mov_b32 {s(sVis+1)}, 0")
    for e in range(6):
        k(f"s_sub_u32 {s(t0)}, {s(sE+e)}, 1\ns_bitset1_b64 {s(sVis,2)}, {s(t0)}")
    if L2D: k(f"s_sub_u32 {s(sL2)}, {s(sE+5)}, {L2D}\ns_sub_u32 {s(t0)}, {s(sL2)}, 1\ns_bitset1_b64 {s(sVis,2)}, {s(t0)}")
    if 'dtouch' in abl: k(f"s_cmp_lt_u32 s2, 96\ns_cselect_b32 {s(t0)}, {(1 << 9) | (1 << 13)}, 0\ns_or_b32 {s(sVis)}, {s(sVis)}, {s(t0)}")
    if 'cpf2' in abl: k(f"s_cmp_lt_u32 s2, 24\ns_cselect_b32 {s(t0)}, {1 << (U_CP-1)}, 0\ns_or_b32 {s(sVis)}, {s(sVis)}, {s(t0)}")
    k(f"s_add_u32 {s(sPB)}, {s(sE+2)}, 8\ns_sub_u32 {s(t0)}, {s(sPB)}, 1\ns_bitset1_b64 {s(sVis,2)}, {s(t0)}")
    k.collect = None
    k(f"s_waitcnt vmcnt({16 if QL else 32})")
    ST.stamp(11) if 'lp' not in abl else None
    def rdK(unit, a_): return f"ds_read_b128 {a(KF(a_),4)}, {v(vKV)} offset:{unit*8192 + a_*1024}"
    def rdV(unit, n): return f"ds_read_b128 {a(VF(n),4)}, {v(vKV)} offset:{STG + unit*8192 + n*1024}"

    stubs = []; calls = []
    def slow_path(par, sm, evs):
        l1 = k.newlab('sp')
        src = vChk
        k(f"v_cmp_lt_f32 vcc, {s(sThr)}, {v(src)}")
        events(evs)
        st_ = k.newlab('rc')
        k(f"s_cbranch_vccnz {st_}")
        k.label(l1)
        calls.append((st_, l1, Lrs[(par, len(sm))]))

    SERP2 = 'noserp2' not in abl
    def qk_mfmas(par, qk):
        mf = []
        for kb in range(2):
            for qi, qt in enumerate(qk if (kb == 0 or not SERP2) else qk[::-1]):
                for ei, e in enumerate((0, 1, 2, 3) if (qi % 2 == 0 or not SERP2) else (3, 2, 1, 0)):
                    d = v(Sreg(par, qt) + 4 * kb, 4)
                    c = v(Nreg(qt) + 4 * kb, 4) if ei == 0 else d
                    mf.append(f"{MF} {d}, {a(KF(kb*4+e),4)}, {a(Qreg(qt,e),4)}, {c}")
        return mf
    def step(which, qk, sm, pv, dma=(), dgaps=(), last=False, loop=None, evs=(), exit_e=None, vmw=24, mode=None, xr=()):
        par = 1 - which
        mf = qk_mfmas(par ^ 1, qk)
        nqk = len(mf)
        for n in range(8):
            for qt in (pv if (n % 2 == 0 or not SERP2) else pv[::-1]):
                d = a(Oreg(qt, n), 4)
                mf.append(f"{MF} {d}, {a(VF(n),4)}, {v(Preg(par ^ 1, qt), 4)}, {d}")
        N = len(mf); npv = N - nqk
        first = {}
        head = {g: [] for g in range(N)}
        tail = {g: [] for g in range(N)}
        before = []; after = []
        bar = (which == 1 or mode is not None) and not last
        spl = mode in ('t1', 't2', 'x')
        def rV(n): return rdV(which, n) if not spl else f"ds_read_b128 {a(VF(n),4)}, {v(vV)} offset:{STG + (8192 if mode == 't2' else 0) + n*1024}"
        vfix = {}
        dg = list(dgaps)[:len(dma)]
        assert len(dg) == len(dma)
        def place_reads(g, items, stride):
            for x in items:
                while g in dg or head[g]: g += 1
                head[g].append((4, x)); g += stride
            return g
        if pv:
            if nqk: place_reads(1, [rV(n) for n in range(8)], 3 if nqk > 16 else 1)
            else: before += [rV(n) for n in range(8)]
        if xr: place_reads(1, xr, 2)
        midw = (f"s_waitcnt vmcnt({vmw}) lgkmcnt(0)" if bar and vmw is not None else "s_waitcnt lgkmcnt(0)")
        rot = [f"s_add_u32 {s(sMK)}, {s(sC1)}, {s(sW4)}", f"s_add_u32 {s(sC1)}, {s(sC1)}, {SLOT}", f"s_cmp_ge_u32 {s(sC1)}, {5*SLOT}\ns_cselect_b32 {s(sC1)}, 0, {s(sC1)}"]
        rotv = [f"v_add_u32 {v(vKV)}, {s(sC1)}, {v(vL16)}"]
        nxt = [] if last else [rdK(0 if spl else which ^ 1, a_) for a_ in range(8)]
        if spl:
            rot = [rot[1], f"s_cmp_ge_u32 {s(sC1)}, {5*SLOT}\ns_cselect_b32 {s(sC1)}, {s(sP8)}, {s(sC1)}"]
            if mode != 't1': rotv = [f"v_mov_b32 {v(vV)}, {v(vKV)}"] + rotv
        if mode == 'tr': rotv = [f"v_add_u32 {v(vV)}, {s(sC1)}, {v(vL16)}", f"v_add_u32 {v(vKV)}, {s(sP8)}, {v(vV)}"]
        for g in dg: first[g] = None
        posts = []
        for (pre, ins, post), g in zip(dma, dg):
            if pre:
                assert g - 1 not in first
                first[g - 1] = pre
            if post: posts.append((g + 1, post))
        def put_first(g, x, limit):
            while g in first and g < limit: g += 1
            assert g < limit, (x, g, limit)
            first[g] = x
            return g
        if npv:
            if nqk:
                assert nqk - 1 not in first
                first[nqk - 1] = midw
            else: before.append(midw)
            g0 = nqk
            if bar:
                head[nqk].append((8, "s_barrier")); first[nqk] = None
                g0 = nqk + 1
                assert mode or not any(p_[0] for p_ in dma)
                g = 0
                for x in rot: g = put_first(g, x, nqk - 2) + 1
                vfix[nqk - 1] = list(rotv)
                if mode == 'tr': put_first(nqk + 1, f"s_add_u32 {s(sC1)}, {s(sC1)}, {s(sP8)}", N)
            if nxt:
                place_reads(g0, nxt[:4], 3 if npv > 16 else 2)
                for x, g in zip(nxt[4:], [g for g in range(N - 7, N - 1) if g not in dg][-4:]):
                    assert not head[g]
                    head[g].append((4, x))
                assert N - 1 not in first
                first[N - 1] = "s_waitcnt lgkmcnt(4)"
        else:
            after += [midw] + (["s_barrier"] + rot + rotv if bar else []) + nxt + ["s_waitcnt lgkmcnt(0)"]
        if nqk:
            g = nqk // 2 - 1
            while g in first: g -= 1
            nrd = sum(1 for gg in range(g) for c, t_ in head[gg] if t_ and t_.startswith('ds_read'))
            first[g] = f"s_waitcnt lgkmcnt({nrd})"
        for (pre, ins, post), g in zip(dma, dg): head[g].append((8, ins))
        for g, x in posts: put_first(g, x, N)
        if sm and not last:
            gg = put_first(0, f"s_add_u32 {s(sAbs)}, {s(sAbs)}, 1", N) + 1 if spl else 0
            gg = put_first(gg, f"s_bitcmp1_b64 {s(sVis,2)}, {s(sAbs)}\ns_cselect_b32 {s(sThC)}, -1.0, {s(sThr)}", N)
            head[gg].insert(0, (4, None))
            put_first(gg + 1, f"s_add_u32 {s(sAbs)}, {s(sAbs)}, 1", N)
        ops = []
        def op(name, pr, cost, ins, deps=(), trans=False): ops.append(dict(id=name, pr=pr, cost=cost, ins=ins, deps=set(deps), trans=trans))
        seq = [(qt, n) for qt in sm for n in range(8)]
        for idx, (qt, n) in enumerate(seq):
            Sq = Sreg(par, qt); Pq = Preg(par, qt)
            if n == 0: op(('l', qt), idx + 3, 4, f"v_add_f32 {v(vL+qt)}, {v(vL+qt)}, {v(TS(qt))}")
            deps = [('c', seq[idx - 8][0], n // 2)] if idx >= 8 else []
            op(('e', qt, n), idx, 8, f"v_exp_f32 {v(vE + n)}, {v(Sq+n)}", deps, True)
            if n & 1: op(('c', qt, n // 2), idx + 1.5, 4, f"v_cvt_pk_bf16_f32 {v(Pq + n//2)}, {v(vE + n-1)}, {v(vE + n)}", [('e', qt, n - 1), ('e', qt, n)])
        thr = sThr if last else sThC
        fin = []
        if len(sm) == 4:
            fin = [f"v_max3_f32 {v(vChk)}, {v(TS(0))}, {v(TS(1))}, {v(TS(2))}", f"v_max_f32 {v(vChk)}, {v(vChk)}, {v(TS(3))}"]
        elif sm:
            fin = [f"v_max_f32 {v(vChk)}, {v(TS(0))}, {v(TS(1))}"]
        if sm: fin.append(f"v_cmp_nge_f32 vcc, {s(thr)}, {v(vChk)}")
        ops.sort(key=lambda o: o['pr'])
        done = set(); lasttrans = None
        fixedc = [sum(x[0] for x in head[g]) + 4 * len(vfix.get(g, [])) for g in range(N)]
        NV = max(N - RESV, 1)
        NG = NV + max(len(sm) - 1, 0)
        tot = sum(o['cost'] for o in ops) + sum(fixedc[:NV])
        for t_ in before: k(t_)
        cum = 0; gi = 0
        pend = list(sm)
        cdone = {}
        lastsum = None
        def nstates(since):
            n = 0
            for ln in k.lines[since:]:
                ln = ln.strip()
                n += int(ln.split()[1]) + 1 if ln.startswith("s_nop") else 1
            return n
        def fill(used, force):
            nonlocal cum, gi, lasttrans
            gi += 1
            target = tot * gi / NG
            while True:
                ready = [o for o in ops if o['id'] not in done and o['deps'] <= done and (o['trans'] or lasttrans not in o['deps'])]
                if not ready:
                    if force and len(done) < len(ops): k("s_nop 0"); lasttrans = None; continue
                    break
                if not force:
                    room = max(CAP - used, 4 * int((target - cum + 2) // 4))
                    if used >= CAP and cum + 2 >= target: break
                    fit = [o for o in ready if o['cost'] <= room]
                    if not fit:
                        if used >= CAP or cum >= target: break
                        fit = ready
                    o = fit[0]
                else: o = ready[0]
                k(o['ins']); done.add(o['id']); used += o['cost']; cum += o['cost']
                lasttrans = o['id'] if o['trans'] else None
                if o['id'][0] == 'c': cdone[o['id'][1]] = len(k.lines)
        def try_sum(force=False):
            nonlocal lastsum, lasttrans
            while pend and all(('c', pend[0], j) in done for j in range(4)) and ('l', pend[0]) in done:
                gap_ = len(k.lines) - cdone[pend[0]]
                if gap_ < 2:
                    if not force: return
                    k(f"s_nop {1 - gap_}")
                qt = pend.pop(0)
                k(f"{MF} {v(TS(qt),4)}, {v(vOne,4)}, {v(Preg(par, qt),4)}, 0"); lasttrans = None
                lastsum = len(k.lines)
                if pend: fill(0, False)
        for g in range(N):
            k(mf[g]); lasttrans = None
            if first.get(g): k(first[g])
            for c, t_ in head[g]:
                if t_: k(t_)
            for t_ in vfix.get(g, []): k(t_)
            cum += fixedc[g]
            if g < NV: fill(fixedc[g], g == NV - 1)
            if g < N - 1: try_sum(force=(g >= NV - 1))
            if fin and not pend and g < N - 1:
                if g == N - 2:
                    gap_ = nstates(lastsum)
                    if gap_ < 8: k(f"s_nop {7 - gap_}")
                    for t_ in fin: k(t_)
                    fin = []
                elif nstates(lastsum) >= 8:
                    for _ in range(min(len(fin), (CAP - fixedc[g]) // 4)): k(fin.pop(0))
                elif k.lines[-1].strip().startswith("v_mfma") and nstates(lastsum) < 8: k("s_nop 2")
                elif fixedc[g] <= 4 and nstates(lastsum) < 8: k("s_nop 0")
        assert len(done) == len(ops) and not pend
        for t_ in after: k(t_)
        after = []
        assert not fin
        if sm:
            if loop:
                k(f"s_cbranch_vccz {loop}")
                slow_path(par, sm, evs)
                k(f"s_cmp_lg_u32 {s(sAbs)}, {s(sE+exit_e)}\ns_cbranch_scc1 {loop}")
            else:
                st_, rt = k.newlab('stub'), k.newlab('ret')
                k(f"s_cbranch_vccnz {st_}"); k.label(rt)
                stubs.append((st_, rt, par, sm, evs))

    def mloc(i): return f"{v(vTB + (i >> 3))} offset:{((i >> 2) & 1) * STG + (i & 3) * 1024}"
    def epilogue(st, extra=()):
        extra = list(extra)
        k.c(f"epilogue set {st}")
        R = vE; X = 160
        if KS and st == 0:
            for i in range(3): k(f"v_xor_b32 {v(vTB+i)}, 4096, {v(vTB+i)}")
            for j in range(2): k(f"v_add_f32 {v(X+4+j)}, {v(vL+j)}, {v(TS(j))}")
            k("s_waitcnt lgkmcnt(0)\ns_barrier")
            k(f"ds_read_b128 {v(X,4)}, {v(vTB+2)}")
            rd = [f"ds_read_b128 {v(64+4*i,4)}, {mloc(i)}" for e in range(4) for j in range(2) for i in (8*j+2*e, 8*j+2*e+1)]
            for x in rd[:14]: k(x)
            k("s_waitcnt lgkmcnt(14)")
            for j in range(2): k(f"v_max_f32 {v(X+6+j)}, {v(vD+j)}, {v(X+2+j)}")
            for j in range(2): k(f"v_sub_f32 {v(X+8+j)}, {v(vD+j)}, {v(X+6+j)}\nv_sub_f32 {v(X+10+j)}, {v(X+2+j)}, {v(X+6+j)}")
            for j in range(4): k(f"v_exp_f32 {v(X+8+j)}, {v(X+8+j)}")
            for x in rd[14:]: k(x)
            for j in range(2): k(f"v_mul_f32 {v(X+4+j)}, {v(X+4+j)}, {v(X+8+j)}")
            for j in range(2): k(f"v_fma_f32 {v(X+4+j)}, {v(X+j)}, {v(X+10+j)}, {v(X+4+j)}")
            for j in range(2): k(f"v_rcp_f32 {v(X+4+j)}, {v(X+4+j)}")
            k("s_nop 0")
            for j in range(2): k(f"v_mul_f32 {v(R+2*j)}, {v(X+8+j)}, {v(X+4+j)}\nv_mul_f32 {v(R+4+2*j)}, {v(X+10+j)}, {v(X+4+j)}")
        else:
            for j in range(2): k(f"v_add_f32 {v(R+j)}, {v(vL+2*st+j)}, {v(TS(2*st+j))}")
            if KS:
                k(f"v_add_u32 {v(vChk)}, {s(sMK)}, {v(vL16)}\nv_mov_b64 {v(vD,2)}, 0\nv_mov_b64 {v(vD+2,2)}, 0\nds_write_b32 {v(vChk)}, {v(Nreg(0))}\nds_write_b32 {v(vChk)}, {v(Nreg(1))} offset:4")
                k(f"v_mov_b64 {v(vL+2,2)}, 0\nv_mov_b32 {v(TS(2))}, 0\nv_mov_b32 {v(TS(3))}, 0")
            else: k("s_nop 3")
            k(f"v_rcp_f32 {v(R+2)}, {v(R+1)}\nv_rcp_f32 {v(R)}, {v(R)}")
        k(f"s_lshl_b32 {s(t0)}, {s(sQ+st)}, 10\ns_add_u32 {s(t0)}, {s(t0)}, {s(sLo+2)}\ns_add_u32 {s(t0)}, {s(t0)}, {WS_CTX}")
        for e in range(4):
            for j in range(2):
                b = T + 8 * j
                for i in range(8): k(f"v_accvgpr_read_b32 {v(b+i)}, {a(Oreg(2*st+j, 2*e) + i)}")
                if KS and st == 1:
                    for i in range(2): k(f"{MF} {a(Oreg(2+j, 2*e+i), 4)}, {v(vD,4)}, {v(vOne,4)}, 0")
                for i in range(0, 8, 2): k(f"v_pk_mul_f32 {v(b+i,2)}, {v(b+i,2)}, {v(R+2*j,2)} op_sel_hi:[1,0]")
                if KS and st == 0:
                    k(f"s_waitcnt lgkmcnt({14 - 2*(2*e+j)})")
                    for i in range(0, 8, 2): k(f"v_pk_fma_f32 {v(b+i,2)}, {v(64+32*j+8*e+i,2)}, {v(R+4+2*j,2)}, {v(b+i,2)} op_sel_hi:[1,0,1]")
                for i in range(4): k(f"v_cvt_pk_bf16_f32 {v(b+i)}, {v(b+2*i)}, {v(b+2*i+1)}")
                k(f"buffer_store_dwordx4 {v(b,4)}, {v(vL16)}, {s(srdO,4)}, {s(t0)} offen offset:{j*1024}{sfx}")
                if extra: k(extra.pop(0)[1])
            k(f"s_add_u32 {s(t0)}, {s(t0)}, 131072")
            if KS and st == 1 and e == 1:
                k(f"v_xor_b32 {v(vChk)}, 4096, {v(vChk)}\ns_waitcnt lgkmcnt(0)\ns_barrier\nds_read_b32 {v(Nreg(2))}, {v(vChk)}\nds_read_b32 {v(Nreg(3))}, {v(vChk)} offset:4")
        if KS and st == 1:
            k("s_waitcnt vmcnt(8) lgkmcnt(0)")
            for qt in (2, 3): k(f"v_mov_b32 {v(Nreg(qt)+1)}, {v(Nreg(qt))}")
            for qt in (2, 3):
                for i in range(2, 8, 2): k(f"v_mov_b64 {v(Nreg(qt)+i,2)}, {v(Nreg(qt),2)}")
        for x in extra: k(x[1])

    G = dma_group(); LL = local_loads()
    k.c("head")
    k("s_waitcnt lgkmcnt(0)")
    import re as _re
    ini = []
    for txt in INI:
        cur = []
        for ln_ in txt.split("\n"):
            keep = cur and (ln_.startswith(("s_cselect", "s_addc", "v_cndmask", "s_nop")) or cur[-1].startswith(("s_cmp", "v_cmp", "s_nop")) or any(x.startswith("s_cmp") for x in cur) and "s_cselect" in txt[txt.index(ln_):])
            if cur and not keep: ini.append(cur); cur = []
            cur.append(ln_)
        ini.append(cur)
    for i, m_ in enumerate(qk_mfmas(0, AB)):
        k(_re.sub(r", v\[1[6-9]\d:1[6-9]\d\]$", ", 0", m_))
        n_ = 0
        if i % 4 == 1: emit_group([stash_item(i // 4)]); n_ = 3
        if 16 <= i < 20: k(rdK(1, i - 16)); n_ += 1
        while ini and n_ < 4:
            p_ = ini.pop(0); k("\n".join(p_)); n_ += len(p_)
    for a_ in range(4, 8): k(rdK(1, a_))
    for p_ in ini: k("\n".join(p_))
    k(f"s_mov_b32 {s(sAbs)}, 1\ns_nop 3")
    lz = k.newlab('z')
    k(f"s_cmp_lg_u32 {s(sE)}, 0\ns_cbranch_scc1 {lz}")
    for r_ in range(4):
        k(f"v_add_f32 {v(Sreg(0,2)+r_)}, {v(Sreg(0,2)+r_)}, {v(vTB+r_)}\nv_mov_b32 {v(Sreg(0,2)+4+r_)}, {v(vNinf)}\nv_add_f32 {v(Sreg(0,3)+4+r_)}, {v(Sreg(0,3)+4+r_)}, {v(vTB+r_)}")
    k.label(lz)
    for j0, j1, j2 in ((0, 1, 2), (None, 3, 4), (None, 5, 6)):
        for qt in AB: k(f"v_max3_f32 {v(T+qt)}, {v(Sreg(0,qt)) if j0 == 0 else v(T+qt)}, {v(Sreg(0,qt)+j1)}, {v(Sreg(0,qt)+j2)}")
    for qt in AB: k(f"v_max_f32 {v(T+qt)}, {v(T+qt)}, {v(Sreg(0,qt)+7)}")
    xlane([T + q_ for q_ in AB], [T + 4 + q_ for q_ in AB], "v_max_f32")
    for qt in AB:
        k(f"v_sub_f32 {v(Nreg(qt))}, 0, {v(T+qt)}\nv_sub_f32 {v(Nreg(qt)+1)}, 0, {v(T+qt)}")
    for qt in AB:
        for i in range(2, 8, 2): k(f"v_mov_b64 {v(Nreg(qt)+i,2)}, {v(Nreg(qt),2)}")
    for qt in AB:
        for i in range(0, 8, 2): k(f"v_pk_add_f32 {v(Sreg(0,qt)+i,2)}, {v(Sreg(0,qt)+i,2)}, {v(Nreg(qt),2)}")
    events((0, 1))
    k("s_waitcnt lgkmcnt(0)")
    step(1, AB, AB, (), dma=[stash_item(m) for m in range(8, 16)], dgaps=(2, 5, 9, 12, 17, 20, 23, 26), evs=(0, 1), vmw=48)
    ST.stamp(12); dbgmax(2, True)
    Ld = k.newlab('dual'); align(); k.label(Ld)
    step(0, AB, AB, AB, dma=G[:5], dgaps=(5, 18, 27, 43, 52), evs=(0, 1)); step(1, AB, AB, AB, dma=G[5:], dgaps=(6, 18, 27), loop=Ld, evs=(0, 1, 6) if KS else (0, 1, 3, 6), exit_e=2)
    if KS:
        QP = [(None, f"buffer_load_dwordx4 {a(Qreg(qt, e), 4)}, {v(vL16)}, {s(srdO,4)}, {s(t2 + qt - 2)} offen offset:{e*1024} sc1", None) for qt in (2, 3) for e in range(4)]
        QP[0] = (f"s_xor_b32 {s(t2)}, {s(sQ)}, 2\ns_lshl_b32 {s(t2)}, {s(t2)}, 12\ns_add_u32 {s(t2)}, {s(t2)}, {s(sLo+2)}", QP[0][1], f"s_add_u32 {s(t3)}, {s(t2)}, 4096")
        assert WS_QB == 0
        step(0, A_, AB, AB, dma=G[:5], dgaps=(3, 11, 21, 31, 41)); step(1, A_, A_, AB, dma=G[5:] + QP, dgaps=(3, 8, 13, 19, 22, 25, 28, 31, 34, 37, 40), mode='tr')
    else:
        step(0, A_, AB, AB, dma=G[:5], dgaps=(3, 11, 21, 31, 41), evs=(3, 4)); step(1, A_, A_, AB, dma=G[5:], dgaps=(3, 8, 13), evs=(3, 4, 6))
    epilogue(1)
    def ctx_flag(dst, sn): k(f"s_lshl_b32 {s(dst)}, {s(sn)}, 5\ns_add_u32 {s(dst)}, {s(dst)}, {s(sh)}\ns_lshl_b32 {s(dst)}, {s(dst)}, 3\ns_add_u32 {s(dst)}, {s(dst)}, {F_CTX - 256}")
    ctx_flag(sPf, snB)
    ST.stamp(13)
    Ls = k.newlab('single'); Lsx = k.newlab('singlex')
    if EEX: k(f"s_cmp_eq_u32 {s(sAbs)}, {s(sE+5)}\ns_cbranch_scc1 {Lsx}")
    if KS:
        G2 = list(G)
        G2[4] = (G[4][0], G[4][1], f"s_add_u32 {s(sMK)}, {s(sMK)}, {SLOT}")
        G2[5] = (None, G[5][1], f"s_cmp_ge_u32 {s(sMK)}, {5*SLOT}\ns_cselect_b32 {s(sMK)}, {s(sW4)}, {s(sMK)}")
        XG = tuple(int(x) for x in os.environ.get('XG', '5,14,21,27,38,44,50,55').split(','))
        xw = 8 + sum(g < 31 for g in XG)
        Le_ = k.newlab('entry')
        step(0, AB, A_, A_, mode='t1', vmw=None, evs=(3, 4, 6))
        step(1, AB, AB, A_, dma=G2, dgaps=(2, 8, 13, 19, 24, 28, 36, 40), mode='t2', vmw=None, evs=(3, 4))
        k(f"s_branch {Le_}")
        align()
        k.label(Ls)
        step(1, AB, AB, AB, dma=G2, dgaps=XG, mode='x', vmw=xw, evs=(3, 4))
        k.label(Le_)
        step(0, AB, AB, AB, dma=G2, dgaps=XG, mode='x', vmw=xw, loop=Ls, evs=(3, 4, 6), exit_e=5)
        k(f"s_sub_u32 {s(t0)}, {s(sC1)}, {s(sP8)}")
        for i in range(3): k(f"s_add_u32 {s(t0)}, {s(t0)}, {SLOT}\ns_cmp_ge_u32 {s(t0)}, {5*SLOT}\ns_cselect_b32 {s(t0)}, 0, {s(t0)}\nv_add_u32 {v(vTB+i)}, {s(t0)}, {v(vDma)}")
    else:
        align()
        k.label(Ls)
        step(0, A_, A_, A_, dma=G[:5], dgaps=(2, 10, 14, 19, 28), evs=(3, 4)); step(1, A_, A_, A_, dma=G[5:], dgaps=(4, 9, 13), loop=Ls, evs=(3, 4, 6), exit_e=5)
    k.label(Lsx)
    ST.stamp(14); dbgmax(4, True)
    dW = srdK; dO = srdV; dX = srdS
    sIsA = CP['nk']; sMt3 = CP['swp']; sNt3 = CP['scale']; sXd3 = CP['Si']
    sXo = sKo; sWo = sVo; sRd = sC1; sWr = sMK; sDl = sThC; sCn = sAbs; sSl = CP['Sj']; sEv = sE; sLim = sE + 1; sXb = sE + 2; sPo = sE + 3; sOb = sE + 4; sOs = sE + 5
    sXs3 = sL2; swm3 = sPB; swn3 = sSa
    cW = 16
    if 'oldmap' in abl:
        k(f"s_bfe_u32 {s(sIsA)}, s2, 0x10002\ns_xor_b32 {s(sIsA)}, {s(sIsA)}, 1\ns_bitcmp1_b32 s2, 1\ns_cselect_b32 {s(sMt3)}, {s(snA)}, {s(snB)}\ns_sub_u32 {s(sMt3)}, {s(sMt3)}, 1")
    else:
        k(f"s_bfe_u32 {s(sIsA)}, s2, 0x10002\ns_and_b32 {s(t0)}, s2, 7\ns_bitcmp1_b32 0x63, {s(t0)}\ns_cselect_b32 {s(sMt3)}, {s(snA)}, {s(snB)}\ns_sub_u32 {s(sMt3)}, {s(sMt3)}, 1")
    k(f"s_and_b32 {s(t0)}, s2, 1\ns_lshl_b32 {s(t0)}, {s(t0)}, 2\ns_bfe_u32 {s(t1)}, s2, 0x20003\ns_add_u32 {s(sNt3)}, {s(t0)}, {s(t1)}")
    k(f"v_and_b32 {v(vFo)}, 31, {v(vLane)}\nv_lshlrev_b32 {v(vFo)}, 3, {v(vFo)}\ns_lshl_b32 {s(sXs3)}, {s(sMt3)}, 8\ns_add_u32 {s(sXs3)}, {s(sXs3)}, {WS_FLAG + F_CTX}")
    rdy_load = f"buffer_load_dwordx2 {v(vFlag,2)}, {v(vFo)}, {s(srdO,4)}, {s(sXs3)} offen sc1"
    k(rdy_load)
    LLATE = 'llate' in abl
    def xbar():
        k("s_nop 1")
        if EEX:
            lb = k.newlab('xb')
            k(f"s_cmp_ge_u32 {s(sw)}, 2\ns_cbranch_scc1 {lb}\ns_waitcnt vmcnt(24)\ns_barrier")
            k.label(lb)
    if KS:
        step(1, (), AB, AB, last=True, mode='x', xr=[f"ds_read_b128 {a(KF(n),4)}, {v(vKV)} offset:{STG + n*1024}" for n in range(8)])
        k("s_waitcnt vmcnt(1) lgkmcnt(0)")
        fl_ = [x[1] for x in LL]
        fl_ += [f"v_add_f32 {v(vE)}, {v(vL+2)}, {v(TS(2))}\nv_add_f32 {v(vE+1)}, {v(vL+3)}, {v(TS(3))}\nv_mov_b64 {v(vE+2,2)}, {v(vD+2,2)}"]
        wo = []
        for pv in ((2, 3), (0, 1)):
            for n in range(8):
                for qt in (pv if n % 2 == 0 else pv[::-1]):
                    d = a(Oreg(qt, n), 4)
                    k(f"{MF} {d}, {a(KF(n),4)}, {v(Preg(0, qt), 4)}, {d}")
                    if qt >= 2:
                        k(fl_.pop(0))
                        adr, off = mloc((qt - 2) * 8 + n).split()
                        wo.append(f"ds_write_b128 {adr}, {d} {off}")
                    else: k(wo.pop(0))
        k(f"ds_write_b128 {v(vTB+2)}, {v(vE,4)}")
        assert not fl_ and not wo
    elif LLATE:
        step(0, (), A_, A_, last=True); k("s_nop 1"); step(1, (), (), A_, last=True)
    else:
        step(0, (), A_, A_, last=True, dma=LL[:7], dgaps=(0, 2, 4, 6, 8, 10, 12)); xbar(); step(1, (), (), A_, last=True, dma=LL[7:], dgaps=(0, 2, 4, 6, 8, 10, 12, 14))
    epilogue(0)
    k(f"s_lshr_b32 {s(swm3)}, {s(sw)}, 1\ns_and_b32 {s(swn3)}, {s(sw)}, 1")
    k(f"s_mul_i32 {s(t0)}, {s(sIsA)}, {NC*64*2048}\ns_lshl_b32 {s(sWo)}, {s(sNt3)}, 8\ns_add_u32 {s(sWo)}, {s(sWo)}, {s(t0)}")
    E_ = vE
    k(f"v_lshrrev_b32 {v(E_)}, 4, {v(vLane)}\ns_lshl_b32 {s(t0)}, {s(sw)}, 4\nv_add_u32 {v(E_+1)}, {s(t0)}, {v(E_)}\nv_lshlrev_b32 {v(E_+1)}, 11, {v(E_+1)}")
    k(f"v_lshlrev_b32 {v(E_)}, 1, {v(E_)}\nv_and_b32 {v(E_+2)}, 15, {v(vLane)}\nv_xor_b32 {v(E_)}, {v(E_)}, {v(E_+2)}")
    for j in range(4):
        k(f"v_xor_b32 {v(E_+2)}, {8*(j&1)}, {v(E_)}\nv_lshl_add_u32 {v(cW+j)}, {v(E_+2)}, 4, {v(E_+1)}")
        if j: k(f"v_add_u32 {v(cW+j)}, {j*(8192-1024)}, {v(cW+j)}")
    k(f"s_mov_b32 {s(dW)}, {s(sPw)}\ns_mov_b32 {s(dW+1)}, {s(sPw+1)}\ns_mov_b32 {s(dW+2)}, {8*MB}\ns_mov_b32 {s(dX+2)}, {WS_SIZE}")
    k(f"s_mov_b32 {s(dO)}, {s(sOut)}\ns_mov_b32 {s(dO+1)}, {s(sOut+1)}\ns_mov_b32 {s(dO+2)}, {2048*2048*2}")
    k(f"s_lshl_b32 {s(t0)}, {s(sMt3)}, 13\ns_lshl_b32 {s(t1)}, {s(swn3)}, 12\ns_add_u32 {s(t0)}, {s(t0)}, {s(t1)}\ns_lshl_b32 {s(t1)}, {s(swm3)}, 17\ns_add_u32 {s(sXb)}, {s(t0)}, {s(t1)}")
    k(f"s_mul_i32 {s(t0)}, {s(sIsA)}, {NC*262144}\ns_add_u32 {s(sXo)}, {s(sXb)}, {s(t0)}\ns_add_u32 {s(sXo)}, {s(sXo)}, {WS_CTX}\ns_add_u32 {s(sXb)}, {s(sXb)}, {WS_OA}")
    def d3x(j): return f"buffer_load_dwordx4 {v(vL16)}, {s(dX,4)}, {s(sXo)} offen offset:{j*1024}{ksc} lds"
    def d3w(j): return f"buffer_load_dwordx4 {v(cW+j)}, {s(dW,4)}, {s(sWo)} offen offset:{j*1024}{wsc} lds"
    def lim_eval():
        k(f"v_cmp_ne_u64 {s(sM0,2)}, {s(sTok,2)}, {v(vFlag,2)}\ns_mul_i32 {s(t1)}, {s(sIsA)}, {NC >> 1}\ns_nop 2\ns_lshr_b32 {s(t0)}, {s(sM0)}, {s(t1)}\ns_ff1_i32_b32 {s(t0)}, {s(t0)}")
        k(f"s_lshl_b32 {s(sLim)}, {s(t0)}, 1\ns_mul_i32 {s(t1)}, {s(sIsA)}, {NC & 1}\ns_sub_i32 {s(sLim)}, {s(sLim)}, {s(t1)}\ns_cmp_lt_i32 {s(t0)}, 0\ns_cselect_b32 {s(sLim)}, 1000, {s(sLim)}")
    def lim_update(sneed):
        Lsp = k.newlab('spin'); Lok = k.newlab('ok')
        k(f"s_mov_b32 s3, {SPIN}")
        k.label(Lsp)
        k(f"{rdy_load}\ns_waitcnt vmcnt(0)")
        lim_eval()
        k(f"s_cmp_gt_i32 {s(sLim)}, {sneed}\ns_cbranch_scc1 {Lok}\ns_sub_u32 s3, s3, 1\ns_cbranch_scc1 {Lok}\ns_sleep 4\ns_branch {Lsp}")
        k.label(Lok)
    def x_pre():
        for st in range(NS3):
            k(f"s_add_u32 m0, {s(sW4)}, {st*SLOT}\ns_nop 0")
            for j in range(4): k(d3x(j))
            k(f"s_add_u32 {s(sXo)}, {s(sXo)}, 262144")
    cx = 6; cw = 12; cSt = 7
    def acc3(nb, mb): return 64 + (((nb >> 1) * 4 + mb) * 2 + (nb & 1)) * 4
    def fX(st, mb): return st * 32 + mb * 4
    def fW(st, nb): return st * 32 + 16 + nb * 4
    PART = 128
    k(f"s_lshl_b32 {s(t0)}, {s(swm3)}, 12\nv_add_u32 {v(cx)}, {s(t0)}, {v(vL16)}")
    k(f"v_lshrrev_b32 {v(T)}, 2, {v(vLane)}\nv_lshlrev_b32 {v(T)}, 8, {v(T)}\nv_and_b32 {v(T+1)}, 3, {v(vLane)}\nv_lshl_add_u32 {v(T)}, {v(T+1)}, 3, {v(T)}\nv_add_u32 {v(T)}, 16384, {v(T)}")
    k(f"v_bfe_u32 {v(T+1)}, {v(vLane)}, 2, 3\ns_lshl_b32 {s(t0)}, {s(swn3)}, 2\nv_xor_b32 {v(T+1)}, {s(t0)}, {v(T+1)}")
    for nb in range(4):
        k(f"v_xor_b32 {v(T+2)}, {nb}, {v(T+1)}\nv_lshl_add_u32 {v(cw+nb)}, {v(T+2)}, 5, {v(T)}")
    k(f"v_and_b32 {v(T)}, 15, {v(vLane)}\nv_lshlrev_b32 {v(T)}, 12, {v(T)}\nv_lshlrev_b32 {v(T)}, {s(sIsA)}, {v(T)}")
    k(f"v_bfe_u32 {v(T+1)}, {v(vLane)}, 4, 1\nv_lshl_add_u32 {v(T)}, {v(T+1)}, 5, {v(T)}\nv_lshrrev_b32 {v(T+1)}, 5, {v(vLane)}\nv_lshl_add_u32 {v(cSt)}, {v(T+1)}, 4, {v(T)}")
    k(f"s_lshl_b32 {s(t0)}, {s(sMt3)}, 3\ns_lshl_b32 {s(t1)}, {s(swm3)}, 2\ns_add_u32 {s(t0)}, {s(t0)}, {s(t1)}")
    k(f"s_lshl_b32 {s(t1)}, {s(t0)}, 16\ns_add_u32 {s(t1)}, {s(t1)}, 2048")
    k(f"s_and_b32 {s(t2)}, {s(t0)}, 63\ns_lshl_b32 {s(t2)}, {s(t2)}, 17\ns_lshr_b32 {s(t3)}, {s(t0)}, 6\ns_lshl_b32 {s(t3)}, {s(t3)}, 12\ns_add_u32 {s(t2)}, {s(t2)}, {s(t3)}")
    k(f"s_cmp_eq_u32 {s(sIsA)}, 1\ns_cselect_b32 {s(sOb)}, {s(t2)}, {s(t1)}\ns_lshl_b32 {s(sOs)}, 0x10000, {s(sIsA)}")
    k(f"s_lshl_b32 {s(t2)}, {s(sNt3)}, 8\ns_lshl_b32 {s(t3)}, {s(swn3)}, 7\ns_add_u32 {s(sOb)}, {s(sOb)}, {s(t2)}\ns_add_u32 {s(sOb)}, {s(sOb)}, {s(t3)}")
    for i in range(0, 64, 2): k(f"v_mov_b64 {v(64+i,2)}, 0")
    local_pre()
    k(f"s_add_u32 {s(sWr)}, {s(sW4)}, {(NS3-1)*SLOT}\ns_mov_b32 {s(sRd)}, 0\ns_mov_b32 {s(sSl)}, {SLOT}\ns_mov_b32 {s(sCn)}, 0\ns_mov_b32 {s(sEv)}, 0")
    k("s_waitcnt vmcnt(0)\ns_barrier")
    ctx_flag(t1, snA); publish(t1, T + 12)
    Lpb = k.newlab('pb'); Lx3 = k.newlab('x3')
    k(f"s_cmp_eq_u32 {s(sPf)}, -1\ns_cbranch_scc1 {Lpb}")
    publish(sPf, T + 12)
    k.label(Lpb)
    ST.stamp(15)
    lim_eval()
    for st in range(NS3 - 1):
        k(f"s_add_u32 m0, {s(sW4)}, {st*SLOT + 16384}\ns_nop 0")
        for j in range(4): k(d3w(j))
        k(f"s_add_u32 {s(sWo)}, {s(sWo)}, {64*2048}")
    k(f"s_cmp_gt_i32 {s(sLim)}, {NS3-1}\ns_cbranch_scc1 {Lx3}")
    lim_update(str(NS3 - 1))
    k.label(Lx3)
    x_pre()
    k("s_waitcnt vmcnt(16)\ns_barrier")
    ST.stamp(2); dbgmax(6, True)
    def reads3(st, kk):
        o = []
        def rx(mb): o.append((('x', st, mb), f"ds_read_b128 {a(fX(st, mb), 4)}, {v(cx)} offset:{mb * 1024 + kk * 8192}"))
        def rw(nb):
            for t_ in range(2):
                o.append((('w', st, nb), f"ds_read_b64_tr_b16 {a(fW(st, nb) + 2 * t_, 2)}, {v(cw + nb)} offset:{(32 * kk + 16 * t_) * 256}"))
        rx(0); rw(0); rx(1); rx(2); rx(3); rw(1); rw(2); rw(3)
        return o
    CH3 = 'ch3' in abl
    if not CH3:
        for tag, ins in reads3(0, 0): k(ins)
    def pstore(b): return f"buffer_store_dwordx4 {v(PART+4*b,4)}, {v(vL16)}, {s(srdO,4)}, {s(sPo)} offen offset:{(b&3)*1024} sc1" + (f"\ns_add_u32 {s(sPo)}, {s(sPo)}, 4096" if b & 3 == 3 else "")
    def body3(stores=(), loop=False, xs=None, per=2, vm3=24):
        tr = LgkmTracker([tag for tag, _ in reads3(0, 0)])
        stores = list(stores)
        for ss in range(2):
            st = ss
            nxt = reads3(st ^ 1, ss ^ 1)
            rd_at = {(1 if ss else 0) + i: x for i, x in enumerate(nxt)}
            first = {}; fill = {g: [] for g in range(16)}
            if ss == 0:
                first[0] = f"s_add_u32 m0, {s(sWr)}, 16384"
                for j, g in enumerate((1, 5, 9, 13)): fill[g].append(d3w(j))
                first[2] = f"s_add_u32 {s(sWr)}, {s(sRd)}, {s(sW4)}"
                first[3] = f"s_add_u32 {s(sRd)}, {s(sRd)}, {SLOT}"
                first[4] = f"s_cmp_ge_u32 {s(sRd)}, {NS3*SLOT}"
                first[6] = f"s_cselect_b32 {s(sDl)}, {-(NS3-1)*SLOT & 0xffffffff}, {s(sSl)}"
                first[7] = f"s_cselect_b32 {s(sRd)}, 0, {s(sRd)}"
                fill[12].append(f"v_add_u32 {v(cx)}, {s(sDl)}, {v(cx)}\nv_add_u32 {v(cw)}, {s(sDl)}, {v(cw)}")
                first[14] = f"s_add_u32 {s(sWo)}, {s(sWo)}, {64*2048}"
                fill[14].append(f"v_add_u32 {v(cw+1)}, {s(sDl)}, {v(cw+1)}\nv_add_u32 {v(cw+2)}, {s(sDl)}, {v(cw+2)}")
                first[15] = f"s_mov_b32 m0, {s(sWr)}"
                fill[15].append(f"v_add_u32 {v(cw+3)}, {s(sDl)}, {v(cw+3)}")
                if stores: fill[11].append(stores.pop(0))
            else:
                for j, g in enumerate((1, 5, 9, 13)): fill[g].append(d3x(j))
                if stores: fill[11].append(stores.pop(0))
                first[12] = f"s_add_u32 {s(sCn)}, {s(sCn)}, 1"
                first[14] = f"s_add_u32 {s(sXo)}, {s(sXo)}, 262144" + (f"\ns_cmp_lt_u32 {s(sCn)}, {s(sEv)}" if loop else "")
            for i in range(16):
                nb, mb = i // 4, i % 4
                if ss == 1 and i == 0:
                    tr.q = []
                    k(f"s_waitcnt vmcnt({vm3}) lgkmcnt(0)")
                w = tr.need({('x', st, mb), ('w', st, nb)})
                if w: k(w)
                d = v(acc3(nb, mb), 4)
                k(f"{MF} {d}, {a(fW(st, nb), 4)}, {a(fX(st, mb), 4)}, {d}")
                if ss == 1 and i == 0: k("s_barrier")
                if i in first: k(first[i])
                if i in rd_at:
                    tag, ins = rd_at[i]; k(ins); tr.issue(tag)
                for x in fill[i]: k(x)
                if xs:
                    for _ in range(per if not fill[i] else 1):
                        if xs: k(xs.pop(0))
    if CH3:
        def gX(mb, kk): return mb * 8 + kk * 4
        def gW(nb, kk): return 32 + nb * 8 + kk * 4
        def rX(mb): return [(('x', mb), f"ds_read_b128 {a(gX(mb, kk), 4)}, {v(cx)} offset:{mb * 1024 + kk * 8192}") for kk in range(2)]
        def rW(nb): return [(('w', nb), f"ds_read_b64_tr_b16 {a(gW(nb, kk) + 2 * t_, 2)}, {v(cw + nb)} offset:{(32 * kk + 16 * t_) * 256}") for kk in range(2) for t_ in range(2)]
        tail3 = rX(0) + rX(1) + rX(2) + rX(3)
        for tag, ins in rW(0) + rW(1) + tail3: k(ins)
        def body3(stores=(), loop=False, xs=None, per=2):
            tr = LgkmTracker([tag for tag, _ in tail3])
            stores = list(stores)
            rd = {}
            for i, x in enumerate(rW(2) + rW(3)): rd.setdefault(i, []).append(x)
            w01 = rW(0) + rW(1)
            for mb in range(4):
                base = 16 + 4 * mb
                rd.setdefault((17, 18, 21, 22)[mb], []).extend(w01[2 * mb:2 * mb + 2])
                x0, x1 = rX(mb)
                rd.setdefault(base + 3, []).append(x0); rd.setdefault(min(base + 4, 31), []).append(x1)
            first = {0: f"s_add_u32 m0, {s(sWr)}, 16384", 2: f"s_add_u32 {s(sWr)}, {s(sRd)}, {s(sW4)}", 3: f"s_add_u32 {s(sRd)}, {s(sRd)}, {SLOT}", 4: f"s_cmp_ge_u32 {s(sRd)}, {NS3*SLOT}",
                     6: f"s_cselect_b32 {s(sDl)}, {-(NS3-1)*SLOT & 0xffffffff}, {s(sSl)}", 7: f"s_cselect_b32 {s(sRd)}, 0, {s(sRd)}", 14: f"s_add_u32 {s(sWo)}, {s(sWo)}, {64*2048}", 15: f"s_mov_b32 m0, {s(sWr)}",
                     28: f"s_add_u32 {s(sCn)}, {s(sCn)}, 1", 30: f"s_add_u32 {s(sXo)}, {s(sXo)}, 262144" + (f"\ns_cmp_lt_u32 {s(sCn)}, {s(sEv)}" if loop else "")}
            fill = {g: [] for g in range(32)}
            for j, g in enumerate((1, 5, 9, 13)): fill[g].append(d3w(j)); fill[16 + g].append(d3x(j))
            fill[8].append(f"v_add_u32 {v(cx)}, {s(sDl)}, {v(cx)}\nv_add_u32 {v(cw)}, {s(sDl)}, {v(cw)}")
            fill[10].append(f"v_add_u32 {v(cw+1)}, {s(sDl)}, {v(cw+1)}\nv_add_u32 {v(cw+2)}, {s(sDl)}, {v(cw+2)}")
            fill[12].append(f"v_add_u32 {v(cw+3)}, {s(sDl)}, {v(cw+3)}")
            for g in (11, 14):
                if stores: fill[g].append(stores.pop(0))
            i = 0
            for rp in range(2):
                for mb in range(4):
                    for nb in (2 * rp, 2 * rp + 1):
                        for kk in range(2):
                            w = tr.need({('x', mb), ('w', nb)})
                            if i == 16:
                                tr.q = []
                                k(f"s_waitcnt vmcnt({8*(NS3-2)}) lgkmcnt(0)")
                            elif i == 0: k("s_waitcnt lgkmcnt(6)"); tr.q = tr.q[-6:]
                            elif w: k(w)
                            d = v(acc3(nb, mb), 4)
                            k(f"{MF} {d}, {a(gW(nb, kk), 4)}, {a(gX(mb, kk), 4)}, {d}")
                            if i == 16: k("s_barrier")
                            if i in first: k(first[i])
                            for tag, ins in rd.get(i, []): k(ins); tr.issue(tag)
                            for x in fill[i]: k(x)
                            if xs:
                                for _ in range(per if not fill[i] else 1):
                                    if xs: k(xs.pop(0))
                            i += 1
    L3 = k.newlab('l3'); L3e = k.newlab('l3e'); L3x = k.newlab('l3x'); L3c = k.newlab('l3c'); L3n = k.newlab('l3n')
    XS_ = local_stream(); nun = 0; polls = []
    while XS_:
        lp = k.newlab('lp'); lr = k.newlab('lr')
        k(f"s_cmp_gt_i32 {s(sLim)}, {nun + NS3}\ns_cbranch_scc0 {lp}"); k.label(lr)
        polls.append((lp, lr, nun + NS3))
        body3(xs=XS_, vm3=min(16 + 4 * nun, 24)); nun += 1
    OAP = nun + 4
    assert nun >= 3 and not CH3 and not LLATE
    k(f"s_branch {L3e}")
    for lp, lr, need in polls:
        k.label(lp); lim_update(str(need)); k(f"s_branch {lr}")
    align()
    k.label(L3)
    body3(loop=True)
    k(f"s_cbranch_scc1 {L3}")
    k.label(L3e)
    def pair_flag(dst): k(f"s_lshl_b32 {s(dst)}, {s(sMt3)}, 3\ns_add_u32 {s(dst)}, {s(dst)}, {s(sNt3)}\ns_lshl_b32 {s(dst)}, {s(dst)}, 7\ns_add_u32 {s(dst)}, {s(dst)}, {F_PAIR}")
    def part_addr(): k(f"s_lshl_b32 {s(t0)}, {s(sMt3)}, 3\ns_add_u32 {s(t0)}, {s(t0)}, {s(sNt3)}\ns_lshl_b32 {s(t0)}, {s(t0)}, 15\ns_lshl_b32 {s(t1)}, {s(sw)}, 13\ns_add_u32 {s(t0)}, {s(t0)}, {s(t1)}\ns_add_u32 {s(sPo)}, {s(t0)}, {WS_PART}")
    def all_ready(load):
        Lsp = k.newlab('spin'); Lok = k.newlab('ok')
        k(f"s_waitcnt vmcnt(16)\ns_mov_b32 s3, {SPIN}")
        k.label(Lsp)
        k(f"v_cmp_ne_u64 {s(sM0,2)}, {s(sTok,2)}, {v(vFlag,2)}\ns_nop 3\ns_cmp_eq_u64 {s(sM0,2)}, 0\ns_cbranch_scc1 {Lok}\ns_sub_u32 s3, s3, 1\ns_cbranch_scc1 {Lok}\ns_sleep 8\n{load}\ns_waitcnt vmcnt(0)\ns_branch {Lsp}")
        k.label(Lok)
    Lr = k.newlab('rdy')
    k(f"s_add_u32 {s(t2)}, {s(sCn)}, {NS3}\ns_cmp_gt_i32 {s(sLim)}, {s(t2)}\ns_cbranch_scc1 {Lr}")
    lim_update(s(t2))
    k.label(Lr)
    Lo1 = k.newlab('o1'); Lo2 = k.newlab('o2')
    k(f"s_mov_b32 {s(sEv)}, {OAP}\ns_cmp_lt_u32 {s(sCn)}, {OAP}\ns_cbranch_scc1 {L3n}\ns_cmp_eq_u32 {s(sCn)}, {OAP}\ns_cbranch_scc1 {Lo1}")
    k.label(Lo2)
    k(f"s_cmp_eq_u32 {s(sIsA)}, 0\ns_cbranch_scc1 {L3c}")
    oa_load = f"s_lshr_b32 {s(t0)}, {s(sMt3)}, 1\ns_lshl_b32 {s(t0)}, {s(t0)}, 8\ns_add_u32 {s(t0)}, {s(t0)}, {WS_FLAG + F_OA}\nbuffer_load_dwordx2 {v(vFlag,2)}, {v(vFo)}, {s(srdO,4)}, {s(t0)} offen sc1"
    def p_store():
        part_addr()
        k("s_nop 3")
        for i in range(32): k(f"v_cvt_pk_bf16_f32 {v(PART+i)}, {v(64+2*i)}, {v(65+2*i)}")
        for i in range(0, 64, 2): k(f"v_mov_b64 {v(64+i,2)}, 0")
        k("s_nop 1")
        for n in range(TR): body3([pstore(2 * n), pstore(2 * n + 1)])
    def p_pub(): pair_flag(t1); publish(t1, T + 12)
    def oa_pub():
        k(f"s_and_b32 {s(t1)}, s2, 7\ns_lshl_b32 {s(t1)}, {s(t1)}, 5\ns_lshr_b32 {s(t2)}, s2, 3\ns_add_u32 {s(t1)}, {s(t1)}, {s(t2)}\ns_lshl_b32 {s(t1)}, {s(t1)}, 3\ns_add_u32 {s(t1)}, {s(t1)}, {F_OA}")
        publish(t1, T + 12)
    EVP = [(NB - NS3 - 1, lambda: k(f"s_mov_b32 {s(sLim)}, 1000\n{oa_load}")),
           (NB - NS3, lambda: (k("s_waitcnt vmcnt(8)"), all_ready(oa_load), k(f"s_mov_b32 {s(sXo)}, {s(sXb)}"))),
           (NB - NS3 + 1, lambda: k(f"s_mov_b32 {s(dW)}, {s(sPw+2)}\ns_mov_b32 {s(dW+1)}, {s(sPw+3)}\ns_mov_b32 {s(dW+2)}, {2*MB}\ns_lshl_b32 {s(sWo)}, {s(sNt3)}, 8")),
           (NB, p_store), (NB + TR + 4, p_pub), (NP - NS3, lambda: k(f"s_mov_b32 {s(dX+2)}, 0")), (NP, None)]
    pf_load = lambda: (pair_flag(t1), k(f"s_add_u32 {s(sXs3)}, {s(t1)}, {WS_FLAG}"))
    pl = f"buffer_load_dwordx2 {v(vFlag,2)}, off, {s(srdO,4)}, {s(sXs3)} sc1"
    def c_take():
        all_ready(pl)
        part_addr()
        for b in range(8):
            k(f"buffer_load_dwordx4 {v(PART+4*b,4)}, {v(vL16)}, {s(srdO,4)}, {s(sPo)} offen offset:{(b&3)*1024} sc1")
            if b == 3: k(f"s_add_u32 {s(sPo)}, {s(sPo)}, 4096")
    EVC = [(NC - NS3 - 1, lambda: k(f"s_mov_b32 {s(sLim)}, 1000")),
           (NC - NS3, lambda: (k(f"s_mov_b32 {s(dX+2)}, 0"), pf_load(), k(pl))),
           (NC - NS3 + 1, lambda: k(f"s_mov_b32 {s(dW+2)}, 0")),
           (NC - 3, c_take), (NC, None)]
    for EV, lab in ((EVP, None), (EVC, L3c)):
        if lab: k.label(lab)
        k(f"s_mov_b32 {s(sEv)}, {EV[0][0]}\ns_cmp_lt_u32 {s(sCn)}, {EV[0][0]}\ns_cbranch_scc1 {L3n}")
        for i, (at, f_) in enumerate(EV):
            ln = k.newlab('n')
            if f_ is None:
                k(f"s_branch {L3x}")
                break
            k(f"s_cmp_lg_u32 {s(sCn)}, {at}\ns_cbranch_scc1 {ln}")
            f_()
            k(f"s_mov_b32 {s(sEv)}, {EV[i+1][0]}\ns_branch {L3}")
            k.label(ln)
    k.label(Lo1)
    oa_pub()
    k(f"s_branch {Lo2}")
    assert OAP < NB - NS3 - 1
    k.label(L3n)
    k(f"s_sub_u32 {s(t0)}, {s(sLim)}, {NS3}\ns_min_u32 {s(sEv)}, {s(sEv)}, {s(t0)}\ns_branch {L3}")
    k.label(L3x)
    ST.stamp(3); dbgmax(8, True)
    Lna = k.newlab('noadd')
    k(f"s_cmp_eq_u32 {s(sIsA)}, 1\ns_cbranch_scc1 {Lna}\ns_waitcnt vmcnt(0)")
    for i in range(32):
        k(f"v_lshlrev_b32 {v(160+2*i)}, 16, {v(PART+i)}\nv_and_b32 {v(161+2*i)}, 0xffff0000, {v(PART+i)}")
    for i in range(0, 64, 2): k(f"v_pk_add_f32 {v(64+i,2)}, {v(64+i,2)}, {v(160+i,2)}")
    k.label(Lna)
    for mb in range(4):
        for e in range(2):
            b = acc3(2 * e, mb)
            for i in range(4): k(f"v_cvt_pk_bf16_f32 {v(b+i)}, {v(b+2*i)}, {v(b+2*i+1)}")
        k("s_nop 1")
        for e in range(2):
            b = acc3(2 * e, mb)
            k(f"v_permlane16_swap_b32 {v(b)}, {v(b+2)}\nv_permlane16_swap_b32 {v(b+1)}, {v(b+3)}")
        for e in range(2):
            b = acc3(2 * e, mb)
            k(f"buffer_store_dwordx4 {v(b,4)}, {v(cSt)}, {s(dO,4)}, {s(sOb)} offen offset:{64*e} sc1")
        k(f"s_add_u32 {s(sOb)}, {s(sOb)}, {s(sOs)}")
    if stamps:
        k('s_waitcnt vmcnt(0)')
        ST.stamp(8); ST.stamp(9, real=True)
        ST.flush(srdO, sw, vT, vLane, base=0x100000)
    k.label(Lend)
    k("s_endpgm")
    for st_, rt, par, sm, evs in stubs:
        k.label(st_)
        slow_path(par, sm, evs)
        k(f"s_branch {rt}")
    for st_, rt, target in calls:
        k.label(st_)
        k(f"s_call_b64 {s(sRa,2)}, {target}\ns_branch {rt}")

    for par, nset in Lrs:
        k.label(Lrs[(par, nset)])
        k("s_nop 15")
        for qt in AB[:nset]:
            Sq = Sreg(par, qt); So = Sreg(par ^ 1, qt); Pq = Preg(par, qt); N_ = Nreg(qt)
            k(f"v_max3_f32 {v(T)}, {v(Sq)}, {v(Sq+1)}, {v(Sq+2)}")
            for i in (3, 5): k(f"v_max3_f32 {v(T)}, {v(T)}, {v(Sq+i)}, {v(Sq+i+1)}")
            k(f"v_max3_f32 {v(T)}, {v(T)}, {v(Sq+7)}, 0")
            xlane([T], [T + 1], "v_max_f32")
            k(f"v_exp_f32 {v(T+1)}, -{v(T)}")
            for i in range(8): k(f"v_sub_f32 {v(Sq+i)}, {v(Sq+i)}, {v(T)}")
            for i in range(8): k(f"v_sub_f32 {v(So+i)}, {v(So+i)}, {v(T)}")
            for i in range(8): k(f"v_sub_f32 {v(N_+i)}, {v(N_+i)}, {v(T)}")
            k(f"v_mul_f32 {v(vL+qt)}, {v(vL+qt)}, {v(T+1)}")
            if KS: k(f"v_add_f32 {v(vD+qt)}, {v(vD+qt)}, {v(T)}")
            for i0 in range(0, 32, 8):
                for i in range(8): k(f"v_accvgpr_read_b32 {v(T+4+i)}, {a(Oreg(qt,0)+i0+i)}")
                for i in range(8): k(f"v_mul_f32 {v(T+4+i)}, {v(T+4+i)}, {v(T+1)}")
                for i in range(8): k(f"v_accvgpr_write_b32 {a(Oreg(qt,0)+i0+i)}, {v(T+4+i)}")
            for i in range(8): k(f"v_exp_f32 {v(T+4+i)}, {v(Sq+i)}")
            k("s_nop 0")
            for i in range(4): k(f"v_cvt_pk_bf16_f32 {v(Pq+i)}, {v(T+4+2*i)}, {v(T+5+2*i)}")
            k(f"s_nop 1\n{MF} {v(TS(qt),4)}, {v(vOne,4)}, {v(Pq,4)}, 0")
        k(f"s_nop 7\ns_setpc_b64 {s(sRa,2)}")
    if INL:
        starts = [x[0] for x in outl] + [Leps, Lepf, Lepl]
        pieces = {}; rest = []; cur = None
        for ln_ in ool:
            if ln_.endswith(":") and ln_[:-1] in starts: cur = ln_[:-1]; pieces[cur] = []
            (pieces[cur] if cur else rest).append(ln_)
        out_ = []
        for ln_ in k.lines:
            if ln_.startswith("@@"): out_ += pieces.pop(ln_[2:])
            elif ln_.strip().startswith(f"s_call_b64 {s(sRe,2)}, "):
                tg = ln_.split()[-1]; pc = pieces.pop(tg); le = tg + "_r"
                assert "s_setpc" in pc[-1]
                out_ += [x if "s_setpc" not in x else f"    s_branch {le}" for x in pc[:-1]] + [le + ":"]
            else: out_.append(ln_)
        assert not pieces
        k.lines = out_; ool = rest
    k.lines += ool + ool0
    code, desc = kernel_wrap(name, k.text(), 512, 102, 256)
    return code, desc, f"; @launch kernel={name} grid=(256,1,1) block=(256,1,1) lds={LDS_BYTES}"
```

```python
import sys
sys.path.insert(0, "gen")
HEADER = open("concat_heads__sliding_local_dilated__compressed_kv_cla__prompt.s.ref").read().split("; Override launch")[0]
def assemble(mods, path):
    codes, descs, launches = [], [], []
    for m in mods:
        c, d, l = m
        codes.append(c); descs.append(d); launches.append(l)
    txt = HEADER + "\n".join(launches) + "\n" + '.amdgcn_target "amdgcn-amd-amdhsa--gfx950"\n' + "".join(codes) + "".join(descs)
    if '-awalk' in sys.argv:
        import iwalk
        txt = iwalk.run(txt)
    open(path, "w").write(txt)
if __name__ == "__main__":
    abl = [x[2:] for x in sys.argv[2:] if x.startswith('-a')]
    st = '--stamps' in sys.argv
    if '--3k' in sys.argv:
        import gemm1, attn, gemm3_v2
        mods = [gemm1.build(stamps=st, abl=abl), attn.build(stamps=st, abl=abl), gemm3_v2.build(stamps=st, abl=abl)]
    elif '--2k' in sys.argv:
        import mega6, gemm3
        mods = [mega6.build(stamps=st, abl=abl), gemm3.build(stamps=st, abl=abl)]
    else:
        import mega17
        if '--list' in sys.argv or st: mods = [mega17.build(stamps=st, abl=abl)]
        else:
            c, d, l = mega17.build(name='concat_heads__sliding_local_dilated__compressed_kv_cla__prompt_kernel', abl=abl)
            mods = [(c, d, '; @launch grid=(256,1,1) block=(256,1,1) lds=163840')]
    out = sys.argv[1] if len(sys.argv) > 1 else "concat_heads__sliding_local_dilated__compressed_kv_cla__prompt.s"
    assemble(mods, out)
    print("wrote", out)
```

```python
from asmlib import *
import math

XS = 32768
WBASE = 3 * XS
LDS_BYTES = 5 * XS
C_B = (128 ** -0.5) * math.log2(math.e)
C_A = (32 ** -0.5) * math.log2(math.e)
STG = 16384
SLOT = 32768
THR = float(2 ** 20)
CAP = 8
RESV = 4
U_PUB, U_POLL, U_CHK, U_MID, U_CP = 8, 20, 24, 16, 28
import os
ITEMS = {'7': [(12, 4), (9, 8), (11, 5), (10, 6), (15, 1), (14, 2), (13, 3), (16, 7)], '5': [(12, 4), (9, 8), (11, 6), (10, 7), (15, 1), (14, 2), (13, 3), (16, 5)],
         '6': [(12, 4), (9, 8), (11, 5), (10, 7), (15, 1), (14, 2), (13, 3), (16, 6)],
         '5b': [(9, 8), (11, 6), (12, 4), (10, 7), (15, 1), (14, 2), (13, 3), (16, 5)],
         '3': [(9, 8), (11, 6), (10, 7), (14, 2), (15, 1), (13, 4), (12, 5), (16, 3)],
         'x1': [(10, 6), (9, 8), (12, 3), (15, 1), (14, 2), (11, 7), (13, 4), (16, 5)],
         'x3': [(9, 8), (12, 4), (10, 6), (14, 2), (13, 3), (11, 7), (15, 1), (16, 5)],
         'x4': [(10, 6), (9, 8), (11, 5), (12, 4), (15, 1), (14, 2), (13, 3), (16, 7)],
         'x5': [(11, 5), (9, 8), (12, 3), (10, 7), (15, 1), (14, 2), (13, 4), (16, 6)],
         '1': [(9, 8), (11, 6), (10, 7), (12, 5), (15, 2), (14, 3), (13, 4), (16, 1)],
         '2': [(9, 8), (11, 6), (10, 7), (12, 5), (15, 1), (14, 3), (13, 4), (16, 2)],
         'p9': [(10, 7), (12, 5), (11, 6), (13, 4), (16, 1), (15, 2), (14, 3), (9, 8)],
         'y2': [(12, 5), (13, 4), (15, 1), (14, 3), (11, 6), (10, 7), (9, 8), (16, 2)],
         'y3': [(14, 2), (12, 5), (15, 1), (13, 4), (11, 6), (10, 7), (9, 8), (16, 3)],
         'y4': [(13, 3), (12, 5), (14, 2), (15, 1), (11, 6), (10, 7), (9, 8), (16, 4)],
         'z6': [(11, 5), (12, 4), (9, 8), (10, 7), (15, 1), (14, 2), (13, 3), (16, 6)],
         'z5': [(9, 8), (10, 7), (12, 4), (13, 3), (15, 1), (14, 2), (11, 6), (16, 5)],
         'z7': [(10, 7), (9, 8), (13, 3), (11, 6), (15, 1), (14, 2), (12, 5), (16, 4)],
         'z8': [(9, 7), (11, 6), (13, 3), (14, 2), (15, 1), (10, 8), (12, 5), (16, 4)],
         'k1': [(10, 6), (9, 7), (12, 4), (11, 5), (16, 1), (15, 2), (14, 3), (13, 8)],
         'k2': [(10, 6), (9, 7), (13, 4), (11, 5), (16, 1), (15, 2), (14, 3), (12, 8)],
         'k3': [(10, 6), (9, 7), (12, 4), (11, 5), (16, 1), (15, 2), (13, 3), (14, 8)],
         'k4': [(13, 3), (12, 4), (15, 1), (14, 2), (11, 7), (10, 8), (9, 6), (16, 5)],
         '4': [(9, 8), (11, 6), (10, 7), (13, 3), (15, 1), (14, 2), (12, 5), (16, 4)]}[os.environ.get('PITEM', 'k1')]
TABA = sum((x[0] - 1) << (4 * i) for i, x in enumerate(ITEMS)); TABB = sum((x[1] - 1) << (4 * i) for i, x in enumerate(ITEMS))
SPIN = 1 << 18

NS3 = 5; NC = int(os.environ.get('NC', '40')); NB = 64 - NC; NP = NB + 16; TR = 4
F_CTX, F_OA, F_PAIR = 0x2000, 0x3000, 0x4000

def build(name="mega_kernel", stamps=False, abl=(), last_kernel=None):
    last_kernel = name
    k = K('m')
    AL = int(os.environ.get('ALIGN', '3'))
    def align():
        if AL: k.lines.append(f'.p2align {AL}')
    sDb = 4; sWS = 6; srdO = 8; srdD = 12; sw = 16; sPend = 17; sStamp = 18; sRe = 20; sEx = 22
    vLane = 1; vSt = 2; vL16 = 2; vStamp = 3; vFlag = 4; vFa = 0; sTok = sDb
    ST = Stamper(k, stamps, vStamp, sStamp)
    TOUCH = 'notouch' not in abl
    L2D = int(os.environ.get('L2D', '0'))
    wsc = ' sc0 sc1' if 'sc01' in abl else ' sc1'
    sfx = ' sc1'; ksc = wsc; tsc = ' sc1' if 'tsc' in abl else ''
    gxs = wsc + (' nt' if 'ntx' in abl else ''); gws = wsc + (' nt' if 'ntw' in abl else '')
    if 'ntp' in abl: tsc += ' nt'
    S = Regs('s', 24, 90)
    sK = S.alloc('karg', 16, 4)
    srdX = S.alloc('srdX', 4, 4); srdW = S.alloc('srdW', 4, 4)
    sXoff = S.alloc('sXoff', 4); sWoff = S.alloc('sWoff', 4); sWstep = S.alloc('sWstep')
    swm = S.alloc('wm'); swn = S.alloc('wn'); sXSc = S.alloc('xsc'); sWx = S.alloc('wx')
    sXw = S.alloc('xw'); sWw = S.alloc('ww'); sXd = S.alloc('xdelta'); sXs = S.alloc('xrslot')
    sCnt = S.alloc('cnt'); sFirst = S.alloc('first'); sEvT = S.alloc('evt'); sIdx = S.alloc('idx'); sMt = S.alloc('mt'); sIsP = S.alloc('isp')
    LF = ['xlo','xhi','xsize','wlo','whi','wsize','ldx','ldw','xoff0','woff0','par']
    CF = ['nk','swp','scale','obase','Si','Sj','flag']
    P1 = {f: S.alloc('p1' + f) for f in LF + CF}
    sStp = S.alloc('stp')
    STP = 'stp' in abl
    top = Regs('s', 90, 102)
    sT = top.alloc('t', 4, 2); sHasNext = top.alloc('hasnext')
    CP = {f: top.alloc('c' + f) for f in CF}
    t0, t1, t2, t3 = sT, sT + 1, sT + 2, sT + 3
    def ptr(nm): return sK + KARG[nm] // 4
    V = Regs('v', 6, 32)
    vx = V.alloc('vx', 2); vw = V.alloc('vw', 8); vX = V.alloc('vX', 2); vW = V.alloc('vW', 4); vDum = V.alloc('dum')
    vT = V.alloc('t', 8, 4)
    assert vT == 24
    T = vT
    def acc(i, j):
        n = ((i >> 1) * 8 + j) * 2 + (i & 1)
        return ('v', 32 + 4 * n) if n < 56 else ('a', 224 + 4 * (n - 56))
    def fragX(kk, mb): return mb * 8 + kk * 4
    def fragW(kk, nb): return 64 + nb * 8 + kk * 4
    STASH = 128
    def Qreg(qt, e): return 128 + qt * 16 + e * 4

    Lend = k.newlab('end')
    k(f"s_cmp_ge_u32 s2, 256\ns_cbranch_scc1 {Lend}")
    if STP: ST.stamp(0); ST.stamp(1, real=True)
    k(f"s_load_dwordx16 {s(sK,16)}, s[0:1], 0\ns_load_dwordx4 {s(sDb,4)}, s[0:1], {KARG['dbg']}")
    if stamps and not STP:
        k("s_waitcnt lgkmcnt(0)")
        ST.stamp(0); ST.stamp(1, real=True)
    if STP: k(f"s_mov_b32 {s(sStp)}, 18")
    k(f"v_and_b32 {v(vLane)}, 63, v0\nv_lshrrev_b32 {v(vT)}, 6, v0\ns_nop 0\nv_readfirstlane_b32 {s(sw)}, {v(vT)}")
    k(f"s_lshr_b32 {s(sIdx)}, s2, 3")
    k(f"s_lshr_b32 {s(swm)}, {s(sw)}, 1\ns_and_b32 {s(swn)}, {s(sw)}, 1")
    k(f"s_mov_b32 {s(srdX+3)}, 0x20000\ns_mov_b32 {s(srdW+3)}, 0x20000")
    def t_all():
        x7 = sMt; wx = sCnt; sa = sFirst; sb = sEvT
        k(f"s_and_b32 {s(x7)}, s2, 7\ns_lshl_b32 {s(wx)}, {s(sIdx)}, 2\ns_add_u32 {s(wx)}, {s(wx)}, {s(sw)}")
        k(f"s_and_b32 {s(t0)}, {s(x7)}, 3\ns_lshl_b32 {s(t0)}, {s(t0)}, 11\ns_lshl_b32 {s(t1)}, {s(wx)}, 15\ns_add_u32 {s(t0)}, {s(t0)}, {s(t1)}")
        k(f"s_lshl_b32 {s(t1)}, {s(wx)}, 1\ns_and_b32 {s(t2)}, {s(x7)}, 1\ns_add_u32 {s(t1)}, {s(t1)}, {s(t2)}\ns_sub_u32 {s(t1)}, {s(t1)}, 128\ns_lshl_b32 {s(t1)}, {s(t1)}, 15")
        k(f"s_lshr_b32 {s(t3)}, {s(x7)}, 1\ns_lshl_b32 {s(sa)}, {s(t3)}, 11\ns_add_u32 {s(t1)}, {s(t1)}, {s(sa)}")
        k(f"s_cmp_lt_u32 {s(sIdx)}, 16\ns_cselect_b32 {s(t0)}, {s(t0)}, {s(t1)}")
        k(f"s_lshl_b32 {s(t2)}, {s(t2)}, 2\ns_add_u32 {s(t2)}, {s(t2)}, {s(t3)}\ns_lshl_b32 {s(t2)}, {s(t2)}, 4\ns_add_u32 {s(t2)}, {s(t2)}, {s(wx)}\ns_sub_u32 {s(t2)}, {s(t2)}, 96\ns_lshl_b32 {s(t2)}, {s(t2)}, 15")
        k(f"s_cmp_lt_u32 {s(sIdx)}, 24\ns_cselect_b32 {s(t0)}, {s(t0)}, {s(t2)}\ns_cselect_b32 {s(sa)}, 4, 2\ns_cselect_b32 {s(sb)}, 13, 11")
        k(f"s_lshl_b32 {s(t2)}, {s(x7)}, 4\ns_add_u32 {s(t2)}, {s(t2)}, {s(wx)}\ns_sub_u32 {s(t2)}, {s(t2)}, 112\ns_lshl_b32 {s(t2)}, {s(t2)}, 13")
        k(f"s_cmp_lt_u32 {s(sIdx)}, 28\ns_cselect_b32 {s(t0)}, {s(t0)}, {s(t2)}\ns_cselect_b32 {s(sa)}, {s(sa)}, 3\ns_cselect_b32 {s(sb)}, {s(sb)}, 10")
        k(f"v_lshrrev_b32 {v(T)}, {s(sa)}, {v(vLane)}\nv_lshlrev_b32 {v(T+1)}, {s(sa)}, {v(T)}\nv_sub_u32 {v(T+1)}, {v(vLane)}, {v(T+1)}\nv_lshlrev_b32 {v(T)}, {s(sb)}, {v(T)}\nv_lshl_add_u32 {v(vFlag)}, {v(T+1)}, 7, {v(T)}\ns_mov_b32 {s(sXd)}, {s(t0)}")
        k(f"s_mov_b32 {s(srdD+2)}, {4*1048576}\ns_mov_b32 {s(srdD+3)}, 0x20000\ns_cselect_b32 {s(srdD+2)}, {s(srdD+2)}, {2*1048576}")
    def t_go():
        x7 = t3
        k(f"s_and_b32 {s(x7)}, s2, 7\ns_cmp_lt_u32 {s(sIdx)}, 28\ns_cselect_b32 {s(srdD)}, {s(ptr('B_x'))}, {s(ptr('B_c_kv'))}\ns_cselect_b32 {s(srdD+1)}, {s(ptr('B_x')+1)}, {s(ptr('B_c_kv')+1)}")
        k(f"s_cmp_lt_u32 {s(sIdx)}, 24\ns_cselect_b32 {s(srdD)}, {s(ptr('B_w_q'))}, {s(srdD)}\ns_cselect_b32 {s(srdD+1)}, {s(ptr('B_w_q')+1)}, {s(srdD+1)}")
        k(f"s_cmp_lt_u32 {s(x7)}, 4\ns_cselect_b32 {s(t1)}, {s(ptr('B_w_uk'))}, {s(ptr('B_w_uv'))}\ns_cselect_b32 {s(t2)}, {s(ptr('B_w_uk')+1)}, {s(ptr('B_w_uv')+1)}")
        k(f"s_cmp_lt_u32 {s(sIdx)}, 16\ns_cselect_b32 {s(srdD)}, {s(t1)}, {s(srdD)}\ns_cselect_b32 {s(srdD+1)}, {s(t2)}, {s(srdD+1)}")
        k(f"buffer_load_dword {v(vDum)}, {v(vFlag)}, {s(srdD,4)}, {s(sXd)} offen")
    if 'nocpf' not in abl:
        Lc = k.newlab('ncp')
        k(f"s_cmp_lt_u32 {s(sIdx)}, 28\ns_cbranch_scc1 {Lc}\ns_sub_u32 {s(t1)}, {s(sIdx)}, 28\ns_lshl_b32 {s(t1)}, {s(t1)}, 2\ns_add_u32 {s(t1)}, {s(t1)}, {s(sw)}")
        code_prefetch(k, srdO, name, last_kernel + "_end", t1, vLane, T, vDum, t0)
        k.label(Lc)
    if 'ta' in abl: t_all()
    k(f"s_lshl_b32 {s(sXw)}, {s(sw)}, 13\ns_add_u32 {s(sWw)}, {s(sXw)}, {WBASE}")
    def late_setup():
        k.c("fragment read addresses")
        k(f"v_and_b32 {v(T)}, 15, {v(vLane)}\nv_lshrrev_b32 {v(T+1)}, 4, {v(vLane)}")
        k(f"v_bfe_u32 {v(T+2)}, {v(vLane)}, 1, 3\nv_xor_b32 {v(T+2)}, {v(T+2)}, {v(T+1)}")
        k(f"s_lshl_b32 {s(t0)}, {s(swm)}, 14\nv_lshlrev_b32 {v(T+3)}, 7, {v(T)}\nv_add_u32 {v(T+3)}, {s(t0)}, {v(T+3)}")
        for kk in range(2):
            k(f"v_xor_b32 {v(T+4)}, {4*kk}, {v(T+2)}\nv_lshl_add_u32 {v(vx+kk)}, {v(T+4)}, 4, {v(T+3)}")
        k(f"v_bfe_u32 {v(T+2)}, {v(vLane)}, 2, 2")
        k(f"v_lshl_add_u32 {v(T+3)}, {v(T+1)}, 3, {v(T+2)}\nv_lshlrev_b32 {v(T+3)}, 9, {v(T+3)}")
        k(f"v_and_b32 {v(T+4)}, 3, {v(vLane)}\nv_lshlrev_b32 {v(T+4)}, 3, {v(T+4)}\nv_add_u32 {v(T+3)}, {v(T+3)}, {v(T+4)}")
        k(f"s_lshl_b32 {s(t0)}, {s(swn)}, 8\ns_add_u32 {s(t0)}, {s(t0)}, {WBASE}\nv_add_u32 {v(T+3)}, {s(t0)}, {v(T+3)}")
        k(f"v_bfe_u32 {v(T+2)}, {v(vLane)}, 2, 3")
        for nb in range(8):
            k(f"v_xor_b32 {v(T+4)}, {nb}, {v(T+2)}\nv_lshl_add_u32 {v(vw+nb)}, {v(T+4)}, 5, {v(T+3)}")
        k(f"v_lshlrev_b32 {v(vSt)}, 4, {v(vLane)}")
        k(f"s_mov_b32 {s(sXs)}, 0")
        k(f"s_mov_b32 {s(sXSc)}, {XS}\ns_mov_b32 {s(sWx)}, {WBASE ^ (WBASE + XS)}")
    def q_params(p, ptrs=True):
        k(f"s_mov_b32 {s(p['wsize'])}, 8388608\ns_mov_b32 {s(p['ldw'])}, 8192\ns_mov_b32 {s(p['par'])}, 0")
        k(f"s_mov_b32 {s(p['xsize'])}, 4194304\ns_mov_b32 {s(p['ldx'])}, 2048\ns_mov_b32 {s(p['nk'])}, 16")
        k(f"s_lshl_b32 {s(p['woff0'])}, {s(t0)}, 9\ns_lshl_b32 {s(p['xoff0'])}, {s(sMt)}, 19\ns_lshl_b32 {s(p['flag'])}, {s(t0)}, 4\ns_add_u32 {s(p['flag'])}, {s(p['flag'])}, {s(sMt)}\ns_lshl_b32 {s(p['flag'])}, {s(p['flag'])}, 3")
        k(f"s_mov_b32 {s(p['swp'])}, 0\ns_mov_b32 {s(p['scale'])}, {f32bits(C_B)}")
        k(f"s_lshl_b32 {s(t1)}, {s(t0)}, 1\ns_add_u32 {s(t1)}, {s(t1)}, {s(swn)}\ns_lshl_b32 {s(t1)}, {s(t1)}, 19")
        k(f"s_lshl_b32 {s(t2)}, {s(sMt)}, 1\ns_add_u32 {s(t2)}, {s(t2)}, {s(swm)}\ns_lshl_b32 {s(t2)}, {s(t2)}, 15")
        k(f"s_add_u32 {s(p['obase'])}, {s(t1)}, {s(t2)}\ns_add_u32 {s(p['obase'])}, {s(p['obase'])}, {WS_QB}")
        k(f"s_mov_b32 {s(p['Si'])}, 1024\ns_mov_b32 {s(p['Sj'])}, 4096")
        if ptrs: k(f"s_mov_b32 {s(p['xlo'])}, {s(ptr('B_x'))}\ns_mov_b32 {s(p['xhi'])}, {s(ptr('B_x')+1)}\ns_mov_b32 {s(p['wlo'])}, {s(ptr('B_w_q'))}\ns_mov_b32 {s(p['whi'])}, {s(ptr('B_w_q')+1)}")
    def a_params(p):
        k(f"s_mov_b32 {s(p['wsize'])}, 6291456\ns_mov_b32 {s(p['ldw'])}, 6144\ns_mov_b32 {s(p['par'])}, 1")
        k(f"s_mov_b32 {s(p['xsize'])}, 4194304\ns_mov_b32 {s(p['ldx'])}, 2048\ns_mov_b32 {s(p['nk'])}, 16")
        k(f"s_lshl_b32 {s(p['woff0'])}, {s(t0)}, 9\ns_lshl_b32 {s(p['xoff0'])}, {s(sMt)}, 19")
        k(f"s_and_b32 {s(t2)}, {s(t0)}, 3\ns_lshr_b32 {s(t1)}, {s(t0)}, 2")
        k(f"s_lshl_b32 {s(p['flag'])}, {s(t2)}, 2\ns_add_u32 {s(p['flag'])}, {s(p['flag'])}, {s(t1)}\ns_lshl_b32 {s(p['flag'])}, {s(p['flag'])}, 3\ns_add_u32 {s(p['flag'])}, {s(p['flag'])}, {s(sMt)}\ns_lshl_b32 {s(p['flag'])}, {s(p['flag'])}, 3\ns_add_u32 {s(p['flag'])}, {s(p['flag'])}, {48*128}")
        k(f"s_cmp_eq_u32 {s(t1)}, 0\ns_cselect_b32 {s(p['scale'])}, {f32bits(C_A)}, 0")
        k(f"s_lshl_b32 {s(t3)}, {s(t1)}, 22\ns_add_u32 {s(p['obase'])}, {s(t3)}, {WS_QA}")
        k(f"s_lshl_b32 {s(t2)}, {s(t2)}, 1\ns_add_u32 {s(t2)}, {s(t2)}, {s(swn)}\ns_lshl_b32 {s(t2)}, {s(t2)}, 19\ns_add_u32 {s(p['obase'])}, {s(p['obase'])}, {s(t2)}")
        k(f"s_lshl_b32 {s(t2)}, {s(swm)}, 3\ns_add_u32 {s(t2)}, {s(t2)}, {s(sMt)}")
        k(f"s_cmp_eq_u32 {s(t1)}, 2\ns_cselect_b32 {s(p['swp'])}, 1, 0\ns_cselect_b32 {s(t3)}, 12, 13")
        k(f"s_mov_b32 {s(t1)}, 131072\ns_cselect_b32 {s(p['Si'])}, 1024, {s(t1)}\ns_mov_b32 {s(t1)}, 1024\ns_cselect_b32 {s(p['Sj'])}, 65536, {s(t1)}")
        k(f"s_lshl_b32 {s(t2)}, {s(t2)}, {s(t3)}\ns_add_u32 {s(p['obase'])}, {s(p['obase'])}, {s(t2)}")
        k(f"s_mov_b32 {s(p['xlo'])}, {s(ptr('A_x'))}\ns_mov_b32 {s(p['xhi'])}, {s(ptr('A_x')+1)}\ns_mov_b32 {s(p['wlo'])}, {s(ptr('A_wqkv'))}\ns_mov_b32 {s(p['whi'])}, {s(ptr('A_wqkv')+1)}")
    def kv_params(p, ptrs=True):
        k(f"s_cmp_lt_u32 {s(t0)}, 16\ns_cselect_b32 {s(p['swp'])}, 0, 1")
        k(f"s_mov_b32 {s(t1)}, {WS_VB}\ns_cselect_b32 {s(p['obase'])}, {WS_KB}, {s(t1)}")
        k(f"s_mov_b32 {s(t1)}, 8192\ns_cselect_b32 {s(p['Si'])}, 1024, {s(t1)}")
        k(f"s_mov_b32 {s(t1)}, 1024\ns_cselect_b32 {s(p['Sj'])}, 4096, {s(t1)}")
        if ptrs: k(f"s_cselect_b32 {s(p['wlo'])}, {s(ptr('B_w_uk'))}, {s(ptr('B_w_uv'))}\ns_cselect_b32 {s(p['whi'])}, {s(ptr('B_w_uk')+1)}, {s(ptr('B_w_uv')+1)}")
        if ptrs: k(f"s_mov_b32 {s(p['xlo'])}, {s(ptr('B_c_kv'))}\ns_mov_b32 {s(p['xhi'])}, {s(ptr('B_c_kv')+1)}")
        k(f"s_mov_b32 {s(p['xsize'])}, 2097152\ns_mov_b32 {s(p['ldx'])}, 1024\ns_mov_b32 {s(p['nk'])}, 8\ns_mov_b32 {s(p['par'])}, 0")
        k(f"s_mov_b32 {s(p['wsize'])}, 4194304\ns_mov_b32 {s(p['ldw'])}, 8192\ns_mov_b32 {s(p['scale'])}, 0")
        k(f"s_and_b32 {s(t0)}, {s(t0)}, 15\ns_lshl_b32 {s(p['woff0'])}, {s(t0)}, 9\ns_lshl_b32 {s(p['xoff0'])}, {s(sMt)}, 18")
        k(f"s_lshl_b32 {s(t1)}, {s(p['swp'])}, 2\ns_add_u32 {s(t1)}, {s(t1)}, {s(sMt)}\ns_cmp_ge_u32 {s(sMt)}, 4\ns_cselect_b32 {s(t2)}, {512 - 4}, 8\ns_add_u32 {s(t1)}, {s(t1)}, {s(t2)}")
        k(f"s_lshl_b32 {s(p['flag'])}, {s(t0)}, 4\ns_add_u32 {s(p['flag'])}, {s(p['flag'])}, {s(t1)}\ns_lshl_b32 {s(p['flag'])}, {s(p['flag'])}, 3")
        k(f"s_lshl_b32 {s(t1)}, {s(t0)}, 1\ns_add_u32 {s(t1)}, {s(t1)}, {s(swn)}\ns_lshl_b32 {s(t1)}, {s(t1)}, 19")
        k(f"s_lshl_b32 {s(t2)}, {s(sMt)}, 1\ns_add_u32 {s(t2)}, {s(t2)}, {s(swm)}\ns_lshl_b32 {s(t2)}, {s(t2)}, 15")
        k(f"s_add_u32 {s(p['obase'])}, {s(p['obase'])}, {s(t1)}\ns_add_u32 {s(p['obase'])}, {s(p['obase'])}, {s(t2)}")
    def tile_long(mul):
        k(f"s_and_b32 {s(sMt)}, {s(sIdx)}, 3\ns_and_b32 {s(t0)}, s2, 1\ns_lshl_b32 {s(t0)}, {s(t0)}, 2\ns_add_u32 {s(sMt)}, {s(sMt)}, {s(t0)}")
        k(f"s_bfe_u32 {s(t0)}, s2, 0x20001\ns_mul_i32 {s(t0)}, {s(t0)}, {mul}\ns_bfe_u32 {s(t1)}, {s(sIdx)}, 0x20002\ns_add_u32 {s(t0)}, {s(t0)}, {s(t1)}")
    def tile_kv(late):
        k(f"s_bfe_u32 {s(sMt)}, {s(sIdx)}, 0x20002\ns_add_u32 {s(sMt)}, {s(sMt)}, {4*late}\ns_and_b32 {s(t0)}, s2, 7\ns_lshl_b32 {s(t0)}, {s(t0)}, 2\ns_and_b32 {s(t1)}, {s(sIdx)}, 3\ns_add_u32 {s(t0)}, {s(t0)}, {s(t1)}")

    def act_load(p, part=(0, 1), which="xw"):
        if 0 in part and 'x' in which:
            k(f"s_mov_b32 {s(srdX+2)}, {s(p['xsize'])}")
            k(f"s_lshl_b32 {s(t0)}, {s(p['ldx'])}, 4\ns_lshl_b32 {s(t0)}, {s(t0)}, {s(p['par'])}")
            k(f"s_mov_b32 {s(sXoff)}, {s(p['xoff0'])}")
            for a_ in (1, 2, 3):
                k(f"s_mul_i32 {s(t1)}, {s(t0)}, {a_}\ns_add_u32 {s(sXoff+a_)}, {s(t1)}, {s(p['xoff0'])}")
                if a_ & 1: k(f"s_sub_u32 {s(sXoff+a_)}, {s(sXoff+a_)}, 2048")
            k(f"s_lshl_b32 {s(t0)}, {s(swn)}, 7\ns_add_u32 {s(t0)}, {s(t0)}, {s(swm)}\ns_lshl_b32 {s(t1)}, {s(sw)}, 6\ns_cmp_eq_u32 {s(p['par'])}, 1\ns_cselect_b32 {s(t0)}, {s(t0)}, {s(t1)}")
            k(f"v_lshrrev_b32 {v(T)}, 3, {v(vLane)}\nv_lshlrev_b32 {v(T)}, {s(p['par'])}, {v(T)}")
            k(f"v_add_u32 {v(T)}, {s(t0)}, {v(T)}\nv_mul_lo_u32 {v(T)}, {v(T)}, {s(p['ldx'])}")
            k(f"v_lshrrev_b32 {v(T+1)}, 4, {v(vLane)}\nv_and_b32 {v(T+2)}, 7, {v(vLane)}\nv_xor_b32 {v(T+1)}, {v(T+1)}, {v(T+2)}")
            k(f"v_lshl_add_u32 {v(vX)}, {v(T+1)}, 4, {v(T)}")
            k(f"v_xor_b32 {v(T+1)}, 4, {v(T+1)}\nv_lshl_add_u32 {v(vX+1)}, {v(T+1)}, 4, {v(T)}")
            k(f"s_lshl_b32 {s(t0)}, {s(p['ldx'])}, 3\ns_lshl_b32 {s(t0)}, {s(t0)}, {s(p['par'])}\ns_sub_u32 {s(t0)}, {s(t0)}, 1024\nv_add_u32 {v(vX+1)}, {s(t0)}, {v(vX+1)}")
        if 0 in part and 'w' in which:
            k(f"s_mov_b32 {s(srdW+2)}, {s(p['wsize'])}")
            k(f"s_mov_b32 {s(sWoff)}, {s(p['woff0'])}\ns_lshl_b32 {s(t0)}, {s(p['ldw'])}, 2")
            for a_ in (1, 2, 3):
                k(f"s_mul_i32 {s(t1)}, {s(t0)}, {a_}\ns_add_u32 {s(sWoff+a_)}, {s(t1)}, {s(p['woff0'])}")
                if a_ & 1: k(f"s_sub_u32 {s(sWoff+a_)}, {s(sWoff+a_)}, 2048")
            k(f"s_lshl_b32 {s(sWstep)}, {s(p['ldw'])}, 6")
            k(f"v_lshrrev_b32 {v(T)}, 5, {v(vLane)}\ns_lshl_b32 {s(t0)}, {s(sw)}, 4\nv_add_u32 {v(T+1)}, {s(t0)}, {v(T)}\nv_mul_lo_u32 {v(T+1)}, {v(T+1)}, {s(p['ldw'])}")
            k(f"v_lshlrev_b32 {v(T)}, 1, {v(T)}\nv_and_b32 {v(T+2)}, 31, {v(vLane)}\nv_xor_b32 {v(T)}, {v(T)}, {v(T+2)}")
            k(f"s_lshl_b32 {s(t0)}, {s(p['ldw'])}, 1\ns_sub_u32 {s(t0)}, {s(t0)}, 1024\nv_add_u32 {v(T+3)}, {s(t0)}, {v(T+1)}")
            for u in range(2):
                for e in range(2):
                    k(f"v_xor_b32 {v(T+2)}, {4*e + 8*u}, {v(T)}\nv_lshl_add_u32 {v(vW+e+2*u)}, {v(T+2)}, 4, {v(T+3) if e else v(T+1)}")
        if 1 in part:
            if 'x' in which: k(f"s_mov_b32 {s(srdX)}, {s(p['xlo'])}\ns_mov_b32 {s(srdX+1)}, {s(p['xhi'])}")
            if 'w' in which: k(f"s_mov_b32 {s(srdW)}, {s(p['wlo'])}\ns_mov_b32 {s(srdW+1)}, {s(p['whi'])}")
    def act_comp(p):
        for f in CP: k(f"s_mov_b32 {s(CP[f])}, {s(p[f])}")

    def dmaX(j):
        out = []
        if j % 4 == 0: out.append(f"s_add_u32 m0, {s(sXw)}, {4096 * (j // 4)}\ns_nop 0")
        out.append(f"buffer_load_dwordx4 {v(vX + (j & 1))}, {s(srdX,4)}, {s(sXoff + (j >> 1))} offen offset:{(j & 3) * 1024}{gxs} lds")
        if j & 1: out.append(f"s_add_u32 {s(sXoff + (j >> 1))}, {s(sXoff + (j >> 1))}, 128")
        return out
    def dmaW(j):
        out = []
        if j % 4 == 0: out.append(f"s_add_u32 m0, {s(sWw)}, {4096 * (j // 4)}\ns_nop 0")
        out.append(f"buffer_load_dwordx4 {v(vW + (j & 1) + 2 * (j >> 2))}, {s(srdW,4)}, {s(sWoff + (j >> 1))} offen offset:{(j & 3) * 1024}{gws} lds")
        if j & 1: out.append(f"s_add_u32 {s(sWoff + (j >> 1))}, {s(sWoff + (j >> 1))}, {s(sWstep)}")
        return out
    def rotXw():
        return [f"s_add_u32 {s(sXw)}, {s(sXw)}, {XS}\ns_cmp_ge_u32 {s(sXw)}, {3*XS}", f"s_cselect_b32 {s(t0)}, {3*XS}, 0\ns_sub_u32 {s(sXw)}, {s(sXw)}, {s(t0)}"]
    def rotWw():
        return [f"s_xor_b32 {s(sWw)}, {s(sWw)}, {WBASE ^ (WBASE + XS)}"]
    def rdX(kk, mb): return (('x', mb), f"ds_read_b128 {a(fragX(kk, mb), 4)}, {v(vx + kk)} offset:{mb * 2048}")
    def rdW(kk, nb, t): return (('w', nb), f"ds_read_b64_tr_b16 {a(fragW(kk, nb) + 2 * t, 2)}, {v(vw + nb)} offset:{(32 * kk + 4 * t) * 512}")
    def rdWpair(p_): return [rdW(kk, nb, t) for nb in (2 * p_, 2 * p_ + 1) for kk in range(2) for t in range(2)]

    MB = 1 << 20
    def pf_setup():
        k(f"s_sub_u32 {s(t3)}, s2, 224\ns_lshl_b32 {s(t3)}, {s(t3)}, 2\ns_add_u32 {s(t3)}, {s(t3)}, {s(sw)}")
        k(f"v_lshlrev_b32 {v(T)}, 7, {v(vLane)}")
        k(f"v_lshrrev_b32 {v(T+1)}, 3, {v(vLane)}\nv_lshlrev_b32 {v(T+1)}, 11, {v(T+1)}\nv_and_b32 {v(T+2)}, 7, {v(vLane)}\nv_lshl_add_u32 {v(T+1)}, {v(T+2)}, 7, {v(T+1)}")
        k(f"s_lshl_b32 {s(t2)}, {s(t3)}, 13\ns_lshl_b32 {s(t3)}, {s(t3)}, 14\ns_add_u32 {s(t3)}, {s(t3)}, 1024")
    def region(p_, size, off, nbytes, rows=False):
        k(f"s_mov_b32 {s(srdD)}, {s(p_)}\ns_mov_b32 {s(srdD+1)}, {s(p_+1)}\ns_mov_b32 {s(srdD+2)}, {size}")
        step = 2 * MB if rows else MB
        for o in range(off, off + nbytes, step):
            k(f"s_add_u32 {s(t0)}, {s(t3 if rows else t2)}, {o}\nbuffer_load_dword {v(vDum)}, {v(T+1 if rows else T)}, {s(srdD,4)}, {s(t0)} offen{tsc}")
    def publish(sflag, vp=vFlag):
        L = k.newlab('np')
        k(f"s_cmp_lg_u32 {s(sw)}, 0\ns_cbranch_scc1 {L}")
        k(f"v_mov_b32 {v(vp)}, {s(sTok)}\nv_mov_b32 {v(vp+1)}, {s(sTok+1)}\ns_add_u32 {s(t0)}, {s(sflag)}, {WS_FLAG}\ns_mov_b64 exec, 1")
        k(f"buffer_store_dwordx2 {v(vp,2)}, off, {s(srdO,4)}, {s(t0)} sc1\ns_mov_b64 exec, -1")
        k.label(L)
    def dbgmax(word, grp=False):
        if 'dbg' not in abl: return
        L = k.newlab('dm')
        k(f"s_cmp_lg_u32 {s(sw)}, 0\ns_cbranch_scc1 {L}\ns_memrealtime {s(sStamp,2)}\ns_waitcnt lgkmcnt(0)\ns_sub_u32 {s(sStamp)}, {s(sStamp)}, {s(sTok)}\nv_mov_b32 {v(vStamp)}, {s(sStamp)}")
        if grp: k(f"s_lshr_b32 {s(sStamp)}, s2, 5\ns_cmp_eq_u32 {s(sStamp)}, 7\ns_cselect_b32 {s(sStamp)}, 4, 0")
        else: k(f"s_mov_b32 {s(sStamp)}, 0")
        k(f"s_mov_b64 exec, 1\nbuffer_atomic_umax {v(vStamp)}, off, {s(srdD,4)}, {s(sStamp)} offset:{word*4}\ns_mov_b64 exec, -1")
        k.label(L)
    def head_ids():
        k(f"s_and_b32 {s(t2)}, s2, 7\ns_lshl_b32 {s(t2)}, {s(t2)}, 2\ns_bfe_u32 {s(t3)}, s2, 0x20003\ns_add_u32 {s(t2)}, {s(t2)}, {s(t3)}\ns_lshr_b32 {s(t3)}, s2, 5\ns_lshl_b32 {s(t3)}, {s(t3)}, 2\ns_or_b32 {s(t3)}, {s(t3)}, 0x40000")
    pKV = sK + 8; pQ = sK + 9; pFl = sK + 13
    def flag_lanes(what):
        if what == 'kv':
            k(f"v_and_b32 {v(vFa)}, 3, {v(vLane)}\nv_min_u32 {v(vFa)}, 2, {v(vFa)}\nv_and_b32 {v(T)}, 4, {v(vLane)}\nv_add3_u32 {v(vFa)}, {v(vFa)}, {v(T)}, 8")
        else:
            k(f"s_bfe_u32 {s(t1)}, {TABB}, {s(t3)}\ns_lshr_b32 {s(t1)}, {s(t1)}, 1\nv_mov_b32 {v(vFa)}, {s(t1)}")
            if what == 'all': k(f"v_and_b32 {v(T)}, 3, {v(vLane)}\nv_min_u32 {v(T)}, 2, {v(T)}\nv_and_b32 {v(T+1)}, 4, {v(vLane)}\nv_add3_u32 {v(T)}, {v(T)}, {v(T+1)}, 8\nv_cmp_gt_u32 vcc, 8, {v(vLane)}\ns_nop 1\nv_cndmask_b32 {v(vFa)}, {v(vFa)}, {v(T)}, vcc")
            k(f"s_bfe_u32 {s(t1)}, {TABA}, {s(t3)}\ns_lshr_b32 {s(t1)}, {s(t1)}, 1\nv_writelane_b32 {v(vFa)}, {s(t1)}, 8")
        k(f"v_lshlrev_b32 {v(vFa)}, 3, {v(vFa)}")
    def precompute():
        head_ids()
        k(f"s_lshr_b32 {s(pFl)}, {s(t2)}, 1\ns_lshl_b32 {s(pFl)}, {s(pFl)}, 7\ns_add_u32 {s(pFl)}, {s(pFl)}, {WS_FLAG}\ns_lshl_b32 {s(t2)}, {s(t2)}, 19")
        k(f"s_lshl_b32 {s(t1)}, {s(swn)}, 13\ns_add_u32 {s(t0)}, {s(t2)}, {s(t1)}\ns_cmp_eq_u32 {s(swm)}, 0\ns_mov_b32 {s(t1)}, {WS_VB - STG}\ns_cselect_b32 {s(t1)}, {WS_KB}, {s(t1)}\ns_add_u32 {s(pKV)}, {s(t0)}, {s(t1)}")
        for st in range(2):
            k(f"s_bfe_u32 {s(t0)}, {TABA if st == 0 else TABB}, {s(t3)}\ns_lshl_b32 {s(t0)}, {s(t0)}, 3\ns_lshl_b32 {s(t1)}, {s(sw)}, 1\ns_add_u32 {s(t0)}, {s(t0)}, {s(t1)}\ns_lshl_b32 {s(t0)}, {s(t0)}, 12\ns_add_u32 {s(t0)}, {s(t0)}, {s(t2)}")
            k(f"s_add_u32 {s(pQ+2*st)}, {s(t0)}, {WS_QB}\ns_add_u32 {s(pQ+2*st+1)}, {s(t0)}, {WS_QB + 4096}")
        flag_lanes('all')
    def early_load(what=None):
        if what: head_ids(); flag_lanes(what)
        k(f"buffer_load_dwordx2 {v(vFlag,2)}, {v(vFa)}, {s(srdO,4)}, {s(pFl)} offen sc1")
    def early_check(what):
        Ls = k.newlab('spin'); Lok = k.newlab('ok')
        k(f"s_mov_b32 s3, {SPIN}")
        k.label(Ls)
        k(f"v_cmp_ne_u64 {s(sEx,2)}, {s(sTok,2)}, {v(vFlag,2)}\ns_nop 3\ns_cmp_eq_u64 {s(sEx,2)}, 0\ns_cbranch_scc1 {Lok}\ns_sub_u32 s3, s3, 1\ns_cbranch_scc1 {Lok}\ns_sleep 16")
        early_load()
        k(f"s_waitcnt vmcnt(0)\ns_branch {Ls}")
        k.label(Lok)
    def kv_cursor(offs, srd, ks):
        k(f"s_add_u32 {s(offs)}, {s(pKV)}, {ks * STG}\ns_mov_b32 {s(offs+1)}, {s(offs)}\ns_add_u32 {s(offs+2)}, {s(offs)}, 4096\ns_mov_b32 {s(offs+3)}, {s(offs+2)}")
        if ks == 0: k(f"s_cmp_eq_u32 {s(swm)}, 0\ns_cselect_b32 {s(srd+2)}, {WS_SIZE}, 0")
        if ks in (1, 3): k(f"s_mov_b32 {s(srd+2)}, {WS_SIZE}")
        if ks in (0, 3): k(f"s_mov_b32 {s(srd)}, {s(sWS)}\ns_mov_b32 {s(srd+1)}, {s(sWS+1)}")
    tok_load = f"buffer_load_dwordx2 {v(vFlag,2)}, off, {s(srdD,4)}, 0 sc1"
    def tok_get():
        Ls = k.newlab('spin'); Lok = k.newlab('ok')
        k(f"s_mov_b32 s3, {SPIN}")
        k.label(Ls)
        k(f"v_readfirstlane_b32 {s(sTok)}, {v(vFlag)}\nv_readfirstlane_b32 {s(sTok+1)}, {v(vFlag+1)}\ns_nop 3\ns_cmp_lg_u32 {s(sTok)}, 0\ns_cbranch_scc1 {Lok}\ns_sub_u32 s3, s3, 1\ns_cbranch_scc1 {Lok}\ns_sleep 32")
        k(f"{tok_load}\ns_waitcnt vmcnt(0)\ns_branch {Ls}")
        k.label(Lok)
    def q_loads(qts, sel=None):
        for qt in qts:
            for e in range(4):
                if sel is None or qt * 4 + e in sel: k(f"buffer_load_dwordx4 {a(Qreg(qt, e), 4)}, {v(vL16)}, {s(srdO,4)}, {s(pQ+qt)} offen offset:{e*1024} sc1")

    La = k.newlab('typea'); Lb = k.newlab('go1'); Lnp = k.newlab('nopf'); Lpf = k.newlab('pf')
    k(f"s_cmp_ge_u32 {s(sIdx)}, 16\ns_cbranch_scc1 {La}")
    tile_long(4); q_params(P1, False)
    k(f"s_branch {Lb}")
    k.label(La)
    tile_kv(0); kv_params(P1, False)
    k.label(Lb)
    act_load(P1, (0,))
    k(f"s_cmp_eq_u32 {s(P1['swp'])}, 0\ns_waitcnt lgkmcnt(0)\ns_cselect_b32 {s(srdW)}, {s(ptr('B_w_uk'))}, {s(ptr('B_w_uv'))}\ns_cselect_b32 {s(srdW+1)}, {s(ptr('B_w_uk')+1)}, {s(ptr('B_w_uv')+1)}")
    k(f"s_cmp_lt_u32 {s(sIdx)}, 16\ns_cselect_b32 {s(srdW)}, {s(ptr('B_w_q'))}, {s(srdW)}\ns_cselect_b32 {s(srdW+1)}, {s(ptr('B_w_q')+1)}, {s(srdW+1)}")
    k(f"s_cselect_b32 {s(srdX)}, {s(ptr('B_x'))}, {s(ptr('B_c_kv'))}\ns_cselect_b32 {s(srdX+1)}, {s(ptr('B_x')+1)}, {s(ptr('B_c_kv')+1)}")
    TAP = int(os.environ.get('TAP', '0'))
    if 'ta' in abl and TAP == 0: t_go()
    if 'ct' in abl:
        Lw_ = k.newlab('ctw'); Le_ = k.newlab('cte')
        k(f"s_bfe_u32 {s(t0)}, {s(sIdx)}, 0x20002\ns_and_b32 {s(t1)}, {s(sIdx)}, 3\ns_cmp_lt_u32 {s(sIdx)}, 16\ns_cselect_b32 {s(t2)}, {s(t0)}, {s(t1)}\ns_cselect_b32 {s(t3)}, {s(t1)}, {s(t0)}")
        k(f"s_cmp_eq_u32 {s(swn)}, 1\ns_cbranch_scc1 {Lw_}")
        k(f"s_lshl_b32 {s(t2)}, {s(t2)}, 6\nv_add_u32 {v(T)}, {s(t2)}, {v(vLane)}\nv_mul_lo_u32 {v(T)}, {v(T)}, {s(P1['ldx'])}\ns_lshl_b32 {s(t0)}, {s(swm)}, 7\ns_add_u32 {s(t0)}, {s(t0)}, {s(P1['xoff0'])}")
        k(f"buffer_load_dword {v(vDum)}, {v(T)}, {s(srdX,4)}, {s(t0)} offen\ns_branch {Le_}")
        k.label(Lw_)
        k(f"s_lshl_b32 {s(t0)}, {s(swm)}, 2\ns_add_u32 {s(t3)}, {s(t3)}, {s(t0)}\ns_lshl_b32 {s(t3)}, {s(t3)}, 17\ns_add_u32 {s(t3)}, {s(t3)}, {s(P1['woff0'])}")
        k(f"v_lshrrev_b32 {v(T)}, 2, {v(vLane)}\nv_lshlrev_b32 {v(T)}, 13, {v(T)}\nv_and_b32 {v(T+1)}, 3, {v(vLane)}\nv_lshl_add_u32 {v(T)}, {v(T+1)}, 7, {v(T)}")
        k(f"buffer_load_dword {v(vDum)}, {v(T)}, {s(srdW,4)}, {s(t3)} offen")
        k.label(Le_)
        if 'ctb' in abl: k("s_barrier")
    k(f"s_cmp_ge_u32 {s(sIdx)}, 28\ns_cselect_b32 {s(sIsP)}, 1, 0\ns_cbranch_scc1 {Lpf}")
    k.label(Lnp)
    save0 = k.lines; k.lines = []
    k.label(Lpf)
    if 'ta' in abl and TAP: t_go()
    k(f"s_mov_b32 {s(srdD+3)}, 0x20000")
    if 'tlb' in abl:
        G = int(os.environ.get('TLBG', '16'))
        k(f"s_sub_u32 {s(t3)}, {s(sIdx)}, 28\ns_lshl_b32 {s(t3)}, {s(t3)}, 2\ns_add_u32 {s(t3)}, {s(t3)}, {s(sw)}\ns_lshl_b32 {s(t3)}, {s(t3)}, {6 + G}\nv_lshlrev_b32 {v(T)}, {G}, {v(vLane)}")
        k(f"s_load_dwordx4 {s(srdO,4)}, s[0:1], {KARG['B_w_o']}\ns_waitcnt lgkmcnt(0)")
        for (lo, size) in ((sWS, 0x7100000), (srdO + 2, 8 * MB), (srdO, 8 * MB), (ptr('A_wo'), 2 * MB)):
            k(f"s_mov_b32 {s(srdD)}, {s(lo)}\ns_mov_b32 {s(srdD+1)}, {s(lo+1)}\ns_mov_b32 {s(srdD+2)}, {size}")
            for o in range(0, size, 1024 << G):
                k(f"s_add_u32 {s(t0)}, {s(t3)}, {o}\nv_add_u32 {v(T+1)}, {s(t0)}, {v(T)}\nbuffer_load_dword {v(vDum)}, {v(T+1)}, {s(srdD,4)}, 0 offen")
    if 'nopf' not in abl:
        pf_setup()
        PO = os.environ.get('PORD', '0')
        if PO == '0':
            region(ptr('A_wqkv'), 6 * MB, 0, 2 * MB); region(ptr('A_x'), 4 * MB, 0, 4 * MB)
            region(ptr('B_w_q'), 8 * MB, 4 * MB, 2 * MB); region(ptr('B_x'), 4 * MB, 0, 4 * MB, True)
            region(ptr('A_wqkv'), 6 * MB, 2 * MB, 1 * MB); region(ptr('B_w_q'), 8 * MB, 6 * MB, 2 * MB); region(ptr('A_wqkv'), 6 * MB, 3 * MB, 3 * MB)
            region(ptr('B_c_kv'), 2 * MB, 1 * MB, 1 * MB)
        else:
            k(f"v_lshrrev_b32 {v(T+1)}, 2, {v(vLane)}\nv_lshlrev_b32 {v(T+1)}, 11, {v(T+1)}\nv_and_b32 {v(T+2)}, 3, {v(vLane)}\nv_lshl_add_u32 {v(T+1)}, {v(T+2)}, 7, {v(T+1)}\ns_lshl_b32 {s(t3)}, {s(t2)}, 2")
            def xq(p_, q): region(p_, 4 * MB, q * 512, 1, True)
            wq, wa, bx, ax = ptr('B_w_q'), ptr('A_wqkv'), ptr('B_x'), ptr('A_x')
            if PO == '1':
                region(wq, 8 * MB, 1 * MB, 2 * MB); xq(bx, 1); region(wq, 8 * MB, 3 * MB, 2 * MB); xq(bx, 2); region(wq, 8 * MB, 5 * MB, 1 * MB)
                region(wa, 6 * MB, 0, 1 * MB); xq(ax, 0); region(wq, 8 * MB, 6 * MB, 1 * MB); xq(bx, 3); region(wa, 6 * MB, 1 * MB, 1 * MB); xq(ax, 1); region(wq, 8 * MB, 7 * MB, 1 * MB)
                region(wa, 6 * MB, 2 * MB, 2 * MB); xq(ax, 2); region(wa, 6 * MB, 4 * MB, 1 * MB); xq(ax, 3); region(wa, 6 * MB, 5 * MB, 1 * MB); region(ptr('B_c_kv'), 2 * MB, 1 * MB, 1 * MB)
            if PO == '2':
                uk, uv = ptr('B_w_uk'), ptr('B_w_uv')
                region(wq, 8 * MB, 1 * MB, 1 * MB); region(uk, 4 * MB, 2 * MB, 1 * MB); region(uv, 4 * MB, 2 * MB, 1 * MB); region(wq, 8 * MB, 2 * MB, 1 * MB); xq(bx, 1)
                region(uk, 4 * MB, 3 * MB, 1 * MB); region(uv, 4 * MB, 3 * MB, 1 * MB); region(wq, 8 * MB, 3 * MB, 2 * MB); xq(bx, 2)
                region(wa, 6 * MB, 0, 1 * MB); xq(ax, 0); region(wq, 8 * MB, 5 * MB, 2 * MB); xq(bx, 3); region(wa, 6 * MB, 1 * MB, 1 * MB); xq(ax, 1); region(wq, 8 * MB, 7 * MB, 1 * MB)
                region(wa, 6 * MB, 2 * MB, 2 * MB); xq(ax, 2); region(wa, 6 * MB, 4 * MB, 1 * MB); xq(ax, 3); region(wa, 6 * MB, 5 * MB, 1 * MB); region(ptr('B_c_kv'), 2 * MB, 1 * MB, 1 * MB)
            if PO == '6':
                region(wq, 8 * MB, 1 * MB, 2 * MB); xq(bx, 1); region(wq, 8 * MB, 3 * MB, 2 * MB); xq(bx, 2); region(wq, 8 * MB, 5 * MB, 1 * MB)
                region(wa, 6 * MB, 0, 1 * MB); xq(ax, 0); region(wq, 8 * MB, 6 * MB, 1 * MB); xq(bx, 3); region(wa, 6 * MB, 1 * MB, 1 * MB); xq(ax, 1); region(wq, 8 * MB, 7 * MB, 1 * MB)
                region(wa, 6 * MB, 2 * MB, 1 * MB); region(ptr('B_c_kv'), 2 * MB, 1 * MB, 1 * MB)
            if PO == '7':
                region(wq, 8 * MB, 1 * MB, 2 * MB); xq(bx, 1); region(wq, 8 * MB, 3 * MB, 2 * MB); xq(bx, 2); region(wq, 8 * MB, 5 * MB, 2 * MB); xq(bx, 3); region(wq, 8 * MB, 7 * MB, 1 * MB)
                region(wa, 6 * MB, 2 * MB, 2 * MB); xq(ax, 2); region(wa, 6 * MB, 4 * MB, 1 * MB); xq(ax, 3); region(wa, 6 * MB, 5 * MB, 1 * MB); region(ptr('B_c_kv'), 2 * MB, 1 * MB, 1 * MB)
            uk, uv, ck = ptr('B_w_uk'), ptr('B_w_uv'), ptr('B_c_kv')
            def half2(pa, sa, oa, pb, sb, ob):
                k(f"s_cmp_lt_u32 {s(t2)}, {MB//2}\ns_cselect_b32 {s(srdD)}, {s(pa)}, {s(pb)}\ns_cselect_b32 {s(srdD+1)}, {s(pa+1)}, {s(pb+1)}\ns_mov_b32 {s(t0)}, {sb}\ns_cselect_b32 {s(srdD+2)}, {sa}, {s(t0)}")
                k(f"s_mov_b32 {s(t0)}, {(ob - MB//2) & 0xffffffff}\ns_cselect_b32 {s(t0)}, {oa}, {s(t0)}\ns_add_u32 {s(t0)}, {s(t0)}, {s(t2)}\nbuffer_load_dword {v(vDum)}, {v(T)}, {s(srdD,4)}, {s(t0)} offen{tsc}")
            H = MB // 2
            def rest8():
                region(wq, 8 * MB, 4 * MB, 1 * MB); xq(bx, 2); region(wa, 6 * MB, 0, 1 * MB); xq(ax, 0); region(wq, 8 * MB, 5 * MB, 1 * MB); region(wa, 6 * MB, 1 * MB, 1 * MB); xq(ax, 1)
                region(wq, 8 * MB, 6 * MB, 1 * MB); xq(bx, 3); region(wa, 6 * MB, 2 * MB, 1 * MB); region(wq, 8 * MB, 7 * MB, 1 * MB); xq(ax, 2)
                region(wa, 6 * MB, 3 * MB, 1 * MB); region(ck, 2 * MB, 1 * MB, 1 * MB); region(wa, 6 * MB, 4 * MB, 1 * MB); xq(ax, 3); region(wa, 6 * MB, 5 * MB, 1 * MB)
            if PO == '8':
                half2(wq, 8*MB, 2*H, uk, 4*MB, 2*H); half2(uv, 4*MB, 2*H, wq, 8*MB, 3*H); xq(bx, 0); half2(uk, 4*MB, 3*H, uv, 4*MB, 3*H); region(ck, 2 * MB, 0, 1 * MB)
                half2(wq, 8*MB, 4*H, uk, 4*MB, 4*H); xq(bx, 1); half2(uv, 4*MB, 4*H, wq, 8*MB, 5*H); half2(uk, 4*MB, 5*H, uv, 4*MB, 5*H)
                half2(wq, 8*MB, 6*H, uk, 4*MB, 6*H); half2(uv, 4*MB, 6*H, wq, 8*MB, 7*H); half2(uk, 4*MB, 7*H, uv, 4*MB, 7*H)
                rest8()
            if PO == '9':
                half2(wq, 8*MB, 3*H, uk, 4*MB, 3*H); half2(uv, 4*MB, 3*H, wq, 8*MB, 4*H); xq(bx, 1); half2(uk, 4*MB, 4*H, uv, 4*MB, 4*H)
                half2(wq, 8*MB, 5*H, uk, 4*MB, 5*H); half2(uv, 4*MB, 5*H, wq, 8*MB, 6*H); half2(uk, 4*MB, 6*H, uv, 4*MB, 6*H)
                half2(wq, 8*MB, 7*H, uk, 4*MB, 7*H); half2(uv, 4*MB, 7*H, wa, 6*MB, 0)
                rest8()
            if PO == 'a':
                half2(wq, 8*MB, 4*H, uk, 4*MB, 4*H); xq(bx, 1); half2(uv, 4*MB, 4*H, wq, 8*MB, 5*H); half2(uk, 4*MB, 5*H, uv, 4*MB, 5*H)
                half2(wq, 8*MB, 6*H, uk, 4*MB, 6*H); half2(uv, 4*MB, 6*H, wq, 8*MB, 7*H); half2(uk, 4*MB, 7*H, uv, 4*MB, 7*H)
                rest8()
            if PO == 'b':
                xq(bx, 1); half2(uk, 4*MB, 5*H, uv, 4*MB, 5*H); half2(wq, 8*MB, 5*H, wq, 8*MB, 6*H)
                half2(uk, 4*MB, 6*H, uv, 4*MB, 6*H); half2(uk, 4*MB, 7*H, uv, 4*MB, 7*H); half2(wq, 8*MB, 7*H, wa, 6*MB, 0)
                rest8()
            if PO == '3':
                region(wq, 8 * MB, 2 * MB, 1 * MB); xq(bx, 1); region(wq, 8 * MB, 3 * MB, 2 * MB); xq(bx, 2)
                region(wa, 6 * MB, 0, 1 * MB); xq(ax, 0); region(wq, 8 * MB, 5 * MB, 2 * MB); xq(bx, 3); region(wa, 6 * MB, 1 * MB, 1 * MB); xq(ax, 1); region(wq, 8 * MB, 7 * MB, 1 * MB)
                region(wa, 6 * MB, 2 * MB, 2 * MB); xq(ax, 2); region(wa, 6 * MB, 4 * MB, 1 * MB); xq(ax, 3); region(wa, 6 * MB, 5 * MB, 1 * MB); region(ptr('B_c_kv'), 2 * MB, 1 * MB, 1 * MB)
    if 'pwo1' in abl:
        k(f"s_load_dwordx2 {s(sEx,2)}, s[0:1], {KARG['B_w_o']}\ns_waitcnt lgkmcnt(0)")
        region(sEx, 8 * MB, 0, 8 * MB); region(ptr('A_wo'), 2 * MB, 0, 2 * MB)
    k(f"s_add_u32 {s(sXw)}, {s(sXw)}, {XS}\ns_branch {Lnp}")
    ool0 = k.lines; k.lines = save0
    if STP: ST.stamp(44)
    for st in range(2):
        if STP and st == 1: ST.stamp(46)
        for j in range(8):
            for t in dmaX(j): k(t)
        for t in rotXw(): k(t)
        if 'ta' in abl and TAP == 1 and st == 0:
            lt_ = k.newlab('tg'); k(f"s_cmp_eq_u32 {s(sIsP)}, 1\ns_cbranch_scc1 {lt_}"); t_go(); k.label(lt_)
        for j in range(8):
            for t in dmaW(j): k(t)
        for t in rotWw(): k(t)
        if 'ta' in abl and TAP == 2 and st == 0:
            lt_ = k.newlab('tg'); k(f"s_cmp_eq_u32 {s(sIsP)}, 1\ns_cbranch_scc1 {lt_}"); t_go(); k.label(lt_)
        if st == 0:
            if STP: ST.stamp(45)
            act_comp(P1)
            late_setup()
            k(f"s_mov_b32 {s(srdO)}, {s(sWS)}\ns_mov_b32 {s(srdO+1)}, {s(sWS+1)}\ns_mov_b32 {s(srdO+2)}, {WS_SIZE}\ns_mov_b32 {s(srdO+3)}, 0x20000")
            La2 = k.newlab('typea'); Lb2 = k.newlab('go2')
            k(f"s_cmp_ge_u32 {s(sIdx)}, 16\ns_cbranch_scc1 {La2}")
            tile_kv(1); kv_params(P1)
            k(f"s_branch {Lb2}")
            k.label(La2)
            tile_long(3); a_params(P1)
            k.label(Lb2)
            precompute()
            k(f"s_xor_b32 {s(sHasNext)}, {s(sIsP)}, 1\ns_add_u32 {s(sEvT)}, {s(sIsP)}, 3\ns_mov_b32 {s(sPend)}, -1")
            k(f"s_mul_i32 {s(sXs)}, {s(sIsP)}, {XS}\nv_add_u32 {v(vx)}, {s(sXs)}, {v(vx)}\nv_add_u32 {v(vx+1)}, {s(sXs)}, {v(vx+1)}")
            k(f"s_mov_b32 {s(srdD)}, {s(sDb)}\ns_mov_b32 {s(srdD+1)}, {s(sDb+1)}\ns_mov_b32 {s(srdD+2)}, 256\ns_mov_b32 {s(srdD+3)}, 0x20000")
            Lt = k.newlab('tok')
            k(f"s_lshl_b32 {s(t0)}, s2, 2\ns_add_u32 {s(t0)}, {s(t0)}, {s(sw)}\ns_cmp_lg_u32 {s(t0)}, 0\ns_cbranch_scc1 {Lt}")
            k(f"s_memrealtime {s(t2,2)}\ns_waitcnt lgkmcnt(0)\ns_or_b32 {s(t2)}, {s(t2)}, 1\nv_mov_b32 {v(vFlag)}, {s(t2)}\nv_mov_b32 {v(vFlag+1)}, {s(t3)}\ns_mov_b64 exec, 1")
            k(f"buffer_store_dwordx2 {v(vFlag,2)}, off, {s(srdD,4)}, 0 sc1\ns_mov_b64 exec, -1")
            k.label(Lt)
            Lt2 = k.newlab('tok')
            k(f"s_cmp_eq_u32 {s(sIsP)}, 0\ns_cbranch_scc1 {Lt2}\n{tok_load}\ns_waitcnt vmcnt(0)")
            tok_get()
            k.label(Lt2)
    ST.stamp(16 if STP else 2)
    k("s_waitcnt vmcnt(16)\ns_barrier")
    ST.stamp(17 if STP else 3)
    tailq = []
    w2 = rdWpair(2)
    for mb in range(8): tailq += [w2[mb], rdX(0, mb), rdX(1, mb)]
    for tag, ins in rdWpair(0) + rdWpair(1) + tailq: k(ins)
    for j in range(8):
        for x in dmaX(j): k(x)
    for x in rotXw(): k(x)
    k(f"s_mov_b32 {s(sFirst)}, 1")
    gS = sK; gSa = sK + 4; gSb = sK + 5; gSi = sK + 6; gSj = sK + 7
    k(f"s_mov_b32 {s(gS)}, {s(sWS)}\ns_mov_b32 {s(gS+1)}, {s(sWS+1)}\ns_mov_b32 {s(gS+2)}, 0\ns_mov_b32 {s(gS+3)}, 0x20000")
    k(f"s_mov_b32 {s(gSa)}, 0\ns_mov_b32 {s(gSb)}, 0\ns_mov_b32 {s(gSi)}, 0\ns_mov_b32 {s(gSj)}, 0")
    WB = 'wb' in abl
    GA = 31; SERP = 'noserp' not in abl
    WG = [34 + 4 * i for i in range(8)]
    XG = [68, 76, 84, 92, 100, 108, 116, 124]
    SG = [10, 16, 22, 28, 72, 80, 88, 94]
    NTR = 3
    def item(lst):
        pre = lst[0].split("\n")[0] if lst[0].startswith("s_add_u32 m0") else None
        ins = [x for x in lst if x.startswith("buffer_")][0]
        post = lst[-1] if not lst[-1].startswith("buffer_") else None
        return pre, ins, post
    def body(swp, kind):
        tr = LgkmTracker([tag for tag, _ in tailq])
        rd = {}; first = {}; head = {}; vfx = {}
        items = [(item(dmaX(j)), g) for j, g in enumerate(XG)] + [(item(dmaW(j)), g) for j, g in enumerate(WG)]
        if kind < NTR:
            for i, g in enumerate(SG):
                post = f"s_add_u32 {s(gSa)}, {s(gSa)}, {s(gSj)}" if i < 7 else f"s_add_u32 {s(gSb)}, {s(gSb)}, {s(gSi)}\ns_mov_b32 {s(gSa)}, {s(gSb)}"
                items.append(((None, f"buffer_store_dwordx4 {a(STASH + 4*(kind*8+i), 4)}, {v(vSt)}, {s(gS,4)}, {s(gSa)} offen{sfx}", post), g))
        for (pre, ins, post), g in items:
            assert g not in head, g
            head[g] = ins; first[g] = None
        first[GA] = None
        busy = set(XG) | set(WG) | set(SG)
        def put_first(g, x):
            while g in first: g += 1
            assert g < 126, x
            first[g] = x; return g
        def put_reads(g, its, stride):
            for x in its:
                while g in busy or g in rd: g += 1
                rd[g] = x; g += stride
        for (pre, ins, post), g in items:
            if pre: assert g - 1 not in first; first[g - 1] = pre
        for (pre, ins, post), g in items:
            if post: put_first(g + 1, post)
        put_reads(0, rdWpair(3), 1)
        put_reads(GA + 1, rdWpair(0), 3)
        put_reads(64, rdWpair(1), 3)
        for mb in range(8):
            put_reads(96 + 4 * mb + 1, [w2[mb]], 1)
            if mb < 7: put_reads(96 + 4 * mb + 3, [rdX(0, mb), rdX(1, mb)], 1)
        assert [rd[g][1] for g in sorted(rd) if g >= 96] == [x[1] for x in tailq[:22]], "tail order"
        gg = 12
        for nb in range(0, 8, 2):
            while gg in busy: gg += 1
            vfx[gg] = [f"v_xor_b32 {v(vw+nb)}, {s(sWx)}, {v(vw+nb)}", f"v_xor_b32 {v(vw+nb+1)}, {s(sWx)}, {v(vw+nb+1)}"]; gg += 1
        g = put_first(36, f"s_add_u32 {s(sXs)}, {s(sXs)}, {XS}")
        g = put_first(g + 1, f"s_cmp_ge_u32 {s(sXs)}, {3*XS}\ns_cselect_b32 {s(sXd)}, {-2*XS & 0xffffffff}, {s(sXSc)}\ns_cselect_b32 {s(sXs)}, 0, {s(sXs)}")
        assert g < 60 and 60 not in rd and 60 not in busy
        vfx[60] = [f"v_add_u32 {v(vx)}, {s(sXd)}, {v(vx)}", f"v_add_u32 {v(vx+1)}, {s(sXd)}, {v(vx+1)}"]
        put_first(WG[4] + 1, rotWw()[0])
        g = put_first(XG[4] + 1, f"s_add_u32 {s(sXw)}, {s(sXw)}, {XS}")
        g = put_first(g + 1, f"s_cmp_ge_u32 {s(sXw)}, {3*XS}\ns_cselect_b32 {s(t0)}, {3*XS}, 0")
        g = put_first(g + 1, f"s_sub_u32 {s(sXw)}, {s(sXw)}, {s(t0)}")
        put_first(112, f"s_sub_u32 {s(sCnt)}, {s(sCnt)}, 1")
        if kind == NTR: first[126] = f"s_cmp_gt_u32 {s(sCnt)}, {s(sEvT)}"
        vm = 8 + (4 if kind < NTR else 0) + (4 if 1 <= kind < NTR else 0)
        i = 0
        for rp in range(4):
            for mb in range(8):
                for n_, nb in enumerate((2 * rp, 2 * rp + 1) if (mb % 2 == 0 or not SERP) else (2 * rp + 1, 2 * rp)):
                    for k_, kk in enumerate((0, 1) if (n_ == 0 or not SERP) else (1, 0)):
                        w = tr.need({('x', mb), ('w', nb)})
                        if i == GA:
                            tr.q = []
                            if STP: k(f"s_memtime {s(sStamp,2)}")
                            if kind == 0 and 'nolen' not in abl:
                                lw = k.newlab('w')
                                k(f"s_waitcnt vmcnt({vm+32}) lgkmcnt(0)\ns_cmp_eq_u32 {s(sFirst)}, 2\ns_cbranch_scc1 {lw}\ns_waitcnt vmcnt({vm})"); k.label(lw)
                            else: k(f"s_waitcnt vmcnt({vm}) lgkmcnt(0)")
                            if WB and kind == 0:
                                lw = k.newlab('w')
                                k(f"s_cmp_lg_u32 {s(sFirst)}, 2\ns_cbranch_scc1 {lw}\ns_waitcnt vmcnt(4)"); k.label(lw)
                        elif w: k(w)
                        A_, B_ = a(fragW(kk, nb), 4), a(fragX(kk, mb), 4)
                        d = r(acc(nb, mb), 0, 4)
                        if swp:
                            A_, B_ = B_, A_
                            d = r(acc(mb, nb), 0, 4)
                        c = "0" if (kind == 0 and k_ == 0) else d
                        k(f"v_mfma_f32_16x16x32_bf16 {d}, {A_}, {B_}, {c}")
                        if i == GA: k("s_barrier")
                        if i == GA and STP: k(f"v_cmp_eq_u32 vcc, {s(sStp)}, {v(vLane)}\nv_mov_b32 {v(vT+7)}, {s(sStamp)}\ns_add_u32 {s(sStp)}, {s(sStp)}, 1\nv_cndmask_b32 {v(vStamp)}, {v(vStamp)}, {v(vT+7)}, vcc")
                        if first.get(i): k(first[i])
                        if i in rd: k(rd[i][1]); tr.issue(rd[i][0])
                        if i in head: k(head[i])
                        for x in vfx.get(i, []): k(x)
                        if i == 127:
                            for tag, ins in tailq[22:]: k(ins)
                        i += 1

    outl = []; hooks = []
    INL = 'noinl' not in abl
    Ltile = k.newlab('tile'); Lepi = k.newlab('epi')
    k.label(Ltile)
    Lsw = k.newlab('swp')
    k(f"s_mov_b32 {s(sCnt)}, {s(CP['nk'])}")
    k(f"s_cmp_eq_u32 {s(CP['swp'])}, 1\ns_cbranch_scc1 {Lsw}")
    for swp in (0, 1):
        if swp: k.label(Lsw)
        for kind in range(NTR):
            body(swp, kind)
            if kind in ((0, 2) if WB else (1,)):
                Lh = k.newlab('hook'); Lhr = k.newlab('hookr')
                k(f"s_cmp_eq_u32 {s(sFirst)}, 2\ns_cbranch_scc1 {Lh}"); k.label(Lhr)
                hooks.append((Lh, Lhr, kind))
        Lloop = k.newlab('loop'); Lsw2 = k.newlab('dosw')
        align()
        k.label(Lloop)
        outl.append((Lsw2, Lloop))
        body(swp, NTR)
        if INL:
            k(f"s_cbranch_scc1 {Lloop}\ns_cmp_eq_u32 {s(sCnt)}, 0\ns_cbranch_scc1 {Lepi}")
            k.lines.append(f"@@{Lsw2}")
        else:
            k(f"s_cbranch_scc1 {Lloop}\ns_cmp_lg_u32 {s(sCnt)}, 0\ns_cbranch_scc1 {Lsw2}")
            if not swp: k(f"s_branch {Lepi}")
    k.label(Lepi)
    Lepf = k.newlab('epf'); Leps = k.newlab('eps'); Llast = k.newlab('last'); Lp = k.newlab('ptype'); Linit = k.newlab('init'); Lkv = k.newlab('kvl')
    k(f"s_cmp_eq_u32 {s(sHasNext)}, 0\ns_cbranch_scc1 {Llast}")
    ST.stamp(4)
    tok_get()
    Lq1 = k.newlab('q1')
    if 'qtr' not in abl:
        Lq0 = k.newlab('q0')
        k(f"s_cmp_ge_u32 {s(sIdx)}, 16\ns_cbranch_scc1 {Lq0}")
        k(f"s_call_b64 {s(sRe,2)}, {Lepf}\ns_mov_b32 {s(sPend)}, {s(CP['flag'])}\ns_mov_b32 {s(sFirst)}, 2")
        ST.stamp(5)
        k(f"s_branch {Lq1}")
        k.label(Lq0)
    k(f"s_call_b64 {s(sRe,2)}, {Leps}")
    ST.stamp(5)
    k(f"s_mov_b32 {s(sPend)}, {s(CP['flag'])}\ns_add_u32 {s(gSa)}, {s(CP['obase'])}, {s(CP['Si'])}\ns_mov_b32 {s(gSb)}, {s(gSa)}\ns_mov_b32 {s(gSi)}, {s(CP['Si'])}\ns_mov_b32 {s(gSj)}, {s(CP['Sj'])}\ns_mov_b32 {s(gS+2)}, {WS_SIZE}")
    k.label(Lq1)
    dbgmax(10)
    act_comp(P1)
    k(f"s_sub_u32 {s(sEvT)}, {s(CP['nk'])}, 5\ns_max_u32 {s(sEvT)}, {s(sEvT)}, 4\ns_mov_b32 {s(sHasNext)}, 0\ns_branch {Ltile}")
    k.label(Llast)
    ST.stamp(6)
    k.label(Lkv)
    dbgmax(12, True)
    k("s_waitcnt lgkmcnt(0)")
    QL = 'qlate' in abl; QS = 'noqs' not in abl
    if QL:
        k("s_waitcnt vmcnt(16)")
        early_check('q'); q_loads((0, 1, 2, 3))
    save = k.lines; k.lines = []
    for Lh, Lhr, kind in hooks:
        k.label(Lh)
        if kind == 0:
            k(f"s_cmp_lg_u32 {s(sw)}, 0\ns_cbranch_scc1 {Lhr}\nbuffer_wbl2 sc1\ns_branch {Lhr}")
            continue
        publish(sPend)
        k(f"s_mov_b32 {s(sPend)}, -1\ns_branch {Lhr}")
    def either(fn, fp):
        la = k.newlab('ea'); lb = k.newlab('eb')
        k(f"s_cmp_eq_u32 {s(sIsP)}, 1\ns_cbranch_scc1 {la}")
        fn()
        k.label(lb)
        alt.append((la, lb, fp))
    alt = []
    for Lsw2, Lns in outl:
        k.label(Lsw2)
        l_last = k.newlab('x'); l4 = k.newlab('x'); l3 = k.newlab('x'); l2 = k.newlab('x'); l1 = k.newlab('x'); l_p = k.newlab('x'); l_w = k.newlab('x')
        k(f"s_cmp_eq_u32 {s(sHasNext)}, 0\ns_cbranch_scc1 {l_last}")
        k(f"s_cmp_lg_u32 {s(sCnt)}, 3\ns_cbranch_scc1 {l_w}")
        act_load(P1, which="x")
        k(f"{tok_load}\ns_branch {Lns}")
        k.label(l_w)
        act_load(P1, which="w")
        k(f"s_mov_b32 {s(sEvT)}, 0\ns_branch {Lns}")
        k.label(l_last)
        k(f"s_cmp_le_u32 {s(sCnt)}, 4\ns_cbranch_scc1 {l4}")
        if 'lp' in abl: ST.stamp(10)
        publish(sPend)
        k(f"s_mov_b32 {s(sPend)}, -1\ns_mov_b32 {s(sEvT)}, 4\ns_branch {Lns}")
        k.label(l4)
        k(f"s_cmp_lg_u32 {s(sCnt)}, 4\ns_cbranch_scc1 {l3}")
        if 'lp' in abl: ST.stamp(11)
        either(lambda: early_load(), lambda: early_load('kv'))
        if 'cpf2' in abl:
            k(f"s_sub_u32 {s(t1)}, {s(sIdx)}, 16\ns_cmp_ge_u32 {s(t1)}, 3\ns_cbranch_scc1 {Lns}\ns_lshl_b32 {s(t1)}, {s(t1)}, 2\ns_add_u32 {s(t1)}, {s(t1)}, {s(sw)}")
            code_prefetch(k, sEx, name, name + "_end", t1, vLane, T, vDum, t0)
        k(f"s_branch {Lns}")
        k.label(l3)
        k(f"s_waitcnt vmcnt(16)\ns_cmp_lg_u32 {s(sCnt)}, 3\ns_cbranch_scc1 {l2}")
        either(lambda: (early_check('all'), q_loads((0, 1, 2, 3), range(0, 6))), lambda: early_check('kv'))
        kv_cursor(sXoff, srdX, 0)
        for i in range(2): k(f"v_mov_b32 {v(vX+i)}, {v(vSt)}")
        k(f"s_branch {Lns}")
        k.label(l2)
        k(f"s_cmp_lg_u32 {s(sCnt)}, 2\ns_cbranch_scc1 {l1}")
        either(lambda: q_loads((0, 1, 2, 3), range(6, 11)), lambda: early_load('q'))
        kv_cursor(sXoff, srdX, 1); kv_cursor(sWoff, srdW, 3)
        for i in range(4): k(f"v_mov_b32 {v(vW+i)}, {v(vSt)}")
        k(f"s_branch {Lns}")
        k.label(l1)
        either(lambda: q_loads((0, 1, 2, 3), range(11, 16)), lambda: (early_check('q'), q_loads((0, 1, 2, 3))))
        kv_cursor(sXoff, srdX, 2); kv_cursor(sWoff, srdW, 4)
        k(f"s_branch {Lns}")
        for la, lb, fp in alt:
            k.label(la); fp(); k(f"s_branch {lb}")
        alt.clear()
    k.label(Leps)
    Lns3 = k.newlab('ns3')
    k("s_nop 3")
    for scaled in (0,):
        k(f"s_mov_b32 {s(t0)}, {s(CP['obase'])}")
        for p_ in range(32):
            sp = acc(2 * (p_ >> 3), p_ & 7)
            if sp[0] == 'a':
                for i in range(8): k(f"v_accvgpr_read_b32 {v(vT+i)}, {a(sp[1]+i)}")
                b = vT
            else:
                b = sp[1]
            if scaled:
                for i in range(0, 8, 2): k(f"v_pk_mul_f32 {v(b+i,2)}, {v(b+i,2)}, {s(t2,2)}")
            for i in range(4): k(f"v_cvt_pk_bf16_f32 {v(b+i)}, {v(b+2*i)}, {v(b+2*i+1)}")
            if p_ < 8: k(f"buffer_store_dwordx4 {v(b,4)}, {v(vSt)}, {s(srdO,4)}, {s(t0)} offen{sfx}\ns_add_u32 {s(t0)}, {s(t0)}, {s(CP['Sj'])}")
            else:
                for i in range(4): k(f"v_accvgpr_write_b32 {a(STASH + 4*(p_-8) + i)}, {v(b+i)}")
        k(f"s_setpc_b64 {s(sRe,2)}")
    k.label(Lepf)
    Lnoscale = k.newlab('noscale')
    k("s_nop 7")
    for scaled in (1,):
        k(f"s_mov_b32 {s(t1)}, {s(CP['obase'])}\ns_mov_b32 {s(t2)}, {s(CP['scale'])}\ns_mov_b32 {s(t3)}, {s(CP['scale'])}")
        for e in range(4):
            k(f"s_mov_b32 {s(t0)}, {s(t1)}")
            for j in range(8):
                sp = acc(2 * e, j)
                if sp[0] == 'a':
                    for i in range(8): k(f"v_accvgpr_read_b32 {v(vT+i)}, {a(sp[1]+i)}")
                    b = vT
                else:
                    b = sp[1]
                if scaled:
                    for i in range(0, 8, 2): k(f"v_pk_mul_f32 {v(b+i,2)}, {v(b+i,2)}, {s(t2,2)}")
                for i in range(4):
                    k(f"v_cvt_pk_bf16_f32 {v(b+i)}, {v(b+2*i)}, {v(b+2*i+1)}")
                k(f"buffer_store_dwordx4 {v(b,4)}, {v(vSt)}, {s(srdO,4)}, {s(t0)} offen{'' if (scaled and WB) else sfx}")
                k(f"s_add_u32 {s(t0)}, {s(t0)}, {s(CP['Sj'])}")
                if sp[0] == 'a': k("s_nop 1")
            k(f"s_add_u32 {s(t1)}, {s(t1)}, {s(CP['Si'])}")
        k(f"s_setpc_b64 {s(sRe,2)}")
    Lepl = k.newlab('epl')
    k.label(Lepl)
    SORD = list(range(20, 32)) + list(range(16, 20))
    MIX = 'nomix' not in abl
    Lns2 = k.newlab('ns2')
    k(f"s_mov_b32 {s(t2)}, {s(CP['scale'])}\ns_mov_b32 {s(t3)}, {s(CP['scale'])}\ns_cmp_eq_u32 {s(CP['scale'])}, 0\ns_cbranch_scc1 {Lns2}")
    for scaled in (1, 0):
        if not scaled: k.label(Lns2)
        k(f"s_mov_b32 {s(t0)}, {s(CP['obase'])}")
        for p_ in ([x for pr in zip(range(16), SORD) for x in pr] if MIX else list(range(16)) + SORD):
            e, j = p_ >> 3, p_ & 7
            sp = acc(2 * e, j)
            if sp[0] == 'a':
                for i in range(8): k(f"v_accvgpr_read_b32 {v(vT+i)}, {a(sp[1]+i)}")
                b = vT
            else:
                b = sp[1]
            if scaled:
                for i in range(0, 8, 2): k(f"v_pk_mul_f32 {v(b+i,2)}, {v(b+i,2)}, {s(t2,2)}")
            d = b if p_ < 16 else 192 + 4 * SORD.index(p_)
            for i in range(4):
                k(f"v_cvt_pk_bf16_f32 {v(d+i)}, {v(b+2*i)}, {v(b+2*i+1)}")
            if p_ < 16:
                k(f"buffer_store_dwordx4 {v(b,4)}, {v(vSt)}, {s(srdO,4)}, {s(t0)} offen{sfx}")
                k(f"s_add_u32 {s(t0)}, {s(t0)}, {s(CP['Sj'])}" if p_ != 7 else f"s_add_u32 {s(t0)}, {s(CP['obase'])}, {s(CP['Si'])}")
                if MIX:
                    for i in range(8): k(f"v_accvgpr_write_b32 {a(8*p_+i)}, 0")
        k(f"s_setpc_b64 {s(sRe,2)}")
    ool = k.lines; k.lines = save

    S_ = Regs('s', 24, 90)
    srdK = S_.alloc('srdK', 4, 4); srdV = S_.alloc('srdV', 4, 4)
    sh = S_.alloc('h'); snA = S_.alloc('na'); snB = S_.alloc('nb'); srdS = S_.alloc('srdS', 4, 4); sSa = S_.alloc('sa'); srdF = S_.alloc('srdF', 4, 4); sPw = S_.alloc('pw', 4, 2); sL2 = S_.alloc('l2'); sPB = S_.alloc('pb'); sPf = CP['flag']; sOut = S_.alloc('out', 2, 2)
    sKo = S_.alloc('ko'); sVo = S_.alloc('vo')
    sC1 = S_.alloc('c1'); sMK = S_.alloc('mk'); sW4 = S_.alloc('w4')
    sVis = S_.alloc('vis', 2, 2); sAbs = S_.alloc('abs'); sThr = S_.alloc('thr'); sThC = S_.alloc('thc')
    sE = S_.alloc('e', 6)
    sRa = S_.alloc('ra', 2, 2); sM0 = S_.alloc('m0', 2, 2)
    sQ = S_.alloc('qoff', 2); sLo = S_.alloc('lo', 3)
    V = Regs('v', 6, 64)
    vKV = V.alloc('kv'); vDma = V.alloc('dma'); vChk = V.alloc('chk'); vNinf = V.alloc('ninf'); vFo = V.alloc('fo'); vFx = V.alloc('fx')
    vL = V.alloc('l', 4, 4); vTB = V.alloc('tb', 4)
    vE = V.alloc('e', 8, 4); vTS = V.alloc('ts', 16, 4); vOne = V.alloc('one', 4, 4)
    def TS(qt): return vTS + 4 * qt
    vT = V.alloc('t', 16, 4)
    def Sreg(par, qt): return 64 + par * 32 + qt * 8
    def Preg(par, qt): return 128 + par * 16 + qt * 4
    def Nreg(qt): return 160 + qt * 8
    def Oreg(qt, db): return qt * 32 + db * 4
    def KF(n): return 192 + n * 4
    def VF(n): return 224 + n * 4
    T = vT; vDm2 = 255
    AB = (0, 1, 2, 3); A_ = (0, 1)
    MF = "v_mfma_f32_16x16x32_bf16"
    def xlane(regs, tmps, op):
        for sw_ in ("v_permlane32_swap_b32", "v_permlane16_swap_b32"):
            for x, y in zip(regs, tmps): k(f"v_mov_b32 {v(y)}, {v(x)}")
            k("s_nop 1")
            for x, y in zip(regs, tmps): k(f"{sw_} {v(x)}, {v(y)}")
            k("s_nop 1")
            for x, y in zip(regs, tmps): k(f"{op} {v(x)}, {v(x)}, {v(y)}")

    KS = 'noks' not in abl
    LQ, LK, LV = (196, 212, 232) if KS else (192, 208, 228)
    vD = 192; vV = vFx; sP8 = sL2
    if KS: assert all(x[0] - x[1] >= 2 for x in ITEMS)
    sLa = S_.alloc('la', 7)
    def local_setup():
        k(f"s_and_b32 {s(t0)}, s2, 7\ns_lshl_b32 {s(t0)}, {s(t0)}, 4\ns_lshl_b32 {s(t1)}, {s(sw)}, 2\ns_add_u32 {s(sLo)}, {s(t0)}, {s(t1)}")
        k(f"s_lshr_b32 {s(t2)}, s2, 3\ns_lshl_b32 {s(t2)}, {s(t2)}, 17")
        k(f"s_lshl_b32 {s(t0)}, {s(sLo)}, 10\ns_add_u32 {s(t0)}, {s(t0)}, {s(t2)}\ns_add_u32 {s(sLa)}, {s(t0)}, {WS_QA}\ns_add_u32 {s(sLa+1)}, {s(t0)}, {WS_KA}")
        k(f"s_and_b32 {s(sLo+1)}, {s(sLo)}, 63\ns_cmp_eq_u32 {s(sLo+1)}, 0\ns_cselect_b32 {s(t3)}, 0, 1024\ns_sub_u32 {s(sLa+2)}, {s(sLa+1)}, {s(t3)}")
        k(f"s_lshl_b32 {s(t0)}, {s(sLo)}, 9\ns_add_u32 {s(t0)}, {s(t0)}, {s(t2)}\ns_add_u32 {s(sLa+3)}, {s(t0)}, {WS_VA}\ns_sub_u32 {s(sLa+4)}, {s(sLa+3)}, {s(t3)}")
        k(f"s_add_u32 {s(sLa+5)}, {s(sLa+3)}, 65536\ns_add_u32 {s(sLa+6)}, {s(sLa+4)}, 65536")
    def local_loads():
        def ld(dst, so, off): return (None, f"buffer_load_dwordx4 {v(dst,4)}, {v(vL16)}, {s(srdO,4)}, {s(so)} offen offset:{off} sc1", None)
        o = [ld(LQ+4*j, sLa, j*1024) for j in range(4)] + [ld(LK+4+4*j, sLa+1, j*1024) for j in range(4)] + [ld(LK, sLa+2, 0)]
        for db in range(2):
            o += [ld(LV+12*db+4+4*j, sLa+3+2*db, j*1024) for j in range(2)] + [ld(LV+12*db, sLa+4+2*db, 0)]
        return o
    C0, C1, CZ, Mx, My, Sb, Ts = 128, 132, 136, 140, 144, 148, 20
    def local_pre():
        k(f"v_and_b32 {v(T)}, 15, {v(vLane)}\nv_lshrrev_b32 {v(T+1)}, 4, {v(vLane)}\nv_lshlrev_b32 {v(T+1)}, 2, {v(T+1)}\nv_sub_u32 {v(T)}, {v(T)}, {v(T+1)}")
        for r_ in range(4):
            k(f"v_cmp_ge_i32 vcc, {r_-9}, {v(T)}\nv_subrev_u32 {v(T+2)}, {r_}, {v(T)}\nv_cmp_ge_u32 {s(sM0,2)}, 7, {v(T+2)}\ns_nop 0")
            k(f"v_cndmask_b32 {v(C0+r_)}, {v(vNinf)}, 0, vcc\nv_cndmask_b32 {v(C1+r_)}, {v(vNinf)}, 0, {s(sM0,2)}")
        k(f"s_cmp_eq_u32 {s(sLo+1)}, 0\ns_cselect_b64 vcc, -1, 0\ns_nop 0")
        for r_ in range(4): k(f"v_cndmask_b32 {v(CZ+r_)}, {v(C0+r_)}, {v(vNinf)}, vcc")
        k(f"s_lshl_b32 {s(t0)}, {s(sLo)}, 10\ns_lshr_b32 {s(t1)}, s2, 3\ns_lshl_b32 {s(t1)}, {s(t1)}, 17\ns_add_u32 {s(t0)}, {s(t0)}, {s(t1)}\ns_add_u32 {s(sLo)}, {s(t0)}, {WS_OA}")
    def local_stream():
        save_ = k.lines; k.lines = []
        U = range(4); PB = LQ
        for u in U:
            k(f"{MF} {v(Sb+8*u,4)}, {v(LK+4*u,4)}, {v(LQ+4*u,4)}, {v(CZ if u == 0 else C0,4)}")
            k(f"{MF} {v(Sb+8*u+4,4)}, {v(LK+4*u+4,4)}, {v(LQ+4*u,4)}, {v(C1,4)}")
        for _ in range(4): k("s_nop 1")
        for u in U: k(f"v_max3_f32 {v(Mx+u)}, {v(Sb+8*u)}, {v(Sb+8*u+1)}, {v(Sb+8*u+2)}")
        for u in U: k(f"v_max3_f32 {v(Mx+u)}, {v(Mx+u)}, {v(Sb+8*u+3)}, {v(Sb+8*u+4)}")
        for u in U: k(f"v_max3_f32 {v(Mx+u)}, {v(Mx+u)}, {v(Sb+8*u+5)}, {v(Sb+8*u+6)}")
        for u in U: k(f"v_max_f32 {v(Mx+u)}, {v(Mx+u)}, {v(Sb+8*u+7)}")
        xlane([Mx + u for u in U], [My + u for u in U], "v_max_f32")
        for u in U:
            for i in range(8): k(f"v_sub_f32 {v(Sb+8*u+i)}, {v(Sb+8*u+i)}, {v(Mx+u)}")
        for u in U:
            for i in range(8): k(f"v_exp_f32 {v(Sb+8*u+i)}, {v(Sb+8*u+i)}")
        for u in U:
            for i in range(4): k(f"v_cvt_pk_bf16_f32 {v(PB+4*u+i)}, {v(Sb+8*u+2*i)}, {v(Sb+8*u+2*i+1)}")
        k("s_nop 1")
        for u in U: k(f"{MF} {v(Ts+4*u,4)}, {v(vOne,4)}, {v(PB+4*u,4)}, 0")
        for u in U:
            for db in range(2): k(f"{MF} {v(Sb+8*u+4*db,4)}, {v(LV+12*db+2+2*u,4)}, {v(PB+4*u,4)}, 0")
        for u in U: k(f"v_rcp_f32 {v(Mx+u)}, {v(Ts+4*u)}")
        k("s_nop 1\ns_nop 1")
        for u in U:
            for i in range(8): k(f"v_mul_f32 {v(Sb+8*u+i)}, {v(Sb+8*u+i)}, {v(Mx+u)}")
            for i in range(4): k(f"v_cvt_pk_bf16_f32 {v(Sb+8*u+i)}, {v(Sb+8*u+2*i)}, {v(Sb+8*u+2*i+1)}")
            k(f"buffer_store_dwordx4 {v(Sb+8*u,4)}, {v(vL16)}, {s(srdO,4)}, {s(sLo)} offen offset:{u*1024}{sfx}")
        out = [x.strip() for x in k.lines]; k.lines = save_
        return out

    INI = []; k.collect = INI
    head_ids()
    k(f"s_mov_b32 {s(sh)}, {s(t2)}\ns_bfe_u32 {s(snA)}, {TABA}, {s(t3)}\ns_add_u32 {s(snA)}, {s(snA)}, 1\ns_bfe_u32 {s(snB)}, {TABB}, {s(t3)}\ns_add_u32 {s(snB)}, {s(snB)}, 1")
    k(f"s_lshl_b32 {s(sW4)}, {s(sw)}, 12\nv_add_u32 {v(vDma)}, {s(sW4)}, {v(vL16)}")
    k(f"s_lshl_b32 {s(t0)}, {s(snB)}, 2\ns_lshl_b32 {s(t1)}, {s(snA)}, 2\ns_lshl_b32 {s(srdK+2)}, {s(t1)}, 13\ns_mov_b32 {s(srdV+2)}, {s(srdK+2)}")
    k(f"s_sub_u32 {s(sE)}, {s(t0)}, 4\ns_add_u32 {s(sE)}, {s(sE)}, {s(sw)}\ns_add_u32 {s(sE+1)}, {s(sE)}, 1\ns_mov_b32 {s(sE+2)}, {s(t0)}")
    k(f"s_sub_u32 {s(sE+3)}, {s(t1)}, 4\ns_add_u32 {s(sE+3)}, {s(sE+3)}, {s(sw)}\ns_add_u32 {s(sE+4)}, {s(sE+3)}, 1\ns_mov_b32 {s(sE+5)}, {s(t1)}")
    EEX = 'noeex' not in abl and not KS
    if KS: k(f"s_and_b32 {s(t0)}, {s(sw)}, 1\ns_sub_u32 {s(sE+3)}, {s(sE+3)}, {s(t0)}\ns_add_u32 {s(sE+4)}, {s(sE+3)}, 2\ns_lshl_b32 {s(sP8)}, {s(t0)}, 13")
    if EEX: k(f"s_cmp_lt_u32 {s(sw)}, 2\ns_cselect_b32 {s(t0)}, 2, 0\ns_sub_u32 {s(sE+5)}, {s(sE+5)}, {s(t0)}")
    k(f"s_mov_b32 {s(srdK+3)}, 0x20000\ns_mov_b32 {s(srdV+3)}, 0x20000\ns_lshl_b32 {s(sLo+2)}, {s(sh)}, 19")
    k(f"s_add_u32 {s(t0)}, {s(sLo+2)}, {WS_KB}\ns_add_u32 {s(srdK)}, {s(sWS)}, {s(t0)}\ns_addc_u32 {s(srdK+1)}, {s(sWS+1)}, 0")
    k(f"s_add_u32 {s(t0)}, {s(sLo+2)}, {WS_VB}\ns_add_u32 {s(srdV)}, {s(sWS)}, {s(t0)}\ns_addc_u32 {s(srdV+1)}, {s(sWS+1)}, 0")
    def dmaK(j): return f"buffer_load_dwordx4 {v(vDma)}, {s(srdK,4)}, {s(sKo)} offen offset:{j*1024}{ksc} lds"
    def dmaV(j): return f"buffer_load_dwordx4 {v(vDma)}, {s(srdV,4)}, {s(sVo)} offen offset:{j*1024}{ksc} lds"
    def dma_group():
        g = [(f"s_mov_b32 m0, {s(sMK)}", dmaK(0), None), (None, dmaK(1), None), (None, dmaK(2), None), (None, dmaK(3), f"s_add_u32 {s(sKo)}, {s(sKo)}, {STG}"),
             (f"s_add_u32 m0, {s(sMK)}, {STG}", dmaV(0), None), (None, dmaV(1), None), (None, dmaV(2), None), (None, dmaV(3), f"s_add_u32 {s(sVo)}, {s(sVo)}, {STG}")]
        return g
    def emit_group(items):
        for pre, ins, post in items:
            if pre: k(pre + "\ns_nop 0")
            k(ins)
            if post: k(post)
    k.collect = None
    ST.stamp(7)
    k(f"v_mov_b32 {v(vKV)}, {v(vL16)}")
    for a_ in range(8): k(f"ds_read_b128 {a(KF(a_),4)}, {v(vKV)} offset:{a_*1024}")
    k(f"s_load_dwordx2 {s(sPw,2)}, s[0:1], {KARG['B_w_o']}\ns_load_dwordx2 {s(sPw+2,2)}, s[0:1], {KARG['A_wo']}\ns_load_dwordx2 {s(sOut,2)}, s[0:1], {KARG['out']}\ns_mov_b32 {s(srdF+3)}, 0x20000")
    k(f"s_call_b64 {s(sRe,2)}, {Lepl}\ns_mov_b32 {s(sPend)}, {s(CP['flag'])}\ns_mov_b32 {s(srdS+2)}, {WS_SIZE}")
    k.label(Linit)
    ST.stamp(10) if 'lp' not in abl else None
    k(f"s_mov_b32 {s(srdS)}, {s(sWS)}\ns_mov_b32 {s(srdS+1)}, {s(sWS+1)}\ns_mov_b32 {s(srdS+3)}, 0x20000")
    k(f"s_lshl_b32 {s(t0)}, {s(CP['Si'])}, 1\ns_add_u32 {s(CP['obase'])}, {s(CP['obase'])}, {s(t0)}\ns_lshl_b32 {s(t0)}, {s(CP['Sj'])}, 2\ns_add_u32 {s(sSa)}, {s(CP['obase'])}, {s(t0)}")
    k.collect = INI
    k(f"s_mov_b32 {s(sKo)}, {5*STG}\ns_mov_b32 {s(sVo)}, {4*STG}")
    k(f"v_mov_b32 {v(vNinf)}, 0xff800000\ns_mov_b32 {s(sThr)}, {f32bits(THR)}")
    k(f"s_lshl_b32 {s(t1)}, {s(sw)}, 1\ns_sub_u32 {s(t1)}, {s(t1)}, 8")
    k(f"s_lshl_b32 {s(sQ)}, {s(snA)}, 3\ns_add_u32 {s(sQ)}, {s(sQ)}, {s(t1)}\ns_lshl_b32 {s(sQ+1)}, {s(snB)}, 3\ns_add_u32 {s(sQ+1)}, {s(sQ+1)}, {s(t1)}")
    def stash_item(m):
        post = f"s_add_u32 {s(sSa)}, {s(sSa)}, {s(CP['Sj'])}"
        if m == 3: post = f"s_add_u32 {s(sSa)}, {s(CP['obase'])}, {s(CP['Si'])}"
        if m == 11: post = f"s_mov_b32 {s(sSa)}, {s(CP['obase'])}"
        return (None, f"buffer_store_dwordx4 {v(192+4*m,4)}, {v(vL16)}, {s(srdS,4)}, {s(sSa)} offen{sfx}", post)
    k(f"s_lshr_b32 {s(t0)}, {s(sh)}, 1\ns_lshl_b32 {s(t0)}, {s(t0)}, 7\ns_add_u32 {s(t0)}, {s(t0)}, {WS_FLAG + 32*128}\ns_lshr_b32 {s(t1)}, s2, 6\ns_lshl_b32 {s(t1)}, {s(t1)}, 8\ns_add_u32 {s(t1)}, {s(t1)}, {WS_FLAG + 48*128 - 64}")
    k(f"v_min_u32 {v(vFo)}, 31, {v(vLane)}\nv_lshlrev_b32 {v(vFo)}, 3, {v(vFo)}\nv_mov_b32 {v(vFx)}, {s(t0)}\nv_mov_b32 {v(vChk)}, {s(t1)}\nv_cmp_gt_u32 vcc, 8, {v(vLane)}\ns_nop 1\nv_cndmask_b32 {v(vFx)}, {v(vChk)}, {v(vFx)}, vcc\nv_add_u32 {v(vFo)}, {v(vFo)}, {v(vFx)}")
    if False:
        Lc3 = k.newlab('c3')
        k(f"s_lshl_b32 {s(t0)}, {s(sw)}, 8\ns_add_u32 {s(t0)}, {s(t0)}, s2\ns_cmp_ge_u32 {s(t0)}, 128\ns_cbranch_scc1 {Lc3}\ns_lshl_b32 {s(t0)}, {s(t0)}, 7\ns_add_u32 {s(t0)}, {s(t0)}, {WS_FLAG3}\nv_mov_b32 {v(vChk)}, 0\ns_mov_b64 exec, 1")
        k(f"buffer_store_dword {v(vChk)}, off, {s(srdO,4)}, {s(t0)} sc1\ns_mov_b64 exec, -1")
        k.label(Lc3)
    k(f"s_mov_b32 {s(sC1)}, 0")
    ZI = 80
    zrest = []
    if not MIX:
        for i in range(ZI): k(f"v_accvgpr_write_b32 {a(i)}, 0")
        zrest = [f"v_accvgpr_write_b32 {a(i)}, 0" for i in range(ZI, 128)]
    for i in range(4): k(f"v_mov_b32 {v(vL+i)}, 0\nv_mov_b32 {v(TS(i))}, 0\nv_mov_b32 {v(vOne+i)}, 0x3f803f80")
    def l2w():
        k(f"v_lshrrev_b32 {v(T+14)}, 3, {v(vLane)}\nv_lshlrev_b32 {v(T+14)}, 11, {v(T+14)}\nv_and_b32 {v(T+13)}, 7, {v(vLane)}\nv_lshl_add_u32 {v(T+14)}, {v(T+13)}, 7, {v(T+14)}")
        k(f"s_lshr_b32 {s(t0)}, s2, 3\ns_lshl_b32 {s(t0)}, {s(t0)}, 2\ns_add_u32 {s(t0)}, {s(t0)}, {s(sw)}\ns_lshl_b32 {s(t0)}, {s(t0)}, 14\ns_and_b32 {s(t1)}, s2, 1\ns_lshl_b32 {s(t1)}, {s(t1)}, 10\ns_add_u32 {s(t0)}, {s(t0)}, {s(t1)}")
        k(f"s_bitcmp1_b32 s2, 2\ns_cselect_b32 {s(t1)}, 0, {41*64*2048}\ns_mov_b32 {s(t2)}, {8*MB}\ns_cselect_b32 {s(srdF+2)}, {41*64*2048}, {s(t2)}\ns_cselect_b32 {s(t3)}, 0, {2*MB}\ns_add_u32 {s(t1)}, {s(t1)}, {s(t0)}")
        k(f"s_mov_b32 {s(srdF)}, {s(sPw)}\ns_mov_b32 {s(srdF+1)}, {s(sPw+1)}")
        L2W = []
        for r_ in ((2, 1, 0) if 'l2rev' in abl else (0, 1, 2)):
            L2W.append(f"s_add_u32 {s(t2)}, {s(t1)}, {r_*2*MB}\nbuffer_load_dword {v(vDm2)}, {v(T+14)}, {s(srdF,4)}, {s(t2)} offen")
        for x in L2W: k(x)
        k(f"s_mov_b32 {s(srdF)}, {s(sPw+2)}\ns_mov_b32 {s(srdF+1)}, {s(sPw+3)}\ns_mov_b32 {s(srdF+2)}, {s(t3)}\nbuffer_load_dword {v(vDm2)}, {v(T+14)}, {s(srdF,4)}, {s(t0)} offen")
    EV2 = 'ev1' not in abl; LT = 'nolt' not in abl; evool = []
    sTo = sHasNext; vTo = 200
    def events2(which):
        fl = f"buffer_load_dwordx2 {v(vFlag,2)}, {v(vFo)}, {s(srdO,4)}, 0 offen sc1"
        fl2 = f"s_lshr_b32 {s(t0)}, {s(sh)}, 1\ns_lshl_b32 {s(t0)}, {s(t0)}, 7\ns_add_u32 {s(t0)}, {s(t0)}, {WS_FLAG + 11*8}\nv_min_u32 {v(vFa)}, 1, {v(vLane)}\nv_lshlrev_b32 {v(vFa)}, 5, {v(vFa)}\nbuffer_load_dwordx2 {v(vFlag,2)}, {v(vFa)}, {s(srdO,4)}, {s(t0)} offen sc1"
        def ev(val, body, ret=None):
            lb = k.newlab('eb'); lr = ret or k.newlab('er')
            k(f"s_cmp_eq_u32 {s(sAbs)}, {val}\ns_cbranch_scc1 {lb}")
            if not ret: k.label(lr)
            sv = k.lines; k.lines = []
            k.label(lb); body(lr); k(f"s_branch {lr}")
            evool.extend(k.lines); k.lines = sv
        def pub(sflag, lr):
            k(f"s_cmp_lg_u32 {s(sw)}, 0\ns_cbranch_scc1 {lr}")
            k(f"v_mov_b32 {v(T+12)}, {s(sTok)}\nv_mov_b32 {v(T+13)}, {s(sTok+1)}\ns_add_u32 {s(t0)}, {s(sflag)}, {WS_FLAG}\ns_mov_b64 exec, 1")
            k(f"buffer_store_dwordx2 {v(T+12,2)}, off, {s(srdO,4)}, {s(t0)} sc1\ns_mov_b64 exec, -1")
        def touch(p_, size):
            if LT or not TOUCH: return
            k(f"s_mov_b32 {s(srdF)}, {s(p_)}\ns_mov_b32 {s(srdF+1)}, {s(p_+1)}\ns_mov_b32 {s(srdF+2)}, {size}\ns_lshl_b32 {s(t0)}, s2, 2\ns_add_u32 {s(t0)}, {s(t0)}, {s(sw)}\ns_lshl_b32 {s(t0)}, {s(t0)}, 13")
            k(f"v_lshlrev_b32 {v(T+14)}, 7, {v(vLane)}\nbuffer_load_dword {v(vDm2)}, {v(T+14)}, {s(srdF,4)}, {s(t0)} offen")
        def check(load, lr, vm):
            lsp = k.newlab('spin')
            cmp_ = f"v_cmp_ne_u64 {s(sM0,2)}, {s(sTok,2)}, {v(vFlag,2)}\ns_nop 3\ns_cmp_eq_u64 {s(sM0,2)}, 0\ns_cbranch_scc1 {lr}"
            k(f"s_waitcnt vmcnt({vm})\n{cmp_}\ns_mov_b32 s3, {SPIN}")
            k.label(lsp)
            k(f"{load}\ns_waitcnt vmcnt(0)\n{cmp_}\ns_sleep 8\ns_sub_u32 s3, s3, 1\ns_cbranch_scc0 {lsp}")
        def mask(e, lr):
            lo = 2 if e < 2 else 0
            if e in (0, 3):
                for r_ in range(0, 4, 2):
                    k(f"v_pk_add_f32 {v(Nreg(lo)+r_,2)}, {v(Nreg(lo)+r_,2)}, {v(vTB+r_,2)}\nv_pk_add_f32 {v(Nreg(lo+1)+4+r_,2)}, {v(Nreg(lo+1)+4+r_,2)}, {v(vTB+r_,2)}")
                k(f"v_mov_b32 {v(Nreg(lo)+4)}, {v(vNinf)}\nv_mov_b32 {v(Nreg(lo)+5)}, {v(vNinf)}\nv_mov_b64 {v(Nreg(lo)+6,2)}, {v(Nreg(lo)+4,2)}")
                if KS and e == 3:
                    k(f"s_bitcmp0_b32 {s(sw)}, 0\ns_cbranch_scc1 {lr}")
                    for r_ in range(0, 16, 2): k(f"v_mov_b64 {v(Nreg(2)+r_,2)}, {v(Nreg(lo)+4,2)}")
            else:
                k(f"v_mov_b32 {v(Nreg(lo))}, {v(vNinf)}\nv_mov_b32 {v(Nreg(lo)+1)}, {v(vNinf)}")
                for r_ in range(2, 32 if (KS and e == 4) else 16, 2): k(f"v_mov_b64 {v(Nreg(lo)+r_,2)}, {v(Nreg(lo),2)}")
        for e in which:
            if e < 6: ev(s(sE+e), lambda lr, e=e: mask(e, lr)); continue
            ev(s(sPB), lambda lr: (k(f"s_mov_b32 {s(t1)}, {s(sPf)}\ns_mov_b32 {s(sPf)}, -1"), pub(t1, lr)))
            ln = k.newlab('e')
            vm = 16 if (LT or not TOUCH) else 18
            ev(U_PUB, lambda lr: (k(fl2), k(f"s_cmp_eq_u32 {s(sPend)}, -1\ns_cbranch_scc1 {lr}"), pub(sPend, lr)), ln)
            ev(12, lambda lr: k(fl2), ln)
            ev(U_MID, lambda lr: check(fl2, lr, 16), ln)
            ev(U_POLL, lambda lr: (k(fl), touch(sPw, 8 * MB)), ln)
            ev(U_CHK, lambda lr: (touch(sPw + 2, 2 * MB), check(fl, lr, vm)), ln)
            k.label(ln)
    def events(which):
        if EV2: return events2(which)
        for e in which:
            ln = k.newlab('e')
            if e >= 6:
                ln2 = k.newlab('e')
                fl = f"buffer_load_dwordx2 {v(vFlag,2)}, {v(vFo)}, {s(srdO,4)}, 0 offen sc1"
                fl2 = f"s_lshr_b32 {s(t0)}, {s(sh)}, 1\ns_lshl_b32 {s(t0)}, {s(t0)}, 7\ns_add_u32 {s(t0)}, {s(t0)}, {WS_FLAG + 11*8}\nv_min_u32 {v(vFa)}, 1, {v(vLane)}\nv_lshlrev_b32 {v(vFa)}, 5, {v(vFa)}\nbuffer_load_dwordx2 {v(vFlag,2)}, {v(vFa)}, {s(srdO,4)}, {s(t0)} offen sc1"
                def touch(p_, size):
                    if not TOUCH: return
                    k(f"s_mov_b32 {s(srdF)}, {s(p_)}\ns_mov_b32 {s(srdF+1)}, {s(p_+1)}\ns_mov_b32 {s(srdF+2)}, {size}\ns_lshl_b32 {s(t0)}, s2, 2\ns_add_u32 {s(t0)}, {s(t0)}, {s(sw)}\ns_lshl_b32 {s(t0)}, {s(t0)}, 13")
                    k(f"v_lshlrev_b32 {v(T+14)}, 7, {v(vLane)}\nbuffer_load_dword {v(vDm2)}, {v(T+14)}, {s(srdF,4)}, {s(t0)} offen")
                def dtouch(n):
                    lt = k.newlab('t')
                    k(f"s_cmp_ge_u32 s2, 96\ns_cbranch_scc1 {lt}\ns_lshl_b32 {s(t0)}, s2, 2\ns_add_u32 {s(t0)}, {s(t0)}, {s(sw)}\ns_add_u32 {s(t0)}, {s(t0)}, {n*384}\ns_cmp_lt_u32 {s(t0)}, 1024")
                    k(f"s_cselect_b32 {s(srdF)}, {s(sPw)}, {s(sPw+2)}\ns_cselect_b32 {s(srdF+1)}, {s(sPw+1)}, {s(sPw+3)}\ns_mov_b32 {s(t1)}, {2*MB}\ns_cselect_b32 {s(srdF+2)}, {8*MB}, {s(t1)}\ns_and_b32 {s(t0)}, {s(t0)}, 1023\ns_lshl_b32 {s(t0)}, {s(t0)}, 13")
                    k(f"v_lshlrev_b32 {v(T+14)}, 7, {v(vLane)}\nbuffer_load_dword {v(vDm2)}, {v(T+14)}, {s(srdF,4)}, {s(t0)} offen")
                    k.label(lt)
                def cpf3():
                    k(f"s_lshr_b32 {s(t1)}, s2, 3\ns_cmp_ge_u32 {s(t1)}, 3\ns_cbranch_scc1 {ln}\ns_lshl_b32 {s(t1)}, {s(t1)}, 2\ns_add_u32 {s(t1)}, {s(t1)}, {s(sw)}\ns_mov_b64 {s(sM0,2)}, vcc")
                    code_prefetch(k, sEx, name, name + "_end", t1, vLane, T + 14, vDm2, t0)
                    k(f"s_mov_b64 vcc, {s(sM0,2)}")
                def check(load, exp):
                    if 'nochk' in abl: return
                    lsp = k.newlab('spin')
                    k(f"s_waitcnt vmcnt({18 if TOUCH and 'dtouch' not in abl else 16})\ns_mov_b32 s3, {SPIN}")
                    k.label(lsp)
                    k(f"v_cmp_ne_u64 {s(sM0,2)}, {s(sTok,2)}, {v(vFlag,2)}\ns_nop 3\ns_cmp_eq_u64 {s(sM0,2)}, 0\ns_cbranch_scc1 {ln}\ns_sub_u32 s3, s3, 1\ns_cbranch_scc1 {ln}\ns_sleep 32\n{load}\ns_waitcnt vmcnt(0)\ns_branch {lsp}")
                if L2D:
                    k(f"s_cmp_lg_u32 {s(sAbs)}, {s(sL2)}\ns_cbranch_scc1 {ln2}")
                    l2w()
                    k.label(ln2)
                ln3 = k.newlab('e')
                k(f"s_cmp_lg_u32 {s(sAbs)}, {s(sPB)}\ns_cbranch_scc1 {ln3}")
                publish(sPf, T + 12)
                k(f"s_mov_b32 {s(sPf)}, -1")
                k.label(ln3)
                k(f"s_cmp_gt_u32 {s(sAbs)}, {U_CP if 'cpf2' in abl else U_CHK}\ns_cbranch_scc1 {ln}")
                acts = [(U_PUB, None), (U_MID, lambda: check(fl2, None)), (U_POLL, lambda: (k(fl), touch(sPw, 8 * MB))), (U_CHK, lambda: (touch(sPw + 2, 2 * MB), check(fl, v(vFx))))]
                if 'cpf2' in abl: acts.append((U_CP, cpf3))
                if 'dtouch' in abl:
                    acts = [(U_PUB, None), (10, lambda: dtouch(0)), (14, lambda: dtouch(1)), (18, lambda: (dtouch(2), check(fl2, None))), (U_POLL, lambda: (k(fl), dtouch(3))), (U_CHK, lambda: check(fl, None))]
                for u_, f_ in acts:
                    lx = k.newlab('e')
                    k(f"s_cmp_lg_u32 {s(sAbs)}, {u_}\ns_cbranch_scc1 {lx}")
                    if f_ is None:
                        k(fl2)
                        k(f"s_cmp_eq_u32 {s(sPend)}, -1\ns_cbranch_scc1 {ln}")
                        publish(sPend, T + 12)
                    else: f_()
                    k(f"s_branch {ln}")
                    k.label(lx)
                k.label(ln)
                continue
            k(f"s_cmp_lg_u32 {s(sAbs)}, {s(sE+e)}\ns_cbranch_scc1 {ln}")
            lo = 2 if e < 2 else 0
            for r_ in range(4):
                if e in (0, 3):
                    k(f"v_add_f32 {v(Nreg(lo)+r_)}, {v(Nreg(lo)+r_)}, {v(vTB+r_)}\nv_mov_b32 {v(Nreg(lo)+4+r_)}, {v(vNinf)}\nv_add_f32 {v(Nreg(lo+1)+4+r_)}, {v(Nreg(lo+1)+4+r_)}, {v(vTB+r_)}")
                else:
                    k(f"v_mov_b32 {v(Nreg(lo)+r_)}, {v(vNinf)}\nv_mov_b32 {v(Nreg(lo+1)+r_)}, {v(vNinf)}\nv_mov_b32 {v(Nreg(lo+1)+4+r_)}, {v(vNinf)}\nv_mov_b32 {v(Nreg(lo)+4+r_)}, {v(vNinf)}")
            if KS and e >= 3:
                if e == 3: k(f"s_bitcmp0_b32 {s(sw)}, 0\ns_cbranch_scc1 {ln}")
                for r_ in range(16): k(f"v_mov_b32 {v(Nreg(2)+r_)}, {v(vNinf)}")
            k("s_nop 0")
            k.label(ln)
    Lrs = {(p_, n_): k.newlab(f'rs{p_}{n_}') for p_ in range(2) for n_ in (2, 4)}
    local_setup()
    k(f"v_and_b32 {v(T)}, 15, {v(vLane)}\nv_lshrrev_b32 {v(T+1)}, 4, {v(vLane)}\nv_lshlrev_b32 {v(T+1)}, 2, {v(T+1)}\nv_sub_u32 {v(T)}, {v(T)}, {v(T+1)}")
    for r_ in range(4):
        k(f"v_cmp_le_i32 vcc, {r_}, {v(T)}\ns_nop 1\nv_cndmask_b32 {v(vTB+r_)}, {v(vNinf)}, 0, vcc")
    k(f"s_mov_b32 {s(sVis)}, {sum(1 << (u_-1) for u_ in (U_PUB, U_MID, U_POLL, U_CHK))}\ns_mov_b32 {s(sVis+1)}, 0")
    for e in range(6):
        k(f"s_sub_u32 {s(t0)}, {s(sE+e)}, 1\ns_bitset1_b64 {s(sVis,2)}, {s(t0)}")
    if L2D: k(f"s_sub_u32 {s(sL2)}, {s(sE+5)}, {L2D}\ns_sub_u32 {s(t0)}, {s(sL2)}, 1\ns_bitset1_b64 {s(sVis,2)}, {s(t0)}")
    if 'dtouch' in abl: k(f"s_cmp_lt_u32 s2, 96\ns_cselect_b32 {s(t0)}, {(1 << 9) | (1 << 13)}, 0\ns_or_b32 {s(sVis)}, {s(sVis)}, {s(t0)}")
    if 'cpf2' in abl: k(f"s_cmp_lt_u32 s2, 24\ns_cselect_b32 {s(t0)}, {1 << (U_CP-1)}, 0\ns_or_b32 {s(sVis)}, {s(sVis)}, {s(t0)}")
    k(f"s_add_u32 {s(sPB)}, {s(sE+2)}, 8\ns_sub_u32 {s(t0)}, {s(sPB)}, 1\ns_bitset1_b64 {s(sVis,2)}, {s(t0)}")
    if EV2: k(f"s_cmp_ge_u32 s2, 224\ns_cselect_b32 {s(t0)}, {1 << 11}, 0\ns_or_b32 {s(sVis)}, {s(sVis)}, {s(t0)}")
    if LT:
        LSH = int(os.environ.get('LSH', '2')); GB = 128 * (64 >> LSH) * 128; nA_ = 2 * MB // GB; nW_ = 8 * MB // GB
        SKIP = set(int(x) for x in os.environ.get('LSKIP', ''))
        av = [0 if g in SKIP else 2 * x[1] - 1 for g, x in enumerate(ITEMS)]
        ga = min((g for g in range(8) if av[g] >= nA_), key=lambda g: av[g])
        cap = next(c for c in range(1, 16) if sum(min(av[g], c) for g in range(8) if g != ga) >= nW_)
        st_ = 0; tab = []
        for g in range(8):
            if g == ga: tab.append((0, nA_)); continue
            c = min(av[g], cap, nW_ - st_); tab.append((st_, st_ + c)); st_ += c
        assert st_ == nW_
        pk = lambda i: sum(t[i] << (8 * g) for g, t in enumerate(tab))
        gsh = GB.bit_length() - 1
        k(f"s_lshr_b32 {s(t0)}, s2, 5\ns_cmp_eq_u32 {s(t0)}, {ga}\ns_cselect_b32 {s(srdF)}, {s(sPw+2)}, {s(sPw)}\ns_cselect_b32 {s(srdF+1)}, {s(sPw+3)}, {s(sPw+1)}")
        k(f"s_lshl_b32 {s(t0)}, {s(t0)}, 3\ns_or_b32 {s(t0)}, {s(t0)}, 0x80000")
        k(f"s_mov_b32 {s(t2)}, {pk(1) & 0xffffffff}\ns_mov_b32 {s(t3)}, {pk(1) >> 32}\ns_bfe_u64 {s(t2,2)}, {s(t2,2)}, {s(t0)}\ns_lshl_b32 {s(srdF+2)}, {s(t2)}, {gsh}")
        k(f"s_mov_b32 {s(t2)}, {pk(0) & 0xffffffff}\ns_mov_b32 {s(t3)}, {pk(0) >> 32}\ns_bfe_u64 {s(t2,2)}, {s(t2,2)}, {s(t0)}\ns_lshl_b32 {s(sTo)}, {s(t2)}, {gsh}")
        k(f"s_and_b32 {s(t0)}, s2, 31\ns_lshl_b32 {s(t0)}, {s(t0)}, 2\ns_add_u32 {s(t0)}, {s(t0)}, {s(sw)}\ns_lshl_b32 {s(t0)}, {s(t0)}, {gsh - 7}\ns_add_u32 {s(sTo)}, {s(sTo)}, {s(t0)}")
    k.collect = None
    k(f"s_waitcnt vmcnt({16 if QL else 32})")
    ST.stamp(11) if 'lp' not in abl else None
    def rdK(unit, a_): return f"ds_read_b128 {a(KF(a_),4)}, {v(vKV)} offset:{unit*8192 + a_*1024}"
    def rdV(unit, n): return f"ds_read_b128 {a(VF(n),4)}, {v(vKV)} offset:{STG + unit*8192 + n*1024}"

    stubs = []; calls = []
    def slow_path(par, sm, evs):
        l1 = k.newlab('sp')
        src = vChk
        k(f"v_cmp_lt_f32 vcc, {s(sThr)}, {v(src)}")
        events(evs)
        st_ = k.newlab('rc')
        k(f"s_cbranch_vccnz {st_}")
        k.label(l1)
        calls.append((st_, l1, Lrs[(par, len(sm))]))

    SERP2 = 'noserp2' not in abl
    def qk_mfmas(par, qk):
        mf = []
        for kb in range(2):
            for qi, qt in enumerate(qk if (kb == 0 or not SERP2) else qk[::-1]):
                for ei, e in enumerate((0, 1, 2, 3) if (qi % 2 == 0 or not SERP2) else (3, 2, 1, 0)):
                    d = v(Sreg(par, qt) + 4 * kb, 4)
                    c = v(Nreg(qt) + 4 * kb, 4) if ei == 0 else d
                    mf.append(f"{MF} {d}, {a(KF(kb*4+e),4)}, {a(Qreg(qt,e),4)}, {c}")
        return mf
    def step(which, qk, sm, pv, dma=(), dgaps=(), last=False, loop=None, evs=(), exit_e=None, vmw=24, mode=None, xr=()):
        par = 1 - which
        mf = qk_mfmas(par ^ 1, qk)
        nqk = len(mf)
        for n in range(8):
            for qt in (pv if (n % 2 == 0 or not SERP2) else pv[::-1]):
                d = a(Oreg(qt, n), 4)
                mf.append(f"{MF} {d}, {a(VF(n),4)}, {v(Preg(par ^ 1, qt), 4)}, {d}")
        N = len(mf); npv = N - nqk
        first = {}
        head = {g: [] for g in range(N)}
        tail = {g: [] for g in range(N)}
        before = []; after = []
        bar = (which == 1 or mode is not None) and not last
        spl = mode in ('t1', 't2', 'x')
        def rV(n): return rdV(which, n) if not spl else f"ds_read_b128 {a(VF(n),4)}, {v(vV)} offset:{STG + (8192 if mode == 't2' else 0) + n*1024}"
        vfix = {}
        dg = list(dgaps)[:len(dma)]
        assert len(dg) == len(dma)
        def place_reads(g, items, stride):
            for x in items:
                while g in dg or head[g]: g += 1
                head[g].append((4, x)); g += stride
            return g
        if pv:
            if nqk: place_reads(1, [rV(n) for n in range(8)], 3 if nqk > 16 else 1)
            else: before += [rV(n) for n in range(8)]
        if xr: place_reads(1, xr, 2)
        midw = (f"s_waitcnt vmcnt({vmw}) lgkmcnt(0)" if bar and vmw is not None else "s_waitcnt lgkmcnt(0)")
        rot = [f"s_add_u32 {s(sMK)}, {s(sC1)}, {s(sW4)}", f"s_add_u32 {s(sC1)}, {s(sC1)}, {SLOT}", f"s_cmp_ge_u32 {s(sC1)}, {5*SLOT}\ns_cselect_b32 {s(sC1)}, 0, {s(sC1)}"]
        rotv = [f"v_add_u32 {v(vKV)}, {s(sC1)}, {v(vL16)}"]
        nxt = [] if last else [rdK(0 if spl else which ^ 1, a_) for a_ in range(8)]
        if spl:
            rot = [rot[1], f"s_cmp_ge_u32 {s(sC1)}, {5*SLOT}\ns_cselect_b32 {s(sC1)}, {s(sP8)}, {s(sC1)}"]
            if mode != 't1': rotv = [f"v_mov_b32 {v(vV)}, {v(vKV)}"] + rotv
        if mode == 'tr': rotv = [f"v_add_u32 {v(vV)}, {s(sC1)}, {v(vL16)}", f"v_add_u32 {v(vKV)}, {s(sP8)}, {v(vV)}"]
        for g in dg: first[g] = None
        posts = []
        for (pre, ins, post), g in zip(dma, dg):
            if pre:
                assert g - 1 not in first
                first[g - 1] = pre
            if post: posts.append((g + 1, post))
        def put_first(g, x, limit):
            while g in first and g < limit: g += 1
            assert g < limit, (x, g, limit)
            first[g] = x
            return g
        if npv:
            if nqk:
                assert nqk - 1 not in first
                first[nqk - 1] = midw
            else: before.append(midw)
            g0 = nqk
            if bar:
                head[nqk].append((8, "s_barrier")); first[nqk] = None
                if 'atp' in abl:
                    first[nqk - 1] = f"s_memtime {s(sStamp,2)}\n" + midw
                    head[nqk].append((12, f"s_lshr_b32 {s(sStamp+1)}, {s(sAbs)}, 1\ns_add_u32 {s(sStamp+1)}, {s(sStamp+1)}, 16\nv_cmp_eq_u32 vcc, {s(sStamp+1)}, {v(vLane)}\nv_mov_b32 {v(T+15)}, {s(sStamp)}\ns_nop 0\nv_cndmask_b32 {v(vStamp)}, {v(vStamp)}, {v(T+15)}, vcc"))
                g0 = nqk + 1
                assert mode or not any(p_[0] for p_ in dma)
                g = 0
                for x in rot: g = put_first(g, x, nqk - 2) + 1
                vfix[nqk - 1] = list(rotv)
                if mode == 'tr': put_first(nqk + 1, f"s_add_u32 {s(sC1)}, {s(sC1)}, {s(sP8)}", N)
            if nxt:
                place_reads(g0, nxt[:4], 3 if npv > 16 else 2)
                for x, g in zip(nxt[4:], [g for g in range(N - 7, N - 1) if g not in dg][-4:]):
                    assert not head[g]
                    head[g].append((4, x))
                assert N - 1 not in first
                first[N - 1] = "s_waitcnt lgkmcnt(4)"
        else:
            after += [midw] + (["s_barrier"] + rot + rotv if bar else []) + nxt + ["s_waitcnt lgkmcnt(0)"]
        if nqk:
            g = nqk // 2 - 1
            while g in first: g -= 1
            nrd = sum(1 for gg in range(g) for c, t_ in head[gg] if t_ and t_.startswith('ds_read'))
            first[g] = f"s_waitcnt lgkmcnt({nrd})"
        for (pre, ins, post), g in zip(dma, dg): head[g].append((8, ins))
        for g, x in posts: put_first(g, x, N)
        if sm and not last:
            gg = put_first(0, f"s_add_u32 {s(sAbs)}, {s(sAbs)}, 1", N) + 1 if spl else 0
            gg = put_first(gg, f"s_bitcmp1_b64 {s(sVis,2)}, {s(sAbs)}\ns_cselect_b32 {s(sThC)}, -1.0, {s(sThr)}", N)
            head[gg].insert(0, (4, None))
            put_first(gg + 1, f"s_add_u32 {s(sAbs)}, {s(sAbs)}, 1", N)
        ops = []
        def op(name, pr, cost, ins, deps=(), trans=False): ops.append(dict(id=name, pr=pr, cost=cost, ins=ins, deps=set(deps), trans=trans))
        seq = [(qt, n) for qt in sm for n in range(8)]
        for idx, (qt, n) in enumerate(seq):
            Sq = Sreg(par, qt); Pq = Preg(par, qt)
            if n == 0: op(('l', qt), idx + 3, 4, f"v_add_f32 {v(vL+qt)}, {v(vL+qt)}, {v(TS(qt))}")
            deps = [('c', seq[idx - 8][0], n // 2)] if idx >= 8 else []
            op(('e', qt, n), idx, 8, f"v_exp_f32 {v(vE + n)}, {v(Sq+n)}", deps, True)
            if n & 1: op(('c', qt, n // 2), idx + 1.5, 4, f"v_cvt_pk_bf16_f32 {v(Pq + n//2)}, {v(vE + n-1)}, {v(vE + n)}", [('e', qt, n - 1), ('e', qt, n)])
        thr = sThr if last else sThC
        fin = []
        if len(sm) == 4:
            fin = [f"v_max3_f32 {v(vChk)}, {v(TS(0))}, {v(TS(1))}, {v(TS(2))}", f"v_max_f32 {v(vChk)}, {v(vChk)}, {v(TS(3))}"]
        elif sm:
            fin = [f"v_max_f32 {v(vChk)}, {v(TS(0))}, {v(TS(1))}"]
        if sm: fin.append(f"v_cmp_nge_f32 vcc, {s(thr)}, {v(vChk)}")
        ops.sort(key=lambda o: o['pr'])
        done = set(); lasttrans = None
        fixedc = [sum(x[0] for x in head[g]) + 4 * len(vfix.get(g, [])) for g in range(N)]
        NV = max(N - RESV, 1)
        NG = NV + max(len(sm) - 1, 0)
        tot = sum(o['cost'] for o in ops) + sum(fixedc[:NV])
        for t_ in before: k(t_)
        cum = 0; gi = 0
        pend = list(sm)
        cdone = {}
        lastsum = None
        def nstates(since):
            n = 0
            for ln in k.lines[since:]:
                ln = ln.strip()
                n += int(ln.split()[1]) + 1 if ln.startswith("s_nop") else 1
            return n
        def fill(used, force):
            nonlocal cum, gi, lasttrans
            gi += 1
            target = tot * gi / NG
            while True:
                ready = [o for o in ops if o['id'] not in done and o['deps'] <= done and (o['trans'] or lasttrans not in o['deps'])]
                if not ready:
                    if force and len(done) < len(ops): k("s_nop 0"); lasttrans = None; continue
                    break
                if not force:
                    room = max(CAP - used, 4 * int((target - cum + 2) // 4))
                    if used >= CAP and cum + 2 >= target: break
                    fit = [o for o in ready if o['cost'] <= room]
                    if not fit:
                        if used >= CAP or cum >= target: break
                        fit = ready
                    o = fit[0]
                else: o = ready[0]
                k(o['ins']); done.add(o['id']); used += o['cost']; cum += o['cost']
                lasttrans = o['id'] if o['trans'] else None
                if o['id'][0] == 'c': cdone[o['id'][1]] = len(k.lines)
        def try_sum(force=False):
            nonlocal lastsum, lasttrans
            while pend and all(('c', pend[0], j) in done for j in range(4)) and ('l', pend[0]) in done:
                gap_ = len(k.lines) - cdone[pend[0]]
                if gap_ < 2:
                    if not force: return
                    k(f"s_nop {1 - gap_}")
                qt = pend.pop(0)
                k(f"{MF} {v(TS(qt),4)}, {v(vOne,4)}, {v(Preg(par, qt),4)}, 0"); lasttrans = None
                lastsum = len(k.lines)
                if pend: fill(0, False)
        for g in range(N):
            k(mf[g]); lasttrans = None
            if first.get(g): k(first[g])
            for c, t_ in head[g]:
                if t_: k(t_)
            for t_ in vfix.get(g, []): k(t_)
            cum += fixedc[g]
            if g < NV: fill(fixedc[g], g == NV - 1)
            if g < N - 1: try_sum(force=(g >= NV - 1))
            if fin and not pend and g < N - 1:
                if g == N - 2:
                    gap_ = nstates(lastsum)
                    if gap_ < 8: k(f"s_nop {7 - gap_}")
                    for t_ in fin: k(t_)
                    fin = []
                elif nstates(lastsum) >= 8:
                    for _ in range(min(len(fin), (CAP - fixedc[g]) // 4)): k(fin.pop(0))
                elif k.lines[-1].strip().startswith("v_mfma") and nstates(lastsum) < 8: k("s_nop 2")
                elif fixedc[g] <= 4 and nstates(lastsum) < 8: k("s_nop 0")
        assert len(done) == len(ops) and not pend
        for t_ in after: k(t_)
        after = []
        assert not fin
        if sm:
            if loop:
                k(f"s_cbranch_vccz {loop}")
                slow_path(par, sm, evs)
                k(f"s_cmp_lg_u32 {s(sAbs)}, {s(sE+exit_e)}\ns_cbranch_scc1 {loop}")
            else:
                st_, rt = k.newlab('stub'), k.newlab('ret')
                k(f"s_cbranch_vccnz {st_}"); k.label(rt)
                stubs.append((st_, rt, par, sm, evs))

    def mloc(i): return f"{v(vTB + (i >> 3))} offset:{((i >> 2) & 1) * STG + (i & 3) * 1024}"
    def epilogue(st, extra=()):
        extra = list(extra)
        k.c(f"epilogue set {st}")
        R = vE; X = 160
        if KS and st == 0:
            for i in range(3): k(f"v_xor_b32 {v(vTB+i)}, 4096, {v(vTB+i)}")
            for j in range(2): k(f"v_add_f32 {v(X+4+j)}, {v(vL+j)}, {v(TS(j))}")
            k("s_waitcnt lgkmcnt(0)\ns_barrier")
            k(f"ds_read_b128 {v(X,4)}, {v(vTB+2)}")
            rd = [f"ds_read_b128 {v(64+4*i,4)}, {mloc(i)}" for e in range(4) for j in range(2) for i in (8*j+2*e, 8*j+2*e+1)]
            for x in rd[:14]: k(x)
            k("s_waitcnt lgkmcnt(14)")
            for j in range(2): k(f"v_max_f32 {v(X+6+j)}, {v(vD+j)}, {v(X+2+j)}")
            for j in range(2): k(f"v_sub_f32 {v(X+8+j)}, {v(vD+j)}, {v(X+6+j)}\nv_sub_f32 {v(X+10+j)}, {v(X+2+j)}, {v(X+6+j)}")
            for j in range(4): k(f"v_exp_f32 {v(X+8+j)}, {v(X+8+j)}")
            for x in rd[14:]: k(x)
            for j in range(2): k(f"v_mul_f32 {v(X+4+j)}, {v(X+4+j)}, {v(X+8+j)}")
            for j in range(2): k(f"v_fma_f32 {v(X+4+j)}, {v(X+j)}, {v(X+10+j)}, {v(X+4+j)}")
            for j in range(2): k(f"v_rcp_f32 {v(X+4+j)}, {v(X+4+j)}")
            k("s_nop 0")
            for j in range(2): k(f"v_mul_f32 {v(R+2*j)}, {v(X+8+j)}, {v(X+4+j)}\nv_mul_f32 {v(R+4+2*j)}, {v(X+10+j)}, {v(X+4+j)}")
        else:
            for j in range(2): k(f"v_add_f32 {v(R+j)}, {v(vL+2*st+j)}, {v(TS(2*st+j))}")
            if KS:
                k(f"v_add_u32 {v(vChk)}, {s(sMK)}, {v(vL16)}\nv_mov_b64 {v(vD,2)}, 0\nv_mov_b64 {v(vD+2,2)}, 0\nds_write_b32 {v(vChk)}, {v(Nreg(0))}\nds_write_b32 {v(vChk)}, {v(Nreg(1))} offset:4")
                k(f"v_mov_b64 {v(vL+2,2)}, 0\nv_mov_b32 {v(TS(2))}, 0\nv_mov_b32 {v(TS(3))}, 0")
            else: k("s_nop 3")
            k(f"v_rcp_f32 {v(R+2)}, {v(R+1)}\nv_rcp_f32 {v(R)}, {v(R)}")
        k(f"s_lshl_b32 {s(t0)}, {s(sQ+st)}, 10\ns_add_u32 {s(t0)}, {s(t0)}, {s(sLo+2)}\ns_add_u32 {s(t0)}, {s(t0)}, {WS_CTX}")
        for e in range(4):
            for j in range(2):
                b = T + 8 * j
                for i in range(8): k(f"v_accvgpr_read_b32 {v(b+i)}, {a(Oreg(2*st+j, 2*e) + i)}")
                if KS and st == 1:
                    for i in range(2): k(f"{MF} {a(Oreg(2+j, 2*e+i), 4)}, {v(vD,4)}, {v(vOne,4)}, 0")
                for i in range(0, 8, 2): k(f"v_pk_mul_f32 {v(b+i,2)}, {v(b+i,2)}, {v(R+2*j,2)} op_sel_hi:[1,0]")
                if KS and st == 0:
                    k(f"s_waitcnt lgkmcnt({14 - 2*(2*e+j)})")
                    for i in range(0, 8, 2): k(f"v_pk_fma_f32 {v(b+i,2)}, {v(64+32*j+8*e+i,2)}, {v(R+4+2*j,2)}, {v(b+i,2)} op_sel_hi:[1,0,1]")
                for i in range(4): k(f"v_cvt_pk_bf16_f32 {v(b+i)}, {v(b+2*i)}, {v(b+2*i+1)}")
                k(f"buffer_store_dwordx4 {v(b,4)}, {v(vL16)}, {s(srdO,4)}, {s(t0)} offen offset:{j*1024}{sfx}")
                if extra: k(extra.pop(0)[1])
            k(f"s_add_u32 {s(t0)}, {s(t0)}, 131072")
            if KS and st == 1 and e == 1:
                k(f"v_xor_b32 {v(vChk)}, 4096, {v(vChk)}\ns_waitcnt lgkmcnt(0)\ns_barrier\nds_read_b32 {v(Nreg(2))}, {v(vChk)}\nds_read_b32 {v(Nreg(3))}, {v(vChk)} offset:4")
        if KS and st == 1:
            k("s_waitcnt vmcnt(8) lgkmcnt(0)")
            for qt in (2, 3): k(f"v_mov_b32 {v(Nreg(qt)+1)}, {v(Nreg(qt))}")
            for qt in (2, 3):
                for i in range(2, 8, 2): k(f"v_mov_b64 {v(Nreg(qt)+i,2)}, {v(Nreg(qt),2)}")
        for x in extra: k(x[1])

    G = dma_group(); LL = local_loads()
    k.c("head")
    k("s_waitcnt lgkmcnt(0)")
    import re as _re
    ini = []
    for txt in INI:
        cur = []
        for ln_ in txt.split("\n"):
            keep = cur and (ln_.startswith(("s_cselect", "s_addc", "v_cndmask", "s_nop")) or cur[-1].startswith(("s_cmp", "v_cmp", "s_nop")) or any(x.startswith("s_cmp") for x in cur) and "s_cselect" in txt[txt.index(ln_):])
            if cur and not keep: ini.append(cur); cur = []
            cur.append(ln_)
        ini.append(cur)
    for i, m_ in enumerate(qk_mfmas(0, AB)):
        k(_re.sub(r", v\[1[6-9]\d:1[6-9]\d\]$", ", 0", m_))
        n_ = 0
        if i % 4 == 1: emit_group([stash_item(i // 4)]); n_ = 3
        if 16 <= i < 20: k(rdK(1, i - 16)); n_ += 1
        while ini and n_ < 4:
            p_ = ini.pop(0); k("\n".join(p_)); n_ += len(p_)
    for a_ in range(4, 8): k(rdK(1, a_))
    for p_ in ini: k("\n".join(p_))
    k(f"s_mov_b32 {s(sAbs)}, 1\ns_nop 3")
    lz = k.newlab('z')
    k(f"s_cmp_lg_u32 {s(sE)}, 0\ns_cbranch_scc1 {lz}")
    for r_ in range(4):
        k(f"v_add_f32 {v(Sreg(0,2)+r_)}, {v(Sreg(0,2)+r_)}, {v(vTB+r_)}\nv_mov_b32 {v(Sreg(0,2)+4+r_)}, {v(vNinf)}\nv_add_f32 {v(Sreg(0,3)+4+r_)}, {v(Sreg(0,3)+4+r_)}, {v(vTB+r_)}")
    k.label(lz)
    for j0, j1, j2 in ((0, 1, 2), (None, 3, 4), (None, 5, 6)):
        for qt in AB: k(f"v_max3_f32 {v(T+qt)}, {v(Sreg(0,qt)) if j0 == 0 else v(T+qt)}, {v(Sreg(0,qt)+j1)}, {v(Sreg(0,qt)+j2)}")
    for qt in AB: k(f"v_max_f32 {v(T+qt)}, {v(T+qt)}, {v(Sreg(0,qt)+7)}")
    xlane([T + q_ for q_ in AB], [T + 4 + q_ for q_ in AB], "v_max_f32")
    for qt in AB:
        k(f"v_sub_f32 {v(Nreg(qt))}, 0, {v(T+qt)}\nv_sub_f32 {v(Nreg(qt)+1)}, 0, {v(T+qt)}")
    for qt in AB:
        for i in range(2, 8, 2): k(f"v_mov_b64 {v(Nreg(qt)+i,2)}, {v(Nreg(qt),2)}")
    for qt in AB:
        for i in range(0, 8, 2): k(f"v_pk_add_f32 {v(Sreg(0,qt)+i,2)}, {v(Sreg(0,qt)+i,2)}, {v(Nreg(qt),2)}")
    events((0, 1))
    if LT: k(f"v_lshrrev_b32 {v(vTo)}, {LSH}, {v(vLane)}\nv_lshlrev_b32 {v(vTo)}, 7, {v(vTo)}\nv_add_u32 {v(vTo)}, {s(sTo)}, {v(vTo)}")
    k("s_waitcnt lgkmcnt(0)")
    step(1, AB, AB, (), dma=[stash_item(m) for m in range(8, 16)], dgaps=(2, 5, 9, 12, 17, 20, 23, 26), evs=(0, 1), vmw=48)
    ST.stamp(12); dbgmax(2, True)
    Ld = k.newlab('dual'); align(); k.label(Ld)
    TL = [(None, f"buffer_load_dword {v(vDm2)}, {v(vTo)}, {s(srdF,4)}, 0 offen\nv_add_u32 {v(vTo)}, {GB}, {v(vTo)}", None)] if LT else []
    step(0, AB, AB, AB, dma=G[:5], dgaps=(5, 18, 27, 43, 52), evs=(0, 1)); step(1, AB, AB, AB, dma=G[5:] + TL, dgaps=(6, 18, 27, 47), vmw=24 + 3 * len(TL), loop=Ld, evs=(0, 1, 6) if KS else (0, 1, 3, 6), exit_e=2)
    if KS:
        QP = [(None, f"buffer_load_dwordx4 {a(Qreg(qt, e), 4)}, {v(vL16)}, {s(srdO,4)}, {s(t2 + qt - 2)} offen offset:{e*1024} sc1", None) for qt in (2, 3) for e in range(4)]
        QP[0] = (f"s_xor_b32 {s(t2)}, {s(sQ)}, 2\ns_lshl_b32 {s(t2)}, {s(t2)}, 12\ns_add_u32 {s(t2)}, {s(t2)}, {s(sLo+2)}", QP[0][1], f"s_add_u32 {s(t3)}, {s(t2)}, 4096")
        assert WS_QB == 0
        step(0, A_, AB, AB, dma=G[:5], dgaps=(3, 11, 21, 31, 41)); step(1, A_, A_, AB, dma=G[5:] + QP, dgaps=(3, 8, 13, 19, 22, 25, 28, 31, 34, 37, 40), mode='tr')
    else:
        step(0, A_, AB, AB, dma=G[:5], dgaps=(3, 11, 21, 31, 41), evs=(3, 4)); step(1, A_, A_, AB, dma=G[5:], dgaps=(3, 8, 13), evs=(3, 4, 6))
    epilogue(1)
    def ctx_flag(dst, sn): k(f"s_lshl_b32 {s(dst)}, {s(sn)}, 5\ns_add_u32 {s(dst)}, {s(dst)}, {s(sh)}\ns_lshl_b32 {s(dst)}, {s(dst)}, 3\ns_add_u32 {s(dst)}, {s(dst)}, {F_CTX - 256}")
    ctx_flag(sPf, snB)
    ST.stamp(13)
    Ls = k.newlab('single'); Lsx = k.newlab('singlex')
    if EEX: k(f"s_cmp_eq_u32 {s(sAbs)}, {s(sE+5)}\ns_cbranch_scc1 {Lsx}")
    if KS:
        G2 = list(G)
        G2[4] = (G[4][0], G[4][1], f"s_add_u32 {s(sMK)}, {s(sMK)}, {SLOT}")
        G2[5] = (None, G[5][1], f"s_cmp_ge_u32 {s(sMK)}, {5*SLOT}\ns_cselect_b32 {s(sMK)}, {s(sW4)}, {s(sMK)}")
        XG = tuple(int(x) for x in os.environ.get('XG', '5,14,21,27,38,44,50,55').split(','))
        xw = 8 + sum(g < 31 for g in XG)
        Le_ = k.newlab('entry')
        step(0, AB, A_, A_, mode='t1', vmw=None, evs=(3, 4, 6))
        step(1, AB, AB, A_, dma=G2, dgaps=(2, 8, 13, 19, 24, 28, 36, 40), mode='t2', vmw=None, evs=(3, 4))
        k(f"s_branch {Le_}")
        align()
        k.label(Ls)
        step(1, AB, AB, AB, dma=G2, dgaps=XG, mode='x', vmw=xw, evs=(3, 4))
        k.label(Le_)
        step(0, AB, AB, AB, dma=G2, dgaps=XG, mode='x', vmw=xw, loop=Ls, evs=(3, 4, 6), exit_e=5)
        k(f"s_sub_u32 {s(t0)}, {s(sC1)}, {s(sP8)}")
        for i in range(3): k(f"s_add_u32 {s(t0)}, {s(t0)}, {SLOT}\ns_cmp_ge_u32 {s(t0)}, {5*SLOT}\ns_cselect_b32 {s(t0)}, 0, {s(t0)}\nv_add_u32 {v(vTB+i)}, {s(t0)}, {v(vDma)}")
    else:
        align()
        k.label(Ls)
        step(0, A_, A_, A_, dma=G[:5], dgaps=(2, 10, 14, 19, 28), evs=(3, 4)); step(1, A_, A_, A_, dma=G[5:], dgaps=(4, 9, 13), loop=Ls, evs=(3, 4, 6), exit_e=5)
    k.label(Lsx)
    ST.stamp(14); dbgmax(4, True)
    dW = srdK; dO = srdV; dX = srdS
    sIsA = CP['nk']; sMt3 = CP['swp']; sNt3 = CP['scale']; sXd3 = CP['Si']
    sXo = sKo; sWo = sVo; sRd = sC1; sWr = sMK; sDl = sThC; sCn = sAbs; sSl = CP['Sj']; sEv = sE; sLim = sE + 1; sXb = sE + 2; sPo = sE + 3; sOb = sE + 4; sOs = sE + 5
    sXs3 = sL2; swm3 = sPB; swn3 = sSa
    cW = 16
    if 'oldmap' in abl:
        k(f"s_bfe_u32 {s(sIsA)}, s2, 0x10002\ns_xor_b32 {s(sIsA)}, {s(sIsA)}, 1\ns_bitcmp1_b32 s2, 1\ns_cselect_b32 {s(sMt3)}, {s(snA)}, {s(snB)}\ns_sub_u32 {s(sMt3)}, {s(sMt3)}, 1")
    else:
        k(f"s_bfe_u32 {s(sIsA)}, s2, 0x10002\ns_and_b32 {s(t0)}, s2, 7\ns_bitcmp1_b32 0x63, {s(t0)}\ns_cselect_b32 {s(sMt3)}, {s(snA)}, {s(snB)}\ns_sub_u32 {s(sMt3)}, {s(sMt3)}, 1")
    k(f"s_and_b32 {s(t0)}, s2, 1\ns_lshl_b32 {s(t0)}, {s(t0)}, 2\ns_bfe_u32 {s(t1)}, s2, 0x20003\ns_add_u32 {s(sNt3)}, {s(t0)}, {s(t1)}")
    k(f"v_and_b32 {v(vFo)}, 31, {v(vLane)}\nv_lshlrev_b32 {v(vFo)}, 3, {v(vFo)}\ns_lshl_b32 {s(sXs3)}, {s(sMt3)}, 8\ns_add_u32 {s(sXs3)}, {s(sXs3)}, {WS_FLAG + F_CTX}")
    rdy_load = f"buffer_load_dwordx2 {v(vFlag,2)}, {v(vFo)}, {s(srdO,4)}, {s(sXs3)} offen sc1"
    k(rdy_load)
    LLATE = 'llate' in abl
    def xbar():
        k("s_nop 1")
        if EEX:
            lb = k.newlab('xb')
            k(f"s_cmp_ge_u32 {s(sw)}, 2\ns_cbranch_scc1 {lb}\ns_waitcnt vmcnt(24)\ns_barrier")
            k.label(lb)
    if KS:
        step(1, (), AB, AB, last=True, mode='x', xr=[f"ds_read_b128 {a(KF(n),4)}, {v(vKV)} offset:{STG + n*1024}" for n in range(8)])
        k("s_waitcnt vmcnt(1) lgkmcnt(0)")
        fl_ = [x[1] for x in LL]
        fl_ += [f"v_add_f32 {v(vE)}, {v(vL+2)}, {v(TS(2))}\nv_add_f32 {v(vE+1)}, {v(vL+3)}, {v(TS(3))}\nv_mov_b64 {v(vE+2,2)}, {v(vD+2,2)}"]
        wo = []
        for pv in ((2, 3), (0, 1)):
            for n in range(8):
                for qt in (pv if n % 2 == 0 else pv[::-1]):
                    d = a(Oreg(qt, n), 4)
                    k(f"{MF} {d}, {a(KF(n),4)}, {v(Preg(0, qt), 4)}, {d}")
                    if qt >= 2:
                        k(fl_.pop(0))
                        adr, off = mloc((qt - 2) * 8 + n).split()
                        wo.append(f"ds_write_b128 {adr}, {d} {off}")
                    else: k(wo.pop(0))
        k(f"ds_write_b128 {v(vTB+2)}, {v(vE,4)}")
        assert not fl_ and not wo
    elif LLATE:
        step(0, (), A_, A_, last=True); k("s_nop 1"); step(1, (), (), A_, last=True)
    else:
        step(0, (), A_, A_, last=True, dma=LL[:7], dgaps=(0, 2, 4, 6, 8, 10, 12)); xbar(); step(1, (), (), A_, last=True, dma=LL[7:], dgaps=(0, 2, 4, 6, 8, 10, 12, 14))
    epilogue(0)
    k(f"s_lshr_b32 {s(swm3)}, {s(sw)}, 1\ns_and_b32 {s(swn3)}, {s(sw)}, 1")
    k(f"s_mul_i32 {s(t0)}, {s(sIsA)}, {NC*64*2048}\ns_lshl_b32 {s(sWo)}, {s(sNt3)}, 8\ns_add_u32 {s(sWo)}, {s(sWo)}, {s(t0)}")
    E_ = vE
    k(f"v_lshrrev_b32 {v(E_)}, 4, {v(vLane)}\ns_lshl_b32 {s(t0)}, {s(sw)}, 4\nv_add_u32 {v(E_+1)}, {s(t0)}, {v(E_)}\nv_lshlrev_b32 {v(E_+1)}, 11, {v(E_+1)}")
    k(f"v_lshlrev_b32 {v(E_)}, 1, {v(E_)}\nv_and_b32 {v(E_+2)}, 15, {v(vLane)}\nv_xor_b32 {v(E_)}, {v(E_)}, {v(E_+2)}")
    for j in range(4):
        k(f"v_xor_b32 {v(E_+2)}, {8*(j&1)}, {v(E_)}\nv_lshl_add_u32 {v(cW+j)}, {v(E_+2)}, 4, {v(E_+1)}")
        if j: k(f"v_add_u32 {v(cW+j)}, {j*(8192-1024)}, {v(cW+j)}")
    k(f"s_mov_b32 {s(dW)}, {s(sPw)}\ns_mov_b32 {s(dW+1)}, {s(sPw+1)}\ns_mov_b32 {s(dW+2)}, {8*MB}\ns_mov_b32 {s(dX+2)}, {WS_SIZE}")
    k(f"s_mov_b32 {s(dO)}, {s(sOut)}\ns_mov_b32 {s(dO+1)}, {s(sOut+1)}\ns_mov_b32 {s(dO+2)}, {2048*2048*2}")
    k(f"s_lshl_b32 {s(t0)}, {s(sMt3)}, 13\ns_lshl_b32 {s(t1)}, {s(swn3)}, 12\ns_add_u32 {s(t0)}, {s(t0)}, {s(t1)}\ns_lshl_b32 {s(t1)}, {s(swm3)}, 17\ns_add_u32 {s(sXb)}, {s(t0)}, {s(t1)}")
    k(f"s_mul_i32 {s(t0)}, {s(sIsA)}, {NC*262144}\ns_add_u32 {s(sXo)}, {s(sXb)}, {s(t0)}\ns_add_u32 {s(sXo)}, {s(sXo)}, {WS_CTX}\ns_add_u32 {s(sXb)}, {s(sXb)}, {WS_OA}")
    def d3x(j): return f"buffer_load_dwordx4 {v(vL16)}, {s(dX,4)}, {s(sXo)} offen offset:{j*1024}{ksc} lds"
    def d3w(j): return f"buffer_load_dwordx4 {v(cW+j)}, {s(dW,4)}, {s(sWo)} offen offset:{j*1024}{wsc} lds"
    def lim_eval():
        k(f"v_cmp_ne_u64 {s(sM0,2)}, {s(sTok,2)}, {v(vFlag,2)}\ns_mul_i32 {s(t1)}, {s(sIsA)}, {NC >> 1}\ns_nop 2\ns_lshr_b32 {s(t0)}, {s(sM0)}, {s(t1)}\ns_ff1_i32_b32 {s(t0)}, {s(t0)}")
        k(f"s_lshl_b32 {s(sLim)}, {s(t0)}, 1\ns_mul_i32 {s(t1)}, {s(sIsA)}, {NC & 1}\ns_sub_i32 {s(sLim)}, {s(sLim)}, {s(t1)}\ns_cmp_lt_i32 {s(t0)}, 0\ns_cselect_b32 {s(sLim)}, 1000, {s(sLim)}")
    def lim_update(sneed):
        Lsp = k.newlab('spin'); Lok = k.newlab('ok')
        k(f"s_mov_b32 s3, {SPIN}")
        k.label(Lsp)
        k(f"{rdy_load}\ns_waitcnt vmcnt(0)")
        lim_eval()
        k(f"s_cmp_gt_i32 {s(sLim)}, {sneed}\ns_cbranch_scc1 {Lok}\ns_sub_u32 s3, s3, 1\ns_cbranch_scc1 {Lok}\ns_sleep 4\ns_branch {Lsp}")
        k.label(Lok)
    def x_pre():
        for st in range(NS3):
            k(f"s_add_u32 m0, {s(sW4)}, {st*SLOT}\ns_nop 0")
            for j in range(4): k(d3x(j))
            k(f"s_add_u32 {s(sXo)}, {s(sXo)}, 262144")
    cx = 6; cw = 12; cSt = 7
    def acc3(nb, mb): return 64 + (((nb >> 1) * 4 + mb) * 2 + (nb & 1)) * 4
    def fX(st, mb): return st * 32 + mb * 4
    def fW(st, nb): return st * 32 + 16 + nb * 4
    PART = 128
    k(f"s_lshl_b32 {s(t0)}, {s(swm3)}, 12\nv_add_u32 {v(cx)}, {s(t0)}, {v(vL16)}")
    k(f"v_lshrrev_b32 {v(T)}, 2, {v(vLane)}\nv_lshlrev_b32 {v(T)}, 8, {v(T)}\nv_and_b32 {v(T+1)}, 3, {v(vLane)}\nv_lshl_add_u32 {v(T)}, {v(T+1)}, 3, {v(T)}\nv_add_u32 {v(T)}, 16384, {v(T)}")
    k(f"v_bfe_u32 {v(T+1)}, {v(vLane)}, 2, 3\ns_lshl_b32 {s(t0)}, {s(swn3)}, 2\nv_xor_b32 {v(T+1)}, {s(t0)}, {v(T+1)}")
    for nb in range(4):
        k(f"v_xor_b32 {v(T+2)}, {nb}, {v(T+1)}\nv_lshl_add_u32 {v(cw+nb)}, {v(T+2)}, 5, {v(T)}")
    k(f"v_and_b32 {v(T)}, 15, {v(vLane)}\nv_lshlrev_b32 {v(T)}, 12, {v(T)}\nv_lshlrev_b32 {v(T)}, {s(sIsA)}, {v(T)}")
    k(f"v_bfe_u32 {v(T+1)}, {v(vLane)}, 4, 1\nv_lshl_add_u32 {v(T)}, {v(T+1)}, 5, {v(T)}\nv_lshrrev_b32 {v(T+1)}, 5, {v(vLane)}\nv_lshl_add_u32 {v(cSt)}, {v(T+1)}, 4, {v(T)}")
    k(f"s_lshl_b32 {s(t0)}, {s(sMt3)}, 3\ns_lshl_b32 {s(t1)}, {s(swm3)}, 2\ns_add_u32 {s(t0)}, {s(t0)}, {s(t1)}")
    k(f"s_lshl_b32 {s(t1)}, {s(t0)}, 16\ns_add_u32 {s(t1)}, {s(t1)}, 2048")
    k(f"s_and_b32 {s(t2)}, {s(t0)}, 63\ns_lshl_b32 {s(t2)}, {s(t2)}, 17\ns_lshr_b32 {s(t3)}, {s(t0)}, 6\ns_lshl_b32 {s(t3)}, {s(t3)}, 12\ns_add_u32 {s(t2)}, {s(t2)}, {s(t3)}")
    k(f"s_cmp_eq_u32 {s(sIsA)}, 1\ns_cselect_b32 {s(sOb)}, {s(t2)}, {s(t1)}\ns_lshl_b32 {s(sOs)}, 0x10000, {s(sIsA)}")
    k(f"s_lshl_b32 {s(t2)}, {s(sNt3)}, 8\ns_lshl_b32 {s(t3)}, {s(swn3)}, 7\ns_add_u32 {s(sOb)}, {s(sOb)}, {s(t2)}\ns_add_u32 {s(sOb)}, {s(sOb)}, {s(t3)}")
    for i in range(0, 64, 2): k(f"v_mov_b64 {v(64+i,2)}, 0")
    local_pre()
    k(f"s_add_u32 {s(sWr)}, {s(sW4)}, {(NS3-1)*SLOT}\ns_mov_b32 {s(sRd)}, 0\ns_mov_b32 {s(sSl)}, {SLOT}\ns_mov_b32 {s(sCn)}, 0\ns_mov_b32 {s(sEv)}, 0")
    k("s_waitcnt vmcnt(0)\ns_barrier")
    ctx_flag(t1, snA); publish(t1, T + 12)
    Lpb = k.newlab('pb'); Lx3 = k.newlab('x3')
    k(f"s_cmp_eq_u32 {s(sPf)}, -1\ns_cbranch_scc1 {Lpb}")
    publish(sPf, T + 12)
    k.label(Lpb)
    ST.stamp(15)
    lim_eval()
    for st in range(NS3 - 1):
        k(f"s_add_u32 m0, {s(sW4)}, {st*SLOT + 16384}\ns_nop 0")
        for j in range(4): k(d3w(j))
        k(f"s_add_u32 {s(sWo)}, {s(sWo)}, {64*2048}")
    k(f"s_cmp_gt_i32 {s(sLim)}, {NS3-1}\ns_cbranch_scc1 {Lx3}")
    lim_update(str(NS3 - 1))
    k.label(Lx3)
    x_pre()
    k("s_waitcnt vmcnt(16)\ns_barrier")
    ST.stamp(2); dbgmax(6, True)
    def reads3(st, kk):
        o = []
        def rx(mb): o.append((('x', st, mb), f"ds_read_b128 {a(fX(st, mb), 4)}, {v(cx)} offset:{mb * 1024 + kk * 8192}"))
        def rw(nb):
            for t_ in range(2):
                o.append((('w', st, nb), f"ds_read_b64_tr_b16 {a(fW(st, nb) + 2 * t_, 2)}, {v(cw + nb)} offset:{(32 * kk + 16 * t_) * 256}"))
        rx(0); rw(0); rx(1); rx(2); rx(3); rw(1); rw(2); rw(3)
        return o
    CH3 = 'ch3' in abl
    if not CH3:
        for tag, ins in reads3(0, 0): k(ins)
    def pstore(b): return f"buffer_store_dwordx4 {v(PART+4*b,4)}, {v(vL16)}, {s(srdO,4)}, {s(sPo)} offen offset:{(b&3)*1024} sc1" + (f"\ns_add_u32 {s(sPo)}, {s(sPo)}, 4096" if b & 3 == 3 else "")
    def body3(stores=(), loop=False, xs=None, per=2, vm3=24):
        tr = LgkmTracker([tag for tag, _ in reads3(0, 0)])
        stores = list(stores)
        for ss in range(2):
            st = ss
            nxt = reads3(st ^ 1, ss ^ 1)
            rd_at = {(1 if ss else 0) + i: x for i, x in enumerate(nxt)}
            first = {}; fill = {g: [] for g in range(16)}
            if ss == 0:
                first[0] = f"s_add_u32 m0, {s(sWr)}, 16384"
                for j, g in enumerate((1, 5, 9, 13)): fill[g].append(d3w(j))
                first[2] = f"s_add_u32 {s(sWr)}, {s(sRd)}, {s(sW4)}"
                first[3] = f"s_add_u32 {s(sRd)}, {s(sRd)}, {SLOT}"
                first[4] = f"s_cmp_ge_u32 {s(sRd)}, {NS3*SLOT}"
                first[6] = f"s_cselect_b32 {s(sDl)}, {-(NS3-1)*SLOT & 0xffffffff}, {s(sSl)}"
                first[7] = f"s_cselect_b32 {s(sRd)}, 0, {s(sRd)}"
                fill[12].append(f"v_add_u32 {v(cx)}, {s(sDl)}, {v(cx)}\nv_add_u32 {v(cw)}, {s(sDl)}, {v(cw)}")
                first[14] = f"s_add_u32 {s(sWo)}, {s(sWo)}, {64*2048}"
                fill[14].append(f"v_add_u32 {v(cw+1)}, {s(sDl)}, {v(cw+1)}\nv_add_u32 {v(cw+2)}, {s(sDl)}, {v(cw+2)}")
                first[15] = f"s_mov_b32 m0, {s(sWr)}"
                fill[15].append(f"v_add_u32 {v(cw+3)}, {s(sDl)}, {v(cw+3)}")
                if stores: fill[11].append(stores.pop(0))
            else:
                for j, g in enumerate((1, 5, 9, 13)): fill[g].append(d3x(j))
                if stores: fill[11].append(stores.pop(0))
                first[12] = f"s_add_u32 {s(sCn)}, {s(sCn)}, 1"
                first[14] = f"s_add_u32 {s(sXo)}, {s(sXo)}, 262144" + (f"\ns_cmp_lt_u32 {s(sCn)}, {s(sEv)}" if loop else "")
            for i in range(16):
                nb, mb = i // 4, i % 4
                if ss == 1 and i == 0:
                    tr.q = []
                    k(f"s_waitcnt vmcnt({vm3}) lgkmcnt(0)")
                w = tr.need({('x', st, mb), ('w', st, nb)})
                if w: k(w)
                d = v(acc3(nb, mb), 4)
                k(f"{MF} {d}, {a(fW(st, nb), 4)}, {a(fX(st, mb), 4)}, {d}")
                if ss == 1 and i == 0: k("s_barrier")
                if i in first: k(first[i])
                if i in rd_at:
                    tag, ins = rd_at[i]; k(ins); tr.issue(tag)
                for x in fill[i]: k(x)
                if xs:
                    for _ in range(per if not fill[i] else 1):
                        if xs: k(xs.pop(0))
    if CH3:
        def gX(mb, kk): return mb * 8 + kk * 4
        def gW(nb, kk): return 32 + nb * 8 + kk * 4
        def rX(mb): return [(('x', mb), f"ds_read_b128 {a(gX(mb, kk), 4)}, {v(cx)} offset:{mb * 1024 + kk * 8192}") for kk in range(2)]
        def rW(nb): return [(('w', nb), f"ds_read_b64_tr_b16 {a(gW(nb, kk) + 2 * t_, 2)}, {v(cw + nb)} offset:{(32 * kk + 16 * t_) * 256}") for kk in range(2) for t_ in range(2)]
        tail3 = rX(0) + rX(1) + rX(2) + rX(3)
        for tag, ins in rW(0) + rW(1) + tail3: k(ins)
        def body3(stores=(), loop=False, xs=None, per=2):
            tr = LgkmTracker([tag for tag, _ in tail3])
            stores = list(stores)
            rd = {}
            for i, x in enumerate(rW(2) + rW(3)): rd.setdefault(i, []).append(x)
            w01 = rW(0) + rW(1)
            for mb in range(4):
                base = 16 + 4 * mb
                rd.setdefault((17, 18, 21, 22)[mb], []).extend(w01[2 * mb:2 * mb + 2])
                x0, x1 = rX(mb)
                rd.setdefault(base + 3, []).append(x0); rd.setdefault(min(base + 4, 31), []).append(x1)
            first = {0: f"s_add_u32 m0, {s(sWr)}, 16384", 2: f"s_add_u32 {s(sWr)}, {s(sRd)}, {s(sW4)}", 3: f"s_add_u32 {s(sRd)}, {s(sRd)}, {SLOT}", 4: f"s_cmp_ge_u32 {s(sRd)}, {NS3*SLOT}",
                     6: f"s_cselect_b32 {s(sDl)}, {-(NS3-1)*SLOT & 0xffffffff}, {s(sSl)}", 7: f"s_cselect_b32 {s(sRd)}, 0, {s(sRd)}", 14: f"s_add_u32 {s(sWo)}, {s(sWo)}, {64*2048}", 15: f"s_mov_b32 m0, {s(sWr)}",
                     28: f"s_add_u32 {s(sCn)}, {s(sCn)}, 1", 30: f"s_add_u32 {s(sXo)}, {s(sXo)}, 262144" + (f"\ns_cmp_lt_u32 {s(sCn)}, {s(sEv)}" if loop else "")}
            fill = {g: [] for g in range(32)}
            for j, g in enumerate((1, 5, 9, 13)): fill[g].append(d3w(j)); fill[16 + g].append(d3x(j))
            fill[8].append(f"v_add_u32 {v(cx)}, {s(sDl)}, {v(cx)}\nv_add_u32 {v(cw)}, {s(sDl)}, {v(cw)}")
            fill[10].append(f"v_add_u32 {v(cw+1)}, {s(sDl)}, {v(cw+1)}\nv_add_u32 {v(cw+2)}, {s(sDl)}, {v(cw+2)}")
            fill[12].append(f"v_add_u32 {v(cw+3)}, {s(sDl)}, {v(cw+3)}")
            for g in (11, 14):
                if stores: fill[g].append(stores.pop(0))
            i = 0
            for rp in range(2):
                for mb in range(4):
                    for nb in (2 * rp, 2 * rp + 1):
                        for kk in range(2):
                            w = tr.need({('x', mb), ('w', nb)})
                            if i == 16:
                                tr.q = []
                                k(f"s_waitcnt vmcnt({8*(NS3-2)}) lgkmcnt(0)")
                            elif i == 0: k("s_waitcnt lgkmcnt(6)"); tr.q = tr.q[-6:]
                            elif w: k(w)
                            d = v(acc3(nb, mb), 4)
                            k(f"{MF} {d}, {a(gW(nb, kk), 4)}, {a(gX(mb, kk), 4)}, {d}")
                            if i == 16: k("s_barrier")
                            if i in first: k(first[i])
                            for tag, ins in rd.get(i, []): k(ins); tr.issue(tag)
                            for x in fill[i]: k(x)
                            if xs:
                                for _ in range(per if not fill[i] else 1):
                                    if xs: k(xs.pop(0))
                            i += 1
    L3 = k.newlab('l3'); L3e = k.newlab('l3e'); L3x = k.newlab('l3x'); L3c = k.newlab('l3c'); L3n = k.newlab('l3n')
    XS_ = local_stream(); nun = 0; polls = []
    while XS_:
        lp = k.newlab('lp'); lr = k.newlab('lr')
        k(f"s_cmp_gt_i32 {s(sLim)}, {nun + NS3}\ns_cbranch_scc0 {lp}"); k.label(lr)
        polls.append((lp, lr, nun + NS3))
        body3(xs=XS_, vm3=min(16 + 4 * nun, 24)); nun += 1
    OAP = nun + 4
    assert nun >= 3 and not CH3 and not LLATE
    k(f"s_branch {L3e}")
    for lp, lr, need in polls:
        k.label(lp); lim_update(str(need)); k(f"s_branch {lr}")
    align()
    k.label(L3)
    body3(loop=True)
    k(f"s_cbranch_scc1 {L3}")
    k.label(L3e)
    def pair_flag(dst): k(f"s_lshl_b32 {s(dst)}, {s(sMt3)}, 3\ns_add_u32 {s(dst)}, {s(dst)}, {s(sNt3)}\ns_lshl_b32 {s(dst)}, {s(dst)}, 7\ns_add_u32 {s(dst)}, {s(dst)}, {F_PAIR}")
    def part_addr(): k(f"s_lshl_b32 {s(t0)}, {s(sMt3)}, 3\ns_add_u32 {s(t0)}, {s(t0)}, {s(sNt3)}\ns_lshl_b32 {s(t0)}, {s(t0)}, 15\ns_lshl_b32 {s(t1)}, {s(sw)}, 13\ns_add_u32 {s(t0)}, {s(t0)}, {s(t1)}\ns_add_u32 {s(sPo)}, {s(t0)}, {WS_PART}")
    def all_ready(load):
        Lsp = k.newlab('spin'); Lok = k.newlab('ok')
        k(f"s_waitcnt vmcnt(16)\ns_mov_b32 s3, {SPIN}")
        k.label(Lsp)
        k(f"v_cmp_ne_u64 {s(sM0,2)}, {s(sTok,2)}, {v(vFlag,2)}\ns_nop 3\ns_cmp_eq_u64 {s(sM0,2)}, 0\ns_cbranch_scc1 {Lok}\ns_sub_u32 s3, s3, 1\ns_cbranch_scc1 {Lok}\ns_sleep 8\n{load}\ns_waitcnt vmcnt(0)\ns_branch {Lsp}")
        k.label(Lok)
    Lr = k.newlab('rdy')
    k(f"s_add_u32 {s(t2)}, {s(sCn)}, {NS3}\ns_cmp_gt_i32 {s(sLim)}, {s(t2)}\ns_cbranch_scc1 {Lr}")
    lim_update(s(t2))
    k.label(Lr)
    Lo1 = k.newlab('o1'); Lo2 = k.newlab('o2')
    k(f"s_mov_b32 {s(sEv)}, {OAP}\ns_cmp_lt_u32 {s(sCn)}, {OAP}\ns_cbranch_scc1 {L3n}\ns_cmp_eq_u32 {s(sCn)}, {OAP}\ns_cbranch_scc1 {Lo1}")
    k.label(Lo2)
    k(f"s_cmp_eq_u32 {s(sIsA)}, 0\ns_cbranch_scc1 {L3c}")
    oa_load = f"s_lshr_b32 {s(t0)}, {s(sMt3)}, 1\ns_lshl_b32 {s(t0)}, {s(t0)}, 8\ns_add_u32 {s(t0)}, {s(t0)}, {WS_FLAG + F_OA}\nbuffer_load_dwordx2 {v(vFlag,2)}, {v(vFo)}, {s(srdO,4)}, {s(t0)} offen sc1"
    def p_store():
        part_addr()
        k("s_nop 3")
        for i in range(32): k(f"v_cvt_pk_bf16_f32 {v(PART+i)}, {v(64+2*i)}, {v(65+2*i)}")
        for i in range(0, 64, 2): k(f"v_mov_b64 {v(64+i,2)}, 0")
        k("s_nop 1")
        for n in range(TR): body3([pstore(2 * n), pstore(2 * n + 1)])
    def p_pub(): pair_flag(t1); publish(t1, T + 12)
    def oa_pub():
        k(f"s_and_b32 {s(t1)}, s2, 7\ns_lshl_b32 {s(t1)}, {s(t1)}, 5\ns_lshr_b32 {s(t2)}, s2, 3\ns_add_u32 {s(t1)}, {s(t1)}, {s(t2)}\ns_lshl_b32 {s(t1)}, {s(t1)}, 3\ns_add_u32 {s(t1)}, {s(t1)}, {F_OA}")
        publish(t1, T + 12)
    EVP = [(NB - NS3 - 1, lambda: k(f"s_mov_b32 {s(sLim)}, 1000\n{oa_load}")),
           (NB - NS3, lambda: (k("s_waitcnt vmcnt(8)"), all_ready(oa_load), k(f"s_mov_b32 {s(sXo)}, {s(sXb)}"))),
           (NB - NS3 + 1, lambda: k(f"s_mov_b32 {s(dW)}, {s(sPw+2)}\ns_mov_b32 {s(dW+1)}, {s(sPw+3)}\ns_mov_b32 {s(dW+2)}, {2*MB}\ns_lshl_b32 {s(sWo)}, {s(sNt3)}, 8")),
           (NB, p_store), (NB + TR + 4, p_pub), (NP - NS3, lambda: k(f"s_mov_b32 {s(dX+2)}, 0")), (NP, None)]
    pf_load = lambda: (pair_flag(t1), k(f"s_add_u32 {s(sXs3)}, {s(t1)}, {WS_FLAG}"))
    pl = f"buffer_load_dwordx2 {v(vFlag,2)}, off, {s(srdO,4)}, {s(sXs3)} sc1"
    def c_take():
        all_ready(pl)
        part_addr()
        for b in range(8):
            k(f"buffer_load_dwordx4 {v(PART+4*b,4)}, {v(vL16)}, {s(srdO,4)}, {s(sPo)} offen offset:{(b&3)*1024} sc1")
            if b == 3: k(f"s_add_u32 {s(sPo)}, {s(sPo)}, 4096")
    EVC = [(NC - NS3 - 1, lambda: k(f"s_mov_b32 {s(sLim)}, 1000")),
           (NC - NS3, lambda: (k(f"s_mov_b32 {s(dX+2)}, 0"), pf_load(), k(pl))),
           (NC - NS3 + 1, lambda: k(f"s_mov_b32 {s(dW+2)}, 0")),
           (NC - 3, c_take), (NC, None)]
    for EV, lab in ((EVP, None), (EVC, L3c)):
        if lab: k.label(lab)
        k(f"s_mov_b32 {s(sEv)}, {EV[0][0]}\ns_cmp_lt_u32 {s(sCn)}, {EV[0][0]}\ns_cbranch_scc1 {L3n}")
        for i, (at, f_) in enumerate(EV):
            ln = k.newlab('n')
            if f_ is None:
                k(f"s_branch {L3x}")
                break
            k(f"s_cmp_lg_u32 {s(sCn)}, {at}\ns_cbranch_scc1 {ln}")
            f_()
            k(f"s_mov_b32 {s(sEv)}, {EV[i+1][0]}\ns_branch {L3}")
            k.label(ln)
    k.label(Lo1)
    oa_pub()
    k(f"s_branch {Lo2}")
    assert OAP < NB - NS3 - 1
    k.label(L3n)
    k(f"s_sub_u32 {s(t0)}, {s(sLim)}, {NS3}\ns_min_u32 {s(sEv)}, {s(sEv)}, {s(t0)}\ns_branch {L3}")
    k.label(L3x)
    ST.stamp(3); dbgmax(8, True)
    Lna = k.newlab('noadd')
    k(f"s_cmp_eq_u32 {s(sIsA)}, 1\ns_cbranch_scc1 {Lna}\ns_waitcnt vmcnt(0)")
    for i in range(32):
        k(f"v_lshlrev_b32 {v(160+2*i)}, 16, {v(PART+i)}\nv_and_b32 {v(161+2*i)}, 0xffff0000, {v(PART+i)}")
    for i in range(0, 64, 2): k(f"v_pk_add_f32 {v(64+i,2)}, {v(64+i,2)}, {v(160+i,2)}")
    k.label(Lna)
    for mb in range(4):
        for e in range(2):
            b = acc3(2 * e, mb)
            for i in range(4): k(f"v_cvt_pk_bf16_f32 {v(b+i)}, {v(b+2*i)}, {v(b+2*i+1)}")
        k("s_nop 1")
        for e in range(2):
            b = acc3(2 * e, mb)
            k(f"v_permlane16_swap_b32 {v(b)}, {v(b+2)}\nv_permlane16_swap_b32 {v(b+1)}, {v(b+3)}")
        for e in range(2):
            b = acc3(2 * e, mb)
            k(f"buffer_store_dwordx4 {v(b,4)}, {v(cSt)}, {s(dO,4)}, {s(sOb)} offen offset:{64*e} sc1")
        k(f"s_add_u32 {s(sOb)}, {s(sOb)}, {s(sOs)}")
    if stamps:
        k('s_waitcnt vmcnt(0)')
        ST.stamp(8); ST.stamp(9, real=True)
        ST.flush(srdO, sw, vT, vLane, base=0x100000)
    k.label(Lend)
    k("s_endpgm")
    for st_, rt, par, sm, evs in stubs:
        k.label(st_)
        slow_path(par, sm, evs)
        k(f"s_branch {rt}")
    k.lines += evool
    for st_, rt, target in calls:
        k.label(st_)
        k(f"s_call_b64 {s(sRa,2)}, {target}\ns_branch {rt}")

    for par, nset in Lrs:
        k.label(Lrs[(par, nset)])
        k("s_nop 15")
        for qt in AB[:nset]:
            Sq = Sreg(par, qt); So = Sreg(par ^ 1, qt); Pq = Preg(par, qt); N_ = Nreg(qt)
            k(f"v_max3_f32 {v(T)}, {v(Sq)}, {v(Sq+1)}, {v(Sq+2)}")
            for i in (3, 5): k(f"v_max3_f32 {v(T)}, {v(T)}, {v(Sq+i)}, {v(Sq+i+1)}")
            k(f"v_max3_f32 {v(T)}, {v(T)}, {v(Sq+7)}, 0")
            xlane([T], [T + 1], "v_max_f32")
            k(f"v_exp_f32 {v(T+1)}, -{v(T)}")
            for i in range(8): k(f"v_sub_f32 {v(Sq+i)}, {v(Sq+i)}, {v(T)}")
            for i in range(8): k(f"v_sub_f32 {v(So+i)}, {v(So+i)}, {v(T)}")
            for i in range(8): k(f"v_sub_f32 {v(N_+i)}, {v(N_+i)}, {v(T)}")
            k(f"v_mul_f32 {v(vL+qt)}, {v(vL+qt)}, {v(T+1)}")
            if KS: k(f"v_add_f32 {v(vD+qt)}, {v(vD+qt)}, {v(T)}")
            for i0 in range(0, 32, 8):
                for i in range(8): k(f"v_accvgpr_read_b32 {v(T+4+i)}, {a(Oreg(qt,0)+i0+i)}")
                for i in range(8): k(f"v_mul_f32 {v(T+4+i)}, {v(T+4+i)}, {v(T+1)}")
                for i in range(8): k(f"v_accvgpr_write_b32 {a(Oreg(qt,0)+i0+i)}, {v(T+4+i)}")
            for i in range(8): k(f"v_exp_f32 {v(T+4+i)}, {v(Sq+i)}")
            k("s_nop 0")
            for i in range(4): k(f"v_cvt_pk_bf16_f32 {v(Pq+i)}, {v(T+4+2*i)}, {v(T+5+2*i)}")
            k(f"s_nop 1\n{MF} {v(TS(qt),4)}, {v(vOne,4)}, {v(Pq,4)}, 0")
        k(f"s_nop 7\ns_setpc_b64 {s(sRa,2)}")
    if INL:
        starts = [x[0] for x in outl] + [Leps, Lepf, Lepl]
        pieces = {}; rest = []; cur = None
        for ln_ in ool:
            if ln_.endswith(":") and ln_[:-1] in starts: cur = ln_[:-1]; pieces[cur] = []
            (pieces[cur] if cur else rest).append(ln_)
        out_ = []
        for ln_ in k.lines:
            if ln_.startswith("@@"): out_ += pieces.pop(ln_[2:])
            elif ln_.strip().startswith(f"s_call_b64 {s(sRe,2)}, "):
                tg = ln_.split()[-1]; pc = pieces.pop(tg); le = tg + "_r"
                assert "s_setpc" in pc[-1]
                out_ += [x if "s_setpc" not in x else f"    s_branch {le}" for x in pc[:-1]] + [le + ":"]
            else: out_.append(ln_)
        assert not pieces
        k.lines = out_; ool = rest
    k.lines += ool + ool0
    code, desc = kernel_wrap(name, k.text(), 512, 102, 256)
    return code, desc, f"; @launch kernel={name} grid=(256,1,1) block=(256,1,1) lds={LDS_BYTES}"
```

```python
from asmlib import *
import math

XS = 32768
WBASE = 3 * XS
LDS_BYTES = 5 * XS
C_B = (128 ** -0.5) * math.log2(math.e)
C_A = (32 ** -0.5) * math.log2(math.e)
STG = 16384
SLOT = 32768
THR = float(2 ** 20)
CAP = 8
RESV = 4
U_PUB, U_POLL, U_CHK, U_MID, U_CP = 8, 20, 24, 16, 28
import os
ITEMS = {'7': [(12, 4), (9, 8), (11, 5), (10, 6), (15, 1), (14, 2), (13, 3), (16, 7)], '5': [(12, 4), (9, 8), (11, 6), (10, 7), (15, 1), (14, 2), (13, 3), (16, 5)],
         '6': [(12, 4), (9, 8), (11, 5), (10, 7), (15, 1), (14, 2), (13, 3), (16, 6)],
         '5b': [(9, 8), (11, 6), (12, 4), (10, 7), (15, 1), (14, 2), (13, 3), (16, 5)],
         '3': [(9, 8), (11, 6), (10, 7), (14, 2), (15, 1), (13, 4), (12, 5), (16, 3)],
         'x1': [(10, 6), (9, 8), (12, 3), (15, 1), (14, 2), (11, 7), (13, 4), (16, 5)],
         'x3': [(9, 8), (12, 4), (10, 6), (14, 2), (13, 3), (11, 7), (15, 1), (16, 5)],
         'x4': [(10, 6), (9, 8), (11, 5), (12, 4), (15, 1), (14, 2), (13, 3), (16, 7)],
         'x5': [(11, 5), (9, 8), (12, 3), (10, 7), (15, 1), (14, 2), (13, 4), (16, 6)],
         '1': [(9, 8), (11, 6), (10, 7), (12, 5), (15, 2), (14, 3), (13, 4), (16, 1)],
         '2': [(9, 8), (11, 6), (10, 7), (12, 5), (15, 1), (14, 3), (13, 4), (16, 2)],
         'p9': [(10, 7), (12, 5), (11, 6), (13, 4), (16, 1), (15, 2), (14, 3), (9, 8)],
         'y2': [(12, 5), (13, 4), (15, 1), (14, 3), (11, 6), (10, 7), (9, 8), (16, 2)],
         'y3': [(14, 2), (12, 5), (15, 1), (13, 4), (11, 6), (10, 7), (9, 8), (16, 3)],
         'y4': [(13, 3), (12, 5), (14, 2), (15, 1), (11, 6), (10, 7), (9, 8), (16, 4)],
         'z6': [(11, 5), (12, 4), (9, 8), (10, 7), (15, 1), (14, 2), (13, 3), (16, 6)],
         'z5': [(9, 8), (10, 7), (12, 4), (13, 3), (15, 1), (14, 2), (11, 6), (16, 5)],
         'z7': [(10, 7), (9, 8), (13, 3), (11, 6), (15, 1), (14, 2), (12, 5), (16, 4)],
         'z8': [(9, 7), (11, 6), (13, 3), (14, 2), (15, 1), (10, 8), (12, 5), (16, 4)],
         'k1': [(10, 6), (9, 7), (12, 4), (11, 5), (16, 1), (15, 2), (14, 3), (13, 8)],
         'k2': [(10, 6), (9, 7), (13, 4), (11, 5), (16, 1), (15, 2), (14, 3), (12, 8)],
         'k3': [(10, 6), (9, 7), (12, 4), (11, 5), (16, 1), (15, 2), (13, 3), (14, 8)],
         'k4': [(13, 3), (12, 4), (15, 1), (14, 2), (11, 7), (10, 8), (9, 6), (16, 5)],
         '4': [(9, 8), (11, 6), (10, 7), (13, 3), (15, 1), (14, 2), (12, 5), (16, 4)]}[os.environ.get('PITEM', 'z7')]
TABA = sum((x[0] - 1) << (4 * i) for i, x in enumerate(ITEMS)); TABB = sum((x[1] - 1) << (4 * i) for i, x in enumerate(ITEMS))
SPIN = 1 << 18

NS3 = 5; NC = int(os.environ.get('NC', '40')); NB = 64 - NC; NP = NB + 16; TR = 4
F_CTX, F_OA, F_PAIR = 0x2000, 0x3000, 0x4000

def build(name="mega_kernel", stamps=False, abl=(), last_kernel=None):
    last_kernel = name
    k = K('m')
    AL = int(os.environ.get('ALIGN', '3'))
    def align():
        if AL: k.lines.append(f'.p2align {AL}')
    sDb = 4; sWS = 6; srdO = 8; srdD = 12; sw = 16; sPend = 17; sStamp = 18; sRe = 20; sEx = 22
    vLane = 1; vSt = 2; vL16 = 2; vStamp = 3; vFlag = 4; vFa = 0; sTok = sDb
    ST = Stamper(k, stamps, vStamp, sStamp)
    TOUCH = 'notouch' not in abl
    L2D = int(os.environ.get('L2D', '0'))
    wsc = ' sc0 sc1' if 'sc01' in abl else ' sc1'
    sfx = ' sc1'; ksc = wsc; tsc = ' sc1' if 'tsc' in abl else ''
    gxs = wsc + (' nt' if 'ntx' in abl else ''); gws = wsc + (' nt' if 'ntw' in abl else '')
    if 'ntp' in abl: tsc += ' nt'
    S = Regs('s', 24, 90)
    sK = S.alloc('karg', 16, 4)
    srdX = S.alloc('srdX', 4, 4); srdW = S.alloc('srdW', 4, 4)
    sXoff = S.alloc('sXoff', 4); sWoff = S.alloc('sWoff', 4); sWstep = S.alloc('sWstep')
    swm = S.alloc('wm'); swn = S.alloc('wn'); sXSc = S.alloc('xsc'); sWx = S.alloc('wx')
    sXw = S.alloc('xw'); sWw = S.alloc('ww'); sXd = S.alloc('xdelta'); sXs = S.alloc('xrslot')
    sCnt = S.alloc('cnt'); sFirst = S.alloc('first'); sEvT = S.alloc('evt'); sIdx = S.alloc('idx'); sMt = S.alloc('mt'); sIsP = S.alloc('isp')
    LF = ['xlo','xhi','xsize','wlo','whi','wsize','ldx','ldw','xoff0','woff0','par']
    CF = ['nk','swp','scale','obase','Si','Sj','flag']
    P1 = {f: S.alloc('p1' + f) for f in LF + CF}
    sStp = S.alloc('stp')
    STP = 'stp' in abl
    top = Regs('s', 90, 102)
    sT = top.alloc('t', 4, 2); sHasNext = top.alloc('hasnext')
    CP = {f: top.alloc('c' + f) for f in CF}
    t0, t1, t2, t3 = sT, sT + 1, sT + 2, sT + 3
    def ptr(nm): return sK + KARG[nm] // 4
    V = Regs('v', 6, 32)
    vx = V.alloc('vx', 2); vw = V.alloc('vw', 8); vX = V.alloc('vX', 2); vW = V.alloc('vW', 4); vDum = V.alloc('dum')
    vT = V.alloc('t', 8, 4)
    assert vT == 24
    T = vT
    def acc(i, j):
        n = ((i >> 1) * 8 + j) * 2 + (i & 1)
        return ('v', 32 + 4 * n) if n < 56 else ('a', 224 + 4 * (n - 56))
    def fragX(kk, mb): return mb * 8 + kk * 4
    def fragW(kk, nb): return 64 + nb * 8 + kk * 4
    STASH = 128
    def Qreg(qt, e): return 128 + qt * 16 + e * 4

    Lend = k.newlab('end')
    k(f"s_cmp_ge_u32 s2, 256\ns_cbranch_scc1 {Lend}")
    if STP: ST.stamp(0); ST.stamp(1, real=True)
    k(f"s_load_dwordx16 {s(sK,16)}, s[0:1], 0\ns_load_dwordx4 {s(sDb,4)}, s[0:1], {KARG['dbg']}")
    if stamps and not STP:
        k("s_waitcnt lgkmcnt(0)")
        ST.stamp(0); ST.stamp(1, real=True)
    if STP: k(f"s_mov_b32 {s(sStp)}, 18")
    k(f"v_and_b32 {v(vLane)}, 63, v0\nv_lshrrev_b32 {v(vT)}, 6, v0\ns_nop 0\nv_readfirstlane_b32 {s(sw)}, {v(vT)}")
    k(f"s_lshr_b32 {s(sIdx)}, s2, 3")
    k(f"s_lshr_b32 {s(swm)}, {s(sw)}, 1\ns_and_b32 {s(swn)}, {s(sw)}, 1")
    k(f"s_mov_b32 {s(srdX+3)}, 0x20000\ns_mov_b32 {s(srdW+3)}, 0x20000")
    def t_all():
        x7 = sMt; wx = sCnt; sa = sFirst; sb = sEvT
        k(f"s_and_b32 {s(x7)}, s2, 7\ns_lshl_b32 {s(wx)}, {s(sIdx)}, 2\ns_add_u32 {s(wx)}, {s(wx)}, {s(sw)}")
        k(f"s_and_b32 {s(t0)}, {s(x7)}, 3\ns_lshl_b32 {s(t0)}, {s(t0)}, 11\ns_lshl_b32 {s(t1)}, {s(wx)}, 15\ns_add_u32 {s(t0)}, {s(t0)}, {s(t1)}")
        k(f"s_lshl_b32 {s(t1)}, {s(wx)}, 1\ns_and_b32 {s(t2)}, {s(x7)}, 1\ns_add_u32 {s(t1)}, {s(t1)}, {s(t2)}\ns_sub_u32 {s(t1)}, {s(t1)}, 128\ns_lshl_b32 {s(t1)}, {s(t1)}, 15")
        k(f"s_lshr_b32 {s(t3)}, {s(x7)}, 1\ns_lshl_b32 {s(sa)}, {s(t3)}, 11\ns_add_u32 {s(t1)}, {s(t1)}, {s(sa)}")
        k(f"s_cmp_lt_u32 {s(sIdx)}, 16\ns_cselect_b32 {s(t0)}, {s(t0)}, {s(t1)}")
        k(f"s_lshl_b32 {s(t2)}, {s(t2)}, 2\ns_add_u32 {s(t2)}, {s(t2)}, {s(t3)}\ns_lshl_b32 {s(t2)}, {s(t2)}, 4\ns_add_u32 {s(t2)}, {s(t2)}, {s(wx)}\ns_sub_u32 {s(t2)}, {s(t2)}, 96\ns_lshl_b32 {s(t2)}, {s(t2)}, 15")
        k(f"s_cmp_lt_u32 {s(sIdx)}, 24\ns_cselect_b32 {s(t0)}, {s(t0)}, {s(t2)}\ns_cselect_b32 {s(sa)}, 4, 2\ns_cselect_b32 {s(sb)}, 13, 11")
        k(f"s_lshl_b32 {s(t2)}, {s(x7)}, 4\ns_add_u32 {s(t2)}, {s(t2)}, {s(wx)}\ns_sub_u32 {s(t2)}, {s(t2)}, 112\ns_lshl_b32 {s(t2)}, {s(t2)}, 13")
        k(f"s_cmp_lt_u32 {s(sIdx)}, 28\ns_cselect_b32 {s(t0)}, {s(t0)}, {s(t2)}\ns_cselect_b32 {s(sa)}, {s(sa)}, 3\ns_cselect_b32 {s(sb)}, {s(sb)}, 10")
        k(f"v_lshrrev_b32 {v(T)}, {s(sa)}, {v(vLane)}\nv_lshlrev_b32 {v(T+1)}, {s(sa)}, {v(T)}\nv_sub_u32 {v(T+1)}, {v(vLane)}, {v(T+1)}\nv_lshlrev_b32 {v(T)}, {s(sb)}, {v(T)}\nv_lshl_add_u32 {v(vFlag)}, {v(T+1)}, 7, {v(T)}\ns_mov_b32 {s(sXd)}, {s(t0)}")
        k(f"s_mov_b32 {s(srdD+2)}, {4*1048576}\ns_mov_b32 {s(srdD+3)}, 0x20000\ns_cselect_b32 {s(srdD+2)}, {s(srdD+2)}, {2*1048576}")
    def t_go():
        x7 = t3
        k(f"s_and_b32 {s(x7)}, s2, 7\ns_cmp_lt_u32 {s(sIdx)}, 28\ns_cselect_b32 {s(srdD)}, {s(ptr('B_x'))}, {s(ptr('B_c_kv'))}\ns_cselect_b32 {s(srdD+1)}, {s(ptr('B_x')+1)}, {s(ptr('B_c_kv')+1)}")
        k(f"s_cmp_lt_u32 {s(sIdx)}, 24\ns_cselect_b32 {s(srdD)}, {s(ptr('B_w_q'))}, {s(srdD)}\ns_cselect_b32 {s(srdD+1)}, {s(ptr('B_w_q')+1)}, {s(srdD+1)}")
        k(f"s_cmp_lt_u32 {s(x7)}, 4\ns_cselect_b32 {s(t1)}, {s(ptr('B_w_uk'))}, {s(ptr('B_w_uv'))}\ns_cselect_b32 {s(t2)}, {s(ptr('B_w_uk')+1)}, {s(ptr('B_w_uv')+1)}")
        k(f"s_cmp_lt_u32 {s(sIdx)}, 16\ns_cselect_b32 {s(srdD)}, {s(t1)}, {s(srdD)}\ns_cselect_b32 {s(srdD+1)}, {s(t2)}, {s(srdD+1)}")
        k(f"buffer_load_dword {v(vDum)}, {v(vFlag)}, {s(srdD,4)}, {s(sXd)} offen")
    if 'nocpf' not in abl:
        Lc = k.newlab('ncp')
        k(f"s_cmp_lt_u32 {s(sIdx)}, 28\ns_cbranch_scc1 {Lc}\ns_sub_u32 {s(t1)}, {s(sIdx)}, 28\ns_lshl_b32 {s(t1)}, {s(t1)}, 2\ns_add_u32 {s(t1)}, {s(t1)}, {s(sw)}")
        code_prefetch(k, srdO, name, last_kernel + "_end", t1, vLane, T, vDum, t0)
        k.label(Lc)
    if 'ta' in abl: t_all()
    k(f"s_lshl_b32 {s(sXw)}, {s(sw)}, 13\ns_add_u32 {s(sWw)}, {s(sXw)}, {WBASE}")
    def late_setup():
        k.c("fragment read addresses")
        k(f"v_and_b32 {v(T)}, 15, {v(vLane)}\nv_lshrrev_b32 {v(T+1)}, 4, {v(vLane)}")
        k(f"v_bfe_u32 {v(T+2)}, {v(vLane)}, 1, 3\nv_xor_b32 {v(T+2)}, {v(T+2)}, {v(T+1)}")
        k(f"s_lshl_b32 {s(t0)}, {s(swm)}, 14\nv_lshlrev_b32 {v(T+3)}, 7, {v(T)}\nv_add_u32 {v(T+3)}, {s(t0)}, {v(T+3)}")
        for kk in range(2):
            k(f"v_xor_b32 {v(T+4)}, {4*kk}, {v(T+2)}\nv_lshl_add_u32 {v(vx+kk)}, {v(T+4)}, 4, {v(T+3)}")
        k(f"v_bfe_u32 {v(T+2)}, {v(vLane)}, 2, 2")
        k(f"v_lshl_add_u32 {v(T+3)}, {v(T+1)}, 3, {v(T+2)}\nv_lshlrev_b32 {v(T+3)}, 9, {v(T+3)}")
        k(f"v_and_b32 {v(T+4)}, 3, {v(vLane)}\nv_lshlrev_b32 {v(T+4)}, 3, {v(T+4)}\nv_add_u32 {v(T+3)}, {v(T+3)}, {v(T+4)}")
        k(f"s_lshl_b32 {s(t0)}, {s(swn)}, 8\ns_add_u32 {s(t0)}, {s(t0)}, {WBASE}\nv_add_u32 {v(T+3)}, {s(t0)}, {v(T+3)}")
        k(f"v_bfe_u32 {v(T+2)}, {v(vLane)}, 2, 3")
        for nb in range(8):
            k(f"v_xor_b32 {v(T+4)}, {nb}, {v(T+2)}\nv_lshl_add_u32 {v(vw+nb)}, {v(T+4)}, 5, {v(T+3)}")
        k(f"v_lshlrev_b32 {v(vSt)}, 4, {v(vLane)}")
        k(f"s_mov_b32 {s(sXs)}, 0")
        k(f"s_mov_b32 {s(sXSc)}, {XS}\ns_mov_b32 {s(sWx)}, {WBASE ^ (WBASE + XS)}")
    def q_params(p, ptrs=True):
        k(f"s_mov_b32 {s(p['wsize'])}, 8388608\ns_mov_b32 {s(p['ldw'])}, 8192\ns_mov_b32 {s(p['par'])}, 0")
        k(f"s_mov_b32 {s(p['xsize'])}, 4194304\ns_mov_b32 {s(p['ldx'])}, 2048\ns_mov_b32 {s(p['nk'])}, 16")
        k(f"s_lshl_b32 {s(p['woff0'])}, {s(t0)}, 9\ns_lshl_b32 {s(p['xoff0'])}, {s(sMt)}, 19\ns_lshl_b32 {s(p['flag'])}, {s(t0)}, 4\ns_add_u32 {s(p['flag'])}, {s(p['flag'])}, {s(sMt)}\ns_lshl_b32 {s(p['flag'])}, {s(p['flag'])}, 3")
        k(f"s_mov_b32 {s(p['swp'])}, 0\ns_mov_b32 {s(p['scale'])}, {f32bits(C_B)}")
        k(f"s_lshl_b32 {s(t1)}, {s(t0)}, 1\ns_add_u32 {s(t1)}, {s(t1)}, {s(swn)}\ns_lshl_b32 {s(t1)}, {s(t1)}, 19")
        k(f"s_lshl_b32 {s(t2)}, {s(sMt)}, 1\ns_add_u32 {s(t2)}, {s(t2)}, {s(swm)}\ns_lshl_b32 {s(t2)}, {s(t2)}, 15")
        k(f"s_add_u32 {s(p['obase'])}, {s(t1)}, {s(t2)}\ns_add_u32 {s(p['obase'])}, {s(p['obase'])}, {WS_QB}")
        k(f"s_mov_b32 {s(p['Si'])}, 1024\ns_mov_b32 {s(p['Sj'])}, 4096")
        if ptrs: k(f"s_mov_b32 {s(p['xlo'])}, {s(ptr('B_x'))}\ns_mov_b32 {s(p['xhi'])}, {s(ptr('B_x')+1)}\ns_mov_b32 {s(p['wlo'])}, {s(ptr('B_w_q'))}\ns_mov_b32 {s(p['whi'])}, {s(ptr('B_w_q')+1)}")
    def a_params(p):
        k(f"s_mov_b32 {s(p['wsize'])}, 6291456\ns_mov_b32 {s(p['ldw'])}, 6144\ns_mov_b32 {s(p['par'])}, 1")
        k(f"s_mov_b32 {s(p['xsize'])}, 4194304\ns_mov_b32 {s(p['ldx'])}, 2048\ns_mov_b32 {s(p['nk'])}, 16")
        k(f"s_lshl_b32 {s(p['woff0'])}, {s(t0)}, 9\ns_lshl_b32 {s(p['xoff0'])}, {s(sMt)}, 19")
        k(f"s_and_b32 {s(t2)}, {s(t0)}, 3\ns_lshr_b32 {s(t1)}, {s(t0)}, 2")
        k(f"s_lshl_b32 {s(p['flag'])}, {s(t2)}, 2\ns_add_u32 {s(p['flag'])}, {s(p['flag'])}, {s(t1)}\ns_lshl_b32 {s(p['flag'])}, {s(p['flag'])}, 3\ns_add_u32 {s(p['flag'])}, {s(p['flag'])}, {s(sMt)}\ns_lshl_b32 {s(p['flag'])}, {s(p['flag'])}, 3\ns_add_u32 {s(p['flag'])}, {s(p['flag'])}, {48*128}")
        k(f"s_cmp_eq_u32 {s(t1)}, 0\ns_cselect_b32 {s(p['scale'])}, {f32bits(C_A)}, 0")
        k(f"s_lshl_b32 {s(t3)}, {s(t1)}, 22\ns_add_u32 {s(p['obase'])}, {s(t3)}, {WS_QA}")
        k(f"s_lshl_b32 {s(t2)}, {s(t2)}, 1\ns_add_u32 {s(t2)}, {s(t2)}, {s(swn)}\ns_lshl_b32 {s(t2)}, {s(t2)}, 19\ns_add_u32 {s(p['obase'])}, {s(p['obase'])}, {s(t2)}")
        k(f"s_lshl_b32 {s(t2)}, {s(swm)}, 3\ns_add_u32 {s(t2)}, {s(t2)}, {s(sMt)}")
        k(f"s_cmp_eq_u32 {s(t1)}, 2\ns_cselect_b32 {s(p['swp'])}, 1, 0\ns_cselect_b32 {s(t3)}, 12, 13")
        k(f"s_mov_b32 {s(t1)}, 131072\ns_cselect_b32 {s(p['Si'])}, 1024, {s(t1)}\ns_mov_b32 {s(t1)}, 1024\ns_cselect_b32 {s(p['Sj'])}, 65536, {s(t1)}")
        k(f"s_lshl_b32 {s(t2)}, {s(t2)}, {s(t3)}\ns_add_u32 {s(p['obase'])}, {s(p['obase'])}, {s(t2)}")
        k(f"s_mov_b32 {s(p['xlo'])}, {s(ptr('A_x'))}\ns_mov_b32 {s(p['xhi'])}, {s(ptr('A_x')+1)}\ns_mov_b32 {s(p['wlo'])}, {s(ptr('A_wqkv'))}\ns_mov_b32 {s(p['whi'])}, {s(ptr('A_wqkv')+1)}")
    def kv_params(p, ptrs=True):
        k(f"s_cmp_lt_u32 {s(t0)}, 16\ns_cselect_b32 {s(p['swp'])}, 0, 1")
        k(f"s_mov_b32 {s(t1)}, {WS_VB}\ns_cselect_b32 {s(p['obase'])}, {WS_KB}, {s(t1)}")
        k(f"s_mov_b32 {s(t1)}, 8192\ns_cselect_b32 {s(p['Si'])}, 1024, {s(t1)}")
        k(f"s_mov_b32 {s(t1)}, 1024\ns_cselect_b32 {s(p['Sj'])}, 4096, {s(t1)}")
        if ptrs: k(f"s_cselect_b32 {s(p['wlo'])}, {s(ptr('B_w_uk'))}, {s(ptr('B_w_uv'))}\ns_cselect_b32 {s(p['whi'])}, {s(ptr('B_w_uk')+1)}, {s(ptr('B_w_uv')+1)}")
        if ptrs: k(f"s_mov_b32 {s(p['xlo'])}, {s(ptr('B_c_kv'))}\ns_mov_b32 {s(p['xhi'])}, {s(ptr('B_c_kv')+1)}")
        k(f"s_mov_b32 {s(p['xsize'])}, 2097152\ns_mov_b32 {s(p['ldx'])}, 1024\ns_mov_b32 {s(p['nk'])}, 8\ns_mov_b32 {s(p['par'])}, 0")
        k(f"s_mov_b32 {s(p['wsize'])}, 4194304\ns_mov_b32 {s(p['ldw'])}, 8192\ns_mov_b32 {s(p['scale'])}, 0")
        k(f"s_and_b32 {s(t0)}, {s(t0)}, 15\ns_lshl_b32 {s(p['woff0'])}, {s(t0)}, 9\ns_lshl_b32 {s(p['xoff0'])}, {s(sMt)}, 18")
        k(f"s_lshl_b32 {s(t1)}, {s(p['swp'])}, 2\ns_add_u32 {s(t1)}, {s(t1)}, {s(sMt)}\ns_cmp_ge_u32 {s(sMt)}, 4\ns_cselect_b32 {s(t2)}, {512 - 4}, 8\ns_add_u32 {s(t1)}, {s(t1)}, {s(t2)}")
        k(f"s_lshl_b32 {s(p['flag'])}, {s(t0)}, 4\ns_add_u32 {s(p['flag'])}, {s(p['flag'])}, {s(t1)}\ns_lshl_b32 {s(p['flag'])}, {s(p['flag'])}, 3")
        k(f"s_lshl_b32 {s(t1)}, {s(t0)}, 1\ns_add_u32 {s(t1)}, {s(t1)}, {s(swn)}\ns_lshl_b32 {s(t1)}, {s(t1)}, 19")
        k(f"s_lshl_b32 {s(t2)}, {s(sMt)}, 1\ns_add_u32 {s(t2)}, {s(t2)}, {s(swm)}\ns_lshl_b32 {s(t2)}, {s(t2)}, 15")
        k(f"s_add_u32 {s(p['obase'])}, {s(p['obase'])}, {s(t1)}\ns_add_u32 {s(p['obase'])}, {s(p['obase'])}, {s(t2)}")
    def tile_long(mul):
        k(f"s_and_b32 {s(sMt)}, {s(sIdx)}, 3\ns_and_b32 {s(t0)}, s2, 1\ns_lshl_b32 {s(t0)}, {s(t0)}, 2\ns_add_u32 {s(sMt)}, {s(sMt)}, {s(t0)}")
        k(f"s_bfe_u32 {s(t0)}, s2, 0x20001\ns_mul_i32 {s(t0)}, {s(t0)}, {mul}\ns_bfe_u32 {s(t1)}, {s(sIdx)}, 0x20002\ns_add_u32 {s(t0)}, {s(t0)}, {s(t1)}")
    def tile_kv(late):
        k(f"s_bfe_u32 {s(sMt)}, {s(sIdx)}, 0x20002\ns_add_u32 {s(sMt)}, {s(sMt)}, {4*late}\ns_and_b32 {s(t0)}, s2, 7\ns_lshl_b32 {s(t0)}, {s(t0)}, 2\ns_and_b32 {s(t1)}, {s(sIdx)}, 3\ns_add_u32 {s(t0)}, {s(t0)}, {s(t1)}")

    def act_load(p, part=(0, 1), which="xw"):
        if 0 in part and 'x' in which:
            k(f"s_mov_b32 {s(srdX+2)}, {s(p['xsize'])}")
            k(f"s_lshl_b32 {s(t0)}, {s(p['ldx'])}, 4\ns_lshl_b32 {s(t0)}, {s(t0)}, {s(p['par'])}")
            k(f"s_mov_b32 {s(sXoff)}, {s(p['xoff0'])}")
            for a_ in (1, 2, 3):
                k(f"s_mul_i32 {s(t1)}, {s(t0)}, {a_}\ns_add_u32 {s(sXoff+a_)}, {s(t1)}, {s(p['xoff0'])}")
                if a_ & 1: k(f"s_sub_u32 {s(sXoff+a_)}, {s(sXoff+a_)}, 2048")
            k(f"s_lshl_b32 {s(t0)}, {s(swn)}, 7\ns_add_u32 {s(t0)}, {s(t0)}, {s(swm)}\ns_lshl_b32 {s(t1)}, {s(sw)}, 6\ns_cmp_eq_u32 {s(p['par'])}, 1\ns_cselect_b32 {s(t0)}, {s(t0)}, {s(t1)}")
            k(f"v_lshrrev_b32 {v(T)}, 3, {v(vLane)}\nv_lshlrev_b32 {v(T)}, {s(p['par'])}, {v(T)}")
            k(f"v_add_u32 {v(T)}, {s(t0)}, {v(T)}\nv_mul_lo_u32 {v(T)}, {v(T)}, {s(p['ldx'])}")
            k(f"v_lshrrev_b32 {v(T+1)}, 4, {v(vLane)}\nv_and_b32 {v(T+2)}, 7, {v(vLane)}\nv_xor_b32 {v(T+1)}, {v(T+1)}, {v(T+2)}")
            k(f"v_lshl_add_u32 {v(vX)}, {v(T+1)}, 4, {v(T)}")
            k(f"v_xor_b32 {v(T+1)}, 4, {v(T+1)}\nv_lshl_add_u32 {v(vX+1)}, {v(T+1)}, 4, {v(T)}")
            k(f"s_lshl_b32 {s(t0)}, {s(p['ldx'])}, 3\ns_lshl_b32 {s(t0)}, {s(t0)}, {s(p['par'])}\ns_sub_u32 {s(t0)}, {s(t0)}, 1024\nv_add_u32 {v(vX+1)}, {s(t0)}, {v(vX+1)}")
        if 0 in part and 'w' in which:
            k(f"s_mov_b32 {s(srdW+2)}, {s(p['wsize'])}")
            k(f"s_mov_b32 {s(sWoff)}, {s(p['woff0'])}\ns_lshl_b32 {s(t0)}, {s(p['ldw'])}, 2")
            for a_ in (1, 2, 3):
                k(f"s_mul_i32 {s(t1)}, {s(t0)}, {a_}\ns_add_u32 {s(sWoff+a_)}, {s(t1)}, {s(p['woff0'])}")
                if a_ & 1: k(f"s_sub_u32 {s(sWoff+a_)}, {s(sWoff+a_)}, 2048")
            k(f"s_lshl_b32 {s(sWstep)}, {s(p['ldw'])}, 6")
            k(f"v_lshrrev_b32 {v(T)}, 5, {v(vLane)}\ns_lshl_b32 {s(t0)}, {s(sw)}, 4\nv_add_u32 {v(T+1)}, {s(t0)}, {v(T)}\nv_mul_lo_u32 {v(T+1)}, {v(T+1)}, {s(p['ldw'])}")
            k(f"v_lshlrev_b32 {v(T)}, 1, {v(T)}\nv_and_b32 {v(T+2)}, 31, {v(vLane)}\nv_xor_b32 {v(T)}, {v(T)}, {v(T+2)}")
            k(f"s_lshl_b32 {s(t0)}, {s(p['ldw'])}, 1\ns_sub_u32 {s(t0)}, {s(t0)}, 1024\nv_add_u32 {v(T+3)}, {s(t0)}, {v(T+1)}")
            for u in range(2):
                for e in range(2):
                    k(f"v_xor_b32 {v(T+2)}, {4*e + 8*u}, {v(T)}\nv_lshl_add_u32 {v(vW+e+2*u)}, {v(T+2)}, 4, {v(T+3) if e else v(T+1)}")
        if 1 in part:
            if 'x' in which: k(f"s_mov_b32 {s(srdX)}, {s(p['xlo'])}\ns_mov_b32 {s(srdX+1)}, {s(p['xhi'])}")
            if 'w' in which: k(f"s_mov_b32 {s(srdW)}, {s(p['wlo'])}\ns_mov_b32 {s(srdW+1)}, {s(p['whi'])}")
    def act_comp(p):
        for f in CP: k(f"s_mov_b32 {s(CP[f])}, {s(p[f])}")

    def dmaX(j):
        out = []
        if j % 4 == 0: out.append(f"s_add_u32 m0, {s(sXw)}, {4096 * (j // 4)}\ns_nop 0")
        out.append(f"buffer_load_dwordx4 {v(vX + (j & 1))}, {s(srdX,4)}, {s(sXoff + (j >> 1))} offen offset:{(j & 3) * 1024}{gxs} lds")
        if j & 1: out.append(f"s_add_u32 {s(sXoff + (j >> 1))}, {s(sXoff + (j >> 1))}, 128")
        return out
    def dmaW(j):
        out = []
        if j % 4 == 0: out.append(f"s_add_u32 m0, {s(sWw)}, {4096 * (j // 4)}\ns_nop 0")
        out.append(f"buffer_load_dwordx4 {v(vW + (j & 1) + 2 * (j >> 2))}, {s(srdW,4)}, {s(sWoff + (j >> 1))} offen offset:{(j & 3) * 1024}{gws} lds")
        if j & 1: out.append(f"s_add_u32 {s(sWoff + (j >> 1))}, {s(sWoff + (j >> 1))}, {s(sWstep)}")
        return out
    def rotXw():
        return [f"s_add_u32 {s(sXw)}, {s(sXw)}, {XS}\ns_cmp_ge_u32 {s(sXw)}, {3*XS}", f"s_cselect_b32 {s(t0)}, {3*XS}, 0\ns_sub_u32 {s(sXw)}, {s(sXw)}, {s(t0)}"]
    def rotWw():
        return [f"s_xor_b32 {s(sWw)}, {s(sWw)}, {WBASE ^ (WBASE + XS)}"]
    def rdX(kk, mb): return (('x', mb), f"ds_read_b128 {a(fragX(kk, mb), 4)}, {v(vx + kk)} offset:{mb * 2048}")
    def rdW(kk, nb, t): return (('w', nb), f"ds_read_b64_tr_b16 {a(fragW(kk, nb) + 2 * t, 2)}, {v(vw + nb)} offset:{(32 * kk + 4 * t) * 512}")
    def rdWpair(p_): return [rdW(kk, nb, t) for nb in (2 * p_, 2 * p_ + 1) for kk in range(2) for t in range(2)]

    MB = 1 << 20
    def pf_setup():
        k(f"s_sub_u32 {s(t3)}, s2, 224\ns_lshl_b32 {s(t3)}, {s(t3)}, 2\ns_add_u32 {s(t3)}, {s(t3)}, {s(sw)}")
        k(f"v_lshlrev_b32 {v(T)}, 7, {v(vLane)}")
        k(f"v_lshrrev_b32 {v(T+1)}, 3, {v(vLane)}\nv_lshlrev_b32 {v(T+1)}, 11, {v(T+1)}\nv_and_b32 {v(T+2)}, 7, {v(vLane)}\nv_lshl_add_u32 {v(T+1)}, {v(T+2)}, 7, {v(T+1)}")
        k(f"s_lshl_b32 {s(t2)}, {s(t3)}, 13\ns_lshl_b32 {s(t3)}, {s(t3)}, 14\ns_add_u32 {s(t3)}, {s(t3)}, 1024")
    def region(p_, size, off, nbytes, rows=False):
        k(f"s_mov_b32 {s(srdD)}, {s(p_)}\ns_mov_b32 {s(srdD+1)}, {s(p_+1)}\ns_mov_b32 {s(srdD+2)}, {size}")
        step = 2 * MB if rows else MB
        for o in range(off, off + nbytes, step):
            k(f"s_add_u32 {s(t0)}, {s(t3 if rows else t2)}, {o}\nbuffer_load_dword {v(vDum)}, {v(T+1 if rows else T)}, {s(srdD,4)}, {s(t0)} offen{tsc}")
    def publish(sflag, vp=vFlag):
        L = k.newlab('np')
        k(f"s_cmp_lg_u32 {s(sw)}, 0\ns_cbranch_scc1 {L}")
        k(f"v_mov_b32 {v(vp)}, {s(sTok)}\nv_mov_b32 {v(vp+1)}, {s(sTok+1)}\ns_add_u32 {s(t0)}, {s(sflag)}, {WS_FLAG}\ns_mov_b64 exec, 1")
        k(f"buffer_store_dwordx2 {v(vp,2)}, off, {s(srdO,4)}, {s(t0)} sc1\ns_mov_b64 exec, -1")
        k.label(L)
    def dbgmax(word, grp=False):
        if 'dbg' not in abl: return
        L = k.newlab('dm')
        k(f"s_cmp_lg_u32 {s(sw)}, 0\ns_cbranch_scc1 {L}\ns_memrealtime {s(sStamp,2)}\ns_waitcnt lgkmcnt(0)\ns_sub_u32 {s(sStamp)}, {s(sStamp)}, {s(sTok)}\nv_mov_b32 {v(vStamp)}, {s(sStamp)}")
        if grp: k(f"s_lshr_b32 {s(sStamp)}, s2, 5\ns_cmp_eq_u32 {s(sStamp)}, 7\ns_cselect_b32 {s(sStamp)}, 4, 0")
        else: k(f"s_mov_b32 {s(sStamp)}, 0")
        k(f"s_mov_b64 exec, 1\nbuffer_atomic_umax {v(vStamp)}, off, {s(srdD,4)}, {s(sStamp)} offset:{word*4}\ns_mov_b64 exec, -1")
        k.label(L)
    def head_ids():
        k(f"s_and_b32 {s(t2)}, s2, 7\ns_lshl_b32 {s(t2)}, {s(t2)}, 2\ns_bfe_u32 {s(t3)}, s2, 0x20003\ns_add_u32 {s(t2)}, {s(t2)}, {s(t3)}\ns_lshr_b32 {s(t3)}, s2, 5\ns_lshl_b32 {s(t3)}, {s(t3)}, 2\ns_or_b32 {s(t3)}, {s(t3)}, 0x40000")
    pKV = sK + 8; pQ = sK + 9; pFl = sK + 13
    def flag_lanes(what):
        if what == 'kv':
            k(f"v_and_b32 {v(vFa)}, 3, {v(vLane)}\nv_min_u32 {v(vFa)}, 2, {v(vFa)}\nv_and_b32 {v(T)}, 4, {v(vLane)}\nv_add3_u32 {v(vFa)}, {v(vFa)}, {v(T)}, 8")
        else:
            k(f"s_bfe_u32 {s(t1)}, {TABB}, {s(t3)}\ns_lshr_b32 {s(t1)}, {s(t1)}, 1\nv_mov_b32 {v(vFa)}, {s(t1)}")
            if what == 'all': k(f"v_and_b32 {v(T)}, 3, {v(vLane)}\nv_min_u32 {v(T)}, 2, {v(T)}\nv_and_b32 {v(T+1)}, 4, {v(vLane)}\nv_add3_u32 {v(T)}, {v(T)}, {v(T+1)}, 8\nv_cmp_gt_u32 vcc, 8, {v(vLane)}\ns_nop 1\nv_cndmask_b32 {v(vFa)}, {v(vFa)}, {v(T)}, vcc")
            k(f"s_bfe_u32 {s(t1)}, {TABA}, {s(t3)}\ns_lshr_b32 {s(t1)}, {s(t1)}, 1\nv_writelane_b32 {v(vFa)}, {s(t1)}, 8")
        k(f"v_lshlrev_b32 {v(vFa)}, 3, {v(vFa)}")
    def precompute():
        head_ids()
        k(f"s_lshr_b32 {s(pFl)}, {s(t2)}, 1\ns_lshl_b32 {s(pFl)}, {s(pFl)}, 7\ns_add_u32 {s(pFl)}, {s(pFl)}, {WS_FLAG}\ns_lshl_b32 {s(t2)}, {s(t2)}, 19")
        k(f"s_lshl_b32 {s(t1)}, {s(swn)}, 13\ns_add_u32 {s(t0)}, {s(t2)}, {s(t1)}\ns_cmp_eq_u32 {s(swm)}, 0\ns_mov_b32 {s(t1)}, {WS_VB - STG}\ns_cselect_b32 {s(t1)}, {WS_KB}, {s(t1)}\ns_add_u32 {s(pKV)}, {s(t0)}, {s(t1)}")
        for st in range(2):
            k(f"s_bfe_u32 {s(t0)}, {TABA if st == 0 else TABB}, {s(t3)}\ns_lshl_b32 {s(t0)}, {s(t0)}, 3\ns_lshl_b32 {s(t1)}, {s(sw)}, 1\ns_add_u32 {s(t0)}, {s(t0)}, {s(t1)}\ns_lshl_b32 {s(t0)}, {s(t0)}, 12\ns_add_u32 {s(t0)}, {s(t0)}, {s(t2)}")
            k(f"s_add_u32 {s(pQ+2*st)}, {s(t0)}, {WS_QB}\ns_add_u32 {s(pQ+2*st+1)}, {s(t0)}, {WS_QB + 4096}")
        flag_lanes('all')
    def early_load(what=None):
        if what: head_ids(); flag_lanes(what)
        k(f"buffer_load_dwordx2 {v(vFlag,2)}, {v(vFa)}, {s(srdO,4)}, {s(pFl)} offen sc1")
    def early_check(what):
        Ls = k.newlab('spin'); Lok = k.newlab('ok')
        k(f"s_mov_b32 s3, {SPIN}")
        k.label(Ls)
        k(f"v_cmp_ne_u64 {s(sEx,2)}, {s(sTok,2)}, {v(vFlag,2)}\ns_nop 3\ns_cmp_eq_u64 {s(sEx,2)}, 0\ns_cbranch_scc1 {Lok}\ns_sub_u32 s3, s3, 1\ns_cbranch_scc1 {Lok}\ns_sleep 16")
        early_load()
        k(f"s_waitcnt vmcnt(0)\ns_branch {Ls}")
        k.label(Lok)
    def kv_cursor(offs, srd, ks):
        k(f"s_add_u32 {s(offs)}, {s(pKV)}, {ks * STG}\ns_mov_b32 {s(offs+1)}, {s(offs)}\ns_add_u32 {s(offs+2)}, {s(offs)}, 4096\ns_mov_b32 {s(offs+3)}, {s(offs+2)}")
        if ks == 0: k(f"s_cmp_eq_u32 {s(swm)}, 0\ns_cselect_b32 {s(srd+2)}, {WS_SIZE}, 0")
        if ks in (1, 3): k(f"s_mov_b32 {s(srd+2)}, {WS_SIZE}")
        if ks in (0, 3): k(f"s_mov_b32 {s(srd)}, {s(sWS)}\ns_mov_b32 {s(srd+1)}, {s(sWS+1)}")
    tok_load = f"buffer_load_dwordx2 {v(vFlag,2)}, off, {s(srdD,4)}, 0 sc1"
    def tok_get():
        Ls = k.newlab('spin'); Lok = k.newlab('ok')
        k(f"s_mov_b32 s3, {SPIN}")
        k.label(Ls)
        k(f"v_readfirstlane_b32 {s(sTok)}, {v(vFlag)}\nv_readfirstlane_b32 {s(sTok+1)}, {v(vFlag+1)}\ns_nop 3\ns_cmp_lg_u32 {s(sTok)}, 0\ns_cbranch_scc1 {Lok}\ns_sub_u32 s3, s3, 1\ns_cbranch_scc1 {Lok}\ns_sleep 32")
        k(f"{tok_load}\ns_waitcnt vmcnt(0)\ns_branch {Ls}")
        k.label(Lok)
    def q_loads(qts, sel=None):
        for qt in qts:
            for e in range(4):
                if sel is None or qt * 4 + e in sel: k(f"buffer_load_dwordx4 {a(Qreg(qt, e), 4)}, {v(vL16)}, {s(srdO,4)}, {s(pQ+qt)} offen offset:{e*1024} sc1")

    La = k.newlab('typea'); Lb = k.newlab('go1'); Lnp = k.newlab('nopf'); Lpf = k.newlab('pf')
    k(f"s_cmp_ge_u32 {s(sIdx)}, 16\ns_cbranch_scc1 {La}")
    tile_long(4); q_params(P1, False)
    k(f"s_branch {Lb}")
    k.label(La)
    tile_kv(0); kv_params(P1, False)
    k.label(Lb)
    act_load(P1, (0,))
    k(f"s_cmp_eq_u32 {s(P1['swp'])}, 0\ns_waitcnt lgkmcnt(0)\ns_cselect_b32 {s(srdW)}, {s(ptr('B_w_uk'))}, {s(ptr('B_w_uv'))}\ns_cselect_b32 {s(srdW+1)}, {s(ptr('B_w_uk')+1)}, {s(ptr('B_w_uv')+1)}")
    k(f"s_cmp_lt_u32 {s(sIdx)}, 16\ns_cselect_b32 {s(srdW)}, {s(ptr('B_w_q'))}, {s(srdW)}\ns_cselect_b32 {s(srdW+1)}, {s(ptr('B_w_q')+1)}, {s(srdW+1)}")
    k(f"s_cselect_b32 {s(srdX)}, {s(ptr('B_x'))}, {s(ptr('B_c_kv'))}\ns_cselect_b32 {s(srdX+1)}, {s(ptr('B_x')+1)}, {s(ptr('B_c_kv')+1)}")
    TAP = int(os.environ.get('TAP', '0'))
    if 'ta' in abl and TAP == 0: t_go()
    if 'ct' in abl:
        Lw_ = k.newlab('ctw'); Le_ = k.newlab('cte')
        k(f"s_bfe_u32 {s(t0)}, {s(sIdx)}, 0x20002\ns_and_b32 {s(t1)}, {s(sIdx)}, 3\ns_cmp_lt_u32 {s(sIdx)}, 16\ns_cselect_b32 {s(t2)}, {s(t0)}, {s(t1)}\ns_cselect_b32 {s(t3)}, {s(t1)}, {s(t0)}")
        k(f"s_cmp_eq_u32 {s(swn)}, 1\ns_cbranch_scc1 {Lw_}")
        k(f"s_lshl_b32 {s(t2)}, {s(t2)}, 6\nv_add_u32 {v(T)}, {s(t2)}, {v(vLane)}\nv_mul_lo_u32 {v(T)}, {v(T)}, {s(P1['ldx'])}\ns_lshl_b32 {s(t0)}, {s(swm)}, 7\ns_add_u32 {s(t0)}, {s(t0)}, {s(P1['xoff0'])}")
        k(f"buffer_load_dword {v(vDum)}, {v(T)}, {s(srdX,4)}, {s(t0)} offen\ns_branch {Le_}")
        k.label(Lw_)
        k(f"s_lshl_b32 {s(t0)}, {s(swm)}, 2\ns_add_u32 {s(t3)}, {s(t3)}, {s(t0)}\ns_lshl_b32 {s(t3)}, {s(t3)}, 17\ns_add_u32 {s(t3)}, {s(t3)}, {s(P1['woff0'])}")
        k(f"v_lshrrev_b32 {v(T)}, 2, {v(vLane)}\nv_lshlrev_b32 {v(T)}, 13, {v(T)}\nv_and_b32 {v(T+1)}, 3, {v(vLane)}\nv_lshl_add_u32 {v(T)}, {v(T+1)}, 7, {v(T)}")
        k(f"buffer_load_dword {v(vDum)}, {v(T)}, {s(srdW,4)}, {s(t3)} offen")
        k.label(Le_)
        if 'ctb' in abl: k("s_barrier")
    k(f"s_cmp_ge_u32 {s(sIdx)}, 28\ns_cselect_b32 {s(sIsP)}, 1, 0\ns_cbranch_scc1 {Lpf}")
    k.label(Lnp)
    save0 = k.lines; k.lines = []
    k.label(Lpf)
    if 'ta' in abl and TAP: t_go()
    k(f"s_mov_b32 {s(srdD+3)}, 0x20000")
    if 'tlb' in abl:
        G = int(os.environ.get('TLBG', '16'))
        k(f"s_sub_u32 {s(t3)}, {s(sIdx)}, 28\ns_lshl_b32 {s(t3)}, {s(t3)}, 2\ns_add_u32 {s(t3)}, {s(t3)}, {s(sw)}\ns_lshl_b32 {s(t3)}, {s(t3)}, {6 + G}\nv_lshlrev_b32 {v(T)}, {G}, {v(vLane)}")
        k(f"s_load_dwordx4 {s(srdO,4)}, s[0:1], {KARG['B_w_o']}\ns_waitcnt lgkmcnt(0)")
        for (lo, size) in ((sWS, 0x7100000), (srdO + 2, 8 * MB), (srdO, 8 * MB), (ptr('A_wo'), 2 * MB)):
            k(f"s_mov_b32 {s(srdD)}, {s(lo)}\ns_mov_b32 {s(srdD+1)}, {s(lo+1)}\ns_mov_b32 {s(srdD+2)}, {size}")
            for o in range(0, size, 1024 << G):
                k(f"s_add_u32 {s(t0)}, {s(t3)}, {o}\nv_add_u32 {v(T+1)}, {s(t0)}, {v(T)}\nbuffer_load_dword {v(vDum)}, {v(T+1)}, {s(srdD,4)}, 0 offen")
    if 'nopf' not in abl:
        pf_setup()
        PO = os.environ.get('PORD', '0')
        if PO == '0':
            region(ptr('A_wqkv'), 6 * MB, 0, 2 * MB); region(ptr('A_x'), 4 * MB, 0, 4 * MB)
            region(ptr('B_w_q'), 8 * MB, 4 * MB, 2 * MB); region(ptr('B_x'), 4 * MB, 0, 4 * MB, True)
            region(ptr('A_wqkv'), 6 * MB, 2 * MB, 1 * MB); region(ptr('B_w_q'), 8 * MB, 6 * MB, 2 * MB); region(ptr('A_wqkv'), 6 * MB, 3 * MB, 3 * MB)
            region(ptr('B_c_kv'), 2 * MB, 1 * MB, 1 * MB)
        else:
            k(f"v_lshrrev_b32 {v(T+1)}, 2, {v(vLane)}\nv_lshlrev_b32 {v(T+1)}, 11, {v(T+1)}\nv_and_b32 {v(T+2)}, 3, {v(vLane)}\nv_lshl_add_u32 {v(T+1)}, {v(T+2)}, 7, {v(T+1)}\ns_lshl_b32 {s(t3)}, {s(t2)}, 2")
            def xq(p_, q): region(p_, 4 * MB, q * 512, 1, True)
            wq, wa, bx, ax = ptr('B_w_q'), ptr('A_wqkv'), ptr('B_x'), ptr('A_x')
            if PO == '1':
                region(wq, 8 * MB, 1 * MB, 2 * MB); xq(bx, 1); region(wq, 8 * MB, 3 * MB, 2 * MB); xq(bx, 2); region(wq, 8 * MB, 5 * MB, 1 * MB)
                region(wa, 6 * MB, 0, 1 * MB); xq(ax, 0); region(wq, 8 * MB, 6 * MB, 1 * MB); xq(bx, 3); region(wa, 6 * MB, 1 * MB, 1 * MB); xq(ax, 1); region(wq, 8 * MB, 7 * MB, 1 * MB)
                region(wa, 6 * MB, 2 * MB, 2 * MB); xq(ax, 2); region(wa, 6 * MB, 4 * MB, 1 * MB); xq(ax, 3); region(wa, 6 * MB, 5 * MB, 1 * MB); region(ptr('B_c_kv'), 2 * MB, 1 * MB, 1 * MB)
            if PO == '2':
                uk, uv = ptr('B_w_uk'), ptr('B_w_uv')
                region(wq, 8 * MB, 1 * MB, 1 * MB); region(uk, 4 * MB, 2 * MB, 1 * MB); region(uv, 4 * MB, 2 * MB, 1 * MB); region(wq, 8 * MB, 2 * MB, 1 * MB); xq(bx, 1)
                region(uk, 4 * MB, 3 * MB, 1 * MB); region(uv, 4 * MB, 3 * MB, 1 * MB); region(wq, 8 * MB, 3 * MB, 2 * MB); xq(bx, 2)
                region(wa, 6 * MB, 0, 1 * MB); xq(ax, 0); region(wq, 8 * MB, 5 * MB, 2 * MB); xq(bx, 3); region(wa, 6 * MB, 1 * MB, 1 * MB); xq(ax, 1); region(wq, 8 * MB, 7 * MB, 1 * MB)
                region(wa, 6 * MB, 2 * MB, 2 * MB); xq(ax, 2); region(wa, 6 * MB, 4 * MB, 1 * MB); xq(ax, 3); region(wa, 6 * MB, 5 * MB, 1 * MB); region(ptr('B_c_kv'), 2 * MB, 1 * MB, 1 * MB)
            if PO == '6':
                region(wq, 8 * MB, 1 * MB, 2 * MB); xq(bx, 1); region(wq, 8 * MB, 3 * MB, 2 * MB); xq(bx, 2); region(wq, 8 * MB, 5 * MB, 1 * MB)
                region(wa, 6 * MB, 0, 1 * MB); xq(ax, 0); region(wq, 8 * MB, 6 * MB, 1 * MB); xq(bx, 3); region(wa, 6 * MB, 1 * MB, 1 * MB); xq(ax, 1); region(wq, 8 * MB, 7 * MB, 1 * MB)
                region(wa, 6 * MB, 2 * MB, 1 * MB); region(ptr('B_c_kv'), 2 * MB, 1 * MB, 1 * MB)
            if PO == '7':
                region(wq, 8 * MB, 1 * MB, 2 * MB); xq(bx, 1); region(wq, 8 * MB, 3 * MB, 2 * MB); xq(bx, 2); region(wq, 8 * MB, 5 * MB, 2 * MB); xq(bx, 3); region(wq, 8 * MB, 7 * MB, 1 * MB)
                region(wa, 6 * MB, 2 * MB, 2 * MB); xq(ax, 2); region(wa, 6 * MB, 4 * MB, 1 * MB); xq(ax, 3); region(wa, 6 * MB, 5 * MB, 1 * MB); region(ptr('B_c_kv'), 2 * MB, 1 * MB, 1 * MB)
            uk, uv, ck = ptr('B_w_uk'), ptr('B_w_uv'), ptr('B_c_kv')
            def half2(pa, sa, oa, pb, sb, ob):
                k(f"s_cmp_lt_u32 {s(t2)}, {MB//2}\ns_cselect_b32 {s(srdD)}, {s(pa)}, {s(pb)}\ns_cselect_b32 {s(srdD+1)}, {s(pa+1)}, {s(pb+1)}\ns_mov_b32 {s(t0)}, {sb}\ns_cselect_b32 {s(srdD+2)}, {sa}, {s(t0)}")
                k(f"s_mov_b32 {s(t0)}, {(ob - MB//2) & 0xffffffff}\ns_cselect_b32 {s(t0)}, {oa}, {s(t0)}\ns_add_u32 {s(t0)}, {s(t0)}, {s(t2)}\nbuffer_load_dword {v(vDum)}, {v(T)}, {s(srdD,4)}, {s(t0)} offen{tsc}")
            H = MB // 2
            def rest8():
                region(wq, 8 * MB, 4 * MB, 1 * MB); xq(bx, 2); region(wa, 6 * MB, 0, 1 * MB); xq(ax, 0); region(wq, 8 * MB, 5 * MB, 1 * MB); region(wa, 6 * MB, 1 * MB, 1 * MB); xq(ax, 1)
                region(wq, 8 * MB, 6 * MB, 1 * MB); xq(bx, 3); region(wa, 6 * MB, 2 * MB, 1 * MB); region(wq, 8 * MB, 7 * MB, 1 * MB); xq(ax, 2)
                region(wa, 6 * MB, 3 * MB, 1 * MB); region(ck, 2 * MB, 1 * MB, 1 * MB); region(wa, 6 * MB, 4 * MB, 1 * MB); xq(ax, 3); region(wa, 6 * MB, 5 * MB, 1 * MB)
            if PO == '8':
                half2(wq, 8*MB, 2*H, uk, 4*MB, 2*H); half2(uv, 4*MB, 2*H, wq, 8*MB, 3*H); xq(bx, 0); half2(uk, 4*MB, 3*H, uv, 4*MB, 3*H); region(ck, 2 * MB, 0, 1 * MB)
                half2(wq, 8*MB, 4*H, uk, 4*MB, 4*H); xq(bx, 1); half2(uv, 4*MB, 4*H, wq, 8*MB, 5*H); half2(uk, 4*MB, 5*H, uv, 4*MB, 5*H)
                half2(wq, 8*MB, 6*H, uk, 4*MB, 6*H); half2(uv, 4*MB, 6*H, wq, 8*MB, 7*H); half2(uk, 4*MB, 7*H, uv, 4*MB, 7*H)
                rest8()
            if PO == '9':
                half2(wq, 8*MB, 3*H, uk, 4*MB, 3*H); half2(uv, 4*MB, 3*H, wq, 8*MB, 4*H); xq(bx, 1); half2(uk, 4*MB, 4*H, uv, 4*MB, 4*H)
                half2(wq, 8*MB, 5*H, uk, 4*MB, 5*H); half2(uv, 4*MB, 5*H, wq, 8*MB, 6*H); half2(uk, 4*MB, 6*H, uv, 4*MB, 6*H)
                half2(wq, 8*MB, 7*H, uk, 4*MB, 7*H); half2(uv, 4*MB, 7*H, wa, 6*MB, 0)
                rest8()
            if PO == 'a':
                half2(wq, 8*MB, 4*H, uk, 4*MB, 4*H); xq(bx, 1); half2(uv, 4*MB, 4*H, wq, 8*MB, 5*H); half2(uk, 4*MB, 5*H, uv, 4*MB, 5*H)
                half2(wq, 8*MB, 6*H, uk, 4*MB, 6*H); half2(uv, 4*MB, 6*H, wq, 8*MB, 7*H); half2(uk, 4*MB, 7*H, uv, 4*MB, 7*H)
                rest8()
            if PO == 'b':
                xq(bx, 1); half2(uk, 4*MB, 5*H, uv, 4*MB, 5*H); half2(wq, 8*MB, 5*H, wq, 8*MB, 6*H)
                half2(uk, 4*MB, 6*H, uv, 4*MB, 6*H); half2(uk, 4*MB, 7*H, uv, 4*MB, 7*H); half2(wq, 8*MB, 7*H, wa, 6*MB, 0)
                rest8()
            if PO == '3':
                region(wq, 8 * MB, 2 * MB, 1 * MB); xq(bx, 1); region(wq, 8 * MB, 3 * MB, 2 * MB); xq(bx, 2)
                region(wa, 6 * MB, 0, 1 * MB); xq(ax, 0); region(wq, 8 * MB, 5 * MB, 2 * MB); xq(bx, 3); region(wa, 6 * MB, 1 * MB, 1 * MB); xq(ax, 1); region(wq, 8 * MB, 7 * MB, 1 * MB)
                region(wa, 6 * MB, 2 * MB, 2 * MB); xq(ax, 2); region(wa, 6 * MB, 4 * MB, 1 * MB); xq(ax, 3); region(wa, 6 * MB, 5 * MB, 1 * MB); region(ptr('B_c_kv'), 2 * MB, 1 * MB, 1 * MB)
    if 'pwo1' in abl:
        k(f"s_load_dwordx2 {s(sEx,2)}, s[0:1], {KARG['B_w_o']}\ns_waitcnt lgkmcnt(0)")
        region(sEx, 8 * MB, 0, 8 * MB); region(ptr('A_wo'), 2 * MB, 0, 2 * MB)
    k(f"s_add_u32 {s(sXw)}, {s(sXw)}, {XS}\ns_branch {Lnp}")
    ool0 = k.lines; k.lines = save0
    if STP: ST.stamp(44)
    for st in range(2):
        if STP and st == 1: ST.stamp(46)
        for j in range(8):
            for t in dmaX(j): k(t)
        for t in rotXw(): k(t)
        if 'ta' in abl and TAP == 1 and st == 0:
            lt_ = k.newlab('tg'); k(f"s_cmp_eq_u32 {s(sIsP)}, 1\ns_cbranch_scc1 {lt_}"); t_go(); k.label(lt_)
        for j in range(8):
            for t in dmaW(j): k(t)
        for t in rotWw(): k(t)
        if 'ta' in abl and TAP == 2 and st == 0:
            lt_ = k.newlab('tg'); k(f"s_cmp_eq_u32 {s(sIsP)}, 1\ns_cbranch_scc1 {lt_}"); t_go(); k.label(lt_)
        if st == 0:
            if STP: ST.stamp(45)
            act_comp(P1)
            late_setup()
            k(f"s_mov_b32 {s(srdO)}, {s(sWS)}\ns_mov_b32 {s(srdO+1)}, {s(sWS+1)}\ns_mov_b32 {s(srdO+2)}, {WS_SIZE}\ns_mov_b32 {s(srdO+3)}, 0x20000")
            La2 = k.newlab('typea'); Lb2 = k.newlab('go2')
            k(f"s_cmp_ge_u32 {s(sIdx)}, 16\ns_cbranch_scc1 {La2}")
            tile_kv(1); kv_params(P1)
            k(f"s_branch {Lb2}")
            k.label(La2)
            tile_long(3); a_params(P1)
            k.label(Lb2)
            precompute()
            k(f"s_xor_b32 {s(sHasNext)}, {s(sIsP)}, 1\ns_add_u32 {s(sEvT)}, {s(sIsP)}, 3\ns_mov_b32 {s(sPend)}, -1")
            k(f"s_mul_i32 {s(sXs)}, {s(sIsP)}, {XS}\nv_add_u32 {v(vx)}, {s(sXs)}, {v(vx)}\nv_add_u32 {v(vx+1)}, {s(sXs)}, {v(vx+1)}")
            k(f"s_mov_b32 {s(srdD)}, {s(sDb)}\ns_mov_b32 {s(srdD+1)}, {s(sDb+1)}\ns_mov_b32 {s(srdD+2)}, 256\ns_mov_b32 {s(srdD+3)}, 0x20000")
            Lt = k.newlab('tok')
            k(f"s_lshl_b32 {s(t0)}, s2, 2\ns_add_u32 {s(t0)}, {s(t0)}, {s(sw)}\ns_cmp_lg_u32 {s(t0)}, 0\ns_cbranch_scc1 {Lt}")
            k(f"s_memrealtime {s(t2,2)}\ns_waitcnt lgkmcnt(0)\ns_or_b32 {s(t2)}, {s(t2)}, 1\nv_mov_b32 {v(vFlag)}, {s(t2)}\nv_mov_b32 {v(vFlag+1)}, {s(t3)}\ns_mov_b64 exec, 1")
            k(f"buffer_store_dwordx2 {v(vFlag,2)}, off, {s(srdD,4)}, 0 sc1\ns_mov_b64 exec, -1")
            k.label(Lt)
            Lt2 = k.newlab('tok')
            k(f"s_cmp_eq_u32 {s(sIsP)}, 0\ns_cbranch_scc1 {Lt2}\n{tok_load}\ns_waitcnt vmcnt(0)")
            tok_get()
            k.label(Lt2)
    ST.stamp(16 if STP else 2)
    k("s_waitcnt vmcnt(16)\ns_barrier")
    ST.stamp(17 if STP else 3)
    tailq = []
    w2 = rdWpair(2)
    for mb in range(8): tailq += [w2[mb], rdX(0, mb), rdX(1, mb)]
    for tag, ins in rdWpair(0) + rdWpair(1) + tailq: k(ins)
    for j in range(8):
        for x in dmaX(j): k(x)
    for x in rotXw(): k(x)
    k(f"s_mov_b32 {s(sFirst)}, 1")
    gS = sK; gSa = sK + 4; gSb = sK + 5; gSi = sK + 6; gSj = sK + 7
    k(f"s_mov_b32 {s(gS)}, {s(sWS)}\ns_mov_b32 {s(gS+1)}, {s(sWS+1)}\ns_mov_b32 {s(gS+2)}, 0\ns_mov_b32 {s(gS+3)}, 0x20000")
    k(f"s_mov_b32 {s(gSa)}, 0\ns_mov_b32 {s(gSb)}, 0\ns_mov_b32 {s(gSi)}, 0\ns_mov_b32 {s(gSj)}, 0")
    WB = 'wb' in abl
    GA = 31; SERP = 'noserp' not in abl
    WG = [34 + 4 * i for i in range(8)]
    XG = [68, 76, 84, 92, 100, 108, 116, 124]
    SG = [10, 16, 22, 28, 72, 80, 88, 94]
    NTR = 3
    def item(lst):
        pre = lst[0].split("\n")[0] if lst[0].startswith("s_add_u32 m0") else None
        ins = [x for x in lst if x.startswith("buffer_")][0]
        post = lst[-1] if not lst[-1].startswith("buffer_") else None
        return pre, ins, post
    def body(swp, kind):
        tr = LgkmTracker([tag for tag, _ in tailq])
        rd = {}; first = {}; head = {}; vfx = {}
        items = [(item(dmaX(j)), g) for j, g in enumerate(XG)] + [(item(dmaW(j)), g) for j, g in enumerate(WG)]
        if kind < NTR:
            for i, g in enumerate(SG):
                post = f"s_add_u32 {s(gSa)}, {s(gSa)}, {s(gSj)}" if i < 7 else f"s_add_u32 {s(gSb)}, {s(gSb)}, {s(gSi)}\ns_mov_b32 {s(gSa)}, {s(gSb)}"
                items.append(((None, f"buffer_store_dwordx4 {a(STASH + 4*(kind*8+i), 4)}, {v(vSt)}, {s(gS,4)}, {s(gSa)} offen{sfx}", post), g))
        for (pre, ins, post), g in items:
            assert g not in head, g
            head[g] = ins; first[g] = None
        first[GA] = None
        busy = set(XG) | set(WG) | set(SG)
        def put_first(g, x):
            while g in first: g += 1
            assert g < 126, x
            first[g] = x; return g
        def put_reads(g, its, stride):
            for x in its:
                while g in busy or g in rd: g += 1
                rd[g] = x; g += stride
        for (pre, ins, post), g in items:
            if pre: assert g - 1 not in first; first[g - 1] = pre
        for (pre, ins, post), g in items:
            if post: put_first(g + 1, post)
        put_reads(0, rdWpair(3), 1)
        put_reads(GA + 1, rdWpair(0), 3)
        put_reads(64, rdWpair(1), 3)
        for mb in range(8):
            put_reads(96 + 4 * mb + 1, [w2[mb]], 1)
            if mb < 7: put_reads(96 + 4 * mb + 3, [rdX(0, mb), rdX(1, mb)], 1)
        assert [rd[g][1] for g in sorted(rd) if g >= 96] == [x[1] for x in tailq[:22]], "tail order"
        gg = 12
        for nb in range(0, 8, 2):
            while gg in busy: gg += 1
            vfx[gg] = [f"v_xor_b32 {v(vw+nb)}, {s(sWx)}, {v(vw+nb)}", f"v_xor_b32 {v(vw+nb+1)}, {s(sWx)}, {v(vw+nb+1)}"]; gg += 1
        g = put_first(36, f"s_add_u32 {s(sXs)}, {s(sXs)}, {XS}")
        g = put_first(g + 1, f"s_cmp_ge_u32 {s(sXs)}, {3*XS}\ns_cselect_b32 {s(sXd)}, {-2*XS & 0xffffffff}, {s(sXSc)}\ns_cselect_b32 {s(sXs)}, 0, {s(sXs)}")
        assert g < 60 and 60 not in rd and 60 not in busy
        vfx[60] = [f"v_add_u32 {v(vx)}, {s(sXd)}, {v(vx)}", f"v_add_u32 {v(vx+1)}, {s(sXd)}, {v(vx+1)}"]
        put_first(WG[4] + 1, rotWw()[0])
        g = put_first(XG[4] + 1, f"s_add_u32 {s(sXw)}, {s(sXw)}, {XS}")
        g = put_first(g + 1, f"s_cmp_ge_u32 {s(sXw)}, {3*XS}\ns_cselect_b32 {s(t0)}, {3*XS}, 0")
        g = put_first(g + 1, f"s_sub_u32 {s(sXw)}, {s(sXw)}, {s(t0)}")
        put_first(112, f"s_sub_u32 {s(sCnt)}, {s(sCnt)}, 1")
        if kind == NTR: first[126] = f"s_cmp_gt_u32 {s(sCnt)}, {s(sEvT)}"
        vm = 8 + (4 if kind < NTR else 0) + (4 if 1 <= kind < NTR else 0)
        i = 0
        for rp in range(4):
            for mb in range(8):
                for n_, nb in enumerate((2 * rp, 2 * rp + 1) if (mb % 2 == 0 or not SERP) else (2 * rp + 1, 2 * rp)):
                    for k_, kk in enumerate((0, 1) if (n_ == 0 or not SERP) else (1, 0)):
                        w = tr.need({('x', mb), ('w', nb)})
                        if i == GA:
                            tr.q = []
                            if STP: k(f"s_memtime {s(sStamp,2)}")
                            if kind == 0 and 'nolen' not in abl:
                                lw = k.newlab('w')
                                k(f"s_waitcnt vmcnt({vm+32}) lgkmcnt(0)\ns_cmp_eq_u32 {s(sFirst)}, 2\ns_cbranch_scc1 {lw}\ns_waitcnt vmcnt({vm})"); k.label(lw)
                            else: k(f"s_waitcnt vmcnt({vm}) lgkmcnt(0)")
                            if WB and kind == 0:
                                lw = k.newlab('w')
                                k(f"s_cmp_lg_u32 {s(sFirst)}, 2\ns_cbranch_scc1 {lw}\ns_waitcnt vmcnt(4)"); k.label(lw)
                        elif w: k(w)
                        A_, B_ = a(fragW(kk, nb), 4), a(fragX(kk, mb), 4)
                        d = r(acc(nb, mb), 0, 4)
                        if swp:
                            A_, B_ = B_, A_
                            d = r(acc(mb, nb), 0, 4)
                        c = "0" if (kind == 0 and k_ == 0) else d
                        k(f"v_mfma_f32_16x16x32_bf16 {d}, {A_}, {B_}, {c}")
                        if i == GA: k("s_barrier")
                        if i == GA and STP: k(f"v_cmp_eq_u32 vcc, {s(sStp)}, {v(vLane)}\nv_mov_b32 {v(vT+7)}, {s(sStamp)}\ns_add_u32 {s(sStp)}, {s(sStp)}, 1\nv_cndmask_b32 {v(vStamp)}, {v(vStamp)}, {v(vT+7)}, vcc")
                        if first.get(i): k(first[i])
                        if i in rd: k(rd[i][1]); tr.issue(rd[i][0])
                        if i in head: k(head[i])
                        for x in vfx.get(i, []): k(x)
                        if i == 127:
                            for tag, ins in tailq[22:]: k(ins)
                        i += 1

    outl = []; hooks = []
    INL = 'noinl' not in abl
    Ltile = k.newlab('tile'); Lepi = k.newlab('epi')
    k.label(Ltile)
    Lsw = k.newlab('swp')
    k(f"s_mov_b32 {s(sCnt)}, {s(CP['nk'])}")
    k(f"s_cmp_eq_u32 {s(CP['swp'])}, 1\ns_cbranch_scc1 {Lsw}")
    for swp in (0, 1):
        if swp: k.label(Lsw)
        for kind in range(NTR):
            body(swp, kind)
            if kind in ((0, 2) if WB else (1,)):
                Lh = k.newlab('hook'); Lhr = k.newlab('hookr')
                k(f"s_cmp_eq_u32 {s(sFirst)}, 2\ns_cbranch_scc1 {Lh}"); k.label(Lhr)
                hooks.append((Lh, Lhr, kind))
        Lloop = k.newlab('loop'); Lsw2 = k.newlab('dosw')
        align()
        k.label(Lloop)
        outl.append((Lsw2, Lloop))
        body(swp, NTR)
        if INL:
            k(f"s_cbranch_scc1 {Lloop}\ns_cmp_eq_u32 {s(sCnt)}, 0\ns_cbranch_scc1 {Lepi}")
            k.lines.append(f"@@{Lsw2}")
        else:
            k(f"s_cbranch_scc1 {Lloop}\ns_cmp_lg_u32 {s(sCnt)}, 0\ns_cbranch_scc1 {Lsw2}")
            if not swp: k(f"s_branch {Lepi}")
    k.label(Lepi)
    Lepf = k.newlab('epf'); Leps = k.newlab('eps'); Llast = k.newlab('last'); Lp = k.newlab('ptype'); Linit = k.newlab('init'); Lkv = k.newlab('kvl')
    k(f"s_cmp_eq_u32 {s(sHasNext)}, 0\ns_cbranch_scc1 {Llast}")
    ST.stamp(4)
    tok_get()
    Lq1 = k.newlab('q1')
    if 'qtr' not in abl:
        Lq0 = k.newlab('q0')
        k(f"s_cmp_ge_u32 {s(sIdx)}, 16\ns_cbranch_scc1 {Lq0}")
        k(f"s_call_b64 {s(sRe,2)}, {Lepf}\ns_mov_b32 {s(sPend)}, {s(CP['flag'])}\ns_mov_b32 {s(sFirst)}, 2")
        ST.stamp(5)
        k(f"s_branch {Lq1}")
        k.label(Lq0)
    k(f"s_call_b64 {s(sRe,2)}, {Leps}")
    ST.stamp(5)
    k(f"s_mov_b32 {s(sPend)}, {s(CP['flag'])}\ns_add_u32 {s(gSa)}, {s(CP['obase'])}, {s(CP['Si'])}\ns_mov_b32 {s(gSb)}, {s(gSa)}\ns_mov_b32 {s(gSi)}, {s(CP['Si'])}\ns_mov_b32 {s(gSj)}, {s(CP['Sj'])}\ns_mov_b32 {s(gS+2)}, {WS_SIZE}")
    k.label(Lq1)
    dbgmax(10)
    act_comp(P1)
    k(f"s_sub_u32 {s(sEvT)}, {s(CP['nk'])}, 5\ns_max_u32 {s(sEvT)}, {s(sEvT)}, 4\ns_mov_b32 {s(sHasNext)}, 0\ns_branch {Ltile}")
    k.label(Llast)
    ST.stamp(6)
    k.label(Lkv)
    dbgmax(12, True)
    k("s_waitcnt lgkmcnt(0)")
    QL = 'qlate' in abl; QS = 'noqs' not in abl
    if QL:
        k("s_waitcnt vmcnt(16)")
        early_check('q'); q_loads((0, 1, 2, 3))
    save = k.lines; k.lines = []
    for Lh, Lhr, kind in hooks:
        k.label(Lh)
        if kind == 0:
            k(f"s_cmp_lg_u32 {s(sw)}, 0\ns_cbranch_scc1 {Lhr}\nbuffer_wbl2 sc1\ns_branch {Lhr}")
            continue
        publish(sPend)
        k(f"s_mov_b32 {s(sPend)}, -1\ns_branch {Lhr}")
    def either(fn, fp):
        la = k.newlab('ea'); lb = k.newlab('eb')
        k(f"s_cmp_eq_u32 {s(sIsP)}, 1\ns_cbranch_scc1 {la}")
        fn()
        k.label(lb)
        alt.append((la, lb, fp))
    alt = []
    for Lsw2, Lns in outl:
        k.label(Lsw2)
        l_last = k.newlab('x'); l4 = k.newlab('x'); l3 = k.newlab('x'); l2 = k.newlab('x'); l1 = k.newlab('x'); l_p = k.newlab('x'); l_w = k.newlab('x')
        k(f"s_cmp_eq_u32 {s(sHasNext)}, 0\ns_cbranch_scc1 {l_last}")
        k(f"s_cmp_lg_u32 {s(sCnt)}, 3\ns_cbranch_scc1 {l_w}")
        act_load(P1, which="x")
        k(f"{tok_load}\ns_branch {Lns}")
        k.label(l_w)
        act_load(P1, which="w")
        k(f"s_mov_b32 {s(sEvT)}, 0\ns_branch {Lns}")
        k.label(l_last)
        k(f"s_cmp_le_u32 {s(sCnt)}, 4\ns_cbranch_scc1 {l4}")
        if 'lp' in abl: ST.stamp(10)
        publish(sPend)
        k(f"s_mov_b32 {s(sPend)}, -1\ns_mov_b32 {s(sEvT)}, 4\ns_branch {Lns}")
        k.label(l4)
        k(f"s_cmp_lg_u32 {s(sCnt)}, 4\ns_cbranch_scc1 {l3}")
        if 'lp' in abl: ST.stamp(11)
        either(lambda: early_load(), lambda: early_load('kv'))
        if 'cpf2' in abl:
            k(f"s_sub_u32 {s(t1)}, {s(sIdx)}, 16\ns_cmp_ge_u32 {s(t1)}, 3\ns_cbranch_scc1 {Lns}\ns_lshl_b32 {s(t1)}, {s(t1)}, 2\ns_add_u32 {s(t1)}, {s(t1)}, {s(sw)}")
            code_prefetch(k, sEx, name, name + "_end", t1, vLane, T, vDum, t0)
        k(f"s_branch {Lns}")
        k.label(l3)
        k(f"s_waitcnt vmcnt(16)\ns_cmp_lg_u32 {s(sCnt)}, 3\ns_cbranch_scc1 {l2}")
        either(lambda: (early_check('all'), q_loads((0, 1, 2, 3), range(0, 6))), lambda: early_check('kv'))
        kv_cursor(sXoff, srdX, 0)
        for i in range(2): k(f"v_mov_b32 {v(vX+i)}, {v(vSt)}")
        k(f"s_branch {Lns}")
        k.label(l2)
        k(f"s_cmp_lg_u32 {s(sCnt)}, 2\ns_cbranch_scc1 {l1}")
        either(lambda: q_loads((0, 1, 2, 3), range(6, 11)), lambda: early_load('q'))
        kv_cursor(sXoff, srdX, 1); kv_cursor(sWoff, srdW, 3)
        for i in range(4): k(f"v_mov_b32 {v(vW+i)}, {v(vSt)}")
        k(f"s_branch {Lns}")
        k.label(l1)
        either(lambda: q_loads((0, 1, 2, 3), range(11, 16)), lambda: (early_check('q'), q_loads((0, 1, 2, 3))))
        kv_cursor(sXoff, srdX, 2); kv_cursor(sWoff, srdW, 4)
        k(f"s_branch {Lns}")
        for la, lb, fp in alt:
            k.label(la); fp(); k(f"s_branch {lb}")
        alt.clear()
    k.label(Leps)
    Lns3 = k.newlab('ns3')
    k("s_nop 3")
    for scaled in (0,):
        k(f"s_mov_b32 {s(t0)}, {s(CP['obase'])}")
        for p_ in range(32):
            sp = acc(2 * (p_ >> 3), p_ & 7)
            if sp[0] == 'a':
                for i in range(8): k(f"v_accvgpr_read_b32 {v(vT+i)}, {a(sp[1]+i)}")
                b = vT
            else:
                b = sp[1]
            if scaled:
                for i in range(0, 8, 2): k(f"v_pk_mul_f32 {v(b+i,2)}, {v(b+i,2)}, {s(t2,2)}")
            for i in range(4): k(f"v_cvt_pk_bf16_f32 {v(b+i)}, {v(b+2*i)}, {v(b+2*i+1)}")
            if p_ < 8: k(f"buffer_store_dwordx4 {v(b,4)}, {v(vSt)}, {s(srdO,4)}, {s(t0)} offen{sfx}\ns_add_u32 {s(t0)}, {s(t0)}, {s(CP['Sj'])}")
            else:
                for i in range(4): k(f"v_accvgpr_write_b32 {a(STASH + 4*(p_-8) + i)}, {v(b+i)}")
        k(f"s_setpc_b64 {s(sRe,2)}")
    k.label(Lepf)
    Lnoscale = k.newlab('noscale')
    k("s_nop 7")
    for scaled in (1,):
        k(f"s_mov_b32 {s(t1)}, {s(CP['obase'])}\ns_mov_b32 {s(t2)}, {s(CP['scale'])}\ns_mov_b32 {s(t3)}, {s(CP['scale'])}")
        for e in range(4):
            k(f"s_mov_b32 {s(t0)}, {s(t1)}")
            for j in range(8):
                sp = acc(2 * e, j)
                if sp[0] == 'a':
                    for i in range(8): k(f"v_accvgpr_read_b32 {v(vT+i)}, {a(sp[1]+i)}")
                    b = vT
                else:
                    b = sp[1]
                if scaled:
                    for i in range(0, 8, 2): k(f"v_pk_mul_f32 {v(b+i,2)}, {v(b+i,2)}, {s(t2,2)}")
                for i in range(4):
                    k(f"v_cvt_pk_bf16_f32 {v(b+i)}, {v(b+2*i)}, {v(b+2*i+1)}")
                k(f"buffer_store_dwordx4 {v(b,4)}, {v(vSt)}, {s(srdO,4)}, {s(t0)} offen{'' if (scaled and WB) else sfx}")
                k(f"s_add_u32 {s(t0)}, {s(t0)}, {s(CP['Sj'])}")
                if sp[0] == 'a': k("s_nop 1")
            k(f"s_add_u32 {s(t1)}, {s(t1)}, {s(CP['Si'])}")
        k(f"s_setpc_b64 {s(sRe,2)}")
    Lepl = k.newlab('epl')
    k.label(Lepl)
    SORD = list(range(20, 32)) + list(range(16, 20))
    MIX = 'nomix' not in abl
    Lns2 = k.newlab('ns2')
    k(f"s_mov_b32 {s(t2)}, {s(CP['scale'])}\ns_mov_b32 {s(t3)}, {s(CP['scale'])}\ns_cmp_eq_u32 {s(CP['scale'])}, 0\ns_cbranch_scc1 {Lns2}")
    for scaled in (1, 0):
        if not scaled: k.label(Lns2)
        k(f"s_mov_b32 {s(t0)}, {s(CP['obase'])}")
        for p_ in ([x for pr in zip(range(16), SORD) for x in pr] if MIX else list(range(16)) + SORD):
            e, j = p_ >> 3, p_ & 7
            sp = acc(2 * e, j)
            if sp[0] == 'a':
                for i in range(8): k(f"v_accvgpr_read_b32 {v(vT+i)}, {a(sp[1]+i)}")
                b = vT
            else:
                b = sp[1]
            if scaled:
                for i in range(0, 8, 2): k(f"v_pk_mul_f32 {v(b+i,2)}, {v(b+i,2)}, {s(t2,2)}")
            d = b if p_ < 16 else 192 + 4 * SORD.index(p_)
            for i in range(4):
                k(f"v_cvt_pk_bf16_f32 {v(d+i)}, {v(b+2*i)}, {v(b+2*i+1)}")
            if p_ < 16:
                k(f"buffer_store_dwordx4 {v(b,4)}, {v(vSt)}, {s(srdO,4)}, {s(t0)} offen{sfx}")
                k(f"s_add_u32 {s(t0)}, {s(t0)}, {s(CP['Sj'])}" if p_ != 7 else f"s_add_u32 {s(t0)}, {s(CP['obase'])}, {s(CP['Si'])}")
                if MIX:
                    for i in range(8): k(f"v_accvgpr_write_b32 {a(8*p_+i)}, 0")
        k(f"s_setpc_b64 {s(sRe,2)}")
    ool = k.lines; k.lines = save

    S_ = Regs('s', 24, 90)
    srdK = S_.alloc('srdK', 4, 4); srdV = S_.alloc('srdV', 4, 4)
    sh = S_.alloc('h'); snA = S_.alloc('na'); snB = S_.alloc('nb'); srdS = S_.alloc('srdS', 4, 4); sSa = S_.alloc('sa'); srdF = S_.alloc('srdF', 4, 4); sPw = S_.alloc('pw', 4, 2); sL2 = S_.alloc('l2'); sPB = S_.alloc('pb'); sPf = CP['flag']; sOut = S_.alloc('out', 2, 2)
    sKo = S_.alloc('ko'); sVo = S_.alloc('vo')
    sC1 = S_.alloc('c1'); sMK = S_.alloc('mk'); sW4 = S_.alloc('w4')
    sVis = S_.alloc('vis', 2, 2); sAbs = S_.alloc('abs'); sThr = S_.alloc('thr'); sThC = S_.alloc('thc')
    sE = S_.alloc('e', 6)
    sRa = S_.alloc('ra', 2, 2); sM0 = S_.alloc('m0', 2, 2)
    sQ = S_.alloc('qoff', 2); sLo = S_.alloc('lo', 3)
    V = Regs('v', 6, 64)
    vKV = V.alloc('kv'); vDma = V.alloc('dma'); vChk = V.alloc('chk'); vNinf = V.alloc('ninf'); vFo = V.alloc('fo'); vFx = V.alloc('fx')
    vL = V.alloc('l', 4, 4); vTB = V.alloc('tb', 4)
    vE = V.alloc('e', 8, 4); vTS = V.alloc('ts', 16, 4); vOne = V.alloc('one', 4, 4)
    def TS(qt): return vTS + 4 * qt
    vT = V.alloc('t', 16, 4)
    def Sreg(par, qt): return 64 + par * 32 + qt * 8
    def Preg(par, qt): return 128 + par * 16 + qt * 4
    def Nreg(qt): return 160 + qt * 8
    def Oreg(qt, db): return qt * 32 + db * 4
    def KF(n): return 192 + n * 4
    def VF(n): return 224 + n * 4
    T = vT; vDm2 = 255
    AB = (0, 1, 2, 3); A_ = (0, 1)
    MF = "v_mfma_f32_16x16x32_bf16"
    def xlane(regs, tmps, op):
        for sw_ in ("v_permlane32_swap_b32", "v_permlane16_swap_b32"):
            for x, y in zip(regs, tmps): k(f"v_mov_b32 {v(y)}, {v(x)}")
            k("s_nop 1")
            for x, y in zip(regs, tmps): k(f"{sw_} {v(x)}, {v(y)}")
            k("s_nop 1")
            for x, y in zip(regs, tmps): k(f"{op} {v(x)}, {v(x)}, {v(y)}")

    KS = 'ks' in abl
    LQ, LK, LV = (196, 212, 232) if KS else (192, 208, 228)
    vD = 192; vV = vFx; sP8 = sL2
    if KS: assert all(x[0] - x[1] >= 2 for x in ITEMS)
    sLa = S_.alloc('la', 7)
    def local_setup():
        k(f"s_and_b32 {s(t0)}, s2, 7\ns_lshl_b32 {s(t0)}, {s(t0)}, 4\ns_lshl_b32 {s(t1)}, {s(sw)}, 2\ns_add_u32 {s(sLo)}, {s(t0)}, {s(t1)}")
        k(f"s_lshr_b32 {s(t2)}, s2, 3\ns_lshl_b32 {s(t2)}, {s(t2)}, 17")
        k(f"s_lshl_b32 {s(t0)}, {s(sLo)}, 10\ns_add_u32 {s(t0)}, {s(t0)}, {s(t2)}\ns_add_u32 {s(sLa)}, {s(t0)}, {WS_QA}\ns_add_u32 {s(sLa+1)}, {s(t0)}, {WS_KA}")
        k(f"s_and_b32 {s(sLo+1)}, {s(sLo)}, 63\ns_cmp_eq_u32 {s(sLo+1)}, 0\ns_cselect_b32 {s(t3)}, 0, 1024\ns_sub_u32 {s(sLa+2)}, {s(sLa+1)}, {s(t3)}")
        k(f"s_lshl_b32 {s(t0)}, {s(sLo)}, 9\ns_add_u32 {s(t0)}, {s(t0)}, {s(t2)}\ns_add_u32 {s(sLa+3)}, {s(t0)}, {WS_VA}\ns_sub_u32 {s(sLa+4)}, {s(sLa+3)}, {s(t3)}")
        k(f"s_add_u32 {s(sLa+5)}, {s(sLa+3)}, 65536\ns_add_u32 {s(sLa+6)}, {s(sLa+4)}, 65536")
    def local_loads():
        def ld(dst, so, off): return (None, f"buffer_load_dwordx4 {v(dst,4)}, {v(vL16)}, {s(srdO,4)}, {s(so)} offen offset:{off} sc1", None)
        o = [ld(LQ+4*j, sLa, j*1024) for j in range(4)] + [ld(LK+4+4*j, sLa+1, j*1024) for j in range(4)] + [ld(LK, sLa+2, 0)]
        for db in range(2):
            o += [ld(LV+12*db+4+4*j, sLa+3+2*db, j*1024) for j in range(2)] + [ld(LV+12*db, sLa+4+2*db, 0)]
        return o
    C0, C1, CZ, Mx, My, Sb, Ts = 128, 132, 136, 140, 144, 148, 20
    def local_pre():
        k(f"v_and_b32 {v(T)}, 15, {v(vLane)}\nv_lshrrev_b32 {v(T+1)}, 4, {v(vLane)}\nv_lshlrev_b32 {v(T+1)}, 2, {v(T+1)}\nv_sub_u32 {v(T)}, {v(T)}, {v(T+1)}")
        for r_ in range(4):
            k(f"v_cmp_ge_i32 vcc, {r_-9}, {v(T)}\nv_subrev_u32 {v(T+2)}, {r_}, {v(T)}\nv_cmp_ge_u32 {s(sM0,2)}, 7, {v(T+2)}\ns_nop 0")
            k(f"v_cndmask_b32 {v(C0+r_)}, {v(vNinf)}, 0, vcc\nv_cndmask_b32 {v(C1+r_)}, {v(vNinf)}, 0, {s(sM0,2)}")
        k(f"s_cmp_eq_u32 {s(sLo+1)}, 0\ns_cselect_b64 vcc, -1, 0\ns_nop 0")
        for r_ in range(4): k(f"v_cndmask_b32 {v(CZ+r_)}, {v(C0+r_)}, {v(vNinf)}, vcc")
        k(f"s_lshl_b32 {s(t0)}, {s(sLo)}, 10\ns_lshr_b32 {s(t1)}, s2, 3\ns_lshl_b32 {s(t1)}, {s(t1)}, 17\ns_add_u32 {s(t0)}, {s(t0)}, {s(t1)}\ns_add_u32 {s(sLo)}, {s(t0)}, {WS_OA}")
    def local_stream():
        save_ = k.lines; k.lines = []
        U = range(4); PB = LQ
        for u in U:
            k(f"{MF} {v(Sb+8*u,4)}, {v(LK+4*u,4)}, {v(LQ+4*u,4)}, {v(CZ if u == 0 else C0,4)}")
            k(f"{MF} {v(Sb+8*u+4,4)}, {v(LK+4*u+4,4)}, {v(LQ+4*u,4)}, {v(C1,4)}")
        for _ in range(4): k("s_nop 1")
        for u in U: k(f"v_max3_f32 {v(Mx+u)}, {v(Sb+8*u)}, {v(Sb+8*u+1)}, {v(Sb+8*u+2)}")
        for u in U: k(f"v_max3_f32 {v(Mx+u)}, {v(Mx+u)}, {v(Sb+8*u+3)}, {v(Sb+8*u+4)}")
        for u in U: k(f"v_max3_f32 {v(Mx+u)}, {v(Mx+u)}, {v(Sb+8*u+5)}, {v(Sb+8*u+6)}")
        for u in U: k(f"v_max_f32 {v(Mx+u)}, {v(Mx+u)}, {v(Sb+8*u+7)}")
        xlane([Mx + u for u in U], [My + u for u in U], "v_max_f32")
        for u in U:
            for i in range(8): k(f"v_sub_f32 {v(Sb+8*u+i)}, {v(Sb+8*u+i)}, {v(Mx+u)}")
        for u in U:
            for i in range(8): k(f"v_exp_f32 {v(Sb+8*u+i)}, {v(Sb+8*u+i)}")
        for u in U:
            for i in range(4): k(f"v_cvt_pk_bf16_f32 {v(PB+4*u+i)}, {v(Sb+8*u+2*i)}, {v(Sb+8*u+2*i+1)}")
        k("s_nop 1")
        for u in U: k(f"{MF} {v(Ts+4*u,4)}, {v(vOne,4)}, {v(PB+4*u,4)}, 0")
        for u in U:
            for db in range(2): k(f"{MF} {v(Sb+8*u+4*db,4)}, {v(LV+12*db+2+2*u,4)}, {v(PB+4*u,4)}, 0")
        for u in U: k(f"v_rcp_f32 {v(Mx+u)}, {v(Ts+4*u)}")
        k("s_nop 1\ns_nop 1")
        for u in U:
            for i in range(8): k(f"v_mul_f32 {v(Sb+8*u+i)}, {v(Sb+8*u+i)}, {v(Mx+u)}")
            for i in range(4): k(f"v_cvt_pk_bf16_f32 {v(Sb+8*u+i)}, {v(Sb+8*u+2*i)}, {v(Sb+8*u+2*i+1)}")
            k(f"buffer_store_dwordx4 {v(Sb+8*u,4)}, {v(vL16)}, {s(srdO,4)}, {s(sLo)} offen offset:{u*1024}{sfx}")
        out = [x.strip() for x in k.lines]; k.lines = save_
        return out

    INI = []; k.collect = INI
    head_ids()
    k(f"s_mov_b32 {s(sh)}, {s(t2)}\ns_bfe_u32 {s(snA)}, {TABA}, {s(t3)}\ns_add_u32 {s(snA)}, {s(snA)}, 1\ns_bfe_u32 {s(snB)}, {TABB}, {s(t3)}\ns_add_u32 {s(snB)}, {s(snB)}, 1")
    k(f"s_lshl_b32 {s(sW4)}, {s(sw)}, 12\nv_add_u32 {v(vDma)}, {s(sW4)}, {v(vL16)}")
    k(f"s_lshl_b32 {s(t0)}, {s(snB)}, 2\ns_lshl_b32 {s(t1)}, {s(snA)}, 2\ns_lshl_b32 {s(srdK+2)}, {s(t1)}, 13\ns_mov_b32 {s(srdV+2)}, {s(srdK+2)}")
    k(f"s_sub_u32 {s(sE)}, {s(t0)}, 4\ns_add_u32 {s(sE)}, {s(sE)}, {s(sw)}\ns_add_u32 {s(sE+1)}, {s(sE)}, 1\ns_mov_b32 {s(sE+2)}, {s(t0)}")
    k(f"s_sub_u32 {s(sE+3)}, {s(t1)}, 4\ns_add_u32 {s(sE+3)}, {s(sE+3)}, {s(sw)}\ns_add_u32 {s(sE+4)}, {s(sE+3)}, 1\ns_mov_b32 {s(sE+5)}, {s(t1)}")
    EEX = 'noeex' not in abl and not KS
    if KS: k(f"s_and_b32 {s(t0)}, {s(sw)}, 1\ns_sub_u32 {s(sE+3)}, {s(sE+3)}, {s(t0)}\ns_add_u32 {s(sE+4)}, {s(sE+3)}, 2\ns_lshl_b32 {s(sP8)}, {s(t0)}, 13")
    if EEX: k(f"s_cmp_lt_u32 {s(sw)}, 2\ns_cselect_b32 {s(t0)}, 2, 0\ns_sub_u32 {s(sE+5)}, {s(sE+5)}, {s(t0)}")
    k(f"s_mov_b32 {s(srdK+3)}, 0x20000\ns_mov_b32 {s(srdV+3)}, 0x20000\ns_lshl_b32 {s(sLo+2)}, {s(sh)}, 19")
    k(f"s_add_u32 {s(t0)}, {s(sLo+2)}, {WS_KB}\ns_add_u32 {s(srdK)}, {s(sWS)}, {s(t0)}\ns_addc_u32 {s(srdK+1)}, {s(sWS+1)}, 0")
    k(f"s_add_u32 {s(t0)}, {s(sLo+2)}, {WS_VB}\ns_add_u32 {s(srdV)}, {s(sWS)}, {s(t0)}\ns_addc_u32 {s(srdV+1)}, {s(sWS+1)}, 0")
    def dmaK(j): return f"buffer_load_dwordx4 {v(vDma)}, {s(srdK,4)}, {s(sKo)} offen offset:{j*1024}{ksc} lds"
    def dmaV(j): return f"buffer_load_dwordx4 {v(vDma)}, {s(srdV,4)}, {s(sVo)} offen offset:{j*1024}{ksc} lds"
    def dma_group():
        g = [(f"s_mov_b32 m0, {s(sMK)}", dmaK(0), None), (None, dmaK(1), None), (None, dmaK(2), None), (None, dmaK(3), f"s_add_u32 {s(sKo)}, {s(sKo)}, {STG}"),
             (f"s_add_u32 m0, {s(sMK)}, {STG}", dmaV(0), None), (None, dmaV(1), None), (None, dmaV(2), None), (None, dmaV(3), f"s_add_u32 {s(sVo)}, {s(sVo)}, {STG}")]
        return g
    def emit_group(items):
        for pre, ins, post in items:
            if pre: k(pre + "\ns_nop 0")
            k(ins)
            if post: k(post)
    k.collect = None
    ST.stamp(7)
    k(f"v_mov_b32 {v(vKV)}, {v(vL16)}")
    for a_ in range(8): k(f"ds_read_b128 {a(KF(a_),4)}, {v(vKV)} offset:{a_*1024}")
    k(f"s_load_dwordx2 {s(sPw,2)}, s[0:1], {KARG['B_w_o']}\ns_load_dwordx2 {s(sPw+2,2)}, s[0:1], {KARG['A_wo']}\ns_load_dwordx2 {s(sOut,2)}, s[0:1], {KARG['out']}\ns_mov_b32 {s(srdF+3)}, 0x20000")
    k(f"s_call_b64 {s(sRe,2)}, {Lepl}\ns_mov_b32 {s(sPend)}, {s(CP['flag'])}\ns_mov_b32 {s(srdS+2)}, {WS_SIZE}")
    k.label(Linit)
    ST.stamp(10) if 'lp' not in abl else None
    k(f"s_mov_b32 {s(srdS)}, {s(sWS)}\ns_mov_b32 {s(srdS+1)}, {s(sWS+1)}\ns_mov_b32 {s(srdS+3)}, 0x20000")
    k(f"s_lshl_b32 {s(t0)}, {s(CP['Si'])}, 1\ns_add_u32 {s(CP['obase'])}, {s(CP['obase'])}, {s(t0)}\ns_lshl_b32 {s(t0)}, {s(CP['Sj'])}, 2\ns_add_u32 {s(sSa)}, {s(CP['obase'])}, {s(t0)}")
    k.collect = INI
    k(f"s_mov_b32 {s(sKo)}, {5*STG}\ns_mov_b32 {s(sVo)}, {4*STG}")
    k(f"v_mov_b32 {v(vNinf)}, 0xff800000\ns_mov_b32 {s(sThr)}, {f32bits(THR)}")
    k(f"s_lshl_b32 {s(t1)}, {s(sw)}, 1\ns_sub_u32 {s(t1)}, {s(t1)}, 8")
    k(f"s_lshl_b32 {s(sQ)}, {s(snA)}, 3\ns_add_u32 {s(sQ)}, {s(sQ)}, {s(t1)}\ns_lshl_b32 {s(sQ+1)}, {s(snB)}, 3\ns_add_u32 {s(sQ+1)}, {s(sQ+1)}, {s(t1)}")
    def stash_item(m):
        post = f"s_add_u32 {s(sSa)}, {s(sSa)}, {s(CP['Sj'])}"
        if m == 3: post = f"s_add_u32 {s(sSa)}, {s(CP['obase'])}, {s(CP['Si'])}"
        if m == 11: post = f"s_mov_b32 {s(sSa)}, {s(CP['obase'])}"
        return (None, f"buffer_store_dwordx4 {v(192+4*m,4)}, {v(vL16)}, {s(srdS,4)}, {s(sSa)} offen{sfx}", post)
    k(f"s_lshr_b32 {s(t0)}, {s(sh)}, 1\ns_lshl_b32 {s(t0)}, {s(t0)}, 7\ns_add_u32 {s(t0)}, {s(t0)}, {WS_FLAG + 32*128}\ns_lshr_b32 {s(t1)}, s2, 6\ns_lshl_b32 {s(t1)}, {s(t1)}, 8\ns_add_u32 {s(t1)}, {s(t1)}, {WS_FLAG + 48*128 - 64}")
    k(f"v_min_u32 {v(vFo)}, 31, {v(vLane)}\nv_lshlrev_b32 {v(vFo)}, 3, {v(vFo)}\nv_mov_b32 {v(vFx)}, {s(t0)}\nv_mov_b32 {v(vChk)}, {s(t1)}\nv_cmp_gt_u32 vcc, 8, {v(vLane)}\ns_nop 1\nv_cndmask_b32 {v(vFx)}, {v(vChk)}, {v(vFx)}, vcc\nv_add_u32 {v(vFo)}, {v(vFo)}, {v(vFx)}")
    if False:
        Lc3 = k.newlab('c3')
        k(f"s_lshl_b32 {s(t0)}, {s(sw)}, 8\ns_add_u32 {s(t0)}, {s(t0)}, s2\ns_cmp_ge_u32 {s(t0)}, 128\ns_cbranch_scc1 {Lc3}\ns_lshl_b32 {s(t0)}, {s(t0)}, 7\ns_add_u32 {s(t0)}, {s(t0)}, {WS_FLAG3}\nv_mov_b32 {v(vChk)}, 0\ns_mov_b64 exec, 1")
        k(f"buffer_store_dword {v(vChk)}, off, {s(srdO,4)}, {s(t0)} sc1\ns_mov_b64 exec, -1")
        k.label(Lc3)
    k(f"s_mov_b32 {s(sC1)}, 0")
    ZI = 80
    zrest = []
    if not MIX:
        for i in range(ZI): k(f"v_accvgpr_write_b32 {a(i)}, 0")
        zrest = [f"v_accvgpr_write_b32 {a(i)}, 0" for i in range(ZI, 128)]
    for i in range(4): k(f"v_mov_b32 {v(vL+i)}, 0\nv_mov_b32 {v(TS(i))}, 0\nv_mov_b32 {v(vOne+i)}, 0x3f803f80")
    def l2w():
        k(f"v_lshrrev_b32 {v(T+14)}, 3, {v(vLane)}\nv_lshlrev_b32 {v(T+14)}, 11, {v(T+14)}\nv_and_b32 {v(T+13)}, 7, {v(vLane)}\nv_lshl_add_u32 {v(T+14)}, {v(T+13)}, 7, {v(T+14)}")
        k(f"s_lshr_b32 {s(t0)}, s2, 3\ns_lshl_b32 {s(t0)}, {s(t0)}, 2\ns_add_u32 {s(t0)}, {s(t0)}, {s(sw)}\ns_lshl_b32 {s(t0)}, {s(t0)}, 14\ns_and_b32 {s(t1)}, s2, 1\ns_lshl_b32 {s(t1)}, {s(t1)}, 10\ns_add_u32 {s(t0)}, {s(t0)}, {s(t1)}")
        k(f"s_bitcmp1_b32 s2, 2\ns_cselect_b32 {s(t1)}, 0, {41*64*2048}\ns_mov_b32 {s(t2)}, {8*MB}\ns_cselect_b32 {s(srdF+2)}, {41*64*2048}, {s(t2)}\ns_cselect_b32 {s(t3)}, 0, {2*MB}\ns_add_u32 {s(t1)}, {s(t1)}, {s(t0)}")
        k(f"s_mov_b32 {s(srdF)}, {s(sPw)}\ns_mov_b32 {s(srdF+1)}, {s(sPw+1)}")
        L2W = []
        for r_ in ((2, 1, 0) if 'l2rev' in abl else (0, 1, 2)):
            L2W.append(f"s_add_u32 {s(t2)}, {s(t1)}, {r_*2*MB}\nbuffer_load_dword {v(vDm2)}, {v(T+14)}, {s(srdF,4)}, {s(t2)} offen")
        for x in L2W: k(x)
        k(f"s_mov_b32 {s(srdF)}, {s(sPw+2)}\ns_mov_b32 {s(srdF+1)}, {s(sPw+3)}\ns_mov_b32 {s(srdF+2)}, {s(t3)}\nbuffer_load_dword {v(vDm2)}, {v(T+14)}, {s(srdF,4)}, {s(t0)} offen")
    EV2 = 'ev1' not in abl; LT = 'nolt' not in abl; evool = []
    sTo = sHasNext; vTo = 200
    def events2(which):
        fl = f"buffer_load_dwordx2 {v(vFlag,2)}, {v(vFo)}, {s(srdO,4)}, 0 offen sc1"
        fl2 = f"s_lshr_b32 {s(t0)}, {s(sh)}, 1\ns_lshl_b32 {s(t0)}, {s(t0)}, 7\ns_add_u32 {s(t0)}, {s(t0)}, {WS_FLAG + 11*8}\nv_min_u32 {v(vFa)}, 1, {v(vLane)}\nv_lshlrev_b32 {v(vFa)}, 5, {v(vFa)}\nbuffer_load_dwordx2 {v(vFlag,2)}, {v(vFa)}, {s(srdO,4)}, {s(t0)} offen sc1"
        def ev(val, body, ret=None):
            lb = k.newlab('eb'); lr = ret or k.newlab('er')
            k(f"s_cmp_eq_u32 {s(sAbs)}, {val}\ns_cbranch_scc1 {lb}")
            if not ret: k.label(lr)
            sv = k.lines; k.lines = []
            k.label(lb); body(lr); k(f"s_branch {lr}")
            evool.extend(k.lines); k.lines = sv
        def pub(sflag, lr):
            k(f"s_cmp_lg_u32 {s(sw)}, 0\ns_cbranch_scc1 {lr}")
            k(f"v_mov_b32 {v(T+12)}, {s(sTok)}\nv_mov_b32 {v(T+13)}, {s(sTok+1)}\ns_add_u32 {s(t0)}, {s(sflag)}, {WS_FLAG}\ns_mov_b64 exec, 1")
            k(f"buffer_store_dwordx2 {v(T+12,2)}, off, {s(srdO,4)}, {s(t0)} sc1\ns_mov_b64 exec, -1")
        def touch(p_, size):
            if LT or not TOUCH: return
            k(f"s_mov_b32 {s(srdF)}, {s(p_)}\ns_mov_b32 {s(srdF+1)}, {s(p_+1)}\ns_mov_b32 {s(srdF+2)}, {size}\ns_lshl_b32 {s(t0)}, s2, 2\ns_add_u32 {s(t0)}, {s(t0)}, {s(sw)}\ns_lshl_b32 {s(t0)}, {s(t0)}, 13")
            k(f"v_lshlrev_b32 {v(T+14)}, 7, {v(vLane)}\nbuffer_load_dword {v(vDm2)}, {v(T+14)}, {s(srdF,4)}, {s(t0)} offen")
        def check(load, lr, vm):
            lsp = k.newlab('spin')
            cmp_ = f"v_cmp_ne_u64 {s(sM0,2)}, {s(sTok,2)}, {v(vFlag,2)}\ns_nop 3\ns_cmp_eq_u64 {s(sM0,2)}, 0\ns_cbranch_scc1 {lr}"
            k(f"s_waitcnt vmcnt({vm})\n{cmp_}\ns_mov_b32 s3, {SPIN}")
            k.label(lsp)
            k(f"{load}\ns_waitcnt vmcnt(0)\n{cmp_}\ns_sleep 8\ns_sub_u32 s3, s3, 1\ns_cbranch_scc0 {lsp}")
        def mask(e, lr):
            lo = 2 if e < 2 else 0
            if e in (0, 3):
                for r_ in range(0, 4, 2):
                    k(f"v_pk_add_f32 {v(Nreg(lo)+r_,2)}, {v(Nreg(lo)+r_,2)}, {v(vTB+r_,2)}\nv_pk_add_f32 {v(Nreg(lo+1)+4+r_,2)}, {v(Nreg(lo+1)+4+r_,2)}, {v(vTB+r_,2)}")
                k(f"v_mov_b32 {v(Nreg(lo)+4)}, {v(vNinf)}\nv_mov_b32 {v(Nreg(lo)+5)}, {v(vNinf)}\nv_mov_b64 {v(Nreg(lo)+6,2)}, {v(Nreg(lo)+4,2)}")
                if KS and e == 3:
                    k(f"s_bitcmp0_b32 {s(sw)}, 0\ns_cbranch_scc1 {lr}")
                    for r_ in range(0, 16, 2): k(f"v_mov_b64 {v(Nreg(2)+r_,2)}, {v(Nreg(lo)+4,2)}")
            else:
                k(f"v_mov_b32 {v(Nreg(lo))}, {v(vNinf)}\nv_mov_b32 {v(Nreg(lo)+1)}, {v(vNinf)}")
                for r_ in range(2, 32 if (KS and e == 4) else 16, 2): k(f"v_mov_b64 {v(Nreg(lo)+r_,2)}, {v(Nreg(lo),2)}")
        for e in which:
            if e < 6: ev(s(sE+e), lambda lr, e=e: mask(e, lr)); continue
            ev(s(sPB), lambda lr: (k(f"s_mov_b32 {s(t1)}, {s(sPf)}\ns_mov_b32 {s(sPf)}, -1"), pub(t1, lr)))
            ln = k.newlab('e')
            vm = 16 if (LT or not TOUCH) else 18
            ev(U_PUB, lambda lr: (k(fl2), k(f"s_cmp_eq_u32 {s(sPend)}, -1\ns_cbranch_scc1 {lr}"), pub(sPend, lr)), ln)
            ev(12, lambda lr: k(fl2), ln)
            ev(U_MID, lambda lr: check(fl2, lr, 16), ln)
            ev(U_POLL, lambda lr: (k(fl), touch(sPw, 8 * MB)), ln)
            ev(U_CHK, lambda lr: (touch(sPw + 2, 2 * MB), check(fl, lr, vm)), ln)
            k.label(ln)
    def events(which):
        if EV2: return events2(which)
        for e in which:
            ln = k.newlab('e')
            if e >= 6:
                ln2 = k.newlab('e')
                fl = f"buffer_load_dwordx2 {v(vFlag,2)}, {v(vFo)}, {s(srdO,4)}, 0 offen sc1"
                fl2 = f"s_lshr_b32 {s(t0)}, {s(sh)}, 1\ns_lshl_b32 {s(t0)}, {s(t0)}, 7\ns_add_u32 {s(t0)}, {s(t0)}, {WS_FLAG + 11*8}\nv_min_u32 {v(vFa)}, 1, {v(vLane)}\nv_lshlrev_b32 {v(vFa)}, 5, {v(vFa)}\nbuffer_load_dwordx2 {v(vFlag,2)}, {v(vFa)}, {s(srdO,4)}, {s(t0)} offen sc1"
                def touch(p_, size):
                    if not TOUCH: return
                    k(f"s_mov_b32 {s(srdF)}, {s(p_)}\ns_mov_b32 {s(srdF+1)}, {s(p_+1)}\ns_mov_b32 {s(srdF+2)}, {size}\ns_lshl_b32 {s(t0)}, s2, 2\ns_add_u32 {s(t0)}, {s(t0)}, {s(sw)}\ns_lshl_b32 {s(t0)}, {s(t0)}, 13")
                    k(f"v_lshlrev_b32 {v(T+14)}, 7, {v(vLane)}\nbuffer_load_dword {v(vDm2)}, {v(T+14)}, {s(srdF,4)}, {s(t0)} offen")
                def dtouch(n):
                    lt = k.newlab('t')
                    k(f"s_cmp_ge_u32 s2, 96\ns_cbranch_scc1 {lt}\ns_lshl_b32 {s(t0)}, s2, 2\ns_add_u32 {s(t0)}, {s(t0)}, {s(sw)}\ns_add_u32 {s(t0)}, {s(t0)}, {n*384}\ns_cmp_lt_u32 {s(t0)}, 1024")
                    k(f"s_cselect_b32 {s(srdF)}, {s(sPw)}, {s(sPw+2)}\ns_cselect_b32 {s(srdF+1)}, {s(sPw+1)}, {s(sPw+3)}\ns_mov_b32 {s(t1)}, {2*MB}\ns_cselect_b32 {s(srdF+2)}, {8*MB}, {s(t1)}\ns_and_b32 {s(t0)}, {s(t0)}, 1023\ns_lshl_b32 {s(t0)}, {s(t0)}, 13")
                    k(f"v_lshlrev_b32 {v(T+14)}, 7, {v(vLane)}\nbuffer_load_dword {v(vDm2)}, {v(T+14)}, {s(srdF,4)}, {s(t0)} offen")
                    k.label(lt)
                def cpf3():
                    k(f"s_lshr_b32 {s(t1)}, s2, 3\ns_cmp_ge_u32 {s(t1)}, 3\ns_cbranch_scc1 {ln}\ns_lshl_b32 {s(t1)}, {s(t1)}, 2\ns_add_u32 {s(t1)}, {s(t1)}, {s(sw)}\ns_mov_b64 {s(sM0,2)}, vcc")
                    code_prefetch(k, sEx, name, name + "_end", t1, vLane, T + 14, vDm2, t0)
                    k(f"s_mov_b64 vcc, {s(sM0,2)}")
                def check(load, exp):
                    if 'nochk' in abl: return
                    lsp = k.newlab('spin')
                    k(f"s_waitcnt vmcnt({18 if TOUCH and 'dtouch' not in abl else 16})\ns_mov_b32 s3, {SPIN}")
                    k.label(lsp)
                    k(f"v_cmp_ne_u64 {s(sM0,2)}, {s(sTok,2)}, {v(vFlag,2)}\ns_nop 3\ns_cmp_eq_u64 {s(sM0,2)}, 0\ns_cbranch_scc1 {ln}\ns_sub_u32 s3, s3, 1\ns_cbranch_scc1 {ln}\ns_sleep 32\n{load}\ns_waitcnt vmcnt(0)\ns_branch {lsp}")
                if L2D:
                    k(f"s_cmp_lg_u32 {s(sAbs)}, {s(sL2)}\ns_cbranch_scc1 {ln2}")
                    l2w()
                    k.label(ln2)
                ln3 = k.newlab('e')
                k(f"s_cmp_lg_u32 {s(sAbs)}, {s(sPB)}\ns_cbranch_scc1 {ln3}")
                publish(sPf, T + 12)
                k(f"s_mov_b32 {s(sPf)}, -1")
                k.label(ln3)
                k(f"s_cmp_gt_u32 {s(sAbs)}, {U_CP if 'cpf2' in abl else U_CHK}\ns_cbranch_scc1 {ln}")
                acts = [(U_PUB, None), (U_MID, lambda: check(fl2, None)), (U_POLL, lambda: (k(fl), touch(sPw, 8 * MB))), (U_CHK, lambda: (touch(sPw + 2, 2 * MB), check(fl, v(vFx))))]
                if 'cpf2' in abl: acts.append((U_CP, cpf3))
                if 'dtouch' in abl:
                    acts = [(U_PUB, None), (10, lambda: dtouch(0)), (14, lambda: dtouch(1)), (18, lambda: (dtouch(2), check(fl2, None))), (U_POLL, lambda: (k(fl), dtouch(3))), (U_CHK, lambda: check(fl, None))]
                for u_, f_ in acts:
                    lx = k.newlab('e')
                    k(f"s_cmp_lg_u32 {s(sAbs)}, {u_}\ns_cbranch_scc1 {lx}")
                    if f_ is None:
                        k(fl2)
                        k(f"s_cmp_eq_u32 {s(sPend)}, -1\ns_cbranch_scc1 {ln}")
                        publish(sPend, T + 12)
                    else: f_()
                    k(f"s_branch {ln}")
                    k.label(lx)
                k.label(ln)
                continue
            k(f"s_cmp_lg_u32 {s(sAbs)}, {s(sE+e)}\ns_cbranch_scc1 {ln}")
            lo = 2 if e < 2 else 0
            for r_ in range(4):
                if e in (0, 3):
                    k(f"v_add_f32 {v(Nreg(lo)+r_)}, {v(Nreg(lo)+r_)}, {v(vTB+r_)}\nv_mov_b32 {v(Nreg(lo)+4+r_)}, {v(vNinf)}\nv_add_f32 {v(Nreg(lo+1)+4+r_)}, {v(Nreg(lo+1)+4+r_)}, {v(vTB+r_)}")
                else:
                    k(f"v_mov_b32 {v(Nreg(lo)+r_)}, {v(vNinf)}\nv_mov_b32 {v(Nreg(lo+1)+r_)}, {v(vNinf)}\nv_mov_b32 {v(Nreg(lo+1)+4+r_)}, {v(vNinf)}\nv_mov_b32 {v(Nreg(lo)+4+r_)}, {v(vNinf)}")
            if KS and e >= 3:
                if e == 3: k(f"s_bitcmp0_b32 {s(sw)}, 0\ns_cbranch_scc1 {ln}")
                for r_ in range(16): k(f"v_mov_b32 {v(Nreg(2)+r_)}, {v(vNinf)}")
            k("s_nop 0")
            k.label(ln)
    Lrs = {(p_, n_): k.newlab(f'rs{p_}{n_}') for p_ in range(2) for n_ in (2, 4)}
    local_setup()
    k(f"v_and_b32 {v(T)}, 15, {v(vLane)}\nv_lshrrev_b32 {v(T+1)}, 4, {v(vLane)}\nv_lshlrev_b32 {v(T+1)}, 2, {v(T+1)}\nv_sub_u32 {v(T)}, {v(T)}, {v(T+1)}")
    for r_ in range(4):
        k(f"v_cmp_le_i32 vcc, {r_}, {v(T)}\ns_nop 1\nv_cndmask_b32 {v(vTB+r_)}, {v(vNinf)}, 0, vcc")
    k(f"s_mov_b32 {s(sVis)}, {sum(1 << (u_-1) for u_ in (U_PUB, U_MID, U_POLL, U_CHK))}\ns_mov_b32 {s(sVis+1)}, 0")
    for e in range(6):
        k(f"s_sub_u32 {s(t0)}, {s(sE+e)}, 1\ns_bitset1_b64 {s(sVis,2)}, {s(t0)}")
    if L2D: k(f"s_sub_u32 {s(sL2)}, {s(sE+5)}, {L2D}\ns_sub_u32 {s(t0)}, {s(sL2)}, 1\ns_bitset1_b64 {s(sVis,2)}, {s(t0)}")
    if 'dtouch' in abl: k(f"s_cmp_lt_u32 s2, 96\ns_cselect_b32 {s(t0)}, {(1 << 9) | (1 << 13)}, 0\ns_or_b32 {s(sVis)}, {s(sVis)}, {s(t0)}")
    if 'cpf2' in abl: k(f"s_cmp_lt_u32 s2, 24\ns_cselect_b32 {s(t0)}, {1 << (U_CP-1)}, 0\ns_or_b32 {s(sVis)}, {s(sVis)}, {s(t0)}")
    k(f"s_add_u32 {s(sPB)}, {s(sE+2)}, 8\ns_sub_u32 {s(t0)}, {s(sPB)}, 1\ns_bitset1_b64 {s(sVis,2)}, {s(t0)}")
    if EV2: k(f"s_cmp_ge_u32 s2, 224\ns_cselect_b32 {s(t0)}, {1 << 11}, 0\ns_or_b32 {s(sVis)}, {s(sVis)}, {s(t0)}")
    LT2 = LT and 'lt2' in abl
    if LT2:
        LSH = 3; GB = 128 * (64 >> LSH) * 128; gsh = GB.bit_length() - 1
        LCN = [int(x) for x in os.environ.get('LCN', '10,10,9,9,16,9,9,8').split(',')]; LDL = [int(x) for x in os.environ.get('LDL', '1,1,1,1,4,4,3,7').split(',')]
        ga = LCN.index(16); assert sum(LCN) == 80 and all(LCN[g] + LDL[g] <= 2 * x[0] - 3 for g, x in enumerate(ITEMS))
        tab = [(0 if g == ga else sum(LCN[:g]) - (16 if g > ga else 0), LCN[g], LDL[g]) for g in range(8)]
        pk = lambda i: sum(t[i] << (8 * g) for g, t in enumerate(tab))
        k(f"s_lshr_b32 {s(t0)}, s2, 5\ns_cmp_eq_u32 {s(t0)}, {ga}\ns_cselect_b32 {s(srdF)}, {s(sPw+2)}, {s(sPw)}\ns_cselect_b32 {s(srdF+1)}, {s(sPw+3)}, {s(sPw+1)}")
        k(f"s_lshl_b32 {s(t0)}, {s(t0)}, 3\ns_or_b32 {s(t0)}, {s(t0)}, 0x80000")
        for i, d in ((0, t1), (1, srdF + 2), (2, sTo)):
            k(f"s_mov_b32 {s(t2)}, {pk(i) & 0xffffffff}\ns_mov_b32 {s(t3)}, {pk(i) >> 32}\ns_bfe_u64 {s(t2,2)}, {s(t2,2)}, {s(t0)}\ns_lshl_b32 {s(d)}, {s(t2)}, {gsh}")
        k(f"s_add_u32 {s(srdF)}, {s(srdF)}, {s(t1)}\ns_addc_u32 {s(srdF+1)}, {s(srdF+1)}, 0")
        k(f"s_and_b32 {s(t0)}, s2, 31\ns_lshl_b32 {s(t0)}, {s(t0)}, 2\ns_add_u32 {s(t0)}, {s(t0)}, {s(sw)}\ns_lshl_b32 {s(t0)}, {s(t0)}, {gsh - 7}\ns_sub_u32 {s(sTo)}, {s(t0)}, {s(sTo)}")
    elif LT:
        LSH = int(os.environ.get('LSH', '2')); GB = 128 * (64 >> LSH) * 128; nA_ = 2 * MB // GB; nW_ = 8 * MB // GB
        SKIP = set(int(x) for x in os.environ.get('LSKIP', '4567'))
        av = [0 if g in SKIP else 2 * x[1] - 1 for g, x in enumerate(ITEMS)]
        ga = min((g for g in range(8) if av[g] >= nA_), key=lambda g: av[g])
        cap = next(c for c in range(1, 16) if sum(min(av[g], c) for g in range(8) if g != ga) >= nW_)
        st_ = 0; tab = []
        for g in range(8):
            if g == ga: tab.append((0, nA_)); continue
            c = min(av[g], cap, nW_ - st_); tab.append((st_, st_ + c)); st_ += c
        assert st_ == nW_
        pk = lambda i: sum(t[i] << (8 * g) for g, t in enumerate(tab))
        gsh = GB.bit_length() - 1
        k(f"s_lshr_b32 {s(t0)}, s2, 5\ns_cmp_eq_u32 {s(t0)}, {ga}\ns_cselect_b32 {s(srdF)}, {s(sPw+2)}, {s(sPw)}\ns_cselect_b32 {s(srdF+1)}, {s(sPw+3)}, {s(sPw+1)}")
        k(f"s_lshl_b32 {s(t0)}, {s(t0)}, 3\ns_or_b32 {s(t0)}, {s(t0)}, 0x80000")
        k(f"s_mov_b32 {s(t2)}, {pk(1) & 0xffffffff}\ns_mov_b32 {s(t3)}, {pk(1) >> 32}\ns_bfe_u64 {s(t2,2)}, {s(t2,2)}, {s(t0)}\ns_lshl_b32 {s(srdF+2)}, {s(t2)}, {gsh}")
        k(f"s_mov_b32 {s(t2)}, {pk(0) & 0xffffffff}\ns_mov_b32 {s(t3)}, {pk(0) >> 32}\ns_bfe_u64 {s(t2,2)}, {s(t2,2)}, {s(t0)}\ns_lshl_b32 {s(sTo)}, {s(t2)}, {gsh}")
        k(f"s_and_b32 {s(t0)}, s2, 31\ns_lshl_b32 {s(t0)}, {s(t0)}, 2\ns_add_u32 {s(t0)}, {s(t0)}, {s(sw)}\ns_lshl_b32 {s(t0)}, {s(t0)}, {gsh - 7}\ns_add_u32 {s(sTo)}, {s(sTo)}, {s(t0)}")
    k.collect = None
    k(f"s_waitcnt vmcnt({16 if QL else 32})")
    ST.stamp(11) if 'lp' not in abl else None
    def rdK(unit, a_): return f"ds_read_b128 {a(KF(a_),4)}, {v(vKV)} offset:{unit*8192 + a_*1024}"
    def rdV(unit, n): return f"ds_read_b128 {a(VF(n),4)}, {v(vKV)} offset:{STG + unit*8192 + n*1024}"

    stubs = []; calls = []
    def slow_path(par, sm, evs):
        l1 = k.newlab('sp')
        src = vChk
        k(f"v_cmp_lt_f32 vcc, {s(sThr)}, {v(src)}")
        events(evs)
        st_ = k.newlab('rc')
        k(f"s_cbranch_vccnz {st_}")
        k.label(l1)
        calls.append((st_, l1, Lrs[(par, len(sm))]))

    SERP2 = 'noserp2' not in abl
    def qk_mfmas(par, qk):
        mf = []
        for kb in range(2):
            for qi, qt in enumerate(qk if (kb == 0 or not SERP2) else qk[::-1]):
                for ei, e in enumerate((0, 1, 2, 3) if (qi % 2 == 0 or not SERP2) else (3, 2, 1, 0)):
                    d = v(Sreg(par, qt) + 4 * kb, 4)
                    c = v(Nreg(qt) + 4 * kb, 4) if ei == 0 else d
                    mf.append(f"{MF} {d}, {a(KF(kb*4+e),4)}, {a(Qreg(qt,e),4)}, {c}")
        return mf
    def step(which, qk, sm, pv, dma=(), dgaps=(), last=False, loop=None, evs=(), exit_e=None, vmw=24, mode=None, xr=()):
        par = 1 - which
        mf = qk_mfmas(par ^ 1, qk)
        nqk = len(mf)
        for n in range(8):
            for qt in (pv if (n % 2 == 0 or not SERP2) else pv[::-1]):
                d = a(Oreg(qt, n), 4)
                mf.append(f"{MF} {d}, {a(VF(n),4)}, {v(Preg(par ^ 1, qt), 4)}, {d}")
        N = len(mf); npv = N - nqk
        first = {}
        head = {g: [] for g in range(N)}
        tail = {g: [] for g in range(N)}
        before = []; after = []
        bar = (which == 1 or mode is not None) and not last
        spl = mode in ('t1', 't2', 'x')
        def rV(n): return rdV(which, n) if not spl else f"ds_read_b128 {a(VF(n),4)}, {v(vV)} offset:{STG + (8192 if mode == 't2' else 0) + n*1024}"
        vfix = {}
        dg = list(dgaps)[:len(dma)]
        assert len(dg) == len(dma)
        def place_reads(g, items, stride):
            for x in items:
                while g in dg or head[g]: g += 1
                head[g].append((4, x)); g += stride
            return g
        if pv:
            if nqk: place_reads(1, [rV(n) for n in range(8)], 3 if nqk > 16 else 1)
            else: before += [rV(n) for n in range(8)]
        if xr: place_reads(1, xr, 2)
        midw = (f"s_waitcnt vmcnt({vmw}) lgkmcnt(0)" if bar and vmw is not None else "s_waitcnt lgkmcnt(0)")
        rot = [f"s_add_u32 {s(sMK)}, {s(sC1)}, {s(sW4)}", f"s_add_u32 {s(sC1)}, {s(sC1)}, {SLOT}", f"s_cmp_ge_u32 {s(sC1)}, {5*SLOT}\ns_cselect_b32 {s(sC1)}, 0, {s(sC1)}"]
        rotv = [f"v_add_u32 {v(vKV)}, {s(sC1)}, {v(vL16)}"]
        nxt = [] if last else [rdK(0 if spl else which ^ 1, a_) for a_ in range(8)]
        if spl:
            rot = [rot[1], f"s_cmp_ge_u32 {s(sC1)}, {5*SLOT}\ns_cselect_b32 {s(sC1)}, {s(sP8)}, {s(sC1)}"]
            if mode != 't1': rotv = [f"v_mov_b32 {v(vV)}, {v(vKV)}"] + rotv
        if mode == 'tr': rotv = [f"v_add_u32 {v(vV)}, {s(sC1)}, {v(vL16)}", f"v_add_u32 {v(vKV)}, {s(sP8)}, {v(vV)}"]
        for g in dg: first[g] = None
        posts = []
        for (pre, ins, post), g in zip(dma, dg):
            if pre:
                assert g - 1 not in first
                first[g - 1] = pre
            if post: posts.append((g + 1, post))
        def put_first(g, x, limit):
            while g in first and g < limit: g += 1
            assert g < limit, (x, g, limit)
            first[g] = x
            return g
        if npv:
            if nqk:
                assert nqk - 1 not in first
                first[nqk - 1] = midw
            else: before.append(midw)
            g0 = nqk
            if bar:
                head[nqk].append((8, "s_barrier")); first[nqk] = None
                if 'atp' in abl:
                    first[nqk - 1] = f"s_memtime {s(sStamp,2)}\n" + midw
                    head[nqk].append((12, f"s_lshr_b32 {s(sStamp+1)}, {s(sAbs)}, 1\ns_add_u32 {s(sStamp+1)}, {s(sStamp+1)}, 16\nv_cmp_eq_u32 vcc, {s(sStamp+1)}, {v(vLane)}\nv_mov_b32 {v(T+15)}, {s(sStamp)}\ns_nop 0\nv_cndmask_b32 {v(vStamp)}, {v(vStamp)}, {v(T+15)}, vcc"))
                g0 = nqk + 1
                assert mode or not any(p_[0] for p_ in dma)
                g = 0
                for x in rot: g = put_first(g, x, nqk - 2) + 1
                vfix[nqk - 1] = list(rotv)
                if mode == 'tr': put_first(nqk + 1, f"s_add_u32 {s(sC1)}, {s(sC1)}, {s(sP8)}", N)
            if nxt:
                place_reads(g0, nxt[:4], 3 if npv > 16 else 2)
                for x, g in zip(nxt[4:], [g for g in range(N - 7, N - 1) if g not in dg][-4:]):
                    assert not head[g]
                    head[g].append((4, x))
                assert N - 1 not in first
                first[N - 1] = "s_waitcnt lgkmcnt(4)"
        else:
            after += [midw] + (["s_barrier"] + rot + rotv if bar else []) + nxt + ["s_waitcnt lgkmcnt(0)"]
        if nqk:
            g = nqk // 2 - 1
            while g in first: g -= 1
            nrd = sum(1 for gg in range(g) for c, t_ in head[gg] if t_ and t_.startswith('ds_read'))
            first[g] = f"s_waitcnt lgkmcnt({nrd})"
        for (pre, ins, post), g in zip(dma, dg): head[g].append((8, ins))
        for g, x in posts: put_first(g, x, N)
        if sm and not last:
            gg = put_first(0, f"s_add_u32 {s(sAbs)}, {s(sAbs)}, 1", N) + 1 if spl else 0
            gg = put_first(gg, f"s_bitcmp1_b64 {s(sVis,2)}, {s(sAbs)}\ns_cselect_b32 {s(sThC)}, -1.0, {s(sThr)}", N)
            head[gg].insert(0, (4, None))
            put_first(gg + 1, f"s_add_u32 {s(sAbs)}, {s(sAbs)}, 1", N)
        ops = []
        def op(name, pr, cost, ins, deps=(), trans=False): ops.append(dict(id=name, pr=pr, cost=cost, ins=ins, deps=set(deps), trans=trans))
        seq = [(qt, n) for qt in sm for n in range(8)]
        for idx, (qt, n) in enumerate(seq):
            Sq = Sreg(par, qt); Pq = Preg(par, qt)
            if n == 0: op(('l', qt), idx + 3, 4, f"v_add_f32 {v(vL+qt)}, {v(vL+qt)}, {v(TS(qt))}")
            deps = [('c', seq[idx - 8][0], n // 2)] if idx >= 8 else []
            op(('e', qt, n), idx, 8, f"v_exp_f32 {v(vE + n)}, {v(Sq+n)}", deps, True)
            if n & 1: op(('c', qt, n // 2), idx + 1.5, 4, f"v_cvt_pk_bf16_f32 {v(Pq + n//2)}, {v(vE + n-1)}, {v(vE + n)}", [('e', qt, n - 1), ('e', qt, n)])
        thr = sThr if last else sThC
        fin = []
        if len(sm) == 4:
            fin = [f"v_max3_f32 {v(vChk)}, {v(TS(0))}, {v(TS(1))}, {v(TS(2))}", f"v_max_f32 {v(vChk)}, {v(vChk)}, {v(TS(3))}"]
        elif sm:
            fin = [f"v_max_f32 {v(vChk)}, {v(TS(0))}, {v(TS(1))}"]
        if sm: fin.append(f"v_cmp_nge_f32 vcc, {s(thr)}, {v(vChk)}")
        ops.sort(key=lambda o: o['pr'])
        done = set(); lasttrans = None
        fixedc = [sum(x[0] for x in head[g]) + 4 * len(vfix.get(g, [])) for g in range(N)]
        NV = max(N - RESV, 1)
        NG = NV + max(len(sm) - 1, 0)
        tot = sum(o['cost'] for o in ops) + sum(fixedc[:NV])
        for t_ in before: k(t_)
        cum = 0; gi = 0
        pend = list(sm)
        cdone = {}
        lastsum = None
        def nstates(since):
            n = 0
            for ln in k.lines[since:]:
                ln = ln.strip()
                n += int(ln.split()[1]) + 1 if ln.startswith("s_nop") else 1
            return n
        def fill(used, force):
            nonlocal cum, gi, lasttrans
            gi += 1
            target = tot * gi / NG
            while True:
                ready = [o for o in ops if o['id'] not in done and o['deps'] <= done and (o['trans'] or lasttrans not in o['deps'])]
                if not ready:
                    if force and len(done) < len(ops): k("s_nop 0"); lasttrans = None; continue
                    break
                if not force:
                    room = max(CAP - used, 4 * int((target - cum + 2) // 4))
                    if used >= CAP and cum + 2 >= target: break
                    fit = [o for o in ready if o['cost'] <= room]
                    if not fit:
                        if used >= CAP or cum >= target: break
                        fit = ready
                    o = fit[0]
                else: o = ready[0]
                k(o['ins']); done.add(o['id']); used += o['cost']; cum += o['cost']
                lasttrans = o['id'] if o['trans'] else None
                if o['id'][0] == 'c': cdone[o['id'][1]] = len(k.lines)
        def try_sum(force=False):
            nonlocal lastsum, lasttrans
            while pend and all(('c', pend[0], j) in done for j in range(4)) and ('l', pend[0]) in done:
                gap_ = len(k.lines) - cdone[pend[0]]
                if gap_ < 2:
                    if not force: return
                    k(f"s_nop {1 - gap_}")
                qt = pend.pop(0)
                k(f"{MF} {v(TS(qt),4)}, {v(vOne,4)}, {v(Preg(par, qt),4)}, 0"); lasttrans = None
                lastsum = len(k.lines)
                if pend: fill(0, False)
        for g in range(N):
            k(mf[g]); lasttrans = None
            if first.get(g): k(first[g])
            for c, t_ in head[g]:
                if t_: k(t_)
            for t_ in vfix.get(g, []): k(t_)
            cum += fixedc[g]
            if g < NV: fill(fixedc[g], g == NV - 1)
            if g < N - 1: try_sum(force=(g >= NV - 1))
            if fin and not pend and g < N - 1:
                if g == N - 2:
                    gap_ = nstates(lastsum)
                    if gap_ < 8: k(f"s_nop {7 - gap_}")
                    for t_ in fin: k(t_)
                    fin = []
                elif nstates(lastsum) >= 8:
                    for _ in range(min(len(fin), (CAP - fixedc[g]) // 4)): k(fin.pop(0))
                elif k.lines[-1].strip().startswith("v_mfma") and nstates(lastsum) < 8: k("s_nop 2")
                elif fixedc[g] <= 4 and nstates(lastsum) < 8: k("s_nop 0")
        assert len(done) == len(ops) and not pend
        for t_ in after: k(t_)
        after = []
        assert not fin
        if sm:
            if loop:
                k(f"s_cbranch_vccz {loop}")
                slow_path(par, sm, evs)
                k(f"s_cmp_lg_u32 {s(sAbs)}, {s(sE+exit_e)}\ns_cbranch_scc1 {loop}")
            else:
                st_, rt = k.newlab('stub'), k.newlab('ret')
                k(f"s_cbranch_vccnz {st_}"); k.label(rt)
                stubs.append((st_, rt, par, sm, evs))

    def mloc(i): return f"{v(vTB + (i >> 3))} offset:{((i >> 2) & 1) * STG + (i & 3) * 1024}"
    def epilogue(st, extra=()):
        extra = list(extra)
        k.c(f"epilogue set {st}")
        R = vE; X = 160
        if KS and st == 0:
            for i in range(3): k(f"v_xor_b32 {v(vTB+i)}, 4096, {v(vTB+i)}")
            for j in range(2): k(f"v_add_f32 {v(X+4+j)}, {v(vL+j)}, {v(TS(j))}")
            k("s_waitcnt lgkmcnt(0)\ns_barrier")
            k(f"ds_read_b128 {v(X,4)}, {v(vTB+2)}")
            rd = [f"ds_read_b128 {v(64+4*i,4)}, {mloc(i)}" for e in range(4) for j in range(2) for i in (8*j+2*e, 8*j+2*e+1)]
            for x in rd[:14]: k(x)
            k("s_waitcnt lgkmcnt(14)")
            for j in range(2): k(f"v_max_f32 {v(X+6+j)}, {v(vD+j)}, {v(X+2+j)}")
            for j in range(2): k(f"v_sub_f32 {v(X+8+j)}, {v(vD+j)}, {v(X+6+j)}\nv_sub_f32 {v(X+10+j)}, {v(X+2+j)}, {v(X+6+j)}")
            for j in range(4): k(f"v_exp_f32 {v(X+8+j)}, {v(X+8+j)}")
            for x in rd[14:]: k(x)
            for j in range(2): k(f"v_mul_f32 {v(X+4+j)}, {v(X+4+j)}, {v(X+8+j)}")
            for j in range(2): k(f"v_fma_f32 {v(X+4+j)}, {v(X+j)}, {v(X+10+j)}, {v(X+4+j)}")
            for j in range(2): k(f"v_rcp_f32 {v(X+4+j)}, {v(X+4+j)}")
            k("s_nop 0")
            for j in range(2): k(f"v_mul_f32 {v(R+2*j)}, {v(X+8+j)}, {v(X+4+j)}\nv_mul_f32 {v(R+4+2*j)}, {v(X+10+j)}, {v(X+4+j)}")
        else:
            for j in range(2): k(f"v_add_f32 {v(R+j)}, {v(vL+2*st+j)}, {v(TS(2*st+j))}")
            if KS:
                k(f"v_add_u32 {v(vChk)}, {s(sMK)}, {v(vL16)}\nv_mov_b64 {v(vD,2)}, 0\nv_mov_b64 {v(vD+2,2)}, 0\nds_write_b32 {v(vChk)}, {v(Nreg(0))}\nds_write_b32 {v(vChk)}, {v(Nreg(1))} offset:4")
                k(f"v_mov_b64 {v(vL+2,2)}, 0\nv_mov_b32 {v(TS(2))}, 0\nv_mov_b32 {v(TS(3))}, 0")
            else: k("s_nop 3")
            k(f"v_rcp_f32 {v(R+2)}, {v(R+1)}\nv_rcp_f32 {v(R)}, {v(R)}")
        k(f"s_lshl_b32 {s(t0)}, {s(sQ+st)}, 10\ns_add_u32 {s(t0)}, {s(t0)}, {s(sLo+2)}\ns_add_u32 {s(t0)}, {s(t0)}, {WS_CTX}")
        for e in range(4):
            for j in range(2):
                b = T + 8 * j
                for i in range(8): k(f"v_accvgpr_read_b32 {v(b+i)}, {a(Oreg(2*st+j, 2*e) + i)}")
                if KS and st == 1:
                    for i in range(2): k(f"{MF} {a(Oreg(2+j, 2*e+i), 4)}, {v(vD,4)}, {v(vOne,4)}, 0")
                for i in range(0, 8, 2): k(f"v_pk_mul_f32 {v(b+i,2)}, {v(b+i,2)}, {v(R+2*j,2)} op_sel_hi:[1,0]")
                if KS and st == 0:
                    k(f"s_waitcnt lgkmcnt({14 - 2*(2*e+j)})")
                    for i in range(0, 8, 2): k(f"v_pk_fma_f32 {v(b+i,2)}, {v(64+32*j+8*e+i,2)}, {v(R+4+2*j,2)}, {v(b+i,2)} op_sel_hi:[1,0,1]")
                for i in range(4): k(f"v_cvt_pk_bf16_f32 {v(b+i)}, {v(b+2*i)}, {v(b+2*i+1)}")
                k(f"buffer_store_dwordx4 {v(b,4)}, {v(vL16)}, {s(srdO,4)}, {s(t0)} offen offset:{j*1024}{sfx}")
                if extra: k(extra.pop(0)[1])
            k(f"s_add_u32 {s(t0)}, {s(t0)}, 131072")
            if KS and st == 1 and e == 1:
                k(f"v_xor_b32 {v(vChk)}, 4096, {v(vChk)}\ns_waitcnt lgkmcnt(0)\ns_barrier\nds_read_b32 {v(Nreg(2))}, {v(vChk)}\nds_read_b32 {v(Nreg(3))}, {v(vChk)} offset:4")
        if KS and st == 1:
            k("s_waitcnt vmcnt(8) lgkmcnt(0)")
            for qt in (2, 3): k(f"v_mov_b32 {v(Nreg(qt)+1)}, {v(Nreg(qt))}")
            for qt in (2, 3):
                for i in range(2, 8, 2): k(f"v_mov_b64 {v(Nreg(qt)+i,2)}, {v(Nreg(qt),2)}")
        for x in extra: k(x[1])

    G = dma_group(); LL = local_loads()
    k.c("head")
    k("s_waitcnt lgkmcnt(0)")
    import re as _re
    ini = []
    for txt in INI:
        cur = []
        for ln_ in txt.split("\n"):
            keep = cur and (ln_.startswith(("s_cselect", "s_addc", "v_cndmask", "s_nop")) or cur[-1].startswith(("s_cmp", "v_cmp", "s_nop")) or any(x.startswith("s_cmp") for x in cur) and "s_cselect" in txt[txt.index(ln_):])
            if cur and not keep: ini.append(cur); cur = []
            cur.append(ln_)
        ini.append(cur)
    for i, m_ in enumerate(qk_mfmas(0, AB)):
        k(_re.sub(r", v\[1[6-9]\d:1[6-9]\d\]$", ", 0", m_))
        n_ = 0
        if i % 4 == 1: emit_group([stash_item(i // 4)]); n_ = 3
        if 16 <= i < 20: k(rdK(1, i - 16)); n_ += 1
        while ini and n_ < 4:
            p_ = ini.pop(0); k("\n".join(p_)); n_ += len(p_)
    for a_ in range(4, 8): k(rdK(1, a_))
    for p_ in ini: k("\n".join(p_))
    k(f"s_mov_b32 {s(sAbs)}, 1\ns_nop 3")
    lz = k.newlab('z')
    k(f"s_cmp_lg_u32 {s(sE)}, 0\ns_cbranch_scc1 {lz}")
    for r_ in range(4):
        k(f"v_add_f32 {v(Sreg(0,2)+r_)}, {v(Sreg(0,2)+r_)}, {v(vTB+r_)}\nv_mov_b32 {v(Sreg(0,2)+4+r_)}, {v(vNinf)}\nv_add_f32 {v(Sreg(0,3)+4+r_)}, {v(Sreg(0,3)+4+r_)}, {v(vTB+r_)}")
    k.label(lz)
    for j0, j1, j2 in ((0, 1, 2), (None, 3, 4), (None, 5, 6)):
        for qt in AB: k(f"v_max3_f32 {v(T+qt)}, {v(Sreg(0,qt)) if j0 == 0 else v(T+qt)}, {v(Sreg(0,qt)+j1)}, {v(Sreg(0,qt)+j2)}")
    for qt in AB: k(f"v_max_f32 {v(T+qt)}, {v(T+qt)}, {v(Sreg(0,qt)+7)}")
    xlane([T + q_ for q_ in AB], [T + 4 + q_ for q_ in AB], "v_max_f32")
    for qt in AB:
        k(f"v_sub_f32 {v(Nreg(qt))}, 0, {v(T+qt)}\nv_sub_f32 {v(Nreg(qt)+1)}, 0, {v(T+qt)}")
    for qt in AB:
        for i in range(2, 8, 2): k(f"v_mov_b64 {v(Nreg(qt)+i,2)}, {v(Nreg(qt),2)}")
    for qt in AB:
        for i in range(0, 8, 2): k(f"v_pk_add_f32 {v(Sreg(0,qt)+i,2)}, {v(Sreg(0,qt)+i,2)}, {v(Nreg(qt),2)}")
    events((0, 1))
    if LT: k(f"v_lshrrev_b32 {v(vTo)}, {LSH}, {v(vLane)}\nv_lshlrev_b32 {v(vTo)}, 7, {v(vTo)}\nv_add_u32 {v(vTo)}, {s(sTo)}, {v(vTo)}")
    k("s_waitcnt lgkmcnt(0)")
    step(1, AB, AB, (), dma=[stash_item(m) for m in range(8, 16)], dgaps=(2, 5, 9, 12, 17, 20, 23, 26), evs=(0, 1), vmw=48)
    ST.stamp(12); dbgmax(2, True)
    Ld = k.newlab('dual'); align(); k.label(Ld)
    TL = [(None, f"buffer_load_dword {v(vDm2)}, {v(vTo)}, {s(srdF,4)}, 0 offen\nv_add_u32 {v(vTo)}, {GB}, {v(vTo)}", None)] if LT else []
    step(0, AB, AB, AB, dma=G[:5], dgaps=(5, 18, 27, 43, 52), evs=(0, 1)); step(1, AB, AB, AB, dma=G[5:] + TL, dgaps=(6, 18, 27, 47), vmw=24 + 3 * len(TL), loop=Ld, evs=(0, 1, 6) if KS else (0, 1, 3, 6), exit_e=2)
    if KS:
        QP = [(None, f"buffer_load_dwordx4 {a(Qreg(qt, e), 4)}, {v(vL16)}, {s(srdO,4)}, {s(t2 + qt - 2)} offen offset:{e*1024} sc1", None) for qt in (2, 3) for e in range(4)]
        QP[0] = (f"s_xor_b32 {s(t2)}, {s(sQ)}, 2\ns_lshl_b32 {s(t2)}, {s(t2)}, 12\ns_add_u32 {s(t2)}, {s(t2)}, {s(sLo+2)}", QP[0][1], f"s_add_u32 {s(t3)}, {s(t2)}, 4096")
        assert WS_QB == 0
        step(0, A_, AB, AB, dma=G[:5], dgaps=(3, 11, 21, 31, 41)); step(1, A_, A_, AB, dma=G[5:] + QP, dgaps=(3, 8, 13, 19, 22, 25, 28, 31, 34, 37, 40), mode='tr')
    else:
        step(0, A_, AB, AB, dma=G[:5], dgaps=(3, 11, 21, 31, 41), evs=(3, 4)); step(1, A_, A_, AB, dma=G[5:], dgaps=(3, 8, 13), evs=(3, 4, 6))
    epilogue(1)
    def ctx_flag(dst, sn): k(f"s_lshl_b32 {s(dst)}, {s(sn)}, 5\ns_add_u32 {s(dst)}, {s(dst)}, {s(sh)}\ns_lshl_b32 {s(dst)}, {s(dst)}, 3\ns_add_u32 {s(dst)}, {s(dst)}, {F_CTX - 256}")
    ctx_flag(sPf, snB)
    ST.stamp(13)
    Ls = k.newlab('single'); Lsx = k.newlab('singlex')
    if EEX: k(f"s_cmp_eq_u32 {s(sAbs)}, {s(sE+5)}\ns_cbranch_scc1 {Lsx}")
    if KS:
        G2 = list(G)
        G2[4] = (G[4][0], G[4][1], f"s_add_u32 {s(sMK)}, {s(sMK)}, {SLOT}")
        G2[5] = (None, G[5][1], f"s_cmp_ge_u32 {s(sMK)}, {5*SLOT}\ns_cselect_b32 {s(sMK)}, {s(sW4)}, {s(sMK)}")
        XG = tuple(int(x) for x in os.environ.get('XG', '5,14,21,27,38,44,50,55').split(','))
        xw = 8 + sum(g < 31 for g in XG)
        Le_ = k.newlab('entry')
        step(0, AB, A_, A_, mode='t1', vmw=None, evs=(3, 4, 6))
        step(1, AB, AB, A_, dma=G2, dgaps=(2, 8, 13, 19, 24, 28, 36, 40), mode='t2', vmw=None, evs=(3, 4))
        k(f"s_branch {Le_}")
        align()
        k.label(Ls)
        step(1, AB, AB, AB, dma=G2, dgaps=XG, mode='x', vmw=xw, evs=(3, 4))
        k.label(Le_)
        step(0, AB, AB, AB, dma=G2, dgaps=XG, mode='x', vmw=xw, loop=Ls, evs=(3, 4, 6), exit_e=5)
        k(f"s_sub_u32 {s(t0)}, {s(sC1)}, {s(sP8)}")
        for i in range(3): k(f"s_add_u32 {s(t0)}, {s(t0)}, {SLOT}\ns_cmp_ge_u32 {s(t0)}, {5*SLOT}\ns_cselect_b32 {s(t0)}, 0, {s(t0)}\nv_add_u32 {v(vTB+i)}, {s(t0)}, {v(vDma)}")
    else:
        align()
        k.label(Ls)
        step(0, A_, A_, A_, dma=G[:5], dgaps=(2, 10, 14, 19, 28), evs=(3, 4)); step(1, A_, A_, A_, dma=G[5:] + (TL if LT2 else []), dgaps=(4, 9, 13, int(os.environ.get('LG', '22'))), vmw=27 if LT2 else 24, loop=Ls, evs=(3, 4, 6), exit_e=5)
    k.label(Lsx)
    ST.stamp(14); dbgmax(4, True)
    dW = srdK; dO = srdV; dX = srdS
    sIsA = CP['nk']; sMt3 = CP['swp']; sNt3 = CP['scale']; sXd3 = CP['Si']
    sXo = sKo; sWo = sVo; sRd = sC1; sWr = sMK; sDl = sThC; sCn = sAbs; sSl = CP['Sj']; sEv = sE; sLim = sE + 1; sXb = sE + 2; sPo = sE + 3; sOb = sE + 4; sOs = sE + 5
    sXs3 = sL2; swm3 = sPB; swn3 = sSa
    cW = 16
    if 'oldmap' in abl:
        k(f"s_bfe_u32 {s(sIsA)}, s2, 0x10002\ns_xor_b32 {s(sIsA)}, {s(sIsA)}, 1\ns_bitcmp1_b32 s2, 1\ns_cselect_b32 {s(sMt3)}, {s(snA)}, {s(snB)}\ns_sub_u32 {s(sMt3)}, {s(sMt3)}, 1")
    else:
        k(f"s_bfe_u32 {s(sIsA)}, s2, 0x10002\ns_and_b32 {s(t0)}, s2, 7\ns_bitcmp1_b32 0x63, {s(t0)}\ns_cselect_b32 {s(sMt3)}, {s(snA)}, {s(snB)}\ns_sub_u32 {s(sMt3)}, {s(sMt3)}, 1")
    k(f"s_and_b32 {s(t0)}, s2, 1\ns_lshl_b32 {s(t0)}, {s(t0)}, 2\ns_bfe_u32 {s(t1)}, s2, 0x20003\ns_add_u32 {s(sNt3)}, {s(t0)}, {s(t1)}")
    k(f"v_and_b32 {v(vFo)}, 31, {v(vLane)}\nv_lshlrev_b32 {v(vFo)}, 3, {v(vFo)}\ns_lshl_b32 {s(sXs3)}, {s(sMt3)}, 8\ns_add_u32 {s(sXs3)}, {s(sXs3)}, {WS_FLAG + F_CTX}")
    rdy_load = f"buffer_load_dwordx2 {v(vFlag,2)}, {v(vFo)}, {s(srdO,4)}, {s(sXs3)} offen sc1"
    k(rdy_load)
    LLATE = 'llate' in abl
    def xbar():
        k("s_nop 1")
        if EEX:
            lb = k.newlab('xb')
            k(f"s_cmp_ge_u32 {s(sw)}, 2\ns_cbranch_scc1 {lb}\ns_waitcnt vmcnt(24)\ns_barrier")
            k.label(lb)
    if KS:
        step(1, (), AB, AB, last=True, mode='x', xr=[f"ds_read_b128 {a(KF(n),4)}, {v(vKV)} offset:{STG + n*1024}" for n in range(8)])
        k("s_waitcnt vmcnt(1) lgkmcnt(0)")
        fl_ = [x[1] for x in LL]
        fl_ += [f"v_add_f32 {v(vE)}, {v(vL+2)}, {v(TS(2))}\nv_add_f32 {v(vE+1)}, {v(vL+3)}, {v(TS(3))}\nv_mov_b64 {v(vE+2,2)}, {v(vD+2,2)}"]
        wo = []
        for pv in ((2, 3), (0, 1)):
            for n in range(8):
                for qt in (pv if n % 2 == 0 else pv[::-1]):
                    d = a(Oreg(qt, n), 4)
                    k(f"{MF} {d}, {a(KF(n),4)}, {v(Preg(0, qt), 4)}, {d}")
                    if qt >= 2:
                        k(fl_.pop(0))
                        adr, off = mloc((qt - 2) * 8 + n).split()
                        wo.append(f"ds_write_b128 {adr}, {d} {off}")
                    else: k(wo.pop(0))
        k(f"ds_write_b128 {v(vTB+2)}, {v(vE,4)}")
        assert not fl_ and not wo
    elif LLATE:
        step(0, (), A_, A_, last=True); k("s_nop 1"); step(1, (), (), A_, last=True)
    else:
        step(0, (), A_, A_, last=True, dma=LL[:7], dgaps=(0, 2, 4, 6, 8, 10, 12)); xbar(); step(1, (), (), A_, last=True, dma=LL[7:], dgaps=(0, 2, 4, 6, 8, 10, 12, 14))
    epilogue(0)
    k(f"s_lshr_b32 {s(swm3)}, {s(sw)}, 1\ns_and_b32 {s(swn3)}, {s(sw)}, 1")
    k(f"s_mul_i32 {s(t0)}, {s(sIsA)}, {NC*64*2048}\ns_lshl_b32 {s(sWo)}, {s(sNt3)}, 8\ns_add_u32 {s(sWo)}, {s(sWo)}, {s(t0)}")
    E_ = vE
    k(f"v_lshrrev_b32 {v(E_)}, 4, {v(vLane)}\ns_lshl_b32 {s(t0)}, {s(sw)}, 4\nv_add_u32 {v(E_+1)}, {s(t0)}, {v(E_)}\nv_lshlrev_b32 {v(E_+1)}, 11, {v(E_+1)}")
    k(f"v_lshlrev_b32 {v(E_)}, 1, {v(E_)}\nv_and_b32 {v(E_+2)}, 15, {v(vLane)}\nv_xor_b32 {v(E_)}, {v(E_)}, {v(E_+2)}")
    for j in range(4):
        k(f"v_xor_b32 {v(E_+2)}, {8*(j&1)}, {v(E_)}\nv_lshl_add_u32 {v(cW+j)}, {v(E_+2)}, 4, {v(E_+1)}")
        if j: k(f"v_add_u32 {v(cW+j)}, {j*(8192-1024)}, {v(cW+j)}")
    k(f"s_mov_b32 {s(dW)}, {s(sPw)}\ns_mov_b32 {s(dW+1)}, {s(sPw+1)}\ns_mov_b32 {s(dW+2)}, {8*MB}\ns_mov_b32 {s(dX+2)}, {WS_SIZE}")
    k(f"s_mov_b32 {s(dO)}, {s(sOut)}\ns_mov_b32 {s(dO+1)}, {s(sOut+1)}\ns_mov_b32 {s(dO+2)}, {2048*2048*2}")
    k(f"s_lshl_b32 {s(t0)}, {s(sMt3)}, 13\ns_lshl_b32 {s(t1)}, {s(swn3)}, 12\ns_add_u32 {s(t0)}, {s(t0)}, {s(t1)}\ns_lshl_b32 {s(t1)}, {s(swm3)}, 17\ns_add_u32 {s(sXb)}, {s(t0)}, {s(t1)}")
    k(f"s_mul_i32 {s(t0)}, {s(sIsA)}, {NC*262144}\ns_add_u32 {s(sXo)}, {s(sXb)}, {s(t0)}\ns_add_u32 {s(sXo)}, {s(sXo)}, {WS_CTX}\ns_add_u32 {s(sXb)}, {s(sXb)}, {WS_OA}")
    def d3x(j): return f"buffer_load_dwordx4 {v(vL16)}, {s(dX,4)}, {s(sXo)} offen offset:{j*1024}{ksc} lds"
    def d3w(j): return f"buffer_load_dwordx4 {v(cW+j)}, {s(dW,4)}, {s(sWo)} offen offset:{j*1024}{wsc} lds"
    def lim_eval():
        k(f"v_cmp_ne_u64 {s(sM0,2)}, {s(sTok,2)}, {v(vFlag,2)}\ns_mul_i32 {s(t1)}, {s(sIsA)}, {NC >> 1}\ns_nop 2\ns_lshr_b32 {s(t0)}, {s(sM0)}, {s(t1)}\ns_ff1_i32_b32 {s(t0)}, {s(t0)}")
        k(f"s_lshl_b32 {s(sLim)}, {s(t0)}, 1\ns_mul_i32 {s(t1)}, {s(sIsA)}, {NC & 1}\ns_sub_i32 {s(sLim)}, {s(sLim)}, {s(t1)}\ns_cmp_lt_i32 {s(t0)}, 0\ns_cselect_b32 {s(sLim)}, 1000, {s(sLim)}")
    def lim_update(sneed):
        Lsp = k.newlab('spin'); Lok = k.newlab('ok')
        k(f"s_mov_b32 s3, {SPIN}")
        k.label(Lsp)
        k(f"{rdy_load}\ns_waitcnt vmcnt(0)")
        lim_eval()
        k(f"s_cmp_gt_i32 {s(sLim)}, {sneed}\ns_cbranch_scc1 {Lok}\ns_sub_u32 s3, s3, 1\ns_cbranch_scc1 {Lok}\ns_sleep 4\ns_branch {Lsp}")
        k.label(Lok)
    def x_pre():
        for st in range(NS3):
            k(f"s_add_u32 m0, {s(sW4)}, {st*SLOT}\ns_nop 0")
            for j in range(4): k(d3x(j))
            k(f"s_add_u32 {s(sXo)}, {s(sXo)}, 262144")
    cx = 6; cw = 12; cSt = 7
    def acc3(nb, mb): return 64 + (((nb >> 1) * 4 + mb) * 2 + (nb & 1)) * 4
    def fX(st, mb): return st * 32 + mb * 4
    def fW(st, nb): return st * 32 + 16 + nb * 4
    PART = 128
    k(f"s_lshl_b32 {s(t0)}, {s(swm3)}, 12\nv_add_u32 {v(cx)}, {s(t0)}, {v(vL16)}")
    k(f"v_lshrrev_b32 {v(T)}, 2, {v(vLane)}\nv_lshlrev_b32 {v(T)}, 8, {v(T)}\nv_and_b32 {v(T+1)}, 3, {v(vLane)}\nv_lshl_add_u32 {v(T)}, {v(T+1)}, 3, {v(T)}\nv_add_u32 {v(T)}, 16384, {v(T)}")
    k(f"v_bfe_u32 {v(T+1)}, {v(vLane)}, 2, 3\ns_lshl_b32 {s(t0)}, {s(swn3)}, 2\nv_xor_b32 {v(T+1)}, {s(t0)}, {v(T+1)}")
    for nb in range(4):
        k(f"v_xor_b32 {v(T+2)}, {nb}, {v(T+1)}\nv_lshl_add_u32 {v(cw+nb)}, {v(T+2)}, 5, {v(T)}")
    k(f"v_and_b32 {v(T)}, 15, {v(vLane)}\nv_lshlrev_b32 {v(T)}, 12, {v(T)}\nv_lshlrev_b32 {v(T)}, {s(sIsA)}, {v(T)}")
    k(f"v_bfe_u32 {v(T+1)}, {v(vLane)}, 4, 1\nv_lshl_add_u32 {v(T)}, {v(T+1)}, 5, {v(T)}\nv_lshrrev_b32 {v(T+1)}, 5, {v(vLane)}\nv_lshl_add_u32 {v(cSt)}, {v(T+1)}, 4, {v(T)}")
    k(f"s_lshl_b32 {s(t0)}, {s(sMt3)}, 3\ns_lshl_b32 {s(t1)}, {s(swm3)}, 2\ns_add_u32 {s(t0)}, {s(t0)}, {s(t1)}")
    k(f"s_lshl_b32 {s(t1)}, {s(t0)}, 16\ns_add_u32 {s(t1)}, {s(t1)}, 2048")
    k(f"s_and_b32 {s(t2)}, {s(t0)}, 63\ns_lshl_b32 {s(t2)}, {s(t2)}, 17\ns_lshr_b32 {s(t3)}, {s(t0)}, 6\ns_lshl_b32 {s(t3)}, {s(t3)}, 12\ns_add_u32 {s(t2)}, {s(t2)}, {s(t3)}")
    k(f"s_cmp_eq_u32 {s(sIsA)}, 1\ns_cselect_b32 {s(sOb)}, {s(t2)}, {s(t1)}\ns_lshl_b32 {s(sOs)}, 0x10000, {s(sIsA)}")
    k(f"s_lshl_b32 {s(t2)}, {s(sNt3)}, 8\ns_lshl_b32 {s(t3)}, {s(swn3)}, 7\ns_add_u32 {s(sOb)}, {s(sOb)}, {s(t2)}\ns_add_u32 {s(sOb)}, {s(sOb)}, {s(t3)}")
    for i in range(0, 64, 2): k(f"v_mov_b64 {v(64+i,2)}, 0")
    local_pre()
    k(f"s_add_u32 {s(sWr)}, {s(sW4)}, {(NS3-1)*SLOT}\ns_mov_b32 {s(sRd)}, 0\ns_mov_b32 {s(sSl)}, {SLOT}\ns_mov_b32 {s(sCn)}, 0\ns_mov_b32 {s(sEv)}, 0")
    k("s_waitcnt vmcnt(0)\ns_barrier")
    ctx_flag(t1, snA); publish(t1, T + 12)
    Lpb = k.newlab('pb'); Lx3 = k.newlab('x3')
    k(f"s_cmp_eq_u32 {s(sPf)}, -1\ns_cbranch_scc1 {Lpb}")
    publish(sPf, T + 12)
    k.label(Lpb)
    ST.stamp(15)
    lim_eval()
    for st in range(NS3 - 1):
        k(f"s_add_u32 m0, {s(sW4)}, {st*SLOT + 16384}\ns_nop 0")
        for j in range(4): k(d3w(j))
        k(f"s_add_u32 {s(sWo)}, {s(sWo)}, {64*2048}")
    k(f"s_cmp_gt_i32 {s(sLim)}, {NS3-1}\ns_cbranch_scc1 {Lx3}")
    lim_update(str(NS3 - 1))
    k.label(Lx3)
    x_pre()
    k("s_waitcnt vmcnt(16)\ns_barrier")
    ST.stamp(2); dbgmax(6, True)
    def reads3(st, kk):
        o = []
        def rx(mb): o.append((('x', st, mb), f"ds_read_b128 {a(fX(st, mb), 4)}, {v(cx)} offset:{mb * 1024 + kk * 8192}"))
        def rw(nb):
            for t_ in range(2):
                o.append((('w', st, nb), f"ds_read_b64_tr_b16 {a(fW(st, nb) + 2 * t_, 2)}, {v(cw + nb)} offset:{(32 * kk + 16 * t_) * 256}"))
        rx(0); rw(0); rx(1); rx(2); rx(3); rw(1); rw(2); rw(3)
        return o
    CH3 = 'ch3' in abl
    if not CH3:
        for tag, ins in reads3(0, 0): k(ins)
    def pstore(b): return f"buffer_store_dwordx4 {v(PART+4*b,4)}, {v(vL16)}, {s(srdO,4)}, {s(sPo)} offen offset:{(b&3)*1024} sc1" + (f"\ns_add_u32 {s(sPo)}, {s(sPo)}, 4096" if b & 3 == 3 else "")
    def body3(stores=(), loop=False, xs=None, per=2, vm3=24):
        tr = LgkmTracker([tag for tag, _ in reads3(0, 0)])
        stores = list(stores)
        for ss in range(2):
            st = ss
            nxt = reads3(st ^ 1, ss ^ 1)
            rd_at = {(1 if ss else 0) + i: x for i, x in enumerate(nxt)}
            first = {}; fill = {g: [] for g in range(16)}
            if ss == 0:
                first[0] = f"s_add_u32 m0, {s(sWr)}, 16384"
                for j, g in enumerate((1, 5, 9, 13)): fill[g].append(d3w(j))
                first[2] = f"s_add_u32 {s(sWr)}, {s(sRd)}, {s(sW4)}"
                first[3] = f"s_add_u32 {s(sRd)}, {s(sRd)}, {SLOT}"
                first[4] = f"s_cmp_ge_u32 {s(sRd)}, {NS3*SLOT}"
                first[6] = f"s_cselect_b32 {s(sDl)}, {-(NS3-1)*SLOT & 0xffffffff}, {s(sSl)}"
                first[7] = f"s_cselect_b32 {s(sRd)}, 0, {s(sRd)}"
                fill[12].append(f"v_add_u32 {v(cx)}, {s(sDl)}, {v(cx)}\nv_add_u32 {v(cw)}, {s(sDl)}, {v(cw)}")
                first[14] = f"s_add_u32 {s(sWo)}, {s(sWo)}, {64*2048}"
                fill[14].append(f"v_add_u32 {v(cw+1)}, {s(sDl)}, {v(cw+1)}\nv_add_u32 {v(cw+2)}, {s(sDl)}, {v(cw+2)}")
                first[15] = f"s_mov_b32 m0, {s(sWr)}"
                fill[15].append(f"v_add_u32 {v(cw+3)}, {s(sDl)}, {v(cw+3)}")
                if stores: fill[11].append(stores.pop(0))
            else:
                for j, g in enumerate((1, 5, 9, 13)): fill[g].append(d3x(j))
                if stores: fill[11].append(stores.pop(0))
                first[12] = f"s_add_u32 {s(sCn)}, {s(sCn)}, 1"
                first[14] = f"s_add_u32 {s(sXo)}, {s(sXo)}, 262144" + (f"\ns_cmp_lt_u32 {s(sCn)}, {s(sEv)}" if loop else "")
            for i in range(16):
                nb, mb = i // 4, i % 4
                if ss == 1 and i == 0:
                    tr.q = []
                    k(f"s_waitcnt vmcnt({vm3}) lgkmcnt(0)")
                w = tr.need({('x', st, mb), ('w', st, nb)})
                if w: k(w)
                d = v(acc3(nb, mb), 4)
                k(f"{MF} {d}, {a(fW(st, nb), 4)}, {a(fX(st, mb), 4)}, {d}")
                if ss == 1 and i == 0: k("s_barrier")
                if i in first: k(first[i])
                if i in rd_at:
                    tag, ins = rd_at[i]; k(ins); tr.issue(tag)
                for x in fill[i]: k(x)
                if xs:
                    for _ in range(per if not fill[i] else 1):
                        if xs: k(xs.pop(0))
    if CH3:
        def gX(mb, kk): return mb * 8 + kk * 4
        def gW(nb, kk): return 32 + nb * 8 + kk * 4
        def rX(mb): return [(('x', mb), f"ds_read_b128 {a(gX(mb, kk), 4)}, {v(cx)} offset:{mb * 1024 + kk * 8192}") for kk in range(2)]
        def rW(nb): return [(('w', nb), f"ds_read_b64_tr_b16 {a(gW(nb, kk) + 2 * t_, 2)}, {v(cw + nb)} offset:{(32 * kk + 16 * t_) * 256}") for kk in range(2) for t_ in range(2)]
        tail3 = rX(0) + rX(1) + rX(2) + rX(3)
        for tag, ins in rW(0) + rW(1) + tail3: k(ins)
        def body3(stores=(), loop=False, xs=None, per=2):
            tr = LgkmTracker([tag for tag, _ in tail3])
            stores = list(stores)
            rd = {}
            for i, x in enumerate(rW(2) + rW(3)): rd.setdefault(i, []).append(x)
            w01 = rW(0) + rW(1)
            for mb in range(4):
                base = 16 + 4 * mb
                rd.setdefault((17, 18, 21, 22)[mb], []).extend(w01[2 * mb:2 * mb + 2])
                x0, x1 = rX(mb)
                rd.setdefault(base + 3, []).append(x0); rd.setdefault(min(base + 4, 31), []).append(x1)
            first = {0: f"s_add_u32 m0, {s(sWr)}, 16384", 2: f"s_add_u32 {s(sWr)}, {s(sRd)}, {s(sW4)}", 3: f"s_add_u32 {s(sRd)}, {s(sRd)}, {SLOT}", 4: f"s_cmp_ge_u32 {s(sRd)}, {NS3*SLOT}",
                     6: f"s_cselect_b32 {s(sDl)}, {-(NS3-1)*SLOT & 0xffffffff}, {s(sSl)}", 7: f"s_cselect_b32 {s(sRd)}, 0, {s(sRd)}", 14: f"s_add_u32 {s(sWo)}, {s(sWo)}, {64*2048}", 15: f"s_mov_b32 m0, {s(sWr)}",
                     28: f"s_add_u32 {s(sCn)}, {s(sCn)}, 1", 30: f"s_add_u32 {s(sXo)}, {s(sXo)}, 262144" + (f"\ns_cmp_lt_u32 {s(sCn)}, {s(sEv)}" if loop else "")}
            fill = {g: [] for g in range(32)}
            for j, g in enumerate((1, 5, 9, 13)): fill[g].append(d3w(j)); fill[16 + g].append(d3x(j))
            fill[8].append(f"v_add_u32 {v(cx)}, {s(sDl)}, {v(cx)}\nv_add_u32 {v(cw)}, {s(sDl)}, {v(cw)}")
            fill[10].append(f"v_add_u32 {v(cw+1)}, {s(sDl)}, {v(cw+1)}\nv_add_u32 {v(cw+2)}, {s(sDl)}, {v(cw+2)}")
            fill[12].append(f"v_add_u32 {v(cw+3)}, {s(sDl)}, {v(cw+3)}")
            for g in (11, 14):
                if stores: fill[g].append(stores.pop(0))
            i = 0
            for rp in range(2):
                for mb in range(4):
                    for nb in (2 * rp, 2 * rp + 1):
                        for kk in range(2):
                            w = tr.need({('x', mb), ('w', nb)})
                            if i == 16:
                                tr.q = []
                                k(f"s_waitcnt vmcnt({8*(NS3-2)}) lgkmcnt(0)")
                            elif i == 0: k("s_waitcnt lgkmcnt(6)"); tr.q = tr.q[-6:]
                            elif w: k(w)
                            d = v(acc3(nb, mb), 4)
                            k(f"{MF} {d}, {a(gW(nb, kk), 4)}, {a(gX(mb, kk), 4)}, {d}")
                            if i == 16: k("s_barrier")
                            if i in first: k(first[i])
                            for tag, ins in rd.get(i, []): k(ins); tr.issue(tag)
                            for x in fill[i]: k(x)
                            if xs:
                                for _ in range(per if not fill[i] else 1):
                                    if xs: k(xs.pop(0))
                            i += 1
    L3 = k.newlab('l3'); L3e = k.newlab('l3e'); L3x = k.newlab('l3x'); L3c = k.newlab('l3c'); L3n = k.newlab('l3n')
    XS_ = local_stream(); nun = 0; polls = []
    while XS_:
        lp = k.newlab('lp'); lr = k.newlab('lr')
        k(f"s_cmp_gt_i32 {s(sLim)}, {nun + NS3}\ns_cbranch_scc0 {lp}"); k.label(lr)
        polls.append((lp, lr, nun + NS3))
        body3(xs=XS_, vm3=min(16 + 4 * nun, 24)); nun += 1
    OAP = nun + 4
    assert nun >= 3 and not CH3 and not LLATE
    k(f"s_branch {L3e}")
    for lp, lr, need in polls:
        k.label(lp); lim_update(str(need)); k(f"s_branch {lr}")
    align()
    k.label(L3)
    body3(loop=True)
    k(f"s_cbranch_scc1 {L3}")
    k.label(L3e)
    def pair_flag(dst): k(f"s_lshl_b32 {s(dst)}, {s(sMt3)}, 3\ns_add_u32 {s(dst)}, {s(dst)}, {s(sNt3)}\ns_lshl_b32 {s(dst)}, {s(dst)}, 7\ns_add_u32 {s(dst)}, {s(dst)}, {F_PAIR}")
    def part_addr(): k(f"s_lshl_b32 {s(t0)}, {s(sMt3)}, 3\ns_add_u32 {s(t0)}, {s(t0)}, {s(sNt3)}\ns_lshl_b32 {s(t0)}, {s(t0)}, 15\ns_lshl_b32 {s(t1)}, {s(sw)}, 13\ns_add_u32 {s(t0)}, {s(t0)}, {s(t1)}\ns_add_u32 {s(sPo)}, {s(t0)}, {WS_PART}")
    def all_ready(load):
        Lsp = k.newlab('spin'); Lok = k.newlab('ok')
        k(f"s_waitcnt vmcnt(16)\ns_mov_b32 s3, {SPIN}")
        k.label(Lsp)
        k(f"v_cmp_ne_u64 {s(sM0,2)}, {s(sTok,2)}, {v(vFlag,2)}\ns_nop 3\ns_cmp_eq_u64 {s(sM0,2)}, 0\ns_cbranch_scc1 {Lok}\ns_sub_u32 s3, s3, 1\ns_cbranch_scc1 {Lok}\ns_sleep 8\n{load}\ns_waitcnt vmcnt(0)\ns_branch {Lsp}")
        k.label(Lok)
    Lr = k.newlab('rdy')
    k(f"s_add_u32 {s(t2)}, {s(sCn)}, {NS3}\ns_cmp_gt_i32 {s(sLim)}, {s(t2)}\ns_cbranch_scc1 {Lr}")
    lim_update(s(t2))
    k.label(Lr)
    Lo1 = k.newlab('o1'); Lo2 = k.newlab('o2')
    k(f"s_mov_b32 {s(sEv)}, {OAP}\ns_cmp_lt_u32 {s(sCn)}, {OAP}\ns_cbranch_scc1 {L3n}\ns_cmp_eq_u32 {s(sCn)}, {OAP}\ns_cbranch_scc1 {Lo1}")
    k.label(Lo2)
    k(f"s_cmp_eq_u32 {s(sIsA)}, 0\ns_cbranch_scc1 {L3c}")
    oa_load = f"s_lshr_b32 {s(t0)}, {s(sMt3)}, 1\ns_lshl_b32 {s(t0)}, {s(t0)}, 8\ns_add_u32 {s(t0)}, {s(t0)}, {WS_FLAG + F_OA}\nbuffer_load_dwordx2 {v(vFlag,2)}, {v(vFo)}, {s(srdO,4)}, {s(t0)} offen sc1"
    def p_store():
        part_addr()
        k("s_nop 3")
        for i in range(32): k(f"v_cvt_pk_bf16_f32 {v(PART+i)}, {v(64+2*i)}, {v(65+2*i)}")
        for i in range(0, 64, 2): k(f"v_mov_b64 {v(64+i,2)}, 0")
        k("s_nop 1")
        for n in range(TR): body3([pstore(2 * n), pstore(2 * n + 1)])
    def p_pub(): pair_flag(t1); publish(t1, T + 12)
    def oa_pub():
        k(f"s_and_b32 {s(t1)}, s2, 7\ns_lshl_b32 {s(t1)}, {s(t1)}, 5\ns_lshr_b32 {s(t2)}, s2, 3\ns_add_u32 {s(t1)}, {s(t1)}, {s(t2)}\ns_lshl_b32 {s(t1)}, {s(t1)}, 3\ns_add_u32 {s(t1)}, {s(t1)}, {F_OA}")
        publish(t1, T + 12)
    EVP = [(NB - NS3 - 1, lambda: k(f"s_mov_b32 {s(sLim)}, 1000\n{oa_load}")),
           (NB - NS3, lambda: (k("s_waitcnt vmcnt(8)"), all_ready(oa_load), k(f"s_mov_b32 {s(sXo)}, {s(sXb)}"))),
           (NB - NS3 + 1, lambda: k(f"s_mov_b32 {s(dW)}, {s(sPw+2)}\ns_mov_b32 {s(dW+1)}, {s(sPw+3)}\ns_mov_b32 {s(dW+2)}, {2*MB}\ns_lshl_b32 {s(sWo)}, {s(sNt3)}, 8")),
           (NB, p_store), (NB + TR + 4, p_pub), (NP - NS3, lambda: k(f"s_mov_b32 {s(dX+2)}, 0")), (NP, None)]
    pf_load = lambda: (pair_flag(t1), k(f"s_add_u32 {s(sXs3)}, {s(t1)}, {WS_FLAG}"))
    pl = f"buffer_load_dwordx2 {v(vFlag,2)}, off, {s(srdO,4)}, {s(sXs3)} sc1"
    def c_take():
        all_ready(pl)
        part_addr()
        for b in range(8):
            k(f"buffer_load_dwordx4 {v(PART+4*b,4)}, {v(vL16)}, {s(srdO,4)}, {s(sPo)} offen offset:{(b&3)*1024} sc1")
            if b == 3: k(f"s_add_u32 {s(sPo)}, {s(sPo)}, 4096")
    EVC = [(NC - NS3 - 1, lambda: k(f"s_mov_b32 {s(sLim)}, 1000")),
           (NC - NS3, lambda: (k(f"s_mov_b32 {s(dX+2)}, 0"), pf_load(), k(pl))),
           (NC - NS3 + 1, lambda: k(f"s_mov_b32 {s(dW+2)}, 0")),
           (NC - 3, c_take), (NC, None)]
    for EV, lab in ((EVP, None), (EVC, L3c)):
        if lab: k.label(lab)
        k(f"s_mov_b32 {s(sEv)}, {EV[0][0]}\ns_cmp_lt_u32 {s(sCn)}, {EV[0][0]}\ns_cbranch_scc1 {L3n}")
        for i, (at, f_) in enumerate(EV):
            ln = k.newlab('n')
            if f_ is None:
                k(f"s_branch {L3x}")
                break
            k(f"s_cmp_lg_u32 {s(sCn)}, {at}\ns_cbranch_scc1 {ln}")
            f_()
            k(f"s_mov_b32 {s(sEv)}, {EV[i+1][0]}\ns_branch {L3}")
            k.label(ln)
    k.label(Lo1)
    oa_pub()
    k(f"s_branch {Lo2}")
    assert OAP < NB - NS3 - 1
    k.label(L3n)
    k(f"s_sub_u32 {s(t0)}, {s(sLim)}, {NS3}\ns_min_u32 {s(sEv)}, {s(sEv)}, {s(t0)}\ns_branch {L3}")
    k.label(L3x)
    ST.stamp(3); dbgmax(8, True)
    Lna = k.newlab('noadd')
    k(f"s_cmp_eq_u32 {s(sIsA)}, 1\ns_cbranch_scc1 {Lna}\ns_waitcnt vmcnt(0)")
    for i in range(32):
        k(f"v_lshlrev_b32 {v(160+2*i)}, 16, {v(PART+i)}\nv_and_b32 {v(161+2*i)}, 0xffff0000, {v(PART+i)}")
    for i in range(0, 64, 2): k(f"v_pk_add_f32 {v(64+i,2)}, {v(64+i,2)}, {v(160+i,2)}")
    k.label(Lna)
    for mb in range(4):
        for e in range(2):
            b = acc3(2 * e, mb)
            for i in range(4): k(f"v_cvt_pk_bf16_f32 {v(b+i)}, {v(b+2*i)}, {v(b+2*i+1)}")
        k("s_nop 1")
        for e in range(2):
            b = acc3(2 * e, mb)
            k(f"v_permlane16_swap_b32 {v(b)}, {v(b+2)}\nv_permlane16_swap_b32 {v(b+1)}, {v(b+3)}")
        for e in range(2):
            b = acc3(2 * e, mb)
            k(f"buffer_store_dwordx4 {v(b,4)}, {v(cSt)}, {s(dO,4)}, {s(sOb)} offen offset:{64*e} sc1")
        k(f"s_add_u32 {s(sOb)}, {s(sOb)}, {s(sOs)}")
    if stamps:
        k('s_waitcnt vmcnt(0)')
        ST.stamp(8); ST.stamp(9, real=True)
        ST.flush(srdO, sw, vT, vLane, base=0x100000)
    k.label(Lend)
    k("s_endpgm")
    for st_, rt, par, sm, evs in stubs:
        k.label(st_)
        slow_path(par, sm, evs)
        k(f"s_branch {rt}")
    k.lines += evool
    for st_, rt, target in calls:
        k.label(st_)
        k(f"s_call_b64 {s(sRa,2)}, {target}\ns_branch {rt}")

    for par, nset in Lrs:
        k.label(Lrs[(par, nset)])
        k("s_nop 15")
        for qt in AB[:nset]:
            Sq = Sreg(par, qt); So = Sreg(par ^ 1, qt); Pq = Preg(par, qt); N_ = Nreg(qt)
            k(f"v_max3_f32 {v(T)}, {v(Sq)}, {v(Sq+1)}, {v(Sq+2)}")
            for i in (3, 5): k(f"v_max3_f32 {v(T)}, {v(T)}, {v(Sq+i)}, {v(Sq+i+1)}")
            k(f"v_max3_f32 {v(T)}, {v(T)}, {v(Sq+7)}, 0")
            xlane([T], [T + 1], "v_max_f32")
            k(f"v_exp_f32 {v(T+1)}, -{v(T)}")
            for i in range(8): k(f"v_sub_f32 {v(Sq+i)}, {v(Sq+i)}, {v(T)}")
            for i in range(8): k(f"v_sub_f32 {v(So+i)}, {v(So+i)}, {v(T)}")
            for i in range(8): k(f"v_sub_f32 {v(N_+i)}, {v(N_+i)}, {v(T)}")
            k(f"v_mul_f32 {v(vL+qt)}, {v(vL+qt)}, {v(T+1)}")
            if KS: k(f"v_add_f32 {v(vD+qt)}, {v(vD+qt)}, {v(T)}")
            for i0 in range(0, 32, 8):
                for i in range(8): k(f"v_accvgpr_read_b32 {v(T+4+i)}, {a(Oreg(qt,0)+i0+i)}")
                for i in range(8): k(f"v_mul_f32 {v(T+4+i)}, {v(T+4+i)}, {v(T+1)}")
                for i in range(8): k(f"v_accvgpr_write_b32 {a(Oreg(qt,0)+i0+i)}, {v(T+4+i)}")
            for i in range(8): k(f"v_exp_f32 {v(T+4+i)}, {v(Sq+i)}")
            k("s_nop 0")
            for i in range(4): k(f"v_cvt_pk_bf16_f32 {v(Pq+i)}, {v(T+4+2*i)}, {v(T+5+2*i)}")
            k(f"s_nop 1\n{MF} {v(TS(qt),4)}, {v(vOne,4)}, {v(Pq,4)}, 0")
        k(f"s_nop 7\ns_setpc_b64 {s(sRa,2)}")
    if INL:
        starts = [x[0] for x in outl] + [Leps, Lepf, Lepl]
        pieces = {}; rest = []; cur = None
        for ln_ in ool:
            if ln_.endswith(":") and ln_[:-1] in starts: cur = ln_[:-1]; pieces[cur] = []
            (pieces[cur] if cur else rest).append(ln_)
        out_ = []
        for ln_ in k.lines:
            if ln_.startswith("@@"): out_ += pieces.pop(ln_[2:])
            elif ln_.strip().startswith(f"s_call_b64 {s(sRe,2)}, "):
                tg = ln_.split()[-1]; pc = pieces.pop(tg); le = tg + "_r"
                assert "s_setpc" in pc[-1]
                out_ += [x if "s_setpc" not in x else f"    s_branch {le}" for x in pc[:-1]] + [le + ":"]
            else: out_.append(ln_)
        assert not pieces
        k.lines = out_; ool = rest
    k.lines += ool + ool0
    code, desc = kernel_wrap(name, k.text(), 512, 102, 256)
    return code, desc, f"; @launch kernel={name} grid=(256,1,1) block=(256,1,1) lds={LDS_BYTES}"
```

```python
from asmlib import *
import math

XS = 32768
WBASE = 3 * XS
LDS_BYTES = 5 * XS
C_B = (128 ** -0.5) * math.log2(math.e)
C_A = (32 ** -0.5) * math.log2(math.e)
STG = 16384
SLOT = 32768
THR = float(2 ** 20)
CAP = 8
RESV = 4
U_PUB, U_POLL, U_CHK, U_MID, U_CP = 8, 20, 24, 16, 28
import os
ITEMS = {'7': [(12, 4), (9, 8), (11, 5), (10, 6), (15, 1), (14, 2), (13, 3), (16, 7)], '5': [(12, 4), (9, 8), (11, 6), (10, 7), (15, 1), (14, 2), (13, 3), (16, 5)],
         '6': [(12, 4), (9, 8), (11, 5), (10, 7), (15, 1), (14, 2), (13, 3), (16, 6)],
         '5b': [(9, 8), (11, 6), (12, 4), (10, 7), (15, 1), (14, 2), (13, 3), (16, 5)],
         '3': [(9, 8), (11, 6), (10, 7), (14, 2), (15, 1), (13, 4), (12, 5), (16, 3)],
         'x1': [(10, 6), (9, 8), (12, 3), (15, 1), (14, 2), (11, 7), (13, 4), (16, 5)],
         'x3': [(9, 8), (12, 4), (10, 6), (14, 2), (13, 3), (11, 7), (15, 1), (16, 5)],
         'x4': [(10, 6), (9, 8), (11, 5), (12, 4), (15, 1), (14, 2), (13, 3), (16, 7)],
         'x5': [(11, 5), (9, 8), (12, 3), (10, 7), (15, 1), (14, 2), (13, 4), (16, 6)],
         '1': [(9, 8), (11, 6), (10, 7), (12, 5), (15, 2), (14, 3), (13, 4), (16, 1)],
         '2': [(9, 8), (11, 6), (10, 7), (12, 5), (15, 1), (14, 3), (13, 4), (16, 2)],
         'p9': [(10, 7), (12, 5), (11, 6), (13, 4), (16, 1), (15, 2), (14, 3), (9, 8)],
         'y2': [(12, 5), (13, 4), (15, 1), (14, 3), (11, 6), (10, 7), (9, 8), (16, 2)],
         'y3': [(14, 2), (12, 5), (15, 1), (13, 4), (11, 6), (10, 7), (9, 8), (16, 3)],
         'y4': [(13, 3), (12, 5), (14, 2), (15, 1), (11, 6), (10, 7), (9, 8), (16, 4)],
         'z6': [(11, 5), (12, 4), (9, 8), (10, 7), (15, 1), (14, 2), (13, 3), (16, 6)],
         'z5': [(9, 8), (10, 7), (12, 4), (13, 3), (15, 1), (14, 2), (11, 6), (16, 5)],
         'z7': [(10, 7), (9, 8), (13, 3), (11, 6), (15, 1), (14, 2), (12, 5), (16, 4)],
         'z8': [(9, 7), (11, 6), (13, 3), (14, 2), (15, 1), (10, 8), (12, 5), (16, 4)],
         'k1': [(10, 6), (9, 7), (12, 4), (11, 5), (16, 1), (15, 2), (14, 3), (13, 8)],
         'k2': [(10, 6), (9, 7), (13, 4), (11, 5), (16, 1), (15, 2), (14, 3), (12, 8)],
         'k3': [(10, 6), (9, 7), (12, 4), (11, 5), (16, 1), (15, 2), (13, 3), (14, 8)],
         'k4': [(13, 3), (12, 4), (15, 1), (14, 2), (11, 7), (10, 8), (9, 6), (16, 5)],
         '4': [(9, 8), (11, 6), (10, 7), (13, 3), (15, 1), (14, 2), (12, 5), (16, 4)]}[os.environ.get('PITEM', 'z7')]
TABA = sum((x[0] - 1) << (4 * i) for i, x in enumerate(ITEMS)); TABB = sum((x[1] - 1) << (4 * i) for i, x in enumerate(ITEMS))
SPIN = 1 << 18

NS3 = 5; NC = int(os.environ.get('NC', '40')); NB = 64 - NC; NP = NB + 16; TR = 4
F_CTX, F_OA, F_PAIR = 0x2000, 0x3000, 0x4000

def build(name="mega_kernel", stamps=False, abl=(), last_kernel=None):
    last_kernel = name
    k = K('m')
    AL = int(os.environ.get('ALIGN', '3'))
    def align():
        if AL: k.lines.append(f'.p2align {AL}')
    sDb = 4; sWS = 6; srdO = 8; srdD = 12; sw = 16; sPend = 17; sStamp = 18; sRe = 20; sEx = 22
    vLane = 1; vSt = 2; vL16 = 2; vStamp = 3; vFlag = 4; vFa = 0; sTok = sDb
    ST = Stamper(k, stamps, vStamp, sStamp)
    TOUCH = 'notouch' not in abl
    L2D = int(os.environ.get('L2D', '0'))
    wsc = ' sc0 sc1' if 'sc01' in abl else ' sc1'
    sfx = ' sc1'; ksc = wsc; tsc = ' sc1' if 'tsc' in abl else ''
    gxs = wsc + (' nt' if 'ntx' in abl else ''); gws = wsc + (' nt' if 'ntw' in abl else '')
    if 'ntp' in abl: tsc += ' nt'
    S = Regs('s', 24, 90)
    sK = S.alloc('karg', 16, 4)
    srdX = S.alloc('srdX', 4, 4); srdW = S.alloc('srdW', 4, 4)
    sXoff = S.alloc('sXoff', 4); sWoff = S.alloc('sWoff', 4); sWstep = S.alloc('sWstep')
    swm = S.alloc('wm'); swn = S.alloc('wn'); sXSc = S.alloc('xsc'); sWx = S.alloc('wx')
    sXw = S.alloc('xw'); sWw = S.alloc('ww'); sXd = S.alloc('xdelta'); sXs = S.alloc('xrslot')
    sCnt = S.alloc('cnt'); sFirst = S.alloc('first'); sEvT = S.alloc('evt'); sIdx = S.alloc('idx'); sMt = S.alloc('mt'); sIsP = S.alloc('isp')
    LF = ['xlo','xhi','xsize','wlo','whi','wsize','ldx','ldw','xoff0','woff0','par']
    CF = ['nk','swp','scale','obase','Si','Sj','flag']
    P1 = {f: S.alloc('p1' + f) for f in LF + CF}
    sStp = S.alloc('stp')
    STP = 'stp' in abl
    top = Regs('s', 90, 102)
    sT = top.alloc('t', 4, 2); sHasNext = top.alloc('hasnext')
    CP = {f: top.alloc('c' + f) for f in CF}
    t0, t1, t2, t3 = sT, sT + 1, sT + 2, sT + 3
    def ptr(nm): return sK + KARG[nm] // 4
    V = Regs('v', 6, 32)
    vx = V.alloc('vx', 2); vw = V.alloc('vw', 8); vX = V.alloc('vX', 2); vW = V.alloc('vW', 4); vDum = V.alloc('dum')
    vT = V.alloc('t', 8, 4)
    assert vT == 24
    T = vT
    def acc(i, j):
        n = ((i >> 1) * 8 + j) * 2 + (i & 1)
        return ('v', 32 + 4 * n) if n < 56 else ('a', 224 + 4 * (n - 56))
    def fragX(kk, mb): return mb * 8 + kk * 4
    def fragW(kk, nb): return 64 + nb * 8 + kk * 4
    STASH = 128
    def Qreg(qt, e): return 128 + qt * 16 + e * 4

    Lend = k.newlab('end')
    k(f"s_cmp_ge_u32 s2, 256\ns_cbranch_scc1 {Lend}")
    if STP: ST.stamp(0); ST.stamp(1, real=True)
    k(f"s_load_dwordx16 {s(sK,16)}, s[0:1], 0\ns_load_dwordx4 {s(sDb,4)}, s[0:1], {KARG['dbg']}")
    if stamps and not STP:
        k("s_waitcnt lgkmcnt(0)")
        ST.stamp(0); ST.stamp(1, real=True)
    if STP: k(f"s_mov_b32 {s(sStp)}, 18")
    k(f"v_and_b32 {v(vLane)}, 63, v0\nv_lshrrev_b32 {v(vT)}, 6, v0\ns_nop 0\nv_readfirstlane_b32 {s(sw)}, {v(vT)}")
    k(f"s_lshr_b32 {s(sIdx)}, s2, 3")
    k(f"s_lshr_b32 {s(swm)}, {s(sw)}, 1\ns_and_b32 {s(swn)}, {s(sw)}, 1")
    k(f"s_mov_b32 {s(srdX+3)}, 0x20000\ns_mov_b32 {s(srdW+3)}, 0x20000")
    def t_all():
        x7 = sMt; wx = sCnt; sa = sFirst; sb = sEvT
        k(f"s_and_b32 {s(x7)}, s2, 7\ns_lshl_b32 {s(wx)}, {s(sIdx)}, 2\ns_add_u32 {s(wx)}, {s(wx)}, {s(sw)}")
        k(f"s_and_b32 {s(t0)}, {s(x7)}, 3\ns_lshl_b32 {s(t0)}, {s(t0)}, 11\ns_lshl_b32 {s(t1)}, {s(wx)}, 15\ns_add_u32 {s(t0)}, {s(t0)}, {s(t1)}")
        k(f"s_lshl_b32 {s(t1)}, {s(wx)}, 1\ns_and_b32 {s(t2)}, {s(x7)}, 1\ns_add_u32 {s(t1)}, {s(t1)}, {s(t2)}\ns_sub_u32 {s(t1)}, {s(t1)}, 128\ns_lshl_b32 {s(t1)}, {s(t1)}, 15")
        k(f"s_lshr_b32 {s(t3)}, {s(x7)}, 1\ns_lshl_b32 {s(sa)}, {s(t3)}, 11\ns_add_u32 {s(t1)}, {s(t1)}, {s(sa)}")
        k(f"s_cmp_lt_u32 {s(sIdx)}, 16\ns_cselect_b32 {s(t0)}, {s(t0)}, {s(t1)}")
        k(f"s_lshl_b32 {s(t2)}, {s(t2)}, 2\ns_add_u32 {s(t2)}, {s(t2)}, {s(t3)}\ns_lshl_b32 {s(t2)}, {s(t2)}, 4\ns_add_u32 {s(t2)}, {s(t2)}, {s(wx)}\ns_sub_u32 {s(t2)}, {s(t2)}, 96\ns_lshl_b32 {s(t2)}, {s(t2)}, 15")
        k(f"s_cmp_lt_u32 {s(sIdx)}, 24\ns_cselect_b32 {s(t0)}, {s(t0)}, {s(t2)}\ns_cselect_b32 {s(sa)}, 4, 2\ns_cselect_b32 {s(sb)}, 13, 11")
        k(f"s_lshl_b32 {s(t2)}, {s(x7)}, 4\ns_add_u32 {s(t2)}, {s(t2)}, {s(wx)}\ns_sub_u32 {s(t2)}, {s(t2)}, 112\ns_lshl_b32 {s(t2)}, {s(t2)}, 13")
        k(f"s_cmp_lt_u32 {s(sIdx)}, 28\ns_cselect_b32 {s(t0)}, {s(t0)}, {s(t2)}\ns_cselect_b32 {s(sa)}, {s(sa)}, 3\ns_cselect_b32 {s(sb)}, {s(sb)}, 10")
        k(f"v_lshrrev_b32 {v(T)}, {s(sa)}, {v(vLane)}\nv_lshlrev_b32 {v(T+1)}, {s(sa)}, {v(T)}\nv_sub_u32 {v(T+1)}, {v(vLane)}, {v(T+1)}\nv_lshlrev_b32 {v(T)}, {s(sb)}, {v(T)}\nv_lshl_add_u32 {v(vFlag)}, {v(T+1)}, 7, {v(T)}\ns_mov_b32 {s(sXd)}, {s(t0)}")
        k(f"s_mov_b32 {s(srdD+2)}, {4*1048576}\ns_mov_b32 {s(srdD+3)}, 0x20000\ns_cselect_b32 {s(srdD+2)}, {s(srdD+2)}, {2*1048576}")
    def t_go():
        x7 = t3
        k(f"s_and_b32 {s(x7)}, s2, 7\ns_cmp_lt_u32 {s(sIdx)}, 28\ns_cselect_b32 {s(srdD)}, {s(ptr('B_x'))}, {s(ptr('B_c_kv'))}\ns_cselect_b32 {s(srdD+1)}, {s(ptr('B_x')+1)}, {s(ptr('B_c_kv')+1)}")
        k(f"s_cmp_lt_u32 {s(sIdx)}, 24\ns_cselect_b32 {s(srdD)}, {s(ptr('B_w_q'))}, {s(srdD)}\ns_cselect_b32 {s(srdD+1)}, {s(ptr('B_w_q')+1)}, {s(srdD+1)}")
        k(f"s_cmp_lt_u32 {s(x7)}, 4\ns_cselect_b32 {s(t1)}, {s(ptr('B_w_uk'))}, {s(ptr('B_w_uv'))}\ns_cselect_b32 {s(t2)}, {s(ptr('B_w_uk')+1)}, {s(ptr('B_w_uv')+1)}")
        k(f"s_cmp_lt_u32 {s(sIdx)}, 16\ns_cselect_b32 {s(srdD)}, {s(t1)}, {s(srdD)}\ns_cselect_b32 {s(srdD+1)}, {s(t2)}, {s(srdD+1)}")
        k(f"buffer_load_dword {v(vDum)}, {v(vFlag)}, {s(srdD,4)}, {s(sXd)} offen")
    if 'nocpf' not in abl:
        Lc = k.newlab('ncp')
        k(f"s_cmp_lt_u32 {s(sIdx)}, 28\ns_cbranch_scc1 {Lc}\ns_sub_u32 {s(t1)}, {s(sIdx)}, 28\ns_lshl_b32 {s(t1)}, {s(t1)}, 2\ns_add_u32 {s(t1)}, {s(t1)}, {s(sw)}")
        code_prefetch(k, srdO, name, last_kernel + "_end", t1, vLane, T, vDum, t0)
        k.label(Lc)
    if 'ta' in abl: t_all()
    k(f"s_lshl_b32 {s(sXw)}, {s(sw)}, 13\ns_add_u32 {s(sWw)}, {s(sXw)}, {WBASE}")
    def late_setup():
        k.c("fragment read addresses")
        k(f"v_and_b32 {v(T)}, 15, {v(vLane)}\nv_lshrrev_b32 {v(T+1)}, 4, {v(vLane)}")
        k(f"v_bfe_u32 {v(T+2)}, {v(vLane)}, 1, 3\nv_xor_b32 {v(T+2)}, {v(T+2)}, {v(T+1)}")
        k(f"s_lshl_b32 {s(t0)}, {s(swm)}, 14\nv_lshlrev_b32 {v(T+3)}, 7, {v(T)}\nv_add_u32 {v(T+3)}, {s(t0)}, {v(T+3)}")
        for kk in range(2):
            k(f"v_xor_b32 {v(T+4)}, {4*kk}, {v(T+2)}\nv_lshl_add_u32 {v(vx+kk)}, {v(T+4)}, 4, {v(T+3)}")
        k(f"v_bfe_u32 {v(T+2)}, {v(vLane)}, 2, 2")
        k(f"v_lshl_add_u32 {v(T+3)}, {v(T+1)}, 3, {v(T+2)}\nv_lshlrev_b32 {v(T+3)}, 9, {v(T+3)}")
        k(f"v_and_b32 {v(T+4)}, 3, {v(vLane)}\nv_lshlrev_b32 {v(T+4)}, 3, {v(T+4)}\nv_add_u32 {v(T+3)}, {v(T+3)}, {v(T+4)}")
        k(f"s_lshl_b32 {s(t0)}, {s(swn)}, 8\ns_add_u32 {s(t0)}, {s(t0)}, {WBASE}\nv_add_u32 {v(T+3)}, {s(t0)}, {v(T+3)}")
        k(f"v_bfe_u32 {v(T+2)}, {v(vLane)}, 2, 3")
        for nb in range(8):
            k(f"v_xor_b32 {v(T+4)}, {nb}, {v(T+2)}\nv_lshl_add_u32 {v(vw+nb)}, {v(T+4)}, 5, {v(T+3)}")
        k(f"v_lshlrev_b32 {v(vSt)}, 4, {v(vLane)}")
        k(f"s_mov_b32 {s(sXs)}, 0")
        k(f"s_mov_b32 {s(sXSc)}, {XS}\ns_mov_b32 {s(sWx)}, {WBASE ^ (WBASE + XS)}")
    def q_params(p, ptrs=True):
        k(f"s_mov_b32 {s(p['wsize'])}, 8388608\ns_mov_b32 {s(p['ldw'])}, 8192\ns_mov_b32 {s(p['par'])}, 0")
        k(f"s_mov_b32 {s(p['xsize'])}, 4194304\ns_mov_b32 {s(p['ldx'])}, 2048\ns_mov_b32 {s(p['nk'])}, 16")
        k(f"s_lshl_b32 {s(p['woff0'])}, {s(t0)}, 9\ns_lshl_b32 {s(p['xoff0'])}, {s(sMt)}, 19\ns_lshl_b32 {s(p['flag'])}, {s(t0)}, 4\ns_add_u32 {s(p['flag'])}, {s(p['flag'])}, {s(sMt)}\ns_lshl_b32 {s(p['flag'])}, {s(p['flag'])}, 3")
        k(f"s_mov_b32 {s(p['swp'])}, 0\ns_mov_b32 {s(p['scale'])}, {f32bits(C_B)}")
        k(f"s_lshl_b32 {s(t1)}, {s(t0)}, 1\ns_add_u32 {s(t1)}, {s(t1)}, {s(swn)}\ns_lshl_b32 {s(t1)}, {s(t1)}, 19")
        k(f"s_lshl_b32 {s(t2)}, {s(sMt)}, 1\ns_add_u32 {s(t2)}, {s(t2)}, {s(swm)}\ns_lshl_b32 {s(t2)}, {s(t2)}, 15")
        k(f"s_add_u32 {s(p['obase'])}, {s(t1)}, {s(t2)}\ns_add_u32 {s(p['obase'])}, {s(p['obase'])}, {WS_QB}")
        k(f"s_mov_b32 {s(p['Si'])}, 1024\ns_mov_b32 {s(p['Sj'])}, 4096")
        if ptrs: k(f"s_mov_b32 {s(p['xlo'])}, {s(ptr('B_x'))}\ns_mov_b32 {s(p['xhi'])}, {s(ptr('B_x')+1)}\ns_mov_b32 {s(p['wlo'])}, {s(ptr('B_w_q'))}\ns_mov_b32 {s(p['whi'])}, {s(ptr('B_w_q')+1)}")
    def a_params(p):
        k(f"s_mov_b32 {s(p['wsize'])}, 6291456\ns_mov_b32 {s(p['ldw'])}, 6144\ns_mov_b32 {s(p['par'])}, 1")
        k(f"s_mov_b32 {s(p['xsize'])}, 4194304\ns_mov_b32 {s(p['ldx'])}, 2048\ns_mov_b32 {s(p['nk'])}, 16")
        k(f"s_lshl_b32 {s(p['woff0'])}, {s(t0)}, 9\ns_lshl_b32 {s(p['xoff0'])}, {s(sMt)}, 19")
        k(f"s_and_b32 {s(t2)}, {s(t0)}, 3\ns_lshr_b32 {s(t1)}, {s(t0)}, 2")
        k(f"s_lshl_b32 {s(p['flag'])}, {s(t2)}, 2\ns_add_u32 {s(p['flag'])}, {s(p['flag'])}, {s(t1)}\ns_lshl_b32 {s(p['flag'])}, {s(p['flag'])}, 3\ns_add_u32 {s(p['flag'])}, {s(p['flag'])}, {s(sMt)}\ns_lshl_b32 {s(p['flag'])}, {s(p['flag'])}, 3\ns_add_u32 {s(p['flag'])}, {s(p['flag'])}, {48*128}")
        k(f"s_cmp_eq_u32 {s(t1)}, 0\ns_cselect_b32 {s(p['scale'])}, {f32bits(C_A)}, 0")
        k(f"s_lshl_b32 {s(t3)}, {s(t1)}, 22\ns_add_u32 {s(p['obase'])}, {s(t3)}, {WS_QA}")
        k(f"s_lshl_b32 {s(t2)}, {s(t2)}, 1\ns_add_u32 {s(t2)}, {s(t2)}, {s(swn)}\ns_lshl_b32 {s(t2)}, {s(t2)}, 19\ns_add_u32 {s(p['obase'])}, {s(p['obase'])}, {s(t2)}")
        k(f"s_lshl_b32 {s(t2)}, {s(swm)}, 3\ns_add_u32 {s(t2)}, {s(t2)}, {s(sMt)}")
        k(f"s_cmp_eq_u32 {s(t1)}, 2\ns_cselect_b32 {s(p['swp'])}, 1, 0\ns_cselect_b32 {s(t3)}, 12, 13")
        k(f"s_mov_b32 {s(t1)}, 131072\ns_cselect_b32 {s(p['Si'])}, 1024, {s(t1)}\ns_mov_b32 {s(t1)}, 1024\ns_cselect_b32 {s(p['Sj'])}, 65536, {s(t1)}")
        k(f"s_lshl_b32 {s(t2)}, {s(t2)}, {s(t3)}\ns_add_u32 {s(p['obase'])}, {s(p['obase'])}, {s(t2)}")
        k(f"s_mov_b32 {s(p['xlo'])}, {s(ptr('A_x'))}\ns_mov_b32 {s(p['xhi'])}, {s(ptr('A_x')+1)}\ns_mov_b32 {s(p['wlo'])}, {s(ptr('A_wqkv'))}\ns_mov_b32 {s(p['whi'])}, {s(ptr('A_wqkv')+1)}")
    def kv_params(p, ptrs=True):
        k(f"s_cmp_lt_u32 {s(t0)}, 16\ns_cselect_b32 {s(p['swp'])}, 0, 1")
        k(f"s_mov_b32 {s(t1)}, {WS_VB}\ns_cselect_b32 {s(p['obase'])}, {WS_KB}, {s(t1)}")
        k(f"s_mov_b32 {s(t1)}, 8192\ns_cselect_b32 {s(p['Si'])}, 1024, {s(t1)}")
        k(f"s_mov_b32 {s(t1)}, 1024\ns_cselect_b32 {s(p['Sj'])}, 4096, {s(t1)}")
        if ptrs: k(f"s_cselect_b32 {s(p['wlo'])}, {s(ptr('B_w_uk'))}, {s(ptr('B_w_uv'))}\ns_cselect_b32 {s(p['whi'])}, {s(ptr('B_w_uk')+1)}, {s(ptr('B_w_uv')+1)}")
        if ptrs: k(f"s_mov_b32 {s(p['xlo'])}, {s(ptr('B_c_kv'))}\ns_mov_b32 {s(p['xhi'])}, {s(ptr('B_c_kv')+1)}")
        k(f"s_mov_b32 {s(p['xsize'])}, 2097152\ns_mov_b32 {s(p['ldx'])}, 1024\ns_mov_b32 {s(p['nk'])}, 8\ns_mov_b32 {s(p['par'])}, 0")
        k(f"s_mov_b32 {s(p['wsize'])}, 4194304\ns_mov_b32 {s(p['ldw'])}, 8192\ns_mov_b32 {s(p['scale'])}, 0")
        k(f"s_and_b32 {s(t0)}, {s(t0)}, 15\ns_lshl_b32 {s(p['woff0'])}, {s(t0)}, 9\ns_lshl_b32 {s(p['xoff0'])}, {s(sMt)}, 18")
        k(f"s_lshl_b32 {s(t1)}, {s(p['swp'])}, 2\ns_add_u32 {s(t1)}, {s(t1)}, {s(sMt)}\ns_cmp_ge_u32 {s(sMt)}, 4\ns_cselect_b32 {s(t2)}, {512 - 4}, 8\ns_add_u32 {s(t1)}, {s(t1)}, {s(t2)}")
        k(f"s_lshl_b32 {s(p['flag'])}, {s(t0)}, 4\ns_add_u32 {s(p['flag'])}, {s(p['flag'])}, {s(t1)}\ns_lshl_b32 {s(p['flag'])}, {s(p['flag'])}, 3")
        k(f"s_lshl_b32 {s(t1)}, {s(t0)}, 1\ns_add_u32 {s(t1)}, {s(t1)}, {s(swn)}\ns_lshl_b32 {s(t1)}, {s(t1)}, 19")
        k(f"s_lshl_b32 {s(t2)}, {s(sMt)}, 1\ns_add_u32 {s(t2)}, {s(t2)}, {s(swm)}\ns_lshl_b32 {s(t2)}, {s(t2)}, 15")
        k(f"s_add_u32 {s(p['obase'])}, {s(p['obase'])}, {s(t1)}\ns_add_u32 {s(p['obase'])}, {s(p['obase'])}, {s(t2)}")
    def tile_long(mul):
        k(f"s_and_b32 {s(sMt)}, {s(sIdx)}, 3\ns_and_b32 {s(t0)}, s2, 1\ns_lshl_b32 {s(t0)}, {s(t0)}, 2\ns_add_u32 {s(sMt)}, {s(sMt)}, {s(t0)}")
        k(f"s_bfe_u32 {s(t0)}, s2, 0x20001\ns_mul_i32 {s(t0)}, {s(t0)}, {mul}\ns_bfe_u32 {s(t1)}, {s(sIdx)}, 0x20002\ns_add_u32 {s(t0)}, {s(t0)}, {s(t1)}")
    def tile_kv(late):
        k(f"s_bfe_u32 {s(sMt)}, {s(sIdx)}, 0x20002\ns_add_u32 {s(sMt)}, {s(sMt)}, {4*late}\ns_and_b32 {s(t0)}, s2, 7\ns_lshl_b32 {s(t0)}, {s(t0)}, 2\ns_and_b32 {s(t1)}, {s(sIdx)}, 3\ns_add_u32 {s(t0)}, {s(t0)}, {s(t1)}")

    def act_load(p, part=(0, 1), which="xw"):
        if 0 in part and 'x' in which:
            k(f"s_mov_b32 {s(srdX+2)}, {s(p['xsize'])}")
            k(f"s_lshl_b32 {s(t0)}, {s(p['ldx'])}, 4\ns_lshl_b32 {s(t0)}, {s(t0)}, {s(p['par'])}")
            k(f"s_mov_b32 {s(sXoff)}, {s(p['xoff0'])}")
            for a_ in (1, 2, 3):
                k(f"s_mul_i32 {s(t1)}, {s(t0)}, {a_}\ns_add_u32 {s(sXoff+a_)}, {s(t1)}, {s(p['xoff0'])}")
                if a_ & 1: k(f"s_sub_u32 {s(sXoff+a_)}, {s(sXoff+a_)}, 2048")
            k(f"s_lshl_b32 {s(t0)}, {s(swn)}, 7\ns_add_u32 {s(t0)}, {s(t0)}, {s(swm)}\ns_lshl_b32 {s(t1)}, {s(sw)}, 6\ns_cmp_eq_u32 {s(p['par'])}, 1\ns_cselect_b32 {s(t0)}, {s(t0)}, {s(t1)}")
            k(f"v_lshrrev_b32 {v(T)}, 3, {v(vLane)}\nv_lshlrev_b32 {v(T)}, {s(p['par'])}, {v(T)}")
            k(f"v_add_u32 {v(T)}, {s(t0)}, {v(T)}\nv_mul_lo_u32 {v(T)}, {v(T)}, {s(p['ldx'])}")
            k(f"v_lshrrev_b32 {v(T+1)}, 4, {v(vLane)}\nv_and_b32 {v(T+2)}, 7, {v(vLane)}\nv_xor_b32 {v(T+1)}, {v(T+1)}, {v(T+2)}")
            k(f"v_lshl_add_u32 {v(vX)}, {v(T+1)}, 4, {v(T)}")
            k(f"v_xor_b32 {v(T+1)}, 4, {v(T+1)}\nv_lshl_add_u32 {v(vX+1)}, {v(T+1)}, 4, {v(T)}")
            k(f"s_lshl_b32 {s(t0)}, {s(p['ldx'])}, 3\ns_lshl_b32 {s(t0)}, {s(t0)}, {s(p['par'])}\ns_sub_u32 {s(t0)}, {s(t0)}, 1024\nv_add_u32 {v(vX+1)}, {s(t0)}, {v(vX+1)}")
        if 0 in part and 'w' in which:
            k(f"s_mov_b32 {s(srdW+2)}, {s(p['wsize'])}")
            k(f"s_mov_b32 {s(sWoff)}, {s(p['woff0'])}\ns_lshl_b32 {s(t0)}, {s(p['ldw'])}, 2")
            for a_ in (1, 2, 3):
                k(f"s_mul_i32 {s(t1)}, {s(t0)}, {a_}\ns_add_u32 {s(sWoff+a_)}, {s(t1)}, {s(p['woff0'])}")
                if a_ & 1: k(f"s_sub_u32 {s(sWoff+a_)}, {s(sWoff+a_)}, 2048")
            k(f"s_lshl_b32 {s(sWstep)}, {s(p['ldw'])}, 6")
            k(f"v_lshrrev_b32 {v(T)}, 5, {v(vLane)}\ns_lshl_b32 {s(t0)}, {s(sw)}, 4\nv_add_u32 {v(T+1)}, {s(t0)}, {v(T)}\nv_mul_lo_u32 {v(T+1)}, {v(T+1)}, {s(p['ldw'])}")
            k(f"v_lshlrev_b32 {v(T)}, 1, {v(T)}\nv_and_b32 {v(T+2)}, 31, {v(vLane)}\nv_xor_b32 {v(T)}, {v(T)}, {v(T+2)}")
            k(f"s_lshl_b32 {s(t0)}, {s(p['ldw'])}, 1\ns_sub_u32 {s(t0)}, {s(t0)}, 1024\nv_add_u32 {v(T+3)}, {s(t0)}, {v(T+1)}")
            for u in range(2):
                for e in range(2):
                    k(f"v_xor_b32 {v(T+2)}, {4*e + 8*u}, {v(T)}\nv_lshl_add_u32 {v(vW+e+2*u)}, {v(T+2)}, 4, {v(T+3) if e else v(T+1)}")
        if 1 in part:
            if 'x' in which: k(f"s_mov_b32 {s(srdX)}, {s(p['xlo'])}\ns_mov_b32 {s(srdX+1)}, {s(p['xhi'])}")
            if 'w' in which: k(f"s_mov_b32 {s(srdW)}, {s(p['wlo'])}\ns_mov_b32 {s(srdW+1)}, {s(p['whi'])}")
    def act_comp(p):
        for f in CP: k(f"s_mov_b32 {s(CP[f])}, {s(p[f])}")

    def dmaX(j):
        out = []
        if j % 4 == 0: out.append(f"s_add_u32 m0, {s(sXw)}, {4096 * (j // 4)}\ns_nop 0")
        out.append(f"buffer_load_dwordx4 {v(vX + (j & 1))}, {s(srdX,4)}, {s(sXoff + (j >> 1))} offen offset:{(j & 3) * 1024}{gxs} lds")
        if j & 1: out.append(f"s_add_u32 {s(sXoff + (j >> 1))}, {s(sXoff + (j >> 1))}, 128")
        return out
    def dmaW(j):
        out = []
        if j % 4 == 0: out.append(f"s_add_u32 m0, {s(sWw)}, {4096 * (j // 4)}\ns_nop 0")
        out.append(f"buffer_load_dwordx4 {v(vW + (j & 1) + 2 * (j >> 2))}, {s(srdW,4)}, {s(sWoff + (j >> 1))} offen offset:{(j & 3) * 1024}{gws} lds")
        if j & 1: out.append(f"s_add_u32 {s(sWoff + (j >> 1))}, {s(sWoff + (j >> 1))}, {s(sWstep)}")
        return out
    def rotXw():
        return [f"s_add_u32 {s(sXw)}, {s(sXw)}, {XS}\ns_cmp_ge_u32 {s(sXw)}, {3*XS}", f"s_cselect_b32 {s(t0)}, {3*XS}, 0\ns_sub_u32 {s(sXw)}, {s(sXw)}, {s(t0)}"]
    def rotWw():
        return [f"s_xor_b32 {s(sWw)}, {s(sWw)}, {WBASE ^ (WBASE + XS)}"]
    def rdX(kk, mb): return (('x', mb), f"ds_read_b128 {a(fragX(kk, mb), 4)}, {v(vx + kk)} offset:{mb * 2048}")
    def rdW(kk, nb, t): return (('w', nb), f"ds_read_b64_tr_b16 {a(fragW(kk, nb) + 2 * t, 2)}, {v(vw + nb)} offset:{(32 * kk + 4 * t) * 512}")
    def rdWpair(p_): return [rdW(kk, nb, t) for nb in (2 * p_, 2 * p_ + 1) for kk in range(2) for t in range(2)]

    MB = 1 << 20
    def pf_setup():
        k(f"s_sub_u32 {s(t3)}, s2, 224\ns_lshl_b32 {s(t3)}, {s(t3)}, 2\ns_add_u32 {s(t3)}, {s(t3)}, {s(sw)}")
        k(f"v_lshlrev_b32 {v(T)}, 7, {v(vLane)}")
        k(f"v_lshrrev_b32 {v(T+1)}, 3, {v(vLane)}\nv_lshlrev_b32 {v(T+1)}, 11, {v(T+1)}\nv_and_b32 {v(T+2)}, 7, {v(vLane)}\nv_lshl_add_u32 {v(T+1)}, {v(T+2)}, 7, {v(T+1)}")
        k(f"s_lshl_b32 {s(t2)}, {s(t3)}, 13\ns_lshl_b32 {s(t3)}, {s(t3)}, 14\ns_add_u32 {s(t3)}, {s(t3)}, 1024")
    def region(p_, size, off, nbytes, rows=False):
        k(f"s_mov_b32 {s(srdD)}, {s(p_)}\ns_mov_b32 {s(srdD+1)}, {s(p_+1)}\ns_mov_b32 {s(srdD+2)}, {size}")
        step = 2 * MB if rows else MB
        for o in range(off, off + nbytes, step):
            k(f"s_add_u32 {s(t0)}, {s(t3 if rows else t2)}, {o}\nbuffer_load_dword {v(vDum)}, {v(T+1 if rows else T)}, {s(srdD,4)}, {s(t0)} offen{tsc}")
    def publish(sflag, vp=vFlag):
        L = k.newlab('np')
        k(f"s_cmp_lg_u32 {s(sw)}, 0\ns_cbranch_scc1 {L}")
        k(f"v_mov_b32 {v(vp)}, {s(sTok)}\nv_mov_b32 {v(vp+1)}, {s(sTok+1)}\ns_add_u32 {s(t0)}, {s(sflag)}, {WS_FLAG}\ns_mov_b64 exec, 1")
        k(f"buffer_store_dwordx2 {v(vp,2)}, off, {s(srdO,4)}, {s(t0)} sc1\ns_mov_b64 exec, -1")
        k.label(L)
    def dbgmax(word, grp=False):
        if 'dbg' not in abl: return
        L = k.newlab('dm')
        k(f"s_cmp_lg_u32 {s(sw)}, 0\ns_cbranch_scc1 {L}\ns_memrealtime {s(sStamp,2)}\ns_waitcnt lgkmcnt(0)\ns_sub_u32 {s(sStamp)}, {s(sStamp)}, {s(sTok)}\nv_mov_b32 {v(vStamp)}, {s(sStamp)}")
        if grp: k(f"s_lshr_b32 {s(sStamp)}, s2, 5\ns_cmp_eq_u32 {s(sStamp)}, 7\ns_cselect_b32 {s(sStamp)}, 4, 0")
        else: k(f"s_mov_b32 {s(sStamp)}, 0")
        k(f"s_mov_b64 exec, 1\nbuffer_atomic_umax {v(vStamp)}, off, {s(srdD,4)}, {s(sStamp)} offset:{word*4}\ns_mov_b64 exec, -1")
        k.label(L)
    def head_ids():
        k(f"s_and_b32 {s(t2)}, s2, 7\ns_lshl_b32 {s(t2)}, {s(t2)}, 2\ns_bfe_u32 {s(t3)}, s2, 0x20003\ns_add_u32 {s(t2)}, {s(t2)}, {s(t3)}\ns_lshr_b32 {s(t3)}, s2, 5\ns_lshl_b32 {s(t3)}, {s(t3)}, 2\ns_or_b32 {s(t3)}, {s(t3)}, 0x40000")
    pKV = sK + 8; pQ = sK + 9; pFl = sK + 13
    def flag_lanes(what):
        if what == 'kv':
            k(f"v_and_b32 {v(vFa)}, 3, {v(vLane)}\nv_min_u32 {v(vFa)}, 2, {v(vFa)}\nv_and_b32 {v(T)}, 4, {v(vLane)}\nv_add3_u32 {v(vFa)}, {v(vFa)}, {v(T)}, 8")
        else:
            k(f"s_bfe_u32 {s(t1)}, {TABB}, {s(t3)}\ns_lshr_b32 {s(t1)}, {s(t1)}, 1\nv_mov_b32 {v(vFa)}, {s(t1)}")
            if what == 'all': k(f"v_and_b32 {v(T)}, 3, {v(vLane)}\nv_min_u32 {v(T)}, 2, {v(T)}\nv_and_b32 {v(T+1)}, 4, {v(vLane)}\nv_add3_u32 {v(T)}, {v(T)}, {v(T+1)}, 8\nv_cmp_gt_u32 vcc, 8, {v(vLane)}\ns_nop 1\nv_cndmask_b32 {v(vFa)}, {v(vFa)}, {v(T)}, vcc")
            k(f"s_bfe_u32 {s(t1)}, {TABA}, {s(t3)}\ns_lshr_b32 {s(t1)}, {s(t1)}, 1\nv_writelane_b32 {v(vFa)}, {s(t1)}, 8")
        k(f"v_lshlrev_b32 {v(vFa)}, 3, {v(vFa)}")
    def precompute():
        head_ids()
        k(f"s_lshr_b32 {s(pFl)}, {s(t2)}, 1\ns_lshl_b32 {s(pFl)}, {s(pFl)}, 7\ns_add_u32 {s(pFl)}, {s(pFl)}, {WS_FLAG}\ns_lshl_b32 {s(t2)}, {s(t2)}, 19")
        k(f"s_lshl_b32 {s(t1)}, {s(swn)}, 13\ns_add_u32 {s(t0)}, {s(t2)}, {s(t1)}\ns_cmp_eq_u32 {s(swm)}, 0\ns_mov_b32 {s(t1)}, {WS_VB - STG}\ns_cselect_b32 {s(t1)}, {WS_KB}, {s(t1)}\ns_add_u32 {s(pKV)}, {s(t0)}, {s(t1)}")
        for st in range(2):
            k(f"s_bfe_u32 {s(t0)}, {TABA if st == 0 else TABB}, {s(t3)}\ns_lshl_b32 {s(t0)}, {s(t0)}, 3\ns_lshl_b32 {s(t1)}, {s(sw)}, 1\ns_add_u32 {s(t0)}, {s(t0)}, {s(t1)}\ns_lshl_b32 {s(t0)}, {s(t0)}, 12\ns_add_u32 {s(t0)}, {s(t0)}, {s(t2)}")
            k(f"s_add_u32 {s(pQ+2*st)}, {s(t0)}, {WS_QB}\ns_add_u32 {s(pQ+2*st+1)}, {s(t0)}, {WS_QB + 4096}")
        flag_lanes('all')
    def early_load(what=None):
        if what: head_ids(); flag_lanes(what)
        k(f"buffer_load_dwordx2 {v(vFlag,2)}, {v(vFa)}, {s(srdO,4)}, {s(pFl)} offen sc1")
    def early_check(what):
        Ls = k.newlab('spin'); Lok = k.newlab('ok')
        k(f"s_mov_b32 s3, {SPIN}")
        k.label(Ls)
        k(f"v_cmp_ne_u64 {s(sEx,2)}, {s(sTok,2)}, {v(vFlag,2)}\ns_nop 3\ns_cmp_eq_u64 {s(sEx,2)}, 0\ns_cbranch_scc1 {Lok}\ns_sub_u32 s3, s3, 1\ns_cbranch_scc1 {Lok}\ns_sleep 16")
        early_load()
        k(f"s_waitcnt vmcnt(0)\ns_branch {Ls}")
        k.label(Lok)
    def kv_cursor(offs, srd, ks):
        k(f"s_add_u32 {s(offs)}, {s(pKV)}, {ks * STG}\ns_mov_b32 {s(offs+1)}, {s(offs)}\ns_add_u32 {s(offs+2)}, {s(offs)}, 4096\ns_mov_b32 {s(offs+3)}, {s(offs+2)}")
        if ks == 0: k(f"s_cmp_eq_u32 {s(swm)}, 0\ns_cselect_b32 {s(srd+2)}, {WS_SIZE}, 0")
        if ks in (1, 3): k(f"s_mov_b32 {s(srd+2)}, {WS_SIZE}")
        if ks in (0, 3): k(f"s_mov_b32 {s(srd)}, {s(sWS)}\ns_mov_b32 {s(srd+1)}, {s(sWS+1)}")
    tok_load = f"buffer_load_dwordx2 {v(vFlag,2)}, off, {s(srdD,4)}, 0 sc1"
    def tok_get():
        Ls = k.newlab('spin'); Lok = k.newlab('ok')
        k(f"s_mov_b32 s3, {SPIN}")
        k.label(Ls)
        k(f"v_readfirstlane_b32 {s(sTok)}, {v(vFlag)}\nv_readfirstlane_b32 {s(sTok+1)}, {v(vFlag+1)}\ns_nop 3\ns_cmp_lg_u32 {s(sTok)}, 0\ns_cbranch_scc1 {Lok}\ns_sub_u32 s3, s3, 1\ns_cbranch_scc1 {Lok}\ns_sleep 32")
        k(f"{tok_load}\ns_waitcnt vmcnt(0)\ns_branch {Ls}")
        k.label(Lok)
    def q_loads(qts, sel=None):
        for qt in qts:
            for e in range(4):
                if sel is None or qt * 4 + e in sel: k(f"buffer_load_dwordx4 {a(Qreg(qt, e), 4)}, {v(vL16)}, {s(srdO,4)}, {s(pQ+qt)} offen offset:{e*1024} sc1")

    La = k.newlab('typea'); Lb = k.newlab('go1'); Lnp = k.newlab('nopf'); Lpf = k.newlab('pf')
    k(f"s_cmp_ge_u32 {s(sIdx)}, 16\ns_cbranch_scc1 {La}")
    tile_long(4); q_params(P1, False)
    k(f"s_branch {Lb}")
    k.label(La)
    tile_kv(0); kv_params(P1, False)
    k.label(Lb)
    act_load(P1, (0,))
    k(f"s_cmp_eq_u32 {s(P1['swp'])}, 0\ns_waitcnt lgkmcnt(0)\ns_cselect_b32 {s(srdW)}, {s(ptr('B_w_uk'))}, {s(ptr('B_w_uv'))}\ns_cselect_b32 {s(srdW+1)}, {s(ptr('B_w_uk')+1)}, {s(ptr('B_w_uv')+1)}")
    k(f"s_cmp_lt_u32 {s(sIdx)}, 16\ns_cselect_b32 {s(srdW)}, {s(ptr('B_w_q'))}, {s(srdW)}\ns_cselect_b32 {s(srdW+1)}, {s(ptr('B_w_q')+1)}, {s(srdW+1)}")
    k(f"s_cselect_b32 {s(srdX)}, {s(ptr('B_x'))}, {s(ptr('B_c_kv'))}\ns_cselect_b32 {s(srdX+1)}, {s(ptr('B_x')+1)}, {s(ptr('B_c_kv')+1)}")
    TAP = int(os.environ.get('TAP', '0'))
    if 'ta' in abl and TAP == 0: t_go()
    if 'ct' in abl:
        Lw_ = k.newlab('ctw'); Le_ = k.newlab('cte')
        k(f"s_bfe_u32 {s(t0)}, {s(sIdx)}, 0x20002\ns_and_b32 {s(t1)}, {s(sIdx)}, 3\ns_cmp_lt_u32 {s(sIdx)}, 16\ns_cselect_b32 {s(t2)}, {s(t0)}, {s(t1)}\ns_cselect_b32 {s(t3)}, {s(t1)}, {s(t0)}")
        k(f"s_cmp_eq_u32 {s(swn)}, 1\ns_cbranch_scc1 {Lw_}")
        k(f"s_lshl_b32 {s(t2)}, {s(t2)}, 6\nv_add_u32 {v(T)}, {s(t2)}, {v(vLane)}\nv_mul_lo_u32 {v(T)}, {v(T)}, {s(P1['ldx'])}\ns_lshl_b32 {s(t0)}, {s(swm)}, 7\ns_add_u32 {s(t0)}, {s(t0)}, {s(P1['xoff0'])}")
        k(f"buffer_load_dword {v(vDum)}, {v(T)}, {s(srdX,4)}, {s(t0)} offen\ns_branch {Le_}")
        k.label(Lw_)
        k(f"s_lshl_b32 {s(t0)}, {s(swm)}, 2\ns_add_u32 {s(t3)}, {s(t3)}, {s(t0)}\ns_lshl_b32 {s(t3)}, {s(t3)}, 17\ns_add_u32 {s(t3)}, {s(t3)}, {s(P1['woff0'])}")
        k(f"v_lshrrev_b32 {v(T)}, 2, {v(vLane)}\nv_lshlrev_b32 {v(T)}, 13, {v(T)}\nv_and_b32 {v(T+1)}, 3, {v(vLane)}\nv_lshl_add_u32 {v(T)}, {v(T+1)}, 7, {v(T)}")
        k(f"buffer_load_dword {v(vDum)}, {v(T)}, {s(srdW,4)}, {s(t3)} offen")
        k.label(Le_)
        if 'ctb' in abl: k("s_barrier")
    k(f"s_cmp_ge_u32 {s(sIdx)}, 28\ns_cselect_b32 {s(sIsP)}, 1, 0\ns_cbranch_scc1 {Lpf}")
    k.label(Lnp)
    save0 = k.lines; k.lines = []
    k.label(Lpf)
    if 'ta' in abl and TAP: t_go()
    k(f"s_mov_b32 {s(srdD+3)}, 0x20000")
    if 'tlb' in abl:
        G = int(os.environ.get('TLBG', '16'))
        k(f"s_sub_u32 {s(t3)}, {s(sIdx)}, 28\ns_lshl_b32 {s(t3)}, {s(t3)}, 2\ns_add_u32 {s(t3)}, {s(t3)}, {s(sw)}\ns_lshl_b32 {s(t3)}, {s(t3)}, {6 + G}\nv_lshlrev_b32 {v(T)}, {G}, {v(vLane)}")
        k(f"s_load_dwordx4 {s(srdO,4)}, s[0:1], {KARG['B_w_o']}\ns_waitcnt lgkmcnt(0)")
        for (lo, size) in ((sWS, 0x7100000), (srdO + 2, 8 * MB), (srdO, 8 * MB), (ptr('A_wo'), 2 * MB)):
            k(f"s_mov_b32 {s(srdD)}, {s(lo)}\ns_mov_b32 {s(srdD+1)}, {s(lo+1)}\ns_mov_b32 {s(srdD+2)}, {size}")
            for o in range(0, size, 1024 << G):
                k(f"s_add_u32 {s(t0)}, {s(t3)}, {o}\nv_add_u32 {v(T+1)}, {s(t0)}, {v(T)}\nbuffer_load_dword {v(vDum)}, {v(T+1)}, {s(srdD,4)}, 0 offen")
    if 'nopf' not in abl:
        pf_setup()
        PO = os.environ.get('PORD', '0')
        if PO == '0':
            region(ptr('A_wqkv'), 6 * MB, 0, 2 * MB); region(ptr('A_x'), 4 * MB, 0, 4 * MB)
            region(ptr('B_w_q'), 8 * MB, 4 * MB, 2 * MB); region(ptr('B_x'), 4 * MB, 0, 4 * MB, True)
            region(ptr('A_wqkv'), 6 * MB, 2 * MB, 1 * MB); region(ptr('B_w_q'), 8 * MB, 6 * MB, 2 * MB); region(ptr('A_wqkv'), 6 * MB, 3 * MB, 3 * MB)
            region(ptr('B_c_kv'), 2 * MB, 1 * MB, 1 * MB)
        else:
            k(f"v_lshrrev_b32 {v(T+1)}, 2, {v(vLane)}\nv_lshlrev_b32 {v(T+1)}, 11, {v(T+1)}\nv_and_b32 {v(T+2)}, 3, {v(vLane)}\nv_lshl_add_u32 {v(T+1)}, {v(T+2)}, 7, {v(T+1)}\ns_lshl_b32 {s(t3)}, {s(t2)}, 2")
            def xq(p_, q): region(p_, 4 * MB, q * 512, 1, True)
            wq, wa, bx, ax = ptr('B_w_q'), ptr('A_wqkv'), ptr('B_x'), ptr('A_x')
            if PO == '1':
                region(wq, 8 * MB, 1 * MB, 2 * MB); xq(bx, 1); region(wq, 8 * MB, 3 * MB, 2 * MB); xq(bx, 2); region(wq, 8 * MB, 5 * MB, 1 * MB)
                region(wa, 6 * MB, 0, 1 * MB); xq(ax, 0); region(wq, 8 * MB, 6 * MB, 1 * MB); xq(bx, 3); region(wa, 6 * MB, 1 * MB, 1 * MB); xq(ax, 1); region(wq, 8 * MB, 7 * MB, 1 * MB)
                region(wa, 6 * MB, 2 * MB, 2 * MB); xq(ax, 2); region(wa, 6 * MB, 4 * MB, 1 * MB); xq(ax, 3); region(wa, 6 * MB, 5 * MB, 1 * MB); region(ptr('B_c_kv'), 2 * MB, 1 * MB, 1 * MB)
            if PO == '2':
                uk, uv = ptr('B_w_uk'), ptr('B_w_uv')
                region(wq, 8 * MB, 1 * MB, 1 * MB); region(uk, 4 * MB, 2 * MB, 1 * MB); region(uv, 4 * MB, 2 * MB, 1 * MB); region(wq, 8 * MB, 2 * MB, 1 * MB); xq(bx, 1)
                region(uk, 4 * MB, 3 * MB, 1 * MB); region(uv, 4 * MB, 3 * MB, 1 * MB); region(wq, 8 * MB, 3 * MB, 2 * MB); xq(bx, 2)
                region(wa, 6 * MB, 0, 1 * MB); xq(ax, 0); region(wq, 8 * MB, 5 * MB, 2 * MB); xq(bx, 3); region(wa, 6 * MB, 1 * MB, 1 * MB); xq(ax, 1); region(wq, 8 * MB, 7 * MB, 1 * MB)
                region(wa, 6 * MB, 2 * MB, 2 * MB); xq(ax, 2); region(wa, 6 * MB, 4 * MB, 1 * MB); xq(ax, 3); region(wa, 6 * MB, 5 * MB, 1 * MB); region(ptr('B_c_kv'), 2 * MB, 1 * MB, 1 * MB)
            if PO == '6':
                region(wq, 8 * MB, 1 * MB, 2 * MB); xq(bx, 1); region(wq, 8 * MB, 3 * MB, 2 * MB); xq(bx, 2); region(wq, 8 * MB, 5 * MB, 1 * MB)
                region(wa, 6 * MB, 0, 1 * MB); xq(ax, 0); region(wq, 8 * MB, 6 * MB, 1 * MB); xq(bx, 3); region(wa, 6 * MB, 1 * MB, 1 * MB); xq(ax, 1); region(wq, 8 * MB, 7 * MB, 1 * MB)
                region(wa, 6 * MB, 2 * MB, 1 * MB); region(ptr('B_c_kv'), 2 * MB, 1 * MB, 1 * MB)
            if PO == '7':
                region(wq, 8 * MB, 1 * MB, 2 * MB); xq(bx, 1); region(wq, 8 * MB, 3 * MB, 2 * MB); xq(bx, 2); region(wq, 8 * MB, 5 * MB, 2 * MB); xq(bx, 3); region(wq, 8 * MB, 7 * MB, 1 * MB)
                region(wa, 6 * MB, 2 * MB, 2 * MB); xq(ax, 2); region(wa, 6 * MB, 4 * MB, 1 * MB); xq(ax, 3); region(wa, 6 * MB, 5 * MB, 1 * MB); region(ptr('B_c_kv'), 2 * MB, 1 * MB, 1 * MB)
            uk, uv, ck = ptr('B_w_uk'), ptr('B_w_uv'), ptr('B_c_kv')
            def half2(pa, sa, oa, pb, sb, ob):
                k(f"s_cmp_lt_u32 {s(t2)}, {MB//2}\ns_cselect_b32 {s(srdD)}, {s(pa)}, {s(pb)}\ns_cselect_b32 {s(srdD+1)}, {s(pa+1)}, {s(pb+1)}\ns_mov_b32 {s(t0)}, {sb}\ns_cselect_b32 {s(srdD+2)}, {sa}, {s(t0)}")
                k(f"s_mov_b32 {s(t0)}, {(ob - MB//2) & 0xffffffff}\ns_cselect_b32 {s(t0)}, {oa}, {s(t0)}\ns_add_u32 {s(t0)}, {s(t0)}, {s(t2)}\nbuffer_load_dword {v(vDum)}, {v(T)}, {s(srdD,4)}, {s(t0)} offen{tsc}")
            H = MB // 2
            def rest8():
                region(wq, 8 * MB, 4 * MB, 1 * MB); xq(bx, 2); region(wa, 6 * MB, 0, 1 * MB); xq(ax, 0); region(wq, 8 * MB, 5 * MB, 1 * MB); region(wa, 6 * MB, 1 * MB, 1 * MB); xq(ax, 1)
                region(wq, 8 * MB, 6 * MB, 1 * MB); xq(bx, 3); region(wa, 6 * MB, 2 * MB, 1 * MB); region(wq, 8 * MB, 7 * MB, 1 * MB); xq(ax, 2)
                region(wa, 6 * MB, 3 * MB, 1 * MB); region(ck, 2 * MB, 1 * MB, 1 * MB); region(wa, 6 * MB, 4 * MB, 1 * MB); xq(ax, 3); region(wa, 6 * MB, 5 * MB, 1 * MB)
            if PO == '8':
                half2(wq, 8*MB, 2*H, uk, 4*MB, 2*H); half2(uv, 4*MB, 2*H, wq, 8*MB, 3*H); xq(bx, 0); half2(uk, 4*MB, 3*H, uv, 4*MB, 3*H); region(ck, 2 * MB, 0, 1 * MB)
                half2(wq, 8*MB, 4*H, uk, 4*MB, 4*H); xq(bx, 1); half2(uv, 4*MB, 4*H, wq, 8*MB, 5*H); half2(uk, 4*MB, 5*H, uv, 4*MB, 5*H)
                half2(wq, 8*MB, 6*H, uk, 4*MB, 6*H); half2(uv, 4*MB, 6*H, wq, 8*MB, 7*H); half2(uk, 4*MB, 7*H, uv, 4*MB, 7*H)
                rest8()
            if PO == '9':
                half2(wq, 8*MB, 3*H, uk, 4*MB, 3*H); half2(uv, 4*MB, 3*H, wq, 8*MB, 4*H); xq(bx, 1); half2(uk, 4*MB, 4*H, uv, 4*MB, 4*H)
                half2(wq, 8*MB, 5*H, uk, 4*MB, 5*H); half2(uv, 4*MB, 5*H, wq, 8*MB, 6*H); half2(uk, 4*MB, 6*H, uv, 4*MB, 6*H)
                half2(wq, 8*MB, 7*H, uk, 4*MB, 7*H); half2(uv, 4*MB, 7*H, wa, 6*MB, 0)
                rest8()
            if PO == 'a':
                half2(wq, 8*MB, 4*H, uk, 4*MB, 4*H); xq(bx, 1); half2(uv, 4*MB, 4*H, wq, 8*MB, 5*H); half2(uk, 4*MB, 5*H, uv, 4*MB, 5*H)
                half2(wq, 8*MB, 6*H, uk, 4*MB, 6*H); half2(uv, 4*MB, 6*H, wq, 8*MB, 7*H); half2(uk, 4*MB, 7*H, uv, 4*MB, 7*H)
                rest8()
            if PO == 'b':
                xq(bx, 1); half2(uk, 4*MB, 5*H, uv, 4*MB, 5*H); half2(wq, 8*MB, 5*H, wq, 8*MB, 6*H)
                half2(uk, 4*MB, 6*H, uv, 4*MB, 6*H); half2(uk, 4*MB, 7*H, uv, 4*MB, 7*H); half2(wq, 8*MB, 7*H, wa, 6*MB, 0)
                rest8()
            if PO == '3':
                region(wq, 8 * MB, 2 * MB, 1 * MB); xq(bx, 1); region(wq, 8 * MB, 3 * MB, 2 * MB); xq(bx, 2)
                region(wa, 6 * MB, 0, 1 * MB); xq(ax, 0); region(wq, 8 * MB, 5 * MB, 2 * MB); xq(bx, 3); region(wa, 6 * MB, 1 * MB, 1 * MB); xq(ax, 1); region(wq, 8 * MB, 7 * MB, 1 * MB)
                region(wa, 6 * MB, 2 * MB, 2 * MB); xq(ax, 2); region(wa, 6 * MB, 4 * MB, 1 * MB); xq(ax, 3); region(wa, 6 * MB, 5 * MB, 1 * MB); region(ptr('B_c_kv'), 2 * MB, 1 * MB, 1 * MB)
    if 'pwo1' in abl:
        k(f"s_load_dwordx2 {s(sEx,2)}, s[0:1], {KARG['B_w_o']}\ns_waitcnt lgkmcnt(0)")
        region(sEx, 8 * MB, 0, 8 * MB); region(ptr('A_wo'), 2 * MB, 0, 2 * MB)
    k(f"s_add_u32 {s(sXw)}, {s(sXw)}, {XS}\ns_branch {Lnp}")
    ool0 = k.lines; k.lines = save0
    if STP: ST.stamp(44)
    for st in range(2):
        if STP and st == 1: ST.stamp(46)
        for j in range(8):
            for t in dmaX(j): k(t)
        for t in rotXw(): k(t)
        if 'ta' in abl and TAP == 1 and st == 0:
            lt_ = k.newlab('tg'); k(f"s_cmp_eq_u32 {s(sIsP)}, 1\ns_cbranch_scc1 {lt_}"); t_go(); k.label(lt_)
        for j in range(8):
            for t in dmaW(j): k(t)
        for t in rotWw(): k(t)
        if 'ta' in abl and TAP == 2 and st == 0:
            lt_ = k.newlab('tg'); k(f"s_cmp_eq_u32 {s(sIsP)}, 1\ns_cbranch_scc1 {lt_}"); t_go(); k.label(lt_)
        if st == 0:
            if STP: ST.stamp(45)
            act_comp(P1)
            late_setup()
            k(f"s_mov_b32 {s(srdO)}, {s(sWS)}\ns_mov_b32 {s(srdO+1)}, {s(sWS+1)}\ns_mov_b32 {s(srdO+2)}, {WS_SIZE}\ns_mov_b32 {s(srdO+3)}, 0x20000")
            La2 = k.newlab('typea'); Lb2 = k.newlab('go2')
            k(f"s_cmp_ge_u32 {s(sIdx)}, 16\ns_cbranch_scc1 {La2}")
            tile_kv(1); kv_params(P1)
            k(f"s_branch {Lb2}")
            k.label(La2)
            tile_long(3); a_params(P1)
            k.label(Lb2)
            precompute()
            k(f"s_xor_b32 {s(sHasNext)}, {s(sIsP)}, 1\ns_add_u32 {s(sEvT)}, {s(sIsP)}, 3\ns_mov_b32 {s(sPend)}, -1")
            k(f"s_mul_i32 {s(sXs)}, {s(sIsP)}, {XS}\nv_add_u32 {v(vx)}, {s(sXs)}, {v(vx)}\nv_add_u32 {v(vx+1)}, {s(sXs)}, {v(vx+1)}")
            k(f"s_mov_b32 {s(srdD)}, {s(sDb)}\ns_mov_b32 {s(srdD+1)}, {s(sDb+1)}\ns_mov_b32 {s(srdD+2)}, 256\ns_mov_b32 {s(srdD+3)}, 0x20000")
            Lt = k.newlab('tok')
            k(f"s_lshl_b32 {s(t0)}, s2, 2\ns_add_u32 {s(t0)}, {s(t0)}, {s(sw)}\ns_cmp_lg_u32 {s(t0)}, 0\ns_cbranch_scc1 {Lt}")
            k(f"s_memrealtime {s(t2,2)}\ns_waitcnt lgkmcnt(0)\ns_or_b32 {s(t2)}, {s(t2)}, 1\nv_mov_b32 {v(vFlag)}, {s(t2)}\nv_mov_b32 {v(vFlag+1)}, {s(t3)}\ns_mov_b64 exec, 1")
            k(f"buffer_store_dwordx2 {v(vFlag,2)}, off, {s(srdD,4)}, 0 sc1\ns_mov_b64 exec, -1")
            k.label(Lt)
            Lt2 = k.newlab('tok')
            k(f"s_cmp_eq_u32 {s(sIsP)}, 0\ns_cbranch_scc1 {Lt2}\n{tok_load}\ns_waitcnt vmcnt(0)")
            tok_get()
            k.label(Lt2)
    ST.stamp(16 if STP else 2)
    k("s_waitcnt vmcnt(16)\ns_barrier")
    ST.stamp(17 if STP else 3)
    tailq = []
    w2 = rdWpair(2)
    for mb in range(8): tailq += [w2[mb], rdX(0, mb), rdX(1, mb)]
    for tag, ins in rdWpair(0) + rdWpair(1) + tailq: k(ins)
    for j in range(8):
        for x in dmaX(j): k(x)
    for x in rotXw(): k(x)
    k(f"s_mov_b32 {s(sFirst)}, 1")
    gS = sK; gSa = sK + 4; gSb = sK + 5; gSi = sK + 6; gSj = sK + 7
    k(f"s_mov_b32 {s(gS)}, {s(sWS)}\ns_mov_b32 {s(gS+1)}, {s(sWS+1)}\ns_mov_b32 {s(gS+2)}, 0\ns_mov_b32 {s(gS+3)}, 0x20000")
    k(f"s_mov_b32 {s(gSa)}, 0\ns_mov_b32 {s(gSb)}, 0\ns_mov_b32 {s(gSi)}, 0\ns_mov_b32 {s(gSj)}, 0")
    WB = 'wb' in abl
    GA = 31; SERP = 'noserp' not in abl
    WG = [34 + 4 * i for i in range(8)]
    XG = [68, 76, 84, 92, 100, 108, 116, 124]
    SG = [10, 16, 22, 28, 72, 80, 88, 94]
    NTR = 3
    def item(lst):
        pre = lst[0].split("\n")[0] if lst[0].startswith("s_add_u32 m0") else None
        ins = [x for x in lst if x.startswith("buffer_")][0]
        post = lst[-1] if not lst[-1].startswith("buffer_") else None
        return pre, ins, post
    def body(swp, kind):
        tr = LgkmTracker([tag for tag, _ in tailq])
        rd = {}; first = {}; head = {}; vfx = {}
        items = [(item(dmaX(j)), g) for j, g in enumerate(XG)] + [(item(dmaW(j)), g) for j, g in enumerate(WG)]
        if kind < NTR:
            for i, g in enumerate(SG):
                post = f"s_add_u32 {s(gSa)}, {s(gSa)}, {s(gSj)}" if i < 7 else f"s_add_u32 {s(gSb)}, {s(gSb)}, {s(gSi)}\ns_mov_b32 {s(gSa)}, {s(gSb)}"
                items.append(((None, f"buffer_store_dwordx4 {a(STASH + 4*(kind*8+i), 4)}, {v(vSt)}, {s(gS,4)}, {s(gSa)} offen{sfx}", post), g))
        for (pre, ins, post), g in items:
            assert g not in head, g
            head[g] = ins; first[g] = None
        first[GA] = None
        busy = set(XG) | set(WG) | set(SG)
        def put_first(g, x):
            while g in first: g += 1
            assert g < 126, x
            first[g] = x; return g
        def put_reads(g, its, stride):
            for x in its:
                while g in busy or g in rd: g += 1
                rd[g] = x; g += stride
        for (pre, ins, post), g in items:
            if pre: assert g - 1 not in first; first[g - 1] = pre
        for (pre, ins, post), g in items:
            if post: put_first(g + 1, post)
        put_reads(0, rdWpair(3), 1)
        put_reads(GA + 1, rdWpair(0), 3)
        put_reads(64, rdWpair(1), 3)
        for mb in range(8):
            put_reads(96 + 4 * mb + 1, [w2[mb]], 1)
            if mb < 7: put_reads(96 + 4 * mb + 3, [rdX(0, mb), rdX(1, mb)], 1)
        assert [rd[g][1] for g in sorted(rd) if g >= 96] == [x[1] for x in tailq[:22]], "tail order"
        gg = 12
        for nb in range(0, 8, 2):
            while gg in busy: gg += 1
            vfx[gg] = [f"v_xor_b32 {v(vw+nb)}, {s(sWx)}, {v(vw+nb)}", f"v_xor_b32 {v(vw+nb+1)}, {s(sWx)}, {v(vw+nb+1)}"]; gg += 1
        g = put_first(36, f"s_add_u32 {s(sXs)}, {s(sXs)}, {XS}")
        g = put_first(g + 1, f"s_cmp_ge_u32 {s(sXs)}, {3*XS}\ns_cselect_b32 {s(sXd)}, {-2*XS & 0xffffffff}, {s(sXSc)}\ns_cselect_b32 {s(sXs)}, 0, {s(sXs)}")
        assert g < 60 and 60 not in rd and 60 not in busy
        vfx[60] = [f"v_add_u32 {v(vx)}, {s(sXd)}, {v(vx)}", f"v_add_u32 {v(vx+1)}, {s(sXd)}, {v(vx+1)}"]
        put_first(WG[4] + 1, rotWw()[0])
        g = put_first(XG[4] + 1, f"s_add_u32 {s(sXw)}, {s(sXw)}, {XS}")
        g = put_first(g + 1, f"s_cmp_ge_u32 {s(sXw)}, {3*XS}\ns_cselect_b32 {s(t0)}, {3*XS}, 0")
        g = put_first(g + 1, f"s_sub_u32 {s(sXw)}, {s(sXw)}, {s(t0)}")
        put_first(112, f"s_sub_u32 {s(sCnt)}, {s(sCnt)}, 1")
        if kind == NTR: first[126] = f"s_cmp_gt_u32 {s(sCnt)}, {s(sEvT)}"
        vm = 8 + (4 if kind < NTR else 0) + (4 if 1 <= kind < NTR else 0)
        i = 0
        for rp in range(4):
            for mb in range(8):
                for n_, nb in enumerate((2 * rp, 2 * rp + 1) if (mb % 2 == 0 or not SERP) else (2 * rp + 1, 2 * rp)):
                    for k_, kk in enumerate((0, 1) if (n_ == 0 or not SERP) else (1, 0)):
                        w = tr.need({('x', mb), ('w', nb)})
                        if i == GA:
                            tr.q = []
                            if STP: k(f"s_memtime {s(sStamp,2)}")
                            if kind == 0 and 'nolen' not in abl:
                                lw = k.newlab('w')
                                k(f"s_waitcnt vmcnt({vm+32}) lgkmcnt(0)\ns_cmp_eq_u32 {s(sFirst)}, 2\ns_cbranch_scc1 {lw}\ns_waitcnt vmcnt({vm})"); k.label(lw)
                            else: k(f"s_waitcnt vmcnt({vm}) lgkmcnt(0)")
                            if WB and kind == 0:
                                lw = k.newlab('w')
                                k(f"s_cmp_lg_u32 {s(sFirst)}, 2\ns_cbranch_scc1 {lw}\ns_waitcnt vmcnt(4)"); k.label(lw)
                        elif w: k(w)
                        A_, B_ = a(fragW(kk, nb), 4), a(fragX(kk, mb), 4)
                        d = r(acc(nb, mb), 0, 4)
                        if swp:
                            A_, B_ = B_, A_
                            d = r(acc(mb, nb), 0, 4)
                        c = "0" if (kind == 0 and k_ == 0) else d
                        k(f"v_mfma_f32_16x16x32_bf16 {d}, {A_}, {B_}, {c}")
                        if i == GA: k("s_barrier")
                        if i == GA and STP: k(f"v_cmp_eq_u32 vcc, {s(sStp)}, {v(vLane)}\nv_mov_b32 {v(vT+7)}, {s(sStamp)}\ns_add_u32 {s(sStp)}, {s(sStp)}, 1\nv_cndmask_b32 {v(vStamp)}, {v(vStamp)}, {v(vT+7)}, vcc")
                        if first.get(i): k(first[i])
                        if i in rd: k(rd[i][1]); tr.issue(rd[i][0])
                        if i in head: k(head[i])
                        for x in vfx.get(i, []): k(x)
                        if i == 127:
                            for tag, ins in tailq[22:]: k(ins)
                        i += 1

    outl = []; hooks = []
    INL = 'noinl' not in abl
    Ltile = k.newlab('tile'); Lepi = k.newlab('epi')
    k.label(Ltile)
    Lsw = k.newlab('swp')
    k(f"s_mov_b32 {s(sCnt)}, {s(CP['nk'])}")
    k(f"s_cmp_eq_u32 {s(CP['swp'])}, 1\ns_cbranch_scc1 {Lsw}")
    for swp in (0, 1):
        if swp: k.label(Lsw)
        for kind in range(NTR):
            body(swp, kind)
            if kind in ((0, 2) if WB else (1,)):
                Lh = k.newlab('hook'); Lhr = k.newlab('hookr')
                k(f"s_cmp_eq_u32 {s(sFirst)}, 2\ns_cbranch_scc1 {Lh}"); k.label(Lhr)
                hooks.append((Lh, Lhr, kind))
        Lloop = k.newlab('loop'); Lsw2 = k.newlab('dosw')
        align()
        k.label(Lloop)
        outl.append((Lsw2, Lloop))
        body(swp, NTR)
        if INL:
            k(f"s_cbranch_scc1 {Lloop}\ns_cmp_eq_u32 {s(sCnt)}, 0\ns_cbranch_scc1 {Lepi}")
            k.lines.append(f"@@{Lsw2}")
        else:
            k(f"s_cbranch_scc1 {Lloop}\ns_cmp_lg_u32 {s(sCnt)}, 0\ns_cbranch_scc1 {Lsw2}")
            if not swp: k(f"s_branch {Lepi}")
    k.label(Lepi)
    Lepf = k.newlab('epf'); Leps = k.newlab('eps'); Llast = k.newlab('last'); Lp = k.newlab('ptype'); Linit = k.newlab('init'); Lkv = k.newlab('kvl')
    k(f"s_cmp_eq_u32 {s(sHasNext)}, 0\ns_cbranch_scc1 {Llast}")
    ST.stamp(4)
    tok_get()
    Lq1 = k.newlab('q1')
    if 'qtr' not in abl:
        Lq0 = k.newlab('q0')
        k(f"s_cmp_ge_u32 {s(sIdx)}, 16\ns_cbranch_scc1 {Lq0}")
        k(f"s_call_b64 {s(sRe,2)}, {Lepf}\ns_mov_b32 {s(sPend)}, {s(CP['flag'])}\ns_mov_b32 {s(sFirst)}, 2")
        ST.stamp(5)
        k(f"s_branch {Lq1}")
        k.label(Lq0)
    k(f"s_call_b64 {s(sRe,2)}, {Leps}")
    ST.stamp(5)
    k(f"s_mov_b32 {s(sPend)}, {s(CP['flag'])}\ns_add_u32 {s(gSa)}, {s(CP['obase'])}, {s(CP['Si'])}\ns_mov_b32 {s(gSb)}, {s(gSa)}\ns_mov_b32 {s(gSi)}, {s(CP['Si'])}\ns_mov_b32 {s(gSj)}, {s(CP['Sj'])}\ns_mov_b32 {s(gS+2)}, {WS_SIZE}")
    k.label(Lq1)
    dbgmax(10)
    act_comp(P1)
    k(f"s_sub_u32 {s(sEvT)}, {s(CP['nk'])}, 5\ns_max_u32 {s(sEvT)}, {s(sEvT)}, 4\ns_mov_b32 {s(sHasNext)}, 0\ns_branch {Ltile}")
    k.label(Llast)
    ST.stamp(6)
    k.label(Lkv)
    dbgmax(12, True)
    k("s_waitcnt lgkmcnt(0)")
    QL = 'qlate' in abl; QS = 'noqs' not in abl
    if QL:
        k("s_waitcnt vmcnt(16)")
        early_check('q'); q_loads((0, 1, 2, 3))
    save = k.lines; k.lines = []
    for Lh, Lhr, kind in hooks:
        k.label(Lh)
        if kind == 0:
            k(f"s_cmp_lg_u32 {s(sw)}, 0\ns_cbranch_scc1 {Lhr}\nbuffer_wbl2 sc1\ns_branch {Lhr}")
            continue
        publish(sPend)
        k(f"s_mov_b32 {s(sPend)}, -1\ns_branch {Lhr}")
    def either(fn, fp):
        la = k.newlab('ea'); lb = k.newlab('eb')
        k(f"s_cmp_eq_u32 {s(sIsP)}, 1\ns_cbranch_scc1 {la}")
        fn()
        k.label(lb)
        alt.append((la, lb, fp))
    alt = []
    for Lsw2, Lns in outl:
        k.label(Lsw2)
        l_last = k.newlab('x'); l4 = k.newlab('x'); l3 = k.newlab('x'); l2 = k.newlab('x'); l1 = k.newlab('x'); l_p = k.newlab('x'); l_w = k.newlab('x')
        k(f"s_cmp_eq_u32 {s(sHasNext)}, 0\ns_cbranch_scc1 {l_last}")
        k(f"s_cmp_lg_u32 {s(sCnt)}, 3\ns_cbranch_scc1 {l_w}")
        act_load(P1, which="x")
        k(f"{tok_load}\ns_branch {Lns}")
        k.label(l_w)
        act_load(P1, which="w")
        k(f"s_mov_b32 {s(sEvT)}, 0\ns_branch {Lns}")
        k.label(l_last)
        k(f"s_cmp_le_u32 {s(sCnt)}, 4\ns_cbranch_scc1 {l4}")
        if 'lp' in abl: ST.stamp(10)
        publish(sPend)
        k(f"s_mov_b32 {s(sPend)}, -1\ns_mov_b32 {s(sEvT)}, 4\ns_branch {Lns}")
        k.label(l4)
        k(f"s_cmp_lg_u32 {s(sCnt)}, 4\ns_cbranch_scc1 {l3}")
        if 'lp' in abl: ST.stamp(11)
        either(lambda: early_load(), lambda: early_load('kv'))
        if 'cpf2' in abl:
            k(f"s_sub_u32 {s(t1)}, {s(sIdx)}, 16\ns_cmp_ge_u32 {s(t1)}, 3\ns_cbranch_scc1 {Lns}\ns_lshl_b32 {s(t1)}, {s(t1)}, 2\ns_add_u32 {s(t1)}, {s(t1)}, {s(sw)}")
            code_prefetch(k, sEx, name, name + "_end", t1, vLane, T, vDum, t0)
        k(f"s_branch {Lns}")
        k.label(l3)
        k(f"s_waitcnt vmcnt(16)\ns_cmp_lg_u32 {s(sCnt)}, 3\ns_cbranch_scc1 {l2}")
        either(lambda: (early_check('all'), q_loads((0, 1, 2, 3), range(0, 6))), lambda: early_check('kv'))
        kv_cursor(sXoff, srdX, 0)
        for i in range(2): k(f"v_mov_b32 {v(vX+i)}, {v(vSt)}")
        k(f"s_branch {Lns}")
        k.label(l2)
        k(f"s_cmp_lg_u32 {s(sCnt)}, 2\ns_cbranch_scc1 {l1}")
        either(lambda: q_loads((0, 1, 2, 3), range(6, 11)), lambda: early_load('q'))
        kv_cursor(sXoff, srdX, 1); kv_cursor(sWoff, srdW, 3)
        for i in range(4): k(f"v_mov_b32 {v(vW+i)}, {v(vSt)}")
        k(f"s_branch {Lns}")
        k.label(l1)
        either(lambda: q_loads((0, 1, 2, 3), range(11, 16)), lambda: (early_check('q'), q_loads((0, 1, 2, 3))))
        kv_cursor(sXoff, srdX, 2); kv_cursor(sWoff, srdW, 4)
        k(f"s_branch {Lns}")
        for la, lb, fp in alt:
            k.label(la); fp(); k(f"s_branch {lb}")
        alt.clear()
    k.label(Leps)
    Lns3 = k.newlab('ns3')
    k("s_nop 3")
    for scaled in (0,):
        k(f"s_mov_b32 {s(t0)}, {s(CP['obase'])}")
        for p_ in range(32):
            sp = acc(2 * (p_ >> 3), p_ & 7)
            if sp[0] == 'a':
                for i in range(8): k(f"v_accvgpr_read_b32 {v(vT+i)}, {a(sp[1]+i)}")
                b = vT
            else:
                b = sp[1]
            if scaled:
                for i in range(0, 8, 2): k(f"v_pk_mul_f32 {v(b+i,2)}, {v(b+i,2)}, {s(t2,2)}")
            for i in range(4): k(f"v_cvt_pk_bf16_f32 {v(b+i)}, {v(b+2*i)}, {v(b+2*i+1)}")
            if p_ < 8: k(f"buffer_store_dwordx4 {v(b,4)}, {v(vSt)}, {s(srdO,4)}, {s(t0)} offen{sfx}\ns_add_u32 {s(t0)}, {s(t0)}, {s(CP['Sj'])}")
            else:
                for i in range(4): k(f"v_accvgpr_write_b32 {a(STASH + 4*(p_-8) + i)}, {v(b+i)}")
        k(f"s_setpc_b64 {s(sRe,2)}")
    k.label(Lepf)
    Lnoscale = k.newlab('noscale')
    k("s_nop 7")
    for scaled in (1,):
        k(f"s_mov_b32 {s(t1)}, {s(CP['obase'])}\ns_mov_b32 {s(t2)}, {s(CP['scale'])}\ns_mov_b32 {s(t3)}, {s(CP['scale'])}")
        for e in range(4):
            k(f"s_mov_b32 {s(t0)}, {s(t1)}")
            for j in range(8):
                sp = acc(2 * e, j)
                if sp[0] == 'a':
                    for i in range(8): k(f"v_accvgpr_read_b32 {v(vT+i)}, {a(sp[1]+i)}")
                    b = vT
                else:
                    b = sp[1]
                if scaled:
                    for i in range(0, 8, 2): k(f"v_pk_mul_f32 {v(b+i,2)}, {v(b+i,2)}, {s(t2,2)}")
                for i in range(4):
                    k(f"v_cvt_pk_bf16_f32 {v(b+i)}, {v(b+2*i)}, {v(b+2*i+1)}")
                k(f"buffer_store_dwordx4 {v(b,4)}, {v(vSt)}, {s(srdO,4)}, {s(t0)} offen{'' if (scaled and WB) else sfx}")
                k(f"s_add_u32 {s(t0)}, {s(t0)}, {s(CP['Sj'])}")
                if sp[0] == 'a': k("s_nop 1")
            k(f"s_add_u32 {s(t1)}, {s(t1)}, {s(CP['Si'])}")
        k(f"s_setpc_b64 {s(sRe,2)}")
    Lepl = k.newlab('epl')
    k.label(Lepl)
    SORD = list(range(20, 32)) + list(range(16, 20))
    MIX = 'nomix' not in abl
    Lns2 = k.newlab('ns2')
    k(f"s_mov_b32 {s(t2)}, {s(CP['scale'])}\ns_mov_b32 {s(t3)}, {s(CP['scale'])}\ns_cmp_eq_u32 {s(CP['scale'])}, 0\ns_cbranch_scc1 {Lns2}")
    for scaled in (1, 0):
        if not scaled: k.label(Lns2)
        k(f"s_mov_b32 {s(t0)}, {s(CP['obase'])}")
        for p_ in ([x for pr in zip(range(16), SORD) for x in pr] if MIX else list(range(16)) + SORD):
            e, j = p_ >> 3, p_ & 7
            sp = acc(2 * e, j)
            if sp[0] == 'a':
                for i in range(8): k(f"v_accvgpr_read_b32 {v(vT+i)}, {a(sp[1]+i)}")
                b = vT
            else:
                b = sp[1]
            if scaled:
                for i in range(0, 8, 2): k(f"v_pk_mul_f32 {v(b+i,2)}, {v(b+i,2)}, {s(t2,2)}")
            d = b if p_ < 16 else 192 + 4 * SORD.index(p_)
            for i in range(4):
                k(f"v_cvt_pk_bf16_f32 {v(d+i)}, {v(b+2*i)}, {v(b+2*i+1)}")
            if p_ < 16:
                k(f"buffer_store_dwordx4 {v(b,4)}, {v(vSt)}, {s(srdO,4)}, {s(t0)} offen{sfx}")
                k(f"s_add_u32 {s(t0)}, {s(t0)}, {s(CP['Sj'])}" if p_ != 7 else f"s_add_u32 {s(t0)}, {s(CP['obase'])}, {s(CP['Si'])}")
                if MIX:
                    for i in range(8): k(f"v_accvgpr_write_b32 {a(8*p_+i)}, 0")
        k(f"s_setpc_b64 {s(sRe,2)}")
    ool = k.lines; k.lines = save

    S_ = Regs('s', 24, 90)
    srdK = S_.alloc('srdK', 4, 4); srdV = S_.alloc('srdV', 4, 4)
    sh = S_.alloc('h'); snA = S_.alloc('na'); snB = S_.alloc('nb'); srdS = S_.alloc('srdS', 4, 4); sSa = S_.alloc('sa'); srdF = S_.alloc('srdF', 4, 4); sPw = S_.alloc('pw', 4, 2); sL2 = S_.alloc('l2'); sPB = S_.alloc('pb'); sPf = CP['flag']; sOut = S_.alloc('out', 2, 2)
    sKo = S_.alloc('ko'); sVo = S_.alloc('vo')
    sC1 = S_.alloc('c1'); sMK = S_.alloc('mk'); sW4 = S_.alloc('w4')
    sVis = S_.alloc('vis', 2, 2); sAbs = S_.alloc('abs'); sThr = S_.alloc('thr'); sThC = S_.alloc('thc')
    sE = S_.alloc('e', 6)
    sRa = S_.alloc('ra', 2, 2); sM0 = S_.alloc('m0', 2, 2)
    sQ = S_.alloc('qoff', 2); sLo = S_.alloc('lo', 3)
    V = Regs('v', 6, 64)
    vKV = V.alloc('kv'); vDma = V.alloc('dma'); vChk = V.alloc('chk'); vNinf = V.alloc('ninf'); vFo = V.alloc('fo'); vFx = V.alloc('fx')
    vL = V.alloc('l', 4, 4); vTB = V.alloc('tb', 4)
    vE = V.alloc('e', 8, 4); vTS = V.alloc('ts', 16, 4); vOne = V.alloc('one', 4, 4)
    def TS(qt): return vTS + 4 * qt
    vT = V.alloc('t', 16, 4)
    def Sreg(par, qt): return 64 + par * 32 + qt * 8
    def Preg(par, qt): return 128 + par * 16 + qt * 4
    def Nreg(qt): return 160 + qt * 8
    def Oreg(qt, db): return qt * 32 + db * 4
    def KF(n): return 192 + n * 4
    def VF(n): return 224 + n * 4
    T = vT; vDm2 = 255
    AB = (0, 1, 2, 3); A_ = (0, 1)
    MF = "v_mfma_f32_16x16x32_bf16"
    def xlane(regs, tmps, op):
        for sw_ in ("v_permlane32_swap_b32", "v_permlane16_swap_b32"):
            for x, y in zip(regs, tmps): k(f"v_mov_b32 {v(y)}, {v(x)}")
            k("s_nop 1")
            for x, y in zip(regs, tmps): k(f"{sw_} {v(x)}, {v(y)}")
            k("s_nop 1")
            for x, y in zip(regs, tmps): k(f"{op} {v(x)}, {v(x)}, {v(y)}")

    KS = 'ks' in abl
    LQ, LK, LV = (196, 212, 232) if KS else (192, 208, 228)
    vD = 192; vV = vFx; sP8 = sL2
    if KS: assert all(x[0] - x[1] >= 2 for x in ITEMS)
    sLa = S_.alloc('la', 7)
    def local_setup():
        k(f"s_and_b32 {s(t0)}, s2, 7\ns_lshl_b32 {s(t0)}, {s(t0)}, 4\ns_lshl_b32 {s(t1)}, {s(sw)}, 2\ns_add_u32 {s(sLo)}, {s(t0)}, {s(t1)}")
        k(f"s_lshr_b32 {s(t2)}, s2, 3\ns_lshl_b32 {s(t2)}, {s(t2)}, 17")
        k(f"s_lshl_b32 {s(t0)}, {s(sLo)}, 10\ns_add_u32 {s(t0)}, {s(t0)}, {s(t2)}\ns_add_u32 {s(sLa)}, {s(t0)}, {WS_QA}\ns_add_u32 {s(sLa+1)}, {s(t0)}, {WS_KA}")
        k(f"s_and_b32 {s(sLo+1)}, {s(sLo)}, 63\ns_cmp_eq_u32 {s(sLo+1)}, 0\ns_cselect_b32 {s(t3)}, 0, 1024\ns_sub_u32 {s(sLa+2)}, {s(sLa+1)}, {s(t3)}")
        k(f"s_lshl_b32 {s(t0)}, {s(sLo)}, 9\ns_add_u32 {s(t0)}, {s(t0)}, {s(t2)}\ns_add_u32 {s(sLa+3)}, {s(t0)}, {WS_VA}\ns_sub_u32 {s(sLa+4)}, {s(sLa+3)}, {s(t3)}")
        k(f"s_add_u32 {s(sLa+5)}, {s(sLa+3)}, 65536\ns_add_u32 {s(sLa+6)}, {s(sLa+4)}, 65536")
    def local_loads():
        def ld(dst, so, off): return (None, f"buffer_load_dwordx4 {v(dst,4)}, {v(vL16)}, {s(srdO,4)}, {s(so)} offen offset:{off} sc1", None)
        o = [ld(LQ+4*j, sLa, j*1024) for j in range(4)] + [ld(LK+4+4*j, sLa+1, j*1024) for j in range(4)] + [ld(LK, sLa+2, 0)]
        for db in range(2):
            o += [ld(LV+12*db+4+4*j, sLa+3+2*db, j*1024) for j in range(2)] + [ld(LV+12*db, sLa+4+2*db, 0)]
        return o
    C0, C1, CZ, Mx, My, Sb, Ts = 128, 132, 136, 140, 144, 148, 20
    def local_pre():
        k(f"v_and_b32 {v(T)}, 15, {v(vLane)}\nv_lshrrev_b32 {v(T+1)}, 4, {v(vLane)}\nv_lshlrev_b32 {v(T+1)}, 2, {v(T+1)}\nv_sub_u32 {v(T)}, {v(T)}, {v(T+1)}")
        for r_ in range(4):
            k(f"v_cmp_ge_i32 vcc, {r_-9}, {v(T)}\nv_subrev_u32 {v(T+2)}, {r_}, {v(T)}\nv_cmp_ge_u32 {s(sM0,2)}, 7, {v(T+2)}\ns_nop 0")
            k(f"v_cndmask_b32 {v(C0+r_)}, {v(vNinf)}, 0, vcc\nv_cndmask_b32 {v(C1+r_)}, {v(vNinf)}, 0, {s(sM0,2)}")
        k(f"s_cmp_eq_u32 {s(sLo+1)}, 0\ns_cselect_b64 vcc, -1, 0\ns_nop 0")
        for r_ in range(4): k(f"v_cndmask_b32 {v(CZ+r_)}, {v(C0+r_)}, {v(vNinf)}, vcc")
        k(f"s_lshl_b32 {s(t0)}, {s(sLo)}, 10\ns_lshr_b32 {s(t1)}, s2, 3\ns_lshl_b32 {s(t1)}, {s(t1)}, 17\ns_add_u32 {s(t0)}, {s(t0)}, {s(t1)}\ns_add_u32 {s(sLo)}, {s(t0)}, {WS_OA}")
    def local_stream():
        save_ = k.lines; k.lines = []
        U = range(4); PB = LQ
        for u in U:
            k(f"{MF} {v(Sb+8*u,4)}, {v(LK+4*u,4)}, {v(LQ+4*u,4)}, {v(CZ if u == 0 else C0,4)}")
            k(f"{MF} {v(Sb+8*u+4,4)}, {v(LK+4*u+4,4)}, {v(LQ+4*u,4)}, {v(C1,4)}")
        for _ in range(4): k("s_nop 1")
        for u in U: k(f"v_max3_f32 {v(Mx+u)}, {v(Sb+8*u)}, {v(Sb+8*u+1)}, {v(Sb+8*u+2)}")
        for u in U: k(f"v_max3_f32 {v(Mx+u)}, {v(Mx+u)}, {v(Sb+8*u+3)}, {v(Sb+8*u+4)}")
        for u in U: k(f"v_max3_f32 {v(Mx+u)}, {v(Mx+u)}, {v(Sb+8*u+5)}, {v(Sb+8*u+6)}")
        for u in U: k(f"v_max_f32 {v(Mx+u)}, {v(Mx+u)}, {v(Sb+8*u+7)}")
        xlane([Mx + u for u in U], [My + u for u in U], "v_max_f32")
        for u in U:
            for i in range(8): k(f"v_sub_f32 {v(Sb+8*u+i)}, {v(Sb+8*u+i)}, {v(Mx+u)}")
        for u in U:
            for i in range(8): k(f"v_exp_f32 {v(Sb+8*u+i)}, {v(Sb+8*u+i)}")
        for u in U:
            for i in range(4): k(f"v_cvt_pk_bf16_f32 {v(PB+4*u+i)}, {v(Sb+8*u+2*i)}, {v(Sb+8*u+2*i+1)}")
        k("s_nop 1")
        for u in U: k(f"{MF} {v(Ts+4*u,4)}, {v(vOne,4)}, {v(PB+4*u,4)}, 0")
        for u in U:
            for db in range(2): k(f"{MF} {v(Sb+8*u+4*db,4)}, {v(LV+12*db+2+2*u,4)}, {v(PB+4*u,4)}, 0")
        for u in U: k(f"v_rcp_f32 {v(Mx+u)}, {v(Ts+4*u)}")
        k("s_nop 1\ns_nop 1")
        for u in U:
            for i in range(8): k(f"v_mul_f32 {v(Sb+8*u+i)}, {v(Sb+8*u+i)}, {v(Mx+u)}")
            for i in range(4): k(f"v_cvt_pk_bf16_f32 {v(Sb+8*u+i)}, {v(Sb+8*u+2*i)}, {v(Sb+8*u+2*i+1)}")
            k(f"buffer_store_dwordx4 {v(Sb+8*u,4)}, {v(vL16)}, {s(srdO,4)}, {s(sLo)} offen offset:{u*1024}{sfx}")
        out = [x.strip() for x in k.lines]; k.lines = save_
        return out

    INI = []; k.collect = INI
    head_ids()
    k(f"s_mov_b32 {s(sh)}, {s(t2)}\ns_bfe_u32 {s(snA)}, {TABA}, {s(t3)}\ns_add_u32 {s(snA)}, {s(snA)}, 1\ns_bfe_u32 {s(snB)}, {TABB}, {s(t3)}\ns_add_u32 {s(snB)}, {s(snB)}, 1")
    k(f"s_lshl_b32 {s(sW4)}, {s(sw)}, 12\nv_add_u32 {v(vDma)}, {s(sW4)}, {v(vL16)}")
    k(f"s_lshl_b32 {s(t0)}, {s(snB)}, 2\ns_lshl_b32 {s(t1)}, {s(snA)}, 2\ns_lshl_b32 {s(srdK+2)}, {s(t1)}, 13\ns_mov_b32 {s(srdV+2)}, {s(srdK+2)}")
    k(f"s_sub_u32 {s(sE)}, {s(t0)}, 4\ns_add_u32 {s(sE)}, {s(sE)}, {s(sw)}\ns_add_u32 {s(sE+1)}, {s(sE)}, 1\ns_mov_b32 {s(sE+2)}, {s(t0)}")
    k(f"s_sub_u32 {s(sE+3)}, {s(t1)}, 4\ns_add_u32 {s(sE+3)}, {s(sE+3)}, {s(sw)}\ns_add_u32 {s(sE+4)}, {s(sE+3)}, 1\ns_mov_b32 {s(sE+5)}, {s(t1)}")
    EEX = 'noeex' not in abl and not KS
    if KS: k(f"s_and_b32 {s(t0)}, {s(sw)}, 1\ns_sub_u32 {s(sE+3)}, {s(sE+3)}, {s(t0)}\ns_add_u32 {s(sE+4)}, {s(sE+3)}, 2\ns_lshl_b32 {s(sP8)}, {s(t0)}, 13")
    if EEX: k(f"s_cmp_lt_u32 {s(sw)}, 2\ns_cselect_b32 {s(t0)}, 2, 0\ns_sub_u32 {s(sE+5)}, {s(sE+5)}, {s(t0)}")
    k(f"s_mov_b32 {s(srdK+3)}, 0x20000\ns_mov_b32 {s(srdV+3)}, 0x20000\ns_lshl_b32 {s(sLo+2)}, {s(sh)}, 19")
    k(f"s_add_u32 {s(t0)}, {s(sLo+2)}, {WS_KB}\ns_add_u32 {s(srdK)}, {s(sWS)}, {s(t0)}\ns_addc_u32 {s(srdK+1)}, {s(sWS+1)}, 0")
    k(f"s_add_u32 {s(t0)}, {s(sLo+2)}, {WS_VB}\ns_add_u32 {s(srdV)}, {s(sWS)}, {s(t0)}\ns_addc_u32 {s(srdV+1)}, {s(sWS+1)}, 0")
    def dmaK(j): return f"buffer_load_dwordx4 {v(vDma)}, {s(srdK,4)}, {s(sKo)} offen offset:{j*1024}{ksc} lds"
    def dmaV(j): return f"buffer_load_dwordx4 {v(vDma)}, {s(srdV,4)}, {s(sVo)} offen offset:{j*1024}{ksc} lds"
    def dma_group():
        g = [(f"s_mov_b32 m0, {s(sMK)}", dmaK(0), None), (None, dmaK(1), None), (None, dmaK(2), None), (None, dmaK(3), f"s_add_u32 {s(sKo)}, {s(sKo)}, {STG}"),
             (f"s_add_u32 m0, {s(sMK)}, {STG}", dmaV(0), None), (None, dmaV(1), None), (None, dmaV(2), None), (None, dmaV(3), f"s_add_u32 {s(sVo)}, {s(sVo)}, {STG}")]
        return g
    def emit_group(items):
        for pre, ins, post in items:
            if pre: k(pre + "\ns_nop 0")
            k(ins)
            if post: k(post)
    k.collect = None
    ST.stamp(7)
    k(f"v_mov_b32 {v(vKV)}, {v(vL16)}")
    for a_ in range(8): k(f"ds_read_b128 {a(KF(a_),4)}, {v(vKV)} offset:{a_*1024}")
    k(f"s_load_dwordx2 {s(sPw,2)}, s[0:1], {KARG['B_w_o']}\ns_load_dwordx2 {s(sPw+2,2)}, s[0:1], {KARG['A_wo']}\ns_load_dwordx2 {s(sOut,2)}, s[0:1], {KARG['out']}\ns_mov_b32 {s(srdF+3)}, 0x20000")
    k(f"s_call_b64 {s(sRe,2)}, {Lepl}\ns_mov_b32 {s(sPend)}, {s(CP['flag'])}\ns_mov_b32 {s(srdS+2)}, {WS_SIZE}")
    k.label(Linit)
    ST.stamp(10) if 'lp' not in abl else None
    k(f"s_mov_b32 {s(srdS)}, {s(sWS)}\ns_mov_b32 {s(srdS+1)}, {s(sWS+1)}\ns_mov_b32 {s(srdS+3)}, 0x20000")
    k(f"s_lshl_b32 {s(t0)}, {s(CP['Si'])}, 1\ns_add_u32 {s(CP['obase'])}, {s(CP['obase'])}, {s(t0)}\ns_lshl_b32 {s(t0)}, {s(CP['Sj'])}, 2\ns_add_u32 {s(sSa)}, {s(CP['obase'])}, {s(t0)}")
    k.collect = INI
    k(f"s_mov_b32 {s(sKo)}, {5*STG}\ns_mov_b32 {s(sVo)}, {4*STG}")
    k(f"v_mov_b32 {v(vNinf)}, 0xff800000\ns_mov_b32 {s(sThr)}, {f32bits(THR)}")
    k(f"s_lshl_b32 {s(t1)}, {s(sw)}, 1\ns_sub_u32 {s(t1)}, {s(t1)}, 8")
    k(f"s_lshl_b32 {s(sQ)}, {s(snA)}, 3\ns_add_u32 {s(sQ)}, {s(sQ)}, {s(t1)}\ns_lshl_b32 {s(sQ+1)}, {s(snB)}, 3\ns_add_u32 {s(sQ+1)}, {s(sQ+1)}, {s(t1)}")
    def stash_item(m):
        post = f"s_add_u32 {s(sSa)}, {s(sSa)}, {s(CP['Sj'])}"
        if m == 3: post = f"s_add_u32 {s(sSa)}, {s(CP['obase'])}, {s(CP['Si'])}"
        if m == 11: post = f"s_mov_b32 {s(sSa)}, {s(CP['obase'])}"
        return (None, f"buffer_store_dwordx4 {v(192+4*m,4)}, {v(vL16)}, {s(srdS,4)}, {s(sSa)} offen{sfx}", post)
    k(f"s_lshr_b32 {s(t0)}, {s(sh)}, 1\ns_lshl_b32 {s(t0)}, {s(t0)}, 7\ns_add_u32 {s(t0)}, {s(t0)}, {WS_FLAG + 32*128}\ns_lshr_b32 {s(t1)}, s2, 6\ns_lshl_b32 {s(t1)}, {s(t1)}, 8\ns_add_u32 {s(t1)}, {s(t1)}, {WS_FLAG + 48*128 - 64}")
    k(f"v_min_u32 {v(vFo)}, 31, {v(vLane)}\nv_lshlrev_b32 {v(vFo)}, 3, {v(vFo)}\nv_mov_b32 {v(vFx)}, {s(t0)}\nv_mov_b32 {v(vChk)}, {s(t1)}\nv_cmp_gt_u32 vcc, 8, {v(vLane)}\ns_nop 1\nv_cndmask_b32 {v(vFx)}, {v(vChk)}, {v(vFx)}, vcc\nv_add_u32 {v(vFo)}, {v(vFo)}, {v(vFx)}")
    if False:
        Lc3 = k.newlab('c3')
        k(f"s_lshl_b32 {s(t0)}, {s(sw)}, 8\ns_add_u32 {s(t0)}, {s(t0)}, s2\ns_cmp_ge_u32 {s(t0)}, 128\ns_cbranch_scc1 {Lc3}\ns_lshl_b32 {s(t0)}, {s(t0)}, 7\ns_add_u32 {s(t0)}, {s(t0)}, {WS_FLAG3}\nv_mov_b32 {v(vChk)}, 0\ns_mov_b64 exec, 1")
        k(f"buffer_store_dword {v(vChk)}, off, {s(srdO,4)}, {s(t0)} sc1\ns_mov_b64 exec, -1")
        k.label(Lc3)
    k(f"s_mov_b32 {s(sC1)}, 0")
    ZI = 80
    zrest = []
    if not MIX:
        for i in range(ZI): k(f"v_accvgpr_write_b32 {a(i)}, 0")
        zrest = [f"v_accvgpr_write_b32 {a(i)}, 0" for i in range(ZI, 128)]
    for i in range(4): k(f"v_mov_b32 {v(vL+i)}, 0\nv_mov_b32 {v(TS(i))}, 0\nv_mov_b32 {v(vOne+i)}, 0x3f803f80")
    def l2w():
        k(f"v_lshrrev_b32 {v(T+14)}, 3, {v(vLane)}\nv_lshlrev_b32 {v(T+14)}, 11, {v(T+14)}\nv_and_b32 {v(T+13)}, 7, {v(vLane)}\nv_lshl_add_u32 {v(T+14)}, {v(T+13)}, 7, {v(T+14)}")
        k(f"s_lshr_b32 {s(t0)}, s2, 3\ns_lshl_b32 {s(t0)}, {s(t0)}, 2\ns_add_u32 {s(t0)}, {s(t0)}, {s(sw)}\ns_lshl_b32 {s(t0)}, {s(t0)}, 14\ns_and_b32 {s(t1)}, s2, 1\ns_lshl_b32 {s(t1)}, {s(t1)}, 10\ns_add_u32 {s(t0)}, {s(t0)}, {s(t1)}")
        k(f"s_bitcmp1_b32 s2, 2\ns_cselect_b32 {s(t1)}, 0, {41*64*2048}\ns_mov_b32 {s(t2)}, {8*MB}\ns_cselect_b32 {s(srdF+2)}, {41*64*2048}, {s(t2)}\ns_cselect_b32 {s(t3)}, 0, {2*MB}\ns_add_u32 {s(t1)}, {s(t1)}, {s(t0)}")
        k(f"s_mov_b32 {s(srdF)}, {s(sPw)}\ns_mov_b32 {s(srdF+1)}, {s(sPw+1)}")
        L2W = []
        for r_ in ((2, 1, 0) if 'l2rev' in abl else (0, 1, 2)):
            L2W.append(f"s_add_u32 {s(t2)}, {s(t1)}, {r_*2*MB}\nbuffer_load_dword {v(vDm2)}, {v(T+14)}, {s(srdF,4)}, {s(t2)} offen")
        for x in L2W: k(x)
        k(f"s_mov_b32 {s(srdF)}, {s(sPw+2)}\ns_mov_b32 {s(srdF+1)}, {s(sPw+3)}\ns_mov_b32 {s(srdF+2)}, {s(t3)}\nbuffer_load_dword {v(vDm2)}, {v(T+14)}, {s(srdF,4)}, {s(t0)} offen")
    EV2 = 'ev1' not in abl; LT = 'nolt' not in abl; evool = []
    sTo = sHasNext; vTo = 200
    def events2(which):
        fl = f"buffer_load_dwordx2 {v(vFlag,2)}, {v(vFo)}, {s(srdO,4)}, 0 offen sc1"
        fl2 = f"s_lshr_b32 {s(t0)}, {s(sh)}, 1\ns_lshl_b32 {s(t0)}, {s(t0)}, 7\ns_add_u32 {s(t0)}, {s(t0)}, {WS_FLAG + 11*8}\nv_min_u32 {v(vFa)}, 1, {v(vLane)}\nv_lshlrev_b32 {v(vFa)}, 5, {v(vFa)}\nbuffer_load_dwordx2 {v(vFlag,2)}, {v(vFa)}, {s(srdO,4)}, {s(t0)} offen sc1"
        def ev(val, body, ret=None):
            lb = k.newlab('eb'); lr = ret or k.newlab('er')
            k(f"s_cmp_eq_u32 {s(sAbs)}, {val}\ns_cbranch_scc1 {lb}")
            if not ret: k.label(lr)
            sv = k.lines; k.lines = []
            k.label(lb); body(lr); k(f"s_branch {lr}")
            evool.extend(k.lines); k.lines = sv
        def pub(sflag, lr):
            k(f"s_cmp_lg_u32 {s(sw)}, 0\ns_cbranch_scc1 {lr}")
            k(f"v_mov_b32 {v(T+12)}, {s(sTok)}\nv_mov_b32 {v(T+13)}, {s(sTok+1)}\ns_add_u32 {s(t0)}, {s(sflag)}, {WS_FLAG}\ns_mov_b64 exec, 1")
            k(f"buffer_store_dwordx2 {v(T+12,2)}, off, {s(srdO,4)}, {s(t0)} sc1\ns_mov_b64 exec, -1")
        def touch(p_, size):
            if LT or not TOUCH: return
            k(f"s_mov_b32 {s(srdF)}, {s(p_)}\ns_mov_b32 {s(srdF+1)}, {s(p_+1)}\ns_mov_b32 {s(srdF+2)}, {size}\ns_lshl_b32 {s(t0)}, s2, 2\ns_add_u32 {s(t0)}, {s(t0)}, {s(sw)}\ns_lshl_b32 {s(t0)}, {s(t0)}, 13")
            k(f"v_lshlrev_b32 {v(T+14)}, 7, {v(vLane)}\nbuffer_load_dword {v(vDm2)}, {v(T+14)}, {s(srdF,4)}, {s(t0)} offen")
        def check(load, lr, vm):
            lsp = k.newlab('spin')
            cmp_ = f"v_cmp_ne_u64 {s(sM0,2)}, {s(sTok,2)}, {v(vFlag,2)}\ns_nop 3\ns_cmp_eq_u64 {s(sM0,2)}, 0\ns_cbranch_scc1 {lr}"
            k(f"s_waitcnt vmcnt({vm})\n{cmp_}\ns_mov_b32 s3, {SPIN}")
            k.label(lsp)
            k(f"{load}\ns_waitcnt vmcnt(0)\n{cmp_}\ns_sleep 8\ns_sub_u32 s3, s3, 1\ns_cbranch_scc0 {lsp}")
        def mask(e, lr):
            lo = 2 if e < 2 else 0
            if e in (0, 3):
                for r_ in range(0, 4, 2):
                    k(f"v_pk_add_f32 {v(Nreg(lo)+r_,2)}, {v(Nreg(lo)+r_,2)}, {v(vTB+r_,2)}\nv_pk_add_f32 {v(Nreg(lo+1)+4+r_,2)}, {v(Nreg(lo+1)+4+r_,2)}, {v(vTB+r_,2)}")
                k(f"v_mov_b32 {v(Nreg(lo)+4)}, {v(vNinf)}\nv_mov_b32 {v(Nreg(lo)+5)}, {v(vNinf)}\nv_mov_b64 {v(Nreg(lo)+6,2)}, {v(Nreg(lo)+4,2)}")
                if KS and e == 3:
                    k(f"s_bitcmp0_b32 {s(sw)}, 0\ns_cbranch_scc1 {lr}")
                    for r_ in range(0, 16, 2): k(f"v_mov_b64 {v(Nreg(2)+r_,2)}, {v(Nreg(lo)+4,2)}")
            else:
                k(f"v_mov_b32 {v(Nreg(lo))}, {v(vNinf)}\nv_mov_b32 {v(Nreg(lo)+1)}, {v(vNinf)}")
                for r_ in range(2, 32 if (KS and e == 4) else 16, 2): k(f"v_mov_b64 {v(Nreg(lo)+r_,2)}, {v(Nreg(lo),2)}")
        for e in which:
            if e < 6: ev(s(sE+e), lambda lr, e=e: mask(e, lr)); continue
            ev(s(sPB), lambda lr: (k(f"s_mov_b32 {s(t1)}, {s(sPf)}\ns_mov_b32 {s(sPf)}, -1"), pub(t1, lr)))
            ln = k.newlab('e')
            vm = 16 if (LT or not TOUCH) else 18
            ev(U_PUB, lambda lr: (k(fl2), k(f"s_cmp_eq_u32 {s(sPend)}, -1\ns_cbranch_scc1 {lr}"), pub(sPend, lr)), ln)
            ev(12, lambda lr: k(fl2), ln)
            ev(U_MID, lambda lr: check(fl2, lr, 16), ln)
            ev(U_POLL, lambda lr: (k(fl), touch(sPw, 8 * MB)), ln)
            ev(U_CHK, lambda lr: (touch(sPw + 2, 2 * MB), check(fl, lr, vm)), ln)
            k.label(ln)
    def events(which):
        if EV2: return events2(which)
        for e in which:
            ln = k.newlab('e')
            if e >= 6:
                ln2 = k.newlab('e')
                fl = f"buffer_load_dwordx2 {v(vFlag,2)}, {v(vFo)}, {s(srdO,4)}, 0 offen sc1"
                fl2 = f"s_lshr_b32 {s(t0)}, {s(sh)}, 1\ns_lshl_b32 {s(t0)}, {s(t0)}, 7\ns_add_u32 {s(t0)}, {s(t0)}, {WS_FLAG + 11*8}\nv_min_u32 {v(vFa)}, 1, {v(vLane)}\nv_lshlrev_b32 {v(vFa)}, 5, {v(vFa)}\nbuffer_load_dwordx2 {v(vFlag,2)}, {v(vFa)}, {s(srdO,4)}, {s(t0)} offen sc1"
                def touch(p_, size):
                    if not TOUCH: return
                    k(f"s_mov_b32 {s(srdF)}, {s(p_)}\ns_mov_b32 {s(srdF+1)}, {s(p_+1)}\ns_mov_b32 {s(srdF+2)}, {size}\ns_lshl_b32 {s(t0)}, s2, 2\ns_add_u32 {s(t0)}, {s(t0)}, {s(sw)}\ns_lshl_b32 {s(t0)}, {s(t0)}, 13")
                    k(f"v_lshlrev_b32 {v(T+14)}, 7, {v(vLane)}\nbuffer_load_dword {v(vDm2)}, {v(T+14)}, {s(srdF,4)}, {s(t0)} offen")
                def dtouch(n):
                    lt = k.newlab('t')
                    k(f"s_cmp_ge_u32 s2, 96\ns_cbranch_scc1 {lt}\ns_lshl_b32 {s(t0)}, s2, 2\ns_add_u32 {s(t0)}, {s(t0)}, {s(sw)}\ns_add_u32 {s(t0)}, {s(t0)}, {n*384}\ns_cmp_lt_u32 {s(t0)}, 1024")
                    k(f"s_cselect_b32 {s(srdF)}, {s(sPw)}, {s(sPw+2)}\ns_cselect_b32 {s(srdF+1)}, {s(sPw+1)}, {s(sPw+3)}\ns_mov_b32 {s(t1)}, {2*MB}\ns_cselect_b32 {s(srdF+2)}, {8*MB}, {s(t1)}\ns_and_b32 {s(t0)}, {s(t0)}, 1023\ns_lshl_b32 {s(t0)}, {s(t0)}, 13")
                    k(f"v_lshlrev_b32 {v(T+14)}, 7, {v(vLane)}\nbuffer_load_dword {v(vDm2)}, {v(T+14)}, {s(srdF,4)}, {s(t0)} offen")
                    k.label(lt)
                def cpf3():
                    k(f"s_lshr_b32 {s(t1)}, s2, 3\ns_cmp_ge_u32 {s(t1)}, 3\ns_cbranch_scc1 {ln}\ns_lshl_b32 {s(t1)}, {s(t1)}, 2\ns_add_u32 {s(t1)}, {s(t1)}, {s(sw)}\ns_mov_b64 {s(sM0,2)}, vcc")
                    code_prefetch(k, sEx, name, name + "_end", t1, vLane, T + 14, vDm2, t0)
                    k(f"s_mov_b64 vcc, {s(sM0,2)}")
                def check(load, exp):
                    if 'nochk' in abl: return
                    lsp = k.newlab('spin')
                    k(f"s_waitcnt vmcnt({18 if TOUCH and 'dtouch' not in abl else 16})\ns_mov_b32 s3, {SPIN}")
                    k.label(lsp)
                    k(f"v_cmp_ne_u64 {s(sM0,2)}, {s(sTok,2)}, {v(vFlag,2)}\ns_nop 3\ns_cmp_eq_u64 {s(sM0,2)}, 0\ns_cbranch_scc1 {ln}\ns_sub_u32 s3, s3, 1\ns_cbranch_scc1 {ln}\ns_sleep 32\n{load}\ns_waitcnt vmcnt(0)\ns_branch {lsp}")
                if L2D:
                    k(f"s_cmp_lg_u32 {s(sAbs)}, {s(sL2)}\ns_cbranch_scc1 {ln2}")
                    l2w()
                    k.label(ln2)
                ln3 = k.newlab('e')
                k(f"s_cmp_lg_u32 {s(sAbs)}, {s(sPB)}\ns_cbranch_scc1 {ln3}")
                publish(sPf, T + 12)
                k(f"s_mov_b32 {s(sPf)}, -1")
                k.label(ln3)
                k(f"s_cmp_gt_u32 {s(sAbs)}, {U_CP if 'cpf2' in abl else U_CHK}\ns_cbranch_scc1 {ln}")
                acts = [(U_PUB, None), (U_MID, lambda: check(fl2, None)), (U_POLL, lambda: (k(fl), touch(sPw, 8 * MB))), (U_CHK, lambda: (touch(sPw + 2, 2 * MB), check(fl, v(vFx))))]
                if 'cpf2' in abl: acts.append((U_CP, cpf3))
                if 'dtouch' in abl:
                    acts = [(U_PUB, None), (10, lambda: dtouch(0)), (14, lambda: dtouch(1)), (18, lambda: (dtouch(2), check(fl2, None))), (U_POLL, lambda: (k(fl), dtouch(3))), (U_CHK, lambda: check(fl, None))]
                for u_, f_ in acts:
                    lx = k.newlab('e')
                    k(f"s_cmp_lg_u32 {s(sAbs)}, {u_}\ns_cbranch_scc1 {lx}")
                    if f_ is None:
                        k(fl2)
                        k(f"s_cmp_eq_u32 {s(sPend)}, -1\ns_cbranch_scc1 {ln}")
                        publish(sPend, T + 12)
                    else: f_()
                    k(f"s_branch {ln}")
                    k.label(lx)
                k.label(ln)
                continue
            k(f"s_cmp_lg_u32 {s(sAbs)}, {s(sE+e)}\ns_cbranch_scc1 {ln}")
            lo = 2 if e < 2 else 0
            for r_ in range(4):
                if e in (0, 3):
                    k(f"v_add_f32 {v(Nreg(lo)+r_)}, {v(Nreg(lo)+r_)}, {v(vTB+r_)}\nv_mov_b32 {v(Nreg(lo)+4+r_)}, {v(vNinf)}\nv_add_f32 {v(Nreg(lo+1)+4+r_)}, {v(Nreg(lo+1)+4+r_)}, {v(vTB+r_)}")
                else:
                    k(f"v_mov_b32 {v(Nreg(lo)+r_)}, {v(vNinf)}\nv_mov_b32 {v(Nreg(lo+1)+r_)}, {v(vNinf)}\nv_mov_b32 {v(Nreg(lo+1)+4+r_)}, {v(vNinf)}\nv_mov_b32 {v(Nreg(lo)+4+r_)}, {v(vNinf)}")
            if KS and e >= 3:
                if e == 3: k(f"s_bitcmp0_b32 {s(sw)}, 0\ns_cbranch_scc1 {ln}")
                for r_ in range(16): k(f"v_mov_b32 {v(Nreg(2)+r_)}, {v(vNinf)}")
            k("s_nop 0")
            k.label(ln)
    Lrs = {(p_, n_): k.newlab(f'rs{p_}{n_}') for p_ in range(2) for n_ in (2, 4)}
    local_setup()
    k(f"v_and_b32 {v(T)}, 15, {v(vLane)}\nv_lshrrev_b32 {v(T+1)}, 4, {v(vLane)}\nv_lshlrev_b32 {v(T+1)}, 2, {v(T+1)}\nv_sub_u32 {v(T)}, {v(T)}, {v(T+1)}")
    for r_ in range(4):
        k(f"v_cmp_le_i32 vcc, {r_}, {v(T)}\ns_nop 1\nv_cndmask_b32 {v(vTB+r_)}, {v(vNinf)}, 0, vcc")
    k(f"s_mov_b32 {s(sVis)}, {sum(1 << (u_-1) for u_ in (U_PUB, U_MID, U_POLL, U_CHK))}\ns_mov_b32 {s(sVis+1)}, 0")
    for e in range(6):
        k(f"s_sub_u32 {s(t0)}, {s(sE+e)}, 1\ns_bitset1_b64 {s(sVis,2)}, {s(t0)}")
    if L2D: k(f"s_sub_u32 {s(sL2)}, {s(sE+5)}, {L2D}\ns_sub_u32 {s(t0)}, {s(sL2)}, 1\ns_bitset1_b64 {s(sVis,2)}, {s(t0)}")
    if 'dtouch' in abl: k(f"s_cmp_lt_u32 s2, 96\ns_cselect_b32 {s(t0)}, {(1 << 9) | (1 << 13)}, 0\ns_or_b32 {s(sVis)}, {s(sVis)}, {s(t0)}")
    if 'cpf2' in abl: k(f"s_cmp_lt_u32 s2, 24\ns_cselect_b32 {s(t0)}, {1 << (U_CP-1)}, 0\ns_or_b32 {s(sVis)}, {s(sVis)}, {s(t0)}")
    k(f"s_add_u32 {s(sPB)}, {s(sE+2)}, 8\ns_sub_u32 {s(t0)}, {s(sPB)}, 1\ns_bitset1_b64 {s(sVis,2)}, {s(t0)}")
    if EV2: k(f"s_cmp_ge_u32 s2, 224\ns_cselect_b32 {s(t0)}, {1 << 11}, 0\ns_or_b32 {s(sVis)}, {s(sVis)}, {s(t0)}")
    LT2 = LT and 'lt2' in abl
    if LT2:
        LSH = 3; GB = 128 * (64 >> LSH) * 128; gsh = GB.bit_length() - 1
        LCN = [int(x) for x in os.environ.get('LCN', '10,10,9,9,16,9,9,8').split(',')]; LDL = [int(x) for x in os.environ.get('LDL', '1,1,1,1,4,4,3,7').split(',')]
        ga = LCN.index(16); assert sum(LCN) == 80 and all(LCN[g] + LDL[g] <= 2 * x[0] - 3 for g, x in enumerate(ITEMS))
        tab = [(0 if g == ga else sum(LCN[:g]) - (16 if g > ga else 0), LCN[g], LDL[g]) for g in range(8)]
        pk = lambda i: sum(t[i] << (8 * g) for g, t in enumerate(tab))
        k(f"s_lshr_b32 {s(t0)}, s2, 5\ns_cmp_eq_u32 {s(t0)}, {ga}\ns_cselect_b32 {s(srdF)}, {s(sPw+2)}, {s(sPw)}\ns_cselect_b32 {s(srdF+1)}, {s(sPw+3)}, {s(sPw+1)}")
        k(f"s_lshl_b32 {s(t0)}, {s(t0)}, 3\ns_or_b32 {s(t0)}, {s(t0)}, 0x80000")
        for i, d in ((0, t1), (1, srdF + 2), (2, sTo)):
            k(f"s_mov_b32 {s(t2)}, {pk(i) & 0xffffffff}\ns_mov_b32 {s(t3)}, {pk(i) >> 32}\ns_bfe_u64 {s(t2,2)}, {s(t2,2)}, {s(t0)}\ns_lshl_b32 {s(d)}, {s(t2)}, {gsh}")
        k(f"s_add_u32 {s(srdF)}, {s(srdF)}, {s(t1)}\ns_addc_u32 {s(srdF+1)}, {s(srdF+1)}, 0")
        k(f"s_and_b32 {s(t0)}, s2, 31\ns_lshl_b32 {s(t0)}, {s(t0)}, 2\ns_add_u32 {s(t0)}, {s(t0)}, {s(sw)}\ns_lshl_b32 {s(t0)}, {s(t0)}, {gsh - 7}\ns_sub_u32 {s(sTo)}, {s(t0)}, {s(sTo)}")
    elif LT:
        LSH = int(os.environ.get('LSH', '2')); GB = 128 * (64 >> LSH) * 128; nA_ = 2 * MB // GB; nW_ = 8 * MB // GB
        SKIP = set(int(x) for x in os.environ.get('LSKIP', '4567'))
        av = [0 if g in SKIP else 2 * x[1] - 1 for g, x in enumerate(ITEMS)]
        ga = min((g for g in range(8) if av[g] >= nA_), key=lambda g: av[g])
        cap = next(c for c in range(1, 16) if sum(min(av[g], c) for g in range(8) if g != ga) >= nW_)
        st_ = 0; tab = []
        for g in range(8):
            if g == ga: tab.append((0, nA_)); continue
            c = min(av[g], cap, nW_ - st_); tab.append((st_, st_ + c)); st_ += c
        assert st_ == nW_
        pk = lambda i: sum(t[i] << (8 * g) for g, t in enumerate(tab))
        gsh = GB.bit_length() - 1
        k(f"s_lshr_b32 {s(t0)}, s2, 5\ns_cmp_eq_u32 {s(t0)}, {ga}\ns_cselect_b32 {s(srdF)}, {s(sPw+2)}, {s(sPw)}\ns_cselect_b32 {s(srdF+1)}, {s(sPw+3)}, {s(sPw+1)}")
        k(f"s_lshl_b32 {s(t0)}, {s(t0)}, 3\ns_or_b32 {s(t0)}, {s(t0)}, 0x80000")
        k(f"s_mov_b32 {s(t2)}, {pk(1) & 0xffffffff}\ns_mov_b32 {s(t3)}, {pk(1) >> 32}\ns_bfe_u64 {s(t2,2)}, {s(t2,2)}, {s(t0)}\ns_lshl_b32 {s(srdF+2)}, {s(t2)}, {gsh}")
        k(f"s_mov_b32 {s(t2)}, {pk(0) & 0xffffffff}\ns_mov_b32 {s(t3)}, {pk(0) >> 32}\ns_bfe_u64 {s(t2,2)}, {s(t2,2)}, {s(t0)}\ns_lshl_b32 {s(sTo)}, {s(t2)}, {gsh}")
        k(f"s_and_b32 {s(t0)}, s2, 31\ns_lshl_b32 {s(t0)}, {s(t0)}, 2\ns_add_u32 {s(t0)}, {s(t0)}, {s(sw)}\ns_lshl_b32 {s(t0)}, {s(t0)}, {gsh - 7}\ns_add_u32 {s(sTo)}, {s(sTo)}, {s(t0)}")
    k.collect = None
    k(f"s_waitcnt vmcnt({16 if QL else 32})")
    ST.stamp(11) if 'lp' not in abl else None
    def rdK(unit, a_): return f"ds_read_b128 {a(KF(a_),4)}, {v(vKV)} offset:{unit*8192 + a_*1024}"
    def rdV(unit, n): return f"ds_read_b128 {a(VF(n),4)}, {v(vKV)} offset:{STG + unit*8192 + n*1024}"

    stubs = []; calls = []
    def slow_path(par, sm, evs):
        l1 = k.newlab('sp')
        src = vChk
        k(f"v_cmp_lt_f32 vcc, {s(sThr)}, {v(src)}")
        events(evs)
        st_ = k.newlab('rc')
        k(f"s_cbranch_vccnz {st_}")
        k.label(l1)
        calls.append((st_, l1, Lrs[(par, len(sm))]))

    SERP2 = 'noserp2' not in abl
    def qk_mfmas(par, qk):
        mf = []
        for kb in range(2):
            for qi, qt in enumerate(qk if (kb == 0 or not SERP2) else qk[::-1]):
                for ei, e in enumerate((0, 1, 2, 3) if (qi % 2 == 0 or not SERP2) else (3, 2, 1, 0)):
                    d = v(Sreg(par, qt) + 4 * kb, 4)
                    c = v(Nreg(qt) + 4 * kb, 4) if ei == 0 else d
                    mf.append(f"{MF} {d}, {a(KF(kb*4+e),4)}, {a(Qreg(qt,e),4)}, {c}")
        return mf
    def step(which, qk, sm, pv, dma=(), dgaps=(), last=False, loop=None, evs=(), exit_e=None, vmw=24, mode=None, xr=()):
        par = 1 - which
        mf = qk_mfmas(par ^ 1, qk)
        nqk = len(mf)
        for n in range(8):
            for qt in (pv if (n % 2 == 0 or not SERP2) else pv[::-1]):
                d = a(Oreg(qt, n), 4)
                mf.append(f"{MF} {d}, {a(VF(n),4)}, {v(Preg(par ^ 1, qt), 4)}, {d}")
        N = len(mf); npv = N - nqk
        first = {}
        head = {g: [] for g in range(N)}
        tail = {g: [] for g in range(N)}
        before = []; after = []
        bar = (which == 1 or mode is not None) and not last
        spl = mode in ('t1', 't2', 'x')
        def rV(n): return rdV(which, n) if not spl else f"ds_read_b128 {a(VF(n),4)}, {v(vV)} offset:{STG + (8192 if mode == 't2' else 0) + n*1024}"
        vfix = {}
        dg = list(dgaps)[:len(dma)]
        assert len(dg) == len(dma)
        def place_reads(g, items, stride):
            for x in items:
                while g in dg or head[g]: g += 1
                head[g].append((4, x)); g += stride
            return g
        if pv:
            if nqk: place_reads(1, [rV(n) for n in range(8)], 3 if nqk > 16 else 1)
            else: before += [rV(n) for n in range(8)]
        if xr: place_reads(1, xr, 2)
        midw = (f"s_waitcnt vmcnt({vmw}) lgkmcnt(0)" if bar and vmw is not None else "s_waitcnt lgkmcnt(0)")
        rot = [f"s_add_u32 {s(sMK)}, {s(sC1)}, {s(sW4)}", f"s_add_u32 {s(sC1)}, {s(sC1)}, {SLOT}", f"s_cmp_ge_u32 {s(sC1)}, {5*SLOT}\ns_cselect_b32 {s(sC1)}, 0, {s(sC1)}"]
        rotv = [f"v_add_u32 {v(vKV)}, {s(sC1)}, {v(vL16)}"]
        nxt = [] if last else [rdK(0 if spl else which ^ 1, a_) for a_ in range(8)]
        if spl:
            rot = [rot[1], f"s_cmp_ge_u32 {s(sC1)}, {5*SLOT}\ns_cselect_b32 {s(sC1)}, {s(sP8)}, {s(sC1)}"]
            if mode != 't1': rotv = [f"v_mov_b32 {v(vV)}, {v(vKV)}"] + rotv
        if mode == 'tr': rotv = [f"v_add_u32 {v(vV)}, {s(sC1)}, {v(vL16)}", f"v_add_u32 {v(vKV)}, {s(sP8)}, {v(vV)}"]
        for g in dg: first[g] = None
        posts = []
        for (pre, ins, post), g in zip(dma, dg):
            if pre:
                assert g - 1 not in first
                first[g - 1] = pre
            if post: posts.append((g + 1, post))
        def put_first(g, x, limit):
            while g in first and g < limit: g += 1
            assert g < limit, (x, g, limit)
            first[g] = x
            return g
        if npv:
            if nqk:
                assert nqk - 1 not in first
                first[nqk - 1] = midw
            else: before.append(midw)
            g0 = nqk
            if bar:
                head[nqk].append((8, "s_barrier")); first[nqk] = None
                if 'atp' in abl:
                    first[nqk - 1] = f"s_memtime {s(sStamp,2)}\n" + midw
                    head[nqk].append((12, f"s_lshr_b32 {s(sStamp+1)}, {s(sAbs)}, 1\ns_add_u32 {s(sStamp+1)}, {s(sStamp+1)}, 16\nv_cmp_eq_u32 vcc, {s(sStamp+1)}, {v(vLane)}\nv_mov_b32 {v(T+15)}, {s(sStamp)}\ns_nop 0\nv_cndmask_b32 {v(vStamp)}, {v(vStamp)}, {v(T+15)}, vcc"))
                g0 = nqk + 1
                assert mode or not any(p_[0] for p_ in dma)
                g = 0
                for x in rot: g = put_first(g, x, nqk - 2) + 1
                vfix[nqk - 1] = list(rotv)
                if mode == 'tr': put_first(nqk + 1, f"s_add_u32 {s(sC1)}, {s(sC1)}, {s(sP8)}", N)
            if nxt:
                place_reads(g0, nxt[:4], 3 if npv > 16 else 2)
                for x, g in zip(nxt[4:], [g for g in range(N - 7, N - 1) if g not in dg][-4:]):
                    assert not head[g]
                    head[g].append((4, x))
                assert N - 1 not in first
                first[N - 1] = "s_waitcnt lgkmcnt(4)"
        else:
            after += [midw] + (["s_barrier"] + rot + rotv if bar else []) + nxt + ["s_waitcnt lgkmcnt(0)"]
        if nqk:
            g = nqk // 2 - 1
            while g in first: g -= 1
            nrd = sum(1 for gg in range(g) for c, t_ in head[gg] if t_ and t_.startswith('ds_read'))
            first[g] = f"s_waitcnt lgkmcnt({nrd})"
        for (pre, ins, post), g in zip(dma, dg): head[g].append((8, ins))
        for g, x in posts: put_first(g, x, N)
        if sm and not last:
            gg = put_first(0, f"s_add_u32 {s(sAbs)}, {s(sAbs)}, 1", N) + 1 if spl else 0
            gg = put_first(gg, f"s_bitcmp1_b64 {s(sVis,2)}, {s(sAbs)}\ns_cselect_b32 {s(sThC)}, -1.0, {s(sThr)}", N)
            head[gg].insert(0, (4, None))
            put_first(gg + 1, f"s_add_u32 {s(sAbs)}, {s(sAbs)}, 1", N)
        ops = []
        def op(name, pr, cost, ins, deps=(), trans=False): ops.append(dict(id=name, pr=pr, cost=cost, ins=ins, deps=set(deps), trans=trans))
        seq = [(qt, n) for qt in sm for n in range(8)]
        for idx, (qt, n) in enumerate(seq):
            Sq = Sreg(par, qt); Pq = Preg(par, qt)
            if n == 0: op(('l', qt), idx + 3, 4, f"v_add_f32 {v(vL+qt)}, {v(vL+qt)}, {v(TS(qt))}")
            deps = [('c', seq[idx - 8][0], n // 2)] if idx >= 8 else []
            op(('e', qt, n), idx, 8, f"v_exp_f32 {v(vE + n)}, {v(Sq+n)}", deps, True)
            if n & 1: op(('c', qt, n // 2), idx + 1.5, 4, f"v_cvt_pk_bf16_f32 {v(Pq + n//2)}, {v(vE + n-1)}, {v(vE + n)}", [('e', qt, n - 1), ('e', qt, n)])
        thr = sThr if last else sThC
        fin = []
        if len(sm) == 4:
            fin = [f"v_max3_f32 {v(vChk)}, {v(TS(0))}, {v(TS(1))}, {v(TS(2))}", f"v_max_f32 {v(vChk)}, {v(vChk)}, {v(TS(3))}"]
        elif sm:
            fin = [f"v_max_f32 {v(vChk)}, {v(TS(0))}, {v(TS(1))}"]
        if sm: fin.append(f"v_cmp_nge_f32 vcc, {s(thr)}, {v(vChk)}")
        ops.sort(key=lambda o: o['pr'])
        done = set(); lasttrans = None
        fixedc = [sum(x[0] for x in head[g]) + 4 * len(vfix.get(g, [])) for g in range(N)]
        NV = max(N - RESV, 1)
        NG = NV + max(len(sm) - 1, 0)
        tot = sum(o['cost'] for o in ops) + sum(fixedc[:NV])
        for t_ in before: k(t_)
        cum = 0; gi = 0
        pend = list(sm)
        cdone = {}
        lastsum = None
        def nstates(since):
            n = 0
            for ln in k.lines[since:]:
                ln = ln.strip()
                n += int(ln.split()[1]) + 1 if ln.startswith("s_nop") else 1
            return n
        def fill(used, force):
            nonlocal cum, gi, lasttrans
            gi += 1
            target = tot * gi / NG
            while True:
                ready = [o for o in ops if o['id'] not in done and o['deps'] <= done and (o['trans'] or lasttrans not in o['deps'])]
                if not ready:
                    if force and len(done) < len(ops): k("s_nop 0"); lasttrans = None; continue
                    break
                if not force:
                    room = max(CAP - used, 4 * int((target - cum + 2) // 4))
                    if used >= CAP and cum + 2 >= target: break
                    fit = [o for o in ready if o['cost'] <= room]
                    if not fit:
                        if used >= CAP or cum >= target: break
                        fit = ready
                    o = fit[0]
                else: o = ready[0]
                k(o['ins']); done.add(o['id']); used += o['cost']; cum += o['cost']
                lasttrans = o['id'] if o['trans'] else None
                if o['id'][0] == 'c': cdone[o['id'][1]] = len(k.lines)
        def try_sum(force=False):
            nonlocal lastsum, lasttrans
            while pend and all(('c', pend[0], j) in done for j in range(4)) and ('l', pend[0]) in done:
                gap_ = len(k.lines) - cdone[pend[0]]
                if gap_ < 2:
                    if not force: return
                    k(f"s_nop {1 - gap_}")
                qt = pend.pop(0)
                k(f"{MF} {v(TS(qt),4)}, {v(vOne,4)}, {v(Preg(par, qt),4)}, 0"); lasttrans = None
                lastsum = len(k.lines)
                if pend: fill(0, False)
        for g in range(N):
            k(mf[g]); lasttrans = None
            if first.get(g): k(first[g])
            for c, t_ in head[g]:
                if t_: k(t_)
            for t_ in vfix.get(g, []): k(t_)
            cum += fixedc[g]
            if g < NV: fill(fixedc[g], g == NV - 1)
            if g < N - 1: try_sum(force=(g >= NV - 1))
            if fin and not pend and g < N - 1:
                if g == N - 2:
                    gap_ = nstates(lastsum)
                    if gap_ < 8: k(f"s_nop {7 - gap_}")
                    for t_ in fin: k(t_)
                    fin = []
                elif nstates(lastsum) >= 8:
                    for _ in range(min(len(fin), (CAP - fixedc[g]) // 4)): k(fin.pop(0))
                elif k.lines[-1].strip().startswith("v_mfma") and nstates(lastsum) < 8: k("s_nop 2")
                elif fixedc[g] <= 4 and nstates(lastsum) < 8: k("s_nop 0")
        assert len(done) == len(ops) and not pend
        for t_ in after: k(t_)
        after = []
        assert not fin
        if sm:
            if loop:
                k(f"s_cbranch_vccz {loop}")
                slow_path(par, sm, evs)
                k(f"s_cmp_lg_u32 {s(sAbs)}, {s(sE+exit_e)}\ns_cbranch_scc1 {loop}")
            else:
                st_, rt = k.newlab('stub'), k.newlab('ret')
                k(f"s_cbranch_vccnz {st_}"); k.label(rt)
                stubs.append((st_, rt, par, sm, evs))

    def mloc(i): return f"{v(vTB + (i >> 3))} offset:{((i >> 2) & 1) * STG + (i & 3) * 1024}"
    def epilogue(st, extra=()):
        extra = list(extra)
        k.c(f"epilogue set {st}")
        R = vE; X = 160
        if KS and st == 0:
            for i in range(3): k(f"v_xor_b32 {v(vTB+i)}, 4096, {v(vTB+i)}")
            for j in range(2): k(f"v_add_f32 {v(X+4+j)}, {v(vL+j)}, {v(TS(j))}")
            k("s_waitcnt lgkmcnt(0)\ns_barrier")
            k(f"ds_read_b128 {v(X,4)}, {v(vTB+2)}")
            rd = [f"ds_read_b128 {v(64+4*i,4)}, {mloc(i)}" for e in range(4) for j in range(2) for i in (8*j+2*e, 8*j+2*e+1)]
            for x in rd[:14]: k(x)
            k("s_waitcnt lgkmcnt(14)")
            for j in range(2): k(f"v_max_f32 {v(X+6+j)}, {v(vD+j)}, {v(X+2+j)}")
            for j in range(2): k(f"v_sub_f32 {v(X+8+j)}, {v(vD+j)}, {v(X+6+j)}\nv_sub_f32 {v(X+10+j)}, {v(X+2+j)}, {v(X+6+j)}")
            for j in range(4): k(f"v_exp_f32 {v(X+8+j)}, {v(X+8+j)}")
            for x in rd[14:]: k(x)
            for j in range(2): k(f"v_mul_f32 {v(X+4+j)}, {v(X+4+j)}, {v(X+8+j)}")
            for j in range(2): k(f"v_fma_f32 {v(X+4+j)}, {v(X+j)}, {v(X+10+j)}, {v(X+4+j)}")
            for j in range(2): k(f"v_rcp_f32 {v(X+4+j)}, {v(X+4+j)}")
            k("s_nop 0")
            for j in range(2): k(f"v_mul_f32 {v(R+2*j)}, {v(X+8+j)}, {v(X+4+j)}\nv_mul_f32 {v(R+4+2*j)}, {v(X+10+j)}, {v(X+4+j)}")
        else:
            for j in range(2): k(f"v_add_f32 {v(R+j)}, {v(vL+2*st+j)}, {v(TS(2*st+j))}")
            if KS:
                k(f"v_add_u32 {v(vChk)}, {s(sMK)}, {v(vL16)}\nv_mov_b64 {v(vD,2)}, 0\nv_mov_b64 {v(vD+2,2)}, 0\nds_write_b32 {v(vChk)}, {v(Nreg(0))}\nds_write_b32 {v(vChk)}, {v(Nreg(1))} offset:4")
                k(f"v_mov_b64 {v(vL+2,2)}, 0\nv_mov_b32 {v(TS(2))}, 0\nv_mov_b32 {v(TS(3))}, 0")
            else: k("s_nop 3")
            k(f"v_rcp_f32 {v(R+2)}, {v(R+1)}\nv_rcp_f32 {v(R)}, {v(R)}")
        k(f"s_lshl_b32 {s(t0)}, {s(sQ+st)}, 10\ns_add_u32 {s(t0)}, {s(t0)}, {s(sLo+2)}\ns_add_u32 {s(t0)}, {s(t0)}, {WS_CTX}")
        for e in range(4):
            for j in range(2):
                b = T + 8 * j
                for i in range(8): k(f"v_accvgpr_read_b32 {v(b+i)}, {a(Oreg(2*st+j, 2*e) + i)}")
                if KS and st == 1:
                    for i in range(2): k(f"{MF} {a(Oreg(2+j, 2*e+i), 4)}, {v(vD,4)}, {v(vOne,4)}, 0")
                for i in range(0, 8, 2): k(f"v_pk_mul_f32 {v(b+i,2)}, {v(b+i,2)}, {v(R+2*j,2)} op_sel_hi:[1,0]")
                if KS and st == 0:
                    k(f"s_waitcnt lgkmcnt({14 - 2*(2*e+j)})")
                    for i in range(0, 8, 2): k(f"v_pk_fma_f32 {v(b+i,2)}, {v(64+32*j+8*e+i,2)}, {v(R+4+2*j,2)}, {v(b+i,2)} op_sel_hi:[1,0,1]")
                for i in range(4): k(f"v_cvt_pk_bf16_f32 {v(b+i)}, {v(b+2*i)}, {v(b+2*i+1)}")
                k(f"buffer_store_dwordx4 {v(b,4)}, {v(vL16)}, {s(srdO,4)}, {s(t0)} offen offset:{j*1024}{sfx}")
                if extra: k(extra.pop(0)[1])
            k(f"s_add_u32 {s(t0)}, {s(t0)}, 131072")
            if KS and st == 1 and e == 1:
                k(f"v_xor_b32 {v(vChk)}, 4096, {v(vChk)}\ns_waitcnt lgkmcnt(0)\ns_barrier\nds_read_b32 {v(Nreg(2))}, {v(vChk)}\nds_read_b32 {v(Nreg(3))}, {v(vChk)} offset:4")
        if KS and st == 1:
            k("s_waitcnt vmcnt(8) lgkmcnt(0)")
            for qt in (2, 3): k(f"v_mov_b32 {v(Nreg(qt)+1)}, {v(Nreg(qt))}")
            for qt in (2, 3):
                for i in range(2, 8, 2): k(f"v_mov_b64 {v(Nreg(qt)+i,2)}, {v(Nreg(qt),2)}")
        for x in extra: k(x[1])

    G = dma_group(); LL = local_loads()
    k.c("head")
    k("s_waitcnt lgkmcnt(0)")
    import re as _re
    ini = []
    for txt in INI:
        cur = []
        for ln_ in txt.split("\n"):
            keep = cur and (ln_.startswith(("s_cselect", "s_addc", "v_cndmask", "s_nop")) or cur[-1].startswith(("s_cmp", "v_cmp", "s_nop")) or any(x.startswith("s_cmp") for x in cur) and "s_cselect" in txt[txt.index(ln_):])
            if cur and not keep: ini.append(cur); cur = []
            cur.append(ln_)
        ini.append(cur)
    for i, m_ in enumerate(qk_mfmas(0, AB)):
        k(_re.sub(r", v\[1[6-9]\d:1[6-9]\d\]$", ", 0", m_))
        n_ = 0
        if i % 4 == 1: emit_group([stash_item(i // 4)]); n_ = 3
        if 16 <= i < 20: k(rdK(1, i - 16)); n_ += 1
        while ini and n_ < 4:
            p_ = ini.pop(0); k("\n".join(p_)); n_ += len(p_)
    for a_ in range(4, 8): k(rdK(1, a_))
    for p_ in ini: k("\n".join(p_))
    k(f"s_mov_b32 {s(sAbs)}, 1\ns_nop 3")
    lz = k.newlab('z')
    k(f"s_cmp_lg_u32 {s(sE)}, 0\ns_cbranch_scc1 {lz}")
    for r_ in range(4):
        k(f"v_add_f32 {v(Sreg(0,2)+r_)}, {v(Sreg(0,2)+r_)}, {v(vTB+r_)}\nv_mov_b32 {v(Sreg(0,2)+4+r_)}, {v(vNinf)}\nv_add_f32 {v(Sreg(0,3)+4+r_)}, {v(Sreg(0,3)+4+r_)}, {v(vTB+r_)}")
    k.label(lz)
    for j0, j1, j2 in ((0, 1, 2), (None, 3, 4), (None, 5, 6)):
        for qt in AB: k(f"v_max3_f32 {v(T+qt)}, {v(Sreg(0,qt)) if j0 == 0 else v(T+qt)}, {v(Sreg(0,qt)+j1)}, {v(Sreg(0,qt)+j2)}")
    for qt in AB: k(f"v_max_f32 {v(T+qt)}, {v(T+qt)}, {v(Sreg(0,qt)+7)}")
    xlane([T + q_ for q_ in AB], [T + 4 + q_ for q_ in AB], "v_max_f32")
    for qt in AB:
        k(f"v_sub_f32 {v(Nreg(qt))}, 0, {v(T+qt)}\nv_sub_f32 {v(Nreg(qt)+1)}, 0, {v(T+qt)}")
    for qt in AB:
        for i in range(2, 8, 2): k(f"v_mov_b64 {v(Nreg(qt)+i,2)}, {v(Nreg(qt),2)}")
    for qt in AB:
        for i in range(0, 8, 2): k(f"v_pk_add_f32 {v(Sreg(0,qt)+i,2)}, {v(Sreg(0,qt)+i,2)}, {v(Nreg(qt),2)}")
    events((0, 1))
    if LT: k(f"v_lshrrev_b32 {v(vTo)}, {LSH}, {v(vLane)}\nv_lshlrev_b32 {v(vTo)}, 7, {v(vTo)}\nv_add_u32 {v(vTo)}, {s(sTo)}, {v(vTo)}")
    k("s_waitcnt lgkmcnt(0)")
    step(1, AB, AB, (), dma=[stash_item(m) for m in range(8, 16)], dgaps=(2, 5, 9, 12, 17, 20, 23, 26), evs=(0, 1), vmw=48)
    ST.stamp(12); dbgmax(2, True)
    Ld = k.newlab('dual'); align(); k.label(Ld)
    TL = [(None, f"buffer_load_dword {v(vDm2)}, {v(vTo)}, {s(srdF,4)}, 0 offen\nv_add_u32 {v(vTo)}, {GB}, {v(vTo)}", None)] if LT else []
    step(0, AB, AB, AB, dma=G[:5], dgaps=(5, 18, 27, 43, 52), evs=(0, 1)); step(1, AB, AB, AB, dma=G[5:] + TL, dgaps=(6, 18, 27, 47), vmw=24 + 3 * len(TL), loop=Ld, evs=(0, 1, 6) if KS else (0, 1, 3, 6), exit_e=2)
    if KS:
        QP = [(None, f"buffer_load_dwordx4 {a(Qreg(qt, e), 4)}, {v(vL16)}, {s(srdO,4)}, {s(t2 + qt - 2)} offen offset:{e*1024} sc1", None) for qt in (2, 3) for e in range(4)]
        QP[0] = (f"s_xor_b32 {s(t2)}, {s(sQ)}, 2\ns_lshl_b32 {s(t2)}, {s(t2)}, 12\ns_add_u32 {s(t2)}, {s(t2)}, {s(sLo+2)}", QP[0][1], f"s_add_u32 {s(t3)}, {s(t2)}, 4096")
        assert WS_QB == 0
        step(0, A_, AB, AB, dma=G[:5], dgaps=(3, 11, 21, 31, 41)); step(1, A_, A_, AB, dma=G[5:] + QP, dgaps=(3, 8, 13, 19, 22, 25, 28, 31, 34, 37, 40), mode='tr')
    else:
        step(0, A_, AB, AB, dma=G[:5], dgaps=(3, 11, 21, 31, 41), evs=(3, 4)); step(1, A_, A_, AB, dma=G[5:], dgaps=(3, 8, 13), evs=(3, 4, 6))
    epilogue(1)
    def ctx_flag(dst, sn): k(f"s_lshl_b32 {s(dst)}, {s(sn)}, 5\ns_add_u32 {s(dst)}, {s(dst)}, {s(sh)}\ns_lshl_b32 {s(dst)}, {s(dst)}, 3\ns_add_u32 {s(dst)}, {s(dst)}, {F_CTX - 256}")
    ctx_flag(sPf, snB)
    ST.stamp(13)
    Ls = k.newlab('single'); Lsx = k.newlab('singlex')
    if EEX: k(f"s_cmp_eq_u32 {s(sAbs)}, {s(sE+5)}\ns_cbranch_scc1 {Lsx}")
    if KS:
        G2 = list(G)
        G2[4] = (G[4][0], G[4][1], f"s_add_u32 {s(sMK)}, {s(sMK)}, {SLOT}")
        G2[5] = (None, G[5][1], f"s_cmp_ge_u32 {s(sMK)}, {5*SLOT}\ns_cselect_b32 {s(sMK)}, {s(sW4)}, {s(sMK)}")
        XG = tuple(int(x) for x in os.environ.get('XG', '5,14,21,27,38,44,50,55').split(','))
        xw = 8 + sum(g < 31 for g in XG)
        Le_ = k.newlab('entry')
        step(0, AB, A_, A_, mode='t1', vmw=None, evs=(3, 4, 6))
        step(1, AB, AB, A_, dma=G2, dgaps=(2, 8, 13, 19, 24, 28, 36, 40), mode='t2', vmw=None, evs=(3, 4))
        k(f"s_branch {Le_}")
        align()
        k.label(Ls)
        step(1, AB, AB, AB, dma=G2, dgaps=XG, mode='x', vmw=xw, evs=(3, 4))
        k.label(Le_)
        step(0, AB, AB, AB, dma=G2, dgaps=XG, mode='x', vmw=xw, loop=Ls, evs=(3, 4, 6), exit_e=5)
        k(f"s_sub_u32 {s(t0)}, {s(sC1)}, {s(sP8)}")
        for i in range(3): k(f"s_add_u32 {s(t0)}, {s(t0)}, {SLOT}\ns_cmp_ge_u32 {s(t0)}, {5*SLOT}\ns_cselect_b32 {s(t0)}, 0, {s(t0)}\nv_add_u32 {v(vTB+i)}, {s(t0)}, {v(vDma)}")
    else:
        align()
        k.label(Ls)
        step(0, A_, A_, A_, dma=G[:5], dgaps=(2, 10, 14, 19, 28), evs=(3, 4)); step(1, A_, A_, A_, dma=G[5:] + (TL if LT2 else []), dgaps=(4, 9, 13, int(os.environ.get('LG', '22'))), vmw=27 if LT2 else 24, loop=Ls, evs=(3, 4, 6), exit_e=5)
    k.label(Lsx)
    ST.stamp(14); dbgmax(4, True)
    dW = srdK; dO = srdV; dX = srdS
    sIsA = CP['nk']; sMt3 = CP['swp']; sNt3 = CP['scale']; sXd3 = CP['Si']
    sXo = sKo; sWo = sVo; sRd = sC1; sWr = sMK; sDl = sThC; sCn = sAbs; sSl = CP['Sj']; sEv = sE; sLim = sE + 1; sXb = sE + 2; sPo = sE + 3; sOb = sE + 4; sOs = sE + 5
    sXs3 = sL2; swm3 = sPB; swn3 = sSa
    cW = 16
    if 'oldmap' in abl:
        k(f"s_bfe_u32 {s(sIsA)}, s2, 0x10002\ns_xor_b32 {s(sIsA)}, {s(sIsA)}, 1\ns_bitcmp1_b32 s2, 1\ns_cselect_b32 {s(sMt3)}, {s(snA)}, {s(snB)}\ns_sub_u32 {s(sMt3)}, {s(sMt3)}, 1")
    else:
        MIX = int(os.environ.get('MIX', '0'), 0)
        if MIX: k(f"s_lshr_b32 {s(t1)}, s2, 5\ns_bitcmp1_b32 {MIX}, {s(t1)}\ns_cselect_b32 {s(t1)}, 2, 0\ns_xor_b32 {s(t1)}, {s(t1)}, s2")
        RMAP = int(os.environ.get('RMAP', '0')); TM = int(os.environ.get('TM', '0x63'), 0)
        k(f"s_bfe_u32 {s(sIsA)}, s2, {0x10000 if RMAP else 0x10002}" + (f"\ns_xor_b32 {s(sIsA)}, {s(sIsA)}, 1" if RMAP == 2 else "") + f"\ns_and_b32 {s(t0)}, {s(t1) if MIX else 's2'}, 7\ns_bitcmp1_b32 {TM}, {s(t0)}\ns_cselect_b32 {s(sMt3)}, {s(snA)}, {s(snB)}\ns_sub_u32 {s(sMt3)}, {s(sMt3)}, 1")
    k((f"s_and_b32 {s(t0)}, s2, 4" if RMAP else f"s_and_b32 {s(t0)}, s2, 1\ns_lshl_b32 {s(t0)}, {s(t0)}, 2") + f"\ns_bfe_u32 {s(t1)}, s2, 0x20003\ns_add_u32 {s(sNt3)}, {s(t0)}, {s(t1)}")
    k(f"v_and_b32 {v(vFo)}, 31, {v(vLane)}\nv_lshlrev_b32 {v(vFo)}, 3, {v(vFo)}\ns_lshl_b32 {s(sXs3)}, {s(sMt3)}, 8\ns_add_u32 {s(sXs3)}, {s(sXs3)}, {WS_FLAG + F_CTX}")
    rdy_load = f"buffer_load_dwordx2 {v(vFlag,2)}, {v(vFo)}, {s(srdO,4)}, {s(sXs3)} offen sc1"
    k(rdy_load)
    LLATE = 'llate' in abl
    def xbar():
        k("s_nop 1")
        if EEX:
            lb = k.newlab('xb')
            k(f"s_cmp_ge_u32 {s(sw)}, 2\ns_cbranch_scc1 {lb}\ns_waitcnt vmcnt(24)\ns_barrier")
            k.label(lb)
    if KS:
        step(1, (), AB, AB, last=True, mode='x', xr=[f"ds_read_b128 {a(KF(n),4)}, {v(vKV)} offset:{STG + n*1024}" for n in range(8)])
        k("s_waitcnt vmcnt(1) lgkmcnt(0)")
        fl_ = [x[1] for x in LL]
        fl_ += [f"v_add_f32 {v(vE)}, {v(vL+2)}, {v(TS(2))}\nv_add_f32 {v(vE+1)}, {v(vL+3)}, {v(TS(3))}\nv_mov_b64 {v(vE+2,2)}, {v(vD+2,2)}"]
        wo = []
        for pv in ((2, 3), (0, 1)):
            for n in range(8):
                for qt in (pv if n % 2 == 0 else pv[::-1]):
                    d = a(Oreg(qt, n), 4)
                    k(f"{MF} {d}, {a(KF(n),4)}, {v(Preg(0, qt), 4)}, {d}")
                    if qt >= 2:
                        k(fl_.pop(0))
                        adr, off = mloc((qt - 2) * 8 + n).split()
                        wo.append(f"ds_write_b128 {adr}, {d} {off}")
                    else: k(wo.pop(0))
        k(f"ds_write_b128 {v(vTB+2)}, {v(vE,4)}")
        assert not fl_ and not wo
    elif LLATE:
        step(0, (), A_, A_, last=True); k("s_nop 1"); step(1, (), (), A_, last=True)
    else:
        step(0, (), A_, A_, last=True, dma=LL[:7], dgaps=(0, 2, 4, 6, 8, 10, 12)); xbar(); step(1, (), (), A_, last=True, dma=LL[7:], dgaps=(0, 2, 4, 6, 8, 10, 12, 14))
    epilogue(0)
    k(f"s_lshr_b32 {s(swm3)}, {s(sw)}, 1\ns_and_b32 {s(swn3)}, {s(sw)}, 1")
    k(f"s_mul_i32 {s(t0)}, {s(sIsA)}, {NC*64*2048}\ns_lshl_b32 {s(sWo)}, {s(sNt3)}, 8\ns_add_u32 {s(sWo)}, {s(sWo)}, {s(t0)}")
    E_ = vE
    k(f"v_lshrrev_b32 {v(E_)}, 4, {v(vLane)}\ns_lshl_b32 {s(t0)}, {s(sw)}, 4\nv_add_u32 {v(E_+1)}, {s(t0)}, {v(E_)}\nv_lshlrev_b32 {v(E_+1)}, 11, {v(E_+1)}")
    k(f"v_lshlrev_b32 {v(E_)}, 1, {v(E_)}\nv_and_b32 {v(E_+2)}, 15, {v(vLane)}\nv_xor_b32 {v(E_)}, {v(E_)}, {v(E_+2)}")
    for j in range(4):
        k(f"v_xor_b32 {v(E_+2)}, {8*(j&1)}, {v(E_)}\nv_lshl_add_u32 {v(cW+j)}, {v(E_+2)}, 4, {v(E_+1)}")
        if j: k(f"v_add_u32 {v(cW+j)}, {j*(8192-1024)}, {v(cW+j)}")
    k(f"s_mov_b32 {s(dW)}, {s(sPw)}\ns_mov_b32 {s(dW+1)}, {s(sPw+1)}\ns_mov_b32 {s(dW+2)}, {8*MB}\ns_mov_b32 {s(dX+2)}, {WS_SIZE}")
    k(f"s_mov_b32 {s(dO)}, {s(sOut)}\ns_mov_b32 {s(dO+1)}, {s(sOut+1)}\ns_mov_b32 {s(dO+2)}, {2048*2048*2}")
    k(f"s_lshl_b32 {s(t0)}, {s(sMt3)}, 13\ns_lshl_b32 {s(t1)}, {s(swn3)}, 12\ns_add_u32 {s(t0)}, {s(t0)}, {s(t1)}\ns_lshl_b32 {s(t1)}, {s(swm3)}, 17\ns_add_u32 {s(sXb)}, {s(t0)}, {s(t1)}")
    k(f"s_mul_i32 {s(t0)}, {s(sIsA)}, {NC*262144}\ns_add_u32 {s(sXo)}, {s(sXb)}, {s(t0)}\ns_add_u32 {s(sXo)}, {s(sXo)}, {WS_CTX}\ns_add_u32 {s(sXb)}, {s(sXb)}, {WS_OA}")
    def d3x(j): return f"buffer_load_dwordx4 {v(vL16)}, {s(dX,4)}, {s(sXo)} offen offset:{j*1024}{ksc} lds"
    def d3w(j): return f"buffer_load_dwordx4 {v(cW+j)}, {s(dW,4)}, {s(sWo)} offen offset:{j*1024}{wsc} lds"
    def lim_eval():
        k(f"v_cmp_ne_u64 {s(sM0,2)}, {s(sTok,2)}, {v(vFlag,2)}\ns_mul_i32 {s(t1)}, {s(sIsA)}, {NC >> 1}\ns_nop 2\ns_lshr_b32 {s(t0)}, {s(sM0)}, {s(t1)}\ns_ff1_i32_b32 {s(t0)}, {s(t0)}")
        k(f"s_lshl_b32 {s(sLim)}, {s(t0)}, 1\ns_mul_i32 {s(t1)}, {s(sIsA)}, {NC & 1}\ns_sub_i32 {s(sLim)}, {s(sLim)}, {s(t1)}\ns_cmp_lt_i32 {s(t0)}, 0\ns_cselect_b32 {s(sLim)}, 1000, {s(sLim)}")
    def lim_update(sneed):
        Lsp = k.newlab('spin'); Lok = k.newlab('ok')
        k(f"s_mov_b32 s3, {SPIN}")
        k.label(Lsp)
        k(f"{rdy_load}\ns_waitcnt vmcnt(0)")
        lim_eval()
        k(f"s_cmp_gt_i32 {s(sLim)}, {sneed}\ns_cbranch_scc1 {Lok}\ns_sub_u32 s3, s3, 1\ns_cbranch_scc1 {Lok}\ns_sleep 4\ns_branch {Lsp}")
        k.label(Lok)
    def x_pre():
        for st in range(NS3):
            k(f"s_add_u32 m0, {s(sW4)}, {st*SLOT}\ns_nop 0")
            for j in range(4): k(d3x(j))
            k(f"s_add_u32 {s(sXo)}, {s(sXo)}, 262144")
    cx = 6; cw = 12; cSt = 7
    def acc3(nb, mb): return 64 + (((nb >> 1) * 4 + mb) * 2 + (nb & 1)) * 4
    def fX(st, mb): return st * 32 + mb * 4
    def fW(st, nb): return st * 32 + 16 + nb * 4
    PART = 128
    k(f"s_lshl_b32 {s(t0)}, {s(swm3)}, 12\nv_add_u32 {v(cx)}, {s(t0)}, {v(vL16)}")
    k(f"v_lshrrev_b32 {v(T)}, 2, {v(vLane)}\nv_lshlrev_b32 {v(T)}, 8, {v(T)}\nv_and_b32 {v(T+1)}, 3, {v(vLane)}\nv_lshl_add_u32 {v(T)}, {v(T+1)}, 3, {v(T)}\nv_add_u32 {v(T)}, 16384, {v(T)}")
    k(f"v_bfe_u32 {v(T+1)}, {v(vLane)}, 2, 3\ns_lshl_b32 {s(t0)}, {s(swn3)}, 2\nv_xor_b32 {v(T+1)}, {s(t0)}, {v(T+1)}")
    for nb in range(4):
        k(f"v_xor_b32 {v(T+2)}, {nb}, {v(T+1)}\nv_lshl_add_u32 {v(cw+nb)}, {v(T+2)}, 5, {v(T)}")
    k(f"v_and_b32 {v(T)}, 15, {v(vLane)}\nv_lshlrev_b32 {v(T)}, 12, {v(T)}\nv_lshlrev_b32 {v(T)}, {s(sIsA)}, {v(T)}")
    k(f"v_bfe_u32 {v(T+1)}, {v(vLane)}, 4, 1\nv_lshl_add_u32 {v(T)}, {v(T+1)}, 5, {v(T)}\nv_lshrrev_b32 {v(T+1)}, 5, {v(vLane)}\nv_lshl_add_u32 {v(cSt)}, {v(T+1)}, 4, {v(T)}")
    k(f"s_lshl_b32 {s(t0)}, {s(sMt3)}, 3\ns_lshl_b32 {s(t1)}, {s(swm3)}, 2\ns_add_u32 {s(t0)}, {s(t0)}, {s(t1)}")
    k(f"s_lshl_b32 {s(t1)}, {s(t0)}, 16\ns_add_u32 {s(t1)}, {s(t1)}, 2048")
    k(f"s_and_b32 {s(t2)}, {s(t0)}, 63\ns_lshl_b32 {s(t2)}, {s(t2)}, 17\ns_lshr_b32 {s(t3)}, {s(t0)}, 6\ns_lshl_b32 {s(t3)}, {s(t3)}, 12\ns_add_u32 {s(t2)}, {s(t2)}, {s(t3)}")
    k(f"s_cmp_eq_u32 {s(sIsA)}, 1\ns_cselect_b32 {s(sOb)}, {s(t2)}, {s(t1)}\ns_lshl_b32 {s(sOs)}, 0x10000, {s(sIsA)}")
    k(f"s_lshl_b32 {s(t2)}, {s(sNt3)}, 8\ns_lshl_b32 {s(t3)}, {s(swn3)}, 7\ns_add_u32 {s(sOb)}, {s(sOb)}, {s(t2)}\ns_add_u32 {s(sOb)}, {s(sOb)}, {s(t3)}")
    for i in range(0, 64, 2): k(f"v_mov_b64 {v(64+i,2)}, 0")
    local_pre()
    k(f"s_add_u32 {s(sWr)}, {s(sW4)}, {(NS3-1)*SLOT}\ns_mov_b32 {s(sRd)}, 0\ns_mov_b32 {s(sSl)}, {SLOT}\ns_mov_b32 {s(sCn)}, 0\ns_mov_b32 {s(sEv)}, 0")
    k("s_waitcnt vmcnt(0)\ns_barrier")
    ctx_flag(t1, snA); publish(t1, T + 12)
    Lpb = k.newlab('pb'); Lx3 = k.newlab('x3')
    k(f"s_cmp_eq_u32 {s(sPf)}, -1\ns_cbranch_scc1 {Lpb}")
    publish(sPf, T + 12)
    k.label(Lpb)
    ST.stamp(15)
    lim_eval()
    for st in range(NS3 - 1):
        k(f"s_add_u32 m0, {s(sW4)}, {st*SLOT + 16384}\ns_nop 0")
        for j in range(4): k(d3w(j))
        k(f"s_add_u32 {s(sWo)}, {s(sWo)}, {64*2048}")
    k(f"s_cmp_gt_i32 {s(sLim)}, {NS3-1}\ns_cbranch_scc1 {Lx3}")
    lim_update(str(NS3 - 1))
    k.label(Lx3)
    x_pre()
    k("s_waitcnt vmcnt(16)\ns_barrier")
    ST.stamp(2); dbgmax(6, True)
    def reads3(st, kk):
        o = []
        def rx(mb): o.append((('x', st, mb), f"ds_read_b128 {a(fX(st, mb), 4)}, {v(cx)} offset:{mb * 1024 + kk * 8192}"))
        def rw(nb):
            for t_ in range(2):
                o.append((('w', st, nb), f"ds_read_b64_tr_b16 {a(fW(st, nb) + 2 * t_, 2)}, {v(cw + nb)} offset:{(32 * kk + 16 * t_) * 256}"))
        rx(0); rw(0); rx(1); rx(2); rx(3); rw(1); rw(2); rw(3)
        return o
    CH3 = 'ch3' in abl
    if not CH3:
        for tag, ins in reads3(0, 0): k(ins)
    def pstore(b): return f"buffer_store_dwordx4 {v(PART+4*b,4)}, {v(vL16)}, {s(srdO,4)}, {s(sPo)} offen offset:{(b&3)*1024} sc1" + (f"\ns_add_u32 {s(sPo)}, {s(sPo)}, 4096" if b & 3 == 3 else "")
    def body3(stores=(), loop=False, xs=None, per=2, vm3=24):
        tr = LgkmTracker([tag for tag, _ in reads3(0, 0)])
        stores = list(stores)
        for ss in range(2):
            st = ss
            nxt = reads3(st ^ 1, ss ^ 1)
            rd_at = {(1 if ss else 0) + i: x for i, x in enumerate(nxt)}
            first = {}; fill = {g: [] for g in range(16)}
            if ss == 0:
                first[0] = f"s_add_u32 m0, {s(sWr)}, 16384"
                for j, g in enumerate((1, 5, 9, 13)): fill[g].append(d3w(j))
                first[2] = f"s_add_u32 {s(sWr)}, {s(sRd)}, {s(sW4)}"
                first[3] = f"s_add_u32 {s(sRd)}, {s(sRd)}, {SLOT}"
                first[4] = f"s_cmp_ge_u32 {s(sRd)}, {NS3*SLOT}"
                first[6] = f"s_cselect_b32 {s(sDl)}, {-(NS3-1)*SLOT & 0xffffffff}, {s(sSl)}"
                first[7] = f"s_cselect_b32 {s(sRd)}, 0, {s(sRd)}"
                fill[12].append(f"v_add_u32 {v(cx)}, {s(sDl)}, {v(cx)}\nv_add_u32 {v(cw)}, {s(sDl)}, {v(cw)}")
                first[14] = f"s_add_u32 {s(sWo)}, {s(sWo)}, {64*2048}"
                fill[14].append(f"v_add_u32 {v(cw+1)}, {s(sDl)}, {v(cw+1)}\nv_add_u32 {v(cw+2)}, {s(sDl)}, {v(cw+2)}")
                first[15] = f"s_mov_b32 m0, {s(sWr)}"
                fill[15].append(f"v_add_u32 {v(cw+3)}, {s(sDl)}, {v(cw+3)}")
                if stores: fill[11].append(stores.pop(0))
            else:
                for j, g in enumerate((1, 5, 9, 13)): fill[g].append(d3x(j))
                if stores: fill[11].append(stores.pop(0))
                first[12] = f"s_add_u32 {s(sCn)}, {s(sCn)}, 1"
                first[14] = f"s_add_u32 {s(sXo)}, {s(sXo)}, 262144" + (f"\ns_cmp_lt_u32 {s(sCn)}, {s(sEv)}" if loop else "")
            for i in range(16):
                nb, mb = i // 4, i % 4
                if ss == 1 and i == 0:
                    tr.q = []
                    k(f"s_waitcnt vmcnt({vm3}) lgkmcnt(0)")
                w = tr.need({('x', st, mb), ('w', st, nb)})
                if w: k(w)
                d = v(acc3(nb, mb), 4)
                k(f"{MF} {d}, {a(fW(st, nb), 4)}, {a(fX(st, mb), 4)}, {d}")
                if ss == 1 and i == 0: k("s_barrier")
                if i in first: k(first[i])
                if i in rd_at:
                    tag, ins = rd_at[i]; k(ins); tr.issue(tag)
                for x in fill[i]: k(x)
                if xs:
                    for _ in range(per if not fill[i] else 1):
                        if xs: k(xs.pop(0))
    if CH3:
        def gX(mb, kk): return mb * 8 + kk * 4
        def gW(nb, kk): return 32 + nb * 8 + kk * 4
        def rX(mb): return [(('x', mb), f"ds_read_b128 {a(gX(mb, kk), 4)}, {v(cx)} offset:{mb * 1024 + kk * 8192}") for kk in range(2)]
        def rW(nb): return [(('w', nb), f"ds_read_b64_tr_b16 {a(gW(nb, kk) + 2 * t_, 2)}, {v(cw + nb)} offset:{(32 * kk + 16 * t_) * 256}") for kk in range(2) for t_ in range(2)]
        tail3 = rX(0) + rX(1) + rX(2) + rX(3)
        for tag, ins in rW(0) + rW(1) + tail3: k(ins)
        def body3(stores=(), loop=False, xs=None, per=2):
            tr = LgkmTracker([tag for tag, _ in tail3])
            stores = list(stores)
            rd = {}
            for i, x in enumerate(rW(2) + rW(3)): rd.setdefault(i, []).append(x)
            w01 = rW(0) + rW(1)
            for mb in range(4):
                base = 16 + 4 * mb
                rd.setdefault((17, 18, 21, 22)[mb], []).extend(w01[2 * mb:2 * mb + 2])
                x0, x1 = rX(mb)
                rd.setdefault(base + 3, []).append(x0); rd.setdefault(min(base + 4, 31), []).append(x1)
            first = {0: f"s_add_u32 m0, {s(sWr)}, 16384", 2: f"s_add_u32 {s(sWr)}, {s(sRd)}, {s(sW4)}", 3: f"s_add_u32 {s(sRd)}, {s(sRd)}, {SLOT}", 4: f"s_cmp_ge_u32 {s(sRd)}, {NS3*SLOT}",
                     6: f"s_cselect_b32 {s(sDl)}, {-(NS3-1)*SLOT & 0xffffffff}, {s(sSl)}", 7: f"s_cselect_b32 {s(sRd)}, 0, {s(sRd)}", 14: f"s_add_u32 {s(sWo)}, {s(sWo)}, {64*2048}", 15: f"s_mov_b32 m0, {s(sWr)}",
                     28: f"s_add_u32 {s(sCn)}, {s(sCn)}, 1", 30: f"s_add_u32 {s(sXo)}, {s(sXo)}, 262144" + (f"\ns_cmp_lt_u32 {s(sCn)}, {s(sEv)}" if loop else "")}
            fill = {g: [] for g in range(32)}
            for j, g in enumerate((1, 5, 9, 13)): fill[g].append(d3w(j)); fill[16 + g].append(d3x(j))
            fill[8].append(f"v_add_u32 {v(cx)}, {s(sDl)}, {v(cx)}\nv_add_u32 {v(cw)}, {s(sDl)}, {v(cw)}")
            fill[10].append(f"v_add_u32 {v(cw+1)}, {s(sDl)}, {v(cw+1)}\nv_add_u32 {v(cw+2)}, {s(sDl)}, {v(cw+2)}")
            fill[12].append(f"v_add_u32 {v(cw+3)}, {s(sDl)}, {v(cw+3)}")
            for g in (11, 14):
                if stores: fill[g].append(stores.pop(0))
            i = 0
            for rp in range(2):
                for mb in range(4):
                    for nb in (2 * rp, 2 * rp + 1):
                        for kk in range(2):
                            w = tr.need({('x', mb), ('w', nb)})
                            if i == 16:
                                tr.q = []
                                k(f"s_waitcnt vmcnt({8*(NS3-2)}) lgkmcnt(0)")
                            elif i == 0: k("s_waitcnt lgkmcnt(6)"); tr.q = tr.q[-6:]
                            elif w: k(w)
                            d = v(acc3(nb, mb), 4)
                            k(f"{MF} {d}, {a(gW(nb, kk), 4)}, {a(gX(mb, kk), 4)}, {d}")
                            if i == 16: k("s_barrier")
                            if i in first: k(first[i])
                            for tag, ins in rd.get(i, []): k(ins); tr.issue(tag)
                            for x in fill[i]: k(x)
                            if xs:
                                for _ in range(per if not fill[i] else 1):
                                    if xs: k(xs.pop(0))
                            i += 1
    L3 = k.newlab('l3'); L3e = k.newlab('l3e'); L3x = k.newlab('l3x'); L3c = k.newlab('l3c'); L3n = k.newlab('l3n')
    XS_ = local_stream(); nun = 0; polls = []
    while XS_:
        lp = k.newlab('lp'); lr = k.newlab('lr')
        k(f"s_cmp_gt_i32 {s(sLim)}, {nun + NS3}\ns_cbranch_scc0 {lp}"); k.label(lr)
        polls.append((lp, lr, nun + NS3))
        body3(xs=XS_, vm3=min(16 + 4 * nun, 24)); nun += 1
    OAP = nun + 4
    assert nun >= 3 and not CH3 and not LLATE
    k(f"s_branch {L3e}")
    for lp, lr, need in polls:
        k.label(lp); lim_update(str(need)); k(f"s_branch {lr}")
    align()
    k.label(L3)
    body3(loop=True)
    k(f"s_cbranch_scc1 {L3}")
    k.label(L3e)
    def pair_flag(dst): k(f"s_lshl_b32 {s(dst)}, {s(sMt3)}, 3\ns_add_u32 {s(dst)}, {s(dst)}, {s(sNt3)}\ns_lshl_b32 {s(dst)}, {s(dst)}, 7\ns_add_u32 {s(dst)}, {s(dst)}, {F_PAIR}")
    def part_addr(): k(f"s_lshl_b32 {s(t0)}, {s(sMt3)}, 3\ns_add_u32 {s(t0)}, {s(t0)}, {s(sNt3)}\ns_lshl_b32 {s(t0)}, {s(t0)}, 15\ns_lshl_b32 {s(t1)}, {s(sw)}, 13\ns_add_u32 {s(t0)}, {s(t0)}, {s(t1)}\ns_add_u32 {s(sPo)}, {s(t0)}, {WS_PART}")
    def all_ready(load):
        Lsp = k.newlab('spin'); Lok = k.newlab('ok')
        k(f"s_waitcnt vmcnt(16)\ns_mov_b32 s3, {SPIN}")
        k.label(Lsp)
        k(f"v_cmp_ne_u64 {s(sM0,2)}, {s(sTok,2)}, {v(vFlag,2)}\ns_nop 3\ns_cmp_eq_u64 {s(sM0,2)}, 0\ns_cbranch_scc1 {Lok}\ns_sub_u32 s3, s3, 1\ns_cbranch_scc1 {Lok}\ns_sleep 8\n{load}\ns_waitcnt vmcnt(0)\ns_branch {Lsp}")
        k.label(Lok)
    Lr = k.newlab('rdy')
    k(f"s_add_u32 {s(t2)}, {s(sCn)}, {NS3}\ns_cmp_gt_i32 {s(sLim)}, {s(t2)}\ns_cbranch_scc1 {Lr}")
    lim_update(s(t2))
    k.label(Lr)
    Lo1 = k.newlab('o1'); Lo2 = k.newlab('o2')
    k(f"s_mov_b32 {s(sEv)}, {OAP}\ns_cmp_lt_u32 {s(sCn)}, {OAP}\ns_cbranch_scc1 {L3n}\ns_cmp_eq_u32 {s(sCn)}, {OAP}\ns_cbranch_scc1 {Lo1}")
    k.label(Lo2)
    k(f"s_cmp_eq_u32 {s(sIsA)}, 0\ns_cbranch_scc1 {L3c}")
    oa_load = f"s_lshr_b32 {s(t0)}, {s(sMt3)}, 1\ns_lshl_b32 {s(t0)}, {s(t0)}, 8\ns_add_u32 {s(t0)}, {s(t0)}, {WS_FLAG + F_OA}\nbuffer_load_dwordx2 {v(vFlag,2)}, {v(vFo)}, {s(srdO,4)}, {s(t0)} offen sc1"
    def p_store():
        part_addr()
        k("s_nop 3")
        for i in range(32): k(f"v_cvt_pk_bf16_f32 {v(PART+i)}, {v(64+2*i)}, {v(65+2*i)}")
        for i in range(0, 64, 2): k(f"v_mov_b64 {v(64+i,2)}, 0")
        k("s_nop 1")
        for n in range(TR): body3([pstore(2 * n), pstore(2 * n + 1)])
    def p_pub(): pair_flag(t1); publish(t1, T + 12)
    def oa_pub():
        k(f"s_and_b32 {s(t1)}, s2, 7\ns_lshl_b32 {s(t1)}, {s(t1)}, 5\ns_lshr_b32 {s(t2)}, s2, 3\ns_add_u32 {s(t1)}, {s(t1)}, {s(t2)}\ns_lshl_b32 {s(t1)}, {s(t1)}, 3\ns_add_u32 {s(t1)}, {s(t1)}, {F_OA}")
        publish(t1, T + 12)
    EVP = [(NB - NS3 - 1, lambda: k(f"s_mov_b32 {s(sLim)}, 1000\n{oa_load}")),
           (NB - NS3, lambda: (k("s_waitcnt vmcnt(8)"), all_ready(oa_load), k(f"s_mov_b32 {s(sXo)}, {s(sXb)}"))),
           (NB - NS3 + 1, lambda: k(f"s_mov_b32 {s(dW)}, {s(sPw+2)}\ns_mov_b32 {s(dW+1)}, {s(sPw+3)}\ns_mov_b32 {s(dW+2)}, {2*MB}\ns_lshl_b32 {s(sWo)}, {s(sNt3)}, 8")),
           (NB, p_store), (NB + TR + 4, p_pub), (NP - NS3, lambda: k(f"s_mov_b32 {s(dX+2)}, 0")), (NP, None)]
    pf_load = lambda: (pair_flag(t1), k(f"s_add_u32 {s(sXs3)}, {s(t1)}, {WS_FLAG}"))
    pl = f"buffer_load_dwordx2 {v(vFlag,2)}, off, {s(srdO,4)}, {s(sXs3)} sc1"
    def c_take():
        all_ready(pl)
        part_addr()
        for b in range(8):
            k(f"buffer_load_dwordx4 {v(PART+4*b,4)}, {v(vL16)}, {s(srdO,4)}, {s(sPo)} offen offset:{(b&3)*1024} sc1")
            if b == 3: k(f"s_add_u32 {s(sPo)}, {s(sPo)}, 4096")
    EVC = [(NC - NS3 - 1, lambda: k(f"s_mov_b32 {s(sLim)}, 1000")),
           (NC - NS3, lambda: (k(f"s_mov_b32 {s(dX+2)}, 0"), pf_load(), k(pl))),
           (NC - NS3 + 1, lambda: k(f"s_mov_b32 {s(dW+2)}, 0")),
           (NC - 3, c_take), (NC, None)]
    for EV, lab in ((EVP, None), (EVC, L3c)):
        if lab: k.label(lab)
        k(f"s_mov_b32 {s(sEv)}, {EV[0][0]}\ns_cmp_lt_u32 {s(sCn)}, {EV[0][0]}\ns_cbranch_scc1 {L3n}")
        for i, (at, f_) in enumerate(EV):
            ln = k.newlab('n')
            if f_ is None:
                k(f"s_branch {L3x}")
                break
            k(f"s_cmp_lg_u32 {s(sCn)}, {at}\ns_cbranch_scc1 {ln}")
            f_()
            k(f"s_mov_b32 {s(sEv)}, {EV[i+1][0]}\ns_branch {L3}")
            k.label(ln)
    k.label(Lo1)
    oa_pub()
    k(f"s_branch {Lo2}")
    assert OAP < NB - NS3 - 1
    k.label(L3n)
    k(f"s_sub_u32 {s(t0)}, {s(sLim)}, {NS3}\ns_min_u32 {s(sEv)}, {s(sEv)}, {s(t0)}\ns_branch {L3}")
    k.label(L3x)
    ST.stamp(3); dbgmax(8, True)
    Lna = k.newlab('noadd')
    k(f"s_cmp_eq_u32 {s(sIsA)}, 1\ns_cbranch_scc1 {Lna}\ns_waitcnt vmcnt(0)")
    for i in range(32):
        k(f"v_lshlrev_b32 {v(160+2*i)}, 16, {v(PART+i)}\nv_and_b32 {v(161+2*i)}, 0xffff0000, {v(PART+i)}")
    for i in range(0, 64, 2): k(f"v_pk_add_f32 {v(64+i,2)}, {v(64+i,2)}, {v(160+i,2)}")
    k.label(Lna)
    for mb in range(4):
        for e in range(2):
            b = acc3(2 * e, mb)
            for i in range(4): k(f"v_cvt_pk_bf16_f32 {v(b+i)}, {v(b+2*i)}, {v(b+2*i+1)}")
        k("s_nop 1")
        for e in range(2):
            b = acc3(2 * e, mb)
            k(f"v_permlane16_swap_b32 {v(b)}, {v(b+2)}\nv_permlane16_swap_b32 {v(b+1)}, {v(b+3)}")
        for e in range(2):
            b = acc3(2 * e, mb)
            k(f"buffer_store_dwordx4 {v(b,4)}, {v(cSt)}, {s(dO,4)}, {s(sOb)} offen offset:{64*e} sc1")
        k(f"s_add_u32 {s(sOb)}, {s(sOb)}, {s(sOs)}")
    if stamps:
        k('s_waitcnt vmcnt(0)')
        ST.stamp(8); ST.stamp(9, real=True)
        ST.flush(srdO, sw, vT, vLane, base=0x100000)
    k.label(Lend)
    k("s_endpgm")
    for st_, rt, par, sm, evs in stubs:
        k.label(st_)
        slow_path(par, sm, evs)
        k(f"s_branch {rt}")
    k.lines += evool
    for st_, rt, target in calls:
        k.label(st_)
        k(f"s_call_b64 {s(sRa,2)}, {target}\ns_branch {rt}")

    for par, nset in Lrs:
        k.label(Lrs[(par, nset)])
        k("s_nop 15")
        for qt in AB[:nset]:
            Sq = Sreg(par, qt); So = Sreg(par ^ 1, qt); Pq = Preg(par, qt); N_ = Nreg(qt)
            k(f"v_max3_f32 {v(T)}, {v(Sq)}, {v(Sq+1)}, {v(Sq+2)}")
            for i in (3, 5): k(f"v_max3_f32 {v(T)}, {v(T)}, {v(Sq+i)}, {v(Sq+i+1)}")
            k(f"v_max3_f32 {v(T)}, {v(T)}, {v(Sq+7)}, 0")
            xlane([T], [T + 1], "v_max_f32")
            k(f"v_exp_f32 {v(T+1)}, -{v(T)}")
            for i in range(8): k(f"v_sub_f32 {v(Sq+i)}, {v(Sq+i)}, {v(T)}")
            for i in range(8): k(f"v_sub_f32 {v(So+i)}, {v(So+i)}, {v(T)}")
            for i in range(8): k(f"v_sub_f32 {v(N_+i)}, {v(N_+i)}, {v(T)}")
            k(f"v_mul_f32 {v(vL+qt)}, {v(vL+qt)}, {v(T+1)}")
            if KS: k(f"v_add_f32 {v(vD+qt)}, {v(vD+qt)}, {v(T)}")
            for i0 in range(0, 32, 8):
                for i in range(8): k(f"v_accvgpr_read_b32 {v(T+4+i)}, {a(Oreg(qt,0)+i0+i)}")
                for i in range(8): k(f"v_mul_f32 {v(T+4+i)}, {v(T+4+i)}, {v(T+1)}")
                for i in range(8): k(f"v_accvgpr_write_b32 {a(Oreg(qt,0)+i0+i)}, {v(T+4+i)}")
            for i in range(8): k(f"v_exp_f32 {v(T+4+i)}, {v(Sq+i)}")
            k("s_nop 0")
            for i in range(4): k(f"v_cvt_pk_bf16_f32 {v(Pq+i)}, {v(T+4+2*i)}, {v(T+5+2*i)}")
            k(f"s_nop 1\n{MF} {v(TS(qt),4)}, {v(vOne,4)}, {v(Pq,4)}, 0")
        k(f"s_nop 7\ns_setpc_b64 {s(sRa,2)}")
    if INL:
        starts = [x[0] for x in outl] + [Leps, Lepf, Lepl]
        pieces = {}; rest = []; cur = None
        for ln_ in ool:
            if ln_.endswith(":") and ln_[:-1] in starts: cur = ln_[:-1]; pieces[cur] = []
            (pieces[cur] if cur else rest).append(ln_)
        out_ = []
        for ln_ in k.lines:
            if ln_.startswith("@@"): out_ += pieces.pop(ln_[2:])
            elif ln_.strip().startswith(f"s_call_b64 {s(sRe,2)}, "):
                tg = ln_.split()[-1]; pc = pieces.pop(tg); le = tg + "_r"
                assert "s_setpc" in pc[-1]
                out_ += [x if "s_setpc" not in x else f"    s_branch {le}" for x in pc[:-1]] + [le + ":"]
            else: out_.append(ln_)
        assert not pieces
        k.lines = out_; ool = rest
    k.lines += ool + ool0
    code, desc = kernel_wrap(name, k.text(), 512, 102, 256)
    return code, desc, f"; @launch kernel={name} grid=(256,1,1) block=(256,1,1) lds={LDS_BYTES}"
```
